```python
import torch

def _softmax(x, axis=-1):
    return torch.softmax(x, dim=axis)
def _gelu(x):
    return torch.nn.functional.gelu(x, approximate="tanh")
def _silu(x):
    return torch.nn.functional.silu(x)
def _sigmoid(x):
    return torch.sigmoid(x)
def _layernorm(x, axis=-1, eps=1e-5):
    m = x.mean(dim=axis, keepdim=True)
    v = x.var(dim=axis, keepdim=True, unbiased=False)
    return (x - m) / torch.sqrt(v + eps)
def _scatter_add(tgt, idx, src, axis=0):
    return tgt.clone().index_add_(axis, idx, src)
def _segment_sum(src, seg, n):
    out = torch.zeros((n,) + src.shape[1:], dtype=src.dtype)
    return out.index_add_(0, seg, src)
def _pad(x, pw):
    flat = tuple(v for pair in reversed(pw) for v in pair)
    return torch.nn.functional.pad(x, flat)

kernel_name = 'interleave_layers__sliding_block_cached__dense_activation_mish__decode'

def setup_inputs():

    _w = (lambda a: (lambda t: t.to(torch.bfloat16) if t.is_floating_point() else t)(torch.as_tensor(a)))
    def _A_setup():
        B, Sq, D = 1, 1, 576
        Hq, Hkv, Sk, Dh = 32, 16, 32768, 128
        assert Hq % Hkv == 0, (Hq, Hkv)
        return {
            "x": _w((lambda *s: torch.randn(*s, dtype=torch.bfloat16) * 0.05)(B, Sq, D)),
            "k_cache": _w((lambda *s: torch.randn(*s, dtype=torch.bfloat16) * 1.6)(B, Hkv, Sk, Dh)),
            "v_cache": _w((lambda *s: torch.randn(*s, dtype=torch.bfloat16) * 1.6)(B, Hkv, Sk, Dh)),
            "wq": _w((lambda *s: torch.randn(*s, dtype=torch.bfloat16) * 1.6)(D, Hq * Dh) * (D ** -0.5)),
            "wo": _w((lambda *s: torch.randn(*s, dtype=torch.bfloat16) * 1.6)(Hq * Dh, D) * ((Hq * Dh) ** -0.5)),
        }
    _A_in = _A_setup()

    def _B_setup():
        B, S, D, F = 1, 1, 576, 4608
        return {
            "x": _w((lambda *s: torch.randn(*s, dtype=torch.bfloat16) * 0.05)(B, S, D)),
            "w1": _w((lambda *s: torch.randn(*s, dtype=torch.bfloat16) * 0.8)(D, F) * (D ** -0.5)),
            "b1": _w((lambda *s: torch.randn(*s, dtype=torch.bfloat16) * 0.8)(F)),
            "w2": _w((lambda *s: torch.randn(*s, dtype=torch.bfloat16) * 0.8)(F, D) * (F ** -0.5)),
        }
    _B_in = _B_setup()

    return {
        "A_x": _A_in["x"],
        "A_k_cache": _A_in["k_cache"],
        "A_v_cache": _A_in["v_cache"],
        "A_wq": _A_in["wq"],
        "A_wo": _A_in["wo"],
        "B_x": _B_in["x"],
        "B_w1": _B_in["w1"],
        "B_b1": _B_in["b1"],
        "B_w2": _B_in["w2"],
    }

def reference(A_x, A_k_cache, A_v_cache, A_wq, A_wo, B_x, B_w1, B_b1, B_w2):
    def _A_ref(x, k_cache, v_cache, wq, wo):
        B, Sq, D = x.shape
        Hq, Dh = 32, 128
        Hkv, Sk = k_cache.shape[1], k_cache.shape[2]
        W = min(4096, max(256, Sk // 4))
        rep = Hq // Hkv
        q = (lambda x, *d: x.permute(*d))((x @ wq).reshape(B, Sq, Hq, Dh), 0, 2, 1, 3)
        k = (lambda x, n, axis: torch.repeat_interleave(x, n, dim=axis))(k_cache[:, :, Sk - W:, :], rep, axis=1)
        v = (lambda x, n, axis: torch.repeat_interleave(x, n, dim=axis))(v_cache[:, :, Sk - W:, :], rep, axis=1)
        scores = torch.einsum("bhqd,bhkd->bhqk", q, k) * (Dh ** -0.5)
        p = _softmax(scores, axis=-1)
        o = torch.einsum("bhqk,bhkd->bhqd", p, v)
        return (lambda x, *d: x.permute(*d))(o, 0, 2, 1, 3).reshape(B, Sq, Hq * Dh) @ wo

    def _B_ref(x, w1, b1, w2):
        h = torch.einsum("bsd,df->bsf", x, w1) + b1
        sp = torch.log1p(torch.exp(-torch.abs(h))) + torch.where(h > 0, h, torch.zeros_like(h))
        act = h * torch.tanh(sp)
        return torch.einsum("bsf,fd->bsd", act, w2)

    x = A_x
    x = x + _A_ref(_layernorm(x, axis=-1), A_k_cache, A_v_cache, A_wq, A_wo)
    x = x + _B_ref(_layernorm(x, axis=-1), B_w1, B_b1, B_w2)
    x = x + _A_ref(_layernorm(x, axis=-1), A_k_cache, A_v_cache, A_wq, A_wo)
    x = x + _B_ref(_layernorm(x, axis=-1), B_w1, B_b1, B_w2)
    return x
```

```python
import sys, math
OPT = dict(prof=0, nv1=8, fast=1, copies=2, pol=-1, hint=1, rot=1, ldf="nt", pf=1, tmo=1 << 17, dbgstage=0)
for a in sys.argv[1:]:
    k, v = a.split("=")
    OPT[k] = v if k in ("ldf",) else int(v, 0)
NAME = "interleave_layers__sliding_block_cached__dense_activation_mish__decode"
LDF = "" if OPT["ldf"] == "plain" else OPT["ldf"].replace("+", " ")
PROF = OPT["prof"]

L = []; TAIL = []
def A(s):
    for ln in s.split("\n"):
        ln = ln.strip()
        if ln: L.append(ln)
def T(s):
    for ln in s.split("\n"):
        ln = ln.strip()
        if ln: TAIL.append(ln)
_uid = [0]
def uid(p):
    _uid[0] += 1
    return f"L_{p}{_uid[0]}"
def vr(a, n=1): return f"v{a}" if n == 1 else f"v[{a}:{a+n-1}]"
def sr(a, n=1): return f"s{a}" if n == 1 else f"s[{a}:{a+n-1}]"
DPPM = "row_mask:0xf bank_mask:0xf"
ROWRED = ["quad_perm:[1,0,3,2]", "quad_perm:[2,3,0,1]", "row_half_mirror", "row_mirror"]

PS = 0x100000
X1O, X2O = 0x00000, 0x10000
IB0 = 0x20000
QPo, SQo, OPo, HPo, S1o, MLo, QSo, HSo, H3o, H5o, IEND = 0x0000, 0x2000, 0x4000, 0x8000, 0xA400, 0xC800, 0xD000, 0xD080, 0xD100, 0xD180, 0xD200
PROBE = 0x1C0000
EPO, FLG, VOT = 0x1B0000, 0x1B1000, 0x1B2000
STAMP = 0x200000
WSREC = 0x210000 if PROF else 0x200000
LV, LR, LWQ = 0, 65536, 135168
LW2 = LR + 32768
LOPS = LWQ
LQ, LP, LM, LH, LMODE, LXS = 153600, 154112, 155136, 155200, 155776, 155904
LDS_BYTES = 163840
sX, sJ, sW, sPASS, sROLE, sMODE, sCOPY, sIB = 4, 5, 6, 7, 8, 9, 10, 11
rK, rV, rWQ, rWA, rW2, rWS, rXI, rB1, rOUT, rDBG = 12, 16, 20, 24, 28, 32, 36, 40, 44, 48
sT0, sT1, sT2, sT3, sT4 = 52, 53, 54, 55, 56
sCNT, sI, sXO = 57, 58, 59
sMODD = 60
sRG, sCG, sHALF, sCG9 = 62, 63, 96, 97
sROT, sXCC, sE1 = 98, 99, 68
sST = 64
vL, vN, vG = 1, 2, 3
vONE, vONE3, vS = 4, 6, 8
vSEL, vR, vB, vS1 = 12, 16, 20, 22
vT = 24
vWQ, vW, vK, vV = 46, 64, 128, 192
vP2 = 224

nstamp = [0]
def stamp(i):
    if PROF: A(f"s_memrealtime {sr(sST, 2)}\ns_lshr_b32 s3, s{sPASS}, 16\ns_add_u32 m0, s3, {i}\ns_waitcnt lgkmcnt(0)\nv_writelane_b32 v9, s{sST}, m0")

def srd(r, lo, hi, nbytes):
    A(f"s_mov_b32 s{r}, s{lo}\ns_and_b32 s{r+1}, s{hi}, 0xffff\ns_mov_b32 s{r+2}, {nbytes}\ns_mov_b32 s{r+3}, 0x20000")

def check(regs, tmp, retry):
    regs = list(regs)
    if len(regs) == 1:
        A(f"v_cmp_eq_u32 vcc, -1, v{regs[0]}")
    else:
        if len(regs) % 2 == 0: A(f"v_max_u32 v{tmp}, v{regs[0]}, v{regs[1]}"); k = 2
        else: A(f"v_max3_u32 v{tmp}, v{regs[0]}, v{regs[1]}, v{regs[2]}"); k = 3
        while k < len(regs):
            A(f"v_max3_u32 v{tmp}, v{tmp}, v{regs[k]}, v{regs[k+1]}"); k += 2
        A(f"v_cmp_eq_u32 vcc, -1, v{tmp}")
    A(f"s_cbranch_vccnz {retry}")

def poll(loads, regs, tmp):
    top, retry = uid("poll"), uid("retry")
    A(f"s_mov_b32 s{sCNT}, 0\n{top}:")
    A(loads)
    A("s_waitcnt vmcnt(0)")
    check(regs, tmp, retry)
    T(f"{retry}:\ns_add_u32 s{sCNT}, s{sCNT}, 1\ns_cmp_lt_u32 s{sCNT}, {OPT['tmo']}\ns_cbranch_scc1 {top}\ns_branch L_end")

def recheck(load, regs, tmp):
    retry, top, back = uid("rc"), uid("rct"), uid("rcb")
    check(regs, tmp, retry)
    A(f"{back}:")
    regs = list(regs)
    T(f"{retry}:\ns_mov_b32 s{sCNT}, 0\n{top}:\n{load}\ns_waitcnt vmcnt(0)\nv_max_u32 v{tmp}, v{regs[0]}, v{regs[1]}\nv_max3_u32 v{tmp}, v{tmp}, v{regs[2]}, v{regs[3]}")
    T(f"v_cmp_eq_u32 vcc, -1, v{tmp}\ns_cbranch_vccz {back}\ns_add_u32 s{sCNT}, s{sCNT}, 1\ns_cmp_lt_u32 s{sCNT}, {OPT['tmo']}\ns_cbranch_scc1 {top}\ns_branch L_end")

def pub(stores, mask):
    slow, back = uid("slow"), uid("back")
    A(f"s_cmp_eq_u32 s{sMODE}, 0")
    if mask is not None: A(f"s_mov_b64 exec, {mask}")
    A(f"s_cbranch_scc1 {slow}")
    A(stores)
    A(f"{back}:")
    if mask is not None: A("s_mov_b64 exec, -1")
    T(f"{slow}:")
    for ln in stores.strip().split("\n"): T(ln.strip() + " sc1")
    T(f"s_branch {back}")

def mask64(lo, hi, reg):
    A(f"s_mov_b32 s{reg}, {lo:#x}\ns_mov_b32 s{reg+1}, {hi:#x}")
    return sr(reg, 2)

def dma(rsrc, voff, soff, ldsaddr_sreg):
    A(f"s_mov_b32 m0, s{ldsaddr_sreg}\ns_nop 0\nbuffer_load_dwordx4 v{voff}, {sr(rsrc,4)}, s{soff} offen {LDF} lds")

def rowred(op, regs):
    for p in ROWRED:
        for r in regs: A(f"{op}_dpp v{r}, v{r}, v{r} {p} {DPPM}")
        if len(regs) < 3 and p != ROWRED[-1]: A(f"s_nop {2 - len(regs)}")

def stats_finish(s1, s2, mu, rstd):
    rowred("v_add_f32", [s1, s2])
    A(f"v_mul_f32 v{mu}, {1/576:.9e}, v{s1}\nv_mul_f32 v{s2}, {1/576:.9e}, v{s2}")
    A(f"v_fma_f32 v{s2}, -v{mu}, v{mu}, v{s2}\nv_max_f32 v{s2}, 0, v{s2}\nv_add_f32 v{s2}, 0x3727c5ac, v{s2}\nv_rsq_f32 v{rstd}, v{s2}")

hdr = open("cdna_kernels/" + NAME + ".s.ref").read().split("; Override launch")[0]
out = [hdr.rstrip(), "; Override launch geometry by editing the next line (default: block=256,", "; grid=ceil(out_elems/256), lds=0). Harness parses it; keep it on one line.",
       f"; @launch grid=(256,1,1) block=(320,1,1) lds={LDS_BYTES}",
       '.amdgcn_target "amdgcn-amd-amdhsa--gfx950"', ".text", f".globl {NAME}_kernel", ".p2align 8", f".type {NAME}_kernel,@function", f"{NAME}_kernel:"]

A("s_cmp_ge_u32 s2, 256\ns_cbranch_scc1 L_end")
if PROF: A(f"s_memrealtime {sr(sST+2,2)}\nv_mov_b32 v9, 0")
A("s_load_dwordx2 s[64+32:64+33], s[0:1], 0".replace("64+32", "100").replace("64+33", "101"))
A(f"s_load_dwordx4 s[{rK}:{rK+3}], s[0:1], 8\ns_load_dwordx4 s[{rWQ}:{rWQ+3}], s[0:1], 24\ns_load_dwordx4 s[{rXI}:{rXI+3}], s[0:1], 48\ns_load_dwordx4 s[{rOUT}:{rOUT+3}], s[0:1], 64\ns_load_dwordx4 s[{rDBG}:{rDBG+3}], s[0:1], 80")
A(f"""s_and_b32 s{sX}, s2, 7
s_lshr_b32 s{sJ}, s2, 3
v_lshrrev_b32 v{vG}, 6, v0
v_and_b32 v{vL}, 63, v0
v_readfirstlane_b32 s{sW}, v{vG}
v_and_b32 v{vN}, 15, v0
v_bfe_u32 v{vG}, v0, 4, 2
s_and_b32 s{sCG}, s{sJ}, 7
s_lshr_b32 s{sRG}, s{sJ}, 3
s_getreg_b32 s{sXCC}, hwreg(HW_REG_XCC_ID)
s_and_b32 s{sXCC}, s{sXCC}, 7
s_lshl_b32 s{sIB}, s{sX}, 16
s_add_u32 s{sIB}, s{sIB}, {IB0}
s_mov_b32 s{sPASS}, 0
s_mov_b32 s{sMODE}, 0
s_mov_b32 s{sCOPY}, 0
s_mov_b32 s{sI}, s{sIB}
s_cmp_ge_u32 s{sJ}, 18
s_cselect_b32 s{sROLE}, 1, 0
s_cmp_ge_u32 s{sJ}, 30
s_cselect_b32 s{sROLE}, 2, s{sROLE}""")
A(f"""s_cmp_ge_u32 s{sJ}, 9
s_cselect_b32 s{sHALF}, 1, 0
s_mul_i32 s{sT0}, s{sHALF}, 9
s_sub_u32 s{sCG9}, s{sJ}, s{sT0}
s_sub_u32 s{sT0}, s{sJ}, 18
s_and_b32 s{sT1}, s{sT0}, 3
s_lshr_b32 s{sT0}, s{sT0}, 2
s_and_b32 s{sT0}, s{sT0}, 3
s_cmp_eq_u32 s{sROLE}, 0
s_cselect_b32 s{sHALF}, s{sHALF}, s{sT1}
s_cselect_b32 s{sCG9}, s{sCG9}, s{sT0}
s_lshr_b32 s{sT0}, s{sJ}, 4
s_lshl_b32 s{sT1}, s{sX}, 1
s_add_u32 s{sT0}, s{sT0}, s{sT1}
s_lshl_b32 s{sT0}, s{sT0}, 23
s_and_b32 s{sT1}, s{sJ}, 15
s_lshl_b32 s{sT1}, s{sT1}, 16
s_add_u32 s{sT0}, s{sT0}, s{sT1}
s_add_u32 s{sT0}, s{sT0}, {28672*256}
s_waitcnt lgkmcnt(0)""")
A(f"s_add_u32 s{rV}, s14, s{sT0}\ns_addc_u32 s{rV+1}, s15, 0\ns_and_b32 s{rV+1}, s{rV+1}, 0xffff\ns_mov_b32 s{rV+2}, 65536\ns_mov_b32 s{rV+3}, 0x20000")
A(f"s_add_u32 s{rK}, s12, s{sT0}\ns_addc_u32 s{rK+1}, s13, 0\ns_and_b32 s{rK+1}, s{rK+1}, 0xffff\ns_mov_b32 s{rK+2}, 65536\ns_mov_b32 s{rK+3}, 0x20000")
srd(rWS, 50, 51, WSREC)
A(f"s_cmp_eq_u32 s{sROLE}, 0\ns_cselect_b32 s{rWA}, s22, s36\ns_cselect_b32 s{rWA+1}, s23, s37\ns_and_b32 s{rWA+1}, s{rWA+1}, 0xffff")
A(f"s_mov_b32 s{sT1}, {576*4608*2}\ns_cmp_eq_u32 s{sROLE}, 0\ns_cselect_b32 s{rWA+2}, {4096*576*2}, s{sT1}\ns_mov_b32 s{rWA+3}, 0x20000")
srd(rWQ, 20, 21, 576*4096*2)
srd(rW2, 44, 45, 4608*576*2)
srd(rB1, 38, 39, 4608*2)
srd(rXI, 100, 101, 1152)
srd(rOUT, 46, 47, 1152)
if PROF: A(f"v_writelane_b32 v9, s{sST+2}, 0")
A(f"s_cmp_eq_u32 s{sW}, 4\ns_cbranch_scc1 L_service")

t = vT
A(f"""s_mul_i32 s{sT0}, s{sRG}, 288
v_lshlrev_b32 v{t}, 4, v{vL}
v_add_u32 v{t}, s{sT0}, v{t}
s_cmp_eq_u32 s{sW}, 0
s_cselect_b32 s{sT1}, 18, 0
v_cmp_gt_u32 vcc, s{sT1}, v{vL}
v_mov_b32 v{t+1}, 0x10000
v_mov_b32 v{vONE}, 0x3f803f80
v_cndmask_b32 v{t}, v{t+1}, v{t}, vcc
buffer_load_dwordx4 {vr(vP2,4)}, v{t}, {sr(rXI,4)}, 0 offen""")
A(f"""s_lshl_b32 s{sT0}, s{sCG9}, 7
s_lshl_b32 s{sT1}, s{sW}, 5
s_add_u32 s{sT0}, s{sT0}, s{sT1}
v_lshl_add_u32 v{t+2}, v{vG}, 3, s{sT0}
buffer_load_dwordx2 {vr(vR+2,2)}, v{t+2}, {sr(rXI,4)}, 0 offen
s_mul_i32 s{sT0}, s{sX}, 1152
s_mul_i32 s{sT1}, s{sHALF}, 576
s_add_u32 s{sT0}, s{sT0}, s{sT1}
s_mul_i32 s{sT1}, s{sW}, 144
s_add_u32 s{sT0}, s{sT0}, s{sT1}
v_min_u32 v{t+3}, 35, v{vL}
v_lshl_add_u32 v{t+3}, v{t+3}, 2, s{sT0}
buffer_load_dword v{vB+1}, v{t+3}, {sr(rB1,4)}, 0 offen""")
def wdma_voff(dst, rowbytes, kind):
    if kind == "std":
        A(f"v_bfe_u32 v{dst}, v{vL}, 4, 1\ns_and_b32 s{sT0}, s{sW}, 1\ns_lshl_b32 s{sT0}, s{sT0}, 1")
    else:
        A(f"v_lshrrev_b32 v{dst}, 5, v{vL}\ns_and_b32 s{sT0}, s{sW}, 2")
    A(f"""v_or_b32 v{dst}, s{sT0}, v{dst}
v_lshlrev_b32 v{dst}, 1, v{dst}
v_xor_b32 v{dst}, v{dst}, v{vL}
v_and_b32 v{dst}, 7, v{dst}
v_lshlrev_b32 v{dst}, 4, v{dst}
v_lshrrev_b32 v{dst+1}, 3, v{vL}
s_mov_b32 s{sT0}, {rowbytes}
v_mad_u32_u24 v{dst}, v{dst+1}, s{sT0}, v{dst}""")
wdma_voff(t+4, 8192, "std")
A(f"""s_mul_i32 s{sT1}, s{sRG}, {144*8192}
s_lshl_b32 s{sT2}, s{sW}, 16
s_add_u32 s{sT1}, s{sT1}, s{sT2}
s_lshl_b32 s{sT2}, s{sX}, 10
s_add_u32 s{sT1}, s{sT1}, s{sT2}
s_lshl_b32 s{sT2}, s{sCG}, 7
s_add_u32 s{sT1}, s{sT1}, s{sT2}
s_lshl_b32 s{sT2}, s{sW}, 10
s_add_u32 s{sT2}, s{sT2}, {LWQ}
s_cmp_ge_u32 s{sW}, 2
s_cbranch_scc1 L_wq4
s_add_u32 s{sT3}, s{sT1}, {128*8192}
s_add_u32 s{sT4}, s{sT2}, {16*1024}""")
dma(rWQ, t+4, sT3, sT4)
A("L_wq4:")
for i in range(4):
    dma(rWQ, t+4, sT1, sT2)
    if i < 3: A(f"s_add_u32 s{sT1}, s{sT1}, {32*8192}\ns_add_u32 s{sT2}, s{sT2}, 4096")
A(f"""s_lshl_b32 s{sT0}, s{sW}, 2
v_add_u32 v{t+6}, s{sT0}, v{vG}
v_xor_b32 v{t+6}, v{t+6}, v{vN}
v_lshlrev_b32 v{t+6}, 4, v{t+6}
v_lshl_add_u32 v{t+6}, v{vG}, 8, v{t+6}
s_lshl_b32 s{sT0}, s{sW}, 10
v_add_u32 v{t+6}, s{sT0}, v{t+6}
s_add_u32 s{sT3}, s{sT0}, {LR}""")
if OPT["rot"]: A(f"s_lshl_b32 s{sROT}, s2, 13")
else: A(f"s_mov_b32 s{sROT}, 0")
for i in range(16):
    A(f"s_add_u32 s{sT1}, s{sROT}, {i*4096}\ns_and_b32 s{sT1}, s{sT1}, 0xffff\ns_add_u32 s{sT2}, s{sT1}, s{sT3}")
    dma(rK, t+6, sT1, sT2)
stamp(1)
A(f"v_mov_b32 v{vONE+1}, v{vONE}\ns_cmp_eq_u32 s{sW}, 0\ns_cselect_b32 s{sT0}, 0x3f803f80, 0\nv_mov_b32 v{vONE3}, s{sT0}\nv_mov_b32 v{vONE3+1}, s{sT0}")
mask64(0xffff0000, 0xffff0000, sMODD)
A(f"""s_and_b32 s{sT0}, s{sW}, 1
s_lshl_b32 s{sT0}, s{sT0}, 1
v_lshrrev_b32 v{t}, 3, v{vN}
v_add_u32 v{t}, s{sT0}, v{t}
v_and_b32 v{t+1}, 1, v{vN}
v_lshlrev_b32 v{t+1}, 4, v{t+1}
v_mov_b32 v{t+2}, 0x3d80
v_lshlrev_b32 v{t+1}, v{t+1}, v{t+2}
v_cmp_eq_u32 vcc, v{t}, v{vG}
v_bfe_u32 v{t+2}, v{vN}, 1, 2
s_nop 0
v_cndmask_b32 v{t+1}, 0, v{t+1}, vcc""")
for r in range(4):
    A(f"v_cmp_eq_u32 vcc, {r}, v{t+2}\ns_nop 1\nv_cndmask_b32 v{vSEL+r}, 0, v{t+1}, vcc")
def traddr_std(dst, base):
    A(f"""v_bfe_u32 v{dst}, v{vL}, 3, 2
v_xor_b32 v{dst}, s{sW}, v{dst}
v_lshlrev_b32 v{dst}, 5, v{dst}
v_and_b32 v{dst+1}, 3, v{vL}
v_lshl_add_u32 v{dst}, v{dst+1}, 3, v{dst}
v_bfe_u32 v{dst+1}, v{vL}, 2, 2
v_lshl_add_u32 v{dst}, v{dst+1}, 7, v{dst}
v_lshl_add_u32 v{dst}, v{vG}, 10, v{dst}
v_add_u32 v{dst}, {base}, v{dst}""")
def traddr_tail(dst, base):
    A(f"""v_bfe_u32 v{dst}, v{vL}, 3, 1
v_and_b32 v{dst+1}, 2, v{vG}
v_or_b32 v{dst}, v{dst}, v{dst+1}
v_xor_b32 v{dst}, s{sW}, v{dst}
v_lshlrev_b32 v{dst}, 5, v{dst}
v_and_b32 v{dst+1}, 3, v{vL}
v_lshl_add_u32 v{dst}, v{dst+1}, 3, v{dst}
v_lshrrev_b32 v{dst+1}, 2, v{vL}
v_lshl_add_u32 v{dst}, v{dst+1}, 7, v{dst}
v_add_u32 v{dst}, {base + 16384}, v{dst}""")
def tr_slice(dstreg, a_std, a_tail, off):
    for ks in range(4):
        for u in range(2): A(f"ds_read_b64_tr_b16 {vr(dstreg+4*ks+2*u,2)}, v{a_std} offset:{off+ks*4096+u*512}")
    A(f"ds_read_b64_tr_b16 {vr(dstreg+16,2)}, v{a_tail} offset:{off}")
traddr_std(t, LWQ); traddr_tail(t+2, LWQ)
A(f"s_mul_i32 s{sT0}, s{sW}, 1152\ns_add_u32 s{sT0}, s{sT0}, {LXS}\nv_lshl_add_u32 v{t+4}, v{vL}, 4, s{sT0}")
for r in range(4): A(f"v_mov_b32 v{vP2+4+r}, 0")
A("s_waitcnt vmcnt(16)")
A(f"ds_write_b128 v{t+4}, {vr(vP2,4)}\ns_mov_b64 exec, 0xff\nds_write_b128 v{t+4}, {vr(vP2+4,4)} offset:1024\ns_mov_b64 exec, -1")
A(f"""v_lshlrev_b32 v{vR}, 16, v{vR+2}
v_and_b32 v{vR+1}, 0xffff0000, v{vR+2}
v_lshlrev_b32 v{vR+2}, 16, v{vR+3}
v_and_b32 v{vR+3}, 0xffff0000, v{vR+3}""")
for r in range(4): A(f"v_mul_f32 v{vR+r}, 0x3b800000, v{vR+r}")
A(f"v_lshlrev_b32 v{vB}, 16, v{vB+1}\nv_and_b32 v{vB+1}, 0xffff0000, v{vB+1}")
A("s_waitcnt lgkmcnt(0)\ns_barrier")
stamp(2)
tr_slice(vWQ, t, t+2, 0)
A(f"v_mov_b32 v{vP2}, v{vONE}\nv_mov_b32 v{vP2+1}, v{vONE}\nv_mov_b32 v{vP2+2}, v{vONE}\nv_mov_b32 v{vP2+3}, v{vONE}")
A(f"v_mov_b32 v{vP2+8}, 0\nv_mov_b32 v{vP2+9}, 0\nv_mov_b32 v{vP2+10}, v{vONE}\nv_mov_b32 v{vP2+11}, v{vONE}")
A(f"""s_lshl_b32 s{sT0}, s{sCG}, 10
s_lshl_b32 s{sT1}, s{sW}, 8
s_add_u32 s{sT0}, s{sT0}, s{sT1}
s_lshl_b32 s{sT1}, s{sRG}, 2
s_add_u32 s{sT0}, s{sT0}, s{sT1}
s_add_u32 s{sT0}, s{sT0}, {SQo}
v_lshl_add_u32 v{t+5}, v{vN}, 4, s{sT0}
s_waitcnt lgkmcnt(0)""")
for ks in range(4): A(f"v_mfma_f32_16x16x32_bf16 {vr(vP2+4,4)}, {vr(vP2,4)}, {vr(vWQ+4*ks,4)}, {'0' if ks == 0 else vr(vP2+4,4)}")
A(f"v_mfma_f32_16x16x32_bf16 {vr(vP2+4,4)}, {vr(vP2+8,4)}, {vr(vWQ+14,4)}, {vr(vP2+4,4)}")
A(f"s_nop 7\ns_mov_b64 exec, 0xffff\nbuffer_store_dword v{vP2+4}, v{t+5}, {sr(rWS,4)}, s{sI} offen sc1\ns_mov_b64 exec, -1")

def x_gather_addrs(rg_s, a1, a2, aw):
    A(f"""s_mul_i32 s{sT0}, s{rg_s}, 288
s_lshl_b32 s{sT1}, s{sW}, 14
s_add_u32 s{sT0}, s{sT0}, s{sT1}
s_add_u32 s{sT0}, s{sT0}, s{sCOPY}
v_mul_u32_u24 v{a1}, 3641, v{vL}
v_lshrrev_b32 v{a1}, 16, v{a1}
v_mul_u32_u24 v{a2}, 18, v{a1}
v_sub_u32 v{a2}, v{vL}, v{a2}
v_lshlrev_b32 v{a1}, 11, v{a1}
v_lshl_add_u32 v{a1}, v{a2}, 4, v{a1}
v_add_u32 v{a1}, s{sT0}, v{a1}
s_add_u32 s{sT0}, s{sT0}, {3*2048 + 160}
v_and_b32 v{a2}, 7, v{vL}
v_lshl_add_u32 v{a2}, v{a2}, 4, s{sT0}
s_mul_i32 s{sT0}, s{sW}, 1152
s_add_u32 s{sT0}, s{sT0}, {LXS}
v_lshl_add_u32 v{aw}, v{vL}, 4, s{sT0}""")
def ln_read_addrs(ar, at, as1, as3, fa):
    A(f"""v_mov_b32 v{fa+16}, 0
v_mov_b32 v{fa+17}, 0
v_mul_u32_u24 v{ar}, 288, v{vN}
v_lshl_add_u32 v{at}, v{vG}, 3, v{ar}
v_add_u32 v{at}, {LXS + 256}, v{at}
v_lshl_add_u32 v{ar}, v{vG}, 4, v{ar}
v_add_u32 v{ar}, {LXS}, v{ar}
v_lshrrev_b32 v{as3}, 2, v{vL}
v_mul_u32_u24 v{as3}, 288, v{as3}
v_and_b32 v{as1}, 3, v{vL}
v_lshl_add_u32 v{as3}, v{as1}, 3, v{as3}
s_lshl_b32 s{sT0}, s{sW}, 5
s_add_u32 s{sT0}, s{sT0}, {LXS}
v_add_u32 v{as1}, s{sT0}, v{as3}
v_add_u32 v{as3}, {LXS + 256}, v{as3}""")
def hint_wait(off, tmp):
    if not OPT["hint"]: return
    A(f"v_min_u32 v{tmp}, 17, v{vL}\nv_lshlrev_b32 v{tmp}, 2, v{tmp}\nv_add_u32 v{tmp}, {off}, v{tmp}")
    poll(f"buffer_load_dword v{tmp+1}, v{tmp}, {sr(rWS,4)}, s{sXO} offen sc1", [tmp+1], tmp+2)
def x_gather(a1, a2, aw, g0, xoff_s, tmp):
    for r in range(4): A(f"v_mov_b32 v{g0+4+r}, 0")
    poll(f"buffer_load_dwordx4 {vr(g0,4)}, v{a1}, {sr(rWS,4)}, s{xoff_s} offen sc1\ns_mov_b64 exec, 0xff\nbuffer_load_dwordx4 {vr(g0+4,4)}, v{a2}, {sr(rWS,4)}, s{xoff_s} offen sc1\ns_mov_b64 exec, -1",
         range(g0, g0+8), tmp)
    A(f"ds_write_b128 v{aw}, {vr(g0,4)}\ns_mov_b64 exec, 0xff\nds_write_b128 v{aw}, {vr(g0+4,4)} offset:1024\ns_mov_b64 exec, -1\ns_waitcnt lgkmcnt(0)\ns_barrier")
def ln_gemv(nt, wreg, ar, at, as1, as3, fa, fs, acc, sacc, adst, astat, statmask_s):
    A(f"ds_read_b64_tr_b16 {vr(fs,2)}, v{as1}\nds_read_b64_tr_b16 {vr(fs+2,2)}, v{as1} offset:128\nds_read_b64_tr_b16 {vr(fs+4,2)}, v{as3}")
    for ks in range(4): A(f"ds_read_b128 {vr(fa+4*ks,4)}, v{ar} offset:{ks*64}")
    A(f"ds_read_b64 {vr(fa+18,2)}, v{at}")
    A("s_waitcnt lgkmcnt(7)")
    A(f"v_mfma_f32_16x16x16_bf16 {vr(sacc,4)}, {vr(vONE,2)}, {vr(fs,2)}, 0\ns_waitcnt lgkmcnt(6)")
    A(f"v_mfma_f32_16x16x16_bf16 {vr(sacc+4,4)}, {vr(vONE,2)}, {vr(fs+2,2)}, 0\ns_waitcnt lgkmcnt(5)")
    A(f"v_mfma_f32_16x16x16_bf16 {vr(sacc+8,4)}, {vr(vONE3,2)}, {vr(fs+4,2)}, 0")
    seq = []
    for ks in range(5):
        for u in range(nt):
            c = "0" if ks == 0 else vr(acc+4*u, 4)
            if ks < 4: m = f"v_mfma_f32_16x16x32_bf16 {vr(acc+4*u,4)}, {vr(fa+4*ks,4)}, {vr(wreg+18*u+4*ks,4)}, {c}"
            else: m = f"v_mfma_f32_16x16x32_bf16 {vr(acc+4*u,4)}, {vr(fa+16,4)}, {vr(wreg+18*u+14,4)}, {c}"
            seq.append((f"s_waitcnt lgkmcnt({4-ks})\n" if u == 0 else "") + m)
    for m in seq: A(m)
    s1, s2 = fs, fs + 1
    if nt == 1: A("s_nop 1")
    A(f"""v_add_f32 v{s1}, v{sacc}, v{sacc+4}
v_mul_f32 v{s2}, v{sacc}, v{sacc}
v_add_f32 v{s1}, v{s1}, v{sacc+8}
v_fmac_f32 v{s2}, v{sacc+4}, v{sacc+4}
v_fmac_f32 v{s2}, v{sacc+8}, v{sacc+8}
s_nop 1""")
    rowred("v_add_f32", [s1, s2])
    for u in range(nt):
        a = acc + 4*u
        A(f"v_add_f32 v{a}, v{a}, v{a+1}\nv_add_f32 v{a+2}, v{a+2}, v{a+3}")
    for u in range(nt):
        a = acc + 4*u
        A(f"v_add_f32 v{a}, v{a}, v{a+2}")
    if nt == 1:
        a = acc
        A(f"v_mov_b32 v{a+1}, v{a}\ns_nop 1\nv_permlane32_swap_b32 v{a}, v{a+1}\nv_add_f32 v{a}, v{a}, v{a+1}\nv_mov_b32 v{a+1}, v{a}\ns_nop 1\nv_permlane16_swap_b32 v{a}, v{a+1}\nv_add_f32 v{a}, v{a}, v{a+1}")
        m = "0xffff"
    else:
        a, b, c = acc, acc + 4, acc + 8
        A(f"v_mov_b32 v{c+1}, v{c}\ns_nop 0\nv_permlane32_swap_b32 v{a}, v{b}\nv_permlane32_swap_b32 v{c}, v{c+1}\nv_add_f32 v{a}, v{a}, v{b}\nv_add_f32 v{c}, v{c}, v{c+1}\ns_nop 1\nv_permlane16_swap_b32 v{a}, v{c}\nv_add_f32 v{a}, v{a}, v{c}")
        m = mask64(0xffffffff, 0x0000ffff, sT2)
    pub(f"buffer_store_dwordx2 {vr(s1,2)}, v{astat}, {sr(rWS,4)}, s{sI} offen", sr(statmask_s, 2))
    pub(f"buffer_store_dword v{acc}, v{adst}, {sr(rWS,4)}, s{sI} offen", m)

qa1, qa2, qaw, qar, qat, qas1, qas3, qadst, qastat = t, t+1, t+2, t+3, t+4, t+5+1, t+7, t+8, t+9
def q_out_addrs():
    A(f"""s_lshl_b32 s{sT0}, s{sCG}, 10
s_lshl_b32 s{sT1}, s{sW}, 8
s_add_u32 s{sT0}, s{sT0}, s{sT1}
s_lshl_b32 s{sT1}, s{sRG}, 2
s_add_u32 s{sT0}, s{sT0}, s{sT1}
v_lshl_add_u32 v{qadst}, v{vN}, 4, s{sT0}
s_lshl_b32 s{sT0}, s{sRG}, 5
s_lshl_b32 s{sT1}, s{sW}, 3
s_add_u32 s{sT0}, s{sT0}, s{sT1}
s_add_u32 s{sT0}, s{sT0}, {QSo}
v_mov_b32 v{qastat}, s{sT0}
s_cmp_eq_u32 s{sCG}, 0
s_cselect_b64 s[100:101], 1, 0""")
ln_read_addrs(qar, qat, qas1, qas3, vW); q_out_addrs()
A("s_branch L_q_reads")

A("L_q:")
x_gather_addrs(sRG, qa1, qa2, qaw); ln_read_addrs(qar, qat, qas1, qas3, vW); q_out_addrs()
A(f"s_mov_b32 s{sXO}, s{sI}")
hint_wait(H5o, t+10)
stamp(12)
A(f"s_mov_b32 s{sXO}, {X2O}\ns_mov_b32 s{sPASS}, {PS}\ns_add_u32 s{sI}, s{sIB}, {PS}")
x_gather(qa1, qa2, qaw, vP2, sXO, t+10)
stamp(13)
A("L_q_reads:")
ln_gemv(1, vWQ, qar, qat, qas1, qas3, vW, vW+20, vW+28, vW+32, qadst, qastat, 100)

aq1, aq2, aqw, aqr, apw, amw, apr, amr, avt0, avt1, aop, aml, axr = [t + k for k in range(13)]
gq, gs = vW + 40, vW + 44
A(f"""s_lshr_b32 s{sT0}, s{sJ}, 4
s_lshl_b32 s{sT0}, s{sT0}, 12
v_lshl_add_u32 v{aq1}, v0, 4, s{sT0}
v_lshlrev_b32 v{aq2}, 3, v{vN}
v_add_u32 v{aq2}, {QSo}, v{aq2}
v_lshlrev_b32 v{aqw}, 1, v0
v_add_u32 v{aqw}, {LQ}, v{aqw}
v_lshrrev_b32 v{aqr}, 3, v{vN}
v_lshlrev_b32 v{apr}, 9, v{aqr}
v_lshlrev_b32 v{aqr}, 8, v{aqr}
v_lshl_add_u32 v{aqr}, v{vG}, 4, v{aqr}
v_add_u32 v{aqr}, {LQ}, v{aqr}
v_lshl_add_u32 v{apr}, v{vG}, 4, v{apr}
v_add_u32 v{apr}, {LP}, v{apr}
v_lshrrev_b32 v{amr}, 5, v{vL}
v_lshlrev_b32 v{apw}, 9, v{amr}
v_and_b32 v{amw}, 31, v{vL}
v_lshl_add_u32 v{apw}, v{amw}, 2, v{apw}
s_lshl_b32 s{sT0}, s{sW}, 7
s_add_u32 s{sT0}, s{sT0}, {LP}
v_add_u32 v{apw}, s{sT0}, v{apw}
v_lshlrev_b32 v{amr}, 4, v{amr}
s_lshl_b32 s{sT0}, s{sW}, 2
s_add_u32 s{sT0}, s{sT0}, {LM}
v_add_u32 v{amw}, s{sT0}, v{amr}
v_and_b32 v{avt0}, 3, v{vL}
v_lshl_add_u32 v{amr}, v{avt0}, 2, v{amr}
v_add_u32 v{amr}, {LM}, v{amr}""")
A(f"""v_bfe_u32 v{avt1}, v{vL}, 3, 2
v_bfe_u32 v{aop}, v{vL}, 2, 1
v_lshl_or_b32 v{avt1}, v{aop}, 2, v{avt1}
s_lshl_b32 s{sT0}, s{sW}, 1
v_xor_b32 v{avt1}, s{sT0}, v{avt1}
v_lshlrev_b32 v{avt1}, 5, v{avt1}
v_lshl_add_u32 v{avt0}, v{avt0}, 3, v{avt1}
v_lshl_add_u32 v{avt0}, v{aop}, 12, v{avt0}
v_bfe_u32 v{aop}, v{vL}, 3, 1
v_lshl_add_u32 v{avt0}, v{aop}, 8, v{avt0}
v_lshl_add_u32 v{avt0}, v{vG}, 10, v{avt0}
v_xor_b32 v{avt1}, 32, v{avt0}""")
A(f"""s_lshl_b32 s{sT0}, s{sJ}, 9
s_lshl_b32 s{sT1}, s{sW}, 6
s_add_u32 s{sT0}, s{sT0}, s{sT1}
s_add_u32 s{sT0}, s{sT0}, {OPo}
v_lshrrev_b32 v{aml}, 5, v{vL}
v_lshlrev_b32 v{aop}, 8, v{aml}
v_lshl_add_u32 v{aop}, v{vN}, 2, v{aop}
v_add_u32 v{aop}, s{sT0}, v{aop}
s_lshl_b32 s{sT0}, s{sJ}, 6
s_lshl_b32 s{sT1}, s{sW}, 2
s_add_u32 s{sT0}, s{sT0}, s{sT1}
s_add_u32 s{sT0}, s{sT0}, {MLo}
v_lshl_add_u32 v{aml}, v{aml}, 4, s{sT0}""")
qloads = f"buffer_load_dwordx4 {vr(gq,4)}, v{aq1}, {sr(rWS,4)}, s{sI} offen sc1\nbuffer_load_dwordx2 {vr(gs,2)}, v{aq2}, {sr(rWS,4)}, s{sI} offen sc1"
A(f"s_cmp_lg_u32 s{sPASS}, 0\ns_cbranch_scc1 L_att_poll")
NV1 = OPT["nv1"]
vo = t + 13
A(f"""s_and_b32 s{sT0}, s{sW}, 1
s_lshl_b32 s{sT0}, s{sT0}, 1
v_and_b32 v{vo}, 1, v{vG}
v_or_b32 v{vo}, s{sT0}, v{vo}
v_lshlrev_b32 v{vo}, 1, v{vo}
v_xor_b32 v{vo}, v{vo}, v{vN}
v_lshlrev_b32 v{vo}, 4, v{vo}
v_lshl_add_u32 v{vo}, v{vG}, 8, v{vo}
s_lshl_b32 s{sT3}, s{sW}, 10
v_add_u32 v{vo}, s{sT3}, v{vo}
v_xor_b32 v{vo+1}, 128, v{vo}""")
def vdma(i):
    A(f"s_add_u32 s{sT1}, s{sROT}, {(i & 7)*4096}\ns_and_b32 s{sT1}, s{sT1}, 0x7fff")
    if i >= 8: A(f"s_add_u32 s{sT1}, s{sT1}, 0x8000")
    A(f"s_add_u32 s{sT2}, s{sT1}, s{sT3}")
    dma(rV, vo + (i & 1), sT1, sT2)
for i in range(NV1): vdma(i)
ka = vW
A(f"s_lshl_b32 s{sT0}, s{sW}, 14\ns_add_u32 s{sT0}, s{sT0}, {LR}\nv_lshl_add_u32 v{ka+4}, v{vN}, 8, s{sT0}\nv_xor_b32 v{ka+5}, v{vG}, v{vN}")
for ks in range(4): A(f"v_xor_b32 v{ka+ks}, {ks << 2}, v{ka+5}\nv_lshl_add_u32 v{ka+ks}, v{ka+ks}, 4, v{ka+4}")
A(f"v_mov_b32 v{ka+4}, {LMODE}\nv_add_u32 v{ka+6}, {SQo}, v{aq1}")
A(f"s_waitcnt vmcnt({NV1 + 2})\ns_barrier")
stamp(3)
A(f"ds_read_b64 {vr(ka+8,2)}, v{ka+4}")
for Tt in range(4):
    for ks in range(4): A(f"ds_read_b128 {vr(vK+16*Tt+4*ks,4)}, v{ka+ks} offset:{Tt*4096}")
    if Tt == 1: A(f"s_waitcnt lgkmcnt(8)\nv_readfirstlane_b32 s{sMODE}, v{ka+8}\nv_readfirstlane_b32 s{sE1}, v{ka+9}")
gsq = vW + 36
q0loads = qloads + f"\nbuffer_load_dwordx4 {vr(gsq,4)}, v{ka+6}, {sr(rWS,4)}, s{sI} offen sc1"
A(q0loads)
for i in range(NV1, 16): vdma(i)
A(f"s_waitcnt vmcnt({16 - NV1})")
check(list(range(gsq, gsq+4)) + list(range(gq, gq+6)), ka+7, "L_q0_retry")
A("L_q0_ok:")
A(f"v_add_f32 v{gsq}, v{gsq}, v{gsq+1}\nv_add_f32 v{gsq+2}, v{gsq+2}, v{gsq+3}\nv_add_f32 v{vS}, v{gsq}, v{gsq+2}\ns_branch L_att_ok")
T(f"L_q0_retry:\ns_mov_b32 s{sCNT}, 0\nL_q0_top:\n{q0loads}\ns_waitcnt vmcnt(0)")
T(f"v_max_u32 v{ka+7}, v{gsq}, v{gsq+1}\nv_max3_u32 v{ka+7}, v{ka+7}, v{gsq+2}, v{gsq+3}")
for k in range(3): T(f"v_max3_u32 v{ka+7}, v{ka+7}, v{gq+2*k}, v{gq+2*k+1}")
T(f"v_cmp_eq_u32 vcc, -1, v{ka+7}\ns_cbranch_vccz L_q0_ok\ns_add_u32 s{sCNT}, s{sCNT}, 1\ns_cmp_lt_u32 s{sCNT}, {OPT['tmo']}\ns_cbranch_scc1 L_q0_top\ns_branch L_end")
A("L_att_poll:")
def res_addr(dst, tmp):
    A(f"""v_lshrrev_b32 v{dst}, 2, v{vN}
v_lshlrev_b32 v{dst}, 14, v{dst}
v_and_b32 v{tmp}, 3, v{vN}
v_lshl_add_u32 v{dst}, v{tmp}, 11, v{dst}
v_lshl_add_u32 v{dst}, v{vG}, 4, v{dst}
s_lshl_b32 s{sT0}, s{sCG9}, 7
s_lshr_b32 s{sT1}, s{sW}, 1
s_lshl_b32 s{sT1}, s{sT1}, 6
s_add_u32 s{sT0}, s{sT0}, s{sT1}
s_add_u32 s{sT0}, s{sT0}, s{sCOPY}
v_add_u32 v{dst}, s{sT0}, v{dst}""")
res_addr(axr, t+13)
poll(qloads, range(gq, gq+6), t+13)
gres = t + 16
A(f"buffer_load_dwordx4 {vr(gres,4)}, v{axr}, {sr(rWS,4)}, s{sXO} offen sc1")
A("L_att_ok:")
stamp(4)
mu, cexp = t + 14, t + 15
A(f"v_add_f32 v{gq}, v{gq}, v{gq+1}\nv_add_f32 v{gq+2}, v{gq+2}, v{gq+3}")
rowred("v_add_f32", [gs, gs+1])
A(f"v_add_f32 v{gq}, v{gq}, v{gq+2}\nv_mul_f32 v{mu}, {1/576:.9e}, v{gs}\nv_mul_f32 v{gs+1}, {1/576:.9e}, v{gs+1}")
A(f"v_fma_f32 v{gq}, -v{mu}, v{vS}, v{gq}\nv_fma_f32 v{gs+1}, -v{mu}, v{mu}, v{gs+1}\nv_cvt_pk_bf16_f32 v{gq}, v{gq}, v{gq}\nv_max_f32 v{gs+1}, 0, v{gs+1}")
A(f"ds_write_b16 v{aqw}, v{gq}\nv_add_f32 v{gs+1}, 0x3727c5ac, v{gs+1}\nv_rsq_f32 v{cexp}, v{gs+1}")
A("s_waitcnt lgkmcnt(0)\ns_barrier")
fq, D = vW, vW + 32
for ks in range(4): A(f"ds_read_b128 {vr(fq+4*ks,4)}, v{aqr} offset:{ks*64}")
A(f"v_mul_f32 v{cexp}, {128**-0.5*math.log2(math.e):.9e}, v{cexp}")
def vtr(ks, tau, u): return f"ds_read_b64_tr_b16 {vr(vV+8*ks+4*tau+2*u,2)}, v{avt0+tau} offset:{ks*8192+u*512}"
vq = [vtr(ks, tau, u) for ks in range(4) for tau in range(2) for u in range(2)]
for Tt in range(4):
    for ks in range(4):
        if Tt == 0: A(f"s_waitcnt lgkmcnt({3-ks})")
        A(f"v_mfma_f32_16x16x32_bf16 {vr(D+4*Tt,4)}, {vr(fq+4*ks,4)}, {vr(vK+16*Tt+4*ks,4)}, {'0' if ks == 0 else vr(D+4*Tt,4)}")
        if Tt in (1, 2): A(vq.pop(0)); A(vq.pop(0))
sa, sb, um = t + 20, t + 21, t + 13
A(f"s_nop 1\nv_cndmask_b32 v{sa}, v{D}, v{D+8}, {sr(sMODD,2)}\ns_nop 4\nv_cndmask_b32 v{sb}, v{D+4}, v{D+12}, {sr(sMODD,2)}")
A(f"v_max_f32 v{um}, v{sa}, v{sb}\nv_mov_b32 v{mu}, v{um}\ns_nop 1\nv_permlane16_swap_b32 v{um}, v{mu}\nv_max_f32 v{um}, v{um}, v{mu}\ns_nop 1")
rowred("v_max_f32", [um])
A(f"v_sub_f32 v{sa}, v{sa}, v{um}\nv_sub_f32 v{sb}, v{sb}, v{um}\nv_mul_f32 v{sa}, v{sa}, v{cexp}\nv_mul_f32 v{sb}, v{sb}, v{cexp}")
A(f"v_exp_f32 v{sa}, v{sa}\nv_exp_f32 v{sb}, v{sb}\nv_mul_f32 v{um}, v{um}, v{cexp}\nv_cvt_pk_bf16_f32 v{mu}, v{sa}, v{sb}")
A(f"ds_write_b32 v{amw}, v{um}\nds_write_b32 v{apw}, v{mu}")
A(f"v_lshlrev_b32 v{sa}, 16, v{mu}\nv_and_b32 v{sb}, 0xffff0000, v{mu}\nv_add_f32 v{sa}, v{sa}, v{sb}")
A("s_waitcnt vmcnt(0) lgkmcnt(0)\ns_barrier")
stamp(5)
fp, acc = vW, vW + 32
fm = sb
A(f"ds_read_b32 v{fm}, v{amr}")
for ks in range(8): A(f"ds_read_b128 {vr(fp+4*ks,4)}, v{apr} offset:{ks*64}")
vq = [vtr(ks, tau, u) for ks in range(4, 8) for tau in range(2) for u in range(2)]
big = mu
fb = t
side = [f"v_mov_b32 v{cexp}, v{sa}", f"v_max_f32_dpp v{big}, v{fm}, v{fm} {ROWRED[0]} {DPPM}", "s_nop 0",
        f"v_permlane16_swap_b32 v{sa}, v{cexp}", f"v_max_f32_dpp v{big}, v{big}, v{big} {ROWRED[1]} {DPPM}", f"v_add_f32 v{sa}, v{sa}, v{cexp}",
        f"v_sub_f32 v{fm}, v{fm}, v{big}", f"v_sub_f32 v{um}, v{um}, v{big}",
        f"v_add_f32_dpp v{sa}, v{sa}, v{sa} {ROWRED[0]} {DPPM}", f"v_exp_f32 v{fm}, v{fm}", f"v_exp_f32 v{um}, v{um}",
        f"v_add_f32_dpp v{sa}, v{sa}, v{sa} {ROWRED[1]} {DPPM}", f"v_mov_b32_dpp v{fb} , v{fm} row_newbcast:0 {DPPM}", f"v_mov_b32_dpp v{fb+1}, v{fm} row_newbcast:1 {DPPM}",
        f"v_add_f32_dpp v{sa}, v{sa}, v{sa} {ROWRED[2]} {DPPM}", f"v_mov_b32_dpp v{fb+2}, v{fm} row_newbcast:2 {DPPM}", f"v_mov_b32_dpp v{fb+3}, v{fm} row_newbcast:3 {DPPM}",
        f"v_add_f32_dpp v{sa}, v{sa}, v{sa} {ROWRED[3]} {DPPM}", f"v_mul_f32 v{sa}, v{sa}, v{um}"]
issued_after = 0
for ks in range(8):
    if ks < 4: A(f"s_waitcnt lgkmcnt({min(15, 7 - ks + issued_after)})")
    else: A(f"s_waitcnt lgkmcnt({(7 - ks) * 4})")
    for tau in range(2):
        a = acc + 8*(ks >> 1) + 4*tau
        A(f"v_mfma_f32_16x16x32_bf16 {vr(a,4)}, {vr(fp+4*ks,4)}, {vr(vV+8*ks+4*tau,4)}, {'0' if ks % 2 == 0 else vr(a,4)}")
        if vq: A(vq.pop(0)); A(vq.pop(0)); issued_after += 2
        else:
            for _ in range(3):
                if side: A(side.pop(0))
assert not side
o0, o1 = cexp, um
for wv in range(4):
    if wv == 3: A("s_nop 3")
    for tau, o in ((0, o0), (1, o1)):
        op = "v_mul_f32" if wv == 0 else "v_fmac_f32"
        A(f"{op} v{o}, v{fb+wv}, v{acc+8*wv+4*tau}")
A(f"v_cvt_pk_bf16_f32 v{o0}, v{o0}, v{o1}")
m1 = mask64(0x0000ffff, 0x0000ffff, sT2)
pub(f"buffer_store_dword v{o0}, v{aop}, {sr(rWS,4)}, s{sI} offen", m1)
m2 = mask64(1, 1, sT2)
pub(f"buffer_store_dword v{sa}, v{aml}, {sr(rWS,4)}, s{sI} offen", m2)
A(f"v_lshrrev_b32 v{o1}, 5, v{vL}\nv_mul_u32_u24 v{o1}, 12, v{o1}\nv_sub_u32 v{aml}, v{aml}, v{o1}\ns_cmp_eq_u32 s{sW}, 0\ns_cselect_b64 {sr(sT2,2)}, {sr(sT2,2)}, 0")
pub(f"buffer_store_dword v{big}, v{aml}, {sr(rWS,4)}, s{sI} offen offset:32", sr(sT2, 2))
stamp(6)
gv, gva = vP2 + 24, t + 20
gload = f"buffer_load_dwordx4 {vr(gv,4)}, v{gva}, {sr(rWS,4)}, 0 offen sc1"
A(f"s_cmp_lg_u32 s{sPASS}, 0\ns_cbranch_scc1 L_nog\nv_lshlrev_b32 v{gva}, 4, v{vL}\nv_add_u32 v{gva}, {VOT}, v{gva}\n{gload}\nL_nog:")
def gcheck():
    retry, back = uid("gr"), uid("gb")
    a, b = gva + 1, vP2 + 28
    A(f"s_mov_b32 s{sCNT}, 0\n{back}:")
    for r in range(4): A(f"v_xor_b32 v{b+r}, s{sE1}, v{gv+r}")
    A(f"v_or_b32 v{a}, v{b}, v{b+1}\nv_or3_b32 v{a}, v{a}, v{b+2}, v{b+3}\nv_cmp_lt_u32 vcc, 15, v{a}\ns_cbranch_vccnz {retry}")
    T(f"{retry}:\ns_add_u32 s{sCNT}, s{sCNT}, 1\ns_cmp_ge_u32 s{sCNT}, {OPT['tmo']}\ns_cbranch_scc1 L_end\n{gload}\ns_waitcnt vmcnt(0)\ns_branch {back}")
    if OPT["copies"] == 2:
        A(f"s_mov_b32 s{sT0}, 0\ns_mov_b32 s{sT1}, 0\ns_or_b32 s{sT4}, s{sXCC}, 8")
        for r in range(4):
            A(f"v_cmp_eq_u32 vcc, s{sXCC}, v{b+r}\ns_bcnt1_i32_b64 s{sT2}, vcc\ns_add_u32 s{sT0}, s{sT0}, s{sT2}")
            A(f"v_cmp_eq_u32 vcc, s{sT4}, v{b+r}\ns_bcnt1_i32_b64 s{sT2}, vcc\ns_add_u32 s{sT1}, s{sT1}, s{sT2}")
        A(f"s_cmp_gt_u32 s{sT1}, s{sT0}\ns_cselect_b32 s{sCOPY}, 0x2000, 0")
A(f"s_cmp_eq_u32 s{sROLE}, 1\ns_cbranch_scc1 L_roleB\ns_cmp_eq_u32 s{sROLE}, 2\ns_cbranch_scc1 L_roleF")

A(f"s_cmp_lg_u32 s{sPASS}, 0\ns_cbranch_scc1 L_wo_res")
wdma_voff(t, 1152, "wo")
A(f"""s_lshl_b32 s{sT1}, s{sX}, 1
s_add_u32 s{sT1}, s{sT1}, s{sHALF}
s_lshl_b32 s{sT1}, s{sT1}, 5
s_add_u32 s{sT1}, s{sT1}, s{sW}
s_mul_i32 s{sT1}, s{sT1}, {8*1152}
s_lshl_b32 s{sT2}, s{sCG9}, 7
s_add_u32 s{sT1}, s{sT1}, s{sT2}
s_lshl_b32 s{sT2}, s{sW}, 10
s_add_u32 s{sT2}, s{sT2}, {LR}""")
for i in range(8):
    dma(rWA, t, sT1, sT2)
    if i < 7: A(f"s_add_u32 s{sT1}, s{sT1}, {32*1152}\ns_add_u32 s{sT2}, s{sT2}, 4096")
A("s_waitcnt vmcnt(0)")
gcheck()
A(f"s_or_b32 s{sT0}, s2, s{sW}\ns_cmp_eq_u32 s{sT0}, 0\ns_cselect_b64 exec, 1, 0\nv_mov_b32 v{gva}, {EPO}\nv_mov_b32 v{gva+1}, s{sE1}\nbuffer_store_dword v{gva+1}, v{gva}, {sr(rWS,4)}, 0 offen sc1\ns_mov_b64 exec, -1")
A("s_barrier\ns_branch L_wo_go")
A("L_wo_res:")
recheck(f"buffer_load_dwordx4 {vr(gres,4)}, v{axr}, {sr(rWS,4)}, s{sXO} offen sc1", range(gres, gres+4), t)
A(f"v_mfma_f32_16x16x32_bf16 {vr(vR,4)}, {vr(vSEL,4)}, {vr(gres,4)}, 0")
A("L_wo_go:")
wa = t
A(f"""v_bfe_u32 v{wa}, v{vL}, 4, 1
v_bfe_u32 v{wa+1}, v{vL}, 2, 1
v_lshl_or_b32 v{wa}, v{wa+1}, 1, v{wa}
v_xor_b32 v{wa}, s{sW}, v{wa}
v_lshlrev_b32 v{wa}, 5, v{wa}
v_lshl_add_u32 v{wa}, v{wa+1}, 11, v{wa}
v_and_b32 v{wa+1}, 3, v{vL}
v_lshl_add_u32 v{wa}, v{wa+1}, 3, v{wa}
v_bfe_u32 v{wa+1}, v{vL}, 3, 1
v_lshl_add_u32 v{wa}, v{wa+1}, 7, v{wa}
v_lshl_add_u32 v{wa}, v{vG}, 9, v{wa}
v_add_u32 v{wa}, {LR}, v{wa}""")
for kk in range(8):
    for u in range(2): A(f"ds_read_b64_tr_b16 {vr(vW+4*kk+2*u,2)}, v{wa} offset:{kk*4096+u*256}")
go1, gml, gw, gr, gx, gh = t+1, t+2, t+3, t+4, t+5, t+6
A(f"""s_lshl_b32 s{sT0}, s{sHALF}, 13
s_lshl_b32 s{sT1}, s{sW}, 11
s_add_u32 s{sT0}, s{sT0}, s{sT1}
s_add_u32 s{sT0}, s{sT0}, {OPo}
v_lshl_add_u32 v{go1}, v{vL}, 4, s{sT0}
s_lshl_b32 s{sT0}, s{sHALF}, 10
s_add_u32 s{sT0}, s{sT0}, {MLo}
v_lshl_add_u32 v{gml}, v{vN}, 6, s{sT0}
s_mul_i32 s{sT0}, s{sW}, {4*544}
s_add_u32 s{sT0}, s{sT0}, {LOPS}
v_lshrrev_b32 v{gw}, 5, v{vL}
v_mul_u32_u24 v{gw}, 544, v{gw}
v_and_b32 v{gr}, 31, v{vL}
v_lshl_add_u32 v{gw}, v{gr}, 4, v{gw}
v_add_u32 v{gw}, s{sT0}, v{gw}
v_mul_u32_u24 v{gr}, 544, v{vN}
v_lshl_add_u32 v{gr}, v{vG}, 4, v{gr}
v_add_u32 v{gr}, {LOPS}, v{gr}""")
def x_store_addr(dst):
    A(f"""s_lshl_b32 s{sT0}, s{sX}, 1
s_add_u32 s{sT0}, s{sT0}, s{sHALF}
s_lshr_b32 s{sT1}, s{sT0}, 2
s_lshl_b32 s{sT1}, s{sT1}, 14
s_and_b32 s{sT0}, s{sT0}, 3
s_lshl_b32 s{sT0}, s{sT0}, 11
s_add_u32 s{sT0}, s{sT0}, s{sT1}
s_lshl_b32 s{sT1}, s{sCG9}, 7
s_add_u32 s{sT0}, s{sT0}, s{sT1}
s_lshl_b32 s{sT1}, s{sW}, 5
s_add_u32 s{sT0}, s{sT0}, s{sT1}
v_lshl_add_u32 v{dst}, v{vG}, 3, s{sT0}
v_lshl_add_u32 v{dst}, v{vN}, 13, v{dst}""")
def hint_addr(dst, off):
    A(f"s_lshl_b32 s{sT0}, s{sJ}, 2\ns_add_u32 s{sT0}, s{sT0}, {off}\nv_mov_b32 v{dst}, s{sT0}\ns_cmp_eq_u32 s{sW}, 0\ns_cselect_b64 s[100:101], 1, 0")
def hint_send(addr):
    if OPT["hint"]: pub(f"buffer_store_dword v{vL}, v{addr}, {sr(rWS,4)}, s{sI} offen", "s[100:101]")
XM = (0x00030003 if OPT["copies"] == 2 else 0x00010001)
def x_publish(src, addr, xoff):
    A(f"v_cvt_pk_bf16_f32 v{src}, v{src}, v{src+1}\nv_cvt_pk_bf16_f32 v{src+1}, v{src+2}, v{src+3}")
    A(f"s_add_u32 s{sT0}, s{sPASS}, {xoff}\ns_mov_b32 exec_lo, {XM:#x}\ns_mov_b32 exec_hi, {XM:#x}\nbuffer_store_dwordx2 {vr(src,2)}, v{addr}, {sr(rWS,4)}, s{sT0} offen sc1\ns_mov_b64 exec, -1")
x_store_addr(gx); hint_addr(gh, H3o)
ga, gl0, gl1, gm = vP2, vP2 + 8, vP2 + 12, vP2 + 16
poll(f"""buffer_load_dwordx4 {vr(ga,4)}, v{go1}, {sr(rWS,4)}, s{sI} offen sc1
buffer_load_dwordx4 {vr(ga+4,4)}, v{go1}, {sr(rWS,4)}, s{sI} offen offset:1024 sc1
buffer_load_dwordx4 {vr(gl0,4)}, v{gml}, {sr(rWS,4)}, s{sI} offen sc1
buffer_load_dwordx4 {vr(gl1,4)}, v{gml}, {sr(rWS,4)}, s{sI} offen offset:16 sc1
buffer_load_dwordx2 {vr(gm,2)}, v{gml}, {sr(rWS,4)}, s{sI} offen offset:32 sc1""", range(ga, ga+18), t+7)
stamp(7)
A(f"ds_write_b128 v{gw}, {vr(ga,4)}\nds_write_b128 v{gw}, {vr(ga+4,4)} offset:{2*544}")
M0_, M1_ = t+7, t+8
A(f"v_mov_b32 v{M0_}, v{gm}\nv_mov_b32 v{M1_}, v{gm+1}")
A(f"v_add_f32 v{gl0}, v{gl0}, v{gl0+1}\nv_add_f32 v{gl1}, v{gl1}, v{gl1+1}")
A("s_waitcnt lgkmcnt(0)\ns_barrier")
fo, wacc = vW + 32, vP2 + 20
for kk in range(8): A(f"ds_read_b128 {vr(fo+4*kk,4)}, v{gr} offset:{kk*64}")
hint_send(gh)
rowred("v_max_f32", [M0_, M1_])
A(f"v_add_f32 v{gl0+2}, v{gl0+2}, v{gl0+3}\nv_add_f32 v{gl1+2}, v{gl1+2}, v{gl1+3}")
A(f"v_sub_f32 v{gm}, v{gm}, v{M0_}\nv_sub_f32 v{gm+1}, v{gm+1}, v{M1_}\nv_exp_f32 v{gm}, v{gm}\nv_exp_f32 v{gm+1}, v{gm+1}")
side = [f"v_add_f32 v{gl0}, v{gl0}, v{gl0+2}", f"v_add_f32 v{gl1}, v{gl1}, v{gl1+2}", f"v_mul_f32 v{gl0}, v{gl0}, v{gm}", f"v_mul_f32 v{gl1}, v{gl1}, v{gm+1}"]
for p in ROWRED: side += ["s_nop 0", f"v_add_f32_dpp v{gl0}, v{gl0}, v{gl0} {p} {DPPM}", f"v_add_f32_dpp v{gl1}, v{gl1}, v{gl1} {p} {DPPM}"]
side += [f"v_rcp_f32 v{gl0}, v{gl0}", f"v_rcp_f32 v{gl1}, v{gl1}", "s_nop 0", f"v_mul_f32 v{gm}, v{gm}, v{gl0}", f"v_mul_f32 v{gm+1}, v{gm+1}, v{gl1}"]
for kk in range(8):
    a = wacc + 4*(kk >> 2)
    A(f"s_waitcnt lgkmcnt({7-kk})\nv_mfma_f32_16x16x32_bf16 {vr(a,4)}, {vr(vW+4*kk,4)}, {vr(fo+4*kk,4)}, {'0' if kk % 4 == 0 else vr(a,4)}")
    for _ in range(2):
        if side: A(side.pop(0))
for s_ in side: A(s_)
tt = ga
for r in range(4): A(f"v_fma_f32 v{tt+r}, v{gm}, v{wacc+r}, v{vR+r}")
for r in range(4): A(f"v_fmac_f32 v{tt+r}, v{gm+1}, v{wacc+4+r}")
rowred("v_add_f32", [tt, tt+1, tt+2, tt+3])
x_publish(tt, gx, X1O)
stamp(8)
hp, hs, hw, hr, hx, hres, hh = t+1, t+2, t+3, t+4, t+5, t+6, t+7
A(f"""s_mul_i32 s{sT0}, s{sHALF}, {288*16}
s_mul_i32 s{sT1}, s{sW}, {72*16}
s_add_u32 s{sT0}, s{sT0}, s{sT1}
s_add_u32 s{sT0}, s{sT0}, {HPo}
v_min_u32 v{hw}, 35, v{vL}
v_lshl_add_u32 v{hp}, v{hw}, 5, s{sT0}
s_mul_i32 s{sT0}, s{sW}, 144
s_add_u32 s{sT0}, s{sT0}, {LH}
v_lshl_add_u32 v{hw}, v{hw}, 2, s{sT0}
v_lshlrev_b32 v{hs}, 3, v{vN}
v_add_u32 v{hs}, {HSo}, v{hs}
v_lshlrev_b32 v{hr}, 4, v{vG}
v_add_u32 v{hr}, {LH}, v{hr}""")
res_addr(hres, t+8); x_store_addr(hx); hint_addr(hh, H5o)
A(f"s_cmp_lg_u32 s{sPASS}, 0\ns_cbranch_scc1 L_w2_go")
wdma_voff(t+8, 1152, "std")
A(f"""s_lshl_b32 s{sT1}, s{sX}, 1
s_add_u32 s{sT1}, s{sT1}, s{sHALF}
s_mul_i32 s{sT1}, s{sT1}, 36
s_add_u32 s{sT1}, s{sT1}, s{sW}
s_mul_i32 s{sT1}, s{sT1}, {8*1152}
s_lshl_b32 s{sT2}, s{sCG9}, 7
s_add_u32 s{sT1}, s{sT1}, s{sT2}
s_lshl_b32 s{sT2}, s{sW}, 10
s_add_u32 s{sT2}, s{sT2}, {LW2}""")
for i in range(9):
    dma(rW2, t+8, sT1, sT2)
    if i < 8: A(f"s_add_u32 s{sT1}, s{sT1}, {32*1152}\ns_add_u32 s{sT2}, s{sT2}, 4096")
A(f"v_add_u32 v{t+8}, {S1o - HPo}, v{hp}")
poll(f"buffer_load_dwordx4 {vr(ga,4)}, v{t+8}, {sr(rWS,4)}, s{sI} offen sc1\nbuffer_load_dwordx4 {vr(ga+4,4)}, v{t+8}, {sr(rWS,4)}, s{sI} offen offset:16 sc1", range(ga, ga+8), t+9)
for k in range(2):
    b = ga + 4*k
    A(f"v_add_f32 v{b}, v{b}, v{b+1}\nv_add_f32 v{b+2}, v{b+2}, v{b+3}\nv_add_f32 v{vS1+k}, v{b}, v{b+2}")
A("s_barrier\nL_w2_go:")
traddr_std(t+8, LW2)
for ks in range(9):
    for u in range(2): A(f"ds_read_b64_tr_b16 {vr(vW+4*ks+2*u,2)}, v{t+8} offset:{ks*4096+u*512}")
gst = ga + 8
poll(f"""buffer_load_dwordx4 {vr(ga,4)}, v{hp}, {sr(rWS,4)}, s{sI} offen sc1
buffer_load_dwordx4 {vr(ga+4,4)}, v{hp}, {sr(rWS,4)}, s{sI} offen offset:16 sc1
buffer_load_dwordx2 {vr(gst,2)}, v{hs}, {sr(rWS,4)}, s{sI} offen sc1""", range(ga, ga+10), t+8)
stamp(9)
gx1 = ga + 12
A(f"buffer_load_dwordx4 {vr(gx1,4)}, v{hres}, {sr(rWS,4)}, s{sPASS} offen sc1")
y0, y1 = ga, ga + 4
for y in (y0, y1): A(f"v_add_f32 v{y}, v{y}, v{y+1}\nv_add_f32 v{y+2}, v{y+2}, v{y+3}")
hmu, hrs = t+8, t+9
stats_finish(gst, gst+1, hmu, hrs)
for y in (y0, y1): A(f"v_add_f32 v{y}, v{y}, v{y+2}")
for k, y in enumerate((y0, y1)): A(f"v_fma_f32 v{y}, -v{hmu}, v{vS1+k}, v{y}")
for k, y in enumerate((y0, y1)): A(f"v_fma_f32 v{y}, v{y}, v{hrs}, v{vB+k}")
A(f"s_mov_b32 s{sT0}, {-math.log2(math.e):.9e}")
for y in (y0, y1): A(f"v_mul_f32 v{y+1}, s{sT0}, abs(v{y})")
for y in (y0, y1): A(f"v_exp_f32 v{y+1}, v{y+1}")
A(f"v_cmp_le_f32 vcc, 0, v{y0}\nv_cmp_le_f32 {sr(sT2,2)}, 0, v{y1}")
for y in (y0, y1): A(f"v_fma_f32 v{y+2}, v{y+1}, 2.0, 1.0\nv_add_f32 v{y+3}, 2.0, v{y+1}")
e0, e1 = t + 10, t + 11
for y, e in ((y0, e0), (y1, e1)): A(f"v_mul_f32 v{y+3}, v{y+3}, v{y+1}\nv_mul_f32 v{e}, v{y+1}, v{y+1}")
A(f"v_cndmask_b32 v{y0+2}, v{y0+3}, v{y0+2}, vcc\nv_cndmask_b32 v{y1+2}, v{y1+3}, v{y1+2}, {sr(sT2,2)}")
A(f"v_cndmask_b32 v{e0}, 1.0, v{e0}, vcc\nv_cndmask_b32 v{e1}, 1.0, v{e1}, {sr(sT2,2)}")
for y, e in ((y0, e0), (y1, e1)): A(f"v_fma_f32 v{e}, v{e}, 2.0, v{y+2}")
for y, e in ((y0, e0), (y1, e1)): A(f"v_rcp_f32 v{e}, v{e}")
for y, e in ((y0, e0), (y1, e1)): A(f"v_mul_f32 v{y}, v{y}, v{y+2}")
for y, e in ((y0, e0), (y1, e1)): A(f"v_mul_f32 v{y}, v{y}, v{e}")
A(f"v_cvt_pk_bf16_f32 v{y0}, v{y0}, v{y1}\nds_write_b32 v{hw}, v{y0}\ns_waitcnt vmcnt(0) lgkmcnt(0)\ns_barrier")
fh = vW + 36
fhr = [vW + 36 + 4*k for k in range(7)] + [ga, ga + 4]
for ks in range(9): A(f"ds_read_b128 {vr(fhr[ks],4)}, v{hr} offset:{ks*64}")
recheck(f"buffer_load_dwordx4 {vr(gx1,4)}, v{hres}, {sr(rWS,4)}, s{sPASS} offen sc1", range(gx1, gx1+4), t+8)
A(f"v_mfma_f32_16x16x32_bf16 {vr(vR,4)}, {vr(vSEL,4)}, {vr(gx1,4)}, 0")
hint_send(hh)
w2acc = ga + 16
side = [f"v_add_f32_dpp v{vR+r}, v{vR+r}, v{vR+r} {p} {DPPM}" for p in ROWRED for r in range(4)]
if not OPT["hint"]: A("s_nop 4")
for ks in range(9):
    A(f"s_waitcnt lgkmcnt({8-ks})\nv_mfma_f32_16x16x32_bf16 {vr(w2acc,4)}, {vr(vW+4*ks,4)}, {vr(fhr[ks],4)}, {'0' if ks == 0 else vr(w2acc,4)}")
    if ks >= 1: A(side.pop(0)); A(side.pop(0))
A("s_nop 5")
for r in range(4): A(f"v_add_f32 v{w2acc+r}, v{w2acc+r}, v{vR+r}")
x_publish(w2acc, hx, X2O)
stamp(10)
A(f"s_cmp_eq_u32 s{sPASS}, 0\ns_cbranch_scc1 L_q")
A(f"s_or_b32 s{sT0}, s{sX}, s{sHALF}\ns_cmp_lg_u32 s{sT0}, 0\ns_cbranch_scc1 L_done")
A(f"""s_lshl_b32 s{sT0}, s{sCG9}, 7
s_lshl_b32 s{sT1}, s{sW}, 5
s_add_u32 s{sT0}, s{sT0}, s{sT1}
v_lshl_add_u32 v{hx}, v{vG}, 3, s{sT0}
s_mov_b32 s{sXO}, s{sI}""")
hint_wait(H5o, t+10)
A(f"s_mov_b32 s{sXO}, {PS + X2O}")
poll(f"buffer_load_dwordx4 {vr(gx1,4)}, v{hres}, {sr(rWS,4)}, s{sXO} offen sc1", range(gx1, gx1+4), t+10)
A(f"v_mfma_f32_16x16x32_bf16 {vr(vR,4)}, {vr(vSEL,4)}, {vr(gx1,4)}, 0\ns_nop 7")
rowred("v_add_f32", [vR, vR+1, vR+2, vR+3])
for r in range(4): A(f"v_mul_f32 v{vR+r}, 0x41800000, v{vR+r}")
A(f"v_cvt_pk_bf16_f32 v{vR}, v{vR}, v{vR+1}\nv_cvt_pk_bf16_f32 v{vR+1}, v{vR+2}, v{vR+3}")
A(f"s_mov_b32 exec_lo, 0x00010001\ns_mov_b32 exec_hi, 0x00010001\nbuffer_store_dwordx2 {vr(vR,2)}, v{hx}, {sr(rOUT,4)}, 0 offen\ns_mov_b64 exec, -1")
A("s_branch L_done")

A("L_roleB:")
ba1, ba2, baw, bar_, bat, bas1, bas3, badst, bastat = [t + k for k in range(9)]
A(f"s_cmp_lg_u32 s{sPASS}, 0\ns_cbranch_scc1 L_w1_tr")
wdma_voff(t+10, 9216, "std")
A(f"""s_mul_i32 s{sT1}, s{sHALF}, 18
s_add_u32 s{sT1}, s{sT1}, s{sW}
s_mul_i32 s{sT1}, s{sT1}, {8*9216}
s_mul_i32 s{sT2}, s{sX}, 1152
s_add_u32 s{sT1}, s{sT1}, s{sT2}
s_mul_i32 s{sT2}, s{sCG9}, 384
s_add_u32 s{sT1}, s{sT1}, s{sT2}
s_lshl_b32 s{sT2}, s{sW}, 10
s_add_u32 s{sT2}, s{sT2}, {LR}""")
for i in range(5):
    if i == 4: A(f"s_cmp_ge_u32 s{sW}, 2\ns_cbranch_scc1 L_w1_issued")
    for u in range(3):
        A(f"s_add_u32 s{sT3}, s{sT1}, {i*32*9216 + u*128}\ns_add_u32 s{sT4}, s{sT2}, {i*4096 + u*18432}")
        dma(rWA, t+10, sT3, sT4)
A("L_w1_issued:\ns_waitcnt vmcnt(0)")
gcheck()
A("s_barrier\nL_w1_tr:")
traddr_std(t+10, LR); traddr_tail(t+12, LR)
for u in range(3): tr_slice(vW + 18*u, t+10, t+12, u*18432)
A(f"""s_mul_i32 s{sT0}, s{sCG9}, {192*16}
s_lshl_b32 s{sT1}, s{sW}, 8
s_add_u32 s{sT0}, s{sT0}, s{sT1}
s_lshl_b32 s{sT1}, s{sHALF}, 2
s_add_u32 s{sT0}, s{sT0}, s{sT1}
s_add_u32 s{sT0}, s{sT0}, {HPo}
v_lshl_add_u32 v{badst}, v{vN}, 4, s{sT0}
v_and_b32 v{bastat}, 1, v{vG}
v_lshl_add_u32 v{badst}, v{bastat}, 11, v{badst}
v_lshrrev_b32 v{bastat}, 1, v{vG}
v_lshl_add_u32 v{badst}, v{bastat}, 10, v{badst}
s_lshl_b32 s{sT0}, s{sHALF}, 5
s_lshl_b32 s{sT1}, s{sW}, 3
s_add_u32 s{sT0}, s{sT0}, s{sT1}
s_add_u32 s{sT0}, s{sT0}, {HSo}
v_mov_b32 v{bastat}, s{sT0}
s_cmp_eq_u32 s{sCG9}, 0
s_cselect_b64 s[100:101], 1, 0""")
x_gather_addrs(sHALF, ba1, ba2, baw); ln_read_addrs(bar_, bat, bas1, bas3, vP2)
A(f"s_cmp_lg_u32 s{sPASS}, 0\ns_cbranch_scc1 L_w1_go")
cs = vP2
for r in range(4): A(f"v_mov_b32 v{cs+r}, v{vONE}")
A(f"v_mov_b32 v{cs+18}, v{vONE}\nv_mov_b32 v{cs+19}, v{vONE}")
A("s_nop 0\ns_waitcnt lgkmcnt(0)")
for u in range(3):
    a = cs + 4 + 4*u
    for ks in range(4): A(f"v_mfma_f32_16x16x32_bf16 {vr(a,4)}, {vr(cs,4)}, {vr(vW+18*u+4*ks,4)}, {'0' if ks == 0 else vr(a,4)}")
    A(f"v_mfma_f32_16x16x32_bf16 {vr(a,4)}, {vr(cs+16,4)}, {vr(vW+18*u+14,4)}, {vr(a,4)}")
A(f"v_add_u32 v{t+10}, {S1o - HPo}, v{badst}\nv_cmp_eq_u32 vcc, 2, v{vG}\ns_nop 6")
A(f"v_cndmask_b32 v{cs+4}, v{cs+4}, v{cs+8}, vcc\nv_cndmask_b32 v{cs+4}, v{cs+4}, v{cs+12}, {sr(sMODD,2)}")
pub(f"buffer_store_dword v{cs+4}, v{t+10}, {sr(rWS,4)}, s{sI} offen", mask64(0xffffffff, 0x0000ffff, sT2))
A("L_w1_go:")
A(f"s_mov_b32 s{sXO}, s{sI}")
hint_wait(H3o, t+10)
stamp(7)
x_gather(ba1, ba2, baw, vP2, sPASS, t+10)
stamp(8)
ln_gemv(3, vW, bar_, bat, bas1, bas3, vP2, vP2+20, t+10, 12, badst, bastat, 100)
stamp(9)
A(f"s_cmp_eq_u32 s{sPASS}, 0\ns_cbranch_scc1 L_q\ns_branch L_done")
A("L_roleF:")
A(f"s_cmp_lg_u32 s{sPASS}, 0\ns_cbranch_scc1 L_done\ns_waitcnt vmcnt(0)")
gcheck()
A("s_branch L_q")

A("L_done:")
if PROF:
    stamp(11)
    A(f"s_cmp_lg_u32 s{sW}, 0\ns_cbranch_scc1 L_end\ns_lshl_b32 s{sT0}, s2, 7\ns_add_u32 s{sT0}, s{sT0}, {STAMP}")
    A(f"s_lshr_b32 s3, s{sCOPY}, 12\ns_or_b32 s3, s3, s{sMODE}\nv_writelane_b32 v9, s3, 31\nv_lshlrev_b32 v2, 2, v{vL}\ns_mov_b32 exec_hi, 0")
    A(f"buffer_store_dword v9, v2, {sr(rWS,4)}, s{sT0} offen")
A("L_end:\ns_endpgm")

S = []
_L = L; L = S
A(f"L_service:\ns_setprio 3\ns_mov_b32 s{sT0}, {EPO}\ns_buffer_load_dword s{sE1}, {sr(rWS,4)}, s{sT0}")
t = vT
if OPT["pf"]:
    A(f"s_getpc_b64 s[54:55]\nL_pc:\ns_sub_u32 s54, s54, L_pc-{NAME}_kernel\ns_subb_u32 s55, s55, 0\nv_lshlrev_b32 v{t}, 7, v{vL}")
    A("PFLOADS")
for r in range(4): A(f"v_mov_b32 v{t+4+r}, -1")
A(f"""s_mul_i32 s{sT0}, s{sJ}, {IEND//32}
s_add_u32 s{sT0}, s{sT0}, s{sIB}
v_lshl_add_u32 v{t+1}, v{vL}, 4, s{sT0}
s_lshl_b32 s{sT0}, s2, 9
v_lshl_add_u32 v{t+2}, v{vL}, 4, s{sT0}
s_mov_b32 s{sT1}, {PS}""")
for so in ("0", f"s{sT1}"):
    A(f"buffer_store_dwordx4 {vr(t+4,4)}, v{t+1}, {sr(rWS,4)}, {so} offen sc1")
    A(f"s_mov_b32 exec_lo, -1\ns_mov_b32 exec_hi, {(1 << ((IEND//32 - 1024)//16 - 32)) - 1:#x}\nbuffer_store_dwordx4 {vr(t+4,4)}, v{t+1}, {sr(rWS,4)}, {so} offen offset:1024 sc1")
    A(f"s_mov_b32 exec_hi, 0\nbuffer_store_dwordx4 {vr(t+4,4)}, v{t+2}, {sr(rWS,4)}, {so} offen sc1\ns_mov_b64 exec, -1")
A(f"""s_waitcnt lgkmcnt(0)
s_and_b32 s{sE1}, s{sE1}, -16
s_add_u32 s{sE1}, s{sE1}, 16
s_or_b32 s{sT0}, s{sE1}, s{sXCC}
v_mov_b32 v{t+3}, s{sT0}
s_lshl_b32 s{sT0}, s{sX}, 7
s_add_u32 s{sT4}, s{sT0}, {FLG}
s_lshl_b32 s{sT1}, s{sJ}, 2
s_add_u32 s{sT0}, s{sT4}, s{sT1}
v_mov_b32 v{t+1}, s{sT0}
s_waitcnt vmcnt(0)
s_mov_b64 exec, 1
buffer_store_dword v{t+3}, v{t+1}, {sr(rWS,4)}, 0 offen sc1""")
if OPT["copies"] == 2 and OPT["pol"] < 0:
    A(f"""s_and_b32 s{sT0}, s2, 63
s_lshl_b32 s{sT0}, s{sT0}, 7
s_lshr_b32 s{sT1}, s2, 6
s_lshl_b32 s{sT1}, s{sT1}, 14
s_add_u32 s{sT0}, s{sT0}, s{sT1}
s_add_u32 s{sT0}, s{sT0}, {PROBE}
s_and_b32 s{sT1}, s{sJ}, 1
s_lshl_b32 s{sT1}, s{sT1}, 13
s_xor_b32 s{sT0}, s{sT0}, s{sT1}
s_xor_b32 s{sT1}, s{sT0}, 0x2000
s_memtime s[84:85]
s_waitcnt lgkmcnt(0)
s_buffer_load_dword s85, {sr(rWS,4)}, s{sT0}
s_waitcnt lgkmcnt(0)
s_memtime s[86:87]
s_waitcnt lgkmcnt(0)
s_buffer_load_dword s87, {sr(rWS,4)}, s{sT1}
s_waitcnt lgkmcnt(0)
s_memtime s[88:89]
s_waitcnt lgkmcnt(0)
s_sub_u32 s88, s88, s86
s_sub_u32 s86, s86, s84
s_cmp_gt_u32 s86, s88
s_cselect_b32 s{sT0}, 1, 0
s_xor_b32 s{sT0}, s{sT0}, s{sJ}
s_and_b32 s{sT0}, s{sT0}, 1""")
else:
    A(f"s_lshr_b32 s{sT0}, s{sXCC}, 2\ns_xor_b32 s{sT0}, s{sT0}, {max(OPT['pol'], 0)}")
A(f"""s_lshl_b32 s{sT0}, s{sT0}, 3
v_or_b32 v{t+3}, s{sT0}, v{t+3}
s_lshl_b32 s{sT0}, s2, 2
s_add_u32 s{sT0}, s{sT0}, {VOT}
v_mov_b32 v{t+1}, s{sT0}
buffer_store_dword v{t+3}, v{t+1}, {sr(rWS,4)}, 0 offen sc1
s_mov_b64 exec, -1
s_barrier
s_mov_b32 s{sCNT}, 0
s_add_u32 s{sT3}, s{sT4}, 64
L_flags:
s_buffer_load_dwordx16 s[12:27], {sr(rWS,4)}, s{sT4} glc
s_buffer_load_dwordx16 s[36:51], {sr(rWS,4)}, s{sT3} glc
s_or_b32 s{sT2}, s{sE1}, s{sXCC}
s_mov_b32 s{sT0}, 0
s_waitcnt lgkmcnt(0)""")
for r in list(range(12, 28)) + list(range(36, 52)):
    A(f"s_xor_b32 s{sT1}, s{r}, s{sT2}\ns_or_b32 s{sT0}, s{sT0}, s{sT1}")
A(f"""s_cmp_lt_u32 s{sT0}, 8
s_cbranch_scc1 L_flags_ok
s_sleep 4
s_add_u32 s{sCNT}, s{sCNT}, 1
s_cmp_lt_u32 s{sCNT}, {OPT['tmo']}
s_cbranch_scc1 L_flags
L_flags_ok:
s_cmp_eq_u32 s{sT0}, 0
s_cselect_b32 s{sMODE}, {OPT['fast']}, 0
v_mov_b32 v{t+4}, s{sMODE}
v_mov_b32 v{t+5}, s{sE1}
v_mov_b32 v{t+6}, {LMODE}
ds_write_b64 v{t+6}, {vr(t+4,2)}
s_waitcnt lgkmcnt(0)
s_endpgm""")
L = _L

k = L.index("s_cbranch_scc1 L_service")
L[k] = "s_cbranch_scc0 L_main"
body = L[:k+1] + S + ["L_main:"] + L[k+1:] + TAIL
NPF = OPT.get("npf", 2)
txt = "\n".join(body).replace("PFLOADS", "\n".join(f"global_load_dword v{vT+8+k}, v{vT}, s[54:55]\nv_add_u32 v{vT}, 8192, v{vT}" for k in range(NPF)))
out.append(txt)
out.append(f""".p2align 8
.fill {NPF*2048}, 4, 0xbf800000
s_endpgm
.section .rodata,"a"
.p2align 6
.amdhsa_kernel {NAME}_kernel
  .amdhsa_next_free_vgpr 256
  .amdhsa_next_free_sgpr 102
  .amdhsa_accum_offset 256
  .amdhsa_group_segment_fixed_size 0
  .amdhsa_kernarg_size 96
  .amdhsa_user_sgpr_count 2
  .amdhsa_user_sgpr_kernarg_segment_ptr 1
  .amdhsa_system_sgpr_workgroup_id_x 1
  .amdhsa_float_denorm_mode_32 3
.end_amdhsa_kernel""")
print("\n".join(out))
```

```python
import sys, math
OPT = dict(prof=0, nv1=8, fast=1, copies=2, pol=-1, hint=1, rot=1, ldf="nt", pf=1, tmo=1 << 17, dbgstage=0, xsleep=0, dbgout=0)
for a in sys.argv[1:]:
    k, v = a.split("=")
    OPT[k] = v if k in ("ldf",) else int(v, 0)
NAME = "interleave_layers__sliding_block_cached__dense_activation_mish__decode"
LDF = "" if OPT["ldf"] == "plain" else OPT["ldf"].replace("+", " ")
PROF = OPT["prof"]

L = []; TAIL = []
def A(s):
    for ln in s.split("\n"):
        ln = ln.strip()
        if ln: L.append(ln)
def T(s):
    for ln in s.split("\n"):
        ln = ln.strip()
        if ln: TAIL.append(ln)
_uid = [0]
def uid(p):
    _uid[0] += 1
    return f"L_{p}{_uid[0]}"
def vr(a, n=1): return f"v{a}" if n == 1 else f"v[{a}:{a+n-1}]"
def sr(a, n=1): return f"s{a}" if n == 1 else f"s[{a}:{a+n-1}]"
DPPM = "row_mask:0xf bank_mask:0xf"
ROWRED = ["quad_perm:[1,0,3,2]", "quad_perm:[2,3,0,1]", "row_half_mirror", "row_mirror"]

PS = 0x100000
X1O, X2O = 0x00000, 0x10000
IB0 = 0x20000
QPo, SQo, OPo, HPo, S1o, MLo, QSo, HSo, H3o, H5o, IEND = 0x0000, 0x2000, 0x4000, 0x8000, 0xA400, 0xC800, 0xD000, 0xD080, 0xD100, 0xD180, 0xD200
PROBE = 0x1C0000
EPO, FLG, VOT = 0x1B0000, 0x1B1000, 0x1B2000
STAMP = 0x200000
WSREC = 0x210000 if PROF else 0x200000
LV, LR, LWQ = 0, 65536, 135168
LW2 = LR + 32768
LOPS = LWQ
LQ, LP, LM, LH, LMODE, LXS = 153600, 154112, 155136, 155200, 155776, 155904
LDS_BYTES = 163840
sX, sJ, sW, sPASS, sROLE, sMODE, sCOPY, sIB = 4, 5, 6, 7, 8, 9, 10, 11
rK, rV, rWQ, rWA, rW2, rWS, rXI, rB1, rOUT, rDBG = 12, 16, 20, 24, 28, 32, 36, 40, 44, 48
sT0, sT1, sT2, sT3, sT4 = 52, 53, 54, 55, 56
sCNT, sI, sXO = 57, 58, 59
sMODD = 60
sRG, sCG, sHALF, sCG9 = 62, 63, 96, 97
sROT, sXCC, sE1 = 98, 99, 68
sST = 64
vL, vN, vG = 1, 2, 3
vONE, vONE3, vS = 4, 6, 8
vSEL, vR, vB, vS1 = 12, 16, 20, 22
vT = 24
vWQ, vW, vK, vV = 46, 64, 128, 192
vP2 = 224

nstamp = [0]
def stamp(i):
    if PROF: A(f"s_memrealtime {sr(sST, 2)}\ns_lshr_b32 s3, s{sPASS}, 16\ns_add_u32 m0, s3, {i}\ns_waitcnt lgkmcnt(0)\nv_writelane_b32 v9, s{sST}, m0")

def srd(r, lo, hi, nbytes):
    A(f"s_mov_b32 s{r}, s{lo}\ns_and_b32 s{r+1}, s{hi}, 0xffff\ns_mov_b32 s{r+2}, {nbytes}\ns_mov_b32 s{r+3}, 0x20000")

def check(regs, tmp, retry):
    regs = list(regs)
    if len(regs) == 1:
        A(f"v_cmp_eq_u32 vcc, -1, v{regs[0]}")
    else:
        if len(regs) % 2 == 0: A(f"v_max_u32 v{tmp}, v{regs[0]}, v{regs[1]}"); k = 2
        else: A(f"v_max3_u32 v{tmp}, v{regs[0]}, v{regs[1]}, v{regs[2]}"); k = 3
        while k < len(regs):
            A(f"v_max3_u32 v{tmp}, v{tmp}, v{regs[k]}, v{regs[k+1]}"); k += 2
        A(f"v_cmp_eq_u32 vcc, -1, v{tmp}")
    A(f"s_cbranch_vccnz {retry}")

def poll(loads, regs, tmp):
    top, retry = uid("poll"), uid("retry")
    A(f"s_mov_b32 s{sCNT}, 0\n{top}:")
    A(loads)
    A("s_waitcnt vmcnt(0)")
    check(regs, tmp, retry)
    T(f"{retry}:\ns_add_u32 s{sCNT}, s{sCNT}, 1\ns_cmp_lt_u32 s{sCNT}, {OPT['tmo']}\ns_cbranch_scc1 {top}\ns_branch L_end")

def recheck(load, regs, tmp):
    retry, top, back = uid("rc"), uid("rct"), uid("rcb")
    check(regs, tmp, retry)
    A(f"{back}:")
    regs = list(regs)
    T(f"{retry}:\ns_mov_b32 s{sCNT}, 0\n{top}:\n{load}\ns_waitcnt vmcnt(0)\nv_max_u32 v{tmp}, v{regs[0]}, v{regs[1]}\nv_max3_u32 v{tmp}, v{tmp}, v{regs[2]}, v{regs[3]}")
    T(f"v_cmp_eq_u32 vcc, -1, v{tmp}\ns_cbranch_vccz {back}\ns_add_u32 s{sCNT}, s{sCNT}, 1\ns_cmp_lt_u32 s{sCNT}, {OPT['tmo']}\ns_cbranch_scc1 {top}\ns_branch L_end")

def pub(stores, mask):
    slow, back = uid("slow"), uid("back")
    A(f"s_cmp_eq_u32 s{sMODE}, 0")
    if mask is not None: A(f"s_mov_b64 exec, {mask}")
    A(f"s_cbranch_scc1 {slow}")
    A(stores)
    A(f"{back}:")
    if mask is not None: A("s_mov_b64 exec, -1")
    T(f"{slow}:")
    for ln in stores.strip().split("\n"): T(ln.strip() + " sc1")
    T(f"s_branch {back}")

def mask64(lo, hi, reg):
    A(f"s_mov_b32 s{reg}, {lo:#x}\ns_mov_b32 s{reg+1}, {hi:#x}")
    return sr(reg, 2)

def dma(rsrc, voff, soff, ldsaddr_sreg):
    A(f"s_mov_b32 m0, s{ldsaddr_sreg}\ns_nop 0\nbuffer_load_dwordx4 v{voff}, {sr(rsrc,4)}, s{soff} offen {LDF} lds")

def rowred(op, regs):
    for p in ROWRED:
        for r in regs: A(f"{op}_dpp v{r}, v{r}, v{r} {p} {DPPM}")
        if len(regs) < 3 and p != ROWRED[-1]: A(f"s_nop {2 - len(regs)}")

def stats_finish(s1, s2, mu, rstd):
    rowred("v_add_f32", [s1, s2])
    A(f"v_mul_f32 v{mu}, {1/576:.9e}, v{s1}\nv_mul_f32 v{s2}, {1/576:.9e}, v{s2}")
    A(f"v_fma_f32 v{s2}, -v{mu}, v{mu}, v{s2}\nv_max_f32 v{s2}, 0, v{s2}\nv_add_f32 v{s2}, 0x3727c5ac, v{s2}\nv_rsq_f32 v{rstd}, v{s2}")

hdr = open("cdna_kernels/" + NAME + ".s.ref").read().split("; Override launch")[0]
out = [hdr.rstrip(), "; Override launch geometry by editing the next line (default: block=256,", "; grid=ceil(out_elems/256), lds=0). Harness parses it; keep it on one line.",
       f"; @launch grid=(256,1,1) block=(320,1,1) lds={LDS_BYTES}",
       '.amdgcn_target "amdgcn-amd-amdhsa--gfx950"', ".text", f".globl {NAME}_kernel", ".p2align 8", f".type {NAME}_kernel,@function", f"{NAME}_kernel:"]

A("s_cmp_ge_u32 s2, 256\ns_cbranch_scc1 L_end")
if PROF: A(f"s_memrealtime {sr(sST+2,2)}\ns_memtime s[70:71]\nv_mov_b32 v9, 0")
A("s_load_dwordx2 s[64+32:64+33], s[0:1], 0".replace("64+32", "100").replace("64+33", "101"))
A(f"s_load_dwordx4 s[{rK}:{rK+3}], s[0:1], 8\ns_load_dwordx4 s[{rWQ}:{rWQ+3}], s[0:1], 24\ns_load_dwordx4 s[{rXI}:{rXI+3}], s[0:1], 48\ns_load_dwordx4 s[{rOUT}:{rOUT+3}], s[0:1], 64\ns_load_dwordx4 s[{rDBG}:{rDBG+3}], s[0:1], 80")
A(f"""s_and_b32 s{sX}, s2, 7
s_lshr_b32 s{sJ}, s2, 3
v_lshrrev_b32 v{vG}, 6, v0
v_and_b32 v{vL}, 63, v0
v_readfirstlane_b32 s{sW}, v{vG}
v_and_b32 v{vN}, 15, v0
v_bfe_u32 v{vG}, v0, 4, 2
s_and_b32 s{sCG}, s{sJ}, 7
s_lshr_b32 s{sRG}, s{sJ}, 3
s_getreg_b32 s{sXCC}, hwreg(HW_REG_XCC_ID)
s_and_b32 s{sXCC}, s{sXCC}, 7
s_lshl_b32 s{sIB}, s{sX}, 16
s_add_u32 s{sIB}, s{sIB}, {IB0}
s_mov_b32 s{sPASS}, 0
s_mov_b32 s{sMODE}, 0
s_mov_b32 s{sCOPY}, 0
s_mov_b32 s{sI}, s{sIB}
s_cmp_ge_u32 s{sJ}, 18
s_cselect_b32 s{sROLE}, 1, 0
s_cmp_ge_u32 s{sJ}, 30
s_cselect_b32 s{sROLE}, 2, s{sROLE}""")
A(f"""s_cmp_ge_u32 s{sJ}, 9
s_cselect_b32 s{sHALF}, 1, 0
s_mul_i32 s{sT0}, s{sHALF}, 9
s_sub_u32 s{sCG9}, s{sJ}, s{sT0}
s_sub_u32 s{sT0}, s{sJ}, 18
s_and_b32 s{sT1}, s{sT0}, 3
s_lshr_b32 s{sT0}, s{sT0}, 2
s_and_b32 s{sT0}, s{sT0}, 3
s_cmp_eq_u32 s{sROLE}, 0
s_cselect_b32 s{sHALF}, s{sHALF}, s{sT1}
s_cselect_b32 s{sCG9}, s{sCG9}, s{sT0}
s_lshr_b32 s{sT0}, s{sJ}, 4
s_lshl_b32 s{sT1}, s{sX}, 1
s_add_u32 s{sT0}, s{sT0}, s{sT1}
s_lshl_b32 s{sT0}, s{sT0}, 23
s_and_b32 s{sT1}, s{sJ}, 15
s_lshl_b32 s{sT1}, s{sT1}, 16
s_add_u32 s{sT0}, s{sT0}, s{sT1}
s_add_u32 s{sT0}, s{sT0}, {28672*256}
s_waitcnt lgkmcnt(0)""")
A(f"s_add_u32 s{rV}, s14, s{sT0}\ns_addc_u32 s{rV+1}, s15, 0\ns_and_b32 s{rV+1}, s{rV+1}, 0xffff\ns_mov_b32 s{rV+2}, 65536\ns_mov_b32 s{rV+3}, 0x20000")
A(f"s_add_u32 s{rK}, s12, s{sT0}\ns_addc_u32 s{rK+1}, s13, 0\ns_and_b32 s{rK+1}, s{rK+1}, 0xffff\ns_mov_b32 s{rK+2}, 65536\ns_mov_b32 s{rK+3}, 0x20000")
srd(rWS, 50, 51, WSREC)
A(f"s_cmp_eq_u32 s{sROLE}, 0\ns_cselect_b32 s{rWA}, s22, s36\ns_cselect_b32 s{rWA+1}, s23, s37\ns_and_b32 s{rWA+1}, s{rWA+1}, 0xffff")
A(f"s_mov_b32 s{sT1}, {576*4608*2}\ns_cmp_eq_u32 s{sROLE}, 0\ns_cselect_b32 s{rWA+2}, {4096*576*2}, s{sT1}\ns_mov_b32 s{rWA+3}, 0x20000")
srd(rWQ, 20, 21, 576*4096*2)
srd(rW2, 44, 45, 4608*576*2)
srd(rB1, 38, 39, 4608*2)
srd(rXI, 100, 101, 1152)
srd(rOUT, 46, 47, 1152)
if PROF: A(f"v_writelane_b32 v9, s{sST+2}, 0")
A(f"s_cmp_eq_u32 s{sW}, 4\ns_cbranch_scc1 L_service")

t = vT
A(f"""s_mul_i32 s{sT0}, s{sRG}, 288
v_lshlrev_b32 v{t}, 4, v{vL}
v_add_u32 v{t}, s{sT0}, v{t}
s_cmp_eq_u32 s{sW}, 0
s_cselect_b32 s{sT1}, 18, 0
v_cmp_gt_u32 vcc, s{sT1}, v{vL}
v_mov_b32 v{t+1}, 0x10000
v_mov_b32 v{vONE}, 0x3f803f80
v_cndmask_b32 v{t}, v{t+1}, v{t}, vcc
buffer_load_dwordx4 {vr(vP2,4)}, v{t}, {sr(rXI,4)}, 0 offen""")
A(f"""s_lshl_b32 s{sT0}, s{sCG9}, 7
s_lshl_b32 s{sT1}, s{sW}, 5
s_add_u32 s{sT0}, s{sT0}, s{sT1}
v_lshl_add_u32 v{t+2}, v{vG}, 3, s{sT0}
buffer_load_dwordx2 {vr(vR+2,2)}, v{t+2}, {sr(rXI,4)}, 0 offen
s_mul_i32 s{sT0}, s{sX}, 1152
s_mul_i32 s{sT1}, s{sHALF}, 576
s_add_u32 s{sT0}, s{sT0}, s{sT1}
s_mul_i32 s{sT1}, s{sW}, 144
s_add_u32 s{sT0}, s{sT0}, s{sT1}
v_min_u32 v{t+3}, 35, v{vL}
v_lshl_add_u32 v{t+3}, v{t+3}, 2, s{sT0}
buffer_load_dword v{vB+1}, v{t+3}, {sr(rB1,4)}, 0 offen""")
def wdma_voff(dst, rowbytes, kind):
    if kind == "std":
        A(f"v_bfe_u32 v{dst}, v{vL}, 4, 1\ns_and_b32 s{sT0}, s{sW}, 1\ns_lshl_b32 s{sT0}, s{sT0}, 1")
    else:
        A(f"v_lshrrev_b32 v{dst}, 5, v{vL}\ns_and_b32 s{sT0}, s{sW}, 2")
    A(f"""v_or_b32 v{dst}, s{sT0}, v{dst}
v_lshlrev_b32 v{dst}, 1, v{dst}
v_xor_b32 v{dst}, v{dst}, v{vL}
v_and_b32 v{dst}, 7, v{dst}
v_lshlrev_b32 v{dst}, 4, v{dst}
v_lshrrev_b32 v{dst+1}, 3, v{vL}
s_mov_b32 s{sT0}, {rowbytes}
v_mad_u32_u24 v{dst}, v{dst+1}, s{sT0}, v{dst}""")
wdma_voff(t+4, 8192, "std")
A(f"""s_mul_i32 s{sT1}, s{sRG}, {144*8192}
s_lshl_b32 s{sT2}, s{sW}, 16
s_add_u32 s{sT1}, s{sT1}, s{sT2}
s_lshl_b32 s{sT2}, s{sX}, 10
s_add_u32 s{sT1}, s{sT1}, s{sT2}
s_lshl_b32 s{sT2}, s{sCG}, 7
s_add_u32 s{sT1}, s{sT1}, s{sT2}
s_lshl_b32 s{sT2}, s{sW}, 10
s_add_u32 s{sT2}, s{sT2}, {LWQ}
s_cmp_ge_u32 s{sW}, 2
s_cbranch_scc1 L_wq4
s_add_u32 s{sT3}, s{sT1}, {128*8192}
s_add_u32 s{sT4}, s{sT2}, {16*1024}""")
dma(rWQ, t+4, sT3, sT4)
A("L_wq4:")
for i in range(4):
    dma(rWQ, t+4, sT1, sT2)
    if i < 3: A(f"s_add_u32 s{sT1}, s{sT1}, {32*8192}\ns_add_u32 s{sT2}, s{sT2}, 4096")
A(f"""s_lshl_b32 s{sT0}, s{sW}, 2
v_add_u32 v{t+6}, s{sT0}, v{vG}
v_xor_b32 v{t+6}, v{t+6}, v{vN}
v_lshlrev_b32 v{t+6}, 4, v{t+6}
v_lshl_add_u32 v{t+6}, v{vG}, 8, v{t+6}
s_lshl_b32 s{sT0}, s{sW}, 10
v_add_u32 v{t+6}, s{sT0}, v{t+6}
s_add_u32 s{sT3}, s{sT0}, {LR}""")
if OPT["rot"]: A(f"s_lshl_b32 s{sROT}, s2, 13")
else: A(f"s_mov_b32 s{sROT}, 0")
for i in range(16):
    A(f"s_add_u32 s{sT1}, s{sROT}, {i*4096}\ns_and_b32 s{sT1}, s{sT1}, 0xffff\ns_add_u32 s{sT2}, s{sT1}, s{sT3}")
    dma(rK, t+6, sT1, sT2)
stamp(1)
A(f"v_mov_b32 v{vONE+1}, v{vONE}\ns_cmp_eq_u32 s{sW}, 0\ns_cselect_b32 s{sT0}, 0x3f803f80, 0\nv_mov_b32 v{vONE3}, s{sT0}\nv_mov_b32 v{vONE3+1}, s{sT0}")
mask64(0xffff0000, 0xffff0000, sMODD)
A(f"""s_and_b32 s{sT0}, s{sW}, 1
s_lshl_b32 s{sT0}, s{sT0}, 1
v_lshrrev_b32 v{t}, 3, v{vN}
v_add_u32 v{t}, s{sT0}, v{t}
v_and_b32 v{t+1}, 1, v{vN}
v_lshlrev_b32 v{t+1}, 4, v{t+1}
v_mov_b32 v{t+2}, 0x3d80
v_lshlrev_b32 v{t+1}, v{t+1}, v{t+2}
v_cmp_eq_u32 vcc, v{t}, v{vG}
v_bfe_u32 v{t+2}, v{vN}, 1, 2
s_nop 0
v_cndmask_b32 v{t+1}, 0, v{t+1}, vcc""")
for r in range(4):
    A(f"v_cmp_eq_u32 vcc, {r}, v{t+2}\ns_nop 1\nv_cndmask_b32 v{vSEL+r}, 0, v{t+1}, vcc")
def traddr_std(dst, base):
    A(f"""v_bfe_u32 v{dst}, v{vL}, 3, 2
v_xor_b32 v{dst}, s{sW}, v{dst}
v_lshlrev_b32 v{dst}, 5, v{dst}
v_and_b32 v{dst+1}, 3, v{vL}
v_lshl_add_u32 v{dst}, v{dst+1}, 3, v{dst}
v_bfe_u32 v{dst+1}, v{vL}, 2, 2
v_lshl_add_u32 v{dst}, v{dst+1}, 7, v{dst}
v_lshl_add_u32 v{dst}, v{vG}, 10, v{dst}
v_add_u32 v{dst}, {base}, v{dst}""")
def traddr_tail(dst, base):
    A(f"""v_bfe_u32 v{dst}, v{vL}, 3, 1
v_and_b32 v{dst+1}, 2, v{vG}
v_or_b32 v{dst}, v{dst}, v{dst+1}
v_xor_b32 v{dst}, s{sW}, v{dst}
v_lshlrev_b32 v{dst}, 5, v{dst}
v_and_b32 v{dst+1}, 3, v{vL}
v_lshl_add_u32 v{dst}, v{dst+1}, 3, v{dst}
v_lshrrev_b32 v{dst+1}, 2, v{vL}
v_lshl_add_u32 v{dst}, v{dst+1}, 7, v{dst}
v_add_u32 v{dst}, {base + 16384}, v{dst}""")
def tr_slice(dstreg, a_std, a_tail, off):
    for ks in range(4):
        for u in range(2): A(f"ds_read_b64_tr_b16 {vr(dstreg+4*ks+2*u,2)}, v{a_std} offset:{off+ks*4096+u*512}")
    A(f"ds_read_b64_tr_b16 {vr(dstreg+16,2)}, v{a_tail} offset:{off}")
traddr_std(t, LWQ); traddr_tail(t+2, LWQ)
A(f"s_mul_i32 s{sT0}, s{sW}, 1152\ns_add_u32 s{sT0}, s{sT0}, {LXS}\nv_lshl_add_u32 v{t+4}, v{vL}, 4, s{sT0}")
for r in range(4): A(f"v_mov_b32 v{vP2+4+r}, 0")
A("s_waitcnt vmcnt(16)")
A(f"ds_write_b128 v{t+4}, {vr(vP2,4)}\ns_mov_b64 exec, 0xff\nds_write_b128 v{t+4}, {vr(vP2+4,4)} offset:1024\ns_mov_b64 exec, -1")
A(f"""v_lshlrev_b32 v{vR}, 16, v{vR+2}
v_and_b32 v{vR+1}, 0xffff0000, v{vR+2}
v_lshlrev_b32 v{vR+2}, 16, v{vR+3}
v_and_b32 v{vR+3}, 0xffff0000, v{vR+3}""")
for r in range(4): A(f"v_mul_f32 v{vR+r}, 0x3b800000, v{vR+r}")
A(f"v_lshlrev_b32 v{vB}, 16, v{vB+1}\nv_and_b32 v{vB+1}, 0xffff0000, v{vB+1}")
A("s_waitcnt lgkmcnt(0)\ns_barrier")
stamp(2)
tr_slice(vWQ, t, t+2, 0)
A(f"v_mov_b32 v{vP2}, v{vONE}\nv_mov_b32 v{vP2+1}, v{vONE}\nv_mov_b32 v{vP2+2}, v{vONE}\nv_mov_b32 v{vP2+3}, v{vONE}")
A(f"v_mov_b32 v{vP2+8}, 0\nv_mov_b32 v{vP2+9}, 0\nv_mov_b32 v{vP2+10}, v{vONE}\nv_mov_b32 v{vP2+11}, v{vONE}")
A(f"""s_lshl_b32 s{sT0}, s{sCG}, 10
s_lshl_b32 s{sT1}, s{sW}, 8
s_add_u32 s{sT0}, s{sT0}, s{sT1}
s_lshl_b32 s{sT1}, s{sRG}, 2
s_add_u32 s{sT0}, s{sT0}, s{sT1}
s_add_u32 s{sT0}, s{sT0}, {SQo}
v_lshl_add_u32 v{t+5}, v{vN}, 4, s{sT0}
s_waitcnt lgkmcnt(0)""")
for ks in range(4): A(f"v_mfma_f32_16x16x32_bf16 {vr(vP2+4,4)}, {vr(vP2,4)}, {vr(vWQ+4*ks,4)}, {'0' if ks == 0 else vr(vP2+4,4)}")
A(f"v_mfma_f32_16x16x32_bf16 {vr(vP2+4,4)}, {vr(vP2+8,4)}, {vr(vWQ+14,4)}, {vr(vP2+4,4)}")
A(f"s_nop 7\ns_mov_b64 exec, 0xffff\nbuffer_store_dword v{vP2+4}, v{t+5}, {sr(rWS,4)}, s{sI} offen sc1\ns_mov_b64 exec, -1")

def x_gather_addrs(rg_s, a1, a2, aw):
    A(f"""s_mul_i32 s{sT0}, s{rg_s}, 288
s_lshl_b32 s{sT1}, s{sW}, 14
s_add_u32 s{sT0}, s{sT0}, s{sT1}
s_add_u32 s{sT0}, s{sT0}, s{sCOPY}
v_mul_u32_u24 v{a1}, 3641, v{vL}
v_lshrrev_b32 v{a1}, 16, v{a1}
v_mul_u32_u24 v{a2}, 18, v{a1}
v_sub_u32 v{a2}, v{vL}, v{a2}
v_lshlrev_b32 v{a1}, 11, v{a1}
v_lshl_add_u32 v{a1}, v{a2}, 4, v{a1}
v_add_u32 v{a1}, s{sT0}, v{a1}
s_add_u32 s{sT0}, s{sT0}, {3*2048 + 160}
v_and_b32 v{a2}, 7, v{vL}
v_lshl_add_u32 v{a2}, v{a2}, 4, s{sT0}
s_mul_i32 s{sT0}, s{sW}, 1152
s_add_u32 s{sT0}, s{sT0}, {LXS}
v_lshl_add_u32 v{aw}, v{vL}, 4, s{sT0}""")
def ln_read_addrs(ar, at, as1, as3, fa):
    A(f"""v_mov_b32 v{fa+16}, 0
v_mov_b32 v{fa+17}, 0
v_mul_u32_u24 v{ar}, 288, v{vN}
v_lshl_add_u32 v{at}, v{vG}, 3, v{ar}
v_add_u32 v{at}, {LXS + 256}, v{at}
v_lshl_add_u32 v{ar}, v{vG}, 4, v{ar}
v_add_u32 v{ar}, {LXS}, v{ar}
v_lshrrev_b32 v{as3}, 2, v{vL}
v_mul_u32_u24 v{as3}, 288, v{as3}
v_and_b32 v{as1}, 3, v{vL}
v_lshl_add_u32 v{as3}, v{as1}, 3, v{as3}
s_lshl_b32 s{sT0}, s{sW}, 5
s_add_u32 s{sT0}, s{sT0}, {LXS}
v_add_u32 v{as1}, s{sT0}, v{as3}
v_add_u32 v{as3}, {LXS + 256}, v{as3}""")
def hint_wait(off, tmp):
    if not OPT["hint"]: return
    A(f"v_min_u32 v{tmp}, 17, v{vL}\nv_lshlrev_b32 v{tmp}, 2, v{tmp}\nv_add_u32 v{tmp}, {off}, v{tmp}")
    poll(f"buffer_load_dword v{tmp+1}, v{tmp}, {sr(rWS,4)}, s{sXO} offen sc1", [tmp+1], tmp+2)
def x_gather(a1, a2, aw, g0, xoff_s, tmp):
    for r in range(4): A(f"v_mov_b32 v{g0+4+r}, 0")
    poll(f"buffer_load_dwordx4 {vr(g0,4)}, v{a1}, {sr(rWS,4)}, s{xoff_s} offen sc1\ns_mov_b64 exec, 0xff\nbuffer_load_dwordx4 {vr(g0+4,4)}, v{a2}, {sr(rWS,4)}, s{xoff_s} offen sc1\ns_mov_b64 exec, -1",
         range(g0, g0+8), tmp)
    A(f"ds_write_b128 v{aw}, {vr(g0,4)}\ns_mov_b64 exec, 0xff\nds_write_b128 v{aw}, {vr(g0+4,4)} offset:1024\ns_mov_b64 exec, -1\ns_waitcnt lgkmcnt(0)\ns_barrier")
def ln_gemv(nt, wreg, ar, at, as1, as3, fa, fs, acc, sacc, adst, astat, statmask_s):
    A(f"ds_read_b64_tr_b16 {vr(fs,2)}, v{as1}\nds_read_b64_tr_b16 {vr(fs+2,2)}, v{as1} offset:128\nds_read_b64_tr_b16 {vr(fs+4,2)}, v{as3}")
    for ks in range(4): A(f"ds_read_b128 {vr(fa+4*ks,4)}, v{ar} offset:{ks*64}")
    A(f"ds_read_b64 {vr(fa+18,2)}, v{at}")
    A("s_waitcnt lgkmcnt(7)")
    A(f"v_mfma_f32_16x16x16_bf16 {vr(sacc,4)}, {vr(vONE,2)}, {vr(fs,2)}, 0\ns_waitcnt lgkmcnt(6)")
    A(f"v_mfma_f32_16x16x16_bf16 {vr(sacc+4,4)}, {vr(vONE,2)}, {vr(fs+2,2)}, 0\ns_waitcnt lgkmcnt(5)")
    A(f"v_mfma_f32_16x16x16_bf16 {vr(sacc+8,4)}, {vr(vONE3,2)}, {vr(fs+4,2)}, 0")
    seq = []
    for ks in range(5):
        for u in range(nt):
            c = "0" if ks == 0 else vr(acc+4*u, 4)
            if ks < 4: m = f"v_mfma_f32_16x16x32_bf16 {vr(acc+4*u,4)}, {vr(fa+4*ks,4)}, {vr(wreg+18*u+4*ks,4)}, {c}"
            else: m = f"v_mfma_f32_16x16x32_bf16 {vr(acc+4*u,4)}, {vr(fa+16,4)}, {vr(wreg+18*u+14,4)}, {c}"
            seq.append((f"s_waitcnt lgkmcnt({4-ks})\n" if u == 0 else "") + m)
    for m in seq: A(m)
    s1, s2 = fs, fs + 1
    if nt == 1: A("s_nop 1")
    A(f"""v_add_f32 v{s1}, v{sacc}, v{sacc+4}
v_mul_f32 v{s2}, v{sacc}, v{sacc}
v_add_f32 v{s1}, v{s1}, v{sacc+8}
v_fmac_f32 v{s2}, v{sacc+4}, v{sacc+4}
v_fmac_f32 v{s2}, v{sacc+8}, v{sacc+8}
s_nop 1""")
    rowred("v_add_f32", [s1, s2])
    for u in range(nt):
        a = acc + 4*u
        A(f"v_add_f32 v{a}, v{a}, v{a+1}\nv_add_f32 v{a+2}, v{a+2}, v{a+3}")
    for u in range(nt):
        a = acc + 4*u
        A(f"v_add_f32 v{a}, v{a}, v{a+2}")
    if nt == 1:
        a = acc
        A(f"v_mov_b32 v{a+1}, v{a}\ns_nop 1\nv_permlane32_swap_b32 v{a}, v{a+1}\nv_add_f32 v{a}, v{a}, v{a+1}\nv_mov_b32 v{a+1}, v{a}\ns_nop 1\nv_permlane16_swap_b32 v{a}, v{a+1}\nv_add_f32 v{a}, v{a}, v{a+1}")
        m = "0xffff"
    else:
        a, b, c = acc, acc + 4, acc + 8
        A(f"v_mov_b32 v{c+1}, v{c}\ns_nop 0\nv_permlane32_swap_b32 v{a}, v{b}\nv_permlane32_swap_b32 v{c}, v{c+1}\nv_add_f32 v{a}, v{a}, v{b}\nv_add_f32 v{c}, v{c}, v{c+1}\ns_nop 1\nv_permlane16_swap_b32 v{a}, v{c}\nv_add_f32 v{a}, v{a}, v{c}")
        m = mask64(0xffffffff, 0x0000ffff, sT2)
    pub(f"buffer_store_dwordx2 {vr(s1,2)}, v{astat}, {sr(rWS,4)}, s{sI} offen", sr(statmask_s, 2))
    pub(f"buffer_store_dword v{acc}, v{adst}, {sr(rWS,4)}, s{sI} offen", m)

qa1, qa2, qaw, qar, qat, qas1, qas3, qadst, qastat = t, t+1, t+2, t+3, t+4, t+5+1, t+7, t+8, t+9
def q_out_addrs():
    A(f"""s_lshl_b32 s{sT0}, s{sCG}, 10
s_lshl_b32 s{sT1}, s{sW}, 8
s_add_u32 s{sT0}, s{sT0}, s{sT1}
s_lshl_b32 s{sT1}, s{sRG}, 2
s_add_u32 s{sT0}, s{sT0}, s{sT1}
v_lshl_add_u32 v{qadst}, v{vN}, 4, s{sT0}
s_lshl_b32 s{sT0}, s{sRG}, 5
s_lshl_b32 s{sT1}, s{sW}, 3
s_add_u32 s{sT0}, s{sT0}, s{sT1}
s_add_u32 s{sT0}, s{sT0}, {QSo}
v_mov_b32 v{qastat}, s{sT0}
s_cmp_eq_u32 s{sCG}, 0
s_cselect_b64 s[100:101], 1, 0""")
ln_read_addrs(qar, qat, qas1, qas3, vW); q_out_addrs()
A("s_branch L_q_reads")

A("L_q:")
x_gather_addrs(sRG, qa1, qa2, qaw); ln_read_addrs(qar, qat, qas1, qas3, vW); q_out_addrs()
A(f"s_mov_b32 s{sXO}, s{sI}")
hint_wait(H5o, t+10)
stamp(12)
A(f"s_mov_b32 s{sXO}, {X2O}\ns_mov_b32 s{sPASS}, {PS}\ns_add_u32 s{sI}, s{sIB}, {PS}")
x_gather(qa1, qa2, qaw, vP2, sXO, t+10)
stamp(13)
A("L_q_reads:")
ln_gemv(1, vWQ, qar, qat, qas1, qas3, vW, vW+20, vW+28, vW+32, qadst, qastat, 100)

aq1, aq2, aqw, aqr, apw, amw, apr, amr, avt0, avt1, aop, aml, axr = [t + k for k in range(13)]
gq, gs = vW + 40, vW + 44
A(f"""s_lshr_b32 s{sT0}, s{sJ}, 4
s_lshl_b32 s{sT0}, s{sT0}, 12
v_lshl_add_u32 v{aq1}, v0, 4, s{sT0}
v_lshlrev_b32 v{aq2}, 3, v{vN}
v_add_u32 v{aq2}, {QSo}, v{aq2}
v_lshlrev_b32 v{aqw}, 1, v0
v_add_u32 v{aqw}, {LQ}, v{aqw}
v_lshrrev_b32 v{aqr}, 3, v{vN}
v_lshlrev_b32 v{apr}, 9, v{aqr}
v_lshlrev_b32 v{aqr}, 8, v{aqr}
v_lshl_add_u32 v{aqr}, v{vG}, 4, v{aqr}
v_add_u32 v{aqr}, {LQ}, v{aqr}
v_lshl_add_u32 v{apr}, v{vG}, 4, v{apr}
v_add_u32 v{apr}, {LP}, v{apr}
v_lshrrev_b32 v{amr}, 5, v{vL}
v_lshlrev_b32 v{apw}, 9, v{amr}
v_and_b32 v{amw}, 31, v{vL}
v_lshl_add_u32 v{apw}, v{amw}, 2, v{apw}
s_lshl_b32 s{sT0}, s{sW}, 7
s_add_u32 s{sT0}, s{sT0}, {LP}
v_add_u32 v{apw}, s{sT0}, v{apw}
v_lshlrev_b32 v{amr}, 4, v{amr}
s_lshl_b32 s{sT0}, s{sW}, 2
s_add_u32 s{sT0}, s{sT0}, {LM}
v_add_u32 v{amw}, s{sT0}, v{amr}
v_and_b32 v{avt0}, 3, v{vL}
v_lshl_add_u32 v{amr}, v{avt0}, 2, v{amr}
v_add_u32 v{amr}, {LM}, v{amr}""")
A(f"""v_bfe_u32 v{avt1}, v{vL}, 3, 2
v_bfe_u32 v{aop}, v{vL}, 2, 1
v_lshl_or_b32 v{avt1}, v{aop}, 2, v{avt1}
s_lshl_b32 s{sT0}, s{sW}, 1
v_xor_b32 v{avt1}, s{sT0}, v{avt1}
v_lshlrev_b32 v{avt1}, 5, v{avt1}
v_lshl_add_u32 v{avt0}, v{avt0}, 3, v{avt1}
v_lshl_add_u32 v{avt0}, v{aop}, 12, v{avt0}
v_bfe_u32 v{aop}, v{vL}, 3, 1
v_lshl_add_u32 v{avt0}, v{aop}, 8, v{avt0}
v_lshl_add_u32 v{avt0}, v{vG}, 10, v{avt0}
v_xor_b32 v{avt1}, 32, v{avt0}""")
A(f"""s_lshl_b32 s{sT0}, s{sJ}, 9
s_lshl_b32 s{sT1}, s{sW}, 6
s_add_u32 s{sT0}, s{sT0}, s{sT1}
s_add_u32 s{sT0}, s{sT0}, {OPo}
v_lshrrev_b32 v{aml}, 5, v{vL}
v_lshlrev_b32 v{aop}, 8, v{aml}
v_lshl_add_u32 v{aop}, v{vN}, 2, v{aop}
v_add_u32 v{aop}, s{sT0}, v{aop}
s_lshl_b32 s{sT0}, s{sJ}, 6
s_lshl_b32 s{sT1}, s{sW}, 2
s_add_u32 s{sT0}, s{sT0}, s{sT1}
s_add_u32 s{sT0}, s{sT0}, {MLo}
v_lshl_add_u32 v{aml}, v{aml}, 4, s{sT0}""")
qloads = f"buffer_load_dwordx4 {vr(gq,4)}, v{aq1}, {sr(rWS,4)}, s{sI} offen sc1\nbuffer_load_dwordx2 {vr(gs,2)}, v{aq2}, {sr(rWS,4)}, s{sI} offen sc1"
A(f"s_cmp_lg_u32 s{sPASS}, 0\ns_cbranch_scc1 L_att_poll")
NV1 = OPT["nv1"]
vo = t + 13
A(f"""s_and_b32 s{sT0}, s{sW}, 1
s_lshl_b32 s{sT0}, s{sT0}, 1
v_and_b32 v{vo}, 1, v{vG}
v_or_b32 v{vo}, s{sT0}, v{vo}
v_lshlrev_b32 v{vo}, 1, v{vo}
v_xor_b32 v{vo}, v{vo}, v{vN}
v_lshlrev_b32 v{vo}, 4, v{vo}
v_lshl_add_u32 v{vo}, v{vG}, 8, v{vo}
s_lshl_b32 s{sT3}, s{sW}, 10
v_add_u32 v{vo}, s{sT3}, v{vo}
v_xor_b32 v{vo+1}, 128, v{vo}""")
def vdma(i):
    A(f"s_add_u32 s{sT1}, s{sROT}, {(i & 7)*4096}\ns_and_b32 s{sT1}, s{sT1}, 0x7fff")
    if i >= 8: A(f"s_add_u32 s{sT1}, s{sT1}, 0x8000")
    A(f"s_add_u32 s{sT2}, s{sT1}, s{sT3}")
    dma(rV, vo + (i & 1), sT1, sT2)
for i in range(NV1): vdma(i)
ka = vW
A(f"s_lshl_b32 s{sT0}, s{sW}, 14\ns_add_u32 s{sT0}, s{sT0}, {LR}\nv_lshl_add_u32 v{ka+4}, v{vN}, 8, s{sT0}\nv_xor_b32 v{ka+5}, v{vG}, v{vN}")
for ks in range(4): A(f"v_xor_b32 v{ka+ks}, {ks << 2}, v{ka+5}\nv_lshl_add_u32 v{ka+ks}, v{ka+ks}, 4, v{ka+4}")
A(f"v_mov_b32 v{ka+4}, {LMODE}\nv_add_u32 v{ka+6}, {SQo}, v{aq1}")
A(f"s_waitcnt vmcnt({NV1 + 2})\ns_barrier")
stamp(3)
A(f"ds_read_b64 {vr(ka+8,2)}, v{ka+4}")
for Tt in range(4):
    for ks in range(4): A(f"ds_read_b128 {vr(vK+16*Tt+4*ks,4)}, v{ka+ks} offset:{Tt*4096}")
    if Tt == 1: A(f"s_waitcnt lgkmcnt(8)\nv_readfirstlane_b32 s{sMODE}, v{ka+8}\nv_readfirstlane_b32 s{sE1}, v{ka+9}")
gsq = vW + 36
q0loads = qloads + f"\nbuffer_load_dwordx4 {vr(gsq,4)}, v{ka+6}, {sr(rWS,4)}, s{sI} offen sc1"
A(q0loads)
for i in range(NV1, 16): vdma(i)
A(f"s_waitcnt vmcnt({16 - NV1})")
check(list(range(gsq, gsq+4)) + list(range(gq, gq+6)), ka+7, "L_q0_retry")
A("L_q0_ok:")
A(f"v_add_f32 v{gsq}, v{gsq}, v{gsq+1}\nv_add_f32 v{gsq+2}, v{gsq+2}, v{gsq+3}\nv_add_f32 v{vS}, v{gsq}, v{gsq+2}\ns_branch L_att_ok")
T(f"L_q0_retry:\ns_mov_b32 s{sCNT}, 0\nL_q0_top:\n{q0loads}\ns_waitcnt vmcnt(0)")
T(f"v_max_u32 v{ka+7}, v{gsq}, v{gsq+1}\nv_max3_u32 v{ka+7}, v{ka+7}, v{gsq+2}, v{gsq+3}")
for k in range(3): T(f"v_max3_u32 v{ka+7}, v{ka+7}, v{gq+2*k}, v{gq+2*k+1}")
T(f"v_cmp_eq_u32 vcc, -1, v{ka+7}\ns_cbranch_vccz L_q0_ok\ns_add_u32 s{sCNT}, s{sCNT}, 1\ns_cmp_lt_u32 s{sCNT}, {OPT['tmo']}\ns_cbranch_scc1 L_q0_top\ns_branch L_end")
A("L_att_poll:")
def res_addr(dst, tmp):
    A(f"""v_lshrrev_b32 v{dst}, 2, v{vN}
v_lshlrev_b32 v{dst}, 14, v{dst}
v_and_b32 v{tmp}, 3, v{vN}
v_lshl_add_u32 v{dst}, v{tmp}, 11, v{dst}
v_lshl_add_u32 v{dst}, v{vG}, 4, v{dst}
s_lshl_b32 s{sT0}, s{sCG9}, 7
s_lshr_b32 s{sT1}, s{sW}, 1
s_lshl_b32 s{sT1}, s{sT1}, 6
s_add_u32 s{sT0}, s{sT0}, s{sT1}
s_add_u32 s{sT0}, s{sT0}, s{sCOPY}
v_add_u32 v{dst}, s{sT0}, v{dst}""")
res_addr(axr, t+13)
poll(qloads, range(gq, gq+6), t+13)
gres = t + 16
A(f"buffer_load_dwordx4 {vr(gres,4)}, v{axr}, {sr(rWS,4)}, s{sXO} offen sc1")
A("L_att_ok:")
stamp(4)
mu, cexp = t + 14, t + 15
A(f"v_add_f32 v{gq}, v{gq}, v{gq+1}\nv_add_f32 v{gq+2}, v{gq+2}, v{gq+3}")
rowred("v_add_f32", [gs, gs+1])
A(f"v_add_f32 v{gq}, v{gq}, v{gq+2}\nv_mul_f32 v{mu}, {1/576:.9e}, v{gs}\nv_mul_f32 v{gs+1}, {1/576:.9e}, v{gs+1}")
A(f"v_fma_f32 v{gq}, -v{mu}, v{vS}, v{gq}\nv_fma_f32 v{gs+1}, -v{mu}, v{mu}, v{gs+1}\nv_cvt_pk_bf16_f32 v{gq}, v{gq}, v{gq}\nv_max_f32 v{gs+1}, 0, v{gs+1}")
A(f"ds_write_b16 v{aqw}, v{gq}\nv_add_f32 v{gs+1}, 0x3727c5ac, v{gs+1}\nv_rsq_f32 v{cexp}, v{gs+1}")
A("s_waitcnt lgkmcnt(0)\ns_barrier")
fq, D = vW, vW + 32
for ks in range(4): A(f"ds_read_b128 {vr(fq+4*ks,4)}, v{aqr} offset:{ks*64}")
A(f"v_mul_f32 v{cexp}, {128**-0.5*math.log2(math.e):.9e}, v{cexp}")
def vtr(ks, tau, u): return f"ds_read_b64_tr_b16 {vr(vV+8*ks+4*tau+2*u,2)}, v{avt0+tau} offset:{ks*8192+u*512}"
vq = [vtr(ks, tau, u) for ks in range(4) for tau in range(2) for u in range(2)]
for Tt in range(4):
    for ks in range(4):
        if Tt == 0: A(f"s_waitcnt lgkmcnt({3-ks})")
        A(f"v_mfma_f32_16x16x32_bf16 {vr(D+4*Tt,4)}, {vr(fq+4*ks,4)}, {vr(vK+16*Tt+4*ks,4)}, {'0' if ks == 0 else vr(D+4*Tt,4)}")
        if Tt in (1, 2): A(vq.pop(0)); A(vq.pop(0))
sa, sb, um = t + 20, t + 21, t + 13
A(f"s_nop 1\nv_cndmask_b32 v{sa}, v{D}, v{D+8}, {sr(sMODD,2)}\ns_nop 4\nv_cndmask_b32 v{sb}, v{D+4}, v{D+12}, {sr(sMODD,2)}")
A(f"v_max_f32 v{um}, v{sa}, v{sb}\nv_mov_b32 v{mu}, v{um}\ns_nop 1\nv_permlane16_swap_b32 v{um}, v{mu}\nv_max_f32 v{um}, v{um}, v{mu}\ns_nop 1")
rowred("v_max_f32", [um])
A(f"v_sub_f32 v{sa}, v{sa}, v{um}\nv_sub_f32 v{sb}, v{sb}, v{um}\nv_mul_f32 v{sa}, v{sa}, v{cexp}\nv_mul_f32 v{sb}, v{sb}, v{cexp}")
A(f"v_exp_f32 v{sa}, v{sa}\nv_exp_f32 v{sb}, v{sb}\nv_mul_f32 v{um}, v{um}, v{cexp}\nv_cvt_pk_bf16_f32 v{mu}, v{sa}, v{sb}")
A(f"ds_write_b32 v{amw}, v{um}\nds_write_b32 v{apw}, v{mu}")
A(f"v_lshlrev_b32 v{sa}, 16, v{mu}\nv_and_b32 v{sb}, 0xffff0000, v{mu}\nv_add_f32 v{sa}, v{sa}, v{sb}")
A("s_waitcnt vmcnt(0) lgkmcnt(0)\ns_barrier")
stamp(5)
fp, acc = vW, vW + 32
fm = sb
A(f"ds_read_b32 v{fm}, v{amr}")
for ks in range(8): A(f"ds_read_b128 {vr(fp+4*ks,4)}, v{apr} offset:{ks*64}")
vq = [vtr(ks, tau, u) for ks in range(4, 8) for tau in range(2) for u in range(2)]
big = mu
fb = t
side = [f"v_mov_b32 v{cexp}, v{sa}", f"v_max_f32_dpp v{big}, v{fm}, v{fm} {ROWRED[0]} {DPPM}", "s_nop 0",
        f"v_permlane16_swap_b32 v{sa}, v{cexp}", f"v_max_f32_dpp v{big}, v{big}, v{big} {ROWRED[1]} {DPPM}", f"v_add_f32 v{sa}, v{sa}, v{cexp}",
        f"v_sub_f32 v{fm}, v{fm}, v{big}", f"v_sub_f32 v{um}, v{um}, v{big}",
        f"v_add_f32_dpp v{sa}, v{sa}, v{sa} {ROWRED[0]} {DPPM}", f"v_exp_f32 v{fm}, v{fm}", f"v_exp_f32 v{um}, v{um}",
        f"v_add_f32_dpp v{sa}, v{sa}, v{sa} {ROWRED[1]} {DPPM}", f"v_mov_b32_dpp v{fb} , v{fm} row_newbcast:0 {DPPM}", f"v_mov_b32_dpp v{fb+1}, v{fm} row_newbcast:1 {DPPM}",
        f"v_add_f32_dpp v{sa}, v{sa}, v{sa} {ROWRED[2]} {DPPM}", f"v_mov_b32_dpp v{fb+2}, v{fm} row_newbcast:2 {DPPM}", f"v_mov_b32_dpp v{fb+3}, v{fm} row_newbcast:3 {DPPM}",
        f"v_add_f32_dpp v{sa}, v{sa}, v{sa} {ROWRED[3]} {DPPM}", f"v_mul_f32 v{sa}, v{sa}, v{um}"]
issued_after = 0
for ks in range(8):
    if ks < 4: A(f"s_waitcnt lgkmcnt({min(15, 7 - ks + issued_after)})")
    else: A(f"s_waitcnt lgkmcnt({(7 - ks) * 4})")
    for tau in range(2):
        a = acc + 8*(ks >> 1) + 4*tau
        A(f"v_mfma_f32_16x16x32_bf16 {vr(a,4)}, {vr(fp+4*ks,4)}, {vr(vV+8*ks+4*tau,4)}, {'0' if ks % 2 == 0 else vr(a,4)}")
        if vq: A(vq.pop(0)); A(vq.pop(0)); issued_after += 2
        else:
            for _ in range(3):
                if side: A(side.pop(0))
assert not side
o0, o1 = cexp, um
for wv in range(4):
    if wv == 3: A("s_nop 3")
    for tau, o in ((0, o0), (1, o1)):
        op = "v_mul_f32" if wv == 0 else "v_fmac_f32"
        A(f"{op} v{o}, v{fb+wv}, v{acc+8*wv+4*tau}")
A(f"v_cvt_pk_bf16_f32 v{o0}, v{o0}, v{o1}")
m1 = mask64(0x0000ffff, 0x0000ffff, sT2)
pub(f"buffer_store_dword v{o0}, v{aop}, {sr(rWS,4)}, s{sI} offen", m1)
m2 = mask64(1, 1, sT2)
pub(f"buffer_store_dword v{sa}, v{aml}, {sr(rWS,4)}, s{sI} offen", m2)
A(f"v_lshrrev_b32 v{o1}, 5, v{vL}\nv_mul_u32_u24 v{o1}, 12, v{o1}\nv_sub_u32 v{aml}, v{aml}, v{o1}\ns_cmp_eq_u32 s{sW}, 0\ns_cselect_b64 {sr(sT2,2)}, {sr(sT2,2)}, 0")
pub(f"buffer_store_dword v{big}, v{aml}, {sr(rWS,4)}, s{sI} offen offset:32", sr(sT2, 2))
stamp(6)
gv, gva = vP2 + 24, t + 20
gload = f"buffer_load_dwordx4 {vr(gv,4)}, v{gva}, {sr(rWS,4)}, 0 offen sc1"
A(f"s_cmp_lg_u32 s{sPASS}, 0\ns_cbranch_scc1 L_nog\nv_lshlrev_b32 v{gva}, 4, v{vL}\nv_add_u32 v{gva}, {VOT}, v{gva}\n{gload}\nL_nog:")
def gcheck():
    retry, back = uid("gr"), uid("gb")
    a, b = gva + 1, vP2 + 28
    A(f"s_mov_b32 s{sCNT}, 0\n{back}:")
    for r in range(4): A(f"v_xor_b32 v{b+r}, s{sE1}, v{gv+r}")
    A(f"v_or_b32 v{a}, v{b}, v{b+1}\nv_or3_b32 v{a}, v{a}, v{b+2}, v{b+3}\nv_cmp_lt_u32 vcc, 15, v{a}\ns_cbranch_vccnz {retry}")
    T(f"{retry}:\ns_add_u32 s{sCNT}, s{sCNT}, 1\ns_cmp_ge_u32 s{sCNT}, {OPT['tmo']}\ns_cbranch_scc1 L_end\n{gload}\ns_waitcnt vmcnt(0)\ns_branch {back}")
    if OPT["copies"] == 2:
        A(f"s_mov_b32 s{sT0}, 0\ns_mov_b32 s{sT1}, 0\ns_or_b32 s{sT4}, s{sXCC}, 8")
        for r in range(4):
            A(f"v_cmp_eq_u32 vcc, s{sXCC}, v{b+r}\ns_bcnt1_i32_b64 s{sT2}, vcc\ns_add_u32 s{sT0}, s{sT0}, s{sT2}")
            A(f"v_cmp_eq_u32 vcc, s{sT4}, v{b+r}\ns_bcnt1_i32_b64 s{sT2}, vcc\ns_add_u32 s{sT1}, s{sT1}, s{sT2}")
        A(f"s_cmp_gt_u32 s{sT1}, s{sT0}\ns_cselect_b32 s{sCOPY}, 0x2000, 0")
A(f"s_cmp_eq_u32 s{sROLE}, 1\ns_cbranch_scc1 L_roleB\ns_cmp_eq_u32 s{sROLE}, 2\ns_cbranch_scc1 L_roleF")

A(f"s_cmp_lg_u32 s{sPASS}, 0\ns_cbranch_scc1 L_wo_res")
wdma_voff(t, 1152, "wo")
A(f"""s_lshl_b32 s{sT1}, s{sX}, 1
s_add_u32 s{sT1}, s{sT1}, s{sHALF}
s_lshl_b32 s{sT1}, s{sT1}, 5
s_add_u32 s{sT1}, s{sT1}, s{sW}
s_mul_i32 s{sT1}, s{sT1}, {8*1152}
s_lshl_b32 s{sT2}, s{sCG9}, 7
s_add_u32 s{sT1}, s{sT1}, s{sT2}
s_lshl_b32 s{sT2}, s{sW}, 10
s_add_u32 s{sT2}, s{sT2}, {LR}""")
for i in range(8):
    dma(rWA, t, sT1, sT2)
    if i < 7: A(f"s_add_u32 s{sT1}, s{sT1}, {32*1152}\ns_add_u32 s{sT2}, s{sT2}, 4096")
A("s_waitcnt vmcnt(0)")
gcheck()
A(f"s_or_b32 s{sT0}, s2, s{sW}\ns_cmp_eq_u32 s{sT0}, 0\ns_cselect_b64 exec, 1, 0\nv_mov_b32 v{gva}, {EPO}\nv_mov_b32 v{gva+1}, s{sE1}\nbuffer_store_dword v{gva+1}, v{gva}, {sr(rWS,4)}, 0 offen sc1\ns_mov_b64 exec, -1")
A("s_barrier\ns_branch L_wo_go")
A("L_wo_res:")
recheck(f"buffer_load_dwordx4 {vr(gres,4)}, v{axr}, {sr(rWS,4)}, s{sXO} offen sc1", range(gres, gres+4), t)
A(f"v_mfma_f32_16x16x32_bf16 {vr(vR,4)}, {vr(vSEL,4)}, {vr(gres,4)}, 0")
A("L_wo_go:")
wa = t
A(f"""v_bfe_u32 v{wa}, v{vL}, 4, 1
v_bfe_u32 v{wa+1}, v{vL}, 2, 1
v_lshl_or_b32 v{wa}, v{wa+1}, 1, v{wa}
v_xor_b32 v{wa}, s{sW}, v{wa}
v_lshlrev_b32 v{wa}, 5, v{wa}
v_lshl_add_u32 v{wa}, v{wa+1}, 11, v{wa}
v_and_b32 v{wa+1}, 3, v{vL}
v_lshl_add_u32 v{wa}, v{wa+1}, 3, v{wa}
v_bfe_u32 v{wa+1}, v{vL}, 3, 1
v_lshl_add_u32 v{wa}, v{wa+1}, 7, v{wa}
v_lshl_add_u32 v{wa}, v{vG}, 9, v{wa}
v_add_u32 v{wa}, {LR}, v{wa}""")
for kk in range(8):
    for u in range(2): A(f"ds_read_b64_tr_b16 {vr(vW+4*kk+2*u,2)}, v{wa} offset:{kk*4096+u*256}")
go1, gml, gw, gr, gx, gh = t+1, t+2, t+3, t+4, t+5, t+6
A(f"""s_lshl_b32 s{sT0}, s{sHALF}, 13
s_lshl_b32 s{sT1}, s{sW}, 11
s_add_u32 s{sT0}, s{sT0}, s{sT1}
s_add_u32 s{sT0}, s{sT0}, {OPo}
v_lshl_add_u32 v{go1}, v{vL}, 4, s{sT0}
s_lshl_b32 s{sT0}, s{sHALF}, 10
s_add_u32 s{sT0}, s{sT0}, {MLo}
v_lshl_add_u32 v{gml}, v{vN}, 6, s{sT0}
s_mul_i32 s{sT0}, s{sW}, {4*544}
s_add_u32 s{sT0}, s{sT0}, {LOPS}
v_lshrrev_b32 v{gw}, 5, v{vL}
v_mul_u32_u24 v{gw}, 544, v{gw}
v_and_b32 v{gr}, 31, v{vL}
v_lshl_add_u32 v{gw}, v{gr}, 4, v{gw}
v_add_u32 v{gw}, s{sT0}, v{gw}
v_mul_u32_u24 v{gr}, 544, v{vN}
v_lshl_add_u32 v{gr}, v{vG}, 4, v{gr}
v_add_u32 v{gr}, {LOPS}, v{gr}""")
def x_store_addr(dst):
    A(f"""s_lshl_b32 s{sT0}, s{sX}, 1
s_add_u32 s{sT0}, s{sT0}, s{sHALF}
s_lshr_b32 s{sT1}, s{sT0}, 2
s_lshl_b32 s{sT1}, s{sT1}, 14
s_and_b32 s{sT0}, s{sT0}, 3
s_lshl_b32 s{sT0}, s{sT0}, 11
s_add_u32 s{sT0}, s{sT0}, s{sT1}
s_lshl_b32 s{sT1}, s{sCG9}, 7
s_add_u32 s{sT0}, s{sT0}, s{sT1}
s_lshl_b32 s{sT1}, s{sW}, 5
s_add_u32 s{sT0}, s{sT0}, s{sT1}
v_lshl_add_u32 v{dst}, v{vG}, 3, s{sT0}
v_lshl_add_u32 v{dst}, v{vN}, 13, v{dst}""")
def hint_addr(dst, off):
    A(f"s_lshl_b32 s{sT0}, s{sJ}, 2\ns_add_u32 s{sT0}, s{sT0}, {off}\nv_mov_b32 v{dst}, s{sT0}\ns_cmp_eq_u32 s{sW}, 0\ns_cselect_b64 s[100:101], 1, 0")
def hint_send(addr):
    if OPT["hint"]: pub(f"buffer_store_dword v{vL}, v{addr}, {sr(rWS,4)}, s{sI} offen", "s[100:101]")
XM = (0x00030003 if OPT["copies"] == 2 else 0x00010001)
def x_publish(src, addr, xoff):
    A(f"v_cvt_pk_bf16_f32 v{src}, v{src}, v{src+1}\nv_cvt_pk_bf16_f32 v{src+1}, v{src+2}, v{src+3}")
    A(f"s_add_u32 s{sT0}, s{sPASS}, {xoff}\ns_mov_b32 exec_lo, {XM:#x}\ns_mov_b32 exec_hi, {XM:#x}\nbuffer_store_dwordx2 {vr(src,2)}, v{addr}, {sr(rWS,4)}, s{sT0} offen sc1\ns_mov_b64 exec, -1")
x_store_addr(gx); hint_addr(gh, H3o)
ga, gl0, gl1, gm = vP2, vP2 + 8, vP2 + 12, vP2 + 16
poll(f"""buffer_load_dwordx4 {vr(ga,4)}, v{go1}, {sr(rWS,4)}, s{sI} offen sc1
buffer_load_dwordx4 {vr(ga+4,4)}, v{go1}, {sr(rWS,4)}, s{sI} offen offset:1024 sc1
buffer_load_dwordx4 {vr(gl0,4)}, v{gml}, {sr(rWS,4)}, s{sI} offen sc1
buffer_load_dwordx4 {vr(gl1,4)}, v{gml}, {sr(rWS,4)}, s{sI} offen offset:16 sc1
buffer_load_dwordx2 {vr(gm,2)}, v{gml}, {sr(rWS,4)}, s{sI} offen offset:32 sc1""", range(ga, ga+18), t+7)
stamp(7)
A(f"ds_write_b128 v{gw}, {vr(ga,4)}\nds_write_b128 v{gw}, {vr(ga+4,4)} offset:{2*544}")
M0_, M1_ = t+7, t+8
A(f"v_mov_b32 v{M0_}, v{gm}\nv_mov_b32 v{M1_}, v{gm+1}")
A(f"v_add_f32 v{gl0}, v{gl0}, v{gl0+1}\nv_add_f32 v{gl1}, v{gl1}, v{gl1+1}")
A("s_waitcnt lgkmcnt(0)\ns_barrier")
fo, wacc = vW + 32, vP2 + 20
for kk in range(8): A(f"ds_read_b128 {vr(fo+4*kk,4)}, v{gr} offset:{kk*64}")
hint_send(gh)
rowred("v_max_f32", [M0_, M1_])
A(f"v_add_f32 v{gl0+2}, v{gl0+2}, v{gl0+3}\nv_add_f32 v{gl1+2}, v{gl1+2}, v{gl1+3}")
A(f"v_sub_f32 v{gm}, v{gm}, v{M0_}\nv_sub_f32 v{gm+1}, v{gm+1}, v{M1_}\nv_exp_f32 v{gm}, v{gm}\nv_exp_f32 v{gm+1}, v{gm+1}")
side = [f"v_add_f32 v{gl0}, v{gl0}, v{gl0+2}", f"v_add_f32 v{gl1}, v{gl1}, v{gl1+2}", f"v_mul_f32 v{gl0}, v{gl0}, v{gm}", f"v_mul_f32 v{gl1}, v{gl1}, v{gm+1}"]
for p in ROWRED: side += ["s_nop 0", f"v_add_f32_dpp v{gl0}, v{gl0}, v{gl0} {p} {DPPM}", f"v_add_f32_dpp v{gl1}, v{gl1}, v{gl1} {p} {DPPM}"]
side += [f"v_rcp_f32 v{gl0}, v{gl0}", f"v_rcp_f32 v{gl1}, v{gl1}", "s_nop 0", f"v_mul_f32 v{gm}, v{gm}, v{gl0}", f"v_mul_f32 v{gm+1}, v{gm+1}, v{gl1}"]
for kk in range(8):
    a = wacc + 4*(kk >> 2)
    A(f"s_waitcnt lgkmcnt({7-kk})\nv_mfma_f32_16x16x32_bf16 {vr(a,4)}, {vr(vW+4*kk,4)}, {vr(fo+4*kk,4)}, {'0' if kk % 4 == 0 else vr(a,4)}")
    for _ in range(2):
        if side: A(side.pop(0))
for s_ in side: A(s_)
tt = ga
for r in range(4): A(f"v_fma_f32 v{tt+r}, v{gm}, v{wacc+r}, v{vR+r}")
for r in range(4): A(f"v_fmac_f32 v{tt+r}, v{gm+1}, v{wacc+4+r}")
rowred("v_add_f32", [tt, tt+1, tt+2, tt+3])
x_publish(tt, gx, X1O)
stamp(8)
hp, hs, hw, hr, hx, hres, hh = t+1, t+2, t+3, t+4, t+5, t+6, t+7
A(f"""s_mul_i32 s{sT0}, s{sHALF}, {288*16}
s_mul_i32 s{sT1}, s{sW}, {72*16}
s_add_u32 s{sT0}, s{sT0}, s{sT1}
s_add_u32 s{sT0}, s{sT0}, {HPo}
v_min_u32 v{hw}, 35, v{vL}
v_lshl_add_u32 v{hp}, v{hw}, 5, s{sT0}
s_mul_i32 s{sT0}, s{sW}, 144
s_add_u32 s{sT0}, s{sT0}, {LH}
v_lshl_add_u32 v{hw}, v{hw}, 2, s{sT0}
v_lshlrev_b32 v{hs}, 3, v{vN}
v_add_u32 v{hs}, {HSo}, v{hs}
v_lshlrev_b32 v{hr}, 4, v{vG}
v_add_u32 v{hr}, {LH}, v{hr}""")
res_addr(hres, t+8); x_store_addr(hx); hint_addr(hh, H5o)
A(f"s_cmp_lg_u32 s{sPASS}, 0\ns_cbranch_scc1 L_w2_go")
wdma_voff(t+8, 1152, "std")
A(f"""s_lshl_b32 s{sT1}, s{sX}, 1
s_add_u32 s{sT1}, s{sT1}, s{sHALF}
s_mul_i32 s{sT1}, s{sT1}, 36
s_add_u32 s{sT1}, s{sT1}, s{sW}
s_mul_i32 s{sT1}, s{sT1}, {8*1152}
s_lshl_b32 s{sT2}, s{sCG9}, 7
s_add_u32 s{sT1}, s{sT1}, s{sT2}
s_lshl_b32 s{sT2}, s{sW}, 10
s_add_u32 s{sT2}, s{sT2}, {LW2}""")
for i in range(9):
    dma(rW2, t+8, sT1, sT2)
    if i < 8: A(f"s_add_u32 s{sT1}, s{sT1}, {32*1152}\ns_add_u32 s{sT2}, s{sT2}, 4096")
A(f"v_add_u32 v{t+8}, {S1o - HPo}, v{hp}")
poll(f"buffer_load_dwordx4 {vr(ga,4)}, v{t+8}, {sr(rWS,4)}, s{sI} offen sc1\nbuffer_load_dwordx4 {vr(ga+4,4)}, v{t+8}, {sr(rWS,4)}, s{sI} offen offset:16 sc1", range(ga, ga+8), t+9)
for k in range(2):
    b = ga + 4*k
    A(f"v_add_f32 v{b}, v{b}, v{b+1}\nv_add_f32 v{b+2}, v{b+2}, v{b+3}\nv_add_f32 v{vS1+k}, v{b}, v{b+2}")
A("s_barrier\nL_w2_go:")
traddr_std(t+8, LW2)
for ks in range(9):
    for u in range(2): A(f"ds_read_b64_tr_b16 {vr(vW+4*ks+2*u,2)}, v{t+8} offset:{ks*4096+u*512}")
gst = ga + 8
poll(f"""buffer_load_dwordx4 {vr(ga,4)}, v{hp}, {sr(rWS,4)}, s{sI} offen sc1
buffer_load_dwordx4 {vr(ga+4,4)}, v{hp}, {sr(rWS,4)}, s{sI} offen offset:16 sc1
buffer_load_dwordx2 {vr(gst,2)}, v{hs}, {sr(rWS,4)}, s{sI} offen sc1""", range(ga, ga+10), t+8)
stamp(9)
gx1 = ga + 12
A(f"buffer_load_dwordx4 {vr(gx1,4)}, v{hres}, {sr(rWS,4)}, s{sPASS} offen sc1")
y0, y1 = ga, ga + 4
for y in (y0, y1): A(f"v_add_f32 v{y}, v{y}, v{y+1}\nv_add_f32 v{y+2}, v{y+2}, v{y+3}")
hmu, hrs = t+8, t+9
stats_finish(gst, gst+1, hmu, hrs)
for y in (y0, y1): A(f"v_add_f32 v{y}, v{y}, v{y+2}")
for k, y in enumerate((y0, y1)): A(f"v_fma_f32 v{y}, -v{hmu}, v{vS1+k}, v{y}")
for k, y in enumerate((y0, y1)): A(f"v_fma_f32 v{y}, v{y}, v{hrs}, v{vB+k}")
A(f"s_mov_b32 s{sT0}, {-math.log2(math.e):.9e}")
for y in (y0, y1): A(f"v_mul_f32 v{y+1}, s{sT0}, abs(v{y})")
for y in (y0, y1): A(f"v_exp_f32 v{y+1}, v{y+1}")
A(f"v_cmp_le_f32 vcc, 0, v{y0}\nv_cmp_le_f32 {sr(sT2,2)}, 0, v{y1}")
for y in (y0, y1): A(f"v_fma_f32 v{y+2}, v{y+1}, 2.0, 1.0\nv_add_f32 v{y+3}, 2.0, v{y+1}")
e0, e1 = t + 10, t + 11
for y, e in ((y0, e0), (y1, e1)): A(f"v_mul_f32 v{y+3}, v{y+3}, v{y+1}\nv_mul_f32 v{e}, v{y+1}, v{y+1}")
A(f"v_cndmask_b32 v{y0+2}, v{y0+3}, v{y0+2}, vcc\nv_cndmask_b32 v{y1+2}, v{y1+3}, v{y1+2}, {sr(sT2,2)}")
A(f"v_cndmask_b32 v{e0}, 1.0, v{e0}, vcc\nv_cndmask_b32 v{e1}, 1.0, v{e1}, {sr(sT2,2)}")
for y, e in ((y0, e0), (y1, e1)): A(f"v_fma_f32 v{e}, v{e}, 2.0, v{y+2}")
for y, e in ((y0, e0), (y1, e1)): A(f"v_rcp_f32 v{e}, v{e}")
for y, e in ((y0, e0), (y1, e1)): A(f"v_mul_f32 v{y}, v{y}, v{y+2}")
for y, e in ((y0, e0), (y1, e1)): A(f"v_mul_f32 v{y}, v{y}, v{e}")
A(f"v_cvt_pk_bf16_f32 v{y0}, v{y0}, v{y1}\nds_write_b32 v{hw}, v{y0}\ns_waitcnt vmcnt(0) lgkmcnt(0)\ns_barrier")
fh = vW + 36
fhr = [vW + 36 + 4*k for k in range(7)] + [ga, ga + 4]
for ks in range(9): A(f"ds_read_b128 {vr(fhr[ks],4)}, v{hr} offset:{ks*64}")
recheck(f"buffer_load_dwordx4 {vr(gx1,4)}, v{hres}, {sr(rWS,4)}, s{sPASS} offen sc1", range(gx1, gx1+4), t+8)
A(f"v_mfma_f32_16x16x32_bf16 {vr(vR,4)}, {vr(vSEL,4)}, {vr(gx1,4)}, 0")
hint_send(hh)
w2acc = ga + 16
side = [f"v_add_f32_dpp v{vR+r}, v{vR+r}, v{vR+r} {p} {DPPM}" for p in ROWRED for r in range(4)]
if not OPT["hint"]: A("s_nop 4")
for ks in range(9):
    A(f"s_waitcnt lgkmcnt({8-ks})\nv_mfma_f32_16x16x32_bf16 {vr(w2acc,4)}, {vr(vW+4*ks,4)}, {vr(fhr[ks],4)}, {'0' if ks == 0 else vr(w2acc,4)}")
    if ks >= 1: A(side.pop(0)); A(side.pop(0))
A("s_nop 5")
for r in range(4): A(f"v_add_f32 v{w2acc+r}, v{w2acc+r}, v{vR+r}")
x_publish(w2acc, hx, X2O)
stamp(10)
A(f"s_cmp_eq_u32 s{sPASS}, 0\ns_cbranch_scc1 L_q")
A(f"s_or_b32 s{sT0}, s{sX}, s{sHALF}\ns_cmp_lg_u32 s{sT0}, 0\ns_cbranch_scc1 L_done")
A(f"""s_lshl_b32 s{sT0}, s{sCG9}, 7
s_lshl_b32 s{sT1}, s{sW}, 5
s_add_u32 s{sT0}, s{sT0}, s{sT1}
v_lshl_add_u32 v{hx}, v{vG}, 3, s{sT0}
s_mov_b32 s{sXO}, s{sI}""")
hint_wait(H5o, t+10)
A(f"s_mov_b32 s{sXO}, {PS + X2O}")
poll(f"buffer_load_dwordx4 {vr(gx1,4)}, v{hres}, {sr(rWS,4)}, s{sXO} offen sc1", range(gx1, gx1+4), t+10)
A(f"v_mfma_f32_16x16x32_bf16 {vr(vR,4)}, {vr(vSEL,4)}, {vr(gx1,4)}, 0\ns_nop 7")
rowred("v_add_f32", [vR, vR+1, vR+2, vR+3])
for r in range(4): A(f"v_mul_f32 v{vR+r}, 0x41800000, v{vR+r}")
A(f"v_cvt_pk_bf16_f32 v{vR}, v{vR}, v{vR+1}\nv_cvt_pk_bf16_f32 v{vR+1}, v{vR+2}, v{vR+3}")
for _ in range(OPT["xsleep"]): A("s_sleep 127")
A(f"s_mov_b32 exec_lo, 0x00010001\ns_mov_b32 exec_hi, 0x00010001\nbuffer_store_dwordx2 {vr(vR,2)}, v{hx}, {sr(rOUT,4)}, 0 offen\ns_mov_b64 exec, -1")
A("s_branch L_done")

A("L_roleB:")
ba1, ba2, baw, bar_, bat, bas1, bas3, badst, bastat = [t + k for k in range(9)]
A(f"s_cmp_lg_u32 s{sPASS}, 0\ns_cbranch_scc1 L_w1_tr")
wdma_voff(t+10, 9216, "std")
A(f"""s_mul_i32 s{sT1}, s{sHALF}, 18
s_add_u32 s{sT1}, s{sT1}, s{sW}
s_mul_i32 s{sT1}, s{sT1}, {8*9216}
s_mul_i32 s{sT2}, s{sX}, 1152
s_add_u32 s{sT1}, s{sT1}, s{sT2}
s_mul_i32 s{sT2}, s{sCG9}, 384
s_add_u32 s{sT1}, s{sT1}, s{sT2}
s_lshl_b32 s{sT2}, s{sW}, 10
s_add_u32 s{sT2}, s{sT2}, {LR}""")
for i in range(5):
    if i == 4: A(f"s_cmp_ge_u32 s{sW}, 2\ns_cbranch_scc1 L_w1_issued")
    for u in range(3):
        A(f"s_add_u32 s{sT3}, s{sT1}, {i*32*9216 + u*128}\ns_add_u32 s{sT4}, s{sT2}, {i*4096 + u*18432}")
        dma(rWA, t+10, sT3, sT4)
A("L_w1_issued:\ns_waitcnt vmcnt(0)")
gcheck()
A("s_barrier\nL_w1_tr:")
traddr_std(t+10, LR); traddr_tail(t+12, LR)
for u in range(3): tr_slice(vW + 18*u, t+10, t+12, u*18432)
A(f"""s_mul_i32 s{sT0}, s{sCG9}, {192*16}
s_lshl_b32 s{sT1}, s{sW}, 8
s_add_u32 s{sT0}, s{sT0}, s{sT1}
s_lshl_b32 s{sT1}, s{sHALF}, 2
s_add_u32 s{sT0}, s{sT0}, s{sT1}
s_add_u32 s{sT0}, s{sT0}, {HPo}
v_lshl_add_u32 v{badst}, v{vN}, 4, s{sT0}
v_and_b32 v{bastat}, 1, v{vG}
v_lshl_add_u32 v{badst}, v{bastat}, 11, v{badst}
v_lshrrev_b32 v{bastat}, 1, v{vG}
v_lshl_add_u32 v{badst}, v{bastat}, 10, v{badst}
s_lshl_b32 s{sT0}, s{sHALF}, 5
s_lshl_b32 s{sT1}, s{sW}, 3
s_add_u32 s{sT0}, s{sT0}, s{sT1}
s_add_u32 s{sT0}, s{sT0}, {HSo}
v_mov_b32 v{bastat}, s{sT0}
s_cmp_eq_u32 s{sCG9}, 0
s_cselect_b64 s[100:101], 1, 0""")
x_gather_addrs(sHALF, ba1, ba2, baw); ln_read_addrs(bar_, bat, bas1, bas3, vP2)
A(f"s_cmp_lg_u32 s{sPASS}, 0\ns_cbranch_scc1 L_w1_go")
cs = vP2
for r in range(4): A(f"v_mov_b32 v{cs+r}, v{vONE}")
A(f"v_mov_b32 v{cs+18}, v{vONE}\nv_mov_b32 v{cs+19}, v{vONE}")
A("s_nop 0\ns_waitcnt lgkmcnt(0)")
for u in range(3):
    a = cs + 4 + 4*u
    for ks in range(4): A(f"v_mfma_f32_16x16x32_bf16 {vr(a,4)}, {vr(cs,4)}, {vr(vW+18*u+4*ks,4)}, {'0' if ks == 0 else vr(a,4)}")
    A(f"v_mfma_f32_16x16x32_bf16 {vr(a,4)}, {vr(cs+16,4)}, {vr(vW+18*u+14,4)}, {vr(a,4)}")
A(f"v_add_u32 v{t+10}, {S1o - HPo}, v{badst}\nv_cmp_eq_u32 vcc, 2, v{vG}\ns_nop 6")
A(f"v_cndmask_b32 v{cs+4}, v{cs+4}, v{cs+8}, vcc\nv_cndmask_b32 v{cs+4}, v{cs+4}, v{cs+12}, {sr(sMODD,2)}")
pub(f"buffer_store_dword v{cs+4}, v{t+10}, {sr(rWS,4)}, s{sI} offen", mask64(0xffffffff, 0x0000ffff, sT2))
A("L_w1_go:")
A(f"s_mov_b32 s{sXO}, s{sI}")
hint_wait(H3o, t+10)
stamp(7)
x_gather(ba1, ba2, baw, vP2, sPASS, t+10)
stamp(8)
ln_gemv(3, vW, bar_, bat, bas1, bas3, vP2, vP2+20, t+10, 12, badst, bastat, 100)
stamp(9)
A(f"s_cmp_eq_u32 s{sPASS}, 0\ns_cbranch_scc1 L_q\ns_branch L_done")
A("L_roleF:")
A(f"s_cmp_lg_u32 s{sPASS}, 0\ns_cbranch_scc1 L_done\ns_waitcnt vmcnt(0)")
gcheck()
A("s_branch L_q")

A("L_done:")
if PROF:
    stamp(11)
    A(f"s_cmp_lg_u32 s{sW}, 0\ns_cbranch_scc1 L_end\ns_lshl_b32 s{sT0}, s2, 7\ns_add_u32 s{sT0}, s{sT0}, {STAMP}")
    A(f"s_lshr_b32 s3, s{sCOPY}, 12\ns_or_b32 s3, s3, s{sMODE}\nv_writelane_b32 v9, s3, 31\ns_memtime s[72:73]\ns_waitcnt lgkmcnt(0)\ns_sub_u32 s3, s72, s70\nv_writelane_b32 v9, s3, 30\nv_lshlrev_b32 v2, 2, v{vL}\ns_mov_b32 exec_hi, 0")
    A(f"buffer_store_dword v9, v2, {sr(rWS,4)}, s{sT0} offen")
if OPT["dbgout"]:
    A(f"s_cmp_lg_u32 s2, 0\ns_cbranch_scc1 L_end\ns_load_dwordx2 s[4:5], s[0:1], 80\nv_readlane_b32 s3, v9, 0\nv_readlane_b32 s6, v9, 30\ns_nop 1\nv_subrev_u32 v9, s3, v9\nv_writelane_b32 v9, s6, 0")
    A("v_mov_b32 v3, 0\ns_waitcnt lgkmcnt(0)\ns_mov_b64 exec, 1")
    for k, ln in enumerate([0, 1, 2, 3, 4, 6, 7, 8, 9, 10, 29, 20, 22, 24, 26, 27]):
        A(f"v_readlane_b32 s3, v9, {ln}\ns_nop 1\nv_mov_b32 v4, s3\nglobal_store_dword v3, v4, s[4:5] offset:{4*k}")
A("L_end:\ns_endpgm")

S = []
_L = L; L = S
A(f"L_service:\ns_setprio 3\ns_mov_b32 s{sT0}, {EPO}\ns_buffer_load_dword s{sE1}, {sr(rWS,4)}, s{sT0}")
t = vT
if OPT["pf"]:
    A(f"s_getpc_b64 s[54:55]\nL_pc:\ns_sub_u32 s54, s54, L_pc-{NAME}_kernel\ns_subb_u32 s55, s55, 0\nv_lshlrev_b32 v{t}, 7, v{vL}")
    A("PFLOADS")
for r in range(4): A(f"v_mov_b32 v{t+4+r}, -1")
A(f"""s_mul_i32 s{sT0}, s{sJ}, {IEND//32}
s_add_u32 s{sT0}, s{sT0}, s{sIB}
v_lshl_add_u32 v{t+1}, v{vL}, 4, s{sT0}
s_lshl_b32 s{sT0}, s2, 9
v_lshl_add_u32 v{t+2}, v{vL}, 4, s{sT0}
s_mov_b32 s{sT1}, {PS}""")
for so in ("0", f"s{sT1}"):
    A(f"buffer_store_dwordx4 {vr(t+4,4)}, v{t+1}, {sr(rWS,4)}, {so} offen sc1")
    A(f"s_mov_b32 exec_lo, -1\ns_mov_b32 exec_hi, {(1 << ((IEND//32 - 1024)//16 - 32)) - 1:#x}\nbuffer_store_dwordx4 {vr(t+4,4)}, v{t+1}, {sr(rWS,4)}, {so} offen offset:1024 sc1")
    A(f"s_mov_b32 exec_hi, 0\nbuffer_store_dwordx4 {vr(t+4,4)}, v{t+2}, {sr(rWS,4)}, {so} offen sc1\ns_mov_b64 exec, -1")
A(f"""s_waitcnt lgkmcnt(0)
s_and_b32 s{sE1}, s{sE1}, -16
s_add_u32 s{sE1}, s{sE1}, 16
s_or_b32 s{sT0}, s{sE1}, s{sXCC}
v_mov_b32 v{t+3}, s{sT0}
s_lshl_b32 s{sT0}, s{sX}, 7
s_add_u32 s{sT4}, s{sT0}, {FLG}
s_lshl_b32 s{sT1}, s{sJ}, 2
s_add_u32 s{sT0}, s{sT4}, s{sT1}
v_mov_b32 v{t+1}, s{sT0}
s_waitcnt vmcnt(0)
s_mov_b64 exec, 1
buffer_store_dword v{t+3}, v{t+1}, {sr(rWS,4)}, 0 offen sc1""")
if OPT["copies"] == 2 and OPT["pol"] < 0:
    A(f"""s_and_b32 s{sT0}, s2, 63
s_lshl_b32 s{sT0}, s{sT0}, 7
s_lshr_b32 s{sT1}, s2, 6
s_lshl_b32 s{sT1}, s{sT1}, 14
s_add_u32 s{sT0}, s{sT0}, s{sT1}
s_add_u32 s{sT0}, s{sT0}, {PROBE}
s_and_b32 s{sT1}, s{sJ}, 1
s_lshl_b32 s{sT1}, s{sT1}, 13
s_xor_b32 s{sT0}, s{sT0}, s{sT1}
s_xor_b32 s{sT1}, s{sT0}, 0x2000
s_memtime s[84:85]
s_waitcnt lgkmcnt(0)
s_buffer_load_dword s85, {sr(rWS,4)}, s{sT0}
s_waitcnt lgkmcnt(0)
s_memtime s[86:87]
s_waitcnt lgkmcnt(0)
s_buffer_load_dword s87, {sr(rWS,4)}, s{sT1}
s_waitcnt lgkmcnt(0)
s_memtime s[88:89]
s_waitcnt lgkmcnt(0)
s_sub_u32 s88, s88, s86
s_sub_u32 s86, s86, s84
s_cmp_gt_u32 s86, s88
s_cselect_b32 s{sT0}, 1, 0
s_xor_b32 s{sT0}, s{sT0}, s{sJ}
s_and_b32 s{sT0}, s{sT0}, 1""")
else:
    A(f"s_lshr_b32 s{sT0}, s{sXCC}, 2\ns_xor_b32 s{sT0}, s{sT0}, {max(OPT['pol'], 0)}")
A(f"""s_lshl_b32 s{sT0}, s{sT0}, 3
v_or_b32 v{t+3}, s{sT0}, v{t+3}
s_lshl_b32 s{sT0}, s2, 2
s_add_u32 s{sT0}, s{sT0}, {VOT}
v_mov_b32 v{t+1}, s{sT0}
buffer_store_dword v{t+3}, v{t+1}, {sr(rWS,4)}, 0 offen sc1
s_mov_b64 exec, -1
s_barrier
s_mov_b32 s{sCNT}, 0
s_add_u32 s{sT3}, s{sT4}, 64
L_flags:
s_buffer_load_dwordx16 s[12:27], {sr(rWS,4)}, s{sT4} glc
s_buffer_load_dwordx16 s[36:51], {sr(rWS,4)}, s{sT3} glc
s_or_b32 s{sT2}, s{sE1}, s{sXCC}
s_mov_b32 s{sT0}, 0
s_waitcnt lgkmcnt(0)""")
for r in list(range(12, 28)) + list(range(36, 52)):
    A(f"s_xor_b32 s{sT1}, s{r}, s{sT2}\ns_or_b32 s{sT0}, s{sT0}, s{sT1}")
A(f"""s_cmp_lt_u32 s{sT0}, 8
s_cbranch_scc1 L_flags_ok
s_sleep 4
s_add_u32 s{sCNT}, s{sCNT}, 1
s_cmp_lt_u32 s{sCNT}, {OPT['tmo']}
s_cbranch_scc1 L_flags
L_flags_ok:
s_cmp_eq_u32 s{sT0}, 0
s_cselect_b32 s{sMODE}, {OPT['fast']}, 0
v_mov_b32 v{t+4}, s{sMODE}
v_mov_b32 v{t+5}, s{sE1}
v_mov_b32 v{t+6}, {LMODE}
ds_write_b64 v{t+6}, {vr(t+4,2)}
s_waitcnt lgkmcnt(0)
s_endpgm""")
L = _L

k = L.index("s_cbranch_scc1 L_service")
L[k] = "s_cbranch_scc0 L_main"
body = L[:k+1] + S + ["L_main:"] + L[k+1:] + TAIL
NPF = OPT.get("npf", 2)
txt = "\n".join(body).replace("PFLOADS", "\n".join(f"global_load_dword v{vT+8+k}, v{vT}, s[54:55]\nv_add_u32 v{vT}, 8192, v{vT}" for k in range(NPF)))
out.append(txt)
out.append(f""".p2align 8
.fill {NPF*2048}, 4, 0xbf800000
s_endpgm
.section .rodata,"a"
.p2align 6
.amdhsa_kernel {NAME}_kernel
  .amdhsa_next_free_vgpr 256
  .amdhsa_next_free_sgpr 102
  .amdhsa_accum_offset 256
  .amdhsa_group_segment_fixed_size 0
  .amdhsa_kernarg_size 96
  .amdhsa_user_sgpr_count 2
  .amdhsa_user_sgpr_kernarg_segment_ptr 1
  .amdhsa_system_sgpr_workgroup_id_x 1
  .amdhsa_float_denorm_mode_32 3
.end_amdhsa_kernel""")
print("\n".join(out))
```

```python
import sys, math
OPT = dict(prof=0, nv1=8, fast=1, copies=2, pol=-1, hint=1, rot=1, ldf="nt", pf=1, tmo=1 << 17, dbgstage=0, xsleep=0, dbgout=0, echo=-1)
for a in sys.argv[1:]:
    k, v = a.split("=")
    OPT[k] = v if k in ("ldf",) else int(v, 0)
NAME = "interleave_layers__sliding_block_cached__dense_activation_mish__decode"
LDF = "" if OPT["ldf"] == "plain" else OPT["ldf"].replace("+", " ")
PROF = OPT["prof"]

L = []; TAIL = []
def A(s):
    for ln in s.split("\n"):
        ln = ln.strip()
        if ln: L.append(ln)
def T(s):
    for ln in s.split("\n"):
        ln = ln.strip()
        if ln: TAIL.append(ln)
_uid = [0]
def uid(p):
    _uid[0] += 1
    return f"L_{p}{_uid[0]}"
def vr(a, n=1): return f"v{a}" if n == 1 else f"v[{a}:{a+n-1}]"
def sr(a, n=1): return f"s{a}" if n == 1 else f"s[{a}:{a+n-1}]"
DPPM = "row_mask:0xf bank_mask:0xf"
ROWRED = ["quad_perm:[1,0,3,2]", "quad_perm:[2,3,0,1]", "row_half_mirror", "row_mirror"]

PS = 0x100000
X1O, X2O = 0x00000, 0x10000
IB0 = 0x20000
QPo, SQo, OPo, HPo, S1o, MLo, QSo, HSo, H3o, H5o, IEND = 0x0000, 0x2000, 0x4000, 0x8000, 0xA400, 0xC800, 0xD000, 0xD080, 0xD100, 0xD180, 0xD200
PROBE = 0x1C0000
EPO, FLG, VOT = 0x1B0000, 0x1B1000, 0x1B2000
STAMP = 0x200000
WSREC = 0x210000 if PROF else 0x200000
LV, LR, LWQ = 0, 65536, 135168
LW2 = LR + 32768
LOPS = LWQ
LQ, LP, LM, LH, LMODE, LXS = 153600, 154112, 155136, 155200, 155776, 155904
LDS_BYTES = 163840
sX, sJ, sW, sPASS, sROLE, sMODE, sCOPY, sIB = 4, 5, 6, 7, 8, 9, 10, 11
rK, rV, rWQ, rWA, rW2, rWS, rXI, rB1, rOUT, rDBG = 12, 16, 20, 24, 28, 32, 36, 40, 44, 48
sT0, sT1, sT2, sT3, sT4 = 52, 53, 54, 55, 56
sCNT, sI, sXO = 57, 58, 59
sMODD = 60
sRG, sCG, sHALF, sCG9 = 62, 63, 96, 97
sROT, sXCC, sE1 = 98, 99, 68
sST = 64
vL, vN, vG = 1, 2, 3
vONE, vONE3, vS = 4, 6, 8
vSEL, vR, vB, vS1 = 12, 16, 20, 22
vT = 24
vWQ, vW, vK, vV = 46, 64, 128, 192
vP2 = 224

nstamp = [0]
def stamp(i):
    if PROF: A(f"s_memrealtime {sr(sST, 2)}\ns_lshr_b32 s3, s{sPASS}, 16\ns_add_u32 m0, s3, {i}\ns_waitcnt lgkmcnt(0)\nv_writelane_b32 v9, s{sST}, m0")

def srd(r, lo, hi, nbytes):
    A(f"s_mov_b32 s{r}, s{lo}\ns_and_b32 s{r+1}, s{hi}, 0xffff\ns_mov_b32 s{r+2}, {nbytes}\ns_mov_b32 s{r+3}, 0x20000")

def check(regs, tmp, retry):
    regs = list(regs)
    if len(regs) == 1:
        A(f"v_cmp_eq_u32 vcc, -1, v{regs[0]}")
    else:
        if len(regs) % 2 == 0: A(f"v_max_u32 v{tmp}, v{regs[0]}, v{regs[1]}"); k = 2
        else: A(f"v_max3_u32 v{tmp}, v{regs[0]}, v{regs[1]}, v{regs[2]}"); k = 3
        while k < len(regs):
            A(f"v_max3_u32 v{tmp}, v{tmp}, v{regs[k]}, v{regs[k+1]}"); k += 2
        A(f"v_cmp_eq_u32 vcc, -1, v{tmp}")
    A(f"s_cbranch_vccnz {retry}")

def poll(loads, regs, tmp):
    top, retry = uid("poll"), uid("retry")
    A(f"s_mov_b32 s{sCNT}, 0\n{top}:")
    A(loads)
    A("s_waitcnt vmcnt(0)")
    check(regs, tmp, retry)
    T(f"{retry}:\ns_add_u32 s{sCNT}, s{sCNT}, 1\ns_cmp_lt_u32 s{sCNT}, {OPT['tmo']}\ns_cbranch_scc1 {top}\ns_branch L_end")

def recheck(load, regs, tmp):
    retry, top, back = uid("rc"), uid("rct"), uid("rcb")
    check(regs, tmp, retry)
    A(f"{back}:")
    regs = list(regs)
    T(f"{retry}:\ns_mov_b32 s{sCNT}, 0\n{top}:\n{load}\ns_waitcnt vmcnt(0)\nv_max_u32 v{tmp}, v{regs[0]}, v{regs[1]}\nv_max3_u32 v{tmp}, v{tmp}, v{regs[2]}, v{regs[3]}")
    T(f"v_cmp_eq_u32 vcc, -1, v{tmp}\ns_cbranch_vccz {back}\ns_add_u32 s{sCNT}, s{sCNT}, 1\ns_cmp_lt_u32 s{sCNT}, {OPT['tmo']}\ns_cbranch_scc1 {top}\ns_branch L_end")

def pub(stores, mask):
    slow, back = uid("slow"), uid("back")
    A(f"s_cmp_eq_u32 s{sMODE}, 0")
    if mask is not None: A(f"s_mov_b64 exec, {mask}")
    A(f"s_cbranch_scc1 {slow}")
    A(stores)
    A(f"{back}:")
    if mask is not None: A("s_mov_b64 exec, -1")
    T(f"{slow}:")
    for ln in stores.strip().split("\n"): T(ln.strip() + " sc1")
    T(f"s_branch {back}")

def mask64(lo, hi, reg):
    A(f"s_mov_b32 s{reg}, {lo:#x}\ns_mov_b32 s{reg+1}, {hi:#x}")
    return sr(reg, 2)

def dma(rsrc, voff, soff, ldsaddr_sreg):
    A(f"s_mov_b32 m0, s{ldsaddr_sreg}\ns_nop 0\nbuffer_load_dwordx4 v{voff}, {sr(rsrc,4)}, s{soff} offen {LDF} lds")

def rowred(op, regs):
    for p in ROWRED:
        for r in regs: A(f"{op}_dpp v{r}, v{r}, v{r} {p} {DPPM}")
        if len(regs) < 3 and p != ROWRED[-1]: A(f"s_nop {2 - len(regs)}")

def stats_finish(s1, s2, mu, rstd):
    rowred("v_add_f32", [s1, s2])
    A(f"v_mul_f32 v{mu}, {1/576:.9e}, v{s1}\nv_mul_f32 v{s2}, {1/576:.9e}, v{s2}")
    A(f"v_fma_f32 v{s2}, -v{mu}, v{mu}, v{s2}\nv_max_f32 v{s2}, 0, v{s2}\nv_add_f32 v{s2}, 0x3727c5ac, v{s2}\nv_rsq_f32 v{rstd}, v{s2}")

hdr = open("cdna_kernels/" + NAME + ".s.ref").read().split("; Override launch")[0]
out = [hdr.rstrip(), "; Override launch geometry by editing the next line (default: block=256,", "; grid=ceil(out_elems/256), lds=0). Harness parses it; keep it on one line.",
       f"; @launch grid=(256,1,1) block=(320,1,1) lds={LDS_BYTES}",
       '.amdgcn_target "amdgcn-amd-amdhsa--gfx950"', ".text", f".globl {NAME}_kernel", ".p2align 8", f".type {NAME}_kernel,@function", f"{NAME}_kernel:"]

A("s_cmp_ge_u32 s2, 256\ns_cbranch_scc1 L_end")
if PROF: A(f"s_memrealtime {sr(sST+2,2)}\ns_memtime s[70:71]\nv_mov_b32 v9, 0")
A("s_load_dwordx2 s[64+32:64+33], s[0:1], 0".replace("64+32", "100").replace("64+33", "101"))
A(f"s_load_dwordx4 s[{rK}:{rK+3}], s[0:1], 8\ns_load_dwordx4 s[{rWQ}:{rWQ+3}], s[0:1], 24\ns_load_dwordx4 s[{rXI}:{rXI+3}], s[0:1], 48\ns_load_dwordx4 s[{rOUT}:{rOUT+3}], s[0:1], 64\ns_load_dwordx4 s[{rDBG}:{rDBG+3}], s[0:1], 80")
A(f"""s_and_b32 s{sX}, s2, 7
s_lshr_b32 s{sJ}, s2, 3
v_lshrrev_b32 v{vG}, 6, v0
v_and_b32 v{vL}, 63, v0
v_readfirstlane_b32 s{sW}, v{vG}
v_and_b32 v{vN}, 15, v0
v_bfe_u32 v{vG}, v0, 4, 2
s_and_b32 s{sCG}, s{sJ}, 7
s_lshr_b32 s{sRG}, s{sJ}, 3
s_getreg_b32 s{sXCC}, hwreg(HW_REG_XCC_ID)
s_and_b32 s{sXCC}, s{sXCC}, 7
s_lshl_b32 s{sIB}, s{sX}, 16
s_add_u32 s{sIB}, s{sIB}, {IB0}
s_mov_b32 s{sPASS}, 0
s_mov_b32 s{sMODE}, 0
s_mov_b32 s{sCOPY}, 0
s_mov_b32 s{sI}, s{sIB}
s_cmp_ge_u32 s{sJ}, 18
s_cselect_b32 s{sROLE}, 1, 0
s_cmp_ge_u32 s{sJ}, 30
s_cselect_b32 s{sROLE}, 2, s{sROLE}""")
A(f"""s_cmp_ge_u32 s{sJ}, 9
s_cselect_b32 s{sHALF}, 1, 0
s_mul_i32 s{sT0}, s{sHALF}, 9
s_sub_u32 s{sCG9}, s{sJ}, s{sT0}
s_sub_u32 s{sT0}, s{sJ}, 18
s_and_b32 s{sT1}, s{sT0}, 3
s_lshr_b32 s{sT0}, s{sT0}, 2
s_and_b32 s{sT0}, s{sT0}, 3
s_cmp_eq_u32 s{sROLE}, 0
s_cselect_b32 s{sHALF}, s{sHALF}, s{sT1}
s_cselect_b32 s{sCG9}, s{sCG9}, s{sT0}
s_lshr_b32 s{sT0}, s{sJ}, 4
s_lshl_b32 s{sT1}, s{sX}, 1
s_add_u32 s{sT0}, s{sT0}, s{sT1}
s_lshl_b32 s{sT0}, s{sT0}, 23
s_and_b32 s{sT1}, s{sJ}, 15
s_lshl_b32 s{sT1}, s{sT1}, 16
s_add_u32 s{sT0}, s{sT0}, s{sT1}
s_add_u32 s{sT0}, s{sT0}, {28672*256}
s_waitcnt lgkmcnt(0)""")
A(f"s_add_u32 s{rV}, s14, s{sT0}\ns_addc_u32 s{rV+1}, s15, 0\ns_and_b32 s{rV+1}, s{rV+1}, 0xffff\ns_mov_b32 s{rV+2}, 65536\ns_mov_b32 s{rV+3}, 0x20000")
A(f"s_add_u32 s{rK}, s12, s{sT0}\ns_addc_u32 s{rK+1}, s13, 0\ns_and_b32 s{rK+1}, s{rK+1}, 0xffff\ns_mov_b32 s{rK+2}, 65536\ns_mov_b32 s{rK+3}, 0x20000")
srd(rWS, 50, 51, WSREC)
A(f"s_cmp_eq_u32 s{sROLE}, 0\ns_cselect_b32 s{rWA}, s22, s36\ns_cselect_b32 s{rWA+1}, s23, s37\ns_and_b32 s{rWA+1}, s{rWA+1}, 0xffff")
A(f"s_mov_b32 s{sT1}, {576*4608*2}\ns_cmp_eq_u32 s{sROLE}, 0\ns_cselect_b32 s{rWA+2}, {4096*576*2}, s{sT1}\ns_mov_b32 s{rWA+3}, 0x20000")
srd(rWQ, 20, 21, 576*4096*2)
srd(rW2, 44, 45, 4608*576*2)
srd(rB1, 38, 39, 4608*2)
srd(rXI, 100, 101, 1152)
srd(rOUT, 46, 47, 1152)
if PROF: A(f"v_writelane_b32 v9, s{sST+2}, 0")
A(f"s_cmp_eq_u32 s{sW}, 4\ns_cbranch_scc1 L_service")

t = vT
A(f"""s_mul_i32 s{sT0}, s{sRG}, 288
v_lshlrev_b32 v{t}, 4, v{vL}
v_add_u32 v{t}, s{sT0}, v{t}
s_cmp_eq_u32 s{sW}, 0
s_cselect_b32 s{sT1}, 18, 0
v_cmp_gt_u32 vcc, s{sT1}, v{vL}
v_mov_b32 v{t+1}, 0x10000
v_mov_b32 v{vONE}, 0x3f803f80
v_cndmask_b32 v{t}, v{t+1}, v{t}, vcc
buffer_load_dwordx4 {vr(vP2,4)}, v{t}, {sr(rXI,4)}, 0 offen""")
A(f"""s_lshl_b32 s{sT0}, s{sCG9}, 7
s_lshl_b32 s{sT1}, s{sW}, 5
s_add_u32 s{sT0}, s{sT0}, s{sT1}
v_lshl_add_u32 v{t+2}, v{vG}, 3, s{sT0}
buffer_load_dwordx2 {vr(vR+2,2)}, v{t+2}, {sr(rXI,4)}, 0 offen
s_mul_i32 s{sT0}, s{sX}, 1152
s_mul_i32 s{sT1}, s{sHALF}, 576
s_add_u32 s{sT0}, s{sT0}, s{sT1}
s_mul_i32 s{sT1}, s{sW}, 144
s_add_u32 s{sT0}, s{sT0}, s{sT1}
v_min_u32 v{t+3}, 35, v{vL}
v_lshl_add_u32 v{t+3}, v{t+3}, 2, s{sT0}
buffer_load_dword v{vB+1}, v{t+3}, {sr(rB1,4)}, 0 offen""")
def wdma_voff(dst, rowbytes, kind):
    if kind == "std":
        A(f"v_bfe_u32 v{dst}, v{vL}, 4, 1\ns_and_b32 s{sT0}, s{sW}, 1\ns_lshl_b32 s{sT0}, s{sT0}, 1")
    else:
        A(f"v_lshrrev_b32 v{dst}, 5, v{vL}\ns_and_b32 s{sT0}, s{sW}, 2")
    A(f"""v_or_b32 v{dst}, s{sT0}, v{dst}
v_lshlrev_b32 v{dst}, 1, v{dst}
v_xor_b32 v{dst}, v{dst}, v{vL}
v_and_b32 v{dst}, 7, v{dst}
v_lshlrev_b32 v{dst}, 4, v{dst}
v_lshrrev_b32 v{dst+1}, 3, v{vL}
s_mov_b32 s{sT0}, {rowbytes}
v_mad_u32_u24 v{dst}, v{dst+1}, s{sT0}, v{dst}""")
wdma_voff(t+4, 8192, "std")
A(f"""s_mul_i32 s{sT1}, s{sRG}, {144*8192}
s_lshl_b32 s{sT2}, s{sW}, 16
s_add_u32 s{sT1}, s{sT1}, s{sT2}
s_lshl_b32 s{sT2}, s{sX}, 10
s_add_u32 s{sT1}, s{sT1}, s{sT2}
s_lshl_b32 s{sT2}, s{sCG}, 7
s_add_u32 s{sT1}, s{sT1}, s{sT2}
s_lshl_b32 s{sT2}, s{sW}, 10
s_add_u32 s{sT2}, s{sT2}, {LWQ}
s_cmp_ge_u32 s{sW}, 2
s_cbranch_scc1 L_wq4
s_add_u32 s{sT3}, s{sT1}, {128*8192}
s_add_u32 s{sT4}, s{sT2}, {16*1024}""")
dma(rWQ, t+4, sT3, sT4)
A("L_wq4:")
for i in range(4):
    dma(rWQ, t+4, sT1, sT2)
    if i < 3: A(f"s_add_u32 s{sT1}, s{sT1}, {32*8192}\ns_add_u32 s{sT2}, s{sT2}, 4096")
A(f"""s_lshl_b32 s{sT0}, s{sW}, 2
v_add_u32 v{t+6}, s{sT0}, v{vG}
v_xor_b32 v{t+6}, v{t+6}, v{vN}
v_lshlrev_b32 v{t+6}, 4, v{t+6}
v_lshl_add_u32 v{t+6}, v{vG}, 8, v{t+6}
s_lshl_b32 s{sT0}, s{sW}, 10
v_add_u32 v{t+6}, s{sT0}, v{t+6}
s_add_u32 s{sT3}, s{sT0}, {LR}""")
if OPT["rot"]: A(f"s_lshl_b32 s{sROT}, s2, 13")
else: A(f"s_mov_b32 s{sROT}, 0")
for i in range(16):
    A(f"s_add_u32 s{sT1}, s{sROT}, {i*4096}\ns_and_b32 s{sT1}, s{sT1}, 0xffff\ns_add_u32 s{sT2}, s{sT1}, s{sT3}")
    dma(rK, t+6, sT1, sT2)
stamp(1)
A(f"v_mov_b32 v{vONE+1}, v{vONE}\ns_cmp_eq_u32 s{sW}, 0\ns_cselect_b32 s{sT0}, 0x3f803f80, 0\nv_mov_b32 v{vONE3}, s{sT0}\nv_mov_b32 v{vONE3+1}, s{sT0}")
mask64(0xffff0000, 0xffff0000, sMODD)
A(f"""s_and_b32 s{sT0}, s{sW}, 1
s_lshl_b32 s{sT0}, s{sT0}, 1
v_lshrrev_b32 v{t}, 3, v{vN}
v_add_u32 v{t}, s{sT0}, v{t}
v_and_b32 v{t+1}, 1, v{vN}
v_lshlrev_b32 v{t+1}, 4, v{t+1}
v_mov_b32 v{t+2}, 0x3d80
v_lshlrev_b32 v{t+1}, v{t+1}, v{t+2}
v_cmp_eq_u32 vcc, v{t}, v{vG}
v_bfe_u32 v{t+2}, v{vN}, 1, 2
s_nop 0
v_cndmask_b32 v{t+1}, 0, v{t+1}, vcc""")
for r in range(4):
    A(f"v_cmp_eq_u32 vcc, {r}, v{t+2}\ns_nop 1\nv_cndmask_b32 v{vSEL+r}, 0, v{t+1}, vcc")
def traddr_std(dst, base):
    A(f"""v_bfe_u32 v{dst}, v{vL}, 3, 2
v_xor_b32 v{dst}, s{sW}, v{dst}
v_lshlrev_b32 v{dst}, 5, v{dst}
v_and_b32 v{dst+1}, 3, v{vL}
v_lshl_add_u32 v{dst}, v{dst+1}, 3, v{dst}
v_bfe_u32 v{dst+1}, v{vL}, 2, 2
v_lshl_add_u32 v{dst}, v{dst+1}, 7, v{dst}
v_lshl_add_u32 v{dst}, v{vG}, 10, v{dst}
v_add_u32 v{dst}, {base}, v{dst}""")
def traddr_tail(dst, base):
    A(f"""v_bfe_u32 v{dst}, v{vL}, 3, 1
v_and_b32 v{dst+1}, 2, v{vG}
v_or_b32 v{dst}, v{dst}, v{dst+1}
v_xor_b32 v{dst}, s{sW}, v{dst}
v_lshlrev_b32 v{dst}, 5, v{dst}
v_and_b32 v{dst+1}, 3, v{vL}
v_lshl_add_u32 v{dst}, v{dst+1}, 3, v{dst}
v_lshrrev_b32 v{dst+1}, 2, v{vL}
v_lshl_add_u32 v{dst}, v{dst+1}, 7, v{dst}
v_add_u32 v{dst}, {base + 16384}, v{dst}""")
def tr_slice(dstreg, a_std, a_tail, off):
    for ks in range(4):
        for u in range(2): A(f"ds_read_b64_tr_b16 {vr(dstreg+4*ks+2*u,2)}, v{a_std} offset:{off+ks*4096+u*512}")
    A(f"ds_read_b64_tr_b16 {vr(dstreg+16,2)}, v{a_tail} offset:{off}")
traddr_std(t, LWQ); traddr_tail(t+2, LWQ)
A(f"s_mul_i32 s{sT0}, s{sW}, 1152\ns_add_u32 s{sT0}, s{sT0}, {LXS}\nv_lshl_add_u32 v{t+4}, v{vL}, 4, s{sT0}")
for r in range(4): A(f"v_mov_b32 v{vP2+4+r}, 0")
A("s_waitcnt vmcnt(16)")
A(f"ds_write_b128 v{t+4}, {vr(vP2,4)}\ns_mov_b64 exec, 0xff\nds_write_b128 v{t+4}, {vr(vP2+4,4)} offset:1024\ns_mov_b64 exec, -1")
A(f"""v_lshlrev_b32 v{vR}, 16, v{vR+2}
v_and_b32 v{vR+1}, 0xffff0000, v{vR+2}
v_lshlrev_b32 v{vR+2}, 16, v{vR+3}
v_and_b32 v{vR+3}, 0xffff0000, v{vR+3}""")
for r in range(4): A(f"v_mul_f32 v{vR+r}, 0x3b800000, v{vR+r}")
A(f"v_lshlrev_b32 v{vB}, 16, v{vB+1}\nv_and_b32 v{vB+1}, 0xffff0000, v{vB+1}")
A("s_waitcnt lgkmcnt(0)\ns_barrier")
stamp(2)
tr_slice(vWQ, t, t+2, 0)
A(f"v_mov_b32 v{vP2}, v{vONE}\nv_mov_b32 v{vP2+1}, v{vONE}\nv_mov_b32 v{vP2+2}, v{vONE}\nv_mov_b32 v{vP2+3}, v{vONE}")
A(f"v_mov_b32 v{vP2+8}, 0\nv_mov_b32 v{vP2+9}, 0\nv_mov_b32 v{vP2+10}, v{vONE}\nv_mov_b32 v{vP2+11}, v{vONE}")
A(f"""s_lshl_b32 s{sT0}, s{sCG}, 10
s_lshl_b32 s{sT1}, s{sW}, 8
s_add_u32 s{sT0}, s{sT0}, s{sT1}
s_lshl_b32 s{sT1}, s{sRG}, 2
s_add_u32 s{sT0}, s{sT0}, s{sT1}
s_add_u32 s{sT0}, s{sT0}, {SQo}
v_lshl_add_u32 v{t+5}, v{vN}, 4, s{sT0}
s_waitcnt lgkmcnt(0)""")
for ks in range(4): A(f"v_mfma_f32_16x16x32_bf16 {vr(vP2+4,4)}, {vr(vP2,4)}, {vr(vWQ+4*ks,4)}, {'0' if ks == 0 else vr(vP2+4,4)}")
A(f"v_mfma_f32_16x16x32_bf16 {vr(vP2+4,4)}, {vr(vP2+8,4)}, {vr(vWQ+14,4)}, {vr(vP2+4,4)}")
A(f"s_nop 7\ns_mov_b64 exec, 0xffff\nbuffer_store_dword v{vP2+4}, v{t+5}, {sr(rWS,4)}, s{sI} offen sc1\ns_mov_b64 exec, -1")

def x_gather_addrs(rg_s, a1, a2, aw):
    A(f"""s_mul_i32 s{sT0}, s{rg_s}, 288
s_lshl_b32 s{sT1}, s{sW}, 14
s_add_u32 s{sT0}, s{sT0}, s{sT1}
s_add_u32 s{sT0}, s{sT0}, s{sCOPY}
v_mul_u32_u24 v{a1}, 3641, v{vL}
v_lshrrev_b32 v{a1}, 16, v{a1}
v_mul_u32_u24 v{a2}, 18, v{a1}
v_sub_u32 v{a2}, v{vL}, v{a2}
v_lshlrev_b32 v{a1}, 11, v{a1}
v_lshl_add_u32 v{a1}, v{a2}, 4, v{a1}
v_add_u32 v{a1}, s{sT0}, v{a1}
s_add_u32 s{sT0}, s{sT0}, {3*2048 + 160}
v_and_b32 v{a2}, 7, v{vL}
v_lshl_add_u32 v{a2}, v{a2}, 4, s{sT0}
s_mul_i32 s{sT0}, s{sW}, 1152
s_add_u32 s{sT0}, s{sT0}, {LXS}
v_lshl_add_u32 v{aw}, v{vL}, 4, s{sT0}""")
def ln_read_addrs(ar, at, as1, as3, fa):
    A(f"""v_mov_b32 v{fa+16}, 0
v_mov_b32 v{fa+17}, 0
v_mul_u32_u24 v{ar}, 288, v{vN}
v_lshl_add_u32 v{at}, v{vG}, 3, v{ar}
v_add_u32 v{at}, {LXS + 256}, v{at}
v_lshl_add_u32 v{ar}, v{vG}, 4, v{ar}
v_add_u32 v{ar}, {LXS}, v{ar}
v_lshrrev_b32 v{as3}, 2, v{vL}
v_mul_u32_u24 v{as3}, 288, v{as3}
v_and_b32 v{as1}, 3, v{vL}
v_lshl_add_u32 v{as3}, v{as1}, 3, v{as3}
s_lshl_b32 s{sT0}, s{sW}, 5
s_add_u32 s{sT0}, s{sT0}, {LXS}
v_add_u32 v{as1}, s{sT0}, v{as3}
v_add_u32 v{as3}, {LXS + 256}, v{as3}""")
def hint_wait(off, tmp):
    if not OPT["hint"]: return
    A(f"v_min_u32 v{tmp}, 17, v{vL}\nv_lshlrev_b32 v{tmp}, 2, v{tmp}\nv_add_u32 v{tmp}, {off}, v{tmp}")
    poll(f"buffer_load_dword v{tmp+1}, v{tmp}, {sr(rWS,4)}, s{sXO} offen sc1", [tmp+1], tmp+2)
def x_gather(a1, a2, aw, g0, xoff_s, tmp):
    for r in range(4): A(f"v_mov_b32 v{g0+4+r}, 0")
    poll(f"buffer_load_dwordx4 {vr(g0,4)}, v{a1}, {sr(rWS,4)}, s{xoff_s} offen sc1\ns_mov_b64 exec, 0xff\nbuffer_load_dwordx4 {vr(g0+4,4)}, v{a2}, {sr(rWS,4)}, s{xoff_s} offen sc1\ns_mov_b64 exec, -1",
         range(g0, g0+8), tmp)
    A(f"ds_write_b128 v{aw}, {vr(g0,4)}\ns_mov_b64 exec, 0xff\nds_write_b128 v{aw}, {vr(g0+4,4)} offset:1024\ns_mov_b64 exec, -1\ns_waitcnt lgkmcnt(0)\ns_barrier")
def ln_gemv(nt, wreg, ar, at, as1, as3, fa, fs, acc, sacc, adst, astat, statmask_s):
    A(f"ds_read_b64_tr_b16 {vr(fs,2)}, v{as1}\nds_read_b64_tr_b16 {vr(fs+2,2)}, v{as1} offset:128\nds_read_b64_tr_b16 {vr(fs+4,2)}, v{as3}")
    for ks in range(4): A(f"ds_read_b128 {vr(fa+4*ks,4)}, v{ar} offset:{ks*64}")
    A(f"ds_read_b64 {vr(fa+18,2)}, v{at}")
    A("s_waitcnt lgkmcnt(7)")
    A(f"v_mfma_f32_16x16x16_bf16 {vr(sacc,4)}, {vr(vONE,2)}, {vr(fs,2)}, 0\ns_waitcnt lgkmcnt(6)")
    A(f"v_mfma_f32_16x16x16_bf16 {vr(sacc+4,4)}, {vr(vONE,2)}, {vr(fs+2,2)}, 0\ns_waitcnt lgkmcnt(5)")
    A(f"v_mfma_f32_16x16x16_bf16 {vr(sacc+8,4)}, {vr(vONE3,2)}, {vr(fs+4,2)}, 0")
    seq = []
    for ks in range(5):
        for u in range(nt):
            c = "0" if ks == 0 else vr(acc+4*u, 4)
            if ks < 4: m = f"v_mfma_f32_16x16x32_bf16 {vr(acc+4*u,4)}, {vr(fa+4*ks,4)}, {vr(wreg+18*u+4*ks,4)}, {c}"
            else: m = f"v_mfma_f32_16x16x32_bf16 {vr(acc+4*u,4)}, {vr(fa+16,4)}, {vr(wreg+18*u+14,4)}, {c}"
            seq.append((f"s_waitcnt lgkmcnt({4-ks})\n" if u == 0 else "") + m)
    for m in seq: A(m)
    s1, s2 = fs, fs + 1
    if nt == 1: A("s_nop 1")
    A(f"""v_add_f32 v{s1}, v{sacc}, v{sacc+4}
v_mul_f32 v{s2}, v{sacc}, v{sacc}
v_add_f32 v{s1}, v{s1}, v{sacc+8}
v_fmac_f32 v{s2}, v{sacc+4}, v{sacc+4}
v_fmac_f32 v{s2}, v{sacc+8}, v{sacc+8}
s_nop 1""")
    rowred("v_add_f32", [s1, s2])
    for u in range(nt):
        a = acc + 4*u
        A(f"v_add_f32 v{a}, v{a}, v{a+1}\nv_add_f32 v{a+2}, v{a+2}, v{a+3}")
    for u in range(nt):
        a = acc + 4*u
        A(f"v_add_f32 v{a}, v{a}, v{a+2}")
    if nt == 1:
        a = acc
        A(f"v_mov_b32 v{a+1}, v{a}\ns_nop 1\nv_permlane32_swap_b32 v{a}, v{a+1}\nv_add_f32 v{a}, v{a}, v{a+1}\nv_mov_b32 v{a+1}, v{a}\ns_nop 1\nv_permlane16_swap_b32 v{a}, v{a+1}\nv_add_f32 v{a}, v{a}, v{a+1}")
        m = "0xffff"
    else:
        a, b, c = acc, acc + 4, acc + 8
        A(f"v_mov_b32 v{c+1}, v{c}\ns_nop 0\nv_permlane32_swap_b32 v{a}, v{b}\nv_permlane32_swap_b32 v{c}, v{c+1}\nv_add_f32 v{a}, v{a}, v{b}\nv_add_f32 v{c}, v{c}, v{c+1}\ns_nop 1\nv_permlane16_swap_b32 v{a}, v{c}\nv_add_f32 v{a}, v{a}, v{c}")
        m = mask64(0xffffffff, 0x0000ffff, sT2)
    pub(f"buffer_store_dwordx2 {vr(s1,2)}, v{astat}, {sr(rWS,4)}, s{sI} offen", sr(statmask_s, 2))
    pub(f"buffer_store_dword v{acc}, v{adst}, {sr(rWS,4)}, s{sI} offen", m)

qa1, qa2, qaw, qar, qat, qas1, qas3, qadst, qastat = t, t+1, t+2, t+3, t+4, t+5+1, t+7, t+8, t+9
def q_out_addrs():
    A(f"""s_lshl_b32 s{sT0}, s{sCG}, 10
s_lshl_b32 s{sT1}, s{sW}, 8
s_add_u32 s{sT0}, s{sT0}, s{sT1}
s_lshl_b32 s{sT1}, s{sRG}, 2
s_add_u32 s{sT0}, s{sT0}, s{sT1}
v_lshl_add_u32 v{qadst}, v{vN}, 4, s{sT0}
s_lshl_b32 s{sT0}, s{sRG}, 5
s_lshl_b32 s{sT1}, s{sW}, 3
s_add_u32 s{sT0}, s{sT0}, s{sT1}
s_add_u32 s{sT0}, s{sT0}, {QSo}
v_mov_b32 v{qastat}, s{sT0}
s_cmp_eq_u32 s{sCG}, 0
s_cselect_b64 s[100:101], 1, 0""")
ln_read_addrs(qar, qat, qas1, qas3, vW); q_out_addrs()
A("s_branch L_q_reads")

A("L_q:")
x_gather_addrs(sRG, qa1, qa2, qaw); ln_read_addrs(qar, qat, qas1, qas3, vW); q_out_addrs()
A(f"s_mov_b32 s{sXO}, s{sI}")
hint_wait(H5o, t+10)
stamp(12)
A(f"s_mov_b32 s{sXO}, {X2O}\ns_mov_b32 s{sPASS}, {PS}\ns_add_u32 s{sI}, s{sIB}, {PS}")
x_gather(qa1, qa2, qaw, vP2, sXO, t+10)
stamp(13)
A("L_q_reads:")
ln_gemv(1, vWQ, qar, qat, qas1, qas3, vW, vW+20, vW+28, vW+32, qadst, qastat, 100)

aq1, aq2, aqw, aqr, apw, amw, apr, amr, avt0, avt1, aop, aml, axr = [t + k for k in range(13)]
gq, gs = vW + 40, vW + 44
A(f"""s_lshr_b32 s{sT0}, s{sJ}, 4
s_lshl_b32 s{sT0}, s{sT0}, 12
v_lshl_add_u32 v{aq1}, v0, 4, s{sT0}
v_lshlrev_b32 v{aq2}, 3, v{vN}
v_add_u32 v{aq2}, {QSo}, v{aq2}
v_lshlrev_b32 v{aqw}, 1, v0
v_add_u32 v{aqw}, {LQ}, v{aqw}
v_lshrrev_b32 v{aqr}, 3, v{vN}
v_lshlrev_b32 v{apr}, 9, v{aqr}
v_lshlrev_b32 v{aqr}, 8, v{aqr}
v_lshl_add_u32 v{aqr}, v{vG}, 4, v{aqr}
v_add_u32 v{aqr}, {LQ}, v{aqr}
v_lshl_add_u32 v{apr}, v{vG}, 4, v{apr}
v_add_u32 v{apr}, {LP}, v{apr}
v_lshrrev_b32 v{amr}, 5, v{vL}
v_lshlrev_b32 v{apw}, 9, v{amr}
v_and_b32 v{amw}, 31, v{vL}
v_lshl_add_u32 v{apw}, v{amw}, 2, v{apw}
s_lshl_b32 s{sT0}, s{sW}, 7
s_add_u32 s{sT0}, s{sT0}, {LP}
v_add_u32 v{apw}, s{sT0}, v{apw}
v_lshlrev_b32 v{amr}, 4, v{amr}
s_lshl_b32 s{sT0}, s{sW}, 2
s_add_u32 s{sT0}, s{sT0}, {LM}
v_add_u32 v{amw}, s{sT0}, v{amr}
v_and_b32 v{avt0}, 3, v{vL}
v_lshl_add_u32 v{amr}, v{avt0}, 2, v{amr}
v_add_u32 v{amr}, {LM}, v{amr}""")
A(f"""v_bfe_u32 v{avt1}, v{vL}, 3, 2
v_bfe_u32 v{aop}, v{vL}, 2, 1
v_lshl_or_b32 v{avt1}, v{aop}, 2, v{avt1}
s_lshl_b32 s{sT0}, s{sW}, 1
v_xor_b32 v{avt1}, s{sT0}, v{avt1}
v_lshlrev_b32 v{avt1}, 5, v{avt1}
v_lshl_add_u32 v{avt0}, v{avt0}, 3, v{avt1}
v_lshl_add_u32 v{avt0}, v{aop}, 12, v{avt0}
v_bfe_u32 v{aop}, v{vL}, 3, 1
v_lshl_add_u32 v{avt0}, v{aop}, 8, v{avt0}
v_lshl_add_u32 v{avt0}, v{vG}, 10, v{avt0}
v_xor_b32 v{avt1}, 32, v{avt0}""")
A(f"""s_lshl_b32 s{sT0}, s{sJ}, 9
s_lshl_b32 s{sT1}, s{sW}, 6
s_add_u32 s{sT0}, s{sT0}, s{sT1}
s_add_u32 s{sT0}, s{sT0}, {OPo}
v_lshrrev_b32 v{aml}, 5, v{vL}
v_lshlrev_b32 v{aop}, 8, v{aml}
v_lshl_add_u32 v{aop}, v{vN}, 2, v{aop}
v_add_u32 v{aop}, s{sT0}, v{aop}
s_lshl_b32 s{sT0}, s{sJ}, 6
s_lshl_b32 s{sT1}, s{sW}, 2
s_add_u32 s{sT0}, s{sT0}, s{sT1}
s_add_u32 s{sT0}, s{sT0}, {MLo}
v_lshl_add_u32 v{aml}, v{aml}, 4, s{sT0}""")
qloads = f"buffer_load_dwordx4 {vr(gq,4)}, v{aq1}, {sr(rWS,4)}, s{sI} offen sc1\nbuffer_load_dwordx2 {vr(gs,2)}, v{aq2}, {sr(rWS,4)}, s{sI} offen sc1"
A(f"s_cmp_lg_u32 s{sPASS}, 0\ns_cbranch_scc1 L_att_poll")
NV1 = OPT["nv1"]
vo = t + 13
A(f"""s_and_b32 s{sT0}, s{sW}, 1
s_lshl_b32 s{sT0}, s{sT0}, 1
v_and_b32 v{vo}, 1, v{vG}
v_or_b32 v{vo}, s{sT0}, v{vo}
v_lshlrev_b32 v{vo}, 1, v{vo}
v_xor_b32 v{vo}, v{vo}, v{vN}
v_lshlrev_b32 v{vo}, 4, v{vo}
v_lshl_add_u32 v{vo}, v{vG}, 8, v{vo}
s_lshl_b32 s{sT3}, s{sW}, 10
v_add_u32 v{vo}, s{sT3}, v{vo}
v_xor_b32 v{vo+1}, 128, v{vo}""")
def vdma(i):
    A(f"s_add_u32 s{sT1}, s{sROT}, {(i & 7)*4096}\ns_and_b32 s{sT1}, s{sT1}, 0x7fff")
    if i >= 8: A(f"s_add_u32 s{sT1}, s{sT1}, 0x8000")
    A(f"s_add_u32 s{sT2}, s{sT1}, s{sT3}")
    dma(rV, vo + (i & 1), sT1, sT2)
for i in range(NV1): vdma(i)
ka = vW
A(f"s_lshl_b32 s{sT0}, s{sW}, 14\ns_add_u32 s{sT0}, s{sT0}, {LR}\nv_lshl_add_u32 v{ka+4}, v{vN}, 8, s{sT0}\nv_xor_b32 v{ka+5}, v{vG}, v{vN}")
for ks in range(4): A(f"v_xor_b32 v{ka+ks}, {ks << 2}, v{ka+5}\nv_lshl_add_u32 v{ka+ks}, v{ka+ks}, 4, v{ka+4}")
A(f"v_mov_b32 v{ka+4}, {LMODE}\nv_add_u32 v{ka+6}, {SQo}, v{aq1}")
A(f"s_waitcnt vmcnt({NV1 + 2})\ns_barrier")
stamp(3)
A(f"ds_read_b64 {vr(ka+8,2)}, v{ka+4}")
for Tt in range(4):
    for ks in range(4): A(f"ds_read_b128 {vr(vK+16*Tt+4*ks,4)}, v{ka+ks} offset:{Tt*4096}")
    if Tt == 1: A(f"s_waitcnt lgkmcnt(8)\nv_readfirstlane_b32 s{sMODE}, v{ka+8}\nv_readfirstlane_b32 s{sE1}, v{ka+9}")
gsq = vW + 36
q0loads = qloads + f"\nbuffer_load_dwordx4 {vr(gsq,4)}, v{ka+6}, {sr(rWS,4)}, s{sI} offen sc1"
A(q0loads)
for i in range(NV1, 16): vdma(i)
A(f"s_waitcnt vmcnt({16 - NV1})")
check(list(range(gsq, gsq+4)) + list(range(gq, gq+6)), ka+7, "L_q0_retry")
A("L_q0_ok:")
A(f"v_add_f32 v{gsq}, v{gsq}, v{gsq+1}\nv_add_f32 v{gsq+2}, v{gsq+2}, v{gsq+3}\nv_add_f32 v{vS}, v{gsq}, v{gsq+2}\ns_branch L_att_ok")
T(f"L_q0_retry:\ns_mov_b32 s{sCNT}, 0\nL_q0_top:\n{q0loads}\ns_waitcnt vmcnt(0)")
T(f"v_max_u32 v{ka+7}, v{gsq}, v{gsq+1}\nv_max3_u32 v{ka+7}, v{ka+7}, v{gsq+2}, v{gsq+3}")
for k in range(3): T(f"v_max3_u32 v{ka+7}, v{ka+7}, v{gq+2*k}, v{gq+2*k+1}")
T(f"v_cmp_eq_u32 vcc, -1, v{ka+7}\ns_cbranch_vccz L_q0_ok\ns_add_u32 s{sCNT}, s{sCNT}, 1\ns_cmp_lt_u32 s{sCNT}, {OPT['tmo']}\ns_cbranch_scc1 L_q0_top\ns_branch L_end")
A("L_att_poll:")
def res_addr(dst, tmp):
    A(f"""v_lshrrev_b32 v{dst}, 2, v{vN}
v_lshlrev_b32 v{dst}, 14, v{dst}
v_and_b32 v{tmp}, 3, v{vN}
v_lshl_add_u32 v{dst}, v{tmp}, 11, v{dst}
v_lshl_add_u32 v{dst}, v{vG}, 4, v{dst}
s_lshl_b32 s{sT0}, s{sCG9}, 7
s_lshr_b32 s{sT1}, s{sW}, 1
s_lshl_b32 s{sT1}, s{sT1}, 6
s_add_u32 s{sT0}, s{sT0}, s{sT1}
s_add_u32 s{sT0}, s{sT0}, s{sCOPY}
v_add_u32 v{dst}, s{sT0}, v{dst}""")
res_addr(axr, t+13)
poll(qloads, range(gq, gq+6), t+13)
gres = t + 16
A(f"buffer_load_dwordx4 {vr(gres,4)}, v{axr}, {sr(rWS,4)}, s{sXO} offen sc1")
A("L_att_ok:")
stamp(4)
mu, cexp = t + 14, t + 15
A(f"v_add_f32 v{gq}, v{gq}, v{gq+1}\nv_add_f32 v{gq+2}, v{gq+2}, v{gq+3}")
rowred("v_add_f32", [gs, gs+1])
A(f"v_add_f32 v{gq}, v{gq}, v{gq+2}\nv_mul_f32 v{mu}, {1/576:.9e}, v{gs}\nv_mul_f32 v{gs+1}, {1/576:.9e}, v{gs+1}")
A(f"v_fma_f32 v{gq}, -v{mu}, v{vS}, v{gq}\nv_fma_f32 v{gs+1}, -v{mu}, v{mu}, v{gs+1}\nv_cvt_pk_bf16_f32 v{gq}, v{gq}, v{gq}\nv_max_f32 v{gs+1}, 0, v{gs+1}")
A(f"ds_write_b16 v{aqw}, v{gq}\nv_add_f32 v{gs+1}, 0x3727c5ac, v{gs+1}\nv_rsq_f32 v{cexp}, v{gs+1}")
A("s_waitcnt lgkmcnt(0)\ns_barrier")
fq, D = vW, vW + 32
for ks in range(4): A(f"ds_read_b128 {vr(fq+4*ks,4)}, v{aqr} offset:{ks*64}")
A(f"v_mul_f32 v{cexp}, {128**-0.5*math.log2(math.e):.9e}, v{cexp}")
def vtr(ks, tau, u): return f"ds_read_b64_tr_b16 {vr(vV+8*ks+4*tau+2*u,2)}, v{avt0+tau} offset:{ks*8192+u*512}"
vq = [vtr(ks, tau, u) for ks in range(4) for tau in range(2) for u in range(2)]
for Tt in range(4):
    for ks in range(4):
        if Tt == 0: A(f"s_waitcnt lgkmcnt({3-ks})")
        A(f"v_mfma_f32_16x16x32_bf16 {vr(D+4*Tt,4)}, {vr(fq+4*ks,4)}, {vr(vK+16*Tt+4*ks,4)}, {'0' if ks == 0 else vr(D+4*Tt,4)}")
        if Tt in (1, 2): A(vq.pop(0)); A(vq.pop(0))
sa, sb, um = t + 20, t + 21, t + 13
A(f"s_nop 1\nv_cndmask_b32 v{sa}, v{D}, v{D+8}, {sr(sMODD,2)}\ns_nop 4\nv_cndmask_b32 v{sb}, v{D+4}, v{D+12}, {sr(sMODD,2)}")
A(f"v_max_f32 v{um}, v{sa}, v{sb}\nv_mov_b32 v{mu}, v{um}\ns_nop 1\nv_permlane16_swap_b32 v{um}, v{mu}\nv_max_f32 v{um}, v{um}, v{mu}\ns_nop 1")
rowred("v_max_f32", [um])
A(f"v_sub_f32 v{sa}, v{sa}, v{um}\nv_sub_f32 v{sb}, v{sb}, v{um}\nv_mul_f32 v{sa}, v{sa}, v{cexp}\nv_mul_f32 v{sb}, v{sb}, v{cexp}")
A(f"v_exp_f32 v{sa}, v{sa}\nv_exp_f32 v{sb}, v{sb}\nv_mul_f32 v{um}, v{um}, v{cexp}\nv_cvt_pk_bf16_f32 v{mu}, v{sa}, v{sb}")
A(f"ds_write_b32 v{amw}, v{um}\nds_write_b32 v{apw}, v{mu}")
A(f"v_lshlrev_b32 v{sa}, 16, v{mu}\nv_and_b32 v{sb}, 0xffff0000, v{mu}\nv_add_f32 v{sa}, v{sa}, v{sb}")
A("s_waitcnt vmcnt(0) lgkmcnt(0)\ns_barrier")
stamp(5)
fp, acc = vW, vW + 32
fm = sb
A(f"ds_read_b32 v{fm}, v{amr}")
for ks in range(8): A(f"ds_read_b128 {vr(fp+4*ks,4)}, v{apr} offset:{ks*64}")
vq = [vtr(ks, tau, u) for ks in range(4, 8) for tau in range(2) for u in range(2)]
big = mu
fb = t
side = [f"v_mov_b32 v{cexp}, v{sa}", f"v_max_f32_dpp v{big}, v{fm}, v{fm} {ROWRED[0]} {DPPM}", "s_nop 0",
        f"v_permlane16_swap_b32 v{sa}, v{cexp}", f"v_max_f32_dpp v{big}, v{big}, v{big} {ROWRED[1]} {DPPM}", f"v_add_f32 v{sa}, v{sa}, v{cexp}",
        f"v_sub_f32 v{fm}, v{fm}, v{big}", f"v_sub_f32 v{um}, v{um}, v{big}",
        f"v_add_f32_dpp v{sa}, v{sa}, v{sa} {ROWRED[0]} {DPPM}", f"v_exp_f32 v{fm}, v{fm}", f"v_exp_f32 v{um}, v{um}",
        f"v_add_f32_dpp v{sa}, v{sa}, v{sa} {ROWRED[1]} {DPPM}", f"v_mov_b32_dpp v{fb} , v{fm} row_newbcast:0 {DPPM}", f"v_mov_b32_dpp v{fb+1}, v{fm} row_newbcast:1 {DPPM}",
        f"v_add_f32_dpp v{sa}, v{sa}, v{sa} {ROWRED[2]} {DPPM}", f"v_mov_b32_dpp v{fb+2}, v{fm} row_newbcast:2 {DPPM}", f"v_mov_b32_dpp v{fb+3}, v{fm} row_newbcast:3 {DPPM}",
        f"v_add_f32_dpp v{sa}, v{sa}, v{sa} {ROWRED[3]} {DPPM}", f"v_mul_f32 v{sa}, v{sa}, v{um}"]
issued_after = 0
for ks in range(8):
    if ks < 4: A(f"s_waitcnt lgkmcnt({min(15, 7 - ks + issued_after)})")
    else: A(f"s_waitcnt lgkmcnt({(7 - ks) * 4})")
    for tau in range(2):
        a = acc + 8*(ks >> 1) + 4*tau
        A(f"v_mfma_f32_16x16x32_bf16 {vr(a,4)}, {vr(fp+4*ks,4)}, {vr(vV+8*ks+4*tau,4)}, {'0' if ks % 2 == 0 else vr(a,4)}")
        if vq: A(vq.pop(0)); A(vq.pop(0)); issued_after += 2
        else:
            for _ in range(3):
                if side: A(side.pop(0))
assert not side
o0, o1 = cexp, um
for wv in range(4):
    if wv == 3: A("s_nop 3")
    for tau, o in ((0, o0), (1, o1)):
        op = "v_mul_f32" if wv == 0 else "v_fmac_f32"
        A(f"{op} v{o}, v{fb+wv}, v{acc+8*wv+4*tau}")
A(f"v_cvt_pk_bf16_f32 v{o0}, v{o0}, v{o1}")
m1 = mask64(0x0000ffff, 0x0000ffff, sT2)
pub(f"buffer_store_dword v{o0}, v{aop}, {sr(rWS,4)}, s{sI} offen", m1)
m2 = mask64(1, 1, sT2)
pub(f"buffer_store_dword v{sa}, v{aml}, {sr(rWS,4)}, s{sI} offen", m2)
A(f"v_lshrrev_b32 v{o1}, 5, v{vL}\nv_mul_u32_u24 v{o1}, 12, v{o1}\nv_sub_u32 v{aml}, v{aml}, v{o1}\ns_cmp_eq_u32 s{sW}, 0\ns_cselect_b64 {sr(sT2,2)}, {sr(sT2,2)}, 0")
pub(f"buffer_store_dword v{big}, v{aml}, {sr(rWS,4)}, s{sI} offen offset:32", sr(sT2, 2))
stamp(6)
gv, gva = vP2 + 24, t + 20
gload = f"buffer_load_dwordx4 {vr(gv,4)}, v{gva}, {sr(rWS,4)}, 0 offen sc1"
A(f"s_cmp_lg_u32 s{sPASS}, 0\ns_cbranch_scc1 L_nog\nv_lshlrev_b32 v{gva}, 4, v{vL}\nv_add_u32 v{gva}, {VOT}, v{gva}\n{gload}\nL_nog:")
def gcheck():
    retry, back = uid("gr"), uid("gb")
    a, b = gva + 1, vP2 + 28
    A(f"s_mov_b32 s{sCNT}, 0\n{back}:")
    for r in range(4): A(f"v_xor_b32 v{b+r}, s{sE1}, v{gv+r}")
    A(f"v_or_b32 v{a}, v{b}, v{b+1}\nv_or3_b32 v{a}, v{a}, v{b+2}, v{b+3}\nv_cmp_lt_u32 vcc, 15, v{a}\ns_cbranch_vccnz {retry}")
    T(f"{retry}:\ns_add_u32 s{sCNT}, s{sCNT}, 1\ns_cmp_ge_u32 s{sCNT}, {OPT['tmo']}\ns_cbranch_scc1 L_end\n{gload}\ns_waitcnt vmcnt(0)\ns_branch {back}")
    if OPT["copies"] == 2:
        A(f"s_mov_b32 s{sT0}, 0\ns_mov_b32 s{sT1}, 0\ns_or_b32 s{sT4}, s{sXCC}, 8")
        for r in range(4):
            A(f"v_cmp_eq_u32 vcc, s{sXCC}, v{b+r}\ns_bcnt1_i32_b64 s{sT2}, vcc\ns_add_u32 s{sT0}, s{sT0}, s{sT2}")
            A(f"v_cmp_eq_u32 vcc, s{sT4}, v{b+r}\ns_bcnt1_i32_b64 s{sT2}, vcc\ns_add_u32 s{sT1}, s{sT1}, s{sT2}")
        A(f"s_cmp_gt_u32 s{sT1}, s{sT0}\ns_cselect_b32 s{sCOPY}, 0x2000, 0")
A(f"s_cmp_eq_u32 s{sROLE}, 1\ns_cbranch_scc1 L_roleB\ns_cmp_eq_u32 s{sROLE}, 2\ns_cbranch_scc1 L_roleF")

A(f"s_cmp_lg_u32 s{sPASS}, 0\ns_cbranch_scc1 L_wo_res")
wdma_voff(t, 1152, "wo")
A(f"""s_lshl_b32 s{sT1}, s{sX}, 1
s_add_u32 s{sT1}, s{sT1}, s{sHALF}
s_lshl_b32 s{sT1}, s{sT1}, 5
s_add_u32 s{sT1}, s{sT1}, s{sW}
s_mul_i32 s{sT1}, s{sT1}, {8*1152}
s_lshl_b32 s{sT2}, s{sCG9}, 7
s_add_u32 s{sT1}, s{sT1}, s{sT2}
s_lshl_b32 s{sT2}, s{sW}, 10
s_add_u32 s{sT2}, s{sT2}, {LR}""")
for i in range(8):
    dma(rWA, t, sT1, sT2)
    if i < 7: A(f"s_add_u32 s{sT1}, s{sT1}, {32*1152}\ns_add_u32 s{sT2}, s{sT2}, 4096")
A("s_waitcnt vmcnt(0)")
gcheck()
A(f"s_or_b32 s{sT0}, s2, s{sW}\ns_cmp_eq_u32 s{sT0}, 0\ns_cselect_b64 exec, 1, 0\nv_mov_b32 v{gva}, {EPO}\nv_mov_b32 v{gva+1}, s{sE1}\nbuffer_store_dword v{gva+1}, v{gva}, {sr(rWS,4)}, 0 offen sc1\ns_mov_b64 exec, -1")
A("s_barrier\ns_branch L_wo_go")
A("L_wo_res:")
recheck(f"buffer_load_dwordx4 {vr(gres,4)}, v{axr}, {sr(rWS,4)}, s{sXO} offen sc1", range(gres, gres+4), t)
A(f"v_mfma_f32_16x16x32_bf16 {vr(vR,4)}, {vr(vSEL,4)}, {vr(gres,4)}, 0")
A("L_wo_go:")
wa = t
A(f"""v_bfe_u32 v{wa}, v{vL}, 4, 1
v_bfe_u32 v{wa+1}, v{vL}, 2, 1
v_lshl_or_b32 v{wa}, v{wa+1}, 1, v{wa}
v_xor_b32 v{wa}, s{sW}, v{wa}
v_lshlrev_b32 v{wa}, 5, v{wa}
v_lshl_add_u32 v{wa}, v{wa+1}, 11, v{wa}
v_and_b32 v{wa+1}, 3, v{vL}
v_lshl_add_u32 v{wa}, v{wa+1}, 3, v{wa}
v_bfe_u32 v{wa+1}, v{vL}, 3, 1
v_lshl_add_u32 v{wa}, v{wa+1}, 7, v{wa}
v_lshl_add_u32 v{wa}, v{vG}, 9, v{wa}
v_add_u32 v{wa}, {LR}, v{wa}""")
for kk in range(8):
    for u in range(2): A(f"ds_read_b64_tr_b16 {vr(vW+4*kk+2*u,2)}, v{wa} offset:{kk*4096+u*256}")
go1, gml, gw, gr, gx, gh = t+1, t+2, t+3, t+4, t+5, t+6
A(f"""s_lshl_b32 s{sT0}, s{sHALF}, 13
s_lshl_b32 s{sT1}, s{sW}, 11
s_add_u32 s{sT0}, s{sT0}, s{sT1}
s_add_u32 s{sT0}, s{sT0}, {OPo}
v_lshl_add_u32 v{go1}, v{vL}, 4, s{sT0}
s_lshl_b32 s{sT0}, s{sHALF}, 10
s_add_u32 s{sT0}, s{sT0}, {MLo}
v_lshl_add_u32 v{gml}, v{vN}, 6, s{sT0}
s_mul_i32 s{sT0}, s{sW}, {4*544}
s_add_u32 s{sT0}, s{sT0}, {LOPS}
v_lshrrev_b32 v{gw}, 5, v{vL}
v_mul_u32_u24 v{gw}, 544, v{gw}
v_and_b32 v{gr}, 31, v{vL}
v_lshl_add_u32 v{gw}, v{gr}, 4, v{gw}
v_add_u32 v{gw}, s{sT0}, v{gw}
v_mul_u32_u24 v{gr}, 544, v{vN}
v_lshl_add_u32 v{gr}, v{vG}, 4, v{gr}
v_add_u32 v{gr}, {LOPS}, v{gr}""")
def x_store_addr(dst):
    A(f"""s_lshl_b32 s{sT0}, s{sX}, 1
s_add_u32 s{sT0}, s{sT0}, s{sHALF}
s_lshr_b32 s{sT1}, s{sT0}, 2
s_lshl_b32 s{sT1}, s{sT1}, 14
s_and_b32 s{sT0}, s{sT0}, 3
s_lshl_b32 s{sT0}, s{sT0}, 11
s_add_u32 s{sT0}, s{sT0}, s{sT1}
s_lshl_b32 s{sT1}, s{sCG9}, 7
s_add_u32 s{sT0}, s{sT0}, s{sT1}
s_lshl_b32 s{sT1}, s{sW}, 5
s_add_u32 s{sT0}, s{sT0}, s{sT1}
v_lshl_add_u32 v{dst}, v{vG}, 3, s{sT0}
v_lshl_add_u32 v{dst}, v{vN}, 13, v{dst}""")
def hint_addr(dst, off):
    A(f"s_lshl_b32 s{sT0}, s{sJ}, 2\ns_add_u32 s{sT0}, s{sT0}, {off}\nv_mov_b32 v{dst}, s{sT0}\ns_cmp_eq_u32 s{sW}, 0\ns_cselect_b64 s[100:101], 1, 0")
def hint_send(addr):
    if OPT["hint"]: pub(f"buffer_store_dword v{vL}, v{addr}, {sr(rWS,4)}, s{sI} offen", "s[100:101]")
XM = (0x00030003 if OPT["copies"] == 2 else 0x00010001)
def x_publish(src, addr, xoff):
    A(f"v_cvt_pk_bf16_f32 v{src}, v{src}, v{src+1}\nv_cvt_pk_bf16_f32 v{src+1}, v{src+2}, v{src+3}")
    A(f"s_add_u32 s{sT0}, s{sPASS}, {xoff}\ns_mov_b32 exec_lo, {XM:#x}\ns_mov_b32 exec_hi, {XM:#x}\nbuffer_store_dwordx2 {vr(src,2)}, v{addr}, {sr(rWS,4)}, s{sT0} offen sc1\ns_mov_b64 exec, -1")
x_store_addr(gx); hint_addr(gh, H3o)
ga, gl0, gl1, gm = vP2, vP2 + 8, vP2 + 12, vP2 + 16
poll(f"""buffer_load_dwordx4 {vr(ga,4)}, v{go1}, {sr(rWS,4)}, s{sI} offen sc1
buffer_load_dwordx4 {vr(ga+4,4)}, v{go1}, {sr(rWS,4)}, s{sI} offen offset:1024 sc1
buffer_load_dwordx4 {vr(gl0,4)}, v{gml}, {sr(rWS,4)}, s{sI} offen sc1
buffer_load_dwordx4 {vr(gl1,4)}, v{gml}, {sr(rWS,4)}, s{sI} offen offset:16 sc1
buffer_load_dwordx2 {vr(gm,2)}, v{gml}, {sr(rWS,4)}, s{sI} offen offset:32 sc1""", range(ga, ga+18), t+7)
stamp(7)
A(f"ds_write_b128 v{gw}, {vr(ga,4)}\nds_write_b128 v{gw}, {vr(ga+4,4)} offset:{2*544}")
M0_, M1_ = t+7, t+8
A(f"v_mov_b32 v{M0_}, v{gm}\nv_mov_b32 v{M1_}, v{gm+1}")
A(f"v_add_f32 v{gl0}, v{gl0}, v{gl0+1}\nv_add_f32 v{gl1}, v{gl1}, v{gl1+1}")
A("s_waitcnt lgkmcnt(0)\ns_barrier")
fo, wacc = vW + 32, vP2 + 20
for kk in range(8): A(f"ds_read_b128 {vr(fo+4*kk,4)}, v{gr} offset:{kk*64}")
hint_send(gh)
rowred("v_max_f32", [M0_, M1_])
A(f"v_add_f32 v{gl0+2}, v{gl0+2}, v{gl0+3}\nv_add_f32 v{gl1+2}, v{gl1+2}, v{gl1+3}")
A(f"v_sub_f32 v{gm}, v{gm}, v{M0_}\nv_sub_f32 v{gm+1}, v{gm+1}, v{M1_}\nv_exp_f32 v{gm}, v{gm}\nv_exp_f32 v{gm+1}, v{gm+1}")
side = [f"v_add_f32 v{gl0}, v{gl0}, v{gl0+2}", f"v_add_f32 v{gl1}, v{gl1}, v{gl1+2}", f"v_mul_f32 v{gl0}, v{gl0}, v{gm}", f"v_mul_f32 v{gl1}, v{gl1}, v{gm+1}"]
for p in ROWRED: side += ["s_nop 0", f"v_add_f32_dpp v{gl0}, v{gl0}, v{gl0} {p} {DPPM}", f"v_add_f32_dpp v{gl1}, v{gl1}, v{gl1} {p} {DPPM}"]
side += [f"v_rcp_f32 v{gl0}, v{gl0}", f"v_rcp_f32 v{gl1}, v{gl1}", "s_nop 0", f"v_mul_f32 v{gm}, v{gm}, v{gl0}", f"v_mul_f32 v{gm+1}, v{gm+1}, v{gl1}"]
for kk in range(8):
    a = wacc + 4*(kk >> 2)
    A(f"s_waitcnt lgkmcnt({7-kk})\nv_mfma_f32_16x16x32_bf16 {vr(a,4)}, {vr(vW+4*kk,4)}, {vr(fo+4*kk,4)}, {'0' if kk % 4 == 0 else vr(a,4)}")
    for _ in range(2):
        if side: A(side.pop(0))
for s_ in side: A(s_)
tt = ga
for r in range(4): A(f"v_fma_f32 v{tt+r}, v{gm}, v{wacc+r}, v{vR+r}")
for r in range(4): A(f"v_fmac_f32 v{tt+r}, v{gm+1}, v{wacc+4+r}")
rowred("v_add_f32", [tt, tt+1, tt+2, tt+3])
x_publish(tt, gx, X1O)
stamp(8)
hp, hs, hw, hr, hx, hres, hh = t+1, t+2, t+3, t+4, t+5, t+6, t+7
A(f"""s_mul_i32 s{sT0}, s{sHALF}, {288*16}
s_mul_i32 s{sT1}, s{sW}, {72*16}
s_add_u32 s{sT0}, s{sT0}, s{sT1}
s_add_u32 s{sT0}, s{sT0}, {HPo}
v_min_u32 v{hw}, 35, v{vL}
v_lshl_add_u32 v{hp}, v{hw}, 5, s{sT0}
s_mul_i32 s{sT0}, s{sW}, 144
s_add_u32 s{sT0}, s{sT0}, {LH}
v_lshl_add_u32 v{hw}, v{hw}, 2, s{sT0}
v_lshlrev_b32 v{hs}, 3, v{vN}
v_add_u32 v{hs}, {HSo}, v{hs}
v_lshlrev_b32 v{hr}, 4, v{vG}
v_add_u32 v{hr}, {LH}, v{hr}""")
res_addr(hres, t+8); x_store_addr(hx); hint_addr(hh, H5o)
A(f"s_cmp_lg_u32 s{sPASS}, 0\ns_cbranch_scc1 L_w2_go")
wdma_voff(t+8, 1152, "std")
A(f"""s_lshl_b32 s{sT1}, s{sX}, 1
s_add_u32 s{sT1}, s{sT1}, s{sHALF}
s_mul_i32 s{sT1}, s{sT1}, 36
s_add_u32 s{sT1}, s{sT1}, s{sW}
s_mul_i32 s{sT1}, s{sT1}, {8*1152}
s_lshl_b32 s{sT2}, s{sCG9}, 7
s_add_u32 s{sT1}, s{sT1}, s{sT2}
s_lshl_b32 s{sT2}, s{sW}, 10
s_add_u32 s{sT2}, s{sT2}, {LW2}""")
for i in range(9):
    dma(rW2, t+8, sT1, sT2)
    if i < 8: A(f"s_add_u32 s{sT1}, s{sT1}, {32*1152}\ns_add_u32 s{sT2}, s{sT2}, 4096")
A(f"v_add_u32 v{t+8}, {S1o - HPo}, v{hp}")
poll(f"buffer_load_dwordx4 {vr(ga,4)}, v{t+8}, {sr(rWS,4)}, s{sI} offen sc1\nbuffer_load_dwordx4 {vr(ga+4,4)}, v{t+8}, {sr(rWS,4)}, s{sI} offen offset:16 sc1", range(ga, ga+8), t+9)
for k in range(2):
    b = ga + 4*k
    A(f"v_add_f32 v{b}, v{b}, v{b+1}\nv_add_f32 v{b+2}, v{b+2}, v{b+3}\nv_add_f32 v{vS1+k}, v{b}, v{b+2}")
A("s_barrier\nL_w2_go:")
traddr_std(t+8, LW2)
for ks in range(9):
    for u in range(2): A(f"ds_read_b64_tr_b16 {vr(vW+4*ks+2*u,2)}, v{t+8} offset:{ks*4096+u*512}")
gst = ga + 8
poll(f"""buffer_load_dwordx4 {vr(ga,4)}, v{hp}, {sr(rWS,4)}, s{sI} offen sc1
buffer_load_dwordx4 {vr(ga+4,4)}, v{hp}, {sr(rWS,4)}, s{sI} offen offset:16 sc1
buffer_load_dwordx2 {vr(gst,2)}, v{hs}, {sr(rWS,4)}, s{sI} offen sc1""", range(ga, ga+10), t+8)
stamp(9)
gx1 = ga + 12
A(f"buffer_load_dwordx4 {vr(gx1,4)}, v{hres}, {sr(rWS,4)}, s{sPASS} offen sc1")
y0, y1 = ga, ga + 4
for y in (y0, y1): A(f"v_add_f32 v{y}, v{y}, v{y+1}\nv_add_f32 v{y+2}, v{y+2}, v{y+3}")
hmu, hrs = t+8, t+9
stats_finish(gst, gst+1, hmu, hrs)
for y in (y0, y1): A(f"v_add_f32 v{y}, v{y}, v{y+2}")
for k, y in enumerate((y0, y1)): A(f"v_fma_f32 v{y}, -v{hmu}, v{vS1+k}, v{y}")
for k, y in enumerate((y0, y1)): A(f"v_fma_f32 v{y}, v{y}, v{hrs}, v{vB+k}")
A(f"s_mov_b32 s{sT0}, {-math.log2(math.e):.9e}")
for y in (y0, y1): A(f"v_mul_f32 v{y+1}, s{sT0}, abs(v{y})")
for y in (y0, y1): A(f"v_exp_f32 v{y+1}, v{y+1}")
A(f"v_cmp_le_f32 vcc, 0, v{y0}\nv_cmp_le_f32 {sr(sT2,2)}, 0, v{y1}")
for y in (y0, y1): A(f"v_fma_f32 v{y+2}, v{y+1}, 2.0, 1.0\nv_add_f32 v{y+3}, 2.0, v{y+1}")
e0, e1 = t + 10, t + 11
for y, e in ((y0, e0), (y1, e1)): A(f"v_mul_f32 v{y+3}, v{y+3}, v{y+1}\nv_mul_f32 v{e}, v{y+1}, v{y+1}")
A(f"v_cndmask_b32 v{y0+2}, v{y0+3}, v{y0+2}, vcc\nv_cndmask_b32 v{y1+2}, v{y1+3}, v{y1+2}, {sr(sT2,2)}")
A(f"v_cndmask_b32 v{e0}, 1.0, v{e0}, vcc\nv_cndmask_b32 v{e1}, 1.0, v{e1}, {sr(sT2,2)}")
for y, e in ((y0, e0), (y1, e1)): A(f"v_fma_f32 v{e}, v{e}, 2.0, v{y+2}")
for y, e in ((y0, e0), (y1, e1)): A(f"v_rcp_f32 v{e}, v{e}")
for y, e in ((y0, e0), (y1, e1)): A(f"v_mul_f32 v{y}, v{y}, v{y+2}")
for y, e in ((y0, e0), (y1, e1)): A(f"v_mul_f32 v{y}, v{y}, v{e}")
A(f"v_cvt_pk_bf16_f32 v{y0}, v{y0}, v{y1}\nds_write_b32 v{hw}, v{y0}\ns_waitcnt vmcnt(0) lgkmcnt(0)\ns_barrier")
fh = vW + 36
fhr = [vW + 36 + 4*k for k in range(7)] + [ga, ga + 4]
for ks in range(9): A(f"ds_read_b128 {vr(fhr[ks],4)}, v{hr} offset:{ks*64}")
recheck(f"buffer_load_dwordx4 {vr(gx1,4)}, v{hres}, {sr(rWS,4)}, s{sPASS} offen sc1", range(gx1, gx1+4), t+8)
A(f"v_mfma_f32_16x16x32_bf16 {vr(vR,4)}, {vr(vSEL,4)}, {vr(gx1,4)}, 0")
hint_send(hh)
w2acc = ga + 16
side = [f"v_add_f32_dpp v{vR+r}, v{vR+r}, v{vR+r} {p} {DPPM}" for p in ROWRED for r in range(4)]
if not OPT["hint"]: A("s_nop 4")
for ks in range(9):
    A(f"s_waitcnt lgkmcnt({8-ks})\nv_mfma_f32_16x16x32_bf16 {vr(w2acc,4)}, {vr(vW+4*ks,4)}, {vr(fhr[ks],4)}, {'0' if ks == 0 else vr(w2acc,4)}")
    if ks >= 1: A(side.pop(0)); A(side.pop(0))
A("s_nop 5")
for r in range(4): A(f"v_add_f32 v{w2acc+r}, v{w2acc+r}, v{vR+r}")
x_publish(w2acc, hx, X2O)
stamp(10)
A(f"s_cmp_eq_u32 s{sPASS}, 0\ns_cbranch_scc1 L_q")
A(f"s_or_b32 s{sT0}, s{sX}, s{sHALF}\ns_cmp_lg_u32 s{sT0}, 0\ns_cbranch_scc1 L_done")
A(f"""s_lshl_b32 s{sT0}, s{sCG9}, 7
s_lshl_b32 s{sT1}, s{sW}, 5
s_add_u32 s{sT0}, s{sT0}, s{sT1}
v_lshl_add_u32 v{hx}, v{vG}, 3, s{sT0}
s_mov_b32 s{sXO}, s{sI}""")
hint_wait(H5o, t+10)
A(f"s_mov_b32 s{sXO}, {PS + X2O}")
poll(f"buffer_load_dwordx4 {vr(gx1,4)}, v{hres}, {sr(rWS,4)}, s{sXO} offen sc1", range(gx1, gx1+4), t+10)
A(f"v_mfma_f32_16x16x32_bf16 {vr(vR,4)}, {vr(vSEL,4)}, {vr(gx1,4)}, 0\ns_nop 7")
rowred("v_add_f32", [vR, vR+1, vR+2, vR+3])
for r in range(4): A(f"v_mul_f32 v{vR+r}, 0x41800000, v{vR+r}")
A(f"v_cvt_pk_bf16_f32 v{vR}, v{vR}, v{vR+1}\nv_cvt_pk_bf16_f32 v{vR+1}, v{vR+2}, v{vR+3}")
for _ in range(OPT["xsleep"]): A("s_sleep 127")
if OPT["echo"] >= 0:
    stamp(11)
    A(f"v_readlane_b32 s3, v9, {OPT['echo']}\nv_readlane_b32 s70, v9, 0\ns_nop 3\ns_sub_u32 s3, s3, s70\ns_add_u32 s3, s3, s{sST}")
    A(f"L_echo:\ns_memrealtime s[70:71]\ns_waitcnt lgkmcnt(0)\ns_sub_u32 s70, s70, s3\ns_cmp_lt_i32 s70, 0\ns_cbranch_scc1 L_echo")
A(f"s_mov_b32 exec_lo, 0x00010001\ns_mov_b32 exec_hi, 0x00010001\nbuffer_store_dwordx2 {vr(vR,2)}, v{hx}, {sr(rOUT,4)}, 0 offen\ns_mov_b64 exec, -1")
A("s_branch L_done")

A("L_roleB:")
ba1, ba2, baw, bar_, bat, bas1, bas3, badst, bastat = [t + k for k in range(9)]
A(f"s_cmp_lg_u32 s{sPASS}, 0\ns_cbranch_scc1 L_w1_tr")
wdma_voff(t+10, 9216, "std")
A(f"""s_mul_i32 s{sT1}, s{sHALF}, 18
s_add_u32 s{sT1}, s{sT1}, s{sW}
s_mul_i32 s{sT1}, s{sT1}, {8*9216}
s_mul_i32 s{sT2}, s{sX}, 1152
s_add_u32 s{sT1}, s{sT1}, s{sT2}
s_mul_i32 s{sT2}, s{sCG9}, 384
s_add_u32 s{sT1}, s{sT1}, s{sT2}
s_lshl_b32 s{sT2}, s{sW}, 10
s_add_u32 s{sT2}, s{sT2}, {LR}""")
for i in range(5):
    if i == 4: A(f"s_cmp_ge_u32 s{sW}, 2\ns_cbranch_scc1 L_w1_issued")
    for u in range(3):
        A(f"s_add_u32 s{sT3}, s{sT1}, {i*32*9216 + u*128}\ns_add_u32 s{sT4}, s{sT2}, {i*4096 + u*18432}")
        dma(rWA, t+10, sT3, sT4)
A("L_w1_issued:\ns_waitcnt vmcnt(0)")
gcheck()
A("s_barrier\nL_w1_tr:")
traddr_std(t+10, LR); traddr_tail(t+12, LR)
for u in range(3): tr_slice(vW + 18*u, t+10, t+12, u*18432)
A(f"""s_mul_i32 s{sT0}, s{sCG9}, {192*16}
s_lshl_b32 s{sT1}, s{sW}, 8
s_add_u32 s{sT0}, s{sT0}, s{sT1}
s_lshl_b32 s{sT1}, s{sHALF}, 2
s_add_u32 s{sT0}, s{sT0}, s{sT1}
s_add_u32 s{sT0}, s{sT0}, {HPo}
v_lshl_add_u32 v{badst}, v{vN}, 4, s{sT0}
v_and_b32 v{bastat}, 1, v{vG}
v_lshl_add_u32 v{badst}, v{bastat}, 11, v{badst}
v_lshrrev_b32 v{bastat}, 1, v{vG}
v_lshl_add_u32 v{badst}, v{bastat}, 10, v{badst}
s_lshl_b32 s{sT0}, s{sHALF}, 5
s_lshl_b32 s{sT1}, s{sW}, 3
s_add_u32 s{sT0}, s{sT0}, s{sT1}
s_add_u32 s{sT0}, s{sT0}, {HSo}
v_mov_b32 v{bastat}, s{sT0}
s_cmp_eq_u32 s{sCG9}, 0
s_cselect_b64 s[100:101], 1, 0""")
x_gather_addrs(sHALF, ba1, ba2, baw); ln_read_addrs(bar_, bat, bas1, bas3, vP2)
A(f"s_cmp_lg_u32 s{sPASS}, 0\ns_cbranch_scc1 L_w1_go")
cs = vP2
for r in range(4): A(f"v_mov_b32 v{cs+r}, v{vONE}")
A(f"v_mov_b32 v{cs+18}, v{vONE}\nv_mov_b32 v{cs+19}, v{vONE}")
A("s_nop 0\ns_waitcnt lgkmcnt(0)")
for u in range(3):
    a = cs + 4 + 4*u
    for ks in range(4): A(f"v_mfma_f32_16x16x32_bf16 {vr(a,4)}, {vr(cs,4)}, {vr(vW+18*u+4*ks,4)}, {'0' if ks == 0 else vr(a,4)}")
    A(f"v_mfma_f32_16x16x32_bf16 {vr(a,4)}, {vr(cs+16,4)}, {vr(vW+18*u+14,4)}, {vr(a,4)}")
A(f"v_add_u32 v{t+10}, {S1o - HPo}, v{badst}\nv_cmp_eq_u32 vcc, 2, v{vG}\ns_nop 6")
A(f"v_cndmask_b32 v{cs+4}, v{cs+4}, v{cs+8}, vcc\nv_cndmask_b32 v{cs+4}, v{cs+4}, v{cs+12}, {sr(sMODD,2)}")
pub(f"buffer_store_dword v{cs+4}, v{t+10}, {sr(rWS,4)}, s{sI} offen", mask64(0xffffffff, 0x0000ffff, sT2))
A("L_w1_go:")
A(f"s_mov_b32 s{sXO}, s{sI}")
hint_wait(H3o, t+10)
stamp(7)
x_gather(ba1, ba2, baw, vP2, sPASS, t+10)
stamp(8)
ln_gemv(3, vW, bar_, bat, bas1, bas3, vP2, vP2+20, t+10, 12, badst, bastat, 100)
stamp(9)
A(f"s_cmp_eq_u32 s{sPASS}, 0\ns_cbranch_scc1 L_q\ns_branch L_done")
A("L_roleF:")
A(f"s_cmp_lg_u32 s{sPASS}, 0\ns_cbranch_scc1 L_done\ns_waitcnt vmcnt(0)")
gcheck()
A("s_branch L_q")

A("L_done:")
if PROF:
    stamp(11)
    A(f"s_cmp_lg_u32 s{sW}, 0\ns_cbranch_scc1 L_end\ns_lshl_b32 s{sT0}, s2, 7\ns_add_u32 s{sT0}, s{sT0}, {STAMP}")
    A(f"s_lshr_b32 s3, s{sCOPY}, 12\ns_or_b32 s3, s3, s{sMODE}\nv_writelane_b32 v9, s3, 31\ns_memtime s[72:73]\ns_waitcnt lgkmcnt(0)\ns_sub_u32 s3, s72, s70\nv_writelane_b32 v9, s3, 30\nv_lshlrev_b32 v2, 2, v{vL}\ns_mov_b32 exec_hi, 0")
    A(f"buffer_store_dword v9, v2, {sr(rWS,4)}, s{sT0} offen")
if OPT["dbgout"]:
    A(f"s_cmp_lg_u32 s2, 0\ns_cbranch_scc1 L_end\ns_load_dwordx2 s[4:5], s[0:1], 80\nv_readlane_b32 s3, v9, 0\nv_readlane_b32 s6, v9, 30\ns_nop 1\nv_subrev_u32 v9, s3, v9\nv_writelane_b32 v9, s6, 0")
    A("v_mov_b32 v3, 0\ns_waitcnt lgkmcnt(0)\ns_mov_b64 exec, 1")
    for k, ln in enumerate([0, 1, 2, 3, 4, 6, 7, 8, 9, 10, 29, 20, 22, 24, 26, 27]):
        A(f"v_readlane_b32 s3, v9, {ln}\ns_nop 1\nv_mov_b32 v4, s3\nglobal_store_dword v3, v4, s[4:5] offset:{4*k}")
A("L_end:\ns_endpgm")

S = []
_L = L; L = S
A(f"L_service:\ns_setprio 3\ns_mov_b32 s{sT0}, {EPO}\ns_buffer_load_dword s{sE1}, {sr(rWS,4)}, s{sT0}")
t = vT
if OPT["pf"]:
    A(f"s_getpc_b64 s[54:55]\nL_pc:\ns_sub_u32 s54, s54, L_pc-{NAME}_kernel\ns_subb_u32 s55, s55, 0\nv_lshlrev_b32 v{t}, 7, v{vL}")
    A("PFLOADS")
for r in range(4): A(f"v_mov_b32 v{t+4+r}, -1")
A(f"""s_mul_i32 s{sT0}, s{sJ}, {IEND//32}
s_add_u32 s{sT0}, s{sT0}, s{sIB}
v_lshl_add_u32 v{t+1}, v{vL}, 4, s{sT0}
s_lshl_b32 s{sT0}, s2, 9
v_lshl_add_u32 v{t+2}, v{vL}, 4, s{sT0}
s_mov_b32 s{sT1}, {PS}""")
for so in ("0", f"s{sT1}"):
    A(f"buffer_store_dwordx4 {vr(t+4,4)}, v{t+1}, {sr(rWS,4)}, {so} offen sc1")
    A(f"s_mov_b32 exec_lo, -1\ns_mov_b32 exec_hi, {(1 << ((IEND//32 - 1024)//16 - 32)) - 1:#x}\nbuffer_store_dwordx4 {vr(t+4,4)}, v{t+1}, {sr(rWS,4)}, {so} offen offset:1024 sc1")
    A(f"s_mov_b32 exec_hi, 0\nbuffer_store_dwordx4 {vr(t+4,4)}, v{t+2}, {sr(rWS,4)}, {so} offen sc1\ns_mov_b64 exec, -1")
A(f"""s_waitcnt lgkmcnt(0)
s_and_b32 s{sE1}, s{sE1}, -16
s_add_u32 s{sE1}, s{sE1}, 16
s_or_b32 s{sT0}, s{sE1}, s{sXCC}
v_mov_b32 v{t+3}, s{sT0}
s_lshl_b32 s{sT0}, s{sX}, 7
s_add_u32 s{sT4}, s{sT0}, {FLG}
s_lshl_b32 s{sT1}, s{sJ}, 2
s_add_u32 s{sT0}, s{sT4}, s{sT1}
v_mov_b32 v{t+1}, s{sT0}
s_waitcnt vmcnt(0)
s_mov_b64 exec, 1
buffer_store_dword v{t+3}, v{t+1}, {sr(rWS,4)}, 0 offen sc1""")
if OPT["copies"] == 2 and OPT["pol"] < 0:
    A(f"""s_and_b32 s{sT0}, s2, 63
s_lshl_b32 s{sT0}, s{sT0}, 7
s_lshr_b32 s{sT1}, s2, 6
s_lshl_b32 s{sT1}, s{sT1}, 14
s_add_u32 s{sT0}, s{sT0}, s{sT1}
s_add_u32 s{sT0}, s{sT0}, {PROBE}
s_and_b32 s{sT1}, s{sJ}, 1
s_lshl_b32 s{sT1}, s{sT1}, 13
s_xor_b32 s{sT0}, s{sT0}, s{sT1}
s_xor_b32 s{sT1}, s{sT0}, 0x2000
s_memtime s[84:85]
s_waitcnt lgkmcnt(0)
s_buffer_load_dword s85, {sr(rWS,4)}, s{sT0}
s_waitcnt lgkmcnt(0)
s_memtime s[86:87]
s_waitcnt lgkmcnt(0)
s_buffer_load_dword s87, {sr(rWS,4)}, s{sT1}
s_waitcnt lgkmcnt(0)
s_memtime s[88:89]
s_waitcnt lgkmcnt(0)
s_sub_u32 s88, s88, s86
s_sub_u32 s86, s86, s84
s_cmp_gt_u32 s86, s88
s_cselect_b32 s{sT0}, 1, 0
s_xor_b32 s{sT0}, s{sT0}, s{sJ}
s_and_b32 s{sT0}, s{sT0}, 1""")
else:
    A(f"s_lshr_b32 s{sT0}, s{sXCC}, 2\ns_xor_b32 s{sT0}, s{sT0}, {max(OPT['pol'], 0)}")
A(f"""s_lshl_b32 s{sT0}, s{sT0}, 3
v_or_b32 v{t+3}, s{sT0}, v{t+3}
s_lshl_b32 s{sT0}, s2, 2
s_add_u32 s{sT0}, s{sT0}, {VOT}
v_mov_b32 v{t+1}, s{sT0}
buffer_store_dword v{t+3}, v{t+1}, {sr(rWS,4)}, 0 offen sc1
s_mov_b64 exec, -1
s_barrier
s_mov_b32 s{sCNT}, 0
s_add_u32 s{sT3}, s{sT4}, 64
L_flags:
s_buffer_load_dwordx16 s[12:27], {sr(rWS,4)}, s{sT4} glc
s_buffer_load_dwordx16 s[36:51], {sr(rWS,4)}, s{sT3} glc
s_or_b32 s{sT2}, s{sE1}, s{sXCC}
s_mov_b32 s{sT0}, 0
s_waitcnt lgkmcnt(0)""")
for r in list(range(12, 28)) + list(range(36, 52)):
    A(f"s_xor_b32 s{sT1}, s{r}, s{sT2}\ns_or_b32 s{sT0}, s{sT0}, s{sT1}")
A(f"""s_cmp_lt_u32 s{sT0}, 8
s_cbranch_scc1 L_flags_ok
s_sleep 4
s_add_u32 s{sCNT}, s{sCNT}, 1
s_cmp_lt_u32 s{sCNT}, {OPT['tmo']}
s_cbranch_scc1 L_flags
L_flags_ok:
s_cmp_eq_u32 s{sT0}, 0
s_cselect_b32 s{sMODE}, {OPT['fast']}, 0
v_mov_b32 v{t+4}, s{sMODE}
v_mov_b32 v{t+5}, s{sE1}
v_mov_b32 v{t+6}, {LMODE}
ds_write_b64 v{t+6}, {vr(t+4,2)}
s_waitcnt lgkmcnt(0)
s_endpgm""")
L = _L

k = L.index("s_cbranch_scc1 L_service")
L[k] = "s_cbranch_scc0 L_main"
body = L[:k+1] + S + ["L_main:"] + L[k+1:] + TAIL
NPF = OPT.get("npf", 2)
txt = "\n".join(body).replace("PFLOADS", "\n".join(f"global_load_dword v{vT+8+k}, v{vT}, s[54:55]\nv_add_u32 v{vT}, 8192, v{vT}" for k in range(NPF)))
out.append(txt)
out.append(f""".p2align 8
.fill {NPF*2048}, 4, 0xbf800000
s_endpgm
.section .rodata,"a"
.p2align 6
.amdhsa_kernel {NAME}_kernel
  .amdhsa_next_free_vgpr 256
  .amdhsa_next_free_sgpr 102
  .amdhsa_accum_offset 256
  .amdhsa_group_segment_fixed_size 0
  .amdhsa_kernarg_size 96
  .amdhsa_user_sgpr_count 2
  .amdhsa_user_sgpr_kernarg_segment_ptr 1
  .amdhsa_system_sgpr_workgroup_id_x 1
  .amdhsa_float_denorm_mode_32 3
.end_amdhsa_kernel""")
print("\n".join(out))
```

```python
import sys, math
OPT = dict(prof=0, nv1=12, fast=1, copies=2, pol=-1, hint=1, rot=1, ldf="nt", pf=1, tmo=1 << 17, dbgstage=0, xsleep=0, dbgout=0, echo=-1, npre=4, npreb=3, h3pos=1, h5pos=1, touch=1, noclear=0, cl=0, clf="sc1", clx=1, nk1=6, nq=2)
for a in sys.argv[1:]:
    k, v = a.split("=")
    OPT[k] = v if k in ("ldf", "clf") else int(v, 0)
NAME = "interleave_layers__sliding_block_cached__dense_activation_mish__decode"
LDF = "" if OPT["ldf"] == "plain" else OPT["ldf"].replace("+", " ")
PROF = OPT["prof"]

L = []; TAIL = []
def A(s):
    for ln in s.split("\n"):
        ln = ln.strip()
        if ln: L.append(ln)
def T(s):
    for ln in s.split("\n"):
        ln = ln.strip()
        if ln: TAIL.append(ln)
_uid = [0]
def uid(p):
    _uid[0] += 1
    return f"L_{p}{_uid[0]}"
def vr(a, n=1): return f"v{a}" if n == 1 else f"v[{a}:{a+n-1}]"
def sr(a, n=1): return f"s{a}" if n == 1 else f"s[{a}:{a+n-1}]"
DPPM = "row_mask:0xf bank_mask:0xf"
ROWRED = ["quad_perm:[1,0,3,2]", "quad_perm:[2,3,0,1]", "row_half_mirror", "row_mirror"]

PS = 0x100000
X1O, X2O = 0x00000, 0x10000
IB0 = 0x20000
QPo, HPo, S1o, QSo, HSo, H3o, H5o, OPo, MLo = 0x0000, 0x2000, 0x4400, 0x6800, 0x6880, 0x6900, 0x6980, 0x7000, 0xB000
REST = 0x7000 // 32
PROBE = 0x1C0000
EPO, RDY = 0x1B0000, 0x1B1000
Q0B = 0xA0000
Q0S = 0x9000
STAMP = 0x200000
WSREC = 0x210000 if PROF else 0x200000
LV, LR, LWQ = 0, 65536, 135168
LW2 = LR + 32768
LOPS = LWQ
LQ, LP, LM, LH, LMODE, LXS = 153600, 154112, 155136, 155200, 155776, 155904
LDS_BYTES = 163840
sX, sJ, sW, sPASS, sROLE, sMODE, sCOPY, sIB = 4, 5, 6, 7, 8, 9, 10, 11
rK, rV, rWQ, rWA, rW2, rWS, rXI, rB1, rOUT, rDBG = 12, 16, 20, 24, 28, 32, 36, 40, 44, 48
sT0, sT1, sT2, sT3, sT4 = 52, 53, 54, 55, 56
sCNT, sI, sXO = 57, 58, 59
sMODD = 60
sRG, sCG, sHALF, sCG9 = 62, 63, 96, 97
sROT, sXCC, sE1, sQ0 = 98, 99, 68, 69
sST = 64
vL, vN, vG = 1, 2, 3
vONE, vONE3, vS = 4, 6, 8
vSEL, vR, vB, vS1 = 12, 16, 20, 22
vT = 24
vWQ, vW, vK, vV = 46, 64, 128, 192
vP2 = 224

nstamp = [0]
def stamp(i):
    if PROF == 2 and i != 11: return
    if PROF: A(f"s_memrealtime {sr(sST, 2)}\ns_lshr_b32 s3, s{sPASS}, 16\ns_add_u32 m0, s3, {i}\ns_waitcnt lgkmcnt(0)\nv_writelane_b32 v9, s{sST}, m0")

def srd(r, lo, hi, nbytes):
    A(f"s_mov_b32 s{r}, s{lo}\ns_and_b32 s{r+1}, s{hi}, 0xffff\ns_mov_b32 s{r+2}, {nbytes}\ns_mov_b32 s{r+3}, 0x20000")

def check(regs, tmp, retry):
    regs = list(regs)
    if len(regs) == 1:
        A(f"v_cmp_eq_u32 vcc, -1, v{regs[0]}")
    else:
        if len(regs) % 2 == 0: A(f"v_max_u32 v{tmp}, v{regs[0]}, v{regs[1]}"); k = 2
        else: A(f"v_max3_u32 v{tmp}, v{regs[0]}, v{regs[1]}, v{regs[2]}"); k = 3
        while k < len(regs):
            A(f"v_max3_u32 v{tmp}, v{tmp}, v{regs[k]}, v{regs[k+1]}"); k += 2
        A(f"v_cmp_eq_u32 vcc, -1, v{tmp}")
    A(f"s_cbranch_vccnz {retry}")

def poll(loads, regs, tmp):
    top, retry = uid("poll"), uid("retry")
    A(f"s_mov_b32 s{sCNT}, 0\n{top}:")
    A(loads)
    A("s_waitcnt vmcnt(0)")
    check(regs, tmp, retry)
    T(f"{retry}:\ns_add_u32 s{sCNT}, s{sCNT}, 1\ns_cmp_lt_u32 s{sCNT}, {OPT['tmo']}\ns_cbranch_scc1 {top}\ns_branch L_end")

def recheck(load, regs, tmp):
    retry, top, back = uid("rc"), uid("rct"), uid("rcb")
    check(regs, tmp, retry)
    A(f"{back}:")
    regs = list(regs)
    T(f"{retry}:\ns_mov_b32 s{sCNT}, 0\n{top}:\n{load}\ns_waitcnt vmcnt(0)\nv_max_u32 v{tmp}, v{regs[0]}, v{regs[1]}\nv_max3_u32 v{tmp}, v{tmp}, v{regs[2]}, v{regs[3]}")
    T(f"v_cmp_eq_u32 vcc, -1, v{tmp}\ns_cbranch_vccz {back}\ns_add_u32 s{sCNT}, s{sCNT}, 1\ns_cmp_lt_u32 s{sCNT}, {OPT['tmo']}\ns_cbranch_scc1 {top}\ns_branch L_end")

def probe():
    if OPT["copies"] != 2: return
    if OPT["pol"] >= 0:
        A(f"s_lshr_b32 s{sT0}, s{sXCC}, 2\ns_xor_b32 s{sT0}, s{sT0}, {OPT['pol']}\ns_lshl_b32 s{sCOPY}, s{sT0}, 13")
        return
    A(f"""s_lshl_b32 s{sT0}, s{sJ}, 2
s_add_u32 s{sT0}, s{sT0}, s{sW}
s_and_b32 s{sT1}, s{sT0}, 63
s_lshl_b32 s{sT1}, s{sT1}, 7
s_lshr_b32 s{sT0}, s{sT0}, 6
s_lshl_b32 s{sT0}, s{sT0}, 15
s_add_u32 s{sT0}, s{sT0}, s{sT1}
s_add_u32 s{sT0}, s{sT0}, {PROBE}
s_add_u32 s{sT1}, s{sT0}, 0x2000
s_memtime s[84:85]
s_waitcnt lgkmcnt(0)
s_buffer_load_dword s85, {sr(rWS,4)}, s{sT0}
s_waitcnt lgkmcnt(0)
s_memtime s[86:87]
s_waitcnt lgkmcnt(0)
s_buffer_load_dword s87, {sr(rWS,4)}, s{sT1}
s_waitcnt lgkmcnt(0)
s_memtime s[88:89]
s_waitcnt lgkmcnt(0)
s_sub_u32 s88, s88, s86
s_sub_u32 s86, s86, s84
s_lshl_b32 s{sT0}, s{sW}, 2
s_add_u32 s{sT0}, s{sT0}, {LMODE}
v_mov_b32 v{vP2+28}, s{sT0}
v_mov_b32 v{vP2+29}, s86
v_mov_b32 v{vP2+30}, s88
ds_write2_b32 v{vP2+28}, v{vP2+29}, v{vP2+30} offset0:0 offset1:4
v_mov_b32 v{vP2+28}, {LMODE}
s_waitcnt lgkmcnt(0)
s_barrier
ds_read_b128 {vr(vP2+20,4)}, v{vP2+28}
ds_read_b128 {vr(vP2+24,4)}, v{vP2+28} offset:16
s_waitcnt lgkmcnt(0)
v_min_u32 v{vP2+20}, v{vP2+20}, v{vP2+21}
v_min3_u32 v{vP2+20}, v{vP2+20}, v{vP2+22}, v{vP2+23}
v_min_u32 v{vP2+24}, v{vP2+24}, v{vP2+25}
v_min3_u32 v{vP2+24}, v{vP2+24}, v{vP2+26}, v{vP2+27}
v_cmp_gt_u32 vcc, v{vP2+20}, v{vP2+24}
s_nop 1
s_cmp_lg_u32 vcc_lo, 0
s_cselect_b32 s{sCOPY}, 0x2000, 0""")
    if PROF: A(f"s_lshl_b32 s88, s88, 16\ns_or_b32 s88, s88, s86\nv_writelane_b32 v9, s88, 14")

def pub(stores, mask):
    slow, back = uid("slow"), uid("back")
    A(f"s_cmp_eq_u32 s{sMODE}, 0")
    if mask is not None: A(f"s_mov_b64 exec, {mask}")
    A(f"s_cbranch_scc1 {slow}")
    A(stores)
    A(f"{back}:")
    if mask is not None: A("s_mov_b64 exec, -1")
    T(f"{slow}:")
    for ln in stores.strip().split("\n"): T(ln.strip() + " sc1")
    T(f"s_branch {back}")

def mask64(lo, hi, reg):
    A(f"s_mov_b32 s{reg}, {lo:#x}\ns_mov_b32 s{reg+1}, {hi:#x}")
    return sr(reg, 2)

def dma(rsrc, voff, soff, ldsaddr_sreg):
    A(f"s_mov_b32 m0, s{ldsaddr_sreg}\ns_nop 0\nbuffer_load_dwordx4 v{voff}, {sr(rsrc,4)}, s{soff} offen {LDF} lds")

def rowred(op, regs):
    for p in ROWRED:
        for r in regs: A(f"{op}_dpp v{r}, v{r}, v{r} {p} {DPPM}")
        if len(regs) < 3 and p != ROWRED[-1]: A(f"s_nop {2 - len(regs)}")

def stats_finish(s1, s2, mu, rstd):
    rowred("v_add_f32", [s1, s2])
    A(f"v_mul_f32 v{mu}, {1/576:.9e}, v{s1}\nv_mul_f32 v{s2}, {1/576:.9e}, v{s2}")
    A(f"v_fma_f32 v{s2}, -v{mu}, v{mu}, v{s2}\nv_max_f32 v{s2}, 0, v{s2}\nv_add_f32 v{s2}, 0x3727c5ac, v{s2}\nv_rsq_f32 v{rstd}, v{s2}")

hdr = open("cdna_kernels/" + NAME + ".s.ref").read().split("; Override launch")[0]
out = [hdr.rstrip(), "; Override launch geometry by editing the next line (default: block=256,", "; grid=ceil(out_elems/256), lds=0). Harness parses it; keep it on one line.",
       f"; @launch grid=(256,1,1) block=(256,1,1) lds={LDS_BYTES}",
       '.amdgcn_target "amdgcn-amd-amdhsa--gfx950"', ".text", f".globl {NAME}_kernel", ".p2align 8", f".type {NAME}_kernel,@function", f"{NAME}_kernel:"]

A("s_cmp_ge_u32 s2, 256\ns_cbranch_scc1 L_end")
if PROF: A(f"s_memrealtime {sr(sST+2,2)}\ns_memtime s[70:71]\nv_mov_b32 v9, 0")
A("s_load_dwordx2 s[64+32:64+33], s[0:1], 0".replace("64+32", "100").replace("64+33", "101"))
A(f"s_load_dwordx4 s[{rK}:{rK+3}], s[0:1], 8\ns_load_dwordx4 s[{rWQ}:{rWQ+3}], s[0:1], 24\ns_load_dwordx4 s[{rXI}:{rXI+3}], s[0:1], 48\ns_load_dwordx4 s[{rOUT}:{rOUT+3}], s[0:1], 64\ns_load_dwordx4 s[{rDBG}:{rDBG+3}], s[0:1], 80")
A(f"""s_and_b32 s{sX}, s2, 7
s_lshr_b32 s{sJ}, s2, 3
v_lshrrev_b32 v{vG}, 6, v0
v_and_b32 v{vL}, 63, v0
v_readfirstlane_b32 s{sW}, v{vG}
v_and_b32 v{vN}, 15, v0
v_bfe_u32 v{vG}, v0, 4, 2
s_and_b32 s{sCG}, s{sJ}, 7
s_lshr_b32 s{sRG}, s{sJ}, 3
s_getreg_b32 s{sXCC}, hwreg(HW_REG_XCC_ID)
s_and_b32 s{sXCC}, s{sXCC}, 7
s_lshl_b32 s{sIB}, s{sX}, 16
s_add_u32 s{sIB}, s{sIB}, {IB0}
s_mov_b32 s{sPASS}, 0
s_mov_b32 s{sMODE}, 0
s_mov_b32 s{sCOPY}, 0
s_mov_b32 s{sI}, s{sIB}
s_cmp_ge_u32 s{sJ}, 18
s_cselect_b32 s{sROLE}, 1, 0
s_cmp_ge_u32 s{sJ}, 30
s_cselect_b32 s{sROLE}, 2, s{sROLE}""")
A(f"""s_cmp_ge_u32 s{sJ}, 9
s_cselect_b32 s{sHALF}, 1, 0
s_mul_i32 s{sT0}, s{sHALF}, 9
s_sub_u32 s{sCG9}, s{sJ}, s{sT0}
s_sub_u32 s{sT0}, s{sJ}, 18
s_and_b32 s{sT1}, s{sT0}, 3
s_lshr_b32 s{sT0}, s{sT0}, 2
s_and_b32 s{sT0}, s{sT0}, 3
s_cmp_eq_u32 s{sROLE}, 0
s_cselect_b32 s{sHALF}, s{sHALF}, s{sT1}
s_cselect_b32 s{sCG9}, s{sCG9}, s{sT0}
s_lshr_b32 s{sT0}, s{sJ}, 4
s_lshl_b32 s{sT1}, s{sX}, 1
s_add_u32 s{sT0}, s{sT0}, s{sT1}
s_lshl_b32 s{sT0}, s{sT0}, 23
s_and_b32 s{sT1}, s{sJ}, 15
s_lshl_b32 s{sT1}, s{sT1}, 16
s_add_u32 s{sT0}, s{sT0}, s{sT1}
s_add_u32 s{sT0}, s{sT0}, {28672*256}
s_waitcnt lgkmcnt(0)""")
A(f"s_add_u32 s{rV}, s14, s{sT0}\ns_addc_u32 s{rV+1}, s15, 0\ns_and_b32 s{rV+1}, s{rV+1}, 0xffff\ns_mov_b32 s{rV+2}, 65536\ns_mov_b32 s{rV+3}, 0x20000")
A(f"s_add_u32 s{rK}, s12, s{sT0}\ns_addc_u32 s{rK+1}, s13, 0\ns_and_b32 s{rK+1}, s{rK+1}, 0xffff\ns_mov_b32 s{rK+2}, 65536\ns_mov_b32 s{rK+3}, 0x20000")
srd(rWS, 50, 51, WSREC)
A(f"s_mov_b32 s{sT1}, {EPO}\ns_buffer_load_dword s{sE1}, {sr(rWS,4)}, s{sT1}")
A(f"s_cmp_eq_u32 s{sROLE}, 0\ns_cselect_b32 s{rWA}, s22, s36\ns_cselect_b32 s{rWA+1}, s23, s37\ns_and_b32 s{rWA+1}, s{rWA+1}, 0xffff")
A(f"s_mov_b32 s{sT1}, {576*4608*2}\ns_cmp_eq_u32 s{sROLE}, 0\ns_cselect_b32 s{rWA+2}, {4096*576*2}, s{sT1}\ns_mov_b32 s{rWA+3}, 0x20000")
srd(rWQ, 20, 21, 576*4096*2)
srd(rW2, 44, 45, 4608*576*2)
srd(rB1, 38, 39, 4608*2)
srd(rXI, 100, 101, 1152)
srd(rOUT, 46, 47, 1152)
if PROF: A(f"v_writelane_b32 v9, s{sST+2}, 0")

t = vT
A(f"""s_mul_i32 s{sT0}, s{sRG}, 288
v_lshlrev_b32 v{t}, 4, v{vL}
v_add_u32 v{t}, s{sT0}, v{t}
s_cmp_eq_u32 s{sW}, 0
s_cselect_b32 s{sT1}, 18, 0
v_cmp_gt_u32 vcc, s{sT1}, v{vL}
v_mov_b32 v{t+1}, 0x10000
v_mov_b32 v{vONE}, 0x3f803f80
v_cndmask_b32 v{t}, v{t+1}, v{t}, vcc
buffer_load_dwordx4 {vr(vP2,4)}, v{t}, {sr(rXI,4)}, 0 offen""")
def wdma_voff(dst, rowbytes, kind):
    if kind == "std":
        A(f"v_bfe_u32 v{dst}, v{vL}, 4, 1\ns_and_b32 s{sT0}, s{sW}, 1\ns_lshl_b32 s{sT0}, s{sT0}, 1")
    else:
        A(f"v_lshrrev_b32 v{dst}, 5, v{vL}\ns_and_b32 s{sT0}, s{sW}, 2")
    A(f"""v_or_b32 v{dst}, s{sT0}, v{dst}
v_lshlrev_b32 v{dst}, 1, v{dst}
v_xor_b32 v{dst}, v{dst}, v{vL}
v_and_b32 v{dst}, 7, v{dst}
v_lshlrev_b32 v{dst}, 4, v{dst}
v_lshrrev_b32 v{dst+1}, 3, v{vL}
s_mov_b32 s{sT0}, {rowbytes}
v_mad_u32_u24 v{dst}, v{dst+1}, s{sT0}, v{dst}""")
wdma_voff(t+4, 8192, "std")
A(f"""s_mul_i32 s{sT1}, s{sRG}, {144*8192}
s_lshl_b32 s{sT2}, s{sW}, 16
s_add_u32 s{sT1}, s{sT1}, s{sT2}
s_lshl_b32 s{sT2}, s{sX}, 10
s_add_u32 s{sT1}, s{sT1}, s{sT2}
s_lshl_b32 s{sT2}, s{sCG}, 7
s_add_u32 s{sT1}, s{sT1}, s{sT2}
s_lshl_b32 s{sT2}, s{sW}, 10
s_add_u32 s{sT2}, s{sT2}, {LWQ}
s_cmp_ge_u32 s{sW}, 2
s_cbranch_scc1 L_wq4
s_add_u32 s{sT3}, s{sT1}, {128*8192}
s_add_u32 s{sT4}, s{sT2}, {16*1024}""")
dma(rWQ, t+4, sT3, sT4)
A("L_wq4:")
for i in range(4):
    dma(rWQ, t+4, sT1, sT2)
    if i < 3: A(f"s_add_u32 s{sT1}, s{sT1}, {32*8192}\ns_add_u32 s{sT2}, s{sT2}, 4096")
NCLR = 8
def clears():
    A(f"s_cmp_lg_u32 s{sW}, 3\ns_cbranch_scc1 L_clrd")
    for r in range(4): A(f"v_mov_b32 v{vP2+12+r}, -1")
    q = vr(vP2+12, 4)
    A(f"""s_mul_i32 s{sT1}, s{sJ}, {REST}
v_lshl_add_u32 v{t+6}, v{vL}, 4, s{sT1}
s_lshl_b32 s{sT1}, s{sJ}, 9
s_add_u32 s{sT1}, s{sT1}, {OPo}
v_lshl_add_u32 v{t+7}, v{vL}, 4, s{sT1}
s_lshl_b32 s{sT1}, s{sJ}, 6
s_add_u32 s{sT1}, s{sT1}, {MLo - 512}
v_lshl_add_u32 v{t+8}, v{vL}, 4, s{sT1}
v_cmp_gt_u32 vcc, 32, v{vL}
s_lshl_b32 s{sT1}, s2, 9
v_lshl_add_u32 v{t+9}, v{vL}, 4, s{sT1}
v_cndmask_b32 v{t+7}, v{t+8}, v{t+7}, vcc
s_lshr_b32 s{sT1}, s2, 6
s_lshl_b32 s{sT1}, s{sT1}, 14
s_and_b32 s{sT2}, s2, 63
s_lshl_b32 s{sT2}, s{sT2}, 7
s_add_u32 s{sT1}, s{sT1}, s{sT2}
s_add_u32 s{sT1}, s{sT1}, {PROBE}
v_lshl_add_u32 v{t+8}, v{vL}, 4, s{sT1}
s_add_u32 s{sT0}, s{sIB}, {PS}
s_mov_b32 exec_hi, 0xf
buffer_store_dwordx4 {q}, v{t+7}, {sr(rWS,4)}, s{sIB} offen sc1
buffer_store_dwordx4 {q}, v{t+7}, {sr(rWS,4)}, s{sT0} offen sc1
s_mov_b32 exec_hi, {(1 << (REST//16 - 32)) - 1:#x}
buffer_store_dwordx4 {q}, v{t+6}, {sr(rWS,4)}, s{sIB} offen sc1
buffer_store_dwordx4 {q}, v{t+6}, {sr(rWS,4)}, s{sT0} offen sc1
s_and_b32 s{sT1}, s2, 3
s_cmp_eq_u32 s{sT1}, 2
s_cselect_b32 s{sT2}, 0xff, -1
s_cmp_eq_u32 s{sT1}, 3
s_cselect_b32 exec_lo, 1, s{sT2}
s_mov_b32 exec_hi, 0
s_mov_b32 s{sT0}, {PS}
buffer_store_dwordx4 {q}, v{t+9}, {sr(rWS,4)}, 0 offen sc1
buffer_store_dwordx4 {q}, v{t+9}, {sr(rWS,4)}, s{sT0} offen sc1
s_mov_b32 exec_lo, 0xff
s_movk_i32 s{sT0}, 0x2000
buffer_store_dwordx4 {q}, v{t+8}, {sr(rWS,4)}, 0 offen sc1
buffer_store_dwordx4 {q}, v{t+8}, {sr(rWS,4)}, s{sT0} offen sc1
s_mov_b64 exec, -1
L_clrd:""")
if OPT["pf"]:
    A(f"s_cmp_lg_u32 s{sJ}, 0\ns_cbranch_scc1 L_nopf\ns_getpc_b64 s[54:55]\nL_pc:\ns_sub_u32 s54, s54, L_pc-{NAME}_kernel\ns_subb_u32 s55, s55, 0\ns_lshl_b32 s{sT1}, s{sW}, 12\nv_lshl_add_u32 v{t+7}, v{vL}, 6, s{sT1}\nglobal_load_dword v11, v{t+7}, s[54:55]\nL_nopf:")
A(f"""s_lshl_b32 s{sT0}, s{sW}, 2
v_add_u32 v10, s{sT0}, v{vG}
v_xor_b32 v10, v10, v{vN}
v_lshlrev_b32 v10, 4, v10
v_lshl_add_u32 v10, v{vG}, 8, v10
s_lshl_b32 s{sT0}, s{sW}, 10
v_add_u32 v10, s{sT0}, v10
s_add_u32 s{sT3}, s{sT0}, {LR}""")
if OPT["rot"]: A(f"s_lshl_b32 s{sROT}, s2, 13")
else: A(f"s_mov_b32 s{sROT}, 0")
NK1 = OPT["nk1"]
vKO = 10
def kdma(i):
    A(f"s_add_u32 s{sT1}, s{sROT}, {i*4096}\ns_and_b32 s{sT1}, s{sT1}, 0xffff\ns_add_u32 s{sT2}, s{sT1}, s{sT3}")
    dma(rK, vKO, sT1, sT2)
A(f"""s_lshl_b32 s{sT0}, s{sCG9}, 7
s_lshl_b32 s{sT1}, s{sW}, 5
s_add_u32 s{sT0}, s{sT0}, s{sT1}
v_lshl_add_u32 v{t+12}, v{vG}, 3, s{sT0}
buffer_load_dwordx2 {vr(vR+2,2)}, v{t+12}, {sr(rXI,4)}, 0 offen
s_mul_i32 s{sT0}, s{sX}, 1152
s_mul_i32 s{sT1}, s{sHALF}, 576
s_add_u32 s{sT0}, s{sT0}, s{sT1}
s_mul_i32 s{sT1}, s{sW}, 144
s_add_u32 s{sT0}, s{sT0}, s{sT1}
v_min_u32 v{t+13}, 35, v{vL}
v_lshl_add_u32 v{t+13}, v{t+13}, 2, s{sT0}
buffer_load_dword v{vB+1}, v{t+13}, {sr(rB1,4)}, 0 offen""")
for i in range(NK1): kdma(i)
clears()
stamp(1)
A(f"v_mov_b32 v{vONE+1}, v{vONE}\ns_cmp_eq_u32 s{sW}, 0\ns_cselect_b32 s{sT0}, 0x3f803f80, 0\nv_mov_b32 v{vONE3}, s{sT0}\nv_mov_b32 v{vONE3+1}, s{sT0}")
mask64(0xffff0000, 0xffff0000, sMODD)
A(f"""s_and_b32 s{sT0}, s{sW}, 1
s_lshl_b32 s{sT0}, s{sT0}, 1
v_lshrrev_b32 v{t}, 3, v{vN}
v_add_u32 v{t}, s{sT0}, v{t}
v_and_b32 v{t+1}, 1, v{vN}
v_lshlrev_b32 v{t+1}, 4, v{t+1}
v_mov_b32 v{t+2}, 0x3d80
v_lshlrev_b32 v{t+1}, v{t+1}, v{t+2}
v_cmp_eq_u32 vcc, v{t}, v{vG}
v_bfe_u32 v{t+2}, v{vN}, 1, 2
s_nop 0
v_cndmask_b32 v{t+1}, 0, v{t+1}, vcc""")
for r in range(4):
    A(f"v_cmp_eq_u32 vcc, {r}, v{t+2}\ns_nop 1\nv_cndmask_b32 v{vSEL+r}, 0, v{t+1}, vcc")
def traddr_std(dst, base):
    A(f"""v_bfe_u32 v{dst}, v{vL}, 3, 2
v_xor_b32 v{dst}, s{sW}, v{dst}
v_lshlrev_b32 v{dst}, 5, v{dst}
v_and_b32 v{dst+1}, 3, v{vL}
v_lshl_add_u32 v{dst}, v{dst+1}, 3, v{dst}
v_bfe_u32 v{dst+1}, v{vL}, 2, 2
v_lshl_add_u32 v{dst}, v{dst+1}, 7, v{dst}
v_lshl_add_u32 v{dst}, v{vG}, 10, v{dst}
v_add_u32 v{dst}, {base}, v{dst}""")
def traddr_tail(dst, base):
    A(f"""v_bfe_u32 v{dst}, v{vL}, 3, 1
v_and_b32 v{dst+1}, 2, v{vG}
v_or_b32 v{dst}, v{dst}, v{dst+1}
v_xor_b32 v{dst}, s{sW}, v{dst}
v_lshlrev_b32 v{dst}, 5, v{dst}
v_and_b32 v{dst+1}, 3, v{vL}
v_lshl_add_u32 v{dst}, v{dst+1}, 3, v{dst}
v_lshrrev_b32 v{dst+1}, 2, v{vL}
v_lshl_add_u32 v{dst}, v{dst+1}, 7, v{dst}
v_add_u32 v{dst}, {base + 16384}, v{dst}""")
def tr_slice(dstreg, a_std, a_tail, off):
    for ks in range(4):
        for u in range(2): A(f"ds_read_b64_tr_b16 {vr(dstreg+4*ks+2*u,2)}, v{a_std} offset:{off+ks*4096+u*512}")
    A(f"ds_read_b64_tr_b16 {vr(dstreg+16,2)}, v{a_tail} offset:{off}")
traddr_std(t, LWQ); traddr_tail(t+2, LWQ)
A(f"s_mul_i32 s{sT0}, s{sW}, 1152\ns_add_u32 s{sT0}, s{sT0}, {LXS}\nv_lshl_add_u32 v{t+4}, v{vL}, 4, s{sT0}")
for r in range(4): A(f"v_mov_b32 v{vP2+4+r}, 0")
A(f"s_cmp_eq_u32 s{sW}, 3\ns_cbranch_scc1 L_w3\ns_waitcnt vmcnt({NK1})\nL_w3:\ns_waitcnt vmcnt({NK1 + NCLR})")
A(f"ds_write_b128 v{t+4}, {vr(vP2,4)}\ns_mov_b64 exec, 0xff\nds_write_b128 v{t+4}, {vr(vP2+4,4)} offset:1024\ns_mov_b64 exec, -1")
A(f"""v_lshlrev_b32 v{vR}, 16, v{vR+2}
v_and_b32 v{vR+1}, 0xffff0000, v{vR+2}
v_lshlrev_b32 v{vR+2}, 16, v{vR+3}
v_and_b32 v{vR+3}, 0xffff0000, v{vR+3}""")
for r in range(4): A(f"v_mul_f32 v{vR+r}, 0x3b800000, v{vR+r}")
A(f"v_lshlrev_b32 v{vB}, 16, v{vB+1}\nv_and_b32 v{vB+1}, 0xffff0000, v{vB+1}")
A(f"s_waitcnt lgkmcnt(0)\ns_and_b32 s{sE1}, s{sE1}, -16\ns_add_u32 s{sE1}, s{sE1}, 16\ns_barrier")
A(f"s_mul_i32 s{sQ0}, s{sX}, {Q0S}\ns_add_u32 s{sQ0}, s{sQ0}, {Q0B}")
stamp(2)
tr_slice(vWQ, t, t+2, 0)
A(f"v_mov_b32 v{vP2}, v{vONE}\nv_mov_b32 v{vP2+1}, v{vONE}\nv_mov_b32 v{vP2+2}, v{vONE}\nv_mov_b32 v{vP2+3}, v{vONE}")
A(f"v_mov_b32 v{vP2+8}, 0\nv_mov_b32 v{vP2+9}, 0\nv_mov_b32 v{vP2+10}, v{vONE}\nv_mov_b32 v{vP2+11}, v{vONE}")
A("s_waitcnt lgkmcnt(0)")
for ks in range(4): A(f"v_mfma_f32_16x16x32_bf16 {vr(vP2+4,4)}, {vr(vP2,4)}, {vr(vWQ+4*ks,4)}, {'0' if ks == 0 else vr(vP2+4,4)}")
A(f"v_mfma_f32_16x16x32_bf16 {vr(vP2+4,4)}, {vr(vP2+8,4)}, {vr(vWQ+14,4)}, {vr(vP2+4,4)}")


NPA, NPB = OPT["npre"], OPT["npreb"]
def wo_dma(i0, i1, v):
    wdma_voff(v, 1152, "wo")
    A(f"""s_lshl_b32 s{sT1}, s{sX}, 1
s_add_u32 s{sT1}, s{sT1}, s{sHALF}
s_lshl_b32 s{sT1}, s{sT1}, 5
s_add_u32 s{sT1}, s{sT1}, s{sW}
s_mul_i32 s{sT1}, s{sT1}, {8*1152}
s_lshl_b32 s{sT2}, s{sCG9}, 7
s_add_u32 s{sT1}, s{sT1}, s{sT2}
s_lshl_b32 s{sT2}, s{sW}, 10
s_add_u32 s{sT2}, s{sT2}, {LR + i0*4096}""")
    if i0: A(f"s_add_u32 s{sT1}, s{sT1}, {i0*32*1152}")
    for i in range(i0, i1):
        dma(rWA, v, sT1, sT2)
        if i < i1 - 1: A(f"s_add_u32 s{sT1}, s{sT1}, {32*1152}\ns_add_u32 s{sT2}, s{sT2}, 4096")
def w1_dma(k0, k1, v):
    wdma_voff(v, 9216, "std")
    A(f"""s_mul_i32 s{sT1}, s{sHALF}, 18
s_add_u32 s{sT1}, s{sT1}, s{sW}
s_mul_i32 s{sT1}, s{sT1}, {8*9216}
s_mul_i32 s{sT2}, s{sX}, 1152
s_add_u32 s{sT1}, s{sT1}, s{sT2}
s_mul_i32 s{sT2}, s{sCG9}, 384
s_add_u32 s{sT1}, s{sT1}, s{sT2}
s_lshl_b32 s{sT2}, s{sW}, 10
s_add_u32 s{sT2}, s{sT2}, {LR}""")
    for k in range(k0, k1):
        i, u = divmod(k, 3)
        if k == 12: A(f"s_cmp_ge_u32 s{sW}, 2\ns_cbranch_scc1 L_w1_issued")
        A(f"s_add_u32 s{sT3}, s{sT1}, {i*32*9216 + u*128}\ns_add_u32 s{sT4}, s{sT2}, {i*4096 + u*18432}")
        dma(rWA, v, sT3, sT4)

def x_gather_addrs(rg_s, a1, a2, aw):
    A(f"""s_mul_i32 s{sT0}, s{rg_s}, 288
s_lshl_b32 s{sT1}, s{sW}, 14
s_add_u32 s{sT0}, s{sT0}, s{sT1}
s_add_u32 s{sT0}, s{sT0}, s{sCOPY}
v_mul_u32_u24 v{a1}, 3641, v{vL}
v_lshrrev_b32 v{a1}, 16, v{a1}
v_mul_u32_u24 v{a2}, 18, v{a1}
v_sub_u32 v{a2}, v{vL}, v{a2}
v_lshlrev_b32 v{a1}, 11, v{a1}
v_lshl_add_u32 v{a1}, v{a2}, 4, v{a1}
v_add_u32 v{a1}, s{sT0}, v{a1}
s_add_u32 s{sT0}, s{sT0}, {3*2048 + 160}
v_and_b32 v{a2}, 7, v{vL}
v_lshl_add_u32 v{a2}, v{a2}, 4, s{sT0}
s_mul_i32 s{sT0}, s{sW}, 1152
s_add_u32 s{sT0}, s{sT0}, {LXS}
v_lshl_add_u32 v{aw}, v{vL}, 4, s{sT0}""")
def ln_read_addrs(ar, at, as1, as3, fa):
    A(f"""v_mov_b32 v{fa+16}, 0
v_mov_b32 v{fa+17}, 0
v_mul_u32_u24 v{ar}, 288, v{vN}
v_lshl_add_u32 v{at}, v{vG}, 3, v{ar}
v_add_u32 v{at}, {LXS + 256}, v{at}
v_lshl_add_u32 v{ar}, v{vG}, 4, v{ar}
v_add_u32 v{ar}, {LXS}, v{ar}
v_lshrrev_b32 v{as3}, 2, v{vL}
v_mul_u32_u24 v{as3}, 288, v{as3}
v_and_b32 v{as1}, 3, v{vL}
v_lshl_add_u32 v{as3}, v{as1}, 3, v{as3}
s_lshl_b32 s{sT0}, s{sW}, 5
s_add_u32 s{sT0}, s{sT0}, {LXS}
v_add_u32 v{as1}, s{sT0}, v{as3}
v_add_u32 v{as3}, {LXS + 256}, v{as3}""")
def hint_wait(off, tmp):
    if not OPT["hint"]: return
    A(f"v_min_u32 v{tmp}, 17, v{vL}\nv_lshlrev_b32 v{tmp}, 2, v{tmp}\nv_add_u32 v{tmp}, {off}, v{tmp}")
    poll(f"buffer_load_dword v{tmp+1}, v{tmp}, {sr(rWS,4)}, s{sXO} offen sc1", [tmp+1], tmp+2)
def x_gather(a1, a2, aw, g0, xoff_s, tmp):
    for r in range(4): A(f"v_mov_b32 v{g0+4+r}, 0")
    poll(f"buffer_load_dwordx4 {vr(g0,4)}, v{a1}, {sr(rWS,4)}, s{xoff_s} offen sc1\ns_mov_b64 exec, 0xff\nbuffer_load_dwordx4 {vr(g0+4,4)}, v{a2}, {sr(rWS,4)}, s{xoff_s} offen sc1\ns_mov_b64 exec, -1",
         range(g0, g0+8), tmp)
    A(f"ds_write_b128 v{aw}, {vr(g0,4)}\ns_mov_b64 exec, 0xff\nds_write_b128 v{aw}, {vr(g0+4,4)} offset:1024\ns_mov_b64 exec, -1\ns_waitcnt lgkmcnt(0)\ns_barrier")
def ln_gemv(nt, wreg, ar, at, as1, as3, fa, fs, acc, sacc, adst, astat, statmask_s):
    A(f"ds_read_b64_tr_b16 {vr(fs,2)}, v{as1}\nds_read_b64_tr_b16 {vr(fs+2,2)}, v{as1} offset:128\nds_read_b64_tr_b16 {vr(fs+4,2)}, v{as3}")
    for ks in range(4): A(f"ds_read_b128 {vr(fa+4*ks,4)}, v{ar} offset:{ks*64}")
    A(f"ds_read_b64 {vr(fa+18,2)}, v{at}")
    A("s_waitcnt lgkmcnt(7)")
    A(f"v_mfma_f32_16x16x16_bf16 {vr(sacc,4)}, {vr(vONE,2)}, {vr(fs,2)}, 0\ns_waitcnt lgkmcnt(6)")
    A(f"v_mfma_f32_16x16x16_bf16 {vr(sacc+4,4)}, {vr(vONE,2)}, {vr(fs+2,2)}, 0\ns_waitcnt lgkmcnt(5)")
    A(f"v_mfma_f32_16x16x16_bf16 {vr(sacc+8,4)}, {vr(vONE3,2)}, {vr(fs+4,2)}, 0")
    seq = []
    for ks in range(5):
        for u in range(nt):
            c = "0" if ks == 0 else vr(acc+4*u, 4)
            if ks < 4: m = f"v_mfma_f32_16x16x32_bf16 {vr(acc+4*u,4)}, {vr(fa+4*ks,4)}, {vr(wreg+18*u+4*ks,4)}, {c}"
            else: m = f"v_mfma_f32_16x16x32_bf16 {vr(acc+4*u,4)}, {vr(fa+16,4)}, {vr(wreg+18*u+14,4)}, {c}"
            seq.append((f"s_waitcnt lgkmcnt({4-ks})\n" if u == 0 else "") + m)
    for m in seq: A(m)
    s1, s2 = fs, fs + 1
    if nt == 1: A("s_nop 1")
    A(f"""v_add_f32 v{s1}, v{sacc}, v{sacc+4}
v_mul_f32 v{s2}, v{sacc}, v{sacc}
v_add_f32 v{s1}, v{s1}, v{sacc+8}
v_fmac_f32 v{s2}, v{sacc+4}, v{sacc+4}
v_fmac_f32 v{s2}, v{sacc+8}, v{sacc+8}
s_nop 1""")
    rowred("v_add_f32", [s1, s2])
    for u in range(nt):
        a = acc + 4*u
        A(f"v_add_f32 v{a}, v{a}, v{a+1}\nv_add_f32 v{a+2}, v{a+2}, v{a+3}")
    for u in range(nt):
        a = acc + 4*u
        A(f"v_add_f32 v{a}, v{a}, v{a+2}")
    if nt == 1:
        a = acc
        A(f"v_mov_b32 v{a+1}, v{a}\ns_nop 1\nv_permlane32_swap_b32 v{a}, v{a+1}\nv_add_f32 v{a}, v{a}, v{a+1}\nv_mov_b32 v{a+1}, v{a}\ns_nop 1\nv_permlane16_swap_b32 v{a}, v{a+1}\nv_add_f32 v{a}, v{a}, v{a+1}")
        m = "0xffff"
    else:
        a, b, c = acc, acc + 4, acc + 8
        A(f"v_mov_b32 v{c+1}, v{c}\ns_nop 0\nv_permlane32_swap_b32 v{a}, v{b}\nv_permlane32_swap_b32 v{c}, v{c+1}\nv_add_f32 v{a}, v{a}, v{b}\nv_add_f32 v{c}, v{c}, v{c+1}\ns_nop 1\nv_permlane16_swap_b32 v{a}, v{c}\nv_add_f32 v{a}, v{a}, v{c}")
        m = mask64(0xffffffff, 0x0000ffff, sT2)
    if nt == 1:
        A(f"s_cmp_eq_u32 s{sPASS}, 0\ns_cbranch_scc1 L_q0_pub")
        T(f"""L_q0_pub:
v_mov_b32 v{acc+1}, s{sE1}
v_mov_b32 v{vP2+5}, s{sE1}
v_mov_b32 v{s1+2}, v{s2}
v_mov_b32 v{s1+1}, s{sE1}
v_mov_b32 v{s1+3}, s{sE1}
v_lshlrev_b32 v{adst}, 1, v{adst}
v_subrev_u32 v{astat}, {QSo}, v{astat}
v_lshlrev_b32 v{astat}, 1, v{astat}
v_add_u32 v{astat}, 0x8000, v{astat}
v_add_u32 v{acc+2}, 0x4000, v{adst}
s_mov_b64 exec, {sr(statmask_s, 2)}
buffer_store_dwordx4 {vr(s1,4)}, v{astat}, {sr(rWS,4)}, s{sQ0} offen sc1
s_mov_b64 exec, 0xffff
buffer_store_dwordx2 {vr(acc,2)}, v{adst}, {sr(rWS,4)}, s{sQ0} offen sc1
buffer_store_dwordx2 {vr(vP2+4,2)}, v{acc+2}, {sr(rWS,4)}, s{sQ0} offen sc1
s_mov_b64 exec, -1
s_branch L_q_pubd""")
    pub(f"buffer_store_dwordx2 {vr(s1,2)}, v{astat}, {sr(rWS,4)}, s{sI} offen", sr(statmask_s, 2))
    pub(f"buffer_store_dword v{acc}, v{adst}, {sr(rWS,4)}, s{sI} offen", m)
    if nt == 1: A("L_q_pubd:")

qa1, qa2, qaw, qar, qat, qas1, qas3, qadst, qastat = t, t+1, t+2, t+3, t+4, t+5+1, t+7, t+8, t+9
def q_out_addrs():
    A(f"""s_lshl_b32 s{sT0}, s{sCG}, 10
s_lshl_b32 s{sT1}, s{sW}, 8
s_add_u32 s{sT0}, s{sT0}, s{sT1}
s_lshl_b32 s{sT1}, s{sRG}, 2
s_add_u32 s{sT0}, s{sT0}, s{sT1}
v_lshl_add_u32 v{qadst}, v{vN}, 4, s{sT0}
s_lshl_b32 s{sT0}, s{sRG}, 5
s_lshl_b32 s{sT1}, s{sW}, 3
s_add_u32 s{sT0}, s{sT0}, s{sT1}
s_add_u32 s{sT0}, s{sT0}, {QSo}
v_mov_b32 v{qastat}, s{sT0}
s_cmp_eq_u32 s{sCG}, 0
s_cselect_b64 s[100:101], 1, 0""")
ln_read_addrs(qar, qat, qas1, qas3, vW); q_out_addrs()
A("s_branch L_q_reads")

A("L_q:")
x_gather_addrs(sRG, qa1, qa2, qaw); ln_read_addrs(qar, qat, qas1, qas3, vW); q_out_addrs()
A(f"s_mov_b32 s{sXO}, s{sI}")
hint_wait(H5o, t+10)
stamp(12)
A(f"s_mov_b32 s{sXO}, {X2O}\ns_mov_b32 s{sPASS}, {PS}\ns_add_u32 s{sI}, s{sIB}, {PS}")
x_gather(qa1, qa2, qaw, vP2, sXO, t+10)
stamp(13)
A("L_q_reads:")
ln_gemv(1, vWQ, qar, qat, qas1, qas3, vW, vW+20, vW+28, vW+32, qadst, qastat, 100)

aq1, aq2, aqw, aqr, apw, amw, apr, amr, avt0, avt1, aop, aml, axr = [t + k for k in range(13)]
gq, gs = vW + 40, vW + 44
A(f"""s_lshr_b32 s{sT0}, s{sJ}, 4
s_lshl_b32 s{sT0}, s{sT0}, 12
v_lshl_add_u32 v{aq1}, v0, 4, s{sT0}
v_lshlrev_b32 v{aq2}, 3, v{vN}
v_add_u32 v{aq2}, {QSo}, v{aq2}
v_lshlrev_b32 v{aqw}, 1, v0
v_add_u32 v{aqw}, {LQ}, v{aqw}
v_lshrrev_b32 v{aqr}, 3, v{vN}
v_lshlrev_b32 v{apr}, 9, v{aqr}
v_lshlrev_b32 v{aqr}, 8, v{aqr}
v_lshl_add_u32 v{aqr}, v{vG}, 4, v{aqr}
v_add_u32 v{aqr}, {LQ}, v{aqr}
v_lshl_add_u32 v{apr}, v{vG}, 4, v{apr}
v_add_u32 v{apr}, {LP}, v{apr}
v_lshrrev_b32 v{amr}, 5, v{vL}
v_lshlrev_b32 v{apw}, 9, v{amr}
v_and_b32 v{amw}, 31, v{vL}
v_lshl_add_u32 v{apw}, v{amw}, 2, v{apw}
s_lshl_b32 s{sT0}, s{sW}, 7
s_add_u32 s{sT0}, s{sT0}, {LP}
v_add_u32 v{apw}, s{sT0}, v{apw}
v_lshlrev_b32 v{amr}, 4, v{amr}
s_lshl_b32 s{sT0}, s{sW}, 2
s_add_u32 s{sT0}, s{sT0}, {LM}
v_add_u32 v{amw}, s{sT0}, v{amr}
v_and_b32 v{avt0}, 3, v{vL}
v_lshl_add_u32 v{amr}, v{avt0}, 2, v{amr}
v_add_u32 v{amr}, {LM}, v{amr}""")
A(f"""v_bfe_u32 v{avt1}, v{vL}, 3, 2
v_bfe_u32 v{aop}, v{vL}, 2, 1
v_lshl_or_b32 v{avt1}, v{aop}, 2, v{avt1}
s_lshl_b32 s{sT0}, s{sW}, 1
v_xor_b32 v{avt1}, s{sT0}, v{avt1}
v_lshlrev_b32 v{avt1}, 5, v{avt1}
v_lshl_add_u32 v{avt0}, v{avt0}, 3, v{avt1}
v_lshl_add_u32 v{avt0}, v{aop}, 12, v{avt0}
v_bfe_u32 v{aop}, v{vL}, 3, 1
v_lshl_add_u32 v{avt0}, v{aop}, 8, v{avt0}
v_lshl_add_u32 v{avt0}, v{vG}, 10, v{avt0}
v_xor_b32 v{avt1}, 32, v{avt0}""")
A(f"""s_lshl_b32 s{sT0}, s{sJ}, 9
s_lshl_b32 s{sT1}, s{sW}, 6
s_add_u32 s{sT0}, s{sT0}, s{sT1}
s_add_u32 s{sT0}, s{sT0}, {OPo}
v_lshrrev_b32 v{aml}, 5, v{vL}
v_lshlrev_b32 v{aop}, 8, v{aml}
v_lshl_add_u32 v{aop}, v{vN}, 2, v{aop}
v_add_u32 v{aop}, s{sT0}, v{aop}
s_lshl_b32 s{sT0}, s{sJ}, 6
s_lshl_b32 s{sT1}, s{sW}, 2
s_add_u32 s{sT0}, s{sT0}, s{sT1}
s_add_u32 s{sT0}, s{sT0}, {MLo}
v_lshl_add_u32 v{aml}, v{aml}, 4, s{sT0}""")
qloads = f"buffer_load_dwordx4 {vr(gq,4)}, v{aq1}, {sr(rWS,4)}, s{sI} offen sc1\nbuffer_load_dwordx2 {vr(gs,2)}, v{aq2}, {sr(rWS,4)}, s{sI} offen sc1"
A(f"s_cmp_lg_u32 s{sPASS}, 0\ns_cbranch_scc1 L_att_poll")
NV1 = OPT["nv1"]
vo = vP2 + 20
A(f"""s_and_b32 s{sT0}, s{sW}, 1
s_lshl_b32 s{sT0}, s{sT0}, 1
v_and_b32 v{vo}, 1, v{vG}
v_or_b32 v{vo}, s{sT0}, v{vo}
v_lshlrev_b32 v{vo}, 1, v{vo}
v_xor_b32 v{vo}, v{vo}, v{vN}
v_lshlrev_b32 v{vo}, 4, v{vo}
v_lshl_add_u32 v{vo}, v{vG}, 8, v{vo}
s_lshl_b32 s{sT3}, s{sW}, 10
v_add_u32 v{vo}, s{sT3}, v{vo}
v_xor_b32 v{vo+1}, 128, v{vo}""")
def vdma(i):
    A(f"s_add_u32 s{sT1}, s{sROT}, {(i & 7)*4096}\ns_and_b32 s{sT1}, s{sT1}, 0x7fff")
    if i >= 8: A(f"s_add_u32 s{sT1}, s{sT1}, 0x8000")
    A(f"s_add_u32 s{sT2}, s{sT1}, s{sT3}")
    dma(rV, vo + (i & 1), sT1, sT2)
ka = vW
A(f"s_lshl_b32 s{sT0}, s{sW}, 14\ns_add_u32 s{sT0}, s{sT0}, {LR}\nv_lshl_add_u32 v{ka+4}, v{vN}, 8, s{sT0}\nv_xor_b32 v{ka+5}, v{vG}, v{vN}")
for ks in range(4): A(f"v_xor_b32 v{ka+ks}, {ks << 2}, v{ka+5}\nv_lshl_add_u32 v{ka+ks}, v{ka+ks}, 4, v{ka+4}")
g0 = vW + 8
grd = vP2 + 24
A(f"v_lshlrev_b32 v{ka+4}, 1, v{aq1}\nv_add_u32 v{ka+5}, 0x4000, v{ka+4}\nv_lshlrev_b32 v{ka+6}, 4, v{vN}\nv_add_u32 v{ka+6}, 0x8000, v{ka+6}")
A(f"s_add_u32 s{sT3}, s{sT3}, {LR}")
for i in range(NK1, 16): kdma(i)
A(f"s_sub_u32 s{sT3}, s{sT3}, {LR}")
NQ = OPT["nq"]
for i in range(NQ): vdma(i)
A(f"""s_cmp_lg_u32 s{sW}, 3
s_cbranch_scc1 L_nordy
s_lshl_b32 s{sT0}, s{sX}, 7
s_lshl_b32 s{sT1}, s{sJ}, 2
s_add_u32 s{sT0}, s{sT0}, s{sT1}
s_add_u32 s{sT0}, s{sT0}, {RDY}
v_mov_b32 v{vo+2}, s{sT0}
s_or_b32 s{sT0}, s{sE1}, s{sXCC}
v_mov_b32 v{vo+3}, s{sT0}
s_mov_b64 exec, 1
s_waitcnt vmcnt({16 - NK1 + NQ + 2})
buffer_store_dword v{vo+3}, v{vo+2}, {sr(rWS,4)}, 0 offen sc1
s_mov_b64 exec, -1
L_nordy:""")
q0loads = f"""buffer_load_dwordx4 {vr(g0,4)}, v{ka+4}, {sr(rWS,4)}, s{sQ0} offen sc1
buffer_load_dwordx4 {vr(g0+4,4)}, v{ka+4}, {sr(rWS,4)}, s{sQ0} offen offset:16 sc1
buffer_load_dwordx4 {vr(g0+8,4)}, v{ka+5}, {sr(rWS,4)}, s{sQ0} offen sc1
buffer_load_dwordx4 {vr(g0+12,4)}, v{ka+5}, {sr(rWS,4)}, s{sQ0} offen offset:16 sc1
buffer_load_dwordx4 {vr(g0+16,4)}, v{ka+6}, {sr(rWS,4)}, s{sQ0} offen sc1"""
A(q0loads)
for i in range(NQ, NV1): vdma(i)
A(f"s_waitcnt vmcnt({NV1 - NQ})\ns_barrier")
stamp(3)
for Tt in range(4):
    for ks in range(4): A(f"ds_read_b128 {vr(vK+16*Tt+4*ks,4)}, v{ka+ks} offset:{Tt*4096}")
A(f"s_mov_b32 s{sCNT}, 0\nL_q0_chk:")
A(f"v_xor_b32 v{ka+7}, s{sE1}, v{g0+1}")
for k in range(1, 10): A(f"v_xor_b32 v{g0+2*k+1}, s{sE1}, v{g0+2*k+1}\nv_or_b32 v{ka+7}, v{ka+7}, v{g0+2*k+1}")
A(f"v_cmp_ne_u32 vcc, 0, v{ka+7}\ns_cbranch_vccnz L_q0_retry")
T(f"L_q0_retry:\ns_add_u32 s{sCNT}, s{sCNT}, 1\ns_cmp_ge_u32 s{sCNT}, {OPT['tmo']}\ns_cbranch_scc1 L_end\n{q0loads}\ns_waitcnt vmcnt(0)\ns_branch L_q0_chk")
for k in range(4): A(f"v_mov_b32 v{gq+k}, v{g0+2*k}")
A(f"v_add_f32 v{vS}, v{g0+8}, v{g0+10}\nv_add_f32 v{gs}, v{g0+12}, v{g0+14}\nv_add_f32 v{vS}, v{vS}, v{gs}\nv_mov_b32 v{gs}, v{g0+16}\nv_mov_b32 v{gs+1}, v{g0+18}\ns_branch L_att_ok")
A("L_att_poll:")
def res_addr(dst, tmp):
    A(f"""v_lshrrev_b32 v{dst}, 2, v{vN}
v_lshlrev_b32 v{dst}, 14, v{dst}
v_and_b32 v{tmp}, 3, v{vN}
v_lshl_add_u32 v{dst}, v{tmp}, 11, v{dst}
v_lshl_add_u32 v{dst}, v{vG}, 4, v{dst}
s_lshl_b32 s{sT0}, s{sCG9}, 7
s_lshr_b32 s{sT1}, s{sW}, 1
s_lshl_b32 s{sT1}, s{sT1}, 6
s_add_u32 s{sT0}, s{sT0}, s{sT1}
s_add_u32 s{sT0}, s{sT0}, s{sCOPY}
v_add_u32 v{dst}, s{sT0}, v{dst}""")
res_addr(axr, t+13)
poll(qloads, range(gq, gq+6), t+13)
gres = t + 16
A(f"buffer_load_dwordx4 {vr(gres,4)}, v{axr}, {sr(rWS,4)}, s{sXO} offen sc1")
A("L_att_ok:")
stamp(4)
mu, cexp = t + 14, t + 15
A(f"v_add_f32 v{gq}, v{gq}, v{gq+1}\nv_add_f32 v{gq+2}, v{gq+2}, v{gq+3}")
rowred("v_add_f32", [gs, gs+1])
A(f"v_add_f32 v{gq}, v{gq}, v{gq+2}\nv_mul_f32 v{mu}, {1/576:.9e}, v{gs}\nv_mul_f32 v{gs+1}, {1/576:.9e}, v{gs+1}")
A(f"v_fma_f32 v{gq}, -v{mu}, v{vS}, v{gq}\nv_fma_f32 v{gs+1}, -v{mu}, v{mu}, v{gs+1}\nv_cvt_pk_bf16_f32 v{gq}, v{gq}, v{gq}\nv_max_f32 v{gs+1}, 0, v{gs+1}")
A(f"ds_write_b16 v{aqw}, v{gq}\nv_add_f32 v{gs+1}, 0x3727c5ac, v{gs+1}\nv_rsq_f32 v{cexp}, v{gs+1}")
A("s_waitcnt lgkmcnt(0)\ns_barrier")
fq, D = vW, vW + 32
for ks in range(4): A(f"ds_read_b128 {vr(fq+4*ks,4)}, v{aqr} offset:{ks*64}")
A(f"v_mul_f32 v{cexp}, {128**-0.5*math.log2(math.e):.9e}, v{cexp}")
def vtr(ks, tau, u): return f"ds_read_b64_tr_b16 {vr(vV+8*ks+4*tau+2*u,2)}, v{avt0+tau} offset:{ks*8192+u*512}"
vq = [vtr(ks, tau, u) for ks in range(4) for tau in range(2) for u in range(2)]
for Tt in range(4):
    for ks in range(4):
        if Tt == 0: A(f"s_waitcnt lgkmcnt({3-ks})")
        A(f"v_mfma_f32_16x16x32_bf16 {vr(D+4*Tt,4)}, {vr(fq+4*ks,4)}, {vr(vK+16*Tt+4*ks,4)}, {'0' if ks == 0 else vr(D+4*Tt,4)}")

sa, sb, um = t + 20, t + 21, t + 13
A(f"s_nop 3\nv_cndmask_b32 v{sa}, v{D}, v{D+8}, {sr(sMODD,2)}\ns_nop 2\nv_cndmask_b32 v{sb}, v{D+4}, v{D+12}, {sr(sMODD,2)}")
A(f"v_max_f32 v{um}, v{sa}, v{sb}\nv_mov_b32 v{mu}, v{um}\ns_nop 1\nv_permlane16_swap_b32 v{um}, v{mu}\nv_max_f32 v{um}, v{um}, v{mu}\ns_nop 1")
rowred("v_max_f32", [um])
A(f"v_sub_f32 v{sa}, v{sa}, v{um}\nv_sub_f32 v{sb}, v{sb}, v{um}\nv_mul_f32 v{sa}, v{sa}, v{cexp}\nv_mul_f32 v{sb}, v{sb}, v{cexp}")
A(f"v_exp_f32 v{sa}, v{sa}\nv_exp_f32 v{sb}, v{sb}\nv_mul_f32 v{um}, v{um}, v{cexp}\nv_cvt_pk_bf16_f32 v{mu}, v{sa}, v{sb}")
A(f"ds_write_b32 v{amw}, v{um}\nds_write_b32 v{apw}, v{mu}")
A(f"v_lshlrev_b32 v{sa}, 16, v{mu}\nv_and_b32 v{sb}, 0xffff0000, v{mu}\nv_add_f32 v{sa}, v{sa}, v{sb}")
A(f"s_cmp_eq_u32 s{sPASS}, 0\ns_cbranch_scc1 L_rdy\ns_waitcnt vmcnt(0)\nL_rdy_back:")
A("s_waitcnt lgkmcnt(0)\ns_barrier")
RDYBLOCK = len(TAIL); T("RDYBLOCK")
stamp(5)
fp, acc = vW, vW + 32
fm = sb
A(f"ds_read_b32 v{fm}, v{amr}")
for ks in range(8): A(f"ds_read_b128 {vr(fp+4*ks,4)}, v{apr} offset:{ks*64}")
vq = [vtr(ks, tau, u) for ks in range(4, 8) for tau in range(2) for u in range(2)]
big = mu
fb = t
side = [f"v_mov_b32 v{cexp}, v{sa}", f"v_max_f32_dpp v{big}, v{fm}, v{fm} {ROWRED[0]} {DPPM}", "s_nop 0",
        f"v_permlane16_swap_b32 v{sa}, v{cexp}", f"v_max_f32_dpp v{big}, v{big}, v{big} {ROWRED[1]} {DPPM}", f"v_add_f32 v{sa}, v{sa}, v{cexp}",
        f"v_sub_f32 v{fm}, v{fm}, v{big}", f"v_sub_f32 v{um}, v{um}, v{big}",
        f"v_add_f32_dpp v{sa}, v{sa}, v{sa} {ROWRED[0]} {DPPM}", f"v_exp_f32 v{fm}, v{fm}", f"v_exp_f32 v{um}, v{um}",
        f"v_add_f32_dpp v{sa}, v{sa}, v{sa} {ROWRED[1]} {DPPM}", f"v_mov_b32_dpp v{fb} , v{fm} row_newbcast:0 {DPPM}", f"v_mov_b32_dpp v{fb+1}, v{fm} row_newbcast:1 {DPPM}",
        f"v_add_f32_dpp v{sa}, v{sa}, v{sa} {ROWRED[2]} {DPPM}", f"v_mov_b32_dpp v{fb+2}, v{fm} row_newbcast:2 {DPPM}", f"v_mov_b32_dpp v{fb+3}, v{fm} row_newbcast:3 {DPPM}",
        f"v_add_f32_dpp v{sa}, v{sa}, v{sa} {ROWRED[3]} {DPPM}", f"v_mul_f32 v{sa}, v{sa}, v{um}"]
issued_after = 0
for ks in range(8):
    if ks < 4: A(f"s_waitcnt lgkmcnt({min(15, 7 - ks + issued_after)})")
    else: A(f"s_waitcnt lgkmcnt({(7 - ks) * 4})")
    for tau in range(2):
        a = acc + 8*(ks >> 1) + 4*tau
        A(f"v_mfma_f32_16x16x32_bf16 {vr(a,4)}, {vr(fp+4*ks,4)}, {vr(vV+8*ks+4*tau,4)}, {'0' if ks % 2 == 0 else vr(a,4)}")
        if vq: A(vq.pop(0)); A(vq.pop(0)); issued_after += 2
        else:
            for _ in range(3):
                if side: A(side.pop(0))
assert not side
o0, o1 = cexp, um
for wv in range(4):
    if wv == 3: A("s_nop 3")
    for tau, o in ((0, o0), (1, o1)):
        op = "v_mul_f32" if wv == 0 else "v_fmac_f32"
        A(f"{op} v{o}, v{fb+wv}, v{acc+8*wv+4*tau}")
A(f"v_cvt_pk_bf16_f32 v{o0}, v{o0}, v{o1}")
m1 = mask64(0x0000ffff, 0x0000ffff, sT2)
pub(f"buffer_store_dword v{o0}, v{aop}, {sr(rWS,4)}, s{sI} offen", m1)
m2 = mask64(1, 1, sT2)
pub(f"buffer_store_dword v{sa}, v{aml}, {sr(rWS,4)}, s{sI} offen", m2)
A(f"v_lshrrev_b32 v{o1}, 5, v{vL}\nv_mul_u32_u24 v{o1}, 12, v{o1}\nv_sub_u32 v{aml}, v{aml}, v{o1}\ns_cmp_eq_u32 s{sW}, 0\ns_cselect_b64 {sr(sT2,2)}, {sr(sT2,2)}, 0")
pub(f"buffer_store_dword v{big}, v{aml}, {sr(rWS,4)}, s{sI} offen offset:32", sr(sT2, 2))
stamp(6)
gv, gva = vP2 + 24, t + 20
gload = f"buffer_load_dwordx4 {vr(gv,4)}, v{gva}, {sr(rWS,4)}, 0 offen sc1"
A(f"s_cmp_lg_u32 s{sPASS}, 0\ns_cbranch_scc1 L_nog\nv_lshlrev_b32 v{gva}, 4, v{vL}\nv_add_u32 v{gva}, {RDY}, v{gva}\n{gload}\nL_nog:")
def gcheck():
    retry, back = uid("gr"), uid("gb")
    a, b = gva + 1, vP2 + 28
    A(f"s_mov_b32 s{sCNT}, 0\n{back}:")
    for r in range(4): A(f"v_xor_b32 v{b+r}, s{sE1}, v{gv+r}")
    A(f"v_or_b32 v{a}, v{b}, v{b+1}\nv_or3_b32 v{a}, v{a}, v{b+2}, v{b+3}\nv_cmp_lt_u32 vcc, 7, v{a}\ns_cbranch_vccnz {retry}")
    T(f"{retry}:\ns_add_u32 s{sCNT}, s{sCNT}, 1\ns_cmp_ge_u32 s{sCNT}, {OPT['tmo']}\ns_cbranch_scc1 L_end\ns_sleep 16\n{gload}\ns_waitcnt vmcnt(0)\ns_branch {back}")
    if OPT["touch"]:
        A(f"""s_and_b32 s{sT0}, s{sW}, 1
s_lshl_b32 s{sT0}, s{sT0}, 20
s_add_u32 s{sT0}, s{sT0}, s{sIB}
s_mul_i32 s{sT1}, s{sJ}, {REST}
v_lshl_add_u32 v{a}, v{vL}, 7, s{sT1}
s_cmp_lt_u32 s{sW}, 2
s_cselect_b64 exec, 0x7f, 0
buffer_load_dword v11, v{a}, {sr(rWS,4)}, s{sT0} offen sc1
s_mov_b64 exec, -1""")
A(f"s_cmp_eq_u32 s{sROLE}, 1\ns_cbranch_scc1 L_roleB\ns_cmp_eq_u32 s{sROLE}, 2\ns_cbranch_scc1 L_roleF")

A(f"s_cmp_lg_u32 s{sPASS}, 0\ns_cbranch_scc1 L_wo_res")
wo_dma(NPA, 8, t)
A(f"s_waitcnt vmcnt({8 - NPA})")
gcheck()
A("s_waitcnt vmcnt(0)\ns_barrier\ns_branch L_wo_go")
A("L_wo_res:")
recheck(f"buffer_load_dwordx4 {vr(gres,4)}, v{axr}, {sr(rWS,4)}, s{sXO} offen sc1", range(gres, gres+4), t)
A(f"v_mfma_f32_16x16x32_bf16 {vr(vR,4)}, {vr(vSEL,4)}, {vr(gres,4)}, 0")
A("L_wo_go:")
wa = t
A(f"""v_bfe_u32 v{wa}, v{vL}, 4, 1
v_bfe_u32 v{wa+1}, v{vL}, 2, 1
v_lshl_or_b32 v{wa}, v{wa+1}, 1, v{wa}
v_xor_b32 v{wa}, s{sW}, v{wa}
v_lshlrev_b32 v{wa}, 5, v{wa}
v_lshl_add_u32 v{wa}, v{wa+1}, 11, v{wa}
v_and_b32 v{wa+1}, 3, v{vL}
v_lshl_add_u32 v{wa}, v{wa+1}, 3, v{wa}
v_bfe_u32 v{wa+1}, v{vL}, 3, 1
v_lshl_add_u32 v{wa}, v{wa+1}, 7, v{wa}
v_lshl_add_u32 v{wa}, v{vG}, 9, v{wa}
v_add_u32 v{wa}, {LR}, v{wa}""")
for kk in range(8):
    for u in range(2): A(f"ds_read_b64_tr_b16 {vr(vW+4*kk+2*u,2)}, v{wa} offset:{kk*4096+u*256}")
go1, gml, gw, gr, gx, gh = t+1, t+2, t+3, t+4, t+5, t+6
A(f"""s_lshl_b32 s{sT0}, s{sHALF}, 13
s_lshl_b32 s{sT1}, s{sW}, 11
s_add_u32 s{sT0}, s{sT0}, s{sT1}
s_add_u32 s{sT0}, s{sT0}, {OPo}
v_lshl_add_u32 v{go1}, v{vL}, 4, s{sT0}
s_lshl_b32 s{sT0}, s{sHALF}, 10
s_add_u32 s{sT0}, s{sT0}, {MLo}
v_lshl_add_u32 v{gml}, v{vN}, 6, s{sT0}
s_mul_i32 s{sT0}, s{sW}, {4*544}
s_add_u32 s{sT0}, s{sT0}, {LOPS}
v_lshrrev_b32 v{gw}, 5, v{vL}
v_mul_u32_u24 v{gw}, 544, v{gw}
v_and_b32 v{gr}, 31, v{vL}
v_lshl_add_u32 v{gw}, v{gr}, 4, v{gw}
v_add_u32 v{gw}, s{sT0}, v{gw}
v_mul_u32_u24 v{gr}, 544, v{vN}
v_lshl_add_u32 v{gr}, v{vG}, 4, v{gr}
v_add_u32 v{gr}, {LOPS}, v{gr}""")
def x_store_addr(dst):
    A(f"""s_lshl_b32 s{sT0}, s{sX}, 1
s_add_u32 s{sT0}, s{sT0}, s{sHALF}
s_lshr_b32 s{sT1}, s{sT0}, 2
s_lshl_b32 s{sT1}, s{sT1}, 14
s_and_b32 s{sT0}, s{sT0}, 3
s_lshl_b32 s{sT0}, s{sT0}, 11
s_add_u32 s{sT0}, s{sT0}, s{sT1}
s_lshl_b32 s{sT1}, s{sCG9}, 7
s_add_u32 s{sT0}, s{sT0}, s{sT1}
s_lshl_b32 s{sT1}, s{sW}, 5
s_add_u32 s{sT0}, s{sT0}, s{sT1}
v_lshl_add_u32 v{dst}, v{vG}, 3, s{sT0}
v_lshl_add_u32 v{dst}, v{vN}, 13, v{dst}""")
def hint_addr(dst, off):
    A(f"s_lshl_b32 s{sT0}, s{sJ}, 2\ns_add_u32 s{sT0}, s{sT0}, {off}\nv_mov_b32 v{dst}, s{sT0}\ns_cmp_eq_u32 s{sW}, 0\ns_cselect_b64 s[100:101], 1, 0")
def hint_send(addr):
    if OPT["hint"]: pub(f"buffer_store_dword v{vL}, v{addr}, {sr(rWS,4)}, s{sI} offen", "s[100:101]")
XM = (0x00030003 if OPT["copies"] == 2 else 0x00010001)
def x_publish(src, addr, xoff):
    A(f"v_cvt_pk_bf16_f32 v{src}, v{src}, v{src+1}\nv_cvt_pk_bf16_f32 v{src+1}, v{src+2}, v{src+3}")
    A(f"s_add_u32 s{sT0}, s{sPASS}, {xoff}\ns_mov_b32 exec_lo, {XM:#x}\ns_mov_b32 exec_hi, {XM:#x}\nbuffer_store_dwordx2 {vr(src,2)}, v{addr}, {sr(rWS,4)}, s{sT0} offen sc1\ns_mov_b64 exec, -1")
x_store_addr(gx); hint_addr(gh, H3o)
ga, gl0, gl1, gm = vP2, vP2 + 8, vP2 + 12, vP2 + 16
poll(f"""buffer_load_dwordx4 {vr(ga,4)}, v{go1}, {sr(rWS,4)}, s{sI} offen sc1
buffer_load_dwordx4 {vr(ga+4,4)}, v{go1}, {sr(rWS,4)}, s{sI} offen offset:1024 sc1
buffer_load_dwordx4 {vr(gl0,4)}, v{gml}, {sr(rWS,4)}, s{sI} offen sc1
buffer_load_dwordx4 {vr(gl1,4)}, v{gml}, {sr(rWS,4)}, s{sI} offen offset:16 sc1
buffer_load_dwordx2 {vr(gm,2)}, v{gml}, {sr(rWS,4)}, s{sI} offen offset:32 sc1""", range(ga, ga+18), t+7)
stamp(7)
A(f"ds_write_b128 v{gw}, {vr(ga,4)}\nds_write_b128 v{gw}, {vr(ga+4,4)} offset:{2*544}")
M0_, M1_ = t+7, t+8
A(f"v_mov_b32 v{M0_}, v{gm}\nv_mov_b32 v{M1_}, v{gm+1}")
A(f"v_add_f32 v{gl0}, v{gl0}, v{gl0+1}\nv_add_f32 v{gl1}, v{gl1}, v{gl1+1}")
A("s_waitcnt lgkmcnt(0)\ns_barrier")
fo, wacc = vW + 32, vP2 + 20
for kk in range(8): A(f"ds_read_b128 {vr(fo+4*kk,4)}, v{gr} offset:{kk*64}")
if OPT["h3pos"] == 0: hint_send(gh)
rowred("v_max_f32", [M0_, M1_])
A(f"v_add_f32 v{gl0+2}, v{gl0+2}, v{gl0+3}\nv_add_f32 v{gl1+2}, v{gl1+2}, v{gl1+3}")
A(f"v_sub_f32 v{gm}, v{gm}, v{M0_}\nv_sub_f32 v{gm+1}, v{gm+1}, v{M1_}\nv_exp_f32 v{gm}, v{gm}\nv_exp_f32 v{gm+1}, v{gm+1}")
side = [f"v_add_f32 v{gl0}, v{gl0}, v{gl0+2}", f"v_add_f32 v{gl1}, v{gl1}, v{gl1+2}", f"v_mul_f32 v{gl0}, v{gl0}, v{gm}", f"v_mul_f32 v{gl1}, v{gl1}, v{gm+1}"]
for p in ROWRED: side += ["s_nop 0", f"v_add_f32_dpp v{gl0}, v{gl0}, v{gl0} {p} {DPPM}", f"v_add_f32_dpp v{gl1}, v{gl1}, v{gl1} {p} {DPPM}"]
side += [f"v_rcp_f32 v{gl0}, v{gl0}", f"v_rcp_f32 v{gl1}, v{gl1}", "s_nop 0", f"v_mul_f32 v{gm}, v{gm}, v{gl0}", f"v_mul_f32 v{gm+1}, v{gm+1}, v{gl1}"]
for kk in range(8):
    a = wacc + 4*(kk >> 2)
    A(f"s_waitcnt lgkmcnt({7-kk})\nv_mfma_f32_16x16x32_bf16 {vr(a,4)}, {vr(vW+4*kk,4)}, {vr(fo+4*kk,4)}, {'0' if kk % 4 == 0 else vr(a,4)}")
    for _ in range(2):
        if side: A(side.pop(0))
for s_ in side: A(s_)
if OPT["h3pos"] == 1: hint_send(gh)
tt = ga
for r in range(4): A(f"v_fma_f32 v{tt+r}, v{gm}, v{wacc+r}, v{vR+r}")
for r in range(4): A(f"v_fmac_f32 v{tt+r}, v{gm+1}, v{wacc+4+r}")
rowred("v_add_f32", [tt, tt+1, tt+2, tt+3])
x_publish(tt, gx, X1O)
if OPT["h3pos"] == 2: hint_send(gh)
stamp(8)
hp, hs, hw, hr, hx, hres, hh = t+1, t+2, t+3, t+4, t+5, t+6, t+7
A(f"""s_mul_i32 s{sT0}, s{sHALF}, {288*16}
s_mul_i32 s{sT1}, s{sW}, {72*16}
s_add_u32 s{sT0}, s{sT0}, s{sT1}
s_add_u32 s{sT0}, s{sT0}, {HPo}
v_min_u32 v{hw}, 35, v{vL}
v_lshl_add_u32 v{hp}, v{hw}, 5, s{sT0}
s_mul_i32 s{sT0}, s{sW}, 144
s_add_u32 s{sT0}, s{sT0}, {LH}
v_lshl_add_u32 v{hw}, v{hw}, 2, s{sT0}
v_lshlrev_b32 v{hs}, 3, v{vN}
v_add_u32 v{hs}, {HSo}, v{hs}
v_lshlrev_b32 v{hr}, 4, v{vG}
v_add_u32 v{hr}, {LH}, v{hr}""")
res_addr(hres, t+8); x_store_addr(hx); hint_addr(hh, H5o)
A(f"s_cmp_lg_u32 s{sPASS}, 0\ns_cbranch_scc1 L_w2_go")
wdma_voff(t+8, 1152, "std")
A(f"""s_lshl_b32 s{sT1}, s{sX}, 1
s_add_u32 s{sT1}, s{sT1}, s{sHALF}
s_mul_i32 s{sT1}, s{sT1}, 36
s_add_u32 s{sT1}, s{sT1}, s{sW}
s_mul_i32 s{sT1}, s{sT1}, {8*1152}
s_lshl_b32 s{sT2}, s{sCG9}, 7
s_add_u32 s{sT1}, s{sT1}, s{sT2}
s_lshl_b32 s{sT2}, s{sW}, 10
s_add_u32 s{sT2}, s{sT2}, {LW2}""")
for i in range(9):
    dma(rW2, t+8, sT1, sT2)
    if i < 8: A(f"s_add_u32 s{sT1}, s{sT1}, {32*1152}\ns_add_u32 s{sT2}, s{sT2}, 4096")
probe()
res_addr(hres, t+8)
A(f"v_add_u32 v{t+8}, {S1o - HPo}, v{hp}")
poll(f"buffer_load_dwordx4 {vr(ga,4)}, v{t+8}, {sr(rWS,4)}, s{sI} offen sc1\nbuffer_load_dwordx4 {vr(ga+4,4)}, v{t+8}, {sr(rWS,4)}, s{sI} offen offset:16 sc1", range(ga, ga+8), t+9)
for k in range(2):
    b = ga + 4*k
    A(f"v_add_f32 v{b}, v{b}, v{b+1}\nv_add_f32 v{b+2}, v{b+2}, v{b+3}\nv_add_f32 v{vS1+k}, v{b}, v{b+2}")
A("s_barrier\nL_w2_go:")
traddr_std(t+8, LW2)
for ks in range(9):
    for u in range(2): A(f"ds_read_b64_tr_b16 {vr(vW+4*ks+2*u,2)}, v{t+8} offset:{ks*4096+u*512}")
gst = ga + 8
poll(f"""buffer_load_dwordx4 {vr(ga,4)}, v{hp}, {sr(rWS,4)}, s{sI} offen sc1
buffer_load_dwordx4 {vr(ga+4,4)}, v{hp}, {sr(rWS,4)}, s{sI} offen offset:16 sc1
buffer_load_dwordx2 {vr(gst,2)}, v{hs}, {sr(rWS,4)}, s{sI} offen sc1""", range(ga, ga+10), t+8)
stamp(9)
gx1 = ga + 12
A(f"buffer_load_dwordx4 {vr(gx1,4)}, v{hres}, {sr(rWS,4)}, s{sPASS} offen sc1")
y0, y1 = ga, ga + 4
for y in (y0, y1): A(f"v_add_f32 v{y}, v{y}, v{y+1}\nv_add_f32 v{y+2}, v{y+2}, v{y+3}")
hmu, hrs = t+8, t+9
stats_finish(gst, gst+1, hmu, hrs)
for y in (y0, y1): A(f"v_add_f32 v{y}, v{y}, v{y+2}")
for k, y in enumerate((y0, y1)): A(f"v_fma_f32 v{y}, -v{hmu}, v{vS1+k}, v{y}")
for k, y in enumerate((y0, y1)): A(f"v_fma_f32 v{y}, v{y}, v{hrs}, v{vB+k}")
A(f"s_mov_b32 s{sT0}, {-math.log2(math.e):.9e}")
for y in (y0, y1): A(f"v_mul_f32 v{y+1}, s{sT0}, abs(v{y})")
for y in (y0, y1): A(f"v_exp_f32 v{y+1}, v{y+1}")
A(f"v_cmp_le_f32 vcc, 0, v{y0}\nv_cmp_le_f32 {sr(sT2,2)}, 0, v{y1}")
for y in (y0, y1): A(f"v_fma_f32 v{y+2}, v{y+1}, 2.0, 1.0\nv_add_f32 v{y+3}, 2.0, v{y+1}")
e0, e1 = t + 10, t + 11
for y, e in ((y0, e0), (y1, e1)): A(f"v_mul_f32 v{y+3}, v{y+3}, v{y+1}\nv_mul_f32 v{e}, v{y+1}, v{y+1}")
A(f"v_cndmask_b32 v{y0+2}, v{y0+3}, v{y0+2}, vcc\nv_cndmask_b32 v{y1+2}, v{y1+3}, v{y1+2}, {sr(sT2,2)}")
A(f"v_cndmask_b32 v{e0}, 1.0, v{e0}, vcc\nv_cndmask_b32 v{e1}, 1.0, v{e1}, {sr(sT2,2)}")
for y, e in ((y0, e0), (y1, e1)): A(f"v_fma_f32 v{e}, v{e}, 2.0, v{y+2}")
for y, e in ((y0, e0), (y1, e1)): A(f"v_rcp_f32 v{e}, v{e}")
for y, e in ((y0, e0), (y1, e1)): A(f"v_mul_f32 v{y}, v{y}, v{y+2}")
for y, e in ((y0, e0), (y1, e1)): A(f"v_mul_f32 v{y}, v{y}, v{e}")
A(f"v_cvt_pk_bf16_f32 v{y0}, v{y0}, v{y1}\nds_write_b32 v{hw}, v{y0}\ns_waitcnt vmcnt(0) lgkmcnt(0)\ns_barrier")
fh = vW + 36
fhr = [vW + 36 + 4*k for k in range(7)] + [ga, ga + 4]
for ks in range(9): A(f"ds_read_b128 {vr(fhr[ks],4)}, v{hr} offset:{ks*64}")
recheck(f"buffer_load_dwordx4 {vr(gx1,4)}, v{hres}, {sr(rWS,4)}, s{sPASS} offen sc1", range(gx1, gx1+4), t+8)
A(f"v_mfma_f32_16x16x32_bf16 {vr(vR,4)}, {vr(vSEL,4)}, {vr(gx1,4)}, 0")
if OPT["h5pos"] == 0: hint_send(hh)
w2acc = ga + 16
side = [f"v_add_f32_dpp v{vR+r}, v{vR+r}, v{vR+r} {p} {DPPM}" for p in ROWRED for r in range(4)]
if not OPT["hint"] or OPT["h5pos"] != 0: A("s_nop 4")
for ks in range(9):
    A(f"s_waitcnt lgkmcnt({8-ks})\nv_mfma_f32_16x16x32_bf16 {vr(w2acc,4)}, {vr(vW+4*ks,4)}, {vr(fhr[ks],4)}, {'0' if ks == 0 else vr(w2acc,4)}")
    if ks >= 1: A(side.pop(0)); A(side.pop(0))
    if ks == 4 and OPT["h5pos"] == 1: hint_send(hh)
A("s_nop 5")
for r in range(4): A(f"v_add_f32 v{w2acc+r}, v{w2acc+r}, v{vR+r}")
x_publish(w2acc, hx, X2O)
if OPT["h5pos"] == 2: hint_send(hh)
stamp(10)
A(f"s_cmp_eq_u32 s{sPASS}, 0\ns_cbranch_scc1 L_q")
A(f"s_or_b32 s{sT0}, s{sX}, s{sHALF}\ns_cmp_lg_u32 s{sT0}, 0\ns_cbranch_scc1 L_done")
A(f"""s_lshl_b32 s{sT0}, s{sCG9}, 7
s_lshl_b32 s{sT1}, s{sW}, 5
s_add_u32 s{sT0}, s{sT0}, s{sT1}
v_lshl_add_u32 v{hx}, v{vG}, 3, s{sT0}
s_mov_b32 s{sXO}, s{sI}""")
hint_wait(H5o, t+10)
A(f"s_mov_b32 s{sXO}, {PS + X2O}")
poll(f"buffer_load_dwordx4 {vr(gx1,4)}, v{hres}, {sr(rWS,4)}, s{sXO} offen sc1", range(gx1, gx1+4), t+10)
A(f"v_mfma_f32_16x16x32_bf16 {vr(vR,4)}, {vr(vSEL,4)}, {vr(gx1,4)}, 0\ns_nop 7")
rowred("v_add_f32", [vR, vR+1, vR+2, vR+3])
for r in range(4): A(f"v_mul_f32 v{vR+r}, 0x41800000, v{vR+r}")
A(f"v_cvt_pk_bf16_f32 v{vR}, v{vR}, v{vR+1}\nv_cvt_pk_bf16_f32 v{vR+1}, v{vR+2}, v{vR+3}")
for _ in range(OPT["xsleep"]): A("s_sleep 127")
if OPT["echo"] >= 0:
    stamp(11)
    A(f"s_nop 1\nv_readlane_b32 s3, v9, {OPT['echo']}\nv_readlane_b32 s70, v9, 0\ns_nop 3\ns_sub_u32 s3, s3, s70\ns_min_u32 s3, s3, 20000\ns_add_u32 s3, s3, s{sST}")
    A(f"L_echo:\ns_memrealtime s[70:71]\ns_waitcnt lgkmcnt(0)\ns_sub_u32 s70, s70, s3\ns_cmp_lt_i32 s70, 0\ns_cbranch_scc1 L_echo")
A(f"s_mov_b32 exec_lo, 0x00010001\ns_mov_b32 exec_hi, 0x00010001\nbuffer_store_dwordx2 {vr(vR,2)}, v{hx}, {sr(rOUT,4)}, 0 offen\ns_mov_b64 exec, -1")
A("s_branch L_done")

A("L_roleB:")
ba1, ba2, baw, bar_, bat, bas1, bas3, badst, bastat = [t + k for k in range(9)]
A(f"s_cmp_lg_u32 s{sPASS}, 0\ns_cbranch_scc1 L_w1_tr")
w1_dma(NPB, 15, t+10)
A(f"L_w1_issued:\ns_waitcnt vmcnt({max(12 - NPB, 0)})")
gcheck()
A("s_waitcnt vmcnt(0)\ns_barrier\nL_w1_tr:")
traddr_std(t+10, LR); traddr_tail(t+12, LR)
for u in range(3): tr_slice(vW + 18*u, t+10, t+12, u*18432)
A(f"""s_mul_i32 s{sT0}, s{sCG9}, {192*16}
s_lshl_b32 s{sT1}, s{sW}, 8
s_add_u32 s{sT0}, s{sT0}, s{sT1}
s_lshl_b32 s{sT1}, s{sHALF}, 2
s_add_u32 s{sT0}, s{sT0}, s{sT1}
s_add_u32 s{sT0}, s{sT0}, {HPo}
v_lshl_add_u32 v{badst}, v{vN}, 4, s{sT0}
v_and_b32 v{bastat}, 1, v{vG}
v_lshl_add_u32 v{badst}, v{bastat}, 11, v{badst}
v_lshrrev_b32 v{bastat}, 1, v{vG}
v_lshl_add_u32 v{badst}, v{bastat}, 10, v{badst}
s_lshl_b32 s{sT0}, s{sHALF}, 5
s_lshl_b32 s{sT1}, s{sW}, 3
s_add_u32 s{sT0}, s{sT0}, s{sT1}
s_add_u32 s{sT0}, s{sT0}, {HSo}
v_mov_b32 v{bastat}, s{sT0}
s_cmp_eq_u32 s{sCG9}, 0
s_cselect_b64 s[100:101], 1, 0""")
x_gather_addrs(sHALF, ba1, ba2, baw); ln_read_addrs(bar_, bat, bas1, bas3, vP2)
A(f"s_cmp_lg_u32 s{sPASS}, 0\ns_cbranch_scc1 L_w1_go")
cs = vP2
for r in range(4): A(f"v_mov_b32 v{cs+r}, v{vONE}")
A(f"v_mov_b32 v{cs+18}, v{vONE}\nv_mov_b32 v{cs+19}, v{vONE}")
A("s_nop 0\ns_waitcnt lgkmcnt(0)")
for u in range(3):
    a = cs + 4 + 4*u
    for ks in range(4): A(f"v_mfma_f32_16x16x32_bf16 {vr(a,4)}, {vr(cs,4)}, {vr(vW+18*u+4*ks,4)}, {'0' if ks == 0 else vr(a,4)}")
    A(f"v_mfma_f32_16x16x32_bf16 {vr(a,4)}, {vr(cs+16,4)}, {vr(vW+18*u+14,4)}, {vr(a,4)}")
A(f"v_add_u32 v{t+10}, {S1o - HPo}, v{badst}\nv_cmp_eq_u32 vcc, 2, v{vG}\ns_nop 6")
A(f"v_cndmask_b32 v{cs+4}, v{cs+4}, v{cs+8}, vcc\nv_cndmask_b32 v{cs+4}, v{cs+4}, v{cs+12}, {sr(sMODD,2)}")
pub(f"buffer_store_dword v{cs+4}, v{t+10}, {sr(rWS,4)}, s{sI} offen", mask64(0xffffffff, 0x0000ffff, sT2))
A("L_w1_go:")
A(f"s_mov_b32 s{sXO}, s{sI}")
hint_wait(H3o, t+10)
stamp(7)
x_gather(ba1, ba2, baw, vP2, sPASS, t+10)
stamp(8)
ln_gemv(3, vW, bar_, bat, bas1, bas3, vP2, vP2+20, t+10, 12, badst, bastat, 100)
stamp(9)
A(f"s_branch L_roleBF\nL_roleF:\ns_cmp_lg_u32 s{sPASS}, 0\ns_cbranch_scc1 L_done\ns_waitcnt vmcnt(0)")
gcheck()
A("L_roleBF:")
A(f"s_cmp_lg_u32 s{sPASS}, 0\ns_cbranch_scc1 L_done")
A(f"v_mov_b32 v{t}, {EPO}\nv_mov_b32 v{t+1}, s{sE1}\ns_lshl_b32 s{sT0}, s2, 2\ns_add_u32 s{sT0}, s{sT0}, s{sW}\ns_cmp_eq_u32 s{sT0}, 1020\ns_cselect_b64 exec, 1, 0")
A(f"buffer_store_dword v{t+1}, v{t}, {sr(rWS,4)}, 0 offen sc1\ns_mov_b64 exec, -1")
probe()
A("s_branch L_q")

A("L_done:")
if PROF:
    stamp(11)
    A(f"s_cmp_lg_u32 s{sW}, 0\ns_cbranch_scc1 L_end\ns_lshl_b32 s{sT0}, s2, 7\ns_add_u32 s{sT0}, s{sT0}, {STAMP}")
    A(f"s_lshr_b32 s3, s{sCOPY}, 12\ns_or_b32 s3, s3, s{sMODE}\nv_writelane_b32 v9, s3, 31\ns_memtime s[72:73]\ns_waitcnt lgkmcnt(0)\ns_sub_u32 s3, s72, s70\nv_writelane_b32 v9, s3, 30\nv_lshlrev_b32 v2, 2, v{vL}\ns_mov_b32 exec_hi, 0")
    A(f"buffer_store_dword v9, v2, {sr(rWS,4)}, s{sT0} offen")
if OPT["dbgout"]:
    A(f"s_cmp_lg_u32 s2, 0\ns_cbranch_scc1 L_end\ns_load_dwordx2 s[4:5], s[0:1], 80\nv_readlane_b32 s3, v9, 0\nv_readlane_b32 s6, v9, 30\ns_nop 1\nv_subrev_u32 v9, s3, v9\nv_writelane_b32 v9, s6, 0")
    A("v_mov_b32 v3, 0\ns_waitcnt lgkmcnt(0)\ns_mov_b64 exec, 1")
    for k, ln in enumerate([0, 1, 2, 3, 4, 6, 7, 8, 9, 10, 29, 20, 22, 24, 26, 27]):
        A(f"v_readlane_b32 s3, v9, {ln}\ns_nop 1\nv_mov_b32 v4, s3\nglobal_store_dword v3, v4, s[4:5] offset:{4*k}")
A("L_end:\ns_endpgm")

_L = L; L = []
rb_, ra_ = vP2 + 28, vP2 + 23
A(f"L_rdy:\ns_lshl_b32 s{sT3}, s{sW}, 10\ns_lshl_b32 s{sT0}, s{sX}, 7\ns_add_u32 s{sT0}, s{sT0}, {RDY}\nv_and_b32 v{ra_}, 31, v{vL}\nv_lshl_add_u32 v{ra_}, v{ra_}, 2, s{sT0}")
xwload = f"buffer_load_dword v{grd}, v{ra_}, {sr(rWS,4)}, 0 offen sc1"
A(xwload)
for i in range(NV1, 16): vdma(i)
A(f"s_mov_b32 s{sCNT}, 0\ns_waitcnt vmcnt({16 - max(NV1, 8)})\ns_barrier")
for ks in range(4):
    for tau in range(2):
        for u in range(2): A(vtr(ks, tau, u))
A("L_rdy_chk:")
A(f"v_xor_b32 v{rb_}, s{sE1}, v{grd}\nv_cmp_lt_u32 vcc, 15, v{rb_}\ns_cbranch_vccz L_rdy_ok")
A(f"s_add_u32 s{sCNT}, s{sCNT}, 1\ns_cmp_ge_u32 s{sCNT}, {OPT['tmo']}\ns_cbranch_scc1 L_end\ns_sleep 8\n{xwload}\ns_waitcnt vmcnt(0)\ns_branch L_rdy_chk\nL_rdy_ok:")
A(f"v_and_b32 v{rb_}, 7, v{rb_}\nv_cmp_ne_u32 vcc, s{sXCC}, v{rb_}\ns_nop 1\ns_cmp_eq_u64 vcc, 0\ns_cselect_b32 s{sMODE}, {OPT['fast']}, 0")
NX = 1 if OPT["touch"] else 0
if NX: A(f"""s_and_b32 s{sT0}, s{sW}, 1
s_lshl_b32 s{sT0}, s{sT0}, 20
s_add_u32 s{sT0}, s{sT0}, s{sIB}
s_lshl_b32 s{sT1}, s{sJ}, 9
s_add_u32 s{sT1}, s{sT1}, {OPo}
s_lshl_b32 s{sT2}, s{sJ}, 6
s_add_u32 s{sT2}, s{sT2}, {MLo}
s_cmp_lt_u32 s{sW}, 2
s_cselect_b32 s{sT1}, s{sT1}, s{sT2}
s_cselect_b64 exec, 15, 1
v_lshl_add_u32 v{ra_}, v{vL}, 7, s{sT1}
buffer_load_dword v11, v{ra_}, {sr(rWS,4)}, s{sT0} offen sc1
s_mov_b64 exec, -1""")
if NPA:
    A(f"s_cmp_lg_u32 s{sROLE}, 0\ns_cbranch_scc1 L_pre_b")
    wo_dma(0, NPA, rb_+2)
    A(f"s_waitcnt vmcnt({NPA + NX})\ns_branch L_rdy_back\nL_pre_b:")
if NPB:
    A(f"s_cmp_lg_u32 s{sROLE}, 1\ns_cbranch_scc1 L_pre_f")
    w1_dma(0, NPB, rb_+2)
    A(f"s_waitcnt vmcnt({NPB + NX})\ns_branch L_rdy_back\nL_pre_f:")
A(f"s_waitcnt vmcnt({NX})\ns_branch L_rdy_back")
TAIL[RDYBLOCK:RDYBLOCK+1] = L
L = _L
body = L + TAIL
NPF = OPT.get("npf", 2)
txt = "\n".join(body)
out.append(txt)
out.append(f""".p2align 8
.fill 1024, 4, 0xbf800000
s_endpgm
.section .rodata,"a"
.p2align 6
.amdhsa_kernel {NAME}_kernel
  .amdhsa_next_free_vgpr 256
  .amdhsa_next_free_sgpr 102
  .amdhsa_accum_offset 256
  .amdhsa_group_segment_fixed_size 0
  .amdhsa_kernarg_size 96
  .amdhsa_user_sgpr_count 2
  .amdhsa_user_sgpr_kernarg_segment_ptr 1
  .amdhsa_system_sgpr_workgroup_id_x 1
  .amdhsa_float_denorm_mode_32 3
.end_amdhsa_kernel""")
print("\n".join(out))
```

```python
import sys, math
OPT = dict(prof=0, fine="", nk1=6, nq=2, nv1=12, nw2=0, nb1=6, nk2=0, q0t=1, fast=1, copies=2, pol=-1, rot=1, ldf="nt", pf=1,
           tmo=1 << 17, h3pos=1, h5pos=1, touch=1, depth=2, warm=0, echo=-1, hdly=0, xnoclr=0, xnoq0=0)
for a in sys.argv[1:]:
    k, v = a.split("=")
    assert k in OPT, k
    OPT[k] = v if k in ("ldf", "fine") else int(v, 0)
NAME = "interleave_layers__sliding_block_cached__dense_activation_mish__decode"
LDF = "" if OPT["ldf"] == "plain" else OPT["ldf"].replace("+", " ")
PROF = OPT["prof"]

L = []; TAIL = []
def A(s):
    for ln in s.split("\n"):
        ln = ln.strip()
        if ln: L.append(ln)
class Tail:
    def __enter__(self):
        global L
        self.save = L; L = []
    def __exit__(self, *e):
        global L
        TAIL.extend(L); L = self.save
_uid = [0]
def uid(p):
    _uid[0] += 1
    return f"L_{p}{_uid[0]}"
def vr(a, n=1): return f"v{a}" if n == 1 else f"v[{a}:{a+n-1}]"
def ar(a, n=1): return f"a{a}" if n == 1 else f"a[{a}:{a+n-1}]"
def sr(a, n=1): return f"s{a}" if n == 1 else f"s[{a}:{a+n-1}]"
DPPM = "row_mask:0xf bank_mask:0xf"
ROWRED = ["quad_perm:[1,0,3,2]", "quad_perm:[2,3,0,1]", "row_half_mirror", "row_mirror"]
def dpp(op, d, s, p): return f"{op}_dpp v{d}, v{s}, v{s} {p} {DPPM}"
def mfma(d, a, b, c): return f"v_mfma_f32_16x16x32_bf16 {d}, {a}, {b}, {c}"

PS = 0x100000
X1O, X2O = 0x00000, 0x10000
IB0 = 0x20000
QPo, HPo, S1o, QSo, HSo, H3o, H5o, OPo, MLo = 0x0000, 0x2000, 0x4400, 0x6800, 0x6880, 0x6900, 0x6980, 0x7000, 0xB000
REST = 0x7000 // 32
Q0B, Q0S = 0xA0000, 0x9000
EPO, RDY, RDY2, PROBE = 0x1B0000, 0x1B1000, 0x1B2000, 0x1C0000
STAMP = 0x200000
WSREC = 0x210000 if PROF else 0x200000
LV, LR, LWQ = 0, 65536, 135168
LW2, LOPS = LR + 32768, LWQ
LQ, LP, LM, LH, LMODE, LXS = 153600, 156800, 158080, 158144, 158784, 158848
LDS_BYTES = 163840
sX, sJ, sW, sPASS, sROLE, sMODE, sCOPY, sIB = 4, 5, 6, 7, 8, 9, 10, 11
rK, rV, rWQ, rWA, rW2, rWS, rXI, rB1, rOUT = 12, 16, 20, 24, 28, 32, 36, 40, 44
mATT, mLN = 48, 50
sT0, sT1, sT2, sT3, sT4, sCNT, sI, sXO = 52, 53, 54, 55, 56, 57, 58, 59
mODDR, sRG, sCG, sST = 60, 62, 63, 64
sE1, sQ0, mW0, mODDL, mROW3 = 68, 69, 70, 72, 90
sHALF, sCG9, sROT, sXCC = 96, 97, 98, 99
WS = sr(rWS, 4)
vL, vN, vG, vONE, vONE3 = 1, 2, 3, 4, 6
vKO, vJUNK, vCS, vC, vMU, vQ0 = 10, 59, 12, 14, 15, 60
vSEL, vR, vB, vS1 = 16, 20, 24, 26
(aX1, aX2, aXW, aXR, aXT, aS1, aS3, aQD, aQS,
 aQ1, aQ2, aQW, aQR, aPW, aMW, aPR, aMR, aOP, aHL,
 aRES, aO1, aML, aOW, aOR, aXS, aHS, aH1, aH2, aHW, aHW2, aHR) = range(28, 59)
aB1, aB2, aBD = aO1, aML, aOW
t = 64
vK = 128
gX, gQ, gQS, gRES, gO, gML, gH, gHI, gX1 = 192, 200, 204, 208, 212, 220, 224, 232, 236
u = 240
cV, cWQ, cWA, cW2, cJUNK = 0, 64, 84, 116, 152
NVGPR = 256 + 160

def stamp(i):
    if PROF == 2 and i != 11: return
    if PROF == 3 and i not in (6, 10, 11): return
    if PROF: A(f"s_memrealtime {sr(sST, 2)}\ns_lshr_b32 s3, s{sPASS}, 16\ns_add_u32 m0, s3, {i}\ns_waitcnt lgkmcnt(0)\nv_writelane_b32 v9, s{sST}, m0")
FREG = [74, 76, 78, 80, 82, 92, 94, 84, 86]
fcount = [0]
def FS(stage):
    if OPT["fine"] == stage:
        A(f"s_memtime s[{FREG[fcount[0]]}:{FREG[fcount[0]]+1}]"); fcount[0] += 1

def srd(r, lo, hi, nbytes):
    if r != lo: A(f"s_mov_b32 s{r}, s{lo}")
    A(f"s_and_b32 s{r+1}, s{hi}, 0xffff\ns_mov_b32 s{r+2}, {nbytes}\ns_mov_b32 s{r+3}, 0x20000")
def mask64(reg, lo, hi): A(f"s_mov_b32 s{reg}, {lo:#x}\ns_mov_b32 s{reg+1}, {hi:#x}")
def sentinel_test(regs, tmp):
    regs = list(regs)
    if len(regs) == 1:
        A(f"v_cmp_eq_u32 vcc, -1, v{regs[0]}"); return
    if len(regs) % 2 == 0: A(f"v_max_u32 v{tmp}, v{regs[0]}, v{regs[1]}"); k = 2
    else: A(f"v_max3_u32 v{tmp}, v{regs[0]}, v{regs[1]}, v{regs[2]}"); k = 3
    while k < len(regs):
        A(f"v_max3_u32 v{tmp}, v{tmp}, v{regs[k]}, v{regs[k+1]}"); k += 2
    A(f"v_cmp_eq_u32 vcc, -1, v{tmp}")
def filler(n):
    for _ in range(n):
        if OPT["warm"]: A(f"v_mfma_f32_16x16x4_f32 {ar(cJUNK,4)}, v{vONE}, v{vONE}, {ar(cJUNK,4)}")
        else: A("s_nop 7")
def poll(loads, regs, tmp, depth=None):
    depth = depth or OPT["depth"]
    n = sum(1 for ln in loads.split("\n") if ln.strip().startswith("buffer_"))
    top = uid("poll")
    A(f"s_mov_b32 s{sCNT}, 0")
    for _ in range(depth - 1):
        A(loads); filler({2: 3, 3: 2}[depth])
    A(f"{top}:")
    A(loads)
    A(f"s_add_u32 s{sCNT}, s{sCNT}, 1\ns_cmp_gt_u32 s{sCNT}, {OPT['tmo']}\ns_cbranch_scc1 L_end")
    if OPT["warm"]: filler(OPT["warm"] if depth > 1 else 3*OPT["warm"])
    A(f"s_waitcnt vmcnt({(depth - 1)*n})")
    sentinel_test(regs, tmp)
    A(f"s_cbranch_vccnz {top}")
def recheck(load, regs, tmp):
    retry, top, back = uid("rc"), uid("rct"), uid("rcb")
    sentinel_test(regs, tmp)
    A(f"s_cbranch_vccnz {retry}\n{back}:")
    with Tail():
        A(f"{retry}:\ns_mov_b32 s{sCNT}, 0\n{top}:\n{load}\ns_waitcnt vmcnt(0)")
        sentinel_test(regs, tmp)
        A(f"s_cbranch_vccz {back}\ns_add_u32 s{sCNT}, s{sCNT}, 1\ns_cmp_lt_u32 s{sCNT}, {OPT['tmo']}\ns_cbranch_scc1 {top}\ns_branch L_end")
def pub(store, mask):
    slow, back = uid("slow"), uid("back")
    A(f"s_cmp_eq_u32 s{sMODE}, 0\ns_mov_b64 exec, {mask}\ns_cbranch_scc1 {slow}\n{store}\n{back}:\ns_mov_b64 exec, -1")
    with Tail(): A(f"{slow}:\n{store} sc1\ns_branch {back}")
def dma(rsrc, voff, soff, lds_s):
    A(f"s_mov_b32 m0, s{lds_s}\ns_nop 0\nbuffer_load_dwordx4 v{voff}, {sr(rsrc,4)}, s{soff} offen {LDF} lds")
def rowred_list(op, regs, steps=ROWRED):
    o = []
    for k, p in enumerate(steps):
        o += [dpp(op, r, r, p) for r in regs]
        if len(regs) < 3 and k < len(steps) - 1: o += ["s_nop 0"] * (3 - len(regs) - 0 if len(regs) == 1 else 1)
    return [x for x in o]
def rowred(op, regs):
    for p in ROWRED:
        for r in regs: A(dpp(op, r, r, p))
        if len(regs) < 3 and p != ROWRED[-1]: A(f"s_nop {2 - len(regs)}")
def weave(main, side, per, start=0):
    side = list(side)
    for k, m in enumerate(main):
        A(m)
        if k >= start:
            for _ in range(per):
                if side: A(side.pop(0))
    for s_ in side: A(s_)

hdr = open("cdna_kernels/" + NAME + ".s.ref").read().split("; Override launch")[0]
out = [hdr.rstrip(), "; Override launch geometry by editing the next line (default: block=256,",
       "; grid=ceil(out_elems/256), lds=0). Harness parses it; keep it on one line.",
       f"; @launch grid=(256,1,1) block=(256,1,1) lds={LDS_BYTES}",
       '.amdgcn_target "amdgcn-amd-amdhsa--gfx950"', ".text", f".globl {NAME}_kernel", ".p2align 8",
       f".type {NAME}_kernel,@function", f"{NAME}_kernel:"]

A("s_cmp_ge_u32 s2, 256\ns_cbranch_scc1 L_end")
if PROF: A(f"s_memrealtime {sr(sST+2,2)}\ns_memtime s[88:89]\nv_mov_b32 v9, 0")
A(f"""s_load_dwordx4 s[{rWQ}:{rWQ+3}], s[0:1], 24
s_load_dwordx2 s[100:101], s[0:1], 0
s_load_dwordx4 s[{rK}:{rK+3}], s[0:1], 8
s_load_dwordx2 s[{rWS}:{rWS+1}], s[0:1], 88
s_load_dwordx4 s[{rXI}:{rXI+3}], s[0:1], 48
s_load_dwordx4 s[{rOUT}:{rOUT+3}], s[0:1], 64
s_and_b32 s{sX}, s2, 7
s_lshr_b32 s{sJ}, s2, 3
v_lshrrev_b32 v{vG}, 6, v0
v_and_b32 v{vL}, 63, v0
v_readfirstlane_b32 s{sW}, v{vG}
v_and_b32 v{vN}, 15, v0
v_bfe_u32 v{vG}, v0, 4, 2
s_and_b32 s{sCG}, s{sJ}, 7
s_lshr_b32 s{sRG}, s{sJ}, 3""")
def wdma_voff(dst, rowbytes, kind):
    if kind == "std": A(f"v_bfe_u32 v{dst}, v{vL}, 4, 1\ns_and_b32 s{sT0}, s{sW}, 1\ns_lshl_b32 s{sT0}, s{sT0}, 1")
    else: A(f"v_lshrrev_b32 v{dst}, 5, v{vL}\ns_and_b32 s{sT0}, s{sW}, 2")
    A(f"""v_or_b32 v{dst}, s{sT0}, v{dst}
v_lshlrev_b32 v{dst}, 1, v{dst}
v_xor_b32 v{dst}, v{dst}, v{vL}
v_and_b32 v{dst}, 7, v{dst}
v_lshlrev_b32 v{dst}, 4, v{dst}
v_lshrrev_b32 v{dst+1}, 3, v{vL}
s_mov_b32 s{sT0}, {rowbytes}
v_mad_u32_u24 v{dst}, v{dst+1}, s{sT0}, v{dst}""")
wdma_voff(t, 8192, "std")
A(f"""s_mul_i32 s{sT0}, s{sW}, 288
v_lshl_add_u32 v{t+2}, v{vL}, 4, s{sT0}
v_cmp_gt_u32 vcc, 18, v{vL}
v_mov_b32 v{t+3}, 0x10000
s_mul_i32 s{sT1}, s{sRG}, {144*8192}
s_lshl_b32 s{sT2}, s{sW}, 16
v_cndmask_b32 v{t+2}, v{t+3}, v{t+2}, vcc
s_add_u32 s{sT1}, s{sT1}, s{sT2}
s_lshl_b32 s{sT2}, s{sX}, 10
s_add_u32 s{sT1}, s{sT1}, s{sT2}
s_lshl_b32 s{sT2}, s{sCG}, 7
s_add_u32 s{sT1}, s{sT1}, s{sT2}
s_lshl_b32 s{sT2}, s{sW}, 10
s_add_u32 s{sT2}, s{sT2}, {LWQ}
s_lshl_b32 s{sT0}, s{sW}, 2
v_add_u32 v{vKO}, s{sT0}, v{vG}
v_xor_b32 v{vKO}, v{vKO}, v{vN}
v_lshlrev_b32 v{vKO}, 4, v{vKO}
v_lshl_add_u32 v{vKO}, v{vG}, 8, v{vKO}
s_lshl_b32 s{sT0}, s{sW}, 10
v_add_u32 v{vKO}, s{sT0}, v{vKO}
s_lshr_b32 s{sT0}, s{sJ}, 4
s_lshl_b32 s{sT3}, s{sX}, 1
s_add_u32 s{sT0}, s{sT0}, s{sT3}
s_lshl_b32 s{sT0}, s{sT0}, 23
s_and_b32 s{sT3}, s{sJ}, 15
s_lshl_b32 s{sT3}, s{sT3}, 16
s_add_u32 s{sT0}, s{sT0}, s{sT3}
s_add_u32 s{sCNT}, s{sT0}, {28672*256}
s_add_u32 s{sT3}, s{sT1}, {128*8192}
s_add_u32 s{sT4}, s{sT2}, {16*1024}
s_waitcnt lgkmcnt(0)
s_mov_b32 s{rWA}, s22
s_mov_b32 s{rWA+1}, s23""")
A(f"s_mov_b64 s[92:93], s[36:37]\ns_mov_b64 s[94:95], s[38:39]")
srd(rXI, 100, 101, 1152)
A(f"buffer_load_dwordx4 {vr(gX,4)}, v{t+2}, {sr(rXI,4)}, 0 offen")
srd(rWQ, 20, 21, 576*4096*2)
A(f"s_cmp_ge_u32 s{sW}, 2\ns_cbranch_scc1 L_wq4")
dma(rWQ, t, sT3, sT4)
A("L_wq4:")
for i in range(4):
    dma(rWQ, t, sT1, sT2)
    if i < 3: A(f"s_add_u32 s{sT1}, s{sT1}, {32*8192}\ns_add_u32 s{sT2}, s{sT2}, 4096")
A(f"s_add_u32 s{rV}, s14, s{sCNT}\ns_addc_u32 s{rV+1}, s15, 0\ns_add_u32 s{rK}, s12, s{sCNT}\ns_addc_u32 s{rK+1}, s13, 0")
srd(rK, rK, rK+1, 65536)
srd(rW2, 44, 45, 4608*576*2); srd(rB1, 94, 95, 4608*2)
A(f"""s_cmp_ge_u32 s{sJ}, 18
s_cselect_b32 s{sROLE}, 1, 0
s_cselect_b32 s{rWA}, s92, s{rWA}
s_cselect_b32 s{rWA+1}, s93, s{rWA+1}
s_mov_b32 s{rWA+2}, {4096*576*2}
s_cselect_b32 s{rWA+2}, {576*4608*2}, s{rWA+2}
s_and_b32 s{rWA+1}, s{rWA+1}, 0xffff
s_mov_b32 s{rWA+3}, 0x20000""")
A(f"s_lshl_b32 s{sROT}, s2, 13" if OPT["rot"] else f"s_mov_b32 s{sROT}, 0")
A(f"s_lshl_b32 s{sT3}, s{sW}, 10\ns_add_u32 s{sT3}, s{sT3}, {LR}")
NK1, NQ, NV1, NW2, NB1, NK2 = OPT["nk1"], OPT["nq"], OPT["nv1"], OPT["nw2"], OPT["nb1"], OPT["nk2"]
def kdma(i):
    A(f"s_add_u32 s{sT1}, s{sROT}, {i*4096}\ns_and_b32 s{sT1}, s{sT1}, 0xffff\ns_add_u32 s{sT2}, s{sT1}, s{sT3}")
    dma(rK, vKO, sT1, sT2)
for i in range(NK1): kdma(i)
srd(rV, rV, rV+1, 65536); srd(rWS, rWS, rWS+1, WSREC); srd(rOUT, 46, 47, 1152)
A(f"""s_mov_b32 s{sT1}, {EPO}
s_buffer_load_dword s{sE1}, {WS}, s{sT1}
s_getreg_b32 s{sXCC}, hwreg(HW_REG_XCC_ID)
s_and_b32 s{sXCC}, s{sXCC}, 7
s_lshl_b32 s{sIB}, s{sX}, 16
s_add_u32 s{sIB}, s{sIB}, {IB0}
s_mov_b32 s{sPASS}, 0
s_mov_b32 s{sMODE}, 0
s_mov_b32 s{sCOPY}, 0
s_mov_b32 s{sI}, s{sIB}
s_mul_i32 s{sQ0}, s{sX}, {Q0S}
s_add_u32 s{sQ0}, s{sQ0}, {Q0B}
s_cmp_ge_u32 s{sJ}, 30
s_cselect_b32 s{sROLE}, 2, s{sROLE}
s_cmp_ge_u32 s{sJ}, 9
s_cselect_b32 s{sHALF}, 1, 0
s_mul_i32 s{sT0}, s{sHALF}, 9
s_sub_u32 s{sCG9}, s{sJ}, s{sT0}
s_sub_u32 s{sT0}, s{sJ}, 18
s_and_b32 s{sT1}, s{sT0}, 3
s_lshr_b32 s{sT0}, s{sT0}, 2
s_and_b32 s{sT0}, s{sT0}, 3
s_cmp_eq_u32 s{sROLE}, 0
s_cselect_b32 s{sHALF}, s{sHALF}, s{sT1}
s_cselect_b32 s{sCG9}, s{sCG9}, s{sT0}""")
if PROF: A(f"v_writelane_b32 v9, s{sST+2}, 0")
NCLR = 4
q4 = vr(u, 4)
A(f"s_cmp_lg_u32 s{sW}, {7 if OPT['xnoclr'] else 3}\ns_cbranch_scc1 L_clrd")
for r in range(4): A(f"v_mov_b32 v{u+r}, -1")
A(f"""s_mul_i32 s{sT1}, s{sJ}, {REST}
v_lshl_add_u32 v{t+6}, v{vL}, 4, s{sT1}
s_lshl_b32 s{sT1}, s{sJ}, 9
s_add_u32 s{sT1}, s{sT1}, {OPo}
v_lshl_add_u32 v{t+7}, v{vL}, 4, s{sT1}
s_lshl_b32 s{sT1}, s{sJ}, 6
s_add_u32 s{sT1}, s{sT1}, {MLo - 512}
v_lshl_add_u32 v{t+8}, v{vL}, 4, s{sT1}
v_cmp_gt_u32 vcc, 32, v{vL}
s_lshl_b32 s{sT1}, s2, 9
v_lshl_add_u32 v{t+9}, v{vL}, 4, s{sT1}
v_cndmask_b32 v{t+7}, v{t+8}, v{t+7}, vcc
s_lshr_b32 s{sT1}, s2, 6
s_lshl_b32 s{sT1}, s{sT1}, 14
s_and_b32 s{sT2}, s2, 63
s_lshl_b32 s{sT2}, s{sT2}, 7
s_add_u32 s{sT1}, s{sT1}, s{sT2}
s_add_u32 s{sT1}, s{sT1}, {PROBE}
v_lshl_add_u32 v{t+8}, v{vL}, 4, s{sT1}
v_lshrrev_b32 v{t+10}, 3, v{vL}
v_mul_u32_u24 v{t+10}, {0x2000 - 128}, v{t+10}
v_add_u32 v{t+8}, v{t+8}, v{t+10}
s_mov_b32 exec_hi, 0xf
buffer_store_dwordx4 {q4}, v{t+7}, {WS}, s{sIB} offen sc1
s_mov_b32 exec_hi, {(1 << (REST//16 - 32)) - 1:#x}
buffer_store_dwordx4 {q4}, v{t+6}, {WS}, s{sIB} offen sc1
s_and_b32 s{sT1}, s2, 3
s_cmp_eq_u32 s{sT1}, 2
s_cselect_b32 s{sT2}, 0xff, -1
s_cmp_eq_u32 s{sT1}, 3
s_cselect_b32 exec_lo, 1, s{sT2}
s_mov_b32 exec_hi, 0
buffer_store_dwordx4 {q4}, v{t+9}, {WS}, 0 offen sc1
s_mov_b32 exec_lo, 0xffff
buffer_store_dwordx4 {q4}, v{t+8}, {WS}, 0 offen sc1
s_mov_b64 exec, -1
L_clrd:""")
if OPT["q0t"]:
    A(f"s_cmp_lg_u32 s{sW}, 2\ns_cbranch_scc1 L_q0t\ns_lshl_b32 s{sT1}, s{sJ}, 9\nv_lshl_add_u32 v{t+6}, v{vL}, 7, s{sT1}\ns_mov_b64 exec, 15\nbuffer_load_dword v8, v{t+6}, {WS}, s{sQ0} offen sc1\ns_mov_b64 exec, -1\nL_q0t:")
stamp(1)
A(f"""v_mov_b32 v{vONE}, 0x3f803f80
v_mov_b32 v{vONE+1}, 0x3f803f80
s_cmp_eq_u32 s{sW}, 0
s_cselect_b32 s{sT0}, 0x3f803f80, 0
s_cselect_b64 {sr(mW0,2)}, 1, 0
v_mov_b32 v{vONE3}, s{sT0}
v_mov_b32 v{vONE3+1}, s{sT0}""")
A(f"v_mov_b32 v{vJUNK}, {1/576:.9e}")
mask64(mODDR, 0xffff0000, 0xffff0000); mask64(mODDL, 0xaaaaaaaa, 0xaaaaaaaa); mask64(mROW3, 0, 0xffff0000)
def traddr_std(dst, base):
    A(f"""v_bfe_u32 v{dst}, v{vL}, 3, 2
v_xor_b32 v{dst}, s{sW}, v{dst}
v_lshlrev_b32 v{dst}, 5, v{dst}
v_and_b32 v{dst+1}, 3, v{vL}
v_lshl_add_u32 v{dst}, v{dst+1}, 3, v{dst}
v_bfe_u32 v{dst+1}, v{vL}, 2, 2
v_lshl_add_u32 v{dst}, v{dst+1}, 7, v{dst}
v_lshl_add_u32 v{dst}, v{vG}, 10, v{dst}
v_add_u32 v{dst}, {base}, v{dst}""")
def traddr_tail(dst, base):
    A(f"""v_bfe_u32 v{dst}, v{vL}, 3, 1
v_and_b32 v{dst+1}, 2, v{vG}
v_or_b32 v{dst}, v{dst}, v{dst+1}
v_xor_b32 v{dst}, s{sW}, v{dst}
v_lshlrev_b32 v{dst}, 5, v{dst}
v_and_b32 v{dst+1}, 3, v{vL}
v_lshl_add_u32 v{dst}, v{dst+1}, 3, v{dst}
v_lshrrev_b32 v{dst+1}, 2, v{vL}
v_lshl_add_u32 v{dst}, v{dst+1}, 7, v{dst}
v_add_u32 v{dst}, {base + 16384}, v{dst}""")
def tr_slice(dst, a_std, a_tail, off):
    for ks in range(4):
        for h in range(2): A(f"ds_read_b64_tr_b16 {ar(dst+4*ks+2*h,2)}, v{a_std} offset:{off+ks*4096+h*512}")
    A(f"ds_read_b64_tr_b16 {ar(dst+16,2)}, v{a_tail} offset:{off}")
traddr_std(t, LWQ); traddr_tail(t+2, LWQ)
def x_addr(dst, idx, rg_s, tmp):
    A(f"""v_mul_u32_u24 v{dst}, 3641, v{idx}
v_lshrrev_b32 v{dst}, 16, v{dst}
v_mul_u32_u24 v{tmp}, 18, v{dst}
v_sub_u32 v{tmp}, v{idx}, v{tmp}
v_lshlrev_b32 v{tmp}, 4, v{tmp}
v_and_b32 v{tmp+1}, 3, v{dst}
v_lshl_add_u32 v{tmp}, v{tmp+1}, 11, v{tmp}
v_lshrrev_b32 v{dst}, 2, v{dst}
v_lshl_add_u32 v{dst}, v{dst}, 14, v{tmp}
s_mul_i32 s{sT0}, s{rg_s}, 288
v_add_u32 v{dst}, s{sT0}, v{dst}""")
A(f"""v_lshlrev_b32 v{aXW}, 4, v0
v_add_u32 v{aXW}, {LXS}, v{aXW}
v_mul_u32_u24 v{aXR}, 288, v{vN}
v_lshl_add_u32 v{aXT}, v{vG}, 3, v{aXR}
v_add_u32 v{aXT}, {LXS + 256}, v{aXT}
v_lshl_add_u32 v{aXR}, v{vG}, 4, v{aXR}
v_add_u32 v{aXR}, {LXS}, v{aXR}
v_lshrrev_b32 v{aS3}, 2, v{vL}
v_mul_u32_u24 v{aS3}, 288, v{aS3}
v_and_b32 v{aS1}, 3, v{vL}
v_lshl_add_u32 v{aS3}, v{aS1}, 3, v{aS3}
s_lshl_b32 s{sT0}, s{sW}, 5
s_add_u32 s{sT0}, s{sT0}, {LXS}
v_add_u32 v{aS1}, s{sT0}, v{aS3}
v_add_u32 v{aS3}, {LXS + 256}, v{aS3}
s_lshl_b32 s{sT0}, s{sCG}, 10
s_lshl_b32 s{sT1}, s{sW}, 8
s_add_u32 s{sT0}, s{sT0}, s{sT1}
s_lshl_b32 s{sT1}, s{sRG}, 2
s_add_u32 s{sT0}, s{sT0}, s{sT1}
v_lshl_add_u32 v{aQD}, v{vN}, 4, s{sT0}
s_lshl_b32 s{sT0}, s{sRG}, 5
s_lshl_b32 s{sT1}, s{sW}, 3
s_add_u32 s{sT0}, s{sT0}, s{sT1}
s_add_u32 s{sT0}, s{sT0}, {QSo}
v_mov_b32 v{aQS}, s{sT0}""")
for r in range(4): A(f"v_mov_b32 v{gX+4+r}, 0")
for r in list(range(aRES, aHR + 1)) + [vS1 + 1]: A(f"v_mov_b32 v{r}, 0")
FA = t + 8
A(f"v_mov_b32 v{FA+16}, 0\nv_mov_b32 v{FA+17}, 0")
for r in range(4): A(f"v_mov_b32 v{t+28+r}, v{vONE}")
A(f"v_mov_b32 v{t+32}, 0\nv_mov_b32 v{t+33}, 0\nv_mov_b32 v{t+34}, v{vONE}\nv_mov_b32 v{t+35}, v{vONE}")
A(f"""v_lshrrev_b32 v{t+4}, 7, v0
v_mul_u32_u24 v{t+4}, 128, v{t+4}
v_lshl_add_u32 v{aQW}, v0, 1, v{t+4}
v_add_u32 v{aQW}, {LQ}, v{aQW}
ds_write_b128 v{aXW}, {vr(gX+4,4)}
ds_write_b16 v{aQW}, v{gX+4} offset:1600
ds_write_b16 v{aQW}, v{gX+4} offset:2400
s_mov_b64 exec, {sr(mW0,2)}
s_mul_i32 exec_lo, exec_lo, -1
ds_write_b128 v{aXW}, {vr(gX+4,4)} offset:4096
s_mov_b64 exec, -1
s_lshl_b32 s{sT0}, s{sW}, 3
s_add_u32 s{sT0}, s{sT0}, {LMODE}
v_mov_b32 v{t+4}, s{sT0}
v_mov_b32 v{t+5}, {LMODE}
s_waitcnt vmcnt({4 + NK1})""")
xf = t + 40
for k in range(4): A(f"v_lshlrev_b32 v{xf+2*k}, 16, v{gX+k}\nv_and_b32 v{xf+2*k+1}, 0xffff0000, v{gX+k}")
A(f"v_add_f32 v{u+4}, v{xf}, v{xf+1}\nv_mul_f32 v{u+5}, v{xf}, v{xf}\nv_fmac_f32 v{u+5}, v{xf+1}, v{xf+1}")
for k in range(2, 8): A(f"v_add_f32 v{u+4}, v{u+4}, v{xf+k}\nv_fmac_f32 v{u+5}, v{xf+k}, v{xf+k}")
A("s_nop 1"); rowred("v_add_f32", [u+4, u+5])
A(f"""v_mov_b32 v{u+6}, v{u+4}
v_mov_b32 v{u+7}, v{u+5}
s_nop 1
v_permlane16_swap_b32 v{u+4}, v{u+6}
v_permlane16_swap_b32 v{u+5}, v{u+7}
v_add_f32 v{u+4}, v{u+4}, v{u+6}
v_add_f32 v{u+5}, v{u+5}, v{u+7}
s_mov_b64 exec, 1
ds_write_b64 v{t+4}, {vr(u+4,2)}
s_mov_b64 exec, -1
s_waitcnt lgkmcnt(0)
s_barrier
ds_read_b128 {vr(u+4,4)}, v{t+5}
ds_read_b128 {vr(u+8,4)}, v{t+5} offset:16
s_and_b32 s{sE1}, s{sE1}, -16
s_add_u32 s{sE1}, s{sE1}, 16
v_lshlrev_b32 v{t+4}, 4, v{vL}
v_add_u32 v{t+4}, {LXS}, v{t+4}
s_waitcnt lgkmcnt(0)
v_add_f32 v{u+4}, v{u+4}, v{u+6}
v_add_f32 v{u+5}, v{u+5}, v{u+7}
v_add_f32 v{u+8}, v{u+8}, v{u+10}
v_add_f32 v{u+9}, v{u+9}, v{u+11}
v_add_f32 v{u+4}, v{u+4}, v{u+8}
v_add_f32 v{u+5}, v{u+5}, v{u+9}
v_mul_f32 v{u+6}, v{vJUNK}, v{u+4}
v_mov_b32 v{gQS}, 0
v_fma_f32 v{u+5}, -v{u+6}, v{u+4}, v{u+5}
v_mul_f32 v{gQS+1}, 0x3d800000, v{u+5}""")
for k in range(8): A(f"v_sub_f32 v{xf+k}, v{xf+k}, v{u+6}")
for k in range(4): A(f"v_cvt_pk_bf16_f32 v{xf+k}, v{xf+2*k}, v{xf+2*k+1}")
A(f"s_cmp_eq_u32 s{sW}, s{sRG}\ns_cselect_b64 exec, 0x3ffff, 0\nds_write_b128 v{t+4}, {vr(xf,4)}\ns_mov_b64 exec, -1")
A(f"s_cmp_eq_u32 s{sW}, {7 if OPT['xnoclr'] else 3}\ns_cbranch_scc1 L_w3\ns_waitcnt vmcnt({NK1 + (1 if False else 0)})\nL_w3:\ns_waitcnt vmcnt({NK1 + NCLR}) lgkmcnt(0)\ns_barrier")
stamp(2)
tr_slice(cWQ, t, t+2, 0)
A(f"s_lshl_b32 s{sT3}, s{sW}, 10\ns_add_u32 s{sT3}, s{sT3}, {LR}")
for i in range(NK1, NK1 + NK2): kdma(i)
CS = t + 36
A("s_waitcnt lgkmcnt(0)")
for ks in range(4): A(mfma(vr(CS,4), vr(t+28,4), ar(cWQ+4*ks,4), "0" if ks == 0 else vr(CS,4)))
A(mfma(vr(CS,4), vr(t+32,4), ar(cWQ+14,4), vr(CS,4)))
A("s_branch L_q_reads")

def hint_wait(imm):
    poll(f"buffer_load_dword v{gHI}, v{aHL}, {WS}, s{sI} offen offset:{imm} sc1", [gHI], None)
    if OPT["hdly"]: filler(OPT["hdly"])
def x_gather(a1, a2, stg):
    other, join = uid("xo"), uid("xj")
    l1 = f"buffer_load_dwordx4 {vr(gX,4)}, v{a1}, {WS}, s{sXO} offen sc1"
    l2 = f"buffer_load_dwordx4 {vr(gX+4,4)}, v{a2}, {WS}, s{sXO} offen sc1"
    A(f"s_cmp_eq_u32 s{sW}, 0\ns_cbranch_scc1 {other}")
    if stg == "q":
        A(f"s_cmp_eq_u32 s{sW}, 1\ns_cbranch_scc1 L_xq1")
        with Tail():
            A(f"L_xq1:\ns_mov_b32 s{sCNT}, 0\nL_xq1_top:\n{l1}\nbuffer_load_dwordx2 {vr(u+12,2)}, v{u+14}, {WS}, 0 offen sc1")
            A(f"s_add_u32 s{sCNT}, s{sCNT}, 1\ns_cmp_gt_u32 s{sCNT}, {OPT['tmo']}\ns_cbranch_scc1 L_end\ns_waitcnt vmcnt(0)")
            sentinel_test(range(gX, gX+4), u)
            A(f"v_cmp_ne_u32 {sr(sT0,2)}, s{sE1}, v{u+12}\nv_cmp_ne_u32 {sr(sT2,2)}, s{sE1}, v{u+13}\ns_nop 0\ns_or_b64 {sr(sT0,2)}, {sr(sT0,2)}, vcc\ns_or_b64 {sr(sT0,2)}, {sr(sT0,2)}, {sr(sT2,2)}")
            A(f"s_cbranch_scc1 L_xq1_top\nds_write_b128 v{aXW}, {vr(gX,4)}\ns_branch {join}")
    poll(l1, range(gX, gX+4), u, 1)
    FS(stg)
    A(f"ds_write_b128 v{aXW}, {vr(gX,4)}\n{join}:")
    with Tail():
        A(f"{other}:")
        poll(l1 + "\n" + l2, range(gX, gX+8), u, 1)
        if OPT["fine"] == stg: A(f"s_memtime s[{FREG[fcount[0]-1]}:{FREG[fcount[0]-1]+1}]")
        A(f"ds_write_b128 v{aXW}, {vr(gX,4)}\ns_mov_b32 exec_hi, 0\nds_write_b128 v{aXW}, {vr(gX+4,4)} offset:4096\ns_mov_b32 exec_hi, -1\ns_branch {join}")
    A("s_waitcnt lgkmcnt(0)\ns_barrier")
    FS(stg)
FSt, ACC, SAC = t + 28, t + 40, t + 52
def stat_reads(): A(f"ds_read_b64_tr_b16 {vr(FSt,2)}, v{aS1}\nds_read_b64_tr_b16 {vr(FSt+2,2)}, v{aS1} offset:128\nds_read_b64_tr_b16 {vr(FSt+4,2)}, v{aS3}")
def frag_reads():
    for ks in range(4): A(f"ds_read_b128 {vr(FA+4*ks,4)}, v{aXR} offset:{ks*64}")
    A(f"ds_read_b64 {vr(FA+18,2)}, v{aXT}")
stat_mfma = [f"v_mfma_f32_16x16x16_bf16 {vr(SAC+4*k,4)}, {vr(vONE if k < 2 else vONE3,2)}, {vr(FSt+2*k,2)}, 0" for k in range(3)]
s1, s2 = u + 2, u + 3
stat_valu = [f"v_add_f32 v{s1}, v{SAC}, v{SAC+4}", f"v_mul_f32 v{s2}, v{SAC}, v{SAC}", f"v_add_f32 v{s1}, v{s1}, v{SAC+8}",
             f"v_fmac_f32 v{s2}, v{SAC+4}, v{SAC+4}", f"v_fmac_f32 v{s2}, v{SAC+8}, v{SAC+8}", "s_nop 0"]
for k, p in enumerate(ROWRED): stat_valu += ["s_nop 0", dpp("v_add_f32", s1, s1, p), dpp("v_add_f32", s2, s2, p)]
def main_mfma(nt, w, first_wait):
    o = []
    for ks in range(5):
        for k in range(nt):
            c = "0" if ks == 0 else vr(ACC+4*k, 4)
            m = mfma(vr(ACC+4*k,4), vr(FA+4*ks,4), ar(w+18*k+(4*ks if ks < 4 else 14),4), c)
            o.append((f"s_waitcnt lgkmcnt({first_wait-ks})\n" if k == 0 else "") + m)
    return o

A("L_q:")
A(f"v_min_u32 v{u+14}, 55, v{vL}\nv_lshlrev_b32 v{u+14}, 3, v{u+14}\nv_add_u32 v{u+14}, {RDY2}, v{u+14}")
hint_wait(128)
stamp(12)
A(f"s_add_u32 s{sXO}, s{sCOPY}, {X2O}\ns_mov_b32 s{sPASS}, {PS}\ns_add_u32 s{sI}, s{sIB}, {PS}")
x_gather(aX1, aX2, "q")
stamp(13)
A("L_q_reads:")
frag_reads(); stat_reads()
for m in main_mfma(1, cWQ, 7): A(m)
FS("q")
a = ACC
A(f"""s_cmp_eq_u32 s{sPASS}, 0
s_nop 6
v_add_f32 v{a}, v{a}, v{a+1}
v_add_f32 v{a+2}, v{a+2}, v{a+3}
v_add_f32 v{a}, v{a}, v{a+2}
v_mov_b32 v{a+1}, v{a}
s_nop 1
v_permlane32_swap_b32 v{a}, v{a+1}
v_add_f32 v{a}, v{a}, v{a+1}
v_mov_b32 v{a+1}, v{a}
s_cbranch_scc1 L_q0_pub
s_nop 0
v_permlane16_swap_b32 v{a}, v{a+1}
v_add_f32 v{a}, v{a}, v{a+1}""")
FS("q")
pub(f"buffer_store_dword v{a}, v{aQD}, {WS}, s{sI} offen", "0xffff")
FS("q")
A("s_waitcnt lgkmcnt(0)")
for m in stat_mfma: A(m)
A("s_nop 6")
for x in stat_valu: A(x)
A(f"s_cmp_eq_u32 s{sCG}, 0\ns_cselect_b64 {sr(sT2,2)}, 1, 0")
pub(f"buffer_store_dwordx2 {vr(s1,2)}, v{aQS}, {WS}, s{sI} offen", sr(sT2,2))
FS("q")
A("L_att_poll:")

with Tail():
    A(f"L_q0_pub:\ns_nop 0\nv_permlane16_swap_b32 v{a}, v{a+1}\nv_add_f32 v{vQ0}, v{a}, v{a+1}")
    q0store = f"buffer_store_dwordx2 {vr(vQ0,2)}, v{vQ0+2}, {WS}, s{sQ0} offen"
    A(f"""v_mov_b32 v{vQ0+1}, s{sE1}
v_lshlrev_b32 v{vQ0+2}, 1, v{aQD}
v_mov_b32 v{vCS}, v{CS}
s_mov_b64 exec, 0xffff
{q0store}
s_mov_b64 exec, -1
s_lshl_b32 s{sT3}, s{sW}, 10
s_add_u32 s{sT3}, s{sT3}, {LR}""")
    for i in range(NK1 + NK2, 16): kdma(i)
    vo = u + 12
    A(f"""s_and_b32 s{sT0}, s{sW}, 1
s_lshl_b32 s{sT0}, s{sT0}, 1
v_and_b32 v{vo}, 1, v{vG}
v_or_b32 v{vo}, s{sT0}, v{vo}
v_lshlrev_b32 v{vo}, 1, v{vo}
v_xor_b32 v{vo}, v{vo}, v{vN}
v_lshlrev_b32 v{vo}, 4, v{vo}
v_lshl_add_u32 v{vo}, v{vG}, 8, v{vo}
s_lshl_b32 s{sT3}, s{sW}, 10
v_add_u32 v{vo}, s{sT3}, v{vo}
v_xor_b32 v{vo+1}, 128, v{vo}""")
    def vdma(i):
        A(f"s_add_u32 s{sT1}, s{sROT}, {(i & 7)*4096}\ns_and_b32 s{sT1}, s{sT1}, 0x7fff")
        if i >= 8: A(f"s_add_u32 s{sT1}, s{sT1}, 0x8000")
        A(f"s_add_u32 s{sT2}, s{sT1}, s{sT3}")
        dma(rV, vo + (i & 1), sT1, sT2)
    for i in range(NQ): vdma(i)
    A(f"""s_cmp_lg_u32 s{sW}, 3
s_cbranch_scc1 L_nordy
s_lshl_b32 s{sT0}, s{sX}, 7
s_lshl_b32 s{sT1}, s{sJ}, 2
s_add_u32 s{sT0}, s{sT0}, s{sT1}
s_add_u32 s{sT0}, s{sT0}, {RDY}
v_mov_b32 v{u+14}, s{sT0}
s_or_b32 s{sT0}, s{sE1}, s{sXCC}
v_mov_b32 v{u+15}, s{sT0}
s_mov_b64 exec, 1
s_waitcnt vmcnt({16 - NK1 + NQ + 1})
buffer_store_dword v{u+15}, v{u+14}, {WS}, 0 offen sc1
s_mov_b64 exec, -1
L_nordy:
s_lshr_b32 s{sT0}, s{sJ}, 4
s_lshl_b32 s{sT0}, s{sT0}, 12
v_lshl_add_u32 v{aQ1}, v0, 4, s{sT0}
v_lshlrev_b32 v{t}, 1, v{aQ1}""")
    g0 = t + 28
    q0loads = f"""buffer_load_dwordx4 {vr(g0,4)}, v{t}, {WS}, s{sQ0} offen sc1
buffer_load_dwordx4 {vr(g0+4,4)}, v{t}, {WS}, s{sQ0} offen offset:16 sc1"""
    if OPT["xnoq0"] < 1: A(q0loads)
    for i in range(NQ, NV1): vdma(i)
    A(f"v_add_u32 v{t+3}, 256, v{vL}\nv_min_u32 v{t+3}, 287, v{t+3}")
    x_addr(aX1, 0, sRG, t+4); x_addr(aX2, t+3, sRG, t+4)
    A(f"""v_lshlrev_b32 v{aQ2}, 3, v{vN}
v_add_u32 v{aQ2}, {QSo}, v{aQ2}
v_lshrrev_b32 v{t+4}, 3, v{vN}
v_mul_u32_u24 v{aPR}, 640, v{t+4}
v_mul_u32_u24 v{aQR}, 384, v{t+4}
v_and_b32 v{t+4}, 3, v{vN}
v_mul_u32_u24 v{t+5}, 800, v{t+4}
v_add_u32 v{aQR}, v{aQR}, v{t+5}
v_lshl_add_u32 v{aQR}, v{vG}, 4, v{aQR}
v_add_u32 v{aQR}, {LQ}, v{aQR}
v_lshl_add_u32 v{aPR}, v{vG}, 4, v{aPR}
v_add_u32 v{aPR}, {LP}, v{aPR}
v_lshrrev_b32 v{t+5}, 5, v{vL}
v_mul_u32_u24 v{aPW}, 640, v{t+5}
v_and_b32 v{aMW}, 31, v{vL}
v_lshl_add_u32 v{aPW}, v{aMW}, 2, v{aPW}
s_lshl_b32 s{sT0}, s{sW}, 7
s_add_u32 s{sT0}, s{sT0}, {LP}
v_add_u32 v{aPW}, s{sT0}, v{aPW}
v_lshlrev_b32 v{aMR}, 4, v{t+5}
s_lshl_b32 s{sT0}, s{sW}, 2
s_add_u32 s{sT0}, s{sT0}, {LM}
v_add_u32 v{aMW}, s{sT0}, v{aMR}
v_lshl_add_u32 v{aMR}, v{t+4}, 2, v{aMR}
v_add_u32 v{aMR}, {LM}, v{aMR}
v_min_u32 v{aHL}, 17, v{vL}
v_lshlrev_b32 v{aHL}, 2, v{aHL}
v_add_u32 v{aHL}, {H3o}, v{aHL}""")
    A(f"""s_lshl_b32 s{sT0}, s{sJ}, 9
s_lshl_b32 s{sT1}, s{sW}, 6
s_add_u32 s{sT0}, s{sT0}, s{sT1}
s_add_u32 s{sT0}, s{sT0}, {OPo}
v_lshlrev_b32 v{aOP}, 8, v{t+5}
v_lshl_add_u32 v{aOP}, v{vN}, 2, v{aOP}
v_add_u32 v{aOP}, s{sT0}, v{aOP}
s_lshl_b32 s{sT0}, s{sJ}, 6
s_add_u32 s{sT0}, s{sT0}, {MLo}
s_lshl_b32 s{sT1}, s{sW}, 2
s_add_u32 s{sT1}, s{sT1}, s{sT0}
v_lshl_add_u32 v{t+4}, v{t+5}, 4, s{sT1}
s_lshl_b32 s{sT1}, s{sW}, 3
s_add_u32 s{sT1}, s{sT1}, s{sT0}
s_add_u32 s{sT1}, s{sT1}, 32
v_lshl_add_u32 v{t+5}, v{t+5}, 2, s{sT1}
v_cndmask_b32 v{t+4}, v{t+4}, v{t+5}, {sr(mODDL,2)}
v_cndmask_b32 v{aOP}, v{aOP}, v{t+4}, {sr(mODDR,2)}
s_mov_b32 s{mATT}, 0x1ffff
s_cmp_lt_u32 s{sW}, 2
s_cselect_b32 s{mATT}, 0x3ffff, s{mATT}
s_mov_b32 s{mATT+1}, s{mATT}""")
    ka = t + 4
    A(f"s_lshl_b32 s{sT0}, s{sW}, 14\ns_add_u32 s{sT0}, s{sT0}, {LR}\nv_lshl_add_u32 v{u+8}, v{vN}, 8, s{sT0}\nv_xor_b32 v{u+9}, v{vG}, v{vN}")
    for ks in range(4): A(f"v_xor_b32 v{ka+ks}, {ks << 2}, v{u+9}\nv_lshl_add_u32 v{ka+ks}, v{ka+ks}, 4, v{u+8}")
    A(f"s_waitcnt vmcnt({NV1 - NQ})\ns_barrier")
    stamp(3)
    for Tt in range(4):
        for ks in range(4): A(f"ds_read_b128 {vr(vK+16*Tt+4*ks,4)}, v{ka+ks} offset:{Tt*4096}")
    A(f"s_mov_b32 s{sCNT}, 0\nL_q0_chk:\nv_xor_b32 v{u+8}, s{sE1}, v{g0+1}")
    for k in range(1, 4): A(f"v_xor_b32 v{g0+2*k+1}, s{sE1}, v{g0+2*k+1}\nv_or_b32 v{u+8}, v{u+8}, v{g0+2*k+1}")
    A(f"v_cmp_ne_u32 vcc, 0, v{u+8}\ns_cbranch_vccz L_q0_ok")
    if OPT["xnoq0"]: A("s_branch L_q0_ok")
    A(f"s_cmp_lg_u32 s{sCNT}, 0\ns_cselect_b64 exec, 0, 0xffff\n{q0store} sc1\ns_mov_b64 exec, -1")
    A(f"s_add_u32 s{sCNT}, s{sCNT}, 1\ns_cmp_ge_u32 s{sCNT}, {OPT['tmo']}\ns_cbranch_scc1 L_end\n{q0loads}\ns_waitcnt vmcnt(0)\ns_branch L_q0_chk\nL_q0_ok:")
    for k in range(4): A(f"v_mov_b32 v{gQ+k}, v{g0+2*k}")
    A("s_branch L_att_ok")

poll(f"buffer_load_dwordx4 {vr(gQ,4)}, v{aQ1}, {WS}, s{sI} offen sc1", range(gQ, gQ+4), u)
qsload = f"buffer_load_dwordx2 {vr(gQS,2)}, v{aQ2}, {WS}, s{sI} offen sc1"
resload2 = f"buffer_load_dwordx4 {vr(gRES,4)}, v{aRES}, {WS}, s{sXO} offen sc1"
A("L_att_ok:")
stamp(4); FS("att")
qv, qh, ql = u, u + 1, u + 2
A(f"""v_add_f32 v{qv}, v{gQ}, v{gQ+1}
v_add_f32 v{qh}, v{gQ+2}, v{gQ+3}
s_cmp_eq_u32 s{sPASS}, 0
v_add_f32 v{qv}, v{qv}, v{qh}
v_cvt_pk_bf16_f32 v{qh}, v{qv}, v{qv}
ds_write_b16 v{aQW}, v{qh}
v_lshlrev_b32 v{ql}, 16, v{qh}
v_sub_f32 v{qv}, v{qv}, v{ql}
v_cvt_pk_bf16_f32 v{qv}, v{qv}, v{qv}
ds_write_b16 v{aQW}, v{qv} offset:800
s_cbranch_scc1 L_att_nold
{qsload}
{resload2}
L_att_nold:""")
FS("att")
A("s_waitcnt lgkmcnt(0)\ns_barrier")
FS("att")
fq, D = t + 28, t + 44
for ks in range(4): A(f"ds_read_b128 {vr(fq+4*ks,4)}, v{aQR} offset:{ks*64}")
qk = [(f"s_waitcnt lgkmcnt({3-ks})\n" if Tt == 0 else "") + mfma(vr(D+4*Tt,4), vr(fq+4*ks,4), vr(vK+16*Tt+4*ks,4), "0" if ks == 0 else vr(D+4*Tt,4))
      for Tt in range(4) for ks in range(4)]
for m in qk[:4]: A(m)
A("s_cbranch_scc1 L_att_nochk\ns_waitcnt vmcnt(1)")
recheck(qsload, [gQS, gQS+1], u+3)
A("L_att_nochk:")
z1, z2 = u + 4, u + 5
side = [dpp("v_add_f32", z1, gQS, ROWRED[0]), dpp("v_add_f32", z2, gQS+1, ROWRED[0])]
for p in ROWRED[1:]: side += [dpp("v_add_f32", z1, z1, p), dpp("v_add_f32", z2, z2, p)]
side += [f"v_mul_f32 v{vMU}, {1/576:.9e}, v{z1}", f"v_mul_f32 v{z2}, {1/576:.9e}, v{z2}", f"v_fma_f32 v{z2}, -v{vMU}, v{vMU}, v{z2}",
         f"v_add_f32 v{D}, v{D}, v{D+1}", f"v_max_f32 v{z2}, 0, v{z2}", f"v_add_f32 v{z2}, 0x3727c5ac, v{z2}", f"v_rsq_f32 v{vC}, v{z2}",
         f"v_add_f32 v{D+2}, v{D+2}, v{D+3}", f"v_mul_f32 v{vC}, {128**-0.5*math.log2(math.e):.9e}, v{vC}",
         f"v_add_f32 v{D+4}, v{D+4}, v{D+5}", f"v_add_f32 v{D+6}, v{D+6}, v{D+7}", f"v_mul_f32 v{vMU}, v{vMU}, v{vC}"]
weave(qk[4:], side, 2)
FS("att")
sa, sb, um, tm = u + 6, u + 7, u + 8, u + 9
A(f"""v_add_f32 v{D+8}, v{D+8}, v{D+9}
v_add_f32 v{D+10}, v{D+10}, v{D+11}
v_cndmask_b32 v{sa}, v{D}, v{D+8}, {sr(mODDR,2)}
v_cndmask_b32 v{tm}, v{D+2}, v{D+10}, {sr(mODDR,2)}
v_mul_f32 v{sa}, v{sa}, v{vC}
v_fma_f32 v{sa}, -v{vMU}, v{tm}, v{sa}
s_nop 1
v_add_f32 v{D+12}, v{D+12}, v{D+13}
v_add_f32 v{D+14}, v{D+14}, v{D+15}
v_cndmask_b32 v{sb}, v{D+4}, v{D+12}, {sr(mODDR,2)}
v_cndmask_b32 v{tm}, v{D+6}, v{D+14}, {sr(mODDR,2)}
v_mul_f32 v{sb}, v{sb}, v{vC}
v_fma_f32 v{sb}, -v{vMU}, v{tm}, v{sb}
v_max_f32 v{um}, v{sa}, v{sb}
v_max_f32 v{tm}, v{sa}, v{sb}
s_nop 1
v_permlane16_swap_b32 v{um}, v{tm}
v_max_f32 v{um}, v{um}, v{tm}
s_nop 1""")
rowred("v_max_f32", [um])
A(f"""v_sub_f32 v{sa}, v{sa}, v{um}
v_sub_f32 v{sb}, v{sb}, v{um}
ds_write_b32 v{aMW}, v{um}
v_exp_f32 v{sa}, v{sa}
v_exp_f32 v{sb}, v{sb}
s_cmp_eq_u32 s{sPASS}, 0
v_cvt_pk_bf16_f32 v{tm}, v{sa}, v{sb}
ds_write_b32 v{aPW}, v{tm}""")
FS("att")
A(f"v_lshlrev_b32 v{sa}, 16, v{tm}\nv_and_b32 v{sb}, 0xffff0000, v{tm}\nv_add_f32 v{sa}, v{sa}, v{sb}\ns_cbranch_scc1 L_rdy")
fp, acc, fm, big, fb = t - 0, t + 32, u + 7, u + 9, u + 10
def pv_head():
    A("s_waitcnt lgkmcnt(0)\ns_barrier")
    A(f"ds_read_b32 v{fm}, v{aMR}")
    for ks in range(8): A(f"ds_read_b128 {vr(fp+4*ks,4)}, v{aPR} offset:{ks*64}")
def pv_mfma(ks, tau):
    a_ = acc + 8*(ks >> 1) + 4*tau
    return mfma(vr(a_,4), vr(fp+4*ks,4), ar(cV+8*ks+4*tau,4), "0" if ks % 2 == 0 else vr(a_,4))
lc = u + 14
pv_side = [f"v_mov_b32 v{lc}, v{sa}", dpp("v_max_f32", big, fm, ROWRED[0]), "s_nop 0",
           f"v_permlane16_swap_b32 v{sa}, v{lc}", dpp("v_max_f32", big, big, ROWRED[1]), f"v_add_f32 v{sa}, v{sa}, v{lc}",
           f"v_sub_f32 v{fm}, v{fm}, v{big}", f"v_sub_f32 v{um}, v{um}, v{big}",
           dpp("v_add_f32", sa, sa, ROWRED[0]), f"v_exp_f32 v{fm}, v{fm}", f"v_exp_f32 v{um}, v{um}",
           dpp("v_add_f32", sa, sa, ROWRED[1]), f"v_mov_b32_dpp v{fb}, v{fm} row_newbcast:0 {DPPM}", f"v_mov_b32_dpp v{fb+1}, v{fm} row_newbcast:1 {DPPM}",
           dpp("v_add_f32", sa, sa, ROWRED[2]), f"v_mov_b32_dpp v{fb+2}, v{fm} row_newbcast:2 {DPPM}", f"v_mov_b32_dpp v{fb+3}, v{fm} row_newbcast:3 {DPPM}",
           dpp("v_add_f32", sa, sa, ROWRED[3]), f"v_mul_f32 v{sa}, v{sa}, v{um}", f"v_cndmask_b32 v{sa}, v{sa}, v{big}, {sr(mODDL,2)}"]
o0, o1 = lc, um
pv_tail = [f"v_mul_f32 v{o0}, v{fb}, v{acc}", f"v_mul_f32 v{o1}, v{fb}, v{acc+4}", f"v_fmac_f32 v{o0}, v{fb+1}, v{acc+8}", f"v_fmac_f32 v{o1}, v{fb+1}, v{acc+12}"]
pv_head()
stamp(5); FS("att")
PVW = {0: 7, 1: 6, 2: 4, 4: 2, 6: 0}
weave([(f"s_waitcnt lgkmcnt({PVW[ks]})\n" if tau == 0 and ks in PVW else "") + pv_mfma(ks, tau) for ks in range(8) for tau in range(2)], pv_side + pv_tail, 2, 0)
A("L_pv_done:")
FS("att")
A(f"""v_fmac_f32 v{o0}, v{fb+2}, v{acc+16}
v_fmac_f32 v{o1}, v{fb+2}, v{acc+20}
v_mov_b32 v{FA+16}, 0
v_mov_b32 v{FA+17}, 0
s_nop 2
v_fmac_f32 v{o0}, v{fb+3}, v{acc+24}
v_fmac_f32 v{o1}, v{fb+3}, v{acc+28}
v_cvt_pk_bf16_f32 v{o0}, v{o0}, v{o1}
v_cndmask_b32 v{o0}, v{o0}, v{sa}, {sr(mODDR,2)}""")
pub(f"buffer_store_dword v{o0}, v{aOP}, {WS}, s{sI} offen", sr(mATT,2))
FS("att"); stamp(6)
A(f"s_cmp_eq_u32 s{sPASS}, 0\ns_cbranch_scc1 L_first\ns_cmp_lg_u32 s{sROLE}, 0\ns_cbranch_scc1 L_roleBF")

def wo_dma(i0, i1, v):
    wdma_voff(v, 1152, "wo")
    A(f"""s_lshl_b32 s{sT1}, s{sX}, 1
s_add_u32 s{sT1}, s{sT1}, s{sHALF}
s_lshl_b32 s{sT1}, s{sT1}, 5
s_add_u32 s{sT1}, s{sT1}, s{sW}
s_mul_i32 s{sT1}, s{sT1}, {8*1152}
s_lshl_b32 s{sT2}, s{sCG9}, 7
s_add_u32 s{sT1}, s{sT1}, s{sT2}
s_lshl_b32 s{sT2}, s{sW}, 10
s_add_u32 s{sT2}, s{sT2}, {LR + i0*4096}""")
    if i0: A(f"s_add_u32 s{sT1}, s{sT1}, {i0*32*1152}")
    for i in range(i0, i1):
        dma(rWA, v, sT1, sT2)
        if i < i1 - 1: A(f"s_add_u32 s{sT1}, s{sT1}, {32*1152}\ns_add_u32 s{sT2}, s{sT2}, 4096")
def w2_dma(i0, i1, v):
    wdma_voff(v, 1152, "std")
    A(f"""s_lshl_b32 s{sT1}, s{sX}, 1
s_add_u32 s{sT1}, s{sT1}, s{sHALF}
s_mul_i32 s{sT1}, s{sT1}, 36
s_add_u32 s{sT1}, s{sT1}, s{sW}
s_mul_i32 s{sT1}, s{sT1}, {8*1152}
s_lshl_b32 s{sT2}, s{sCG9}, 7
s_add_u32 s{sT1}, s{sT1}, s{sT2}
s_lshl_b32 s{sT2}, s{sW}, 10
s_add_u32 s{sT2}, s{sT2}, {LW2 + i0*4096}""")
    if i0: A(f"s_add_u32 s{sT1}, s{sT1}, {i0*32*1152}")
    for i in range(i0, i1):
        dma(rW2, v, sT1, sT2)
        if i < i1 - 1: A(f"s_add_u32 s{sT1}, s{sT1}, {32*1152}\ns_add_u32 s{sT2}, s{sT2}, 4096")
def w1_dma(k0, k1, v, done):
    wdma_voff(v, 9216, "std")
    A(f"""s_mul_i32 s{sT1}, s{sHALF}, 18
s_add_u32 s{sT1}, s{sT1}, s{sW}
s_mul_i32 s{sT1}, s{sT1}, {8*9216}
s_mul_i32 s{sT2}, s{sX}, 1152
s_add_u32 s{sT1}, s{sT1}, s{sT2}
s_mul_i32 s{sT2}, s{sCG9}, 384
s_add_u32 s{sT1}, s{sT1}, s{sT2}
s_lshl_b32 s{sT2}, s{sW}, 10
s_add_u32 s{sT2}, s{sT2}, {LR}""")
    for k in range(k0, k1):
        i, c = divmod(k, 3)
        if k == 12: A(f"s_cmp_ge_u32 s{sW}, 2\ns_cbranch_scc1 {done}")
        A(f"s_add_u32 s{sT3}, s{sT1}, {i*32*9216 + c*128}\ns_add_u32 s{sT4}, s{sT2}, {i*4096 + c*18432}")
        dma(rWA, v, sT3, sT4)

def w1_regs():
    for c in range(3): tr_slice(cWA + 18*c, t+8, t+10, c*18432)
    for r in range(4): A(f"v_mov_b32 v{t+28+r}, v{vONE}")
    A(f"v_mov_b32 v{t+32}, 0\nv_mov_b32 v{t+33}, 0\nv_mov_b32 v{t+34}, v{vONE}\nv_mov_b32 v{t+35}, v{vONE}\ns_nop 0\ns_waitcnt lgkmcnt(0)")
    for c in range(3):
        a_ = ACC + 4*c
        for ks in range(4): A(mfma(vr(a_,4), vr(t+28,4), ar(cWA+18*c+4*ks,4), "0" if ks == 0 else vr(a_,4)))
        A(mfma(vr(a_,4), vr(t+32,4), ar(cWA+18*c+14,4), vr(a_,4)))
    A(f"v_cmp_eq_u32 vcc, 2, v{vG}\ns_nop 6")
    A(f"v_cndmask_b32 v{ACC}, v{ACC}, v{ACC+4}, vcc\nv_cndmask_b32 v{vS1}, v{ACC}, v{ACC+8}, {sr(mODDR,2)}")

with Tail():
    ra_, rb_, avt = t, t + 1, t + 2
    A(f"L_rdy:\ns_lshl_b32 s{sT3}, s{sW}, 10\ns_lshl_b32 s{sT0}, s{sX}, 7\ns_add_u32 s{sT0}, s{sT0}, {RDY}\nv_and_b32 v{ra_}, 31, v{vL}\nv_lshl_add_u32 v{ra_}, v{ra_}, 2, s{sT0}")
    xwload = f"buffer_load_dword v{rb_}, v{ra_}, {WS}, 0 offen sc1"
    A(xwload)
    A(f"s_cmp_eq_u32 s{sROLE}, 1\ns_cbranch_scc1 L_p2b\ns_cmp_eq_u32 s{sROLE}, 2\ns_cbranch_scc1 L_w1_issued")
    A(f"s_lshl_b32 s{sT0}, s{sCG9}, 7\ns_lshl_b32 s{sT1}, s{sW}, 5\ns_add_u32 s{sT0}, s{sT0}, s{sT1}\nv_lshl_add_u32 v{t+4}, v{vG}, 3, s{sT0}\nbuffer_load_dwordx2 {vr(vR+2,2)}, v{t+4}, {sr(rXI,4)}, 0 offen")
    wo_dma(0, 8, t+4)
    if NW2: w2_dma(0, NW2, t+4)
    A("s_branch L_w1_issued\nL_p2b:")
    if NB1: w1_dma(0, NB1, t+4, 'L_w1_issued')
    A(f"L_w1_issued:\ns_lshl_b32 s{sT3}, s{sW}, 10")
    for i in range(NV1, 16): vdma(i)
    gv, gva = gO, gML
    A(f"v_lshlrev_b32 v{gva}, 4, v{vL}\nv_add_u32 v{gva}, {RDY}, v{gva}\nbuffer_load_dwordx4 {vr(gv,4)}, v{gva}, {WS}, 0 offen sc1")
    avt = vKO
    A(f"""v_bfe_u32 v{avt+1}, v{vL}, 3, 2
v_bfe_u32 v{t+4}, v{vL}, 2, 1
v_lshl_or_b32 v{avt+1}, v{t+4}, 2, v{avt+1}
s_lshl_b32 s{sT0}, s{sW}, 1
v_xor_b32 v{avt+1}, s{sT0}, v{avt+1}
v_lshlrev_b32 v{avt+1}, 5, v{avt+1}
v_and_b32 v{avt}, 3, v{vL}
v_lshl_add_u32 v{avt}, v{avt}, 3, v{avt+1}
v_lshl_add_u32 v{avt}, v{t+4}, 12, v{avt}
v_bfe_u32 v{t+4}, v{vL}, 3, 1
v_lshl_add_u32 v{avt}, v{t+4}, 8, v{avt}
v_lshl_add_u32 v{avt}, v{vG}, 10, v{avt}
v_xor_b32 v{avt+1}, 32, v{avt}""")
    def vtr(ks, tau, h): return f"ds_read_b64_tr_b16 {ar(cV+8*ks+4*tau+2*h,2)}, v{avt+tau} offset:{ks*8192+h*512}"
    A(f"s_cmp_eq_u32 s{sROLE}, 1\ns_cbranch_scc1 L_sub\ns_cmp_eq_u32 s{sROLE}, 2\ns_cbranch_scc1 L_sud")
    A(f"""s_and_b32 s{sT0}, s{sW}, 1
s_lshl_b32 s{sT0}, s{sT0}, 1
v_lshrrev_b32 v{t+8}, 3, v{vN}
v_add_u32 v{t+8}, s{sT0}, v{t+8}
v_and_b32 v{t+9}, 1, v{vN}
v_lshlrev_b32 v{t+9}, 4, v{t+9}
v_mov_b32 v{t+10}, 0x3d80
v_lshlrev_b32 v{t+9}, v{t+9}, v{t+10}
v_cmp_eq_u32 vcc, v{t+8}, v{vG}
v_bfe_u32 v{t+10}, v{vN}, 1, 2
s_nop 0
v_cndmask_b32 v{t+9}, 0, v{t+9}, vcc""")
    for r in range(4): A(f"v_cmp_eq_u32 vcc, {r}, v{t+10}\ns_nop 1\nv_cndmask_b32 v{vSEL+r}, 0, v{t+9}, vcc")
    A(f"""v_lshrrev_b32 v{aRES}, 2, v{vN}
v_lshlrev_b32 v{aRES}, 14, v{aRES}
v_and_b32 v{t+8}, 3, v{vN}
v_lshl_add_u32 v{aRES}, v{t+8}, 11, v{aRES}
v_lshl_add_u32 v{aRES}, v{vG}, 4, v{aRES}
s_lshl_b32 s{sT0}, s{sCG9}, 7
s_lshr_b32 s{sT1}, s{sW}, 1
s_lshl_b32 s{sT1}, s{sT1}, 6
s_add_u32 s{sT0}, s{sT0}, s{sT1}
v_add_u32 v{aRES}, s{sT0}, v{aRES}
s_lshl_b32 s{sT0}, s{sHALF}, 13
s_lshl_b32 s{sT1}, s{sW}, 11
s_add_u32 s{sT0}, s{sT0}, s{sT1}
s_add_u32 s{sT0}, s{sT0}, {OPo}
v_lshl_add_u32 v{aO1}, v{vL}, 4, s{sT0}
s_lshl_b32 s{sT0}, s{sHALF}, 10
s_add_u32 s{sT0}, s{sT0}, {MLo}
v_lshl_add_u32 v{aML}, v{vN}, 6, s{sT0}
v_min_u32 v{t+8}, 2, v{vG}
v_lshl_add_u32 v{aML}, v{t+8}, 4, v{aML}
s_mul_i32 s{sT0}, s{sW}, {4*544}
s_add_u32 s{sT0}, s{sT0}, {LOPS}
v_lshrrev_b32 v{aOW}, 5, v{vL}
v_mul_u32_u24 v{aOW}, 544, v{aOW}
v_and_b32 v{t+8}, 31, v{vL}
v_lshl_add_u32 v{aOW}, v{t+8}, 4, v{aOW}
v_add_u32 v{aOW}, s{sT0}, v{aOW}
v_mul_u32_u24 v{aOR}, 544, v{vN}
v_lshl_add_u32 v{aOR}, v{vG}, 4, v{aOR}
v_add_u32 v{aOR}, {LOPS}, v{aOR}
s_lshl_b32 s{sT0}, s{sX}, 1
s_add_u32 s{sT0}, s{sT0}, s{sHALF}
s_lshr_b32 s{sT1}, s{sT0}, 2
s_lshl_b32 s{sT1}, s{sT1}, 14
s_and_b32 s{sT0}, s{sT0}, 3
s_lshl_b32 s{sT0}, s{sT0}, 11
s_add_u32 s{sT0}, s{sT0}, s{sT1}
s_lshl_b32 s{sT1}, s{sCG9}, 7
s_add_u32 s{sT0}, s{sT0}, s{sT1}
s_lshl_b32 s{sT1}, s{sW}, 5
s_add_u32 s{sT0}, s{sT0}, s{sT1}
v_lshl_add_u32 v{aXS}, v{vG}, 3, s{sT0}
v_lshl_add_u32 v{aXS}, v{vN}, 13, v{aXS}
s_lshl_b32 s{sT0}, s{sJ}, 2
s_add_u32 s{sT0}, s{sT0}, {H3o}
v_mov_b32 v{aHS}, s{sT0}
s_mul_i32 s{sT0}, s{sHALF}, {288*16}
s_mul_i32 s{sT1}, s{sW}, {72*16}
s_add_u32 s{sT0}, s{sT0}, s{sT1}
s_add_u32 s{sT0}, s{sT0}, {HPo}
v_lshl_add_u32 v{aH1}, v{vL}, 4, s{sT0}
s_add_u32 s{sT0}, s{sT0}, 1024
v_lshl_add_u32 v{aH2}, v{vN}, 4, s{sT0}
v_lshlrev_b32 v{t+8}, 4, v{vN}
v_add_u32 v{t+8}, {HSo - 128}, v{t+8}
v_cmp_gt_u32 vcc, 8, v{vN}
s_mul_i32 s{sT0}, s{sW}, 144
s_add_u32 s{sT0}, s{sT0}, {LH}
v_cndmask_b32 v{aH2}, v{t+8}, v{aH2}, vcc
v_lshl_add_u32 v{aHW}, v{vL}, 1, s{sT0}
s_add_u32 s{sT0}, s{sT0}, 128
v_lshl_add_u32 v{aHW2}, v{vN}, 1, s{sT0}
v_mov_b32 v{t+8}, {LH + 576}
v_cndmask_b32 v{aHW2}, v{t+8}, v{aHW2}, vcc
v_lshlrev_b32 v{aHR}, 4, v{vG}
v_add_u32 v{aHR}, {LH}, v{aHR}""")
    A(f"""v_bfe_u32 v{t+8}, v{vL}, 4, 1
v_bfe_u32 v{t+9}, v{vL}, 2, 1
v_lshl_or_b32 v{t+8}, v{t+9}, 1, v{t+8}
v_xor_b32 v{t+8}, s{sW}, v{t+8}
v_lshlrev_b32 v{t+8}, 5, v{t+8}
v_lshl_add_u32 v{t+8}, v{t+9}, 11, v{t+8}
v_and_b32 v{t+9}, 3, v{vL}
v_lshl_add_u32 v{t+8}, v{t+9}, 3, v{t+8}
v_bfe_u32 v{t+9}, v{vL}, 3, 1
v_lshl_add_u32 v{t+8}, v{t+9}, 7, v{t+8}
v_lshl_add_u32 v{t+8}, v{vG}, 9, v{t+8}
v_add_u32 v{t+8}, {LR}, v{t+8}
""")
    A("s_branch L_sud\nL_sub:")
    A(f"v_add_u32 v{t+11}, 256, v{vL}\nv_min_u32 v{t+11}, 287, v{t+11}")
    x_addr(aB1, 0, sHALF, t+12); x_addr(aB2, t+11, sHALF, t+12)
    A(f"""s_mul_i32 s{sT0}, s{sCG9}, {192*16}
s_lshl_b32 s{sT1}, s{sW}, 8
s_add_u32 s{sT0}, s{sT0}, s{sT1}
s_lshl_b32 s{sT1}, s{sHALF}, 2
s_add_u32 s{sT0}, s{sT0}, s{sT1}
s_add_u32 s{sT0}, s{sT0}, {HPo}
v_lshl_add_u32 v{aBD}, v{vN}, 4, s{sT0}
v_and_b32 v{t+8}, 1, v{vG}
v_lshl_add_u32 v{aBD}, v{t+8}, 11, v{aBD}
v_lshrrev_b32 v{t+8}, 1, v{vG}
v_lshl_add_u32 v{aBD}, v{t+8}, 10, v{aBD}
v_add_u32 v{vS1+1}, {S1o - HPo}, v{aBD}
s_lshl_b32 s{sT0}, s{sHALF}, 5
s_lshl_b32 s{sT1}, s{sW}, 3
s_add_u32 s{sT0}, s{sT0}, s{sT1}
s_add_u32 s{sT0}, s{sT0}, {HSo}
v_lshl_add_u32 v{t+8}, v{vN}, 2, s{sT0}
v_cndmask_b32 v{aBD}, v{aBD}, v{t+8}, {sr(mROW3,2)}
s_mov_b32 s{mLN}, -1
s_mov_b32 s{mLN+1}, 0xffff
s_cmp_eq_u32 s{sCG9}, 0
s_cselect_b32 s{mLN+1}, 0x3ffff, s{mLN+1}""")
    traddr_std(t+8, LR); traddr_tail(t+10, LR)
    A("L_sud:")
    A(f"s_mov_b32 s{sCNT}, 0\ns_waitcnt vmcnt({17 - max(NV1, 8)})\ns_barrier")
    for ks in range(4):
        for tau in range(2):
            for h in range(2): A(vtr(ks, tau, h))
    A(f"L_rdy_chk:\nv_xor_b32 v{t+4}, s{sE1}, v{rb_}\nv_cmp_lt_u32 vcc, 15, v{t+4}\ns_cbranch_vccz L_rdy_ok")
    A(f"s_add_u32 s{sCNT}, s{sCNT}, 1\ns_cmp_ge_u32 s{sCNT}, {OPT['tmo']}\ns_cbranch_scc1 L_end\ns_sleep 8\n{xwload}\ns_waitcnt vmcnt(0)\ns_branch L_rdy_chk\nL_rdy_ok:")
    A(f"v_cmp_ne_u32 vcc, s{sXCC}, v{t+4}\ns_nop 1\ns_cmp_eq_u64 vcc, 0\ns_cselect_b32 s{sMODE}, {OPT['fast']}, 0")
    A(f"s_cmp_lg_u32 s{sMODE}, 0\ns_cbranch_scc1 L_nore\ns_mov_b64 exec, 0xffff\n{q0store} sc1\ns_mov_b64 exec, -1\ns_waitcnt vmcnt(0)\nL_nore:")
    NX = 1 if OPT["touch"] else 0
    if NX: A(f"""s_lshl_b32 s{sT1}, s{sJ}, 9
s_lshl_b32 s{sT2}, s{sW}, 7
s_add_u32 s{sT1}, s{sT1}, s{sT2}
s_add_u32 s{sT1}, s{sT1}, {OPo}
s_lshl_b32 s{sT2}, s{sJ}, 6
s_add_u32 s{sT2}, s{sT2}, {MLo}
v_mov_b32 v{ra_}, s{sT1}
v_writelane_b32 v{ra_}, s{sT2}, 1
s_mov_b64 exec, 3
buffer_load_dword v8, v{ra_}, {WS}, s{sIB} offen sc1
s_mov_b64 exec, -1""")
    A(f"s_cmp_eq_u32 s{sROLE}, 1\ns_cbranch_scc1 L_trb\ns_cmp_eq_u32 s{sROLE}, 2\ns_cbranch_scc1 L_trd")
    for kk in range(8):
        for h in range(2): A(f"ds_read_b64_tr_b16 {ar(cWA+4*kk+2*h,2)}, v{t+8} offset:{kk*4096+h*256}")
    A(f"v_lshlrev_b32 v{vR}, 16, v{vR+2}\nv_and_b32 v{vR+1}, 0xffff0000, v{vR+2}\nv_lshlrev_b32 v{vR+2}, 16, v{vR+3}\nv_and_b32 v{vR+3}, 0xffff0000, v{vR+3}")
    for r in range(4): A(f"v_mul_f32 v{vR+r}, 0x3b800000, v{vR+r}")
    A("s_branch L_trd\nL_trb:")
    if NB1 == 15: w1_regs()
    A(f"L_trd:\ns_waitcnt vmcnt({NX + 1})")
    pv_head()
    stamp(5)
    vq = [vtr(ks, tau, h) for ks in range(4, 8) for tau in range(2) for h in range(2)]
    side = pv_side + pv_tail; n_after = 0
    for ks in range(8):
        A(f"s_waitcnt lgkmcnt({min(15, 7 - ks + n_after) if ks < 4 else (7 - ks)*4})")
        for tau in range(2):
            A(pv_mfma(ks, tau))
            if vq: A(vq.pop(0)); A(vq.pop(0)); n_after += 2
            else:
                for _ in range(3):
                    if side: A(side.pop(0))
    assert not side
    A("s_branch L_pv_done")

A("s_waitcnt vmcnt(1)")
recheck(resload2, range(gRES, gRES+4), u)
A(mfma(vr(vR,4), vr(vSEL,4), vr(gRES,4), "0"))
A("L_wo_go:")
poll(f"""buffer_load_dwordx4 {vr(gO,4)}, v{aO1}, {WS}, s{sI} offen sc1
buffer_load_dwordx4 {vr(gO+4,4)}, v{aO1}, {WS}, s{sI} offen offset:1024 sc1
buffer_load_dwordx4 {vr(gML,4)}, v{aML}, {WS}, s{sI} offen sc1""", range(gO, gO+12), u)
stamp(7); FS("wo")
ls, mm, m2, M_ = u, u + 1, u + 2, u + 3
A(f"""ds_write_b128 v{aOW}, {vr(gO,4)}
ds_write_b128 v{aOW}, {vr(gO+4,4)} offset:{2*544}
v_cndmask_b32 v{mm}, v{gML}, v{gML+1}, {sr(mODDR,2)}
v_cndmask_b32 v{m2}, v{gML}, v{gML+1}, {sr(mODDR,2)}
v_add_f32 v{ls}, v{gML}, v{gML+1}
v_add_f32 v{M_}, v{gML+2}, v{gML+3}
v_permlane32_swap_b32 v{mm}, v{m2}
v_add_f32 v{ls}, v{ls}, v{M_}
s_nop 0""")
A(dpp("v_max_f32", M_, m2, ROWRED[0]))
for p in ROWRED[1:]: A("s_nop 1\n" + dpp("v_max_f32", M_, M_, p))
A(f"v_sub_f32 v{m2}, v{m2}, v{M_}\nv_exp_f32 v{m2}, v{m2}")
FS("wo")
A("s_waitcnt lgkmcnt(0)\ns_barrier")
FS("wo")
fo, wacc = t + 28, u + 8
for kk in range(8): A(f"ds_read_b128 {vr(fo+4*kk,4)}, v{aOR} offset:{kk*64}")
def hint_send(imm): pub(f"buffer_store_dword v{vL}, v{aHS}, {WS}, s{sI} offen offset:{imm}", sr(mW0,2))
w0, w1_ = m2, mm
A(f"v_mul_f32 v{ls}, v{ls}, v{m2}\ns_nop 1\n{dpp('v_add_f32', ls, ls, ROWRED[0])}\ns_nop 1\n{dpp('v_add_f32', ls, ls, ROWRED[1])}")
FS("wo")
side = [dpp("v_add_f32", ls, ls, ROWRED[2]), dpp("v_add_f32", ls, ls, ROWRED[3]), f"v_rcp_f32 v{ls}, v{ls}",
        f"v_mul_f32 v{w0}, v{m2}, v{ls}\nv_mov_b32 v{M_}, v{w0}", f"v_permlane32_swap_b32 v{w0}, v{M_}\nv_mov_b32 v{w1_}, v{w0}", f"v_permlane16_swap_b32 v{w0}, v{w1_}"]
wom = [f"s_waitcnt lgkmcnt({7-kk})\n" + mfma(vr(wacc+4*(kk >> 2),4), ar(cWA+4*kk,4), vr(fo+4*kk,4), "0" if kk % 4 == 0 else vr(wacc+4*(kk >> 2),4)) for kk in range(8)]
weave(wom, side, 1)
FS("wo")
if OPT["h3pos"] == 1: hint_send(0)
else: A("s_nop 0")
tt = u + 4
for r in range(4): A(f"v_fma_f32 v{tt+r}, v{w0}, v{wacc+r}, v{vR+r}")
if OPT["h3pos"] != 1: A("s_nop 2")
for r in range(4): A(f"v_fmac_f32 v{tt+r}, v{w1_}, v{wacc+4+r}")
rowred("v_add_f32", [tt, tt+1, tt+2, tt+3])
XM = 0x00030003 if OPT["copies"] == 2 else 0x00010001
def x_publish(src, xoff):
    A(f"s_add_u32 s{sT0}, s{sPASS}, {xoff}\nv_cvt_pk_bf16_f32 v{src}, v{src}, v{src+1}\ns_mov_b32 exec_lo, {XM:#x}\ns_mov_b32 exec_hi, {XM:#x}\nv_cvt_pk_bf16_f32 v{src+1}, v{src+2}, v{src+3}")
    A(f"buffer_store_dwordx2 {vr(src,2)}, v{aXS}, {WS}, s{sT0} offen sc1\ns_mov_b64 exec, -1")
FS("wo")
x_publish(tt, X1O)
FS("wo")
if OPT["h3pos"] == 2: hint_send(0)
stamp(8)
A(f"s_cmp_eq_u32 s{sPASS}, 0\ns_cbranch_scc1 L_w2_first\nL_w2_go:\ns_add_u32 s{sXO}, s{sPASS}, s{sCOPY}")
hloads = f"buffer_load_dwordx4 {vr(gH,4)}, v{aH1}, {WS}, s{sI} offen sc1\nbuffer_load_dwordx4 {vr(gH+4,4)}, v{aH2}, {WS}, s{sI} offen sc1"
poll(hloads, range(gH, gH+8), u)
stamp(9); FS("w2")
resload1 = f"buffer_load_dwordx4 {vr(gX1,4)}, v{aRES}, {WS}, s{sXO} offen sc1"
y0, y1, z1, z2, hmu, hrs = u, u + 4, u + 8, u + 9, u + 10, u + 11
A(f"""v_add_f32 v{z1}, v{gH+4}, v{gH+6}
v_add_f32 v{z2}, v{gH+5}, v{gH+7}
{resload1}
v_add_f32 v{y0}, v{gH}, v{gH+1}
{dpp("v_add_f32", hmu, z1, ROWRED[0])}
{dpp("v_add_f32", hrs, z2, ROWRED[0])}
v_add_f32 v{y0+1}, v{gH+2}, v{gH+3}
{dpp("v_add_f32", hmu, hmu, ROWRED[1])}
{dpp("v_add_f32", hrs, hrs, ROWRED[1])}
v_add_f32 v{y1}, v{z1}, v{z2}
{dpp("v_add_f32", hmu, hmu, ROWRED[2])}
{dpp("v_add_f32", hrs, hrs, ROWRED[2])}
v_add_f32 v{y0}, v{y0}, v{y0+1}
v_mul_f32_dpp v{hmu}, v{hmu}, v{vJUNK} row_newbcast:15 {DPPM}
v_mul_f32_dpp v{hrs}, v{hrs}, v{vJUNK} row_newbcast:15 {DPPM}
v_fma_f32 v{hrs}, -v{hmu}, v{hmu}, v{hrs}
v_fma_f32 v{y0}, -v{hmu}, v{vS1}, v{y0}
v_max_f32 v{hrs}, 0, v{hrs}
v_add_f32 v{hrs}, 0x3727c5ac, v{hrs}
v_rsq_f32 v{hrs}, v{hrs}
v_fma_f32 v{y1}, -v{hmu}, v{vS1+1}, v{y1}
s_mov_b32 s{sT0}, {-math.log2(math.e):.9e}
v_fma_f32 v{y0}, v{y0}, v{hrs}, v{vB}
v_fma_f32 v{y1}, v{y1}, v{hrs}, v{vB+1}""")
FS("w2")
e0, e1 = z1, z2
for y in (y0, y1): A(f"v_mul_f32 v{y+1}, s{sT0}, abs(v{y})")
for y in (y0, y1): A(f"v_exp_f32 v{y+1}, v{y+1}")
A(f"v_cmp_le_f32 vcc, 0, v{y0}\nv_cmp_le_f32 {sr(sT2,2)}, 0, v{y1}")
for y in (y0, y1): A(f"v_fma_f32 v{y+2}, v{y+1}, 2.0, 1.0\nv_add_f32 v{y+3}, 2.0, v{y+1}")
for y, e in ((y0, e0), (y1, e1)): A(f"v_mul_f32 v{y+3}, v{y+3}, v{y+1}\nv_mul_f32 v{e}, v{y+1}, v{y+1}")
A(f"v_cndmask_b32 v{y0+2}, v{y0+3}, v{y0+2}, vcc\nv_cndmask_b32 v{y1+2}, v{y1+3}, v{y1+2}, {sr(sT2,2)}")
A(f"v_cndmask_b32 v{e0}, 1.0, v{e0}, vcc\nv_cndmask_b32 v{e1}, 1.0, v{e1}, {sr(sT2,2)}")
for y, e in ((y0, e0), (y1, e1)): A(f"v_fma_f32 v{e}, v{e}, 2.0, v{y+2}")
for y, e in ((y0, e0), (y1, e1)): A(f"v_rcp_f32 v{e}, v{e}")
for y, e in ((y0, e0), (y1, e1)): A(f"v_mul_f32 v{y}, v{y}, v{y+2}")
for y, e in ((y0, e0), (y1, e1)): A(f"v_mul_f32 v{y}, v{y}, v{e}")
A(f"v_cvt_pk_bf16_f32 v{y0}, v{y0}, v{y1}\nds_write_b16 v{aHW}, v{y0}\nds_write_b16_d16_hi v{aHW2}, v{y0}")
FS("w2")
A("s_waitcnt lgkmcnt(0)\ns_barrier")
FS("w2")
fh, w2acc = t + 28, u + 4
for ks in range(9): A(f"ds_read_b128 {vr(fh+4*ks,4)}, v{aHR} offset:{ks*64}")
A("s_waitcnt vmcnt(0)")
recheck(resload1, range(gX1, gX1+4), u+1)
A(mfma(vr(vR,4), vr(vSEL,4), vr(gX1,4), "0"))
FS("w2")
if OPT["h5pos"] == 0: hint_send(128)
side = [dpp("v_add_f32", vR+r, vR+r, p) for p in ROWRED for r in range(4)]
for ks in range(9):
    A(f"s_waitcnt lgkmcnt({8-ks})")
    A(mfma(vr(w2acc,4), ar(cW2+4*ks,4), vr(fh+4*ks,4), "0" if ks == 0 else vr(w2acc,4)))
    if ks >= 3:
        for _ in range(2): A(side.pop(0))
    if ks == 4 and OPT["h5pos"] == 1: hint_send(128)
FS("w2")
for x in side: A(x)
if OPT["h5pos"] == 3: hint_send(128)
else: A("s_nop 1")
for r in range(4): A(f"v_add_f32 v{w2acc+r}, v{w2acc+r}, v{vR+r}")
x_publish(w2acc, X2O)
FS("w2")
if OPT["h5pos"] == 2: hint_send(128)
stamp(10)
A(f"s_cmp_eq_u32 s{sPASS}, 0\ns_cbranch_scc1 L_q")
A(f"""s_or_b32 s{sT0}, s{sX}, s{sHALF}
s_cmp_lg_u32 s{sT0}, 0
s_cbranch_scc1 L_done
s_lshl_b32 s{sT0}, s{sCG9}, 7
s_lshl_b32 s{sT1}, s{sW}, 5
s_add_u32 s{sT0}, s{sT0}, s{sT1}
v_lshl_add_u32 v{aXS}, v{vG}, 3, s{sT0}
s_add_u32 s{sXO}, s{sCOPY}, {PS + X2O}""")
hint_wait(128)
poll(resload2, range(gRES, gRES+4), u, 1)
A(mfma(vr(vR,4), vr(vSEL,4), vr(gRES,4), "0") + "\ns_nop 7")
rowred("v_add_f32", [vR, vR+1, vR+2, vR+3])
for r in range(4): A(f"v_mul_f32 v{vR+r}, 0x41800000, v{vR+r}")
A(f"v_cvt_pk_bf16_f32 v{vR}, v{vR}, v{vR+1}\nv_cvt_pk_bf16_f32 v{vR+1}, v{vR+2}, v{vR+3}")
if OPT["echo"] >= 0:
    stamp(11)
    A(f"s_nop 1\nv_readlane_b32 s3, v9, {OPT['echo']}\nv_readlane_b32 s84, v9, 0\ns_nop 3\ns_sub_u32 s3, s3, s84\ns_min_u32 s3, s3, 20000\ns_add_u32 s3, s3, s{sST}")
    A(f"L_echo:\ns_memrealtime s[84:85]\ns_waitcnt lgkmcnt(0)\ns_sub_u32 s84, s84, s3\ns_cmp_lt_i32 s84, 0\ns_cbranch_scc1 L_echo")
A(f"s_mov_b32 exec_lo, 0x00010001\ns_mov_b32 exec_hi, 0x00010001\nbuffer_store_dwordx2 {vr(vR,2)}, v{aXS}, {sr(rOUT,4)}, 0 offen\ns_mov_b64 exec, -1\ns_branch L_done")

A(f"L_roleBF:\ns_cmp_lg_u32 s{sROLE}, 1\ns_cbranch_scc1 L_done\nL_w1_go:\ns_add_u32 s{sXO}, s{sPASS}, s{sCOPY}")
hint_wait(0)
stamp(7)
x_gather(aB1, aB2, "w1")
stamp(8)
stat_reads(); frag_reads()
for k, m in enumerate(stat_mfma): A(f"s_waitcnt lgkmcnt({7-k})\n{m}")
FS("w1")
weave(main_mfma(3, cWA, 4), stat_valu + [f"v_cndmask_b32 v{s1}, v{s1}, v{s2}, {sr(mODDL,2)}"], 2, 4)
FS("w1")
a, b, c = ACC, ACC + 4, ACC + 8
A(f"""s_nop 3
v_add_f32 v{a}, v{a}, v{a+1}
v_add_f32 v{a+2}, v{a+2}, v{a+3}
v_add_f32 v{b}, v{b}, v{b+1}
v_add_f32 v{b+2}, v{b+2}, v{b+3}
v_add_f32 v{c}, v{c}, v{c+1}
v_add_f32 v{c+2}, v{c+2}, v{c+3}
v_add_f32 v{a}, v{a}, v{a+2}
v_add_f32 v{b}, v{b}, v{b+2}
v_add_f32 v{c+1}, v{c}, v{c+2}
v_add_f32 v{c}, v{c}, v{c+2}
v_permlane32_swap_b32 v{a}, v{b}
v_add_f32 v{a}, v{a}, v{b}
v_permlane32_swap_b32 v{c}, v{c+1}
v_add_f32 v{c}, v{c}, v{c+1}
s_nop 1
v_permlane16_swap_b32 v{a}, v{c}
v_add_f32 v{a}, v{a}, v{c}
v_cndmask_b32 v{a}, v{a}, v{s1}, {sr(mROW3,2)}""")
FS("w1")
pub(f"buffer_store_dword v{a}, v{aBD}, {WS}, s{sI} offen", sr(mLN,2))
FS("w1"); stamp(9)
A(f"s_cmp_eq_u32 s{sPASS}, 0\ns_cbranch_scc1 L_bf_first")

A("L_done:")
if PROF:
    stamp(11)
    A(f"s_cmp_lg_u32 s{sW}, 0\ns_cbranch_scc1 L_end\ns_lshl_b32 s{sT0}, s2, 7\ns_add_u32 s{sT0}, s{sT0}, {STAMP}")
    A(f"s_lshr_b32 s3, s{sCOPY}, 12\ns_or_b32 s3, s3, s{sMODE}\nv_writelane_b32 v9, s3, 31\ns_memtime s[100:101]\ns_waitcnt lgkmcnt(0)\ns_sub_u32 s3, s100, s88\nv_writelane_b32 v9, s3, 30\nv_lshlrev_b32 v2, 2, v{vL}\ns_mov_b32 exec_hi, 0")
    for k in range(fcount[0]): A(f"v_writelane_b32 v9, s{FREG[k]}, {1+k}")
    A(f"buffer_store_dword v9, v2, {WS}, s{sT0} offen")
A("L_end:\ns_endpgm")

def gcheck(gv, gva):
    retry, back = uid("gr"), uid("gb")
    b_ = gv + 4
    A(f"s_mov_b32 s{sCNT}, 0\ns_branch {back}\n{retry}:\ns_add_u32 s{sCNT}, s{sCNT}, 1\ns_cmp_ge_u32 s{sCNT}, {OPT['tmo']}\ns_cbranch_scc1 L_end\ns_sleep 16")
    A(f"buffer_load_dwordx4 {vr(gv,4)}, v{gva}, {WS}, 0 offen sc1\ns_waitcnt vmcnt(0)\n{back}:")
    for r in range(4): A(f"v_xor_b32 v{b_+r}, s{sE1}, v{gv+r}")
    A(f"v_or_b32 v{b_}, v{b_}, v{b_+1}\nv_or3_b32 v{b_}, v{b_}, v{b_+2}, v{b_+3}\nv_cmp_lt_u32 vcc, 7, v{b_}\ns_cbranch_vccnz {retry}")
    if OPT["touch"]:
        A(f"""s_mul_i32 s{sT1}, s{sJ}, {REST}
v_lshl_add_u32 v{b_}, v{vL}, 7, s{sT1}
s_cmp_eq_u32 s{sW}, 1
s_cselect_b64 exec, 0x7f, 0
buffer_load_dword v8, v{b_}, {WS}, s{sIB} offen sc1
s_mov_b64 exec, -1""")
    pub(f"buffer_store_dword v{vCS}, v{aQD}, {WS}, s{sIB} offen", "0xffff")
def probe():
    if OPT["copies"] != 2: return
    if OPT["pol"] >= 0:
        A(f"s_lshr_b32 s{sT0}, s{sXCC}, 2\ns_xor_b32 s{sT0}, s{sT0}, {OPT['pol']}\ns_lshl_b32 s{sCOPY}, s{sT0}, 13"); return
    A(f"""s_lshl_b32 s{sT0}, s{sJ}, 2
s_add_u32 s{sT0}, s{sT0}, s{sW}
s_and_b32 s{sT1}, s{sT0}, 63
s_lshl_b32 s{sT1}, s{sT1}, 7
s_lshr_b32 s{sT0}, s{sT0}, 6
s_lshl_b32 s{sT0}, s{sT0}, 15
s_add_u32 s{sT0}, s{sT0}, s{sT1}
s_add_u32 s{sT0}, s{sT0}, {PROBE}
s_add_u32 s{sT1}, s{sT0}, 0x2000
s_memtime s[100:101]
s_waitcnt lgkmcnt(0)
s_buffer_load_dword s101, {WS}, s{sT0}
s_waitcnt lgkmcnt(0)
s_memtime {sr(sT2,2)}
s_waitcnt lgkmcnt(0)
s_buffer_load_dword s101, {WS}, s{sT1}
s_waitcnt lgkmcnt(0)
s_memtime {sr(sT0,2)}
s_waitcnt lgkmcnt(0)
s_sub_u32 s{sT0}, s{sT0}, s{sT2}
s_sub_u32 s{sT2}, s{sT2}, s100
s_lshl_b32 s{sT1}, s{sW}, 2
s_add_u32 s{sT1}, s{sT1}, {LMODE}
v_mov_b32 v{t}, s{sT1}
v_mov_b32 v{t+1}, s{sT2}
v_mov_b32 v{t+2}, s{sT0}
ds_write2_b32 v{t}, v{t+1}, v{t+2} offset0:0 offset1:4
v_mov_b32 v{t}, {LMODE}
s_waitcnt lgkmcnt(0)
s_barrier
ds_read_b128 {vr(t+28,4)}, v{t}
ds_read_b128 {vr(t+32,4)}, v{t} offset:16
s_waitcnt lgkmcnt(0)
v_min_u32 v{t}, v{t+28}, v{t+29}
v_min3_u32 v{t}, v{t}, v{t+30}, v{t+31}
v_min_u32 v{t+1}, v{t+32}, v{t+33}
v_min3_u32 v{t+1}, v{t+1}, v{t+34}, v{t+35}
v_cmp_gt_u32 vcc, v{t}, v{t+1}
s_nop 1
s_cmp_lg_u32 vcc_lo, 0
s_cselect_b32 s{sCOPY}, 0x2000, 0""")
def late_fill():
    for r in range(4): A(f"v_mov_b32 v{t+12+r}, -1")
    A(f"""s_sub_u32 s{sT0}, s{sJ}, 18
s_mul_i32 s{sT1}, s{sT0}, 3456
s_mul_i32 s{sT2}, s{sW}, 864
s_add_u32 s{sT1}, s{sT1}, s{sT2}
v_lshl_add_u32 v{t+2}, v{vL}, 4, s{sT1}
s_mul_i32 s{sT1}, s{sX}, 14
s_add_u32 s{sT1}, s{sT1}, s{sT0}
s_mul_i32 s{sT1}, s{sT1}, 1280
s_mul_i32 s{sT2}, s{sW}, 640
s_add_u32 s{sT1}, s{sT1}, s{sT2}
s_add_u32 s{sT1}, s{sT1}, {PS}
v_lshl_add_u32 v{t+3}, v{vL}, 4, s{sT1}
s_add_u32 s{sT0}, s{sIB}, {PS}
s_mov_b32 s{sT2}, -1
s_mov_b32 s{sT3}, 0x3fffff""")
    A(f"s_mov_b64 exec, {sr(sT2,2)}\nbuffer_store_dwordx4 {vr(t+12,4)}, v{t+2}, {WS}, s{sT0} offen sc1\ns_mov_b64 exec, -1")
    A(f"s_cmp_lt_u32 s{sW}, 2\ns_cselect_b32 exec_lo, -1, 0\ns_cselect_b32 exec_hi, 0xff, 0\nv_cmp_gt_u32 vcc, {PS + IB0}, v{t+3}\ns_nop 1\ns_and_b64 exec, exec, vcc\nbuffer_store_dwordx4 {vr(t+12,4)}, v{t+3}, {WS}, 0 offen sc1\ns_mov_b64 exec, -1")
def late_ready():
    A(f"s_mul_i32 s{sT0}, s{sX}, 14\ns_add_u32 s{sT0}, s{sT0}, s{sJ}\ns_lshl_b32 s{sT0}, s{sT0}, 2\ns_add_u32 s{sT0}, s{sT0}, {RDY2 - 72}\nv_mov_b32 v{t+2}, s{sT0}\nv_mov_b32 v{t+3}, s{sE1}")
    A(f"s_mov_b64 exec, {sr(mW0,2)}\nbuffer_store_dword v{t+3}, v{t+2}, {WS}, 0 offen sc1\ns_mov_b64 exec, -1")
    if OPT["touch"]:
        A(f"s_sub_u32 s{sT0}, s{sJ}, 18\ns_mul_i32 s{sT1}, s{sT0}, 3456\nv_lshl_add_u32 v{t+2}, v{vL}, 7, s{sT1}\ns_add_u32 s{sT0}, s{sIB}, {PS}\ns_cmp_eq_u32 s{sW}, 1\ns_cselect_b64 exec, 0x7ffffff, 0")
        A(f"buffer_load_dword v8, v{t+2}, {WS}, s{sT0} offen sc1\ns_mov_b64 exec, -1")
def colsum_rows():
    poll(f"buffer_load_dwordx4 {vr(t+28,4)}, v{aQ1}, {WS}, s{sIB} offen sc1", range(t+28, t+32), u, 1)
    A(f"""v_add_f32 v{u}, v{t+28}, v{t+29}
v_add_f32 v{u+1}, v{t+30}, v{t+31}
v_add_f32 v{u}, v{u}, v{u+1}
v_cvt_pk_bf16_f32 v{u+1}, v{u}, v{u}
v_lshlrev_b32 v{u+2}, 16, v{u+1}
v_sub_f32 v{u}, v{u}, v{u+2}
v_cvt_pk_bf16_f32 v{u}, v{u}, v{u}
ds_write_b16 v{aQW}, v{u+1} offset:1600
ds_write_b16 v{aQW}, v{u} offset:2400""")
with Tail():
    A("L_first:")
    if NB1 < 15:
        A(f"s_cmp_lg_u32 s{sROLE}, 1\ns_cbranch_scc1 L_first1")
        w1_dma(NB1, 15, t, "L_w1_rest")
        A("L_w1_rest:")
        late_fill()
        traddr_std(t+8, LR); traddr_tail(t+10, LR)
        A(f"s_waitcnt vmcnt({max(12 - NB1, 0) + 1})")
        gcheck(gv, gva)
        A("s_waitcnt vmcnt(0)\ns_barrier")
        late_ready()
        w1_regs()
        A("s_branch L_first2\nL_first1:")
    A(f"s_cmp_lg_u32 s{sROLE}, 0\ns_cbranch_scc1 L_firstF")
    A("s_waitcnt vmcnt(1)")
    gcheck(gv, gva)
    A("s_branch L_wo_go\nL_first2:")
    slow = uid("slow")
    st = f"buffer_store_dword v{vS1}, v{vS1+1}, {WS}, s{sI} offen"
    A(f"s_mov_b32 exec_hi, 0xffff\ns_cmp_eq_u32 s{sMODE}, 0\ns_cbranch_scc1 {slow}\n{st}\ns_mov_b64 exec, -1\ns_branch L_w1_go\n{slow}:\n{st} sc1\ns_mov_b64 exec, -1\ns_branch L_w1_go")
    A(f"""L_w2_first:
s_mul_i32 s{sT0}, s{sX}, 1152
s_mul_i32 s{sT1}, s{sHALF}, 576
s_add_u32 s{sT0}, s{sT0}, s{sT1}
s_mul_i32 s{sT1}, s{sW}, 144
s_add_u32 s{sT0}, s{sT0}, s{sT1}
v_lshl_add_u32 v{t}, v{vL}, 1, s{sT0}
buffer_load_ushort v{vB}, v{t}, {sr(rB1,4)}, 0 offen
v_and_b32 v{t}, 7, v{vL}
v_lshl_add_u32 v{t}, v{t}, 1, s{sT0}
buffer_load_ushort v{vB+1}, v{t}, {sr(rB1,4)}, 0 offen offset:128""")
    if NW2 < 9: w2_dma(NW2, 9, t)
    probe()
    A(f"v_add_u32 v{t+2}, {S1o - HPo}, v{aH1}\nv_sub_u32 v{t+3}, v{t+2}, v{aH1}\nv_add_u32 v{t+3}, v{t+3}, v{aH2}\nv_cmp_gt_u32 vcc, 8, v{vN}\ns_nop 1\nv_cndmask_b32 v{t+3}, v{t+2}, v{t+3}, vcc")
    traddr_std(t, LW2)
    poll(f"buffer_load_dwordx4 {vr(t+28,4)}, v{t+2}, {WS}, s{sI} offen sc1\nbuffer_load_dwordx4 {vr(t+32,4)}, v{t+3}, {WS}, s{sI} offen sc1", range(t+28, t+36), u, 1)
    A("s_barrier")
    for ks in range(9):
        for h in range(2): A(f"ds_read_b64_tr_b16 {ar(cW2+4*ks+2*h,2)}, v{t} offset:{ks*4096+h*512}")
    for k in range(2):
        b_ = t + 28 + 4*k
        A(f"v_add_f32 v{b_}, v{b_}, v{b_+1}\nv_add_f32 v{b_+2}, v{b_+2}, v{b_+3}\nv_add_f32 v{vS1+k}, v{b_}, v{b_+2}")
    A(f"v_lshlrev_b32 v{vB}, 16, v{vB}\nv_lshlrev_b32 v{vB+1}, 16, v{vB+1}")
    colsum_rows()
    A("s_branch L_w2_go")
    A("L_firstF:")
    late_fill()
    A("s_waitcnt vmcnt(3)")
    gcheck(gv, gva)
    A("s_waitcnt vmcnt(0)\ns_barrier")
    late_ready()
    A(f"v_mov_b32 v{t}, {EPO}\nv_mov_b32 v{t+1}, s{sE1}\ns_lshl_b32 s{sT0}, s2, 2\ns_add_u32 s{sT0}, s{sT0}, s{sW}\ns_cmp_eq_u32 s{sT0}, 1020\ns_cselect_b64 exec, 1, 0")
    A(f"buffer_store_dword v{t+1}, v{t}, {WS}, 0 offen sc1\ns_mov_b64 exec, -1")
    A(f"L_bf_first:\nv_mov_b32 v{aRES}, 0")
    probe()
    colsum_rows()
    A("s_branch L_q")

body = L + TAIL
txt = "\n".join(body)
if OPT["pf"]:
    pf = f"""s_cmp_lg_u32 s{sJ}, 0
s_cbranch_scc1 L_nopf
s_getpc_b64 s[100:101]
L_pc:
s_sub_u32 s100, s100, L_pc-{NAME}_kernel
s_subb_u32 s101, s101, 0
s_lshl_b32 s{sT0}, s{sW}, 12
v_lshl_add_u32 v8, v{vL}, 6, s{sT0}
global_load_dword v8, v8, s[100:101]
L_nopf:"""
    k = txt.index(f"s_lshl_b32 s{sROT}, s2, 13" if OPT["rot"] else f"s_mov_b32 s{sROT}, 0")
    txt = txt[:k] + pf + "\n" + txt[k:]
out.append(txt)
out.append(f""".p2align 8
.fill 1024, 4, 0xbf800000
s_endpgm
.section .rodata,"a"
.p2align 6
.amdhsa_kernel {NAME}_kernel
  .amdhsa_next_free_vgpr {NVGPR}
  .amdhsa_next_free_sgpr 102
  .amdhsa_accum_offset 256
  .amdhsa_group_segment_fixed_size 0
  .amdhsa_kernarg_size 96
  .amdhsa_user_sgpr_count 2
  .amdhsa_user_sgpr_kernarg_segment_ptr 1
  .amdhsa_system_sgpr_workgroup_id_x 1
  .amdhsa_float_denorm_mode_32 3
.end_amdhsa_kernel""")
print("\n".join(out))
```

```python
import sys, math
OPT = dict(prof=0, fine="", nk1=6, nq=2, nv1=12, nw2=2, npair=3, nb1=6, nkb=0, q0t=0, tlb=0, fast=1, copies=2, pol=-1, rot=2, ra=2, rb=0, ldf="nt", pf=1,
           tmo=1 << 17, h3pos=1, h5pos=1, touch=1, depth=2, warm=0, echo=-1, hdly=0, xnoclr=0, xnoq0=0, al=0, beh=0, pfj=31, shift=0, pfl=144)
for a in sys.argv[1:]:
    k, v = a.split("=")
    assert k in OPT, k
    OPT[k] = v if k in ("ldf", "fine") else int(v, 0)
NAME = "interleave_layers__sliding_block_cached__dense_activation_mish__decode"
LDF = "" if OPT["ldf"] == "plain" else OPT["ldf"].replace("+", " ")
PROF = OPT["prof"]

L = []; TAIL = []
def A(s):
    for ln in s.split("\n"):
        ln = ln.strip()
        if ln: L.append(ln)
class Tail:
    def __enter__(self):
        global L
        self.save = L; L = []
    def __exit__(self, *e):
        global L
        TAIL.extend(L); L = self.save
_uid = [0]
def uid(p):
    _uid[0] += 1
    return f"L_{p}{_uid[0]}"
def vr(a, n=1): return f"v{a}" if n == 1 else f"v[{a}:{a+n-1}]"
def ar(a, n=1): return f"a{a}" if n == 1 else f"a[{a}:{a+n-1}]"
def sr(a, n=1): return f"s{a}" if n == 1 else f"s[{a}:{a+n-1}]"
DPPM = "row_mask:0xf bank_mask:0xf"
ROWRED = ["quad_perm:[1,0,3,2]", "quad_perm:[2,3,0,1]", "row_half_mirror", "row_mirror"]
def dpp(op, d, s, p): return f"{op}_dpp v{d}, v{s}, v{s} {p} {DPPM}"
def mfma(d, a, b, c): return f"v_mfma_f32_16x16x32_bf16 {d}, {a}, {b}, {c}"

PS = 0x100000
X1O, X2O = 0x00000, 0x10000
IB0 = 0x20000
QPo, HPo, S1o, QSo, HSo, H3o, H5o, OPo, MLo = 0x0000, 0x2000, 0x4400, 0x6800, 0x6880, 0x6900, 0x6980, 0x7000, 0xB000
REST = 0x7000 // 32
Q0B, Q0S = 0xA0000, 0x9000
EPO, RDY, RDY2, PROBE = 0x1B0000, 0x1B1000, 0x1B4000, 0x1C0000
STAMP = 0x200000
WSREC = 0x210000 if PROF else 0x200000
LV, LR, LWQ = 0, 65536, 135168
LW2, LOPS = LR + 32768, LWQ
LQ, LP, LM, LH, LMODE, LXS = 153600, 156800, 158080, 158144, 158784, 158848
LDS_BYTES = 163840
sX, sJ, sW, sPASS, sROLE, sMODE, sCOPY, sIB = 4, 5, 6, 7, 8, 9, 10, 11
rK, rV, rWQ, rWA, rW2, rWS, rXI, rB1, rOUT = 12, 16, 20, 24, 28, 32, 36, 40, 44
mATT, mLN = 48, 50
sT0, sT1, sT2, sT3, sT4, sCNT, sI, sXO = 52, 53, 54, 55, 56, 57, 58, 59
mODDR, sRG, sCG, sST = 60, 62, 63, 64
sE1, sQ0, mW0, mODDL, mROW3 = 68, 69, 70, 72, 90
sHALF, sCG9, sROT, sXCC = 96, 97, 98, 99
WS = sr(rWS, 4)
vL, vN, vG, vONE, vONE3 = 1, 2, 3, 4, 6
vKO, vJUNK, vCS, vC, vMU, vQ0 = 10, 59, 12, 14, 15, 60
vSEL, vR, vB, vS1 = 16, 20, 24, 26
(aX1, aX2, aXW, aXR, aXT, aS1, aS3, aQD, aQS,
 aQ1, aQ2, aQW, aQR, aPW, aMW, aPR, aMR, aOP, aHL,
 aRES, aO1, aML, aOW, aOR, aXS, aHS, aH1, aH2, aHW, aHW2, aHR) = range(28, 59)
aB1, aB2, aBD = aO1, aML, aOW
t = 64
vK = 128
gX, gQ, gQS, gRES, gO, gML, gH, gHI, gX1 = 192, 200, 204, 208, 212, 220, 224, 232, 236
u = 240
cV, cWQ, cWA, cW2, cJUNK = 0, 64, 84, 116, 152
NVGPR = 256 + 160

def stamp(i):
    if PROF == 2 and i != 11: return
    if PROF == 3 and i not in (6, 10, 11): return
    if PROF: A(f"s_memrealtime {sr(sST, 2)}\ns_lshr_b32 s3, s{sPASS}, 16\ns_add_u32 m0, s3, {i}\ns_waitcnt lgkmcnt(0)\nv_writelane_b32 v9, s{sST}, m0")
FREG = [74, 76, 78, 80, 82, 94, 84, 66, 70] if OPT['fine'] == 'pro' else [74, 76, 78, 80, 82, 92, 94, 84, 66]
fcount = [0]
def FS(stage):
    if OPT["fine"] == stage:
        A(f"s_memtime s[{FREG[fcount[0]]}:{FREG[fcount[0]]+1}]"); fcount[0] += 1

def srd(r, lo, hi, nbytes):
    if r != lo: A(f"s_mov_b32 s{r}, s{lo}")
    A(f"s_and_b32 s{r+1}, s{hi}, 0xffff\ns_mov_b32 s{r+2}, {nbytes}\ns_mov_b32 s{r+3}, 0x20000")
def mask64(reg, lo, hi): A(f"s_mov_b32 s{reg}, {lo:#x}\ns_mov_b32 s{reg+1}, {hi:#x}")
def sentinel_test(regs, tmp):
    regs = list(regs)
    if len(regs) == 1:
        A(f"v_cmp_eq_u32 vcc, -1, v{regs[0]}"); return
    if len(regs) % 2 == 0: A(f"v_max_u32 v{tmp}, v{regs[0]}, v{regs[1]}"); k = 2
    else: A(f"v_max3_u32 v{tmp}, v{regs[0]}, v{regs[1]}, v{regs[2]}"); k = 3
    while k < len(regs):
        A(f"v_max3_u32 v{tmp}, v{tmp}, v{regs[k]}, v{regs[k+1]}"); k += 2
    A(f"v_cmp_eq_u32 vcc, -1, v{tmp}")
def filler(n):
    for _ in range(n):
        if OPT["warm"]: A(f"v_mfma_f32_16x16x4_f32 {ar(cJUNK,4)}, v{vONE}, v{vONE}, {ar(cJUNK,4)}")
        else: A("s_nop 7")
def poll(loads, regs, tmp, depth=None):
    depth = depth or OPT["depth"]
    n = sum(1 for ln in loads.split("\n") if ln.strip().startswith("buffer_"))
    top = uid("poll")
    A(f"s_mov_b32 s{sCNT}, 0")
    for _ in range(depth - 1):
        A(loads); filler({2: 3, 3: 2}[depth])
    A(f"{top}:")
    A(loads)
    A(f"s_add_u32 s{sCNT}, s{sCNT}, 1\ns_cmp_gt_u32 s{sCNT}, {OPT['tmo']}\ns_cbranch_scc1 L_end")
    if OPT["warm"]: filler(OPT["warm"] if depth > 1 else 3*OPT["warm"])
    A(f"s_waitcnt vmcnt({(depth - 1)*n})")
    sentinel_test(regs, tmp)
    A(f"s_cbranch_vccnz {top}")
def recheck(load, regs, tmp):
    retry, top, back = uid("rc"), uid("rct"), uid("rcb")
    sentinel_test(regs, tmp)
    A(f"s_cbranch_vccnz {retry}\n{back}:")
    with Tail():
        A(f"{retry}:\ns_mov_b32 s{sCNT}, 0\n{top}:\n{load}\ns_waitcnt vmcnt(0)")
        sentinel_test(regs, tmp)
        A(f"s_cbranch_vccz {back}\ns_add_u32 s{sCNT}, s{sCNT}, 1\ns_cmp_lt_u32 s{sCNT}, {OPT['tmo']}\ns_cbranch_scc1 {top}\ns_branch L_end")
def pub(store, mask):
    slow, back = uid("slow"), uid("back")
    A(f"s_cmp_eq_u32 s{sMODE}, 0\ns_mov_b64 exec, {mask}\ns_cbranch_scc1 {slow}\n{store}\n{back}:\ns_mov_b64 exec, -1")
    with Tail(): A(f"{slow}:\n{store} sc1\ns_branch {back}")
def dma(rsrc, voff, soff, lds_s):
    A(f"s_mov_b32 m0, s{lds_s}\ns_nop 0\nbuffer_load_dwordx4 v{voff}, {sr(rsrc,4)}, s{soff} offen {LDF} lds")
def rowred_list(op, regs, steps=ROWRED):
    o = []
    for k, p in enumerate(steps):
        o += [dpp(op, r, r, p) for r in regs]
        if len(regs) < 3 and k < len(steps) - 1: o += ["s_nop 0"] * (3 - len(regs) - 0 if len(regs) == 1 else 1)
    return [x for x in o]
def rowred(op, regs):
    for p in ROWRED:
        for r in regs: A(dpp(op, r, r, p))
        if len(regs) < 3 and p != ROWRED[-1]: A(f"s_nop {2 - len(regs)}")
def weave(main, side, per, start=0):
    side = list(side)
    for k, m in enumerate(main):
        A(m)
        if k >= start:
            for _ in range(per):
                if side: A(side.pop(0))
    for s_ in side: A(s_)

hdr = open("cdna_kernels/" + NAME + ".s.ref").read().split("; Override launch")[0]
out = [hdr.rstrip(), "; Override launch geometry by editing the next line (default: block=256,",
       "; grid=ceil(out_elems/256), lds=0). Harness parses it; keep it on one line.",
       f"; @launch grid=(256,1,1) block=(256,1,1) lds={LDS_BYTES}",
       '.amdgcn_target "amdgcn-amd-amdhsa--gfx950"', ".text", f".globl {NAME}_kernel", ".p2align 8",
       f".type {NAME}_kernel,@function", f"{NAME}_kernel:"]

def wdma_voff(dst, rowbytes, kind):
    if kind == "std": A(f"v_bfe_u32 v{dst}, v{vL}, 4, 1\ns_and_b32 s{sT0}, s{sW}, 1\ns_lshl_b32 s{sT0}, s{sT0}, 1")
    else: A(f"v_lshrrev_b32 v{dst}, 5, v{vL}\ns_and_b32 s{sT0}, s{sW}, 2")
    A(f"""v_or_b32 v{dst}, s{sT0}, v{dst}
v_lshlrev_b32 v{dst}, 1, v{dst}
v_xor_b32 v{dst}, v{dst}, v{vL}
v_and_b32 v{dst}, 7, v{dst}
v_lshlrev_b32 v{dst}, 4, v{dst}
v_lshrrev_b32 v{dst+1}, 3, v{vL}
s_mov_b32 s{sT0}, {rowbytes}
v_mad_u32_u24 v{dst}, v{dst+1}, s{sT0}, v{dst}""")
def traddr_std(dst, base):
    A(f"""v_bfe_u32 v{dst}, v{vL}, 3, 2
v_xor_b32 v{dst}, s{sW}, v{dst}
v_lshlrev_b32 v{dst}, 5, v{dst}
v_and_b32 v{dst+1}, 3, v{vL}
v_lshl_add_u32 v{dst}, v{dst+1}, 3, v{dst}
v_bfe_u32 v{dst+1}, v{vL}, 2, 2
v_lshl_add_u32 v{dst}, v{dst+1}, 7, v{dst}
v_lshl_add_u32 v{dst}, v{vG}, 10, v{dst}
v_add_u32 v{dst}, {base}, v{dst}""")
def traddr_tail(dst, base):
    A(f"""v_bfe_u32 v{dst}, v{vL}, 3, 1
v_and_b32 v{dst+1}, 2, v{vG}
v_or_b32 v{dst}, v{dst}, v{dst+1}
v_xor_b32 v{dst}, s{sW}, v{dst}
v_lshlrev_b32 v{dst}, 5, v{dst}
v_and_b32 v{dst+1}, 3, v{vL}
v_lshl_add_u32 v{dst}, v{dst+1}, 3, v{dst}
v_lshrrev_b32 v{dst+1}, 2, v{vL}
v_lshl_add_u32 v{dst}, v{dst+1}, 7, v{dst}
v_add_u32 v{dst}, {base + 16384}, v{dst}""")
def tr_slice(dst, a_std, a_tail, off):
    for ks in range(4):
        for h in range(2): A(f"ds_read_b64_tr_b16 {ar(dst+4*ks+2*h,2)}, v{a_std} offset:{off+ks*4096+h*512}")
    A(f"ds_read_b64_tr_b16 {ar(dst+16,2)}, v{a_tail} offset:{off}")
def x_addr(dst, idx, rg_s, tmp):
    A(f"""v_mul_u32_u24 v{dst}, 3641, v{idx}
v_lshrrev_b32 v{dst}, 16, v{dst}
v_mul_u32_u24 v{tmp}, 18, v{dst}
v_sub_u32 v{tmp}, v{idx}, v{tmp}
v_lshlrev_b32 v{tmp}, 4, v{tmp}
v_and_b32 v{tmp+1}, 3, v{dst}
v_lshl_add_u32 v{tmp}, v{tmp+1}, 11, v{tmp}
v_lshrrev_b32 v{dst}, 2, v{dst}
v_lshl_add_u32 v{dst}, v{dst}, 14, v{tmp}
s_mul_i32 s{sT0}, s{rg_s}, 288
v_add_u32 v{dst}, s{sT0}, v{dst}""")

NK1, NKB, NQ, NV1, NW2, NB1 = OPT["nk1"], OPT["nkb"], OPT["nq"], OPT["nv1"], OPT["nw2"], OPT["nb1"]
sKM, sVM = 66, 67
if PROF: sKM, sVM = 86, 87
def srd2(r, nbytes): A(f"s_mov_b32 s{r+2}, {nbytes}\ns_mov_b32 s{r+3}, 0x20000")
def blk_m0(base, i, mask):
    if OPT["rot"] < 3: return f"s_xor_b32 m0, s{base}, {i << 12}\ns_nop 0"
    hi = (i << 12) & ~mask
    return f"s_add_u32 s{sT4}, s{sROT}, {(i << 12) & mask}\ns_and_b32 s{sT4}, s{sT4}, {mask}\n" + (f"s_or_b32 s{sT4}, s{sT4}, {hi}\n" if hi else "") + f"s_add_u32 m0, s{sT4}, s{base}\ns_nop 0"
def kdma(i): A(blk_m0(sKM, i, 0xf000) + f"\nbuffer_load_dwordx4 v{vKO}, {sr(rK,4)}, m0 offen {LDF} lds")

def TLB():
    if OPT["tlb"]:
        A(f"""s_cmp_ge_u32 s{sW}, 2
s_cbranch_scc1 L_notlb
s_load_dword s100, s[{rV}:{rV+1}], 0
s_load_dword s100, s[{rB1}:{rB1+1}], 0
s_load_dword s100, s[{rOUT}:{rOUT+1}], 0
s_mul_i32 s{sT0}, s{sX}, {512*1152}
s_mul_i32 s{sT1}, s{sW}, {512*1152 - 4}
s_add_u32 s{sT0}, s{sT0}, s{sT1}
s_load_dword s100, s[{rWA}:{rWA+1}], s{sT0}
s_mul_i32 s{sT0}, s{sX}, {576*1152}
s_mul_i32 s{sT1}, s{sW}, {576*1152 - 4}
s_add_u32 s{sT0}, s{sT0}, s{sT1}
s_load_dword s100, s[{rW2}:{rW2+1}], s{sT0}
s_mul_i32 s{sT0}, s{sW}, {2*1024*1024}
s_load_dword s100, s[92:93], s{sT0}
s_mov_b32 s{sT0}, {576*4608*2 - 4}
s_load_dword s100, s[92:93], s{sT0}
L_notlb:""")

A("s_cmp_ge_u32 s2, 256\ns_cbranch_scc1 L_end")
if PROF: A(f"s_memrealtime {sr(sST,2)}\ns_memtime s[88:89]\nv_mov_b32 v9, 0")
FS("pro")
A(f"""s_load_dwordx2 s[{rWQ}:{rWQ+1}], s[0:1], 24
s_load_dwordx2 s[{rXI}:{rXI+1}], s[0:1], 0
s_load_dwordx4 s[{rK}:{rK+3}], s[0:1], 8
s_load_dwordx2 s[{rWS}:{rWS+1}], s[0:1], 88
s_load_dwordx2 s[{rWA}:{rWA+1}], s[0:1], 32
s_load_dwordx2 s[92:93], s[0:1], 48
s_load_dwordx2 s[{rB1}:{rB1+1}], s[0:1], 56
s_load_dwordx2 s[{rW2}:{rW2+1}], s[0:1], 64
s_load_dwordx2 s[{rOUT}:{rOUT+1}], s[0:1], 72""")
if OPT["pf"]:
    A(("s_cmp_ge_u32 s2, 8" if OPT["pfj"] == 0 else "s_cmp_lt_u32 s2, 248") + f"\ns_cbranch_scc1 L_nopf\ns_getpc_b64 s[100:101]\nL_pc:\nv_min_u32 v8, {OPT['pfl'] - 1}, v0\nv_lshlrev_b32 v8, 7, v8\nglobal_load_dword v8, v8, s[100:101]\nL_nopf:")
A(f"""v_lshrrev_b32 v{t+1}, 3, v0
v_lshrrev_b32 v{vG}, 4, v0
v_readfirstlane_b32 s{sW}, v0
v_and_b32 v{t}, 2, v{t+1}
v_and_or_b32 v{t}, v{vG}, 4, v{t}
s_and_b32 s{sX}, s2, 7
v_xor_b32 v{t}, v{t}, v0
s_lshr_b32 s{sJ}, s2, 3
v_and_b32 v{t}, 7, v{t}
s_lshr_b32 s{sW}, s{sW}, 6
v_lshlrev_b32 v{t}, 4, v{t}
s_and_b32 s{sCG}, s{sJ}, 7
v_and_b32 v{t+1}, 7, v{t+1}
s_lshr_b32 s{sRG}, s{sJ}, 3
v_lshl_or_b32 v{t}, v{t+1}, 13, v{t}
s_mul_i32 s{sT1}, s{sRG}, {144*8192}
s_lshl_b32 s{sT2}, s{sW}, 16
s_add_u32 s{sT1}, s{sT1}, s{sT2}
s_lshl_b32 s{sT2}, s{sX}, 10
s_add_u32 s{sT1}, s{sT1}, s{sT2}
s_lshl_b32 s{sT2}, s{sCG}, 7
s_add_u32 s{sT1}, s{sT1}, s{sT2}
s_lshl_b32 s{sVM}, s{sW}, 10
s_add_u32 s{sT2}, s{sVM}, {LWQ}
v_and_b32 v{vN}, 15, v0
v_and_b32 v{vKO}, 15, v{vG}
v_and_b32 v{vG}, 3, v{vG}
v_xor_b32 v{vKO}, v{vKO}, v{vN}
v_lshlrev_b32 v{vKO}, 4, v{vKO}
v_lshl_or_b32 v{vKO}, v{vG}, 8, v{vKO}
v_and_b32 v{vL}, 63, v0
s_lshr_b32 s{sT0}, s{sJ}, 4
s_lshl_b32 s{sT3}, s{sX}, 1
s_add_u32 s{sT0}, s{sT0}, s{sT3}
s_lshl_b32 s{sT0}, s{sT0}, 23
s_and_b32 s{sT3}, s{sJ}, 15
s_lshl_b32 s{sT3}, s{sT3}, 16
s_add_u32 s{sT0}, s{sT0}, s{sT3}
s_add_u32 s{sCNT}, s{sT0}, {28672*256}""")
if OPT["rot"] in (1, 4): A(f"s_lshr_b32 s{sT0}, s2, 4\ns_xor_b32 s{sROT}, s{sT0}, s2\ns_and_b32 s{sROT}, s{sROT}, 15\ns_lshl_b32 s{sROT}, s{sROT}, 12")
elif OPT["rot"] in (2, 3):
    A(f"s_mul_i32 s{sROT}, s{sX}, {OPT['ra'] << 12}")
    if OPT["rb"]: A(f"s_mul_i32 s{sT0}, s{sJ}, {OPT['rb'] << 12}\ns_add_u32 s{sROT}, s{sROT}, s{sT0}")
    if OPT["rb"] or OPT["ra"] > 2: A(f"s_and_b32 s{sROT}, s{sROT}, 0xf000")
elif OPT["rot"] == 5: A(f"s_and_b32 s{sROT}, s{sJ}, 15\ns_lshl_b32 s{sROT}, s{sROT}, 12")
elif OPT["rot"] == 6: A(f"s_and_b32 s{sROT}, s{sJ}, 7\ns_lshl_b32 s{sROT}, s{sROT}, 13")
else: A(f"s_mov_b32 s{sROT}, 0")
if OPT["rot"] < 3: A(f"s_add_u32 s{sKM}, s{sVM}, s{sROT}\ns_add_u32 s{sKM}, s{sKM}, {LR}\ns_and_b32 s{sT0}, s{sROT}, 0x7000\ns_add_u32 s{sVM}, s{sVM}, s{sT0}")
else: A(f"s_add_u32 s{sKM}, s{sVM}, {LR}")
srd2(rWQ, 576*4096*2); srd2(rXI, 1152); srd2(rWS, WSREC)
A(f"s_cmp_lg_u32 s{sW}, 2")
FS("pro")
A("s_waitcnt lgkmcnt(0)")
FS("pro")
A(f"""s_cbranch_scc1 L_nox0
s_mul_i32 s{sT0}, s{sRG}, 18
v_add_u32 v{t+2}, s{sT0}, v{vL}
v_add_u32 v{t+3}, 64, v{t+2}
v_subrev_u32 v{t+4}, 72, v{t+2}
v_min_u32 v{t+2}, v{t+2}, v{t+4}
v_subrev_u32 v{t+4}, 72, v{t+3}
v_min_u32 v{t+3}, v{t+3}, v{t+4}
v_cmp_gt_u32 vcc, 8, v{vL}
v_mov_b32 v{t+5}, 0x10000
v_lshlrev_b32 v{t+2}, 4, v{t+2}
v_lshlrev_b32 v{t+3}, 4, v{t+3}
v_cndmask_b32 v{t+3}, v{t+5}, v{t+3}, vcc
buffer_load_dwordx4 {vr(gX,4)}, v{t+2}, {sr(rXI,4)}, 0 offen
buffer_load_dwordx4 {vr(gX+4,4)}, v{t+3}, {sr(rXI,4)}, 0 offen
L_nox0:
s_cmp_ge_u32 s{sW}, 2
s_cbranch_scc1 L_wq4
s_add_u32 s{sT3}, s{sT1}, {128*8192}
s_add_u32 m0, s{sT2}, {16*1024}
s_nop 0
buffer_load_dwordx4 v{t}, {sr(rWQ,4)}, s{sT3} offen {LDF} lds
L_wq4:""")
for i in range(4):
    A(f"s_add_u32 m0, s{sT2}, {i*4096}\n" + (f"s_add_u32 s{sT1}, s{sT1}, {32*8192}" if i else "s_nop 0") + f"\nbuffer_load_dwordx4 v{t}, {sr(rWQ,4)}, s{sT1} offen {LDF} lds")
FS("pro")
A(f"s_add_u32 s{rV}, s14, s{sCNT}\ns_addc_u32 s{rV+1}, s15, 0\ns_sub_u32 s{sCNT}, s{sCNT}, {LR}\ns_add_u32 s{rK}, s12, s{sCNT}\ns_addc_u32 s{rK+1}, s13, 0")
srd2(rK, LR + 65536)
if OPT["tlb"] == 2: TLB()
for i in range(NK1): kdma(i)
FS("pro")
if OPT["tlb"] == 1: TLB()
A(f"""s_mov_b32 s{sT1}, {EPO}
s_buffer_load_dword s{sE1}, {WS}, s{sT1}
s_lshl_b32 s{sIB}, s{sX}, 16
s_add_u32 s{sIB}, s{sIB}, {IB0}
s_mul_i32 s{sQ0}, s{sX}, {Q0S}
s_add_u32 s{sQ0}, s{sQ0}, {Q0B}
s_mov_b32 s{sPASS}, 0""")
if PROF: A(f"v_writelane_b32 v9, s{sST}, 0\nv_writelane_b32 v9, s0, 15")
traddr_std(t, LWQ); traddr_tail(t+2, LWQ)
FA = t + 8
A(f"""v_mov_b32 v{FA+16}, 0
v_mov_b32 v{FA+17}, 0
v_mov_b32 v{FA+18}, 0
v_mov_b32 v{FA+19}, 0
v_lshlrev_b32 v{aXW}, 4, v0
v_add_u32 v{aXW}, {LXS}, v{aXW}
ds_write_b128 v{aXW}, {vr(FA+16,4)} offset:512
v_mul_u32_u24 v{aXR}, 288, v{vN}
v_lshl_add_u32 v{aXT}, v{vG}, 3, v{aXR}
v_add_u32 v{aXT}, {LXS + 256}, v{aXT}
v_lshl_add_u32 v{aXR}, v{vG}, 4, v{aXR}
v_add_u32 v{aXR}, {LXS}, v{aXR}
v_mov_b32 v{aS1}, v{aXR}
v_mov_b32 v{aS3}, v{aXR}
s_lshl_b32 s{sT0}, s{sCG}, 10
s_lshl_b32 s{sT1}, s{sW}, 8
s_add_u32 s{sT0}, s{sT0}, s{sT1}
s_lshl_b32 s{sT1}, s{sRG}, 2
s_add_u32 s{sT0}, s{sT0}, s{sT1}
v_lshl_add_u32 v{aQD}, v{vN}, 4, s{sT0}
s_cmp_lg_u32 s{sW}, 2
s_cbranch_scc1 L_pwx""")
NCLR = 4
xf, z1, z2 = t + 40, u + 4, u + 5
A(f"""v_mov_b32 v{z1}, 0
v_mov_b32 v{z2}, 0
v_mov_b32 v{u+6}, 0x3f803f80
v_lshlrev_b32 v{t+4}, 4, v{vL}
v_add_u32 v{t+4}, {LXS}, v{t+4}
s_mov_b32 exec_lo, 0xfffc0000
s_mov_b32 exec_hi, 0
ds_write_b128 v{t+4}, {vr(FA+16,4)}
s_mov_b64 exec, -1
s_waitcnt vmcnt({4 + NK1})""")
for k in range(8): A(f"v_dot2c_f32_bf16 v{z1}, v{gX+k}, v{u+6}\nv_dot2c_f32_bf16 v{z2}, v{gX+k}, v{gX+k}")
for k in range(4): A(f"v_lshlrev_b32 v{xf+2*k}, 16, v{gX+k}\nv_and_b32 v{xf+2*k+1}, 0xffff0000, v{gX+k}")
rowred("v_add_f32", [z1, z2])
for sw in ("16", "32"):
    A(f"v_mov_b32 v{u+6}, v{z1}\nv_mov_b32 v{u+7}, v{z2}\ns_nop 0\nv_permlane{sw}_swap_b32 v{z1}, v{u+6}\nv_permlane{sw}_swap_b32 v{z2}, v{u+7}\nv_add_f32 v{z1}, v{z1}, v{u+6}\nv_add_f32 v{z2}, v{z2}, v{u+7}")
A(f"v_mul_f32 v{u+6}, {1/576:.9e}, v{z1}")
for k in range(8): A(f"v_sub_f32 v{xf+k}, v{xf+k}, v{u+6}")
for k in range(4): A(f"v_cvt_pk_bf16_f32 v{xf+k}, v{xf+2*k}, v{xf+2*k+1}")
A(f"""v_fma_f32 v{z2}, -v{u+6}, v{z1}, v{z2}
v_mov_b32 v{u+7}, {LMODE}
v_mul_f32 v{z2}, 0x3d800000, v{z2}
s_mov_b64 exec, 0x3ffff
ds_write_b128 v{t+4}, {vr(xf,4)}
ds_write_b32 v{u+7}, v{z2}
s_mov_b64 exec, -1""")
for i in range(NK1, NK1 + NKB): kdma(i)
A(f"s_waitcnt vmcnt({NK1 + NKB})\nL_bar1:")
FS("pro")
A(f"s_waitcnt lgkmcnt(0)\ns_barrier")
NEAR = []
with Tail():
    A(f"L_pwx:\ns_cmp_eq_u32 s{sW}, {7 if OPT['xnoclr'] else 3}\ns_cbranch_scc1 L_pw3")
    if OPT["q0t"]:
        A(f"s_lshl_b32 s{sT1}, s{sJ}, 9\ns_lshl_b32 s{sT2}, s{sW}, 8\ns_add_u32 s{sT1}, s{sT1}, s{sT2}\nv_lshl_add_u32 v{t+6}, v{vL}, 7, s{sT1}\ns_mov_b64 exec, 3\nbuffer_load_dword v8, v{t+6}, {WS}, s{sQ0} offen sc1\ns_mov_b64 exec, -1")
    for i in range(NK1, NK1 + NKB): kdma(i)
    A(f"s_waitcnt vmcnt({NK1 + NKB + (1 if OPT['q0t'] else 0)})\ns_branch L_bar1")
    q4 = vr(u, 4)
    A("L_pw3:")
    for r in range(4): A(f"v_mov_b32 v{u+r}, -1")
    A(f"""s_mul_i32 s{sT1}, s{sJ}, {REST}
v_lshl_add_u32 v{t+6}, v{vL}, 4, s{sT1}
s_lshl_b32 s{sT1}, s{sJ}, 9
s_add_u32 s{sT1}, s{sT1}, {OPo}
v_lshl_add_u32 v{t+7}, v{vL}, 4, s{sT1}
s_lshl_b32 s{sT1}, s{sJ}, 6
s_add_u32 s{sT1}, s{sT1}, {MLo - 512}
v_lshl_add_u32 v{t+8}, v{vL}, 4, s{sT1}
v_cmp_gt_u32 vcc, 32, v{vL}
s_lshl_b32 s{sT1}, s2, 9
v_lshl_add_u32 v{t+9}, v{vL}, 4, s{sT1}
v_cndmask_b32 v{t+7}, v{t+8}, v{t+7}, vcc
s_lshr_b32 s{sT1}, s2, 6
s_lshl_b32 s{sT1}, s{sT1}, 14
s_and_b32 s{sT2}, s2, 63
s_lshl_b32 s{sT2}, s{sT2}, 7
s_add_u32 s{sT1}, s{sT1}, s{sT2}
s_add_u32 s{sT1}, s{sT1}, {PROBE}
v_lshl_add_u32 v{t+8}, v{vL}, 4, s{sT1}
v_lshrrev_b32 v{t+10}, 3, v{vL}
v_mul_u32_u24 v{t+10}, {0x2000 - 128}, v{t+10}
v_add_u32 v{t+8}, v{t+8}, v{t+10}
s_mov_b32 exec_hi, 0xf
buffer_store_dwordx4 {q4}, v{t+7}, {WS}, s{sIB} offen sc1
s_mov_b32 exec_hi, {(1 << (REST//16 - 32)) - 1:#x}
buffer_store_dwordx4 {q4}, v{t+6}, {WS}, s{sIB} offen sc1
s_and_b32 s{sT1}, s2, 3
s_cmp_eq_u32 s{sT1}, 2
s_cselect_b32 s{sT2}, 0xff, -1
s_cmp_eq_u32 s{sT1}, 3
s_cselect_b32 exec_lo, 1, s{sT2}
s_mov_b32 exec_hi, 0
buffer_store_dwordx4 {q4}, v{t+9}, {WS}, 0 offen sc1
s_mov_b32 exec_lo, 0xffff
buffer_store_dwordx4 {q4}, v{t+8}, {WS}, 0 offen sc1
s_mov_b64 exec, -1""")
    for i in range(NK1, NK1 + NKB): kdma(i)
    A(f"s_waitcnt vmcnt({NK1 + NKB + NCLR})\ns_branch L_bar1")
NEAR = TAIL[:]; del TAIL[:]
stamp(2); FS("pro")
tr_slice(cWQ, t, t+2, 0)
A(f"s_and_b32 s{sE1}, s{sE1}, -16\ns_add_u32 s{sE1}, s{sE1}, 16\ns_branch L_q_reads")
L.extend(NEAR)

def hint_wait(imm):
    poll(f"buffer_load_dword v{gHI}, v{aHL}, {WS}, s{sI} offen offset:{imm} sc1", [gHI], None)
    if OPT["hdly"]: filler(OPT["hdly"])
def x_gather(a1, a2, stg):
    other, join = uid("xo"), uid("xj")
    l1 = f"buffer_load_dwordx4 {vr(gX,4)}, v{a1}, {WS}, s{sXO} offen sc1"
    l2 = f"buffer_load_dwordx4 {vr(gX+4,4)}, v{a2}, {WS}, s{sXO} offen sc1"
    A(f"s_cmp_lg_u32 s{sW}, 0\ns_cbranch_scc1 {other}")
    poll(l1 + "\n" + l2, range(gX, gX+8), u, 1)
    FS(stg)
    A(f"ds_write_b128 v{aXW}, {vr(gX,4)}\ns_mov_b32 exec_hi, 0\nds_write_b128 v{aXW}, {vr(gX+4,4)} offset:4096\ns_mov_b32 exec_hi, -1\ns_branch {join}\n{other}:")
    if stg == "q":
        A(f"s_cmp_eq_u32 s{sW}, 1\ns_cselect_b64 {sr(sT2,2)}, -1, 0\nv_mov_b32 v{u+12}, s{sE1}\ns_mov_b32 s{sCNT}, 0\nL_xq1_top:\n{l1}")
        A(f"s_cbranch_scc0 L_xq1_a\nbuffer_load_dword v{u+12}, v{u+14}, {WS}, s{sCOPY} offen sc1\nL_xq1_a:")
        A(f"s_add_u32 s{sCNT}, s{sCNT}, 1\ns_cmp_gt_u32 s{sCNT}, {OPT['tmo']}\ns_cbranch_scc1 L_end\ns_waitcnt vmcnt(0)")
        A(f"v_cmp_ne_u32 {sr(sT0,2)}, s{sE1}, v{u+12}")
        sentinel_test(range(gX, gX+4), u)
        A(f"s_or_b64 vcc, {sr(sT0,2)}, vcc\ns_cbranch_scc0 L_xq1_ok\ns_cmp_eq_u32 s{sW}, 1\ns_branch L_xq1_top\nL_xq1_ok:")
    else: poll(l1, range(gX, gX+4), u, 1)
    A(f"ds_write_b128 v{aXW}, {vr(gX,4)}\n{join}:\ns_waitcnt lgkmcnt(0)\ns_barrier")
    FS(stg)
FSt, ACC, SAC = t + 28, t + 40, t + 52
def stat_reads(): A(f"ds_read_b64_tr_b16 {vr(FSt,2)}, v{aS1}\nds_read_b64_tr_b16 {vr(FSt+2,2)}, v{aS1} offset:128\nds_read_b64_tr_b16 {vr(FSt+4,2)}, v{aS3}")
def frag_reads():
    for ks in range(4): A(f"ds_read_b128 {vr(FA+4*ks,4)}, v{aXR} offset:{ks*64}")
    A(f"ds_read_b64 {vr(FA+18,2)}, v{aXT}")
stat_mfma = [f"v_mfma_f32_16x16x16_bf16 {vr(SAC+4*k,4)}, {vr(vONE if k < 2 else vONE3,2)}, {vr(FSt+2*k,2)}, 0" for k in range(3)]
s1, s2 = u + 2, u + 3
stat_valu = [f"v_add_f32 v{s1}, v{SAC}, v{SAC+4}", f"v_mul_f32 v{s2}, v{SAC}, v{SAC}", f"v_add_f32 v{s1}, v{s1}, v{SAC+8}",
             f"v_fmac_f32 v{s2}, v{SAC+4}, v{SAC+4}", f"v_fmac_f32 v{s2}, v{SAC+8}, v{SAC+8}", "s_nop 0"]
for k, p in enumerate(ROWRED): stat_valu += ["s_nop 0", dpp("v_add_f32", s1, s1, p), dpp("v_add_f32", s2, s2, p)]
def main_mfma(nt, w, first_wait):
    o = []
    for ks in range(5):
        for k in range(nt):
            c = "0" if ks == 0 else vr(ACC+4*k, 4)
            m = mfma(vr(ACC+4*k,4), vr(FA+4*ks,4), ar(w+18*k+(4*ks if ks < 4 else 14),4), c)
            o.append((f"s_waitcnt lgkmcnt({first_wait-ks})\n" if k == 0 else "") + m)
    return o

A("L_q:")
A(f"v_lshlrev_b32 v{u+14}, 2, v{vN}\nv_add_u32 v{u+14}, {RDY2}, v{u+14}")
hint_wait(128)
stamp(12)
A(f"s_add_u32 s{sXO}, s{sCOPY}, {X2O}\ns_mov_b32 s{sPASS}, {PS}\ns_add_u32 s{sI}, s{sIB}, {PS}")
x_gather(aX1, aX2, "q")
stamp(13)
A("L_q_reads:")
frag_reads(); stat_reads()
for m in main_mfma(1, cWQ, 7): A(m)
FS("q")
a = ACC
A(f"""s_cmp_eq_u32 s{sPASS}, 0
s_nop 6
v_add_f32 v{a}, v{a}, v{a+1}
v_add_f32 v{a+2}, v{a+2}, v{a+3}
v_add_f32 v{a}, v{a}, v{a+2}
v_mov_b32 v{a+1}, v{a}
s_nop 1
v_permlane32_swap_b32 v{a}, v{a+1}
v_add_f32 v{a}, v{a}, v{a+1}
v_mov_b32 v{a+1}, v{a}
s_cbranch_scc1 L_q0_pub
s_nop 0
v_permlane16_swap_b32 v{a}, v{a+1}
v_add_f32 v{a}, v{a}, v{a+1}""")
FS("q")
pub(f"buffer_store_dword v{a}, v{aQD}, {WS}, s{sI} offen", "0xffff")
FS("q")
A("s_waitcnt lgkmcnt(0)")
for m in stat_mfma: A(m)
A("s_nop 6")
for x in stat_valu: A(x)
A(f"s_cmp_eq_u32 s{sCG}, 0\ns_cselect_b64 {sr(sT2,2)}, 1, 0")
pub(f"buffer_store_dwordx2 {vr(s1,2)}, v{aQS}, {WS}, s{sI} offen", sr(sT2,2))
FS("q")
A("L_att_poll:")

with Tail():
    A(f"L_q0_pub:\ns_nop 0\nv_permlane16_swap_b32 v{a}, v{a+1}\nv_add_f32 v{vQ0}, v{a}, v{a+1}")
    q0store = f"buffer_store_dwordx2 {vr(vQ0,2)}, v{vQ0+2}, {WS}, s{sQ0} offen"
    A(f"""v_mov_b32 v{vQ0+1}, s{sE1}
v_lshlrev_b32 v{vQ0+2}, 1, v{aQD}
s_mov_b64 exec, 0xffff
{q0store}
s_mov_b64 exec, -1""")
    for i in range(NK1 + NKB, 16): kdma(i)
    vo = u + 12
    A(f"""s_and_b32 s{sT0}, s{sW}, 1
s_lshl_b32 s{sT0}, s{sT0}, 1
v_and_b32 v{vo}, 1, v{vG}
v_or_b32 v{vo}, s{sT0}, v{vo}
v_lshlrev_b32 v{vo}, 1, v{vo}
v_xor_b32 v{vo}, v{vo}, v{vN}
v_lshlrev_b32 v{vo}, 4, v{vo}
v_lshl_add_u32 v{vo}, v{vG}, 8, v{vo}
s_lshr_b32 s{sT0}, s{sROT}, 5
s_and_b32 s{sT0}, s{sT0}, 128
v_xor_b32 v{vo}, s{sT0}, v{vo}
v_xor_b32 v{vo+1}, 128, v{vo}""")
    srd2(rV, 65536)
    def vdma(i): A(blk_m0(sVM, i, 0x7000) + f"\nbuffer_load_dwordx4 v{vo + (i & 1)}, {sr(rV,4)}, m0 offen {LDF} lds")
    for i in range(NQ): vdma(i)
    A(f"""s_getreg_b32 s{sXCC}, hwreg(HW_REG_XCC_ID)
s_and_b32 s{sXCC}, s{sXCC}, 7
s_cmp_lg_u32 s{sW}, 3
s_cbranch_scc1 L_nordy
s_lshl_b32 s{sT0}, s{sX}, 7
s_lshl_b32 s{sT1}, s{sJ}, 2
s_add_u32 s{sT0}, s{sT0}, s{sT1}
s_add_u32 s{sT0}, s{sT0}, {RDY}
v_mov_b32 v{u+14}, s{sT0}
s_or_b32 s{sT0}, s{sE1}, s{sXCC}
v_mov_b32 v{u+15}, s{sT0}
s_mov_b64 exec, 1
s_waitcnt vmcnt({16 - NK1 + NQ + 1})
buffer_store_dword v{u+15}, v{u+14}, {WS}, 0 offen sc1
s_mov_b64 exec, -1
L_nordy:
s_lshr_b32 s{sT0}, s{sJ}, 4
s_lshl_b32 s{sT0}, s{sT0}, 12
v_lshl_add_u32 v{aQ1}, v0, 4, s{sT0}
v_lshlrev_b32 v{t}, 1, v{aQ1}""")
    g0 = t + 28
    q0loads = f"""buffer_load_dwordx4 {vr(g0,4)}, v{t}, {WS}, s{sQ0} offen sc1
buffer_load_dwordx4 {vr(g0+4,4)}, v{t}, {WS}, s{sQ0} offen offset:16 sc1"""
    if OPT["xnoq0"] < 1: A(q0loads)
    for i in range(NQ, NV1): vdma(i)
    srd2(rW2, 4608*576*2); srd2(rB1, 4608*2); srd2(rOUT, 1152)
    A(f"""s_mov_b32 s{sMODE}, 0
s_mov_b32 s{sCOPY}, 0
s_mov_b32 s{sI}, s{sIB}
s_cmp_ge_u32 s{sJ}, 18
s_cselect_b32 s{sROLE}, 1, 0
s_cselect_b32 s{rWA}, s92, s{rWA}
s_cselect_b32 s{rWA+1}, s93, s{rWA+1}
s_mov_b32 s{rWA+2}, {4096*576*2}
s_cselect_b32 s{rWA+2}, {576*4608*2}, s{rWA+2}
s_mov_b32 s{rWA+3}, 0x20000
s_cmp_ge_u32 s{sJ}, 30
s_cselect_b32 s{sROLE}, 2, s{sROLE}
s_cmp_ge_u32 s{sJ}, 9
s_cselect_b32 s{sHALF}, 1, 0
s_mul_i32 s{sT0}, s{sHALF}, 9
s_sub_u32 s{sCG9}, s{sJ}, s{sT0}
s_sub_u32 s{sT0}, s{sJ}, 18
s_and_b32 s{sT1}, s{sT0}, 3
s_lshr_b32 s{sT0}, s{sT0}, 2
s_and_b32 s{sT0}, s{sT0}, 3
s_cmp_eq_u32 s{sROLE}, 0
s_cselect_b32 s{sHALF}, s{sHALF}, s{sT1}
s_cselect_b32 s{sCG9}, s{sCG9}, s{sT0}
v_mov_b32 v{vONE}, 0x3f803f80
v_mov_b32 v{vONE+1}, 0x3f803f80
s_cmp_eq_u32 s{sW}, 0
s_cselect_b32 s{sT0}, 0x3f803f80, 0
s_cselect_b64 {sr(mW0,2)}, 1, 0
v_mov_b32 v{vONE3}, s{sT0}
v_mov_b32 v{vONE3+1}, s{sT0}
v_mov_b32 v{vJUNK}, {1/576:.9e}""")
    mask64(mODDR, 0xffff0000, 0xffff0000); mask64(mODDL, 0xaaaaaaaa, 0xaaaaaaaa); mask64(mROW3, 0, 0xffff0000)
    c1, c2, CS = t + 40, t + 44, t + 48
    for r in range(4): A(f"v_mov_b32 v{c1+r}, v{vONE}")
    A(f"v_mov_b32 v{c2}, 0\nv_mov_b32 v{c2+1}, 0\nv_mov_b32 v{c2+2}, v{vONE}\nv_mov_b32 v{c2+3}, v{vONE}")
    for r in list(range(aRES, aHR + 1)) + [vS1 + 1]: A(f"v_mov_b32 v{r}, 0")
    for ks in range(4): A(mfma(vr(CS,4), vr(c1,4), ar(cWQ+4*ks,4), "0" if ks == 0 else vr(CS,4)))
    A(mfma(vr(CS,4), vr(c2,4), ar(cWQ+14,4), vr(CS,4)))
    A(f"""v_lshrrev_b32 v{aS3}, 2, v{vL}
v_mul_u32_u24 v{aS3}, 288, v{aS3}
v_and_b32 v{aS1}, 3, v{vL}
v_lshl_add_u32 v{aS3}, v{aS1}, 3, v{aS3}
s_lshl_b32 s{sT0}, s{sW}, 5
s_add_u32 s{sT0}, s{sT0}, {LXS}
v_add_u32 v{aS1}, s{sT0}, v{aS3}
v_add_u32 v{aS3}, {LXS + 256}, v{aS3}
s_lshl_b32 s{sT0}, s{sRG}, 5
s_lshl_b32 s{sT1}, s{sW}, 3
s_add_u32 s{sT0}, s{sT0}, s{sT1}
s_add_u32 s{sT0}, s{sT0}, {QSo}
v_mov_b32 v{aQS}, s{sT0}
v_lshrrev_b32 v{t+4}, 7, v0
v_mul_u32_u24 v{t+4}, 128, v{t+4}
v_lshl_add_u32 v{aQW}, v0, 1, v{t+4}
v_add_u32 v{aQW}, {LQ}, v{aQW}
ds_write_b16 v{aQW}, v{c2} offset:1600
ds_write_b16 v{aQW}, v{c2} offset:2400
v_mov_b32 v{t+4}, {LMODE}
ds_read_b32 v{gQS+1}, v{t+4}
v_mov_b32 v{gQS}, 0
v_mov_b32 v{vCS}, v{CS}""")
    A(f"v_add_u32 v{t+3}, 256, v{vL}\nv_min_u32 v{t+3}, 287, v{t+3}")
    x_addr(aX1, 0, sRG, t+4); x_addr(aX2, t+3, sRG, t+4)
    A(f"""v_lshlrev_b32 v{aQ2}, 3, v{vN}
v_add_u32 v{aQ2}, {QSo}, v{aQ2}
v_lshrrev_b32 v{t+4}, 3, v{vN}
v_mul_u32_u24 v{aPR}, 640, v{t+4}
v_mul_u32_u24 v{aQR}, 384, v{t+4}
v_and_b32 v{t+4}, 3, v{vN}
v_mul_u32_u24 v{t+5}, 800, v{t+4}
v_add_u32 v{aQR}, v{aQR}, v{t+5}
v_lshl_add_u32 v{aQR}, v{vG}, 4, v{aQR}
v_add_u32 v{aQR}, {LQ}, v{aQR}
v_lshl_add_u32 v{aPR}, v{vG}, 4, v{aPR}
v_add_u32 v{aPR}, {LP}, v{aPR}
v_lshrrev_b32 v{t+5}, 5, v{vL}
v_mul_u32_u24 v{aPW}, 640, v{t+5}
v_and_b32 v{aMW}, 31, v{vL}
v_lshl_add_u32 v{aPW}, v{aMW}, 2, v{aPW}
s_lshl_b32 s{sT0}, s{sW}, 7
s_add_u32 s{sT0}, s{sT0}, {LP}
v_add_u32 v{aPW}, s{sT0}, v{aPW}
v_lshlrev_b32 v{aMR}, 4, v{t+5}
s_lshl_b32 s{sT0}, s{sW}, 2
s_add_u32 s{sT0}, s{sT0}, {LM}
v_add_u32 v{aMW}, s{sT0}, v{aMR}
v_lshl_add_u32 v{aMR}, v{t+4}, 2, v{aMR}
v_add_u32 v{aMR}, {LM}, v{aMR}
v_min_u32 v{aHL}, 17, v{vL}
v_lshlrev_b32 v{aHL}, 2, v{aHL}
v_add_u32 v{aHL}, {H3o}, v{aHL}""")
    A(f"""s_lshl_b32 s{sT0}, s{sJ}, 9
s_lshl_b32 s{sT1}, s{sW}, 6
s_add_u32 s{sT0}, s{sT0}, s{sT1}
s_add_u32 s{sT0}, s{sT0}, {OPo}
v_lshlrev_b32 v{aOP}, 8, v{t+5}
v_lshl_add_u32 v{aOP}, v{vN}, 2, v{aOP}
v_add_u32 v{aOP}, s{sT0}, v{aOP}
s_lshl_b32 s{sT0}, s{sJ}, 6
s_add_u32 s{sT0}, s{sT0}, {MLo}
s_lshl_b32 s{sT1}, s{sW}, 2
s_add_u32 s{sT1}, s{sT1}, s{sT0}
v_lshl_add_u32 v{t+4}, v{t+5}, 4, s{sT1}
s_lshl_b32 s{sT1}, s{sW}, 3
s_add_u32 s{sT1}, s{sT1}, s{sT0}
s_add_u32 s{sT1}, s{sT1}, 32
v_lshl_add_u32 v{t+5}, v{t+5}, 2, s{sT1}
v_cndmask_b32 v{t+4}, v{t+4}, v{t+5}, {sr(mODDL,2)}
v_cndmask_b32 v{aOP}, v{aOP}, v{t+4}, {sr(mODDR,2)}
s_mov_b32 s{mATT}, 0x1ffff
s_cmp_lt_u32 s{sW}, 2
s_cselect_b32 s{mATT}, 0x3ffff, s{mATT}
s_mov_b32 s{mATT+1}, s{mATT}""")
    ka = t + 4
    A(f"s_lshl_b32 s{sT0}, s{sW}, 14\ns_add_u32 s{sT0}, s{sT0}, {LR}\nv_lshl_add_u32 v{u+8}, v{vN}, 8, s{sT0}\nv_xor_b32 v{u+9}, v{vG}, v{vN}")
    for ks in range(4): A(f"v_xor_b32 v{ka+ks}, {ks << 2}, v{u+9}\nv_lshl_add_u32 v{ka+ks}, v{ka+ks}, 4, v{u+8}")
    A(f"s_waitcnt vmcnt({NV1 - NQ})\ns_barrier")
    stamp(3)
    for Tt in range(4):
        for ks in range(4): A(f"ds_read_b128 {vr(vK+16*Tt+4*ks,4)}, v{ka+ks} offset:{Tt*4096}")
    A(f"s_mov_b32 s{sCNT}, 0\nL_q0_chk:\nv_xor_b32 v{u+8}, s{sE1}, v{g0+1}")
    for k in range(1, 4): A(f"v_xor_b32 v{g0+2*k+1}, s{sE1}, v{g0+2*k+1}\nv_or_b32 v{u+8}, v{u+8}, v{g0+2*k+1}")
    A(f"v_cmp_ne_u32 vcc, 0, v{u+8}\ns_cbranch_vccz L_q0_ok")
    if OPT["xnoq0"]: A("s_branch L_q0_ok")
    A(f"s_cmp_lg_u32 s{sCNT}, 0\ns_cselect_b64 exec, 0, 0xffff\n{q0store} sc1\ns_mov_b64 exec, -1")
    A(f"s_add_u32 s{sCNT}, s{sCNT}, 1\ns_cmp_ge_u32 s{sCNT}, {OPT['tmo']}\ns_cbranch_scc1 L_end\n{q0loads}\ns_waitcnt vmcnt(0)\ns_branch L_q0_chk\nL_q0_ok:")
    for k in range(4): A(f"v_mov_b32 v{gQ+k}, v{g0+2*k}")
    A("s_branch L_att_ok")

poll(f"buffer_load_dwordx4 {vr(gQ,4)}, v{aQ1}, {WS}, s{sI} offen sc1", range(gQ, gQ+4), u)
qsload = f"buffer_load_dwordx2 {vr(gQS,2)}, v{aQ2}, {WS}, s{sI} offen sc1"
resload2 = f"buffer_load_dwordx4 {vr(gRES,4)}, v{aRES}, {WS}, s{sXO} offen sc1"
A("L_att_ok:")
stamp(4); FS("att")
qv, qh, ql = u, u + 1, u + 2
A(f"""v_add_f32 v{qv}, v{gQ}, v{gQ+1}
v_add_f32 v{qh}, v{gQ+2}, v{gQ+3}
s_cmp_eq_u32 s{sPASS}, 0
v_add_f32 v{qv}, v{qv}, v{qh}
v_cvt_pk_bf16_f32 v{qh}, v{qv}, v{qv}
ds_write_b16 v{aQW}, v{qh}
v_lshlrev_b32 v{ql}, 16, v{qh}
v_sub_f32 v{qv}, v{qv}, v{ql}
v_cvt_pk_bf16_f32 v{qv}, v{qv}, v{qv}
ds_write_b16 v{aQW}, v{qv} offset:800
s_cbranch_scc1 L_att_nold
{qsload}
{resload2}
L_att_nold:""")
FS("att")
A("s_waitcnt lgkmcnt(0)\ns_barrier")
FS("att")
fq, D = t + 28, t + 44
for ks in range(4): A(f"ds_read_b128 {vr(fq+4*ks,4)}, v{aQR} offset:{ks*64}")
qk = [(f"s_waitcnt lgkmcnt({3-ks})\n" if Tt == 0 else "") + mfma(vr(D+4*Tt,4), vr(fq+4*ks,4), vr(vK+16*Tt+4*ks,4), "0" if ks == 0 else vr(D+4*Tt,4))
      for Tt in range(4) for ks in range(4)]
for m in qk[:4]: A(m)
A("s_cbranch_scc1 L_att_nochk\ns_waitcnt vmcnt(1)")
recheck(qsload, [gQS, gQS+1], u+3)
A("L_att_nochk:")
z1, z2 = u + 4, u + 5
side = [dpp("v_add_f32", z1, gQS, ROWRED[0]), dpp("v_add_f32", z2, gQS+1, ROWRED[0])]
for p in ROWRED[1:]: side += [dpp("v_add_f32", z1, z1, p), dpp("v_add_f32", z2, z2, p)]
side += [f"v_mul_f32 v{vMU}, {1/576:.9e}, v{z1}", f"v_mul_f32 v{z2}, {1/576:.9e}, v{z2}", f"v_fma_f32 v{z2}, -v{vMU}, v{vMU}, v{z2}",
         f"v_add_f32 v{D}, v{D}, v{D+1}", f"v_max_f32 v{z2}, 0, v{z2}", f"v_add_f32 v{z2}, 0x3727c5ac, v{z2}", f"v_rsq_f32 v{vC}, v{z2}",
         f"v_add_f32 v{D+2}, v{D+2}, v{D+3}", f"v_mul_f32 v{vC}, {128**-0.5*math.log2(math.e):.9e}, v{vC}",
         f"v_add_f32 v{D+4}, v{D+4}, v{D+5}", f"v_add_f32 v{D+6}, v{D+6}, v{D+7}", f"v_mul_f32 v{vMU}, v{vMU}, v{vC}"]
weave(qk[4:], side, 2)
FS("att")
sa, sb, um, tm = u + 6, u + 7, u + 8, u + 9
A(f"""v_add_f32 v{D+8}, v{D+8}, v{D+9}
v_add_f32 v{D+10}, v{D+10}, v{D+11}
v_cndmask_b32 v{sa}, v{D}, v{D+8}, {sr(mODDR,2)}
v_cndmask_b32 v{tm}, v{D+2}, v{D+10}, {sr(mODDR,2)}
v_mul_f32 v{sa}, v{sa}, v{vC}
v_fma_f32 v{sa}, -v{vMU}, v{tm}, v{sa}
s_nop 1
v_add_f32 v{D+12}, v{D+12}, v{D+13}
v_add_f32 v{D+14}, v{D+14}, v{D+15}
v_cndmask_b32 v{sb}, v{D+4}, v{D+12}, {sr(mODDR,2)}
v_cndmask_b32 v{tm}, v{D+6}, v{D+14}, {sr(mODDR,2)}
v_mul_f32 v{sb}, v{sb}, v{vC}
v_fma_f32 v{sb}, -v{vMU}, v{tm}, v{sb}
v_max_f32 v{um}, v{sa}, v{sb}
v_max_f32 v{tm}, v{sa}, v{sb}
s_nop 1
v_permlane16_swap_b32 v{um}, v{tm}
v_max_f32 v{um}, v{um}, v{tm}
s_nop 1""")
rowred("v_max_f32", [um])
A(f"""v_sub_f32 v{sa}, v{sa}, v{um}
v_sub_f32 v{sb}, v{sb}, v{um}
ds_write_b32 v{aMW}, v{um}
v_exp_f32 v{sa}, v{sa}
v_exp_f32 v{sb}, v{sb}
s_cmp_eq_u32 s{sPASS}, 0
v_cvt_pk_bf16_f32 v{tm}, v{sa}, v{sb}
ds_write_b32 v{aPW}, v{tm}""")
FS("att")
A(f"v_lshlrev_b32 v{sa}, 16, v{tm}\nv_and_b32 v{sb}, 0xffff0000, v{tm}\nv_add_f32 v{sa}, v{sa}, v{sb}\ns_cbranch_scc1 L_rdy")
fp, acc, fm, big, fb = t - 0, t + 32, u + 7, u + 9, u + 10
def pv_head():
    A("s_waitcnt lgkmcnt(0)\ns_barrier")
    A(f"ds_read_b32 v{fm}, v{aMR}")
    for ks in range(8): A(f"ds_read_b128 {vr(fp+4*ks,4)}, v{aPR} offset:{ks*64}")
def pv_mfma(ks, tau):
    a_ = acc + 8*(ks >> 1) + 4*tau
    return mfma(vr(a_,4), vr(fp+4*ks,4), ar(cV+8*ks+4*tau,4), "0" if ks % 2 == 0 else vr(a_,4))
lc = u + 14
pv_side = [f"v_mov_b32 v{lc}, v{sa}", dpp("v_max_f32", big, fm, ROWRED[0]), "s_nop 0",
           f"v_permlane16_swap_b32 v{sa}, v{lc}", dpp("v_max_f32", big, big, ROWRED[1]), f"v_add_f32 v{sa}, v{sa}, v{lc}",
           f"v_sub_f32 v{fm}, v{fm}, v{big}", f"v_sub_f32 v{um}, v{um}, v{big}",
           dpp("v_add_f32", sa, sa, ROWRED[0]), f"v_exp_f32 v{fm}, v{fm}", f"v_exp_f32 v{um}, v{um}",
           dpp("v_add_f32", sa, sa, ROWRED[1]), f"v_mov_b32_dpp v{fb}, v{fm} row_newbcast:0 {DPPM}", f"v_mov_b32_dpp v{fb+1}, v{fm} row_newbcast:1 {DPPM}",
           dpp("v_add_f32", sa, sa, ROWRED[2]), f"v_mov_b32_dpp v{fb+2}, v{fm} row_newbcast:2 {DPPM}", f"v_mov_b32_dpp v{fb+3}, v{fm} row_newbcast:3 {DPPM}",
           dpp("v_add_f32", sa, sa, ROWRED[3]), f"v_mul_f32 v{sa}, v{sa}, v{um}", f"v_cndmask_b32 v{sa}, v{sa}, v{big}, {sr(mODDL,2)}"]
o0, o1 = lc, um
pv_tail = [f"v_mul_f32 v{o0}, v{fb}, v{acc}", f"v_mul_f32 v{o1}, v{fb}, v{acc+4}", f"v_fmac_f32 v{o0}, v{fb+1}, v{acc+8}", f"v_fmac_f32 v{o1}, v{fb+1}, v{acc+12}"]
pv_head()
stamp(5); FS("att")
PVW = {0: 7, 1: 6, 2: 4, 4: 2, 6: 0}
weave([(f"s_waitcnt lgkmcnt({PVW[ks]})\n" if tau == 0 and ks in PVW else "") + pv_mfma(ks, tau) for ks in range(8) for tau in range(2)], pv_side + pv_tail, 2, 0)
def pv_finish():
    A(f"""v_fmac_f32 v{o0}, v{fb+2}, v{acc+16}
v_fmac_f32 v{o1}, v{fb+2}, v{acc+20}
v_mov_b32 v{FA+16}, 0
v_mov_b32 v{FA+17}, 0
s_nop 2
v_fmac_f32 v{o0}, v{fb+3}, v{acc+24}
v_fmac_f32 v{o1}, v{fb+3}, v{acc+28}
v_cvt_pk_bf16_f32 v{o0}, v{o0}, v{o1}
v_cndmask_b32 v{o0}, v{o0}, v{sa}, {sr(mODDR,2)}""")
    pub(f"buffer_store_dword v{o0}, v{aOP}, {WS}, s{sI} offen", sr(mATT,2))
FS("att")
pv_finish()
FS("att"); stamp(6)
A(f"s_cmp_lg_u32 s{sROLE}, 0\ns_cbranch_scc1 L_roleBF")

def wo_dma(i0, i1, v):
    wdma_voff(v, 1152, "wo")
    A(f"""s_lshl_b32 s{sT1}, s{sX}, 1
s_add_u32 s{sT1}, s{sT1}, s{sHALF}
s_lshl_b32 s{sT1}, s{sT1}, 5
s_add_u32 s{sT1}, s{sT1}, s{sW}
s_mul_i32 s{sT1}, s{sT1}, {8*1152}
s_lshl_b32 s{sT2}, s{sCG9}, 7
s_add_u32 s{sT1}, s{sT1}, s{sT2}
s_lshl_b32 s{sT2}, s{sW}, 10
s_add_u32 s{sT2}, s{sT2}, {LR + i0*4096}""")
    if i0: A(f"s_add_u32 s{sT1}, s{sT1}, {i0*32*1152}")
    for i in range(i0, i1):
        dma(rWA, v, sT1, sT2)
        if i < i1 - 1: A(f"s_add_u32 s{sT1}, s{sT1}, {32*1152}\ns_add_u32 s{sT2}, s{sT2}, 4096")
def w2_dma(i0, i1, v):
    wdma_voff(v, 1152, "std")
    A(f"""s_lshl_b32 s{sT1}, s{sX}, 1
s_add_u32 s{sT1}, s{sT1}, s{sHALF}
s_mul_i32 s{sT1}, s{sT1}, 36
s_add_u32 s{sT1}, s{sT1}, s{sW}
s_mul_i32 s{sT1}, s{sT1}, {8*1152}
s_lshl_b32 s{sT2}, s{sCG9}, 7
s_add_u32 s{sT1}, s{sT1}, s{sT2}
s_lshl_b32 s{sT2}, s{sW}, 10
s_add_u32 s{sT2}, s{sT2}, {LW2 + i0*4096}""")
    if i0: A(f"s_add_u32 s{sT1}, s{sT1}, {i0*32*1152}")
    for i in range(i0, i1):
        dma(rW2, v, sT1, sT2)
        if i < i1 - 1: A(f"s_add_u32 s{sT1}, s{sT1}, {32*1152}\ns_add_u32 s{sT2}, s{sT2}, 4096")
def w1_dma(k0, k1, v, done):
    wdma_voff(v, 9216, "std")
    A(f"""s_mul_i32 s{sT1}, s{sHALF}, 18
s_add_u32 s{sT1}, s{sT1}, s{sW}
s_mul_i32 s{sT1}, s{sT1}, {8*9216}
s_mul_i32 s{sT2}, s{sX}, 1152
s_add_u32 s{sT1}, s{sT1}, s{sT2}
s_mul_i32 s{sT2}, s{sCG9}, 384
s_add_u32 s{sT1}, s{sT1}, s{sT2}
s_lshl_b32 s{sT2}, s{sW}, 10
s_add_u32 s{sT2}, s{sT2}, {LR}""")
    for k in range(k0, k1):
        i, c = divmod(k, 3)
        if k == 12: A(f"s_cmp_ge_u32 s{sW}, 2\ns_cbranch_scc1 {done}")
        A(f"s_add_u32 s{sT3}, s{sT1}, {i*32*9216 + c*128}\ns_add_u32 s{sT4}, s{sT2}, {i*4096 + c*18432}")
        dma(rWA, v, sT3, sT4)

def w1_regs():
    for c in range(3): tr_slice(cWA + 18*c, t+8, t+10, c*18432)
    for r in range(4): A(f"v_mov_b32 v{t+28+r}, v{vONE}")
    A(f"v_mov_b32 v{t+32}, 0\nv_mov_b32 v{t+33}, 0\nv_mov_b32 v{t+34}, v{vONE}\nv_mov_b32 v{t+35}, v{vONE}\ns_nop 0\ns_waitcnt lgkmcnt(0)")
    for c in range(3):
        a_ = ACC + 4*c
        for ks in range(4): A(mfma(vr(a_,4), vr(t+28,4), ar(cWA+18*c+4*ks,4), "0" if ks == 0 else vr(a_,4)))
        A(mfma(vr(a_,4), vr(t+32,4), ar(cWA+18*c+14,4), vr(a_,4)))
    A(f"v_cmp_eq_u32 vcc, 2, v{vG}\ns_nop 6")
    A(f"v_cndmask_b32 v{ACC}, v{ACC}, v{ACC+4}, vcc\nv_cndmask_b32 v{vS1}, v{ACC}, v{ACC+8}, {sr(mODDR,2)}")

with Tail():
    ra_, rb_, avt = t, t + 1, t + 2
    gv, gva = gO, gML
    gload = f"buffer_load_dwordx4 {vr(gv,4)}, v{gva}, {WS}, 0 offen sc1"
    A(f"L_rdy:\nv_lshlrev_b32 v{gva}, 4, v{vL}\nv_add_u32 v{gva}, {RDY}, v{gva}")
    BEH = OPT["beh"]; NX = 1 if OPT["touch"] else 0
    x0res = f"s_lshl_b32 s{sT0}, s{sCG9}, 7\ns_lshl_b32 s{sT1}, s{sW}, 5\ns_add_u32 s{sT0}, s{sT0}, s{sT1}\nv_lshl_add_u32 v{t+4}, v{vG}, 3, s{sT0}\nbuffer_load_dwordx2 {vr(vR+2,2)}, v{t+4}, {sr(rXI,4)}, 0 offen"
    def role_dma(done):
        lb = uid("rb")
        A(f"s_cmp_eq_u32 s{sROLE}, 1\ns_cbranch_scc1 {lb}\ns_cmp_eq_u32 s{sROLE}, 2\ns_cbranch_scc1 {done}f")
        if NW2: w2_dma(0, NW2, t+4)
        wo_dma(0, 8, t+4)
        if BEH: A(f"s_waitcnt vmcnt({8 + NW2 + NX + 1})")
        A(f"s_branch {done}\n{lb}:")
        if NB1: w1_dma(0, NB1, t+4, done + "b")
        A(f"{done}b:")
        if BEH: A(f"s_waitcnt vmcnt({min(NB1, 12) + NX + 1})\ns_branch {done}")
        A(f"{done}f:")
        if BEH: A(f"s_waitcnt vmcnt({NX + 1})")
        A(f"{done}:")
    A(x0res)
    if not BEH: role_dma("L_w1_issued")
    A(gload)
    for i in range(NV1, 16): vdma(i)
    avt = vKO
    A(f"""v_bfe_u32 v{avt+1}, v{vL}, 3, 2
v_bfe_u32 v{t+4}, v{vL}, 2, 1
v_lshl_or_b32 v{avt+1}, v{t+4}, 2, v{avt+1}
s_lshl_b32 s{sT0}, s{sW}, 1
v_xor_b32 v{avt+1}, s{sT0}, v{avt+1}
v_lshlrev_b32 v{avt+1}, 5, v{avt+1}
v_and_b32 v{avt}, 3, v{vL}
v_lshl_add_u32 v{avt}, v{avt}, 3, v{avt+1}
v_lshl_add_u32 v{avt}, v{t+4}, 12, v{avt}
v_bfe_u32 v{t+4}, v{vL}, 3, 1
v_lshl_add_u32 v{avt}, v{t+4}, 8, v{avt}
v_lshl_add_u32 v{avt}, v{vG}, 10, v{avt}
v_xor_b32 v{avt+1}, 32, v{avt}""")
    def vtr(ks, tau, h): return f"ds_read_b64_tr_b16 {ar(cV+8*ks+4*tau+2*h,2)}, v{avt+tau} offset:{ks*8192+h*512}"
    A(f"s_cmp_eq_u32 s{sROLE}, 1\ns_cbranch_scc1 L_sub\ns_cmp_eq_u32 s{sROLE}, 2\ns_cbranch_scc1 L_sud")
    A(f"""s_and_b32 s{sT0}, s{sW}, 1
s_lshl_b32 s{sT0}, s{sT0}, 1
v_lshrrev_b32 v{t+8}, 3, v{vN}
v_add_u32 v{t+8}, s{sT0}, v{t+8}
v_and_b32 v{t+9}, 1, v{vN}
v_lshlrev_b32 v{t+9}, 4, v{t+9}
v_mov_b32 v{t+10}, 0x3d80
v_lshlrev_b32 v{t+9}, v{t+9}, v{t+10}
v_cmp_eq_u32 vcc, v{t+8}, v{vG}
v_bfe_u32 v{t+10}, v{vN}, 1, 2
s_nop 0
v_cndmask_b32 v{t+9}, 0, v{t+9}, vcc""")
    for r in range(4): A(f"v_cmp_eq_u32 vcc, {r}, v{t+10}\ns_nop 1\nv_cndmask_b32 v{vSEL+r}, 0, v{t+9}, vcc")
    A(f"""v_lshrrev_b32 v{aRES}, 2, v{vN}
v_lshlrev_b32 v{aRES}, 14, v{aRES}
v_and_b32 v{t+8}, 3, v{vN}
v_lshl_add_u32 v{aRES}, v{t+8}, 11, v{aRES}
v_lshl_add_u32 v{aRES}, v{vG}, 4, v{aRES}
s_lshl_b32 s{sT0}, s{sCG9}, 7
s_lshr_b32 s{sT1}, s{sW}, 1
s_lshl_b32 s{sT1}, s{sT1}, 6
s_add_u32 s{sT0}, s{sT0}, s{sT1}
v_add_u32 v{aRES}, s{sT0}, v{aRES}
s_lshl_b32 s{sT0}, s{sHALF}, 13
s_lshl_b32 s{sT1}, s{sW}, 11
s_add_u32 s{sT0}, s{sT0}, s{sT1}
s_add_u32 s{sT0}, s{sT0}, {OPo}
v_lshl_add_u32 v{aO1}, v{vL}, 4, s{sT0}
s_lshl_b32 s{sT0}, s{sHALF}, 10
s_add_u32 s{sT0}, s{sT0}, {MLo}
v_lshl_add_u32 v{aML}, v{vN}, 6, s{sT0}
v_min_u32 v{t+8}, 2, v{vG}
v_lshl_add_u32 v{aML}, v{t+8}, 4, v{aML}
s_mul_i32 s{sT0}, s{sW}, {4*544}
s_add_u32 s{sT0}, s{sT0}, {LOPS}
v_lshrrev_b32 v{aOW}, 5, v{vL}
v_mul_u32_u24 v{aOW}, 544, v{aOW}
v_and_b32 v{t+8}, 31, v{vL}
v_lshl_add_u32 v{aOW}, v{t+8}, 4, v{aOW}
v_add_u32 v{aOW}, s{sT0}, v{aOW}
v_mul_u32_u24 v{aOR}, 544, v{vN}
v_lshl_add_u32 v{aOR}, v{vG}, 4, v{aOR}
v_add_u32 v{aOR}, {LOPS}, v{aOR}
s_lshl_b32 s{sT0}, s{sX}, 1
s_add_u32 s{sT0}, s{sT0}, s{sHALF}
s_lshr_b32 s{sT1}, s{sT0}, 2
s_lshl_b32 s{sT1}, s{sT1}, 14
s_and_b32 s{sT0}, s{sT0}, 3
s_lshl_b32 s{sT0}, s{sT0}, 11
s_add_u32 s{sT0}, s{sT0}, s{sT1}
s_lshl_b32 s{sT1}, s{sCG9}, 7
s_add_u32 s{sT0}, s{sT0}, s{sT1}
s_lshl_b32 s{sT1}, s{sW}, 5
s_add_u32 s{sT0}, s{sT0}, s{sT1}
v_lshl_add_u32 v{aXS}, v{vG}, 3, s{sT0}
v_lshl_add_u32 v{aXS}, v{vN}, 13, v{aXS}
s_lshl_b32 s{sT0}, s{sJ}, 2
s_add_u32 s{sT0}, s{sT0}, {H3o}
v_mov_b32 v{aHS}, s{sT0}
s_mul_i32 s{sT0}, s{sHALF}, {288*16}
s_mul_i32 s{sT1}, s{sW}, {72*16}
s_add_u32 s{sT0}, s{sT0}, s{sT1}
s_add_u32 s{sT0}, s{sT0}, {HPo}
v_lshl_add_u32 v{aH1}, v{vL}, 4, s{sT0}
s_add_u32 s{sT0}, s{sT0}, 1024
v_lshl_add_u32 v{aH2}, v{vN}, 4, s{sT0}
v_lshlrev_b32 v{t+8}, 4, v{vN}
v_add_u32 v{t+8}, {HSo - 128}, v{t+8}
v_cmp_gt_u32 vcc, 8, v{vN}
s_mul_i32 s{sT0}, s{sW}, 144
s_add_u32 s{sT0}, s{sT0}, {LH}
v_cndmask_b32 v{aH2}, v{t+8}, v{aH2}, vcc
v_lshl_add_u32 v{aHW}, v{vL}, 1, s{sT0}
s_add_u32 s{sT0}, s{sT0}, 128
v_lshl_add_u32 v{aHW2}, v{vN}, 1, s{sT0}
v_mov_b32 v{t+8}, {LH + 576}
v_cndmask_b32 v{aHW2}, v{t+8}, v{aHW2}, vcc
v_lshlrev_b32 v{aHR}, 4, v{vG}
v_add_u32 v{aHR}, {LH}, v{aHR}""")
    A(f"""v_bfe_u32 v{t+8}, v{vL}, 4, 1
v_bfe_u32 v{t+9}, v{vL}, 2, 1
v_lshl_or_b32 v{t+8}, v{t+9}, 1, v{t+8}
v_xor_b32 v{t+8}, s{sW}, v{t+8}
v_lshlrev_b32 v{t+8}, 5, v{t+8}
v_lshl_add_u32 v{t+8}, v{t+9}, 11, v{t+8}
v_and_b32 v{t+9}, 3, v{vL}
v_lshl_add_u32 v{t+8}, v{t+9}, 3, v{t+8}
v_bfe_u32 v{t+9}, v{vL}, 3, 1
v_lshl_add_u32 v{t+8}, v{t+9}, 7, v{t+8}
v_lshl_add_u32 v{t+8}, v{vG}, 9, v{t+8}
v_add_u32 v{t+8}, {LR}, v{t+8}
""")
    A("s_branch L_sud\nL_sub:")
    A(f"v_add_u32 v{t+11}, 256, v{vL}\nv_min_u32 v{t+11}, 287, v{t+11}")
    x_addr(aB1, 0, sHALF, t+12); x_addr(aB2, t+11, sHALF, t+12)
    A(f"""s_mul_i32 s{sT0}, s{sCG9}, {192*16}
s_lshl_b32 s{sT1}, s{sW}, 8
s_add_u32 s{sT0}, s{sT0}, s{sT1}
s_lshl_b32 s{sT1}, s{sHALF}, 2
s_add_u32 s{sT0}, s{sT0}, s{sT1}
s_add_u32 s{sT0}, s{sT0}, {HPo}
v_lshl_add_u32 v{aBD}, v{vN}, 4, s{sT0}
v_and_b32 v{t+8}, 1, v{vG}
v_lshl_add_u32 v{aBD}, v{t+8}, 11, v{aBD}
v_lshrrev_b32 v{t+8}, 1, v{vG}
v_lshl_add_u32 v{aBD}, v{t+8}, 10, v{aBD}
v_add_u32 v{vS1+1}, {S1o - HPo}, v{aBD}
s_lshl_b32 s{sT0}, s{sHALF}, 5
s_lshl_b32 s{sT1}, s{sW}, 3
s_add_u32 s{sT0}, s{sT0}, s{sT1}
s_add_u32 s{sT0}, s{sT0}, {HSo}
v_lshl_add_u32 v{t+8}, v{vN}, 2, s{sT0}
v_cndmask_b32 v{aBD}, v{aBD}, v{t+8}, {sr(mROW3,2)}
s_mov_b32 s{mLN}, -1
s_mov_b32 s{mLN+1}, 0xffff
s_cmp_eq_u32 s{sCG9}, 0
s_cselect_b32 s{mLN+1}, 0x3ffff, s{mLN+1}""")
    traddr_std(t+8, LR); traddr_tail(t+10, LR)
    A("L_sud:")
    A(f"s_mov_b32 s{sCNT}, 0\ns_waitcnt vmcnt({16 - max(NV1, 8)})\ns_barrier")
    for ks in range(4):
        for tau in range(2):
            for h in range(2): A(vtr(ks, tau, h))
    b_ = gv + 4
    A("L_rdy_chk:")
    for r in range(4): A(f"v_xor_b32 v{b_+r}, s{sE1}, v{gv+r}")
    A(f"v_or_b32 v{t+4}, v{b_}, v{b_+1}\nv_or3_b32 v{t+4}, v{t+4}, v{b_+2}, v{b_+3}\nv_cmp_lt_u32 vcc, 7, v{t+4}\ns_cbranch_vccz L_rdy_ok")
    A(f"s_add_u32 s{sCNT}, s{sCNT}, 1\ns_cmp_ge_u32 s{sCNT}, {OPT['tmo']}\ns_cbranch_scc1 L_end\ns_sleep 16\n{gload}\ns_waitcnt vmcnt(0)\ns_branch L_rdy_chk\nL_rdy_ok:")
    for r in range(4): A(f"v_xor_b32 v{b_+r}, s{sXCC}, v{b_+r}")
    A(f"""v_or_b32 v{t+4}, v{b_}, v{b_+1}
v_or3_b32 v{t+4}, v{t+4}, v{b_+2}, v{b_+3}
v_cmp_ne_u32 vcc, 0, v{t+4}
s_lshl_b32 s{sT1}, s{sX}, 3
s_lshr_b64 {sr(sT2,2)}, vcc, s{sT1}
s_and_b32 s{sT2}, s{sT2}, 0xff
s_cselect_b32 s{sMODE}, 0, {OPT['fast']}""")
    A(f"s_cmp_lg_u32 s{sMODE}, 0\ns_cbranch_scc1 L_nore\ns_mov_b64 exec, 0xffff\n{q0store} sc1\ns_mov_b64 exec, -1\ns_waitcnt vmcnt(0)\nL_nore:")
    NX = 1 if OPT["touch"] else 0
    if NX: A(f"""s_mul_i32 s{sT1}, s{sJ}, {REST}
s_lshl_b32 s{sT2}, s{sW}, 8
s_add_u32 s{sT1}, s{sT1}, s{sT2}
s_sub_u32 s{sT1}, s{sT1}, 256
v_lshl_add_u32 v{ra_}, v{vL}, 7, s{sT1}
s_lshl_b32 s{sT1}, s{sJ}, 9
s_lshl_b32 s{sT2}, s{sW}, 7
s_add_u32 s{sT1}, s{sT1}, s{sT2}
s_add_u32 s{sT1}, s{sT1}, {OPo}
s_lshl_b32 s{sT2}, s{sJ}, 6
s_add_u32 s{sT2}, s{sT2}, {MLo}
v_writelane_b32 v{ra_}, s{sT1}, 0
v_writelane_b32 v{ra_}, s{sT2}, 1
s_mov_b64 exec, 15
buffer_load_dword v8, v{ra_}, {WS}, s{sIB} offen sc1
s_mov_b64 exec, -1""")
    pub(f"buffer_store_dword v{vCS}, v{aQD}, {WS}, s{sIB} offen", "0xffff")
    A(f"v_lshlrev_b32 v{vR}, 16, v{vR+2}\nv_and_b32 v{vR+1}, 0xffff0000, v{vR+2}\nv_lshlrev_b32 v{vR+2}, 16, v{vR+3}\nv_and_b32 v{vR+3}, 0xffff0000, v{vR+3}")
    for r in range(4): A(f"v_mul_f32 v{vR+r}, 0x3b800000, v{vR+r}")
    def wo_regs(a_):
        for kk in range(8):
            for h in range(2): A(f"ds_read_b64_tr_b16 {ar(cWA+4*kk+2*h,2)}, v{a_} offset:{kk*4096+h*256}")
    if BEH:
        A(f"v_mov_b32 v{vQ0}, v{t+8}")
        role_dma("L_w1_issued")
    else:
        A(f"s_cmp_eq_u32 s{sROLE}, 1\ns_cbranch_scc1 L_trb\ns_cmp_eq_u32 s{sROLE}, 2\ns_cbranch_scc1 L_trd")
        wo_regs(t+8)
        A("s_branch L_trd\nL_trb:")
        if NB1 == 15: w1_regs()
        A(f"L_trd:\ns_waitcnt vmcnt({NX + 1})")
    pv_head()
    stamp(5)
    vq = [vtr(ks, tau, h) for ks in range(4, 8) for tau in range(2) for h in range(2)]
    side = pv_side + pv_tail; n_after = 0
    for ks in range(8):
        A(f"s_waitcnt lgkmcnt({min(15, 7 - ks + n_after) if ks < 4 else (7 - ks)*4})")
        for tau in range(2):
            A(pv_mfma(ks, tau))
            if vq: A(vq.pop(0)); A(vq.pop(0)); n_after += 2
            else:
                for _ in range(3):
                    if side: A(side.pop(0))
    assert not side
    pv_finish()
    stamp(6)
    A(f"s_cmp_lg_u32 s{sROLE}, 0\ns_cbranch_scc1 L_first")
    if BEH:
        A("s_waitcnt vmcnt(1)\ns_barrier")
        wo_regs(vQ0)
    A("s_branch L_wo_go")

A("s_waitcnt vmcnt(1)")
recheck(resload2, range(gRES, gRES+4), u)
A(mfma(vr(vR,4), vr(vSEL,4), vr(gRES,4), "0"))
A("L_wo_go:")
poll(f"""buffer_load_dwordx4 {vr(gO,4)}, v{aO1}, {WS}, s{sI} offen sc1
buffer_load_dwordx4 {vr(gO+4,4)}, v{aO1}, {WS}, s{sI} offen offset:1024 sc1
buffer_load_dwordx4 {vr(gML,4)}, v{aML}, {WS}, s{sI} offen sc1""", range(gO, gO+12), u)
stamp(7); FS("wo")
ls, mm, m2, M_ = u, u + 1, u + 2, u + 3
A(f"""ds_write_b128 v{aOW}, {vr(gO,4)}
ds_write_b128 v{aOW}, {vr(gO+4,4)} offset:{2*544}
v_cndmask_b32 v{mm}, v{gML}, v{gML+1}, {sr(mODDR,2)}
v_cndmask_b32 v{m2}, v{gML}, v{gML+1}, {sr(mODDR,2)}
v_add_f32 v{ls}, v{gML}, v{gML+1}
v_add_f32 v{M_}, v{gML+2}, v{gML+3}
v_permlane32_swap_b32 v{mm}, v{m2}
v_add_f32 v{ls}, v{ls}, v{M_}
s_nop 0""")
A(dpp("v_max_f32", M_, m2, ROWRED[0]))
for p in ROWRED[1:]: A("s_nop 1\n" + dpp("v_max_f32", M_, M_, p))
A(f"v_sub_f32 v{m2}, v{m2}, v{M_}\nv_exp_f32 v{m2}, v{m2}")
FS("wo")
A("s_waitcnt lgkmcnt(0)\ns_barrier")
FS("wo")
fo, wacc = t + 28, u + 8
for kk in range(8): A(f"ds_read_b128 {vr(fo+4*kk,4)}, v{aOR} offset:{kk*64}")
def hint_send(imm): pub(f"buffer_store_dword v{vL}, v{aHS}, {WS}, s{sI} offen offset:{imm}", sr(mW0,2))
w0, w1_ = m2, mm
A(f"v_mul_f32 v{ls}, v{ls}, v{m2}\ns_nop 1\n{dpp('v_add_f32', ls, ls, ROWRED[0])}\ns_nop 1\n{dpp('v_add_f32', ls, ls, ROWRED[1])}")
FS("wo")
side = [dpp("v_add_f32", ls, ls, ROWRED[2]), dpp("v_add_f32", ls, ls, ROWRED[3]), f"v_rcp_f32 v{ls}, v{ls}",
        f"v_mul_f32 v{w0}, v{m2}, v{ls}\nv_mov_b32 v{M_}, v{w0}", f"v_permlane32_swap_b32 v{w0}, v{M_}\nv_mov_b32 v{w1_}, v{w0}", f"v_permlane16_swap_b32 v{w0}, v{w1_}"]
wom = [f"s_waitcnt lgkmcnt({7-kk})\n" + mfma(vr(wacc+4*(kk >> 2),4), ar(cWA+4*kk,4), vr(fo+4*kk,4), "0" if kk % 4 == 0 else vr(wacc+4*(kk >> 2),4)) for kk in range(8)]
weave(wom, side, 1)
FS("wo")
if OPT["h3pos"] == 1: hint_send(0)
else: A("s_nop 0")
tt = u + 4
for r in range(4): A(f"v_fma_f32 v{tt+r}, v{w0}, v{wacc+r}, v{vR+r}")
if OPT["h3pos"] != 1: A("s_nop 2")
for r in range(4): A(f"v_fmac_f32 v{tt+r}, v{w1_}, v{wacc+4+r}")
rowred("v_add_f32", [tt, tt+1, tt+2, tt+3])
XM = 0x00030003 if OPT["copies"] == 2 else 0x00010001
def x_publish(src, xoff):
    A(f"s_add_u32 s{sT0}, s{sPASS}, {xoff}\nv_cvt_pk_bf16_f32 v{src}, v{src}, v{src+1}\ns_mov_b32 exec_lo, {XM:#x}\ns_mov_b32 exec_hi, {XM:#x}\nv_cvt_pk_bf16_f32 v{src+1}, v{src+2}, v{src+3}")
    A(f"buffer_store_dwordx2 {vr(src,2)}, v{aXS}, {WS}, s{sT0} offen sc1\ns_mov_b64 exec, -1")
FS("wo")
x_publish(tt, X1O)
FS("wo")
if OPT["h3pos"] == 2: hint_send(0)
stamp(8)
A(f"s_cmp_eq_u32 s{sPASS}, 0\ns_cbranch_scc1 L_w2_first\nL_w2_go:\ns_add_u32 s{sXO}, s{sPASS}, s{sCOPY}")
hloads = f"buffer_load_dwordx4 {vr(gH,4)}, v{aH1}, {WS}, s{sI} offen sc1\nbuffer_load_dwordx4 {vr(gH+4,4)}, v{aH2}, {WS}, s{sI} offen sc1"
poll(hloads, range(gH, gH+8), u)
stamp(9); FS("w2")
resload1 = f"buffer_load_dwordx4 {vr(gX1,4)}, v{aRES}, {WS}, s{sXO} offen sc1"
y0, y1, z1, z2, hmu, hrs = u, u + 4, u + 8, u + 9, u + 10, u + 11
A(f"""v_add_f32 v{z1}, v{gH+4}, v{gH+6}
v_add_f32 v{z2}, v{gH+5}, v{gH+7}
{resload1}
v_add_f32 v{y0}, v{gH}, v{gH+1}
{dpp("v_add_f32", hmu, z1, ROWRED[0])}
{dpp("v_add_f32", hrs, z2, ROWRED[0])}
v_add_f32 v{y0+1}, v{gH+2}, v{gH+3}
{dpp("v_add_f32", hmu, hmu, ROWRED[1])}
{dpp("v_add_f32", hrs, hrs, ROWRED[1])}
v_add_f32 v{y1}, v{z1}, v{z2}
{dpp("v_add_f32", hmu, hmu, ROWRED[2])}
{dpp("v_add_f32", hrs, hrs, ROWRED[2])}
v_add_f32 v{y0}, v{y0}, v{y0+1}
v_mul_f32_dpp v{hmu}, v{hmu}, v{vJUNK} row_newbcast:15 {DPPM}
v_mul_f32_dpp v{hrs}, v{hrs}, v{vJUNK} row_newbcast:15 {DPPM}
v_fma_f32 v{hrs}, -v{hmu}, v{hmu}, v{hrs}
v_fma_f32 v{y0}, -v{hmu}, v{vS1}, v{y0}
v_max_f32 v{hrs}, 0, v{hrs}
v_add_f32 v{hrs}, 0x3727c5ac, v{hrs}
v_rsq_f32 v{hrs}, v{hrs}
v_fma_f32 v{y1}, -v{hmu}, v{vS1+1}, v{y1}
s_mov_b32 s{sT0}, {-math.log2(math.e):.9e}
v_fma_f32 v{y0}, v{y0}, v{hrs}, v{vB}
v_fma_f32 v{y1}, v{y1}, v{hrs}, v{vB+1}""")
FS("w2")
e0, e1 = z1, z2
for y in (y0, y1): A(f"v_mul_f32 v{y+1}, s{sT0}, abs(v{y})")
for y in (y0, y1): A(f"v_exp_f32 v{y+1}, v{y+1}")
A(f"v_cmp_le_f32 vcc, 0, v{y0}\nv_cmp_le_f32 {sr(sT2,2)}, 0, v{y1}")
for y in (y0, y1): A(f"v_fma_f32 v{y+2}, v{y+1}, 2.0, 1.0\nv_add_f32 v{y+3}, 2.0, v{y+1}")
for y, e in ((y0, e0), (y1, e1)): A(f"v_mul_f32 v{y+3}, v{y+3}, v{y+1}\nv_mul_f32 v{e}, v{y+1}, v{y+1}")
A(f"v_cndmask_b32 v{y0+2}, v{y0+3}, v{y0+2}, vcc\nv_cndmask_b32 v{y1+2}, v{y1+3}, v{y1+2}, {sr(sT2,2)}")
A(f"v_cndmask_b32 v{e0}, 1.0, v{e0}, vcc\nv_cndmask_b32 v{e1}, 1.0, v{e1}, {sr(sT2,2)}")
for y, e in ((y0, e0), (y1, e1)): A(f"v_fma_f32 v{e}, v{e}, 2.0, v{y+2}")
for y, e in ((y0, e0), (y1, e1)): A(f"v_rcp_f32 v{e}, v{e}")
for y, e in ((y0, e0), (y1, e1)): A(f"v_mul_f32 v{y}, v{y}, v{y+2}")
for y, e in ((y0, e0), (y1, e1)): A(f"v_mul_f32 v{y}, v{y}, v{e}")
A(f"v_cvt_pk_bf16_f32 v{y0}, v{y0}, v{y1}\nds_write_b16 v{aHW}, v{y0}\nds_write_b16_d16_hi v{aHW2}, v{y0}")
FS("w2")
A("s_waitcnt lgkmcnt(0)\ns_barrier")
FS("w2")
fh, w2acc = t + 28, u + 4
for ks in range(9): A(f"ds_read_b128 {vr(fh+4*ks,4)}, v{aHR} offset:{ks*64}")
A("s_waitcnt vmcnt(0)")
recheck(resload1, range(gX1, gX1+4), u+1)
A(mfma(vr(vR,4), vr(vSEL,4), vr(gX1,4), "0"))
FS("w2")
if OPT["h5pos"] == 0: hint_send(128)
side = [dpp("v_add_f32", vR+r, vR+r, p) for p in ROWRED for r in range(4)]
for ks in range(9):
    A(f"s_waitcnt lgkmcnt({8-ks})")
    A(mfma(vr(w2acc,4), ar(cW2+4*ks,4), vr(fh+4*ks,4), "0" if ks == 0 else vr(w2acc,4)))
    if ks >= 3:
        for _ in range(2): A(side.pop(0))
    if ks == 4 and OPT["h5pos"] == 1: hint_send(128)
FS("w2")
for x in side: A(x)
if OPT["h5pos"] == 3: hint_send(128)
else: A("s_nop 1")
for r in range(4): A(f"v_add_f32 v{w2acc+r}, v{w2acc+r}, v{vR+r}")
x_publish(w2acc, X2O)
FS("w2")
if OPT["h5pos"] == 2: hint_send(128)
stamp(10)
A(f"s_cmp_eq_u32 s{sPASS}, 0\ns_cbranch_scc1 L_q")
A(f"""s_or_b32 s{sT0}, s{sX}, s{sHALF}
s_cmp_lg_u32 s{sT0}, 0
s_cbranch_scc1 L_done
s_lshl_b32 s{sT0}, s{sCG9}, 7
s_lshl_b32 s{sT1}, s{sW}, 5
s_add_u32 s{sT0}, s{sT0}, s{sT1}
v_lshl_add_u32 v{aXS}, v{vG}, 3, s{sT0}
s_add_u32 s{sXO}, s{sCOPY}, {PS + X2O}""")
hint_wait(128)
poll(resload2, range(gRES, gRES+4), u, 1)
A(mfma(vr(vR,4), vr(vSEL,4), vr(gRES,4), "0") + "\ns_nop 7")
rowred("v_add_f32", [vR, vR+1, vR+2, vR+3])
for r in range(4): A(f"v_mul_f32 v{vR+r}, 0x41800000, v{vR+r}")
A(f"v_cvt_pk_bf16_f32 v{vR}, v{vR}, v{vR+1}\nv_cvt_pk_bf16_f32 v{vR+1}, v{vR+2}, v{vR+3}")
if OPT["echo"] >= 0:
    stamp(11)
    A(f"s_nop 1\nv_readlane_b32 s3, v9, {OPT['echo']}\nv_readlane_b32 s84, v9, 0\ns_nop 3\ns_sub_u32 s3, s3, s84\ns_min_u32 s3, s3, 20000\ns_add_u32 s3, s3, s{sST}")
    A(f"L_echo:\ns_memrealtime s[84:85]\ns_waitcnt lgkmcnt(0)\ns_sub_u32 s84, s84, s3\ns_cmp_lt_i32 s84, 0\ns_cbranch_scc1 L_echo")
A(f"s_mov_b32 exec_lo, 0x00010001\ns_mov_b32 exec_hi, 0x00010001\nbuffer_store_dwordx2 {vr(vR,2)}, v{aXS}, {sr(rOUT,4)}, 0 offen\ns_mov_b64 exec, -1\ns_branch L_done")

A(f"L_roleBF:\ns_cmp_lg_u32 s{sROLE}, 1\ns_cbranch_scc1 L_done\nL_w1_go:\ns_add_u32 s{sXO}, s{sPASS}, s{sCOPY}")
hint_wait(0)
stamp(7)
x_gather(aB1, aB2, "w1")
stamp(8)
stat_reads(); frag_reads()
for k, m in enumerate(stat_mfma): A(f"s_waitcnt lgkmcnt({7-k})\n{m}")
FS("w1")
weave(main_mfma(3, cWA, 4), stat_valu + [f"v_cndmask_b32 v{s1}, v{s1}, v{s2}, {sr(mODDL,2)}"], 2, 4)
FS("w1")
a, b, c = ACC, ACC + 4, ACC + 8
A(f"""s_nop 3
v_add_f32 v{a}, v{a}, v{a+1}
v_add_f32 v{a+2}, v{a+2}, v{a+3}
v_add_f32 v{b}, v{b}, v{b+1}
v_add_f32 v{b+2}, v{b+2}, v{b+3}
v_add_f32 v{c}, v{c}, v{c+1}
v_add_f32 v{c+2}, v{c+2}, v{c+3}
v_add_f32 v{a}, v{a}, v{a+2}
v_add_f32 v{b}, v{b}, v{b+2}
v_add_f32 v{c+1}, v{c}, v{c+2}
v_add_f32 v{c}, v{c}, v{c+2}
v_permlane32_swap_b32 v{a}, v{b}
v_add_f32 v{a}, v{a}, v{b}
v_permlane32_swap_b32 v{c}, v{c+1}
v_add_f32 v{c}, v{c}, v{c+1}
s_nop 1
v_permlane16_swap_b32 v{a}, v{c}
v_add_f32 v{a}, v{a}, v{c}
v_cndmask_b32 v{a}, v{a}, v{s1}, {sr(mROW3,2)}""")
FS("w1")
pub(f"buffer_store_dword v{a}, v{aBD}, {WS}, s{sI} offen", sr(mLN,2))
FS("w1"); stamp(9)
A(f"s_cmp_eq_u32 s{sPASS}, 0\ns_cbranch_scc1 L_bf_first")

A("L_done:")
if PROF:
    stamp(11)
    A(f"s_cmp_lg_u32 s{sW}, 0\ns_cbranch_scc1 L_end\ns_lshl_b32 s{sT0}, s2, 7\ns_add_u32 s{sT0}, s{sT0}, {STAMP}")
    A(f"s_lshr_b32 s3, s{sCOPY}, 12\ns_or_b32 s3, s3, s{sMODE}\nv_writelane_b32 v9, s3, 31\ns_memtime s[100:101]\ns_waitcnt lgkmcnt(0)\ns_sub_u32 s3, s100, s88\nv_writelane_b32 v9, s3, 30\nv_lshlrev_b32 v2, 2, v{vL}\ns_mov_b32 exec_hi, 0")
    for k in range(fcount[0]): A(f"v_writelane_b32 v9, s{FREG[k]}, {1+k}")
    A(f"buffer_store_dword v9, v2, {WS}, s{sT0} offen")
A("L_end:\ns_endpgm")

POLo = H5o + 120
def probe():
    if OPT["copies"] != 2: return
    if OPT["pol"] >= 0: A(f"s_mov_b32 s{sT4}, {OPT['pol']}")
    else:
        A(f"""s_sub_u32 s{sT0}, s{sJ}, 30
s_lshl_b32 s{sT0}, s{sT0}, 14
s_lshl_b32 s{sT1}, s{sW}, 11
s_add_u32 s{sT0}, s{sT0}, s{sT1}
s_add_u32 s{sT4}, s{sT0}, {PROBE}
s_mov_b32 s84, -1
s_mov_b32 s85, -1""")
        for k in range(2*OPT["npair"]):
            c = (k ^ (k >> 1)) & 1
            A(f"s_add_u32 s{sT0}, s{sT4}, {(k >> 1)*128 + c*0x2000}\ns_memtime s[100:101]\ns_waitcnt lgkmcnt(0)\ns_buffer_load_dword s101, {WS}, s{sT0}\ns_waitcnt lgkmcnt(0)")
            A(f"s_memtime {sr(sT2,2)}\ns_waitcnt lgkmcnt(0)\ns_sub_u32 s{sT2}, s{sT2}, s100\ns_min_u32 s{84+c}, s{84+c}, s{sT2}")
        A(f"""s_lshl_b32 s{sT1}, s{sW}, 2
s_add_u32 s{sT1}, s{sT1}, {LMODE}
v_mov_b32 v{t}, s{sT1}
v_mov_b32 v{t+1}, s84
v_mov_b32 v{t+2}, s85
ds_write2_b32 v{t}, v{t+1}, v{t+2} offset0:0 offset1:4
v_mov_b32 v{t}, {LMODE}
s_waitcnt lgkmcnt(0)
s_barrier
ds_read_b128 {vr(t+28,4)}, v{t}
ds_read_b128 {vr(t+32,4)}, v{t} offset:16
s_waitcnt lgkmcnt(0)
v_min_u32 v{t}, v{t+28}, v{t+29}
v_min3_u32 v{t}, v{t}, v{t+30}, v{t+31}
v_min_u32 v{t+1}, v{t+32}, v{t+33}
v_min3_u32 v{t+1}, v{t+1}, v{t+34}, v{t+35}
v_cmp_gt_u32 vcc, v{t}, v{t+1}
s_lshr_b32 s{sT0}, s{sXCC}, 2
s_cmp_lg_u32 vcc_lo, 0
s_cselect_b32 s{sT4}, 1, 0
s_xor_b32 s{sT4}, s{sT4}, s{sT0}""")
    A(f"s_sub_u32 s{sT0}, s{sJ}, 30\ns_lshl_b32 s{sT0}, s{sT0}, 2\ns_add_u32 s{sT0}, s{sT0}, {POLo}\nv_mov_b32 v{t}, s{sT0}\nv_mov_b32 v{t+1}, s{sT4}")
    pub(f"buffer_store_dword v{t+1}, v{t}, {WS}, s{sIB} offen", sr(mW0,2))
def pick_copy(tries):
    if OPT["copies"] != 2: return
    top, done = uid("pk"), uid("pkd")
    A(f"""v_mov_b32 v{t}, {POLo}
s_mov_b32 s{sCNT}, 0
{top}:
buffer_load_dword v{t+1}, v{t}, {WS}, s{sIB} offen sc1
s_add_u32 s{sCNT}, s{sCNT}, 1
s_waitcnt vmcnt(0)
v_readfirstlane_b32 s{sT0}, v{t+1}
s_lshr_b32 s{sT1}, s{sXCC}, 2
s_xor_b32 s{sT1}, s{sT1}, s{sT0}
s_lshl_b32 s{sT1}, s{sT1}, 13
s_cmp_lt_u32 s{sT0}, 2
s_cselect_b32 s{sCOPY}, s{sT1}, s{sCOPY}
s_cbranch_scc1 {done}
s_cmp_lt_u32 s{sCNT}, {tries}
s_cbranch_scc1 {top}
{done}:""")
def late_fill():
    for r in range(4): A(f"v_mov_b32 v{t+12+r}, -1")
    A(f"""s_sub_u32 s{sT0}, s{sJ}, 30
s_mul_i32 s{sT1}, s{sT0}, {23*1024}
s_lshl_b32 s{sT2}, s{sW}, 10
s_add_u32 s{sT1}, s{sT1}, s{sT2}
v_lshl_add_u32 v{t+2}, v{vL}, 4, s{sT1}
s_lshl_b32 s{sT1}, s{sX}, 1
s_add_u32 s{sT1}, s{sT1}, s{sT0}
s_lshl_b32 s{sT4}, s{sT1}, 2
s_lshl_b32 s{sT1}, s{sT1}, 13
s_add_u32 s{sT1}, s{sT1}, s{sT2}
s_add_u32 s{sT1}, s{sT1}, {PS}
v_lshl_add_u32 v{t+3}, v{vL}, 4, s{sT1}
s_add_u32 s{sT0}, s{sIB}, {PS}""")
    for k in range(6):
        if k == 5: A(f"s_cmp_eq_u32 s{sW}, 3\ns_cbranch_scc1 L_lf5")
        A(f"buffer_store_dwordx4 {vr(t+12,4)}, v{t+2}, {WS}, s{sT0} offen sc1\ns_add_u32 s{sT0}, s{sT0}, 4096")
    A("L_lf5:")
    A(f"s_and_b32 s{sT0}, s{sW}, 1\ns_cselect_b64 exec, 0xff, -1\ns_movk_i32 s{sT0}, 4096")
    A(f"buffer_store_dwordx4 {vr(t+12,4)}, v{t+3}, {WS}, 0 offen sc1\nbuffer_store_dwordx4 {vr(t+12,4)}, v{t+3}, {WS}, s{sT0} offen sc1\ns_mov_b64 exec, -1")
    A(f"""s_add_u32 s{sT4}, s{sT4}, {RDY2}
v_lshl_add_u32 v{t+3}, v{vL}, 13, s{sT4}
v_mov_b32 v{t+4}, s{sE1}
s_sub_u32 s{sT0}, s{sJ}, 30
s_mul_i32 s{sT1}, s{sT0}, {23*1024}
s_mul_i32 s{sT2}, s{sW}, {46*128}
s_add_u32 s{sT1}, s{sT1}, s{sT2}
v_lshl_add_u32 v{t+2}, v{vL}, 7, s{sT1}
s_add_u32 s{sT0}, s{sIB}, {PS}
s_waitcnt vmcnt(0)
s_barrier
s_cmp_eq_u32 s{sW}, 0
s_cselect_b64 exec, 3, 0
buffer_store_dword v{t+4}, v{t+3}, {WS}, 0 offen sc1
s_mov_b32 exec_lo, -1
s_mov_b32 exec_hi, {0x3fff if OPT['touch'] else 0:#x}
buffer_load_dword v8, v{t+2}, {WS}, s{sT0} offen sc1
s_mov_b64 exec, -1""")
def colsum_rows():
    poll(f"buffer_load_dwordx4 {vr(t+28,4)}, v{aQ1}, {WS}, s{sIB} offen sc1", range(t+28, t+32), u, 1)
    A(f"""v_add_f32 v{u}, v{t+28}, v{t+29}
v_add_f32 v{u+1}, v{t+30}, v{t+31}
v_add_f32 v{u}, v{u}, v{u+1}
v_cvt_pk_bf16_f32 v{u+1}, v{u}, v{u}
v_lshlrev_b32 v{u+2}, 16, v{u+1}
v_sub_f32 v{u}, v{u}, v{u+2}
v_cvt_pk_bf16_f32 v{u}, v{u}, v{u}
ds_write_b16 v{aQW}, v{u+1} offset:1600
ds_write_b16 v{aQW}, v{u} offset:2400""")
with Tail():
    A("L_first:")
    if NB1 < 15 or OPT["beh"]:
        A(f"s_cmp_lg_u32 s{sROLE}, 1\ns_cbranch_scc1 L_first1")
        if NB1 < 15: w1_dma(NB1, 15, t, "L_w1_rest")
        A("L_w1_rest:")
        traddr_std(t+8, LR); traddr_tail(t+10, LR)
        A("s_waitcnt vmcnt(0)\ns_barrier")
        w1_regs()
        A("s_branch L_first2\nL_first1:")
    A(f"s_cmp_eq_u32 s{sROLE}, 2\ns_cbranch_scc1 L_firstF\nL_first2:")
    slow = uid("slow")
    st = f"buffer_store_dword v{vS1}, v{vS1+1}, {WS}, s{sI} offen"
    A(f"s_mov_b32 exec_hi, 0xffff\ns_cmp_eq_u32 s{sMODE}, 0\ns_cbranch_scc1 {slow}\n{st}\ns_branch L_first3\n{slow}:\n{st} sc1\nL_first3:\ns_mov_b64 exec, -1")
    pick_copy(2)
    A("s_branch L_w1_go")
    A(f"""L_w2_first:
s_mul_i32 s{sT0}, s{sX}, 1152
s_mul_i32 s{sT1}, s{sHALF}, 576
s_add_u32 s{sT0}, s{sT0}, s{sT1}
s_mul_i32 s{sT1}, s{sW}, 144
s_add_u32 s{sT0}, s{sT0}, s{sT1}
v_lshl_add_u32 v{t}, v{vL}, 1, s{sT0}
buffer_load_ushort v{vB}, v{t}, {sr(rB1,4)}, 0 offen
v_and_b32 v{t}, 7, v{vL}
v_lshl_add_u32 v{t}, v{t}, 1, s{sT0}
buffer_load_ushort v{vB+1}, v{t}, {sr(rB1,4)}, 0 offen offset:128""")
    if NW2 < 9: w2_dma(NW2, 9, t)
    A(f"v_add_u32 v{t+2}, {S1o - HPo}, v{aH1}\nv_sub_u32 v{t+3}, v{t+2}, v{aH1}\nv_add_u32 v{t+3}, v{t+3}, v{aH2}\nv_cmp_gt_u32 vcc, 8, v{vN}\ns_nop 1\nv_cndmask_b32 v{t+3}, v{t+2}, v{t+3}, vcc")
    traddr_std(t, LW2)
    poll(f"buffer_load_dwordx4 {vr(t+28,4)}, v{t+2}, {WS}, s{sI} offen sc1\nbuffer_load_dwordx4 {vr(t+32,4)}, v{t+3}, {WS}, s{sI} offen sc1", range(t+28, t+36), u, 1)
    A("s_barrier")
    for ks in range(9):
        for h in range(2): A(f"ds_read_b64_tr_b16 {ar(cW2+4*ks+2*h,2)}, v{t} offset:{ks*4096+h*512}")
    for k in range(2):
        b_ = t + 28 + 4*k
        A(f"v_add_f32 v{b_}, v{b_}, v{b_+1}\nv_add_f32 v{b_+2}, v{b_+2}, v{b_+3}\nv_add_f32 v{vS1+k}, v{b_}, v{b_+2}")
    A(f"v_lshlrev_b32 v{vB}, 16, v{vB}\nv_lshlrev_b32 v{vB+1}, 16, v{vB+1}")
    colsum_rows()
    pick_copy(1)
    A("s_branch L_w2_go")
    A("L_firstF:")
    probe()
    late_fill()
    A(f"v_mov_b32 v{t}, {EPO}\nv_mov_b32 v{t+1}, s{sE1}\ns_lshl_b32 s{sT0}, s2, 2\ns_add_u32 s{sT0}, s{sT0}, s{sW}\ns_cmp_eq_u32 s{sT0}, 1020\ns_cselect_b64 exec, 1, 0")
    A(f"buffer_store_dword v{t+1}, v{t}, {WS}, 0 offen sc1\ns_mov_b64 exec, -1")
    A(f"L_bf_first:\nv_mov_b32 v{aRES}, 0")
    colsum_rows()
    pick_copy(1)
    A("s_branch L_q")

body = L + TAIL
DEFS = []
if OPT["shift"]: body = ["s_nop 0"] * OPT["shift"] + body
if OPT["al"]:
    sys.path.insert(0, "gen")
    import align
    body, DEFS, miss = align.align(body, "\n".join(out), "")
    print(f"align: {miss} wide instructions left off an 8-byte boundary", file=sys.stderr)
txt = "\n".join(body)
out.append(txt)
out.append(f""".p2align 8
.fill 1024, 4, 0xbf800000
s_endpgm
{chr(10).join(DEFS)}
.section .rodata,"a"
.p2align 6
.amdhsa_kernel {NAME}_kernel
  .amdhsa_next_free_vgpr {NVGPR}
  .amdhsa_next_free_sgpr 102
  .amdhsa_accum_offset 256
  .amdhsa_group_segment_fixed_size 0
  .amdhsa_kernarg_size 96
  .amdhsa_user_sgpr_count 2
  .amdhsa_user_sgpr_kernarg_segment_ptr 1
  .amdhsa_system_sgpr_workgroup_id_x 1
  .amdhsa_float_denorm_mode_32 3
.end_amdhsa_kernel""")
print("\n".join(out))
```

```python
import sys, math
OPT = dict(prof=0, fine="", nk1=6, nq=2, nv1=12, nw2=2, npair=3, nb1=6, nkb=0, q0t=0, tlb=0, wb=0, fast=1, copies=2, pol=-1, rot=2, ra=2, rb=0, ldf="nt", pf=1,
           tmo=1 << 17, h3pos=1, h5pos=1, touch=1, depth=2, warm=0, echo=-1, hdly=0, xnoclr=0, xnoq0=0, al=0, beh=0, pfj=31, shift=0, pfl=144)
for a in sys.argv[1:]:
    k, v = a.split("=")
    assert k in OPT, k
    OPT[k] = v if k in ("ldf", "fine") else int(v, 0)
NAME = "interleave_layers__sliding_block_cached__dense_activation_mish__decode"
LDF = "" if OPT["ldf"] == "plain" else OPT["ldf"].replace("+", " ")
PROF = OPT["prof"]

L = []; TAIL = []
def A(s):
    for ln in s.split("\n"):
        ln = ln.strip()
        if ln: L.append(ln)
class Tail:
    def __enter__(self):
        global L
        self.save = L; L = []
    def __exit__(self, *e):
        global L
        TAIL.extend(L); L = self.save
_uid = [0]
def uid(p):
    _uid[0] += 1
    return f"L_{p}{_uid[0]}"
def vr(a, n=1): return f"v{a}" if n == 1 else f"v[{a}:{a+n-1}]"
def ar(a, n=1): return f"a{a}" if n == 1 else f"a[{a}:{a+n-1}]"
def sr(a, n=1): return f"s{a}" if n == 1 else f"s[{a}:{a+n-1}]"
DPPM = "row_mask:0xf bank_mask:0xf"
ROWRED = ["quad_perm:[1,0,3,2]", "quad_perm:[2,3,0,1]", "row_half_mirror", "row_mirror"]
def dpp(op, d, s, p): return f"{op}_dpp v{d}, v{s}, v{s} {p} {DPPM}"
def mfma(d, a, b, c): return f"v_mfma_f32_16x16x32_bf16 {d}, {a}, {b}, {c}"

PS = 0x100000
X1O, X2O = 0x00000, 0x10000
IB0 = 0x20000
QPo, HPo, S1o, QSo, HSo, H3o, H5o, OPo, MLo = 0x0000, 0x2000, 0x4400, 0x6800, 0x6880, 0x6900, 0x6980, 0x7000, 0xB000
REST = 0x7000 // 32
Q0B, Q0S = 0xA0000, 0x9000
EPO, RDY, RDY2, PROBE = 0x1B0000, 0x1B1000, 0x1B4000, 0x1C0000
STAMP = 0x200000
WSREC = 0x210000 if PROF else 0x200000
LV, LR, LWQ = 0, 65536, 135168
LW2, LOPS = LR + 32768, LWQ
LQ, LP, LM, LH, LMODE, LXS = 153600, 156800, 158080, 158144, 158784, 158848
LDS_BYTES = 163840
sX, sJ, sW, sPASS, sROLE, sMODE, sCOPY, sIB = 4, 5, 6, 7, 8, 9, 10, 11
rK, rV, rWQ, rWA, rW2, rWS, rXI, rB1, rOUT = 12, 16, 20, 24, 28, 32, 36, 40, 44
mATT, mLN = 48, 50
sT0, sT1, sT2, sT3, sT4, sCNT, sI, sXO = 52, 53, 54, 55, 56, 57, 58, 59
mODDR, sRG, sCG, sST = 60, 62, 63, 64
sE1, sQ0, mW0, mODDL, mROW3 = 68, 69, 70, 72, 90
sHALF, sCG9, sROT, sXCC = 96, 97, 98, 99
WS = sr(rWS, 4)
vL, vN, vG, vONE, vONE3 = 1, 2, 3, 4, 6
vKO, vJUNK, vCS, vC, vMU, vQ0 = 10, 59, 12, 14, 15, 60
vSEL, vR, vB, vS1 = 16, 20, 24, 26
(aX1, aX2, aXW, aXR, aXT, aS1, aS3, aQD, aQS,
 aQ1, aQ2, aQW, aQR, aPW, aMW, aPR, aMR, aOP, aHL,
 aRES, aO1, aML, aOW, aOR, aXS, aHS, aH1, aH2, aHW, aHW2, aHR) = range(28, 59)
aB1, aB2, aBD = aO1, aML, aOW
t = 64
vK = 128
gX, gQ, gQS, gRES, gO, gML, gH, gHI, gX1 = 192, 200, 204, 208, 212, 220, 224, 232, 236
u = 240
cV, cWQ, cWA, cW2, cJUNK = 0, 64, 84, 116, 152
NVGPR = 256 + 160

def stamp(i):
    if PROF == 2 and i != 11: return
    if PROF == 3 and i not in (6, 10, 11): return
    if PROF: A(f"s_memrealtime {sr(sST, 2)}\ns_lshr_b32 s3, s{sPASS}, 16\ns_add_u32 m0, s3, {i}\ns_waitcnt lgkmcnt(0)\nv_writelane_b32 v9, s{sST}, m0")
FREG = [74, 76, 78, 80, 82, 94, 84, 66, 70] if OPT['fine'] == 'pro' else [74, 76, 78, 80, 82, 92, 94, 84, 66]
fcount = [0]
def FS(stage):
    if OPT["fine"] == stage:
        A(f"s_memtime s[{FREG[fcount[0]]}:{FREG[fcount[0]]+1}]"); fcount[0] += 1

def srd(r, lo, hi, nbytes):
    if r != lo: A(f"s_mov_b32 s{r}, s{lo}")
    A(f"s_and_b32 s{r+1}, s{hi}, 0xffff\ns_mov_b32 s{r+2}, {nbytes}\ns_mov_b32 s{r+3}, 0x20000")
def mask64(reg, lo, hi): A(f"s_mov_b32 s{reg}, {lo:#x}\ns_mov_b32 s{reg+1}, {hi:#x}")
def sentinel_test(regs, tmp):
    regs = list(regs)
    if len(regs) == 1:
        A(f"v_cmp_eq_u32 vcc, -1, v{regs[0]}"); return
    if len(regs) % 2 == 0: A(f"v_max_u32 v{tmp}, v{regs[0]}, v{regs[1]}"); k = 2
    else: A(f"v_max3_u32 v{tmp}, v{regs[0]}, v{regs[1]}, v{regs[2]}"); k = 3
    while k < len(regs):
        A(f"v_max3_u32 v{tmp}, v{tmp}, v{regs[k]}, v{regs[k+1]}"); k += 2
    A(f"v_cmp_eq_u32 vcc, -1, v{tmp}")
def filler(n):
    for _ in range(n):
        if OPT["warm"]: A(f"v_mfma_f32_16x16x4_f32 {ar(cJUNK,4)}, v{vONE}, v{vONE}, {ar(cJUNK,4)}")
        else: A("s_nop 7")
def poll(loads, regs, tmp, depth=None):
    depth = depth or OPT["depth"]
    n = sum(1 for ln in loads.split("\n") if ln.strip().startswith("buffer_"))
    top = uid("poll")
    A(f"s_mov_b32 s{sCNT}, 0")
    for _ in range(depth - 1):
        A(loads); filler({2: 3, 3: 2}[depth])
    A(f"{top}:")
    A(loads)
    A(f"s_add_u32 s{sCNT}, s{sCNT}, 1\ns_cmp_gt_u32 s{sCNT}, {OPT['tmo']}\ns_cbranch_scc1 L_end")
    if OPT["warm"]: filler(OPT["warm"] if depth > 1 else 3*OPT["warm"])
    A(f"s_waitcnt vmcnt({(depth - 1)*n})")
    sentinel_test(regs, tmp)
    A(f"s_cbranch_vccnz {top}")
def recheck(load, regs, tmp):
    retry, top, back = uid("rc"), uid("rct"), uid("rcb")
    sentinel_test(regs, tmp)
    A(f"s_cbranch_vccnz {retry}\n{back}:")
    with Tail():
        A(f"{retry}:\ns_mov_b32 s{sCNT}, 0\n{top}:\n{load}\ns_waitcnt vmcnt(0)")
        sentinel_test(regs, tmp)
        A(f"s_cbranch_vccz {back}\ns_add_u32 s{sCNT}, s{sCNT}, 1\ns_cmp_lt_u32 s{sCNT}, {OPT['tmo']}\ns_cbranch_scc1 {top}\ns_branch L_end")
def pub(store, mask):
    slow, back = uid("slow"), uid("back")
    A(f"s_cmp_eq_u32 s{sMODE}, 0\ns_mov_b64 exec, {mask}\ns_cbranch_scc1 {slow}\n{store}\n{back}:\ns_mov_b64 exec, -1")
    with Tail(): A(f"{slow}:\n{store} sc1\ns_branch {back}")
def dma(rsrc, voff, soff, lds_s):
    A(f"s_mov_b32 m0, s{lds_s}\ns_nop 0\nbuffer_load_dwordx4 v{voff}, {sr(rsrc,4)}, s{soff} offen {LDF} lds")
def rowred_list(op, regs, steps=ROWRED):
    o = []
    for k, p in enumerate(steps):
        o += [dpp(op, r, r, p) for r in regs]
        if len(regs) < 3 and k < len(steps) - 1: o += ["s_nop 0"] * (3 - len(regs) - 0 if len(regs) == 1 else 1)
    return [x for x in o]
def rowred(op, regs):
    for p in ROWRED:
        for r in regs: A(dpp(op, r, r, p))
        if len(regs) < 3 and p != ROWRED[-1]: A(f"s_nop {2 - len(regs)}")
def weave(main, side, per, start=0):
    side = list(side)
    for k, m in enumerate(main):
        A(m)
        if k >= start:
            for _ in range(per):
                if side: A(side.pop(0))
    for s_ in side: A(s_)

hdr = open("cdna_kernels/" + NAME + ".s.ref").read().split("; Override launch")[0]
out = [hdr.rstrip(), "; Override launch geometry by editing the next line (default: block=256,",
       "; grid=ceil(out_elems/256), lds=0). Harness parses it; keep it on one line.",
       f"; @launch grid=(256,1,1) block=(256,1,1) lds={LDS_BYTES}",
       '.amdgcn_target "amdgcn-amd-amdhsa--gfx950"', ".text", f".globl {NAME}_kernel", ".p2align 8",
       f".type {NAME}_kernel,@function", f"{NAME}_kernel:"]

def wdma_voff(dst, rowbytes, kind):
    if kind == "std": A(f"v_bfe_u32 v{dst}, v{vL}, 4, 1\ns_and_b32 s{sT0}, s{sW}, 1\ns_lshl_b32 s{sT0}, s{sT0}, 1")
    else: A(f"v_lshrrev_b32 v{dst}, 5, v{vL}\ns_and_b32 s{sT0}, s{sW}, 2")
    A(f"""v_or_b32 v{dst}, s{sT0}, v{dst}
v_lshlrev_b32 v{dst}, 1, v{dst}
v_xor_b32 v{dst}, v{dst}, v{vL}
v_and_b32 v{dst}, 7, v{dst}
v_lshlrev_b32 v{dst}, 4, v{dst}
v_lshrrev_b32 v{dst+1}, 3, v{vL}
s_mov_b32 s{sT0}, {rowbytes}
v_mad_u32_u24 v{dst}, v{dst+1}, s{sT0}, v{dst}""")
def traddr_std(dst, base):
    A(f"""v_bfe_u32 v{dst}, v{vL}, 3, 2
v_xor_b32 v{dst}, s{sW}, v{dst}
v_lshlrev_b32 v{dst}, 5, v{dst}
v_and_b32 v{dst+1}, 3, v{vL}
v_lshl_add_u32 v{dst}, v{dst+1}, 3, v{dst}
v_bfe_u32 v{dst+1}, v{vL}, 2, 2
v_lshl_add_u32 v{dst}, v{dst+1}, 7, v{dst}
v_lshl_add_u32 v{dst}, v{vG}, 10, v{dst}
v_add_u32 v{dst}, {base}, v{dst}""")
def traddr_tail(dst, base):
    A(f"""v_bfe_u32 v{dst}, v{vL}, 3, 1
v_and_b32 v{dst+1}, 2, v{vG}
v_or_b32 v{dst}, v{dst}, v{dst+1}
v_xor_b32 v{dst}, s{sW}, v{dst}
v_lshlrev_b32 v{dst}, 5, v{dst}
v_and_b32 v{dst+1}, 3, v{vL}
v_lshl_add_u32 v{dst}, v{dst+1}, 3, v{dst}
v_lshrrev_b32 v{dst+1}, 2, v{vL}
v_lshl_add_u32 v{dst}, v{dst+1}, 7, v{dst}
v_add_u32 v{dst}, {base + 16384}, v{dst}""")
def tr_slice(dst, a_std, a_tail, off):
    for ks in range(4):
        for h in range(2): A(f"ds_read_b64_tr_b16 {ar(dst+4*ks+2*h,2)}, v{a_std} offset:{off+ks*4096+h*512}")
    A(f"ds_read_b64_tr_b16 {ar(dst+16,2)}, v{a_tail} offset:{off}")
def x_addr(dst, idx, rg_s, tmp):
    A(f"""v_mul_u32_u24 v{dst}, 3641, v{idx}
v_lshrrev_b32 v{dst}, 16, v{dst}
v_mul_u32_u24 v{tmp}, 18, v{dst}
v_sub_u32 v{tmp}, v{idx}, v{tmp}
v_lshlrev_b32 v{tmp}, 4, v{tmp}
v_and_b32 v{tmp+1}, 3, v{dst}
v_lshl_add_u32 v{tmp}, v{tmp+1}, 11, v{tmp}
v_lshrrev_b32 v{dst}, 2, v{dst}
v_lshl_add_u32 v{dst}, v{dst}, 14, v{tmp}
s_mul_i32 s{sT0}, s{rg_s}, 288
v_add_u32 v{dst}, s{sT0}, v{dst}""")

NK1, NKB, NQ, NV1, NW2, NB1 = OPT["nk1"], OPT["nkb"], OPT["nq"], OPT["nv1"], OPT["nw2"], OPT["nb1"]
sKM, sVM = 66, 67
if PROF: sKM, sVM = 86, 87
def srd2(r, nbytes): A(f"s_mov_b32 s{r+2}, {nbytes}\ns_mov_b32 s{r+3}, 0x20000")
def blk_m0(base, i, mask):
    if OPT["rot"] < 3: return f"s_xor_b32 m0, s{base}, {i << 12}\ns_nop 0"
    hi = (i << 12) & ~mask
    return f"s_add_u32 s{sT4}, s{sROT}, {(i << 12) & mask}\ns_and_b32 s{sT4}, s{sT4}, {mask}\n" + (f"s_or_b32 s{sT4}, s{sT4}, {hi}\n" if hi else "") + f"s_add_u32 m0, s{sT4}, s{base}\ns_nop 0"
def kdma(i): A(blk_m0(sKM, i, 0xf000) + f"\nbuffer_load_dwordx4 v{vKO}, {sr(rK,4)}, m0 offen {LDF} lds")

def TLB():
    if OPT["tlb"]:
        A(f"""s_cmp_ge_u32 s{sW}, 2
s_cbranch_scc1 L_notlb
s_load_dword s100, s[{rV}:{rV+1}], 0
s_load_dword s100, s[{rB1}:{rB1+1}], 0
s_load_dword s100, s[{rOUT}:{rOUT+1}], 0
s_mul_i32 s{sT0}, s{sX}, {512*1152}
s_mul_i32 s{sT1}, s{sW}, {512*1152 - 4}
s_add_u32 s{sT0}, s{sT0}, s{sT1}
s_load_dword s100, s[{rWA}:{rWA+1}], s{sT0}
s_mul_i32 s{sT0}, s{sX}, {576*1152}
s_mul_i32 s{sT1}, s{sW}, {576*1152 - 4}
s_add_u32 s{sT0}, s{sT0}, s{sT1}
s_load_dword s100, s[{rW2}:{rW2+1}], s{sT0}
s_mul_i32 s{sT0}, s{sW}, {2*1024*1024}
s_load_dword s100, s[92:93], s{sT0}
s_mov_b32 s{sT0}, {576*4608*2 - 4}
s_load_dword s100, s[92:93], s{sT0}
L_notlb:""")

A("s_cmp_ge_u32 s2, 256\ns_cbranch_scc1 L_end")
if PROF: A(f"s_memrealtime {sr(sST,2)}\ns_memtime s[88:89]\nv_mov_b32 v9, 0")
FS("pro")
A(f"""s_load_dwordx2 s[{rWQ}:{rWQ+1}], s[0:1], 24
s_load_dwordx2 s[{rXI}:{rXI+1}], s[0:1], 0
s_load_dwordx4 s[{rK}:{rK+3}], s[0:1], 8
s_load_dwordx2 s[{rWS}:{rWS+1}], s[0:1], 88
s_load_dwordx2 s[{rWA}:{rWA+1}], s[0:1], 32
s_load_dwordx2 s[92:93], s[0:1], 48
s_load_dwordx2 s[{rB1}:{rB1+1}], s[0:1], 56
s_load_dwordx2 s[{rW2}:{rW2+1}], s[0:1], 64
s_load_dwordx2 s[{rOUT}:{rOUT+1}], s[0:1], 72""")
if OPT["pf"]:
    A(("s_cmp_ge_u32 s2, 8" if OPT["pfj"] == 0 else "s_cmp_lt_u32 s2, 248") + f"\ns_cbranch_scc1 L_nopf\ns_getpc_b64 s[100:101]\nL_pc:\nv_min_u32 v8, {OPT['pfl'] - 1}, v0\nv_lshlrev_b32 v8, 7, v8\nglobal_load_dword v8, v8, s[100:101]\nL_nopf:")
A(f"""v_lshrrev_b32 v{t+1}, 3, v0
v_lshrrev_b32 v{vG}, 4, v0
v_readfirstlane_b32 s{sW}, v0
v_and_b32 v{t}, 2, v{t+1}
v_and_or_b32 v{t}, v{vG}, 4, v{t}
s_and_b32 s{sX}, s2, 7
v_xor_b32 v{t}, v{t}, v0
s_lshr_b32 s{sJ}, s2, 3
v_and_b32 v{t}, 7, v{t}
s_lshr_b32 s{sW}, s{sW}, 6
v_lshlrev_b32 v{t}, 4, v{t}
s_and_b32 s{sCG}, s{sJ}, 7
v_and_b32 v{t+1}, 7, v{t+1}
s_lshr_b32 s{sRG}, s{sJ}, 3
v_lshl_or_b32 v{t}, v{t+1}, 13, v{t}
s_mul_i32 s{sT1}, s{sRG}, {144*8192}
s_lshl_b32 s{sT2}, s{sW}, 16
s_add_u32 s{sT1}, s{sT1}, s{sT2}
s_lshl_b32 s{sT2}, s{sX}, 10
s_add_u32 s{sT1}, s{sT1}, s{sT2}
s_lshl_b32 s{sT2}, s{sCG}, 7
s_add_u32 s{sT1}, s{sT1}, s{sT2}
s_lshl_b32 s{sVM}, s{sW}, 10
s_add_u32 s{sT2}, s{sVM}, {LWQ}
v_and_b32 v{vN}, 15, v0
v_and_b32 v{vKO}, 15, v{vG}
v_and_b32 v{vG}, 3, v{vG}
v_xor_b32 v{vKO}, v{vKO}, v{vN}
v_lshlrev_b32 v{vKO}, 4, v{vKO}
v_lshl_or_b32 v{vKO}, v{vG}, 8, v{vKO}
v_and_b32 v{vL}, 63, v0
s_lshr_b32 s{sT0}, s{sJ}, 4
s_lshl_b32 s{sT3}, s{sX}, 1
s_add_u32 s{sT0}, s{sT0}, s{sT3}
s_lshl_b32 s{sT0}, s{sT0}, 23
s_and_b32 s{sT3}, s{sJ}, 15
s_lshl_b32 s{sT3}, s{sT3}, 16
s_add_u32 s{sT0}, s{sT0}, s{sT3}
s_add_u32 s{sCNT}, s{sT0}, {28672*256}""")
if OPT["rot"] in (1, 4): A(f"s_lshr_b32 s{sT0}, s2, 4\ns_xor_b32 s{sROT}, s{sT0}, s2\ns_and_b32 s{sROT}, s{sROT}, 15\ns_lshl_b32 s{sROT}, s{sROT}, 12")
elif OPT["rot"] in (2, 3):
    A(f"s_mul_i32 s{sROT}, s{sX}, {OPT['ra'] << 12}")
    if OPT["rb"]: A(f"s_mul_i32 s{sT0}, s{sJ}, {OPT['rb'] << 12}\ns_add_u32 s{sROT}, s{sROT}, s{sT0}")
    if OPT["rb"] or OPT["ra"] > 2: A(f"s_and_b32 s{sROT}, s{sROT}, 0xf000")
elif OPT["rot"] == 5: A(f"s_and_b32 s{sROT}, s{sJ}, 15\ns_lshl_b32 s{sROT}, s{sROT}, 12")
elif OPT["rot"] == 6: A(f"s_and_b32 s{sROT}, s{sJ}, 7\ns_lshl_b32 s{sROT}, s{sROT}, 13")
else: A(f"s_mov_b32 s{sROT}, 0")
if OPT["rot"] < 3: A(f"s_add_u32 s{sKM}, s{sVM}, s{sROT}\ns_add_u32 s{sKM}, s{sKM}, {LR}\ns_and_b32 s{sT0}, s{sROT}, 0x7000\ns_add_u32 s{sVM}, s{sVM}, s{sT0}")
else: A(f"s_add_u32 s{sKM}, s{sVM}, {LR}")
srd2(rWQ, 576*4096*2); srd2(rXI, 1152); srd2(rWS, WSREC)
A(f"s_cmp_lg_u32 s{sW}, 2")
FS("pro")
A("s_waitcnt lgkmcnt(0)")
FS("pro")
A(f"""s_cbranch_scc1 L_nox0
s_mul_i32 s{sT0}, s{sRG}, 18
v_add_u32 v{t+2}, s{sT0}, v{vL}
v_add_u32 v{t+3}, 64, v{t+2}
v_subrev_u32 v{t+4}, 72, v{t+2}
v_min_u32 v{t+2}, v{t+2}, v{t+4}
v_subrev_u32 v{t+4}, 72, v{t+3}
v_min_u32 v{t+3}, v{t+3}, v{t+4}
v_cmp_gt_u32 vcc, 8, v{vL}
v_mov_b32 v{t+5}, 0x10000
v_lshlrev_b32 v{t+2}, 4, v{t+2}
v_lshlrev_b32 v{t+3}, 4, v{t+3}
v_cndmask_b32 v{t+3}, v{t+5}, v{t+3}, vcc
buffer_load_dwordx4 {vr(gX,4)}, v{t+2}, {sr(rXI,4)}, 0 offen
buffer_load_dwordx4 {vr(gX+4,4)}, v{t+3}, {sr(rXI,4)}, 0 offen
L_nox0:
s_cmp_ge_u32 s{sW}, 2
s_cbranch_scc1 L_wq4
s_add_u32 s{sT3}, s{sT1}, {128*8192}
s_add_u32 m0, s{sT2}, {16*1024}
s_nop 0
buffer_load_dwordx4 v{t}, {sr(rWQ,4)}, s{sT3} offen {LDF} lds
L_wq4:""")
for i in range(4):
    A(f"s_add_u32 m0, s{sT2}, {i*4096}\n" + (f"s_add_u32 s{sT1}, s{sT1}, {32*8192}" if i else "s_nop 0") + f"\nbuffer_load_dwordx4 v{t}, {sr(rWQ,4)}, s{sT1} offen {LDF} lds")
FS("pro")
A(f"s_add_u32 s{rV}, s14, s{sCNT}\ns_addc_u32 s{rV+1}, s15, 0\ns_sub_u32 s{sCNT}, s{sCNT}, {LR}\ns_add_u32 s{rK}, s12, s{sCNT}\ns_addc_u32 s{rK+1}, s13, 0")
srd2(rK, LR + 65536)
if OPT["tlb"] == 2: TLB()
for i in range(NK1): kdma(i)
FS("pro")
if OPT["tlb"] == 1: TLB()
A(f"""s_mov_b32 s{sT1}, {EPO}
s_buffer_load_dword s{sE1}, {WS}, s{sT1}
s_lshl_b32 s{sIB}, s{sX}, 16
s_add_u32 s{sIB}, s{sIB}, {IB0}
s_mul_i32 s{sQ0}, s{sX}, {Q0S}
s_add_u32 s{sQ0}, s{sQ0}, {Q0B}
s_mov_b32 s{sPASS}, 0""")
if PROF: A(f"v_writelane_b32 v9, s{sST}, 0\nv_writelane_b32 v9, s0, 15")
traddr_std(t, LWQ); traddr_tail(t+2, LWQ)
FA = t + 8
A(f"""v_mov_b32 v{FA+16}, 0
v_mov_b32 v{FA+17}, 0
v_mov_b32 v{FA+18}, 0
v_mov_b32 v{FA+19}, 0
v_lshlrev_b32 v{aXW}, 4, v0
v_add_u32 v{aXW}, {LXS}, v{aXW}
ds_write_b128 v{aXW}, {vr(FA+16,4)} offset:512
v_mul_u32_u24 v{aXR}, 288, v{vN}
v_lshl_add_u32 v{aXT}, v{vG}, 3, v{aXR}
v_add_u32 v{aXT}, {LXS + 256}, v{aXT}
v_lshl_add_u32 v{aXR}, v{vG}, 4, v{aXR}
v_add_u32 v{aXR}, {LXS}, v{aXR}
v_mov_b32 v{aS1}, v{aXR}
v_mov_b32 v{aS3}, v{aXR}
s_lshl_b32 s{sT0}, s{sCG}, 10
s_lshl_b32 s{sT1}, s{sW}, 8
s_add_u32 s{sT0}, s{sT0}, s{sT1}
s_lshl_b32 s{sT1}, s{sRG}, 2
s_add_u32 s{sT0}, s{sT0}, s{sT1}
v_lshl_add_u32 v{aQD}, v{vN}, 4, s{sT0}
s_cmp_lg_u32 s{sW}, 2
s_cbranch_scc1 L_pwx""")
NCLR = 4
xf, z1, z2 = t + 40, u + 4, u + 5
A(f"""v_mov_b32 v{z1}, 0
v_mov_b32 v{z2}, 0
v_mov_b32 v{u+6}, 0x3f803f80
v_lshlrev_b32 v{t+4}, 4, v{vL}
v_add_u32 v{t+4}, {LXS}, v{t+4}
s_mov_b32 exec_lo, 0xfffc0000
s_mov_b32 exec_hi, 0
ds_write_b128 v{t+4}, {vr(FA+16,4)}
s_mov_b64 exec, -1
s_waitcnt vmcnt({4 + NK1})""")
for k in range(8): A(f"v_dot2c_f32_bf16 v{z1}, v{gX+k}, v{u+6}\nv_dot2c_f32_bf16 v{z2}, v{gX+k}, v{gX+k}")
for k in range(4): A(f"v_lshlrev_b32 v{xf+2*k}, 16, v{gX+k}\nv_and_b32 v{xf+2*k+1}, 0xffff0000, v{gX+k}")
rowred("v_add_f32", [z1, z2])
for sw in ("16", "32"):
    A(f"v_mov_b32 v{u+6}, v{z1}\nv_mov_b32 v{u+7}, v{z2}\ns_nop 0\nv_permlane{sw}_swap_b32 v{z1}, v{u+6}\nv_permlane{sw}_swap_b32 v{z2}, v{u+7}\nv_add_f32 v{z1}, v{z1}, v{u+6}\nv_add_f32 v{z2}, v{z2}, v{u+7}")
A(f"v_mul_f32 v{u+6}, {1/576:.9e}, v{z1}")
for k in range(8): A(f"v_sub_f32 v{xf+k}, v{xf+k}, v{u+6}")
for k in range(4): A(f"v_cvt_pk_bf16_f32 v{xf+k}, v{xf+2*k}, v{xf+2*k+1}")
A(f"""v_fma_f32 v{z2}, -v{u+6}, v{z1}, v{z2}
v_mov_b32 v{u+7}, {LMODE}
v_mul_f32 v{z2}, 0x3d800000, v{z2}
s_mov_b64 exec, 0x3ffff
ds_write_b128 v{t+4}, {vr(xf,4)}
ds_write_b32 v{u+7}, v{z2}
s_mov_b64 exec, -1""")
for i in range(NK1, NK1 + NKB): kdma(i)
A(f"s_waitcnt vmcnt({NK1 + NKB})\nL_bar1:")
FS("pro")
A(f"s_waitcnt lgkmcnt(0)\ns_barrier")
NEAR = []
with Tail():
    A(f"L_pwx:\ns_cmp_eq_u32 s{sW}, {7 if OPT['xnoclr'] else 3}\ns_cbranch_scc1 L_pw3")
    if OPT["q0t"]:
        A(f"s_lshl_b32 s{sT1}, s{sJ}, 9\ns_lshl_b32 s{sT2}, s{sW}, 8\ns_add_u32 s{sT1}, s{sT1}, s{sT2}\nv_lshl_add_u32 v{t+6}, v{vL}, 7, s{sT1}\ns_mov_b64 exec, 3\nbuffer_load_dword v8, v{t+6}, {WS}, s{sQ0} offen sc1\ns_mov_b64 exec, -1")
    for i in range(NK1, NK1 + NKB): kdma(i)
    A(f"s_waitcnt vmcnt({NK1 + NKB + (1 if OPT['q0t'] else 0)})\ns_branch L_bar1")
    q4 = vr(u, 4)
    A("L_pw3:")
    for r in range(4): A(f"v_mov_b32 v{u+r}, -1")
    A(f"""s_mul_i32 s{sT1}, s{sJ}, {REST}
v_lshl_add_u32 v{t+6}, v{vL}, 4, s{sT1}
s_lshl_b32 s{sT1}, s{sJ}, 9
s_add_u32 s{sT1}, s{sT1}, {OPo}
v_lshl_add_u32 v{t+7}, v{vL}, 4, s{sT1}
s_lshl_b32 s{sT1}, s{sJ}, 6
s_add_u32 s{sT1}, s{sT1}, {MLo - 512}
v_lshl_add_u32 v{t+8}, v{vL}, 4, s{sT1}
v_cmp_gt_u32 vcc, 32, v{vL}
s_lshl_b32 s{sT1}, s2, 9
v_lshl_add_u32 v{t+9}, v{vL}, 4, s{sT1}
v_cndmask_b32 v{t+7}, v{t+8}, v{t+7}, vcc
s_lshr_b32 s{sT1}, s2, 6
s_lshl_b32 s{sT1}, s{sT1}, 14
s_and_b32 s{sT2}, s2, 63
s_lshl_b32 s{sT2}, s{sT2}, 7
s_add_u32 s{sT1}, s{sT1}, s{sT2}
s_add_u32 s{sT1}, s{sT1}, {PROBE}
v_lshl_add_u32 v{t+8}, v{vL}, 4, s{sT1}
v_lshrrev_b32 v{t+10}, 3, v{vL}
v_mul_u32_u24 v{t+10}, {0x2000 - 128}, v{t+10}
v_add_u32 v{t+8}, v{t+8}, v{t+10}
s_mov_b32 exec_hi, 0xf
buffer_store_dwordx4 {q4}, v{t+7}, {WS}, s{sIB} offen sc1
s_mov_b32 exec_hi, {(1 << (REST//16 - 32)) - 1:#x}
buffer_store_dwordx4 {q4}, v{t+6}, {WS}, s{sIB} offen sc1
s_and_b32 s{sT1}, s2, 3
s_cmp_eq_u32 s{sT1}, 2
s_cselect_b32 s{sT2}, 0xff, -1
s_cmp_eq_u32 s{sT1}, 3
s_cselect_b32 exec_lo, 1, s{sT2}
s_mov_b32 exec_hi, 0
buffer_store_dwordx4 {q4}, v{t+9}, {WS}, 0 offen sc1
s_mov_b32 exec_lo, 0xffff
buffer_store_dwordx4 {q4}, v{t+8}, {WS}, 0 offen sc1
s_mov_b64 exec, -1""")
    for i in range(NK1, NK1 + NKB): kdma(i)
    A(f"s_waitcnt vmcnt({NK1 + NKB + NCLR})\ns_branch L_bar1")
NEAR = TAIL[:]; del TAIL[:]
stamp(2); FS("pro")
tr_slice(cWQ, t, t+2, 0)
A(f"s_and_b32 s{sE1}, s{sE1}, -16\ns_add_u32 s{sE1}, s{sE1}, 16\ns_branch L_q_reads")
L.extend(NEAR)

def hint_wait(imm):
    poll(f"buffer_load_dword v{gHI}, v{aHL}, {WS}, s{sI} offen offset:{imm} sc1", [gHI], None)
    if OPT["hdly"]: filler(OPT["hdly"])
def x_gather(a1, a2, stg):
    other, join = uid("xo"), uid("xj")
    l1 = f"buffer_load_dwordx4 {vr(gX,4)}, v{a1}, {WS}, s{sXO} offen sc1"
    l2 = f"buffer_load_dwordx4 {vr(gX+4,4)}, v{a2}, {WS}, s{sXO} offen sc1"
    A(f"s_cmp_lg_u32 s{sW}, 0\ns_cbranch_scc1 {other}")
    poll(l1 + "\n" + l2, range(gX, gX+8), u, 1)
    FS(stg)
    A(f"ds_write_b128 v{aXW}, {vr(gX,4)}\ns_mov_b32 exec_hi, 0\nds_write_b128 v{aXW}, {vr(gX+4,4)} offset:4096\ns_mov_b32 exec_hi, -1\ns_branch {join}\n{other}:")
    if stg == "q":
        A(f"s_cmp_eq_u32 s{sW}, 1\ns_cselect_b64 {sr(sT2,2)}, -1, 0\nv_mov_b32 v{u+12}, s{sE1}\ns_mov_b32 s{sCNT}, 0\nL_xq1_top:\n{l1}")
        A(f"s_cbranch_scc0 L_xq1_a\nbuffer_load_dword v{u+12}, v{u+14}, {WS}, s{sCOPY} offen sc1\nL_xq1_a:")
        A(f"s_add_u32 s{sCNT}, s{sCNT}, 1\ns_cmp_gt_u32 s{sCNT}, {OPT['tmo']}\ns_cbranch_scc1 L_end\ns_waitcnt vmcnt(0)")
        A(f"v_cmp_ne_u32 {sr(sT0,2)}, s{sE1}, v{u+12}")
        sentinel_test(range(gX, gX+4), u)
        A(f"s_or_b64 vcc, {sr(sT0,2)}, vcc\ns_cbranch_scc0 L_xq1_ok\ns_cmp_eq_u32 s{sW}, 1\ns_branch L_xq1_top\nL_xq1_ok:")
    else: poll(l1, range(gX, gX+4), u, 1)
    A(f"ds_write_b128 v{aXW}, {vr(gX,4)}\n{join}:\ns_waitcnt lgkmcnt(0)\ns_barrier")
    FS(stg)
FSt, ACC, SAC = t + 28, t + 40, t + 52
def stat_reads(): A(f"ds_read_b64_tr_b16 {vr(FSt,2)}, v{aS1}\nds_read_b64_tr_b16 {vr(FSt+2,2)}, v{aS1} offset:128\nds_read_b64_tr_b16 {vr(FSt+4,2)}, v{aS3}")
def frag_reads():
    for ks in range(4): A(f"ds_read_b128 {vr(FA+4*ks,4)}, v{aXR} offset:{ks*64}")
    A(f"ds_read_b64 {vr(FA+18,2)}, v{aXT}")
stat_mfma = [f"v_mfma_f32_16x16x16_bf16 {vr(SAC+4*k,4)}, {vr(vONE if k < 2 else vONE3,2)}, {vr(FSt+2*k,2)}, 0" for k in range(3)]
s1, s2 = u + 2, u + 3
stat_valu = [f"v_add_f32 v{s1}, v{SAC}, v{SAC+4}", f"v_mul_f32 v{s2}, v{SAC}, v{SAC}", f"v_add_f32 v{s1}, v{s1}, v{SAC+8}",
             f"v_fmac_f32 v{s2}, v{SAC+4}, v{SAC+4}", f"v_fmac_f32 v{s2}, v{SAC+8}, v{SAC+8}", "s_nop 0"]
for k, p in enumerate(ROWRED): stat_valu += ["s_nop 0", dpp("v_add_f32", s1, s1, p), dpp("v_add_f32", s2, s2, p)]
def main_mfma(nt, w, first_wait):
    o = []
    for ks in range(5):
        for k in range(nt):
            c = "0" if ks == 0 else vr(ACC+4*k, 4)
            m = mfma(vr(ACC+4*k,4), vr(FA+4*ks,4), ar(w+18*k+(4*ks if ks < 4 else 14),4), c)
            o.append((f"s_waitcnt lgkmcnt({first_wait-ks})\n" if k == 0 else "") + m)
    return o

A("L_q:")
A(f"v_lshlrev_b32 v{u+14}, 2, v{vN}\nv_add_u32 v{u+14}, {RDY2}, v{u+14}")
hint_wait(128)
stamp(12)
A(f"s_add_u32 s{sXO}, s{sCOPY}, {X2O}\ns_mov_b32 s{sPASS}, {PS}\ns_add_u32 s{sI}, s{sIB}, {PS}")
x_gather(aX1, aX2, "q")
stamp(13)
A("L_q_reads:")
frag_reads(); stat_reads()
for m in main_mfma(1, cWQ, 7): A(m)
FS("q")
a = ACC
A(f"""s_cmp_eq_u32 s{sPASS}, 0
s_nop 6
v_add_f32 v{a}, v{a}, v{a+1}
v_add_f32 v{a+2}, v{a+2}, v{a+3}
v_add_f32 v{a}, v{a}, v{a+2}
v_mov_b32 v{a+1}, v{a}
s_nop 1
v_permlane32_swap_b32 v{a}, v{a+1}
v_add_f32 v{a}, v{a}, v{a+1}
v_mov_b32 v{a+1}, v{a}
s_cbranch_scc1 L_q0_pub
s_nop 0
v_permlane16_swap_b32 v{a}, v{a+1}
v_add_f32 v{a}, v{a}, v{a+1}""")
FS("q")
pub(f"buffer_store_dword v{a}, v{aQD}, {WS}, s{sI} offen", "0xffff")
FS("q")
A("s_waitcnt lgkmcnt(0)")
for m in stat_mfma: A(m)
A("s_nop 6")
for x in stat_valu: A(x)
A(f"s_cmp_eq_u32 s{sCG}, 0\ns_cselect_b64 {sr(sT2,2)}, 1, 0")
pub(f"buffer_store_dwordx2 {vr(s1,2)}, v{aQS}, {WS}, s{sI} offen", sr(sT2,2))
FS("q")
A("L_att_poll:")

with Tail():
    A(f"L_q0_pub:\ns_nop 0\nv_permlane16_swap_b32 v{a}, v{a+1}\nv_add_f32 v{vQ0}, v{a}, v{a+1}")
    q0store = f"buffer_store_dwordx2 {vr(vQ0,2)}, v{vQ0+2}, {WS}, s{sQ0} offen"
    A(f"""v_mov_b32 v{vQ0+1}, s{sE1}
v_lshlrev_b32 v{vQ0+2}, 1, v{aQD}
s_mov_b64 exec, 0xffff
{q0store}
s_mov_b64 exec, -1""")
    for i in range(NK1 + NKB, 16): kdma(i)
    vo = u + 12
    A(f"""s_and_b32 s{sT0}, s{sW}, 1
s_lshl_b32 s{sT0}, s{sT0}, 1
v_and_b32 v{vo}, 1, v{vG}
v_or_b32 v{vo}, s{sT0}, v{vo}
v_lshlrev_b32 v{vo}, 1, v{vo}
v_xor_b32 v{vo}, v{vo}, v{vN}
v_lshlrev_b32 v{vo}, 4, v{vo}
v_lshl_add_u32 v{vo}, v{vG}, 8, v{vo}
s_lshr_b32 s{sT0}, s{sROT}, 5
s_and_b32 s{sT0}, s{sT0}, 128
v_xor_b32 v{vo}, s{sT0}, v{vo}
v_xor_b32 v{vo+1}, 128, v{vo}""")
    srd2(rV, 65536)
    def vdma(i): A(blk_m0(sVM, i, 0x7000) + f"\nbuffer_load_dwordx4 v{vo + (i & 1)}, {sr(rV,4)}, m0 offen {LDF} lds")
    for i in range(NQ): vdma(i)
    A(f"""s_getreg_b32 s{sXCC}, hwreg(HW_REG_XCC_ID)
s_and_b32 s{sXCC}, s{sXCC}, 7
s_cmp_lg_u32 s{sW}, 3
s_cbranch_scc1 L_nordy
s_lshl_b32 s{sT0}, s{sX}, 7
s_lshl_b32 s{sT1}, s{sJ}, 2
s_add_u32 s{sT0}, s{sT0}, s{sT1}
s_add_u32 s{sT0}, s{sT0}, {RDY}
v_mov_b32 v{u+14}, s{sT0}
s_or_b32 s{sT0}, s{sE1}, s{sXCC}
v_mov_b32 v{u+15}, s{sT0}
s_mov_b64 exec, 1
s_waitcnt vmcnt({16 - NK1 + NQ + 1})
buffer_store_dword v{u+15}, v{u+14}, {WS}, 0 offen sc1
s_mov_b64 exec, -1
L_nordy:
s_lshr_b32 s{sT0}, s{sJ}, 4
s_lshl_b32 s{sT0}, s{sT0}, 12
v_lshl_add_u32 v{aQ1}, v0, 4, s{sT0}
v_lshlrev_b32 v{t}, 1, v{aQ1}""")
    g0 = t + 28
    q0loads = f"""buffer_load_dwordx4 {vr(g0,4)}, v{t}, {WS}, s{sQ0} offen sc1
buffer_load_dwordx4 {vr(g0+4,4)}, v{t}, {WS}, s{sQ0} offen offset:16 sc1"""
    if OPT["xnoq0"] < 1: A(q0loads)
    for i in range(NQ, NV1): vdma(i)
    srd2(rW2, 4608*576*2); srd2(rB1, 4608*2); srd2(rOUT, 1152)
    A(f"""s_mov_b32 s{sMODE}, 0
s_mov_b32 s{sCOPY}, 0
s_mov_b32 s{sI}, s{sIB}
s_cmp_ge_u32 s{sJ}, 18
s_cselect_b32 s{sROLE}, 1, 0
s_cselect_b32 s{rWA}, s92, s{rWA}
s_cselect_b32 s{rWA+1}, s93, s{rWA+1}
s_mov_b32 s{rWA+2}, {4096*576*2}
s_cselect_b32 s{rWA+2}, {576*4608*2}, s{rWA+2}
s_mov_b32 s{rWA+3}, 0x20000
s_cmp_ge_u32 s{sJ}, 30
s_cselect_b32 s{sROLE}, 2, s{sROLE}
s_cmp_ge_u32 s{sJ}, 9
s_cselect_b32 s{sHALF}, 1, 0
s_mul_i32 s{sT0}, s{sHALF}, 9
s_sub_u32 s{sCG9}, s{sJ}, s{sT0}
s_sub_u32 s{sT0}, s{sJ}, 18
s_and_b32 s{sT1}, s{sT0}, 3
s_lshr_b32 s{sT0}, s{sT0}, 2
s_and_b32 s{sT0}, s{sT0}, 3
s_cmp_eq_u32 s{sROLE}, 0
s_cselect_b32 s{sHALF}, s{sHALF}, s{sT1}
s_cselect_b32 s{sCG9}, s{sCG9}, s{sT0}
v_mov_b32 v{vONE}, 0x3f803f80
v_mov_b32 v{vONE+1}, 0x3f803f80
s_cmp_eq_u32 s{sW}, 0
s_cselect_b32 s{sT0}, 0x3f803f80, 0
s_cselect_b64 {sr(mW0,2)}, 1, 0
v_mov_b32 v{vONE3}, s{sT0}
v_mov_b32 v{vONE3+1}, s{sT0}
v_mov_b32 v{vJUNK}, {1/576:.9e}""")
    mask64(mODDR, 0xffff0000, 0xffff0000); mask64(mODDL, 0xaaaaaaaa, 0xaaaaaaaa); mask64(mROW3, 0, 0xffff0000)
    c1, c2, CS = t + 40, t + 44, t + 48
    for r in range(4): A(f"v_mov_b32 v{c1+r}, v{vONE}")
    A(f"v_mov_b32 v{c2}, 0\nv_mov_b32 v{c2+1}, 0\nv_mov_b32 v{c2+2}, v{vONE}\nv_mov_b32 v{c2+3}, v{vONE}")
    for r in list(range(aRES, aHR + 1)) + [vS1 + 1]: A(f"v_mov_b32 v{r}, 0")
    for ks in range(4): A(mfma(vr(CS,4), vr(c1,4), ar(cWQ+4*ks,4), "0" if ks == 0 else vr(CS,4)))
    A(mfma(vr(CS,4), vr(c2,4), ar(cWQ+14,4), vr(CS,4)))
    A(f"""v_lshrrev_b32 v{aS3}, 2, v{vL}
v_mul_u32_u24 v{aS3}, 288, v{aS3}
v_and_b32 v{aS1}, 3, v{vL}
v_lshl_add_u32 v{aS3}, v{aS1}, 3, v{aS3}
s_lshl_b32 s{sT0}, s{sW}, 5
s_add_u32 s{sT0}, s{sT0}, {LXS}
v_add_u32 v{aS1}, s{sT0}, v{aS3}
v_add_u32 v{aS3}, {LXS + 256}, v{aS3}
s_lshl_b32 s{sT0}, s{sRG}, 5
s_lshl_b32 s{sT1}, s{sW}, 3
s_add_u32 s{sT0}, s{sT0}, s{sT1}
s_add_u32 s{sT0}, s{sT0}, {QSo}
v_mov_b32 v{aQS}, s{sT0}
v_lshrrev_b32 v{t+4}, 7, v0
v_mul_u32_u24 v{t+4}, 128, v{t+4}
v_lshl_add_u32 v{aQW}, v0, 1, v{t+4}
v_add_u32 v{aQW}, {LQ}, v{aQW}
ds_write_b16 v{aQW}, v{c2} offset:1600
ds_write_b16 v{aQW}, v{c2} offset:2400
v_mov_b32 v{t+4}, {LMODE}
ds_read_b32 v{gQS+1}, v{t+4}
v_mov_b32 v{gQS}, 0
v_mov_b32 v{vCS}, v{CS}""")
    A(f"v_add_u32 v{t+3}, 256, v{vL}\nv_min_u32 v{t+3}, 287, v{t+3}")
    x_addr(aX1, 0, sRG, t+4); x_addr(aX2, t+3, sRG, t+4)
    A(f"""v_lshlrev_b32 v{aQ2}, 3, v{vN}
v_add_u32 v{aQ2}, {QSo}, v{aQ2}
v_lshrrev_b32 v{t+4}, 3, v{vN}
v_mul_u32_u24 v{aPR}, 640, v{t+4}
v_mul_u32_u24 v{aQR}, 384, v{t+4}
v_and_b32 v{t+4}, 3, v{vN}
v_mul_u32_u24 v{t+5}, 800, v{t+4}
v_add_u32 v{aQR}, v{aQR}, v{t+5}
v_lshl_add_u32 v{aQR}, v{vG}, 4, v{aQR}
v_add_u32 v{aQR}, {LQ}, v{aQR}
v_lshl_add_u32 v{aPR}, v{vG}, 4, v{aPR}
v_add_u32 v{aPR}, {LP}, v{aPR}
v_lshrrev_b32 v{t+5}, 5, v{vL}
v_mul_u32_u24 v{aPW}, 640, v{t+5}
v_and_b32 v{aMW}, 31, v{vL}
v_lshl_add_u32 v{aPW}, v{aMW}, 2, v{aPW}
s_lshl_b32 s{sT0}, s{sW}, 7
s_add_u32 s{sT0}, s{sT0}, {LP}
v_add_u32 v{aPW}, s{sT0}, v{aPW}
v_lshlrev_b32 v{aMR}, 4, v{t+5}
s_lshl_b32 s{sT0}, s{sW}, 2
s_add_u32 s{sT0}, s{sT0}, {LM}
v_add_u32 v{aMW}, s{sT0}, v{aMR}
v_lshl_add_u32 v{aMR}, v{t+4}, 2, v{aMR}
v_add_u32 v{aMR}, {LM}, v{aMR}
v_min_u32 v{aHL}, 17, v{vL}
v_lshlrev_b32 v{aHL}, 2, v{aHL}
v_add_u32 v{aHL}, {H3o}, v{aHL}""")
    A(f"""s_lshl_b32 s{sT0}, s{sJ}, 9
s_lshl_b32 s{sT1}, s{sW}, 6
s_add_u32 s{sT0}, s{sT0}, s{sT1}
s_add_u32 s{sT0}, s{sT0}, {OPo}
v_lshlrev_b32 v{aOP}, 8, v{t+5}
v_lshl_add_u32 v{aOP}, v{vN}, 2, v{aOP}
v_add_u32 v{aOP}, s{sT0}, v{aOP}
s_lshl_b32 s{sT0}, s{sJ}, 6
s_add_u32 s{sT0}, s{sT0}, {MLo}
s_lshl_b32 s{sT1}, s{sW}, 2
s_add_u32 s{sT1}, s{sT1}, s{sT0}
v_lshl_add_u32 v{t+4}, v{t+5}, 4, s{sT1}
s_lshl_b32 s{sT1}, s{sW}, 3
s_add_u32 s{sT1}, s{sT1}, s{sT0}
s_add_u32 s{sT1}, s{sT1}, 32
v_lshl_add_u32 v{t+5}, v{t+5}, 2, s{sT1}
v_cndmask_b32 v{t+4}, v{t+4}, v{t+5}, {sr(mODDL,2)}
v_cndmask_b32 v{aOP}, v{aOP}, v{t+4}, {sr(mODDR,2)}
s_mov_b32 s{mATT}, 0x1ffff
s_cmp_lt_u32 s{sW}, 2
s_cselect_b32 s{mATT}, 0x3ffff, s{mATT}
s_mov_b32 s{mATT+1}, s{mATT}""")
    ka = t + 4
    A(f"s_lshl_b32 s{sT0}, s{sW}, 14\ns_add_u32 s{sT0}, s{sT0}, {LR}\nv_lshl_add_u32 v{u+8}, v{vN}, 8, s{sT0}\nv_xor_b32 v{u+9}, v{vG}, v{vN}")
    for ks in range(4): A(f"v_xor_b32 v{ka+ks}, {ks << 2}, v{u+9}\nv_lshl_add_u32 v{ka+ks}, v{ka+ks}, 4, v{u+8}")
    A(f"s_waitcnt vmcnt({NV1 - NQ})\ns_barrier")
    stamp(3)
    for Tt in range(4):
        for ks in range(4): A(f"ds_read_b128 {vr(vK+16*Tt+4*ks,4)}, v{ka+ks} offset:{Tt*4096}")
    A(f"s_mov_b32 s{sCNT}, 0\nL_q0_chk:\nv_xor_b32 v{u+8}, s{sE1}, v{g0+1}")
    for k in range(1, 4): A(f"v_xor_b32 v{g0+2*k+1}, s{sE1}, v{g0+2*k+1}\nv_or_b32 v{u+8}, v{u+8}, v{g0+2*k+1}")
    A(f"v_cmp_ne_u32 vcc, 0, v{u+8}\ns_cbranch_vccz L_q0_ok")
    if OPT["xnoq0"]: A("s_branch L_q0_ok")
    A(f"s_cmp_lg_u32 s{sCNT}, 0\ns_cselect_b64 exec, 0, 0xffff\n{q0store} sc1\ns_mov_b64 exec, -1")
    A(f"s_add_u32 s{sCNT}, s{sCNT}, 1\ns_cmp_ge_u32 s{sCNT}, {OPT['tmo']}\ns_cbranch_scc1 L_end\n{q0loads}\ns_waitcnt vmcnt(0)\ns_branch L_q0_chk\nL_q0_ok:")
    for k in range(4): A(f"v_mov_b32 v{gQ+k}, v{g0+2*k}")
    A("s_branch L_att_ok")

poll(f"buffer_load_dwordx4 {vr(gQ,4)}, v{aQ1}, {WS}, s{sI} offen sc1", range(gQ, gQ+4), u)
qsload = f"buffer_load_dwordx2 {vr(gQS,2)}, v{aQ2}, {WS}, s{sI} offen sc1"
resload2 = f"buffer_load_dwordx4 {vr(gRES,4)}, v{aRES}, {WS}, s{sXO} offen sc1"
A("L_att_ok:")
stamp(4); FS("att")
qv, qh, ql = u, u + 1, u + 2
A(f"""v_add_f32 v{qv}, v{gQ}, v{gQ+1}
v_add_f32 v{qh}, v{gQ+2}, v{gQ+3}
s_cmp_eq_u32 s{sPASS}, 0
v_add_f32 v{qv}, v{qv}, v{qh}
v_cvt_pk_bf16_f32 v{qh}, v{qv}, v{qv}
ds_write_b16 v{aQW}, v{qh}
v_lshlrev_b32 v{ql}, 16, v{qh}
v_sub_f32 v{qv}, v{qv}, v{ql}
v_cvt_pk_bf16_f32 v{qv}, v{qv}, v{qv}
ds_write_b16 v{aQW}, v{qv} offset:800
s_cbranch_scc1 L_att_nold
{qsload}
{resload2}
L_att_nold:""")
FS("att")
A("s_waitcnt lgkmcnt(0)\ns_barrier")
FS("att")
fq, D = t + 28, t + 44
for ks in range(4): A(f"ds_read_b128 {vr(fq+4*ks,4)}, v{aQR} offset:{ks*64}")
qk = [(f"s_waitcnt lgkmcnt({3-ks})\n" if Tt == 0 else "") + mfma(vr(D+4*Tt,4), vr(fq+4*ks,4), vr(vK+16*Tt+4*ks,4), "0" if ks == 0 else vr(D+4*Tt,4))
      for Tt in range(4) for ks in range(4)]
for m in qk[:4]: A(m)
A("s_cbranch_scc1 L_att_nochk\ns_waitcnt vmcnt(1)")
recheck(qsload, [gQS, gQS+1], u+3)
A("L_att_nochk:")
z1, z2 = u + 4, u + 5
side = [dpp("v_add_f32", z1, gQS, ROWRED[0]), dpp("v_add_f32", z2, gQS+1, ROWRED[0])]
for p in ROWRED[1:]: side += [dpp("v_add_f32", z1, z1, p), dpp("v_add_f32", z2, z2, p)]
side += [f"v_mul_f32 v{vMU}, {1/576:.9e}, v{z1}", f"v_mul_f32 v{z2}, {1/576:.9e}, v{z2}", f"v_fma_f32 v{z2}, -v{vMU}, v{vMU}, v{z2}",
         f"v_add_f32 v{D}, v{D}, v{D+1}", f"v_max_f32 v{z2}, 0, v{z2}", f"v_add_f32 v{z2}, 0x3727c5ac, v{z2}", f"v_rsq_f32 v{vC}, v{z2}",
         f"v_add_f32 v{D+2}, v{D+2}, v{D+3}", f"v_mul_f32 v{vC}, {128**-0.5*math.log2(math.e):.9e}, v{vC}",
         f"v_add_f32 v{D+4}, v{D+4}, v{D+5}", f"v_add_f32 v{D+6}, v{D+6}, v{D+7}", f"v_mul_f32 v{vMU}, v{vMU}, v{vC}"]
weave(qk[4:], side, 2)
FS("att")
sa, sb, um, tm = u + 6, u + 7, u + 8, u + 9
A(f"""v_add_f32 v{D+8}, v{D+8}, v{D+9}
v_add_f32 v{D+10}, v{D+10}, v{D+11}
v_cndmask_b32 v{sa}, v{D}, v{D+8}, {sr(mODDR,2)}
v_cndmask_b32 v{tm}, v{D+2}, v{D+10}, {sr(mODDR,2)}
v_mul_f32 v{sa}, v{sa}, v{vC}
v_fma_f32 v{sa}, -v{vMU}, v{tm}, v{sa}
s_nop 1
v_add_f32 v{D+12}, v{D+12}, v{D+13}
v_add_f32 v{D+14}, v{D+14}, v{D+15}
v_cndmask_b32 v{sb}, v{D+4}, v{D+12}, {sr(mODDR,2)}
v_cndmask_b32 v{tm}, v{D+6}, v{D+14}, {sr(mODDR,2)}
v_mul_f32 v{sb}, v{sb}, v{vC}
v_fma_f32 v{sb}, -v{vMU}, v{tm}, v{sb}
v_max_f32 v{um}, v{sa}, v{sb}
v_max_f32 v{tm}, v{sa}, v{sb}
s_nop 1
v_permlane16_swap_b32 v{um}, v{tm}
v_max_f32 v{um}, v{um}, v{tm}
s_nop 1""")
rowred("v_max_f32", [um])
A(f"""v_sub_f32 v{sa}, v{sa}, v{um}
v_sub_f32 v{sb}, v{sb}, v{um}
ds_write_b32 v{aMW}, v{um}
v_exp_f32 v{sa}, v{sa}
v_exp_f32 v{sb}, v{sb}
s_cmp_eq_u32 s{sPASS}, 0
v_cvt_pk_bf16_f32 v{tm}, v{sa}, v{sb}
ds_write_b32 v{aPW}, v{tm}""")
FS("att")
A(f"v_lshlrev_b32 v{sa}, 16, v{tm}\nv_and_b32 v{sb}, 0xffff0000, v{tm}\nv_add_f32 v{sa}, v{sa}, v{sb}\ns_cbranch_scc1 L_rdy")
fp, acc, fm, big, fb = t - 0, t + 32, u + 7, u + 9, u + 10
def pv_head():
    A("s_waitcnt lgkmcnt(0)\ns_barrier")
    A(f"ds_read_b32 v{fm}, v{aMR}")
    for ks in range(8): A(f"ds_read_b128 {vr(fp+4*ks,4)}, v{aPR} offset:{ks*64}")
def pv_mfma(ks, tau):
    a_ = acc + 8*(ks >> 1) + 4*tau
    return mfma(vr(a_,4), vr(fp+4*ks,4), ar(cV+8*ks+4*tau,4), "0" if ks % 2 == 0 else vr(a_,4))
lc = u + 14
pv_side = [f"v_mov_b32 v{lc}, v{sa}", dpp("v_max_f32", big, fm, ROWRED[0]), "s_nop 0",
           f"v_permlane16_swap_b32 v{sa}, v{lc}", dpp("v_max_f32", big, big, ROWRED[1]), f"v_add_f32 v{sa}, v{sa}, v{lc}",
           f"v_sub_f32 v{fm}, v{fm}, v{big}", f"v_sub_f32 v{um}, v{um}, v{big}",
           dpp("v_add_f32", sa, sa, ROWRED[0]), f"v_exp_f32 v{fm}, v{fm}", f"v_exp_f32 v{um}, v{um}",
           dpp("v_add_f32", sa, sa, ROWRED[1]), f"v_mov_b32_dpp v{fb}, v{fm} row_newbcast:0 {DPPM}", f"v_mov_b32_dpp v{fb+1}, v{fm} row_newbcast:1 {DPPM}",
           dpp("v_add_f32", sa, sa, ROWRED[2]), f"v_mov_b32_dpp v{fb+2}, v{fm} row_newbcast:2 {DPPM}", f"v_mov_b32_dpp v{fb+3}, v{fm} row_newbcast:3 {DPPM}",
           dpp("v_add_f32", sa, sa, ROWRED[3]), f"v_mul_f32 v{sa}, v{sa}, v{um}", f"v_cndmask_b32 v{sa}, v{sa}, v{big}, {sr(mODDL,2)}"]
o0, o1 = lc, um
pv_tail = [f"v_mul_f32 v{o0}, v{fb}, v{acc}", f"v_mul_f32 v{o1}, v{fb}, v{acc+4}", f"v_fmac_f32 v{o0}, v{fb+1}, v{acc+8}", f"v_fmac_f32 v{o1}, v{fb+1}, v{acc+12}"]
pv_head()
stamp(5); FS("att")
PVW = {0: 7, 1: 6, 2: 4, 4: 2, 6: 0}
weave([(f"s_waitcnt lgkmcnt({PVW[ks]})\n" if tau == 0 and ks in PVW else "") + pv_mfma(ks, tau) for ks in range(8) for tau in range(2)], pv_side + pv_tail, 2, 0)
def pv_finish():
    A(f"""v_fmac_f32 v{o0}, v{fb+2}, v{acc+16}
v_fmac_f32 v{o1}, v{fb+2}, v{acc+20}
v_mov_b32 v{FA+16}, 0
v_mov_b32 v{FA+17}, 0
s_nop 2
v_fmac_f32 v{o0}, v{fb+3}, v{acc+24}
v_fmac_f32 v{o1}, v{fb+3}, v{acc+28}
v_cvt_pk_bf16_f32 v{o0}, v{o0}, v{o1}
v_cndmask_b32 v{o0}, v{o0}, v{sa}, {sr(mODDR,2)}""")
    pub(f"buffer_store_dword v{o0}, v{aOP}, {WS}, s{sI} offen", sr(mATT,2))
FS("att")
pv_finish()
FS("att"); stamp(6)
A(f"s_cmp_lg_u32 s{sROLE}, 0\ns_cbranch_scc1 L_roleBF")

def wo_dma(i0, i1, v):
    wdma_voff(v, 1152, "wo")
    A(f"""s_lshl_b32 s{sT1}, s{sX}, 1
s_add_u32 s{sT1}, s{sT1}, s{sHALF}
s_lshl_b32 s{sT1}, s{sT1}, 5
s_add_u32 s{sT1}, s{sT1}, s{sW}
s_mul_i32 s{sT1}, s{sT1}, {8*1152}
s_lshl_b32 s{sT2}, s{sCG9}, 7
s_add_u32 s{sT1}, s{sT1}, s{sT2}
s_lshl_b32 s{sT2}, s{sW}, 10
s_add_u32 s{sT2}, s{sT2}, {LR + i0*4096}""")
    if i0: A(f"s_add_u32 s{sT1}, s{sT1}, {i0*32*1152}")
    for i in range(i0, i1):
        dma(rWA, v, sT1, sT2)
        if i < i1 - 1: A(f"s_add_u32 s{sT1}, s{sT1}, {32*1152}\ns_add_u32 s{sT2}, s{sT2}, 4096")
def w2_dma(i0, i1, v):
    wdma_voff(v, 1152, "std")
    A(f"""s_lshl_b32 s{sT1}, s{sX}, 1
s_add_u32 s{sT1}, s{sT1}, s{sHALF}
s_mul_i32 s{sT1}, s{sT1}, 36
s_add_u32 s{sT1}, s{sT1}, s{sW}
s_mul_i32 s{sT1}, s{sT1}, {8*1152}
s_lshl_b32 s{sT2}, s{sCG9}, 7
s_add_u32 s{sT1}, s{sT1}, s{sT2}
s_lshl_b32 s{sT2}, s{sW}, 10
s_add_u32 s{sT2}, s{sT2}, {LW2 + i0*4096}""")
    if i0: A(f"s_add_u32 s{sT1}, s{sT1}, {i0*32*1152}")
    for i in range(i0, i1):
        dma(rW2, v, sT1, sT2)
        if i < i1 - 1: A(f"s_add_u32 s{sT1}, s{sT1}, {32*1152}\ns_add_u32 s{sT2}, s{sT2}, 4096")
def w1_dma(k0, k1, v, done):
    wdma_voff(v, 9216, "std")
    A(f"""s_mul_i32 s{sT1}, s{sHALF}, 18
s_add_u32 s{sT1}, s{sT1}, s{sW}
s_mul_i32 s{sT1}, s{sT1}, {8*9216}
s_mul_i32 s{sT2}, s{sX}, 1152
s_add_u32 s{sT1}, s{sT1}, s{sT2}
s_mul_i32 s{sT2}, s{sCG9}, 384
s_add_u32 s{sT1}, s{sT1}, s{sT2}
s_lshl_b32 s{sT2}, s{sW}, 10
s_add_u32 s{sT2}, s{sT2}, {LR}""")
    for k in range(k0, k1):
        i, c = divmod(k, 3)
        if k == 12: A(f"s_cmp_ge_u32 s{sW}, 2\ns_cbranch_scc1 {done}")
        A(f"s_add_u32 s{sT3}, s{sT1}, {i*32*9216 + c*128}\ns_add_u32 s{sT4}, s{sT2}, {i*4096 + c*18432}")
        dma(rWA, v, sT3, sT4)

def w1_regs():
    for c in range(3): tr_slice(cWA + 18*c, t+8, t+10, c*18432)
    for r in range(4): A(f"v_mov_b32 v{t+28+r}, v{vONE}")
    A(f"v_mov_b32 v{t+32}, 0\nv_mov_b32 v{t+33}, 0\nv_mov_b32 v{t+34}, v{vONE}\nv_mov_b32 v{t+35}, v{vONE}\ns_nop 0\ns_waitcnt lgkmcnt(0)")
    for c in range(3):
        a_ = ACC + 4*c
        for ks in range(4): A(mfma(vr(a_,4), vr(t+28,4), ar(cWA+18*c+4*ks,4), "0" if ks == 0 else vr(a_,4)))
        A(mfma(vr(a_,4), vr(t+32,4), ar(cWA+18*c+14,4), vr(a_,4)))
    A(f"v_cmp_eq_u32 vcc, 2, v{vG}\ns_nop 6")
    A(f"v_cndmask_b32 v{ACC}, v{ACC}, v{ACC+4}, vcc\nv_cndmask_b32 v{vS1}, v{ACC}, v{ACC+8}, {sr(mODDR,2)}")

with Tail():
    ra_, rb_, avt = t, t + 1, t + 2
    gv, gva = gO, gML
    gload = f"buffer_load_dwordx4 {vr(gv,4)}, v{gva}, {WS}, 0 offen sc1"
    A(f"L_rdy:\nv_lshlrev_b32 v{gva}, 4, v{vL}\nv_add_u32 v{gva}, {RDY}, v{gva}")
    BEH = OPT["beh"]; NX = 1 if OPT["touch"] else 0
    x0res = f"s_lshl_b32 s{sT0}, s{sCG9}, 7\ns_lshl_b32 s{sT1}, s{sW}, 5\ns_add_u32 s{sT0}, s{sT0}, s{sT1}\nv_lshl_add_u32 v{t+4}, v{vG}, 3, s{sT0}\nbuffer_load_dwordx2 {vr(vR+2,2)}, v{t+4}, {sr(rXI,4)}, 0 offen"
    def role_dma(done):
        lb = uid("rb")
        A(f"s_cmp_eq_u32 s{sROLE}, 1\ns_cbranch_scc1 {lb}\ns_cmp_eq_u32 s{sROLE}, 2\ns_cbranch_scc1 {done}f")
        if NW2: w2_dma(0, NW2, t+4)
        wo_dma(0, 8, t+4)
        if BEH: A(f"s_waitcnt vmcnt({8 + NW2 + NX + 1})")
        A(f"s_branch {done}\n{lb}:")
        if NB1: w1_dma(0, NB1, t+4, done + "b")
        A(f"{done}b:")
        if BEH: A(f"s_waitcnt vmcnt({min(NB1, 12) + NX + 1})\ns_branch {done}")
        A(f"{done}f:")
        if BEH: A(f"s_waitcnt vmcnt({NX + 1})")
        A(f"{done}:")
    A(x0res)
    if not BEH: role_dma("L_w1_issued")
    A(gload)
    for i in range(NV1, 16): vdma(i)
    avt = vKO
    A(f"""v_bfe_u32 v{avt+1}, v{vL}, 3, 2
v_bfe_u32 v{t+4}, v{vL}, 2, 1
v_lshl_or_b32 v{avt+1}, v{t+4}, 2, v{avt+1}
s_lshl_b32 s{sT0}, s{sW}, 1
v_xor_b32 v{avt+1}, s{sT0}, v{avt+1}
v_lshlrev_b32 v{avt+1}, 5, v{avt+1}
v_and_b32 v{avt}, 3, v{vL}
v_lshl_add_u32 v{avt}, v{avt}, 3, v{avt+1}
v_lshl_add_u32 v{avt}, v{t+4}, 12, v{avt}
v_bfe_u32 v{t+4}, v{vL}, 3, 1
v_lshl_add_u32 v{avt}, v{t+4}, 8, v{avt}
v_lshl_add_u32 v{avt}, v{vG}, 10, v{avt}
v_xor_b32 v{avt+1}, 32, v{avt}""")
    def vtr(ks, tau, h): return f"ds_read_b64_tr_b16 {ar(cV+8*ks+4*tau+2*h,2)}, v{avt+tau} offset:{ks*8192+h*512}"
    A(f"s_cmp_eq_u32 s{sROLE}, 1\ns_cbranch_scc1 L_sub\ns_cmp_eq_u32 s{sROLE}, 2\ns_cbranch_scc1 L_sud")
    A(f"""s_and_b32 s{sT0}, s{sW}, 1
s_lshl_b32 s{sT0}, s{sT0}, 1
v_lshrrev_b32 v{t+8}, 3, v{vN}
v_add_u32 v{t+8}, s{sT0}, v{t+8}
v_and_b32 v{t+9}, 1, v{vN}
v_lshlrev_b32 v{t+9}, 4, v{t+9}
v_mov_b32 v{t+10}, 0x3d80
v_lshlrev_b32 v{t+9}, v{t+9}, v{t+10}
v_cmp_eq_u32 vcc, v{t+8}, v{vG}
v_bfe_u32 v{t+10}, v{vN}, 1, 2
s_nop 0
v_cndmask_b32 v{t+9}, 0, v{t+9}, vcc""")
    for r in range(4): A(f"v_cmp_eq_u32 vcc, {r}, v{t+10}\ns_nop 1\nv_cndmask_b32 v{vSEL+r}, 0, v{t+9}, vcc")
    A(f"""v_lshrrev_b32 v{aRES}, 2, v{vN}
v_lshlrev_b32 v{aRES}, 14, v{aRES}
v_and_b32 v{t+8}, 3, v{vN}
v_lshl_add_u32 v{aRES}, v{t+8}, 11, v{aRES}
v_lshl_add_u32 v{aRES}, v{vG}, 4, v{aRES}
s_lshl_b32 s{sT0}, s{sCG9}, 7
s_lshr_b32 s{sT1}, s{sW}, 1
s_lshl_b32 s{sT1}, s{sT1}, 6
s_add_u32 s{sT0}, s{sT0}, s{sT1}
v_add_u32 v{aRES}, s{sT0}, v{aRES}
s_lshl_b32 s{sT0}, s{sHALF}, 13
s_lshl_b32 s{sT1}, s{sW}, 11
s_add_u32 s{sT0}, s{sT0}, s{sT1}
s_add_u32 s{sT0}, s{sT0}, {OPo}
v_lshl_add_u32 v{aO1}, v{vL}, 4, s{sT0}
s_lshl_b32 s{sT0}, s{sHALF}, 10
s_add_u32 s{sT0}, s{sT0}, {MLo}
v_lshl_add_u32 v{aML}, v{vN}, 6, s{sT0}
v_min_u32 v{t+8}, 2, v{vG}
v_lshl_add_u32 v{aML}, v{t+8}, 4, v{aML}
s_mul_i32 s{sT0}, s{sW}, {4*544}
s_add_u32 s{sT0}, s{sT0}, {LOPS}
v_lshrrev_b32 v{aOW}, 5, v{vL}
v_mul_u32_u24 v{aOW}, 544, v{aOW}
v_and_b32 v{t+8}, 31, v{vL}
v_lshl_add_u32 v{aOW}, v{t+8}, 4, v{aOW}
v_add_u32 v{aOW}, s{sT0}, v{aOW}
v_mul_u32_u24 v{aOR}, 544, v{vN}
v_lshl_add_u32 v{aOR}, v{vG}, 4, v{aOR}
v_add_u32 v{aOR}, {LOPS}, v{aOR}
s_lshl_b32 s{sT0}, s{sX}, 1
s_add_u32 s{sT0}, s{sT0}, s{sHALF}
s_lshr_b32 s{sT1}, s{sT0}, 2
s_lshl_b32 s{sT1}, s{sT1}, 14
s_and_b32 s{sT0}, s{sT0}, 3
s_lshl_b32 s{sT0}, s{sT0}, 11
s_add_u32 s{sT0}, s{sT0}, s{sT1}
s_lshl_b32 s{sT1}, s{sCG9}, 7
s_add_u32 s{sT0}, s{sT0}, s{sT1}
s_lshl_b32 s{sT1}, s{sW}, 5
s_add_u32 s{sT0}, s{sT0}, s{sT1}
v_lshl_add_u32 v{aXS}, v{vG}, 3, s{sT0}
v_lshl_add_u32 v{aXS}, v{vN}, 13, v{aXS}
s_lshl_b32 s{sT0}, s{sJ}, 2
s_add_u32 s{sT0}, s{sT0}, {H3o}
v_mov_b32 v{aHS}, s{sT0}
s_mul_i32 s{sT0}, s{sHALF}, {288*16}
s_mul_i32 s{sT1}, s{sW}, {72*16}
s_add_u32 s{sT0}, s{sT0}, s{sT1}
s_add_u32 s{sT0}, s{sT0}, {HPo}
v_lshl_add_u32 v{aH1}, v{vL}, 4, s{sT0}
s_add_u32 s{sT0}, s{sT0}, 1024
v_lshl_add_u32 v{aH2}, v{vN}, 4, s{sT0}
v_lshlrev_b32 v{t+8}, 4, v{vN}
v_add_u32 v{t+8}, {HSo - 128}, v{t+8}
v_cmp_gt_u32 vcc, 8, v{vN}
s_mul_i32 s{sT0}, s{sW}, 144
s_add_u32 s{sT0}, s{sT0}, {LH}
v_cndmask_b32 v{aH2}, v{t+8}, v{aH2}, vcc
v_lshl_add_u32 v{aHW}, v{vL}, 1, s{sT0}
s_add_u32 s{sT0}, s{sT0}, 128
v_lshl_add_u32 v{aHW2}, v{vN}, 1, s{sT0}
v_mov_b32 v{t+8}, {LH + 576}
v_cndmask_b32 v{aHW2}, v{t+8}, v{aHW2}, vcc
v_lshlrev_b32 v{aHR}, 4, v{vG}
v_add_u32 v{aHR}, {LH}, v{aHR}""")
    A(f"""v_bfe_u32 v{t+8}, v{vL}, 4, 1
v_bfe_u32 v{t+9}, v{vL}, 2, 1
v_lshl_or_b32 v{t+8}, v{t+9}, 1, v{t+8}
v_xor_b32 v{t+8}, s{sW}, v{t+8}
v_lshlrev_b32 v{t+8}, 5, v{t+8}
v_lshl_add_u32 v{t+8}, v{t+9}, 11, v{t+8}
v_and_b32 v{t+9}, 3, v{vL}
v_lshl_add_u32 v{t+8}, v{t+9}, 3, v{t+8}
v_bfe_u32 v{t+9}, v{vL}, 3, 1
v_lshl_add_u32 v{t+8}, v{t+9}, 7, v{t+8}
v_lshl_add_u32 v{t+8}, v{vG}, 9, v{t+8}
v_add_u32 v{t+8}, {LR}, v{t+8}
""")
    A("s_branch L_sud\nL_sub:")
    A(f"v_add_u32 v{t+11}, 256, v{vL}\nv_min_u32 v{t+11}, 287, v{t+11}")
    x_addr(aB1, 0, sHALF, t+12); x_addr(aB2, t+11, sHALF, t+12)
    A(f"""s_mul_i32 s{sT0}, s{sCG9}, {192*16}
s_lshl_b32 s{sT1}, s{sW}, 8
s_add_u32 s{sT0}, s{sT0}, s{sT1}
s_lshl_b32 s{sT1}, s{sHALF}, 2
s_add_u32 s{sT0}, s{sT0}, s{sT1}
s_add_u32 s{sT0}, s{sT0}, {HPo}
v_lshl_add_u32 v{aBD}, v{vN}, 4, s{sT0}
v_and_b32 v{t+8}, 1, v{vG}
v_lshl_add_u32 v{aBD}, v{t+8}, 11, v{aBD}
v_lshrrev_b32 v{t+8}, 1, v{vG}
v_lshl_add_u32 v{aBD}, v{t+8}, 10, v{aBD}
v_add_u32 v{vS1+1}, {S1o - HPo}, v{aBD}
s_lshl_b32 s{sT0}, s{sHALF}, 5
s_lshl_b32 s{sT1}, s{sW}, 3
s_add_u32 s{sT0}, s{sT0}, s{sT1}
s_add_u32 s{sT0}, s{sT0}, {HSo}
v_lshl_add_u32 v{t+8}, v{vN}, 2, s{sT0}
v_cndmask_b32 v{aBD}, v{aBD}, v{t+8}, {sr(mROW3,2)}
s_mov_b32 s{mLN}, -1
s_mov_b32 s{mLN+1}, 0xffff
s_cmp_eq_u32 s{sCG9}, 0
s_cselect_b32 s{mLN+1}, 0x3ffff, s{mLN+1}""")
    traddr_std(t+8, LR); traddr_tail(t+10, LR)
    A("L_sud:")
    A(f"s_mov_b32 s{sCNT}, 0\ns_waitcnt vmcnt({16 - max(NV1, 8)})\ns_barrier")
    for ks in range(4):
        for tau in range(2):
            for h in range(2): A(vtr(ks, tau, h))
    b_ = gv + 4
    A("L_rdy_chk:")
    for r in range(4): A(f"v_xor_b32 v{b_+r}, s{sE1}, v{gv+r}")
    A(f"v_or_b32 v{t+4}, v{b_}, v{b_+1}\nv_or3_b32 v{t+4}, v{t+4}, v{b_+2}, v{b_+3}\nv_cmp_lt_u32 vcc, 7, v{t+4}\ns_cbranch_vccz L_rdy_ok")
    A(f"s_add_u32 s{sCNT}, s{sCNT}, 1\ns_cmp_ge_u32 s{sCNT}, {OPT['tmo']}\ns_cbranch_scc1 L_end\ns_sleep 16\n{gload}\ns_waitcnt vmcnt(0)\ns_branch L_rdy_chk\nL_rdy_ok:")
    for r in range(4): A(f"v_xor_b32 v{b_+r}, s{sXCC}, v{b_+r}")
    A(f"""v_or_b32 v{t+4}, v{b_}, v{b_+1}
v_or3_b32 v{t+4}, v{t+4}, v{b_+2}, v{b_+3}
v_cmp_ne_u32 vcc, 0, v{t+4}
s_lshl_b32 s{sT1}, s{sX}, 3
s_lshr_b64 {sr(sT2,2)}, vcc, s{sT1}
s_and_b32 s{sT2}, s{sT2}, 0xff
s_cselect_b32 s{sMODE}, 0, {OPT['fast']}""")
    A(f"s_cmp_lg_u32 s{sMODE}, 0\ns_cbranch_scc1 L_nore\ns_mov_b64 exec, 0xffff\n{q0store} sc1\ns_mov_b64 exec, -1\ns_waitcnt vmcnt(0)\nL_nore:")
    NX = 1 if OPT["touch"] else 0
    if NX: A(f"""s_mul_i32 s{sT1}, s{sJ}, {REST}
s_lshl_b32 s{sT2}, s{sW}, 8
s_add_u32 s{sT1}, s{sT1}, s{sT2}
s_sub_u32 s{sT1}, s{sT1}, 256
v_lshl_add_u32 v{ra_}, v{vL}, 7, s{sT1}
s_lshl_b32 s{sT1}, s{sJ}, 9
s_lshl_b32 s{sT2}, s{sW}, 7
s_add_u32 s{sT1}, s{sT1}, s{sT2}
s_add_u32 s{sT1}, s{sT1}, {OPo}
s_lshl_b32 s{sT2}, s{sJ}, 6
s_add_u32 s{sT2}, s{sT2}, {MLo}
v_writelane_b32 v{ra_}, s{sT1}, 0
v_writelane_b32 v{ra_}, s{sT2}, 1
s_mov_b64 exec, 15
buffer_load_dword v8, v{ra_}, {WS}, s{sIB} offen sc1
s_mov_b64 exec, -1""")
    pub(f"buffer_store_dword v{vCS}, v{aQD}, {WS}, s{sIB} offen", "0xffff")
    A(f"v_lshlrev_b32 v{vR}, 16, v{vR+2}\nv_and_b32 v{vR+1}, 0xffff0000, v{vR+2}\nv_lshlrev_b32 v{vR+2}, 16, v{vR+3}\nv_and_b32 v{vR+3}, 0xffff0000, v{vR+3}")
    for r in range(4): A(f"v_mul_f32 v{vR+r}, 0x3b800000, v{vR+r}")
    def wo_regs(a_):
        for kk in range(8):
            for h in range(2): A(f"ds_read_b64_tr_b16 {ar(cWA+4*kk+2*h,2)}, v{a_} offset:{kk*4096+h*256}")
    if BEH:
        A(f"v_mov_b32 v{vQ0}, v{t+8}")
        role_dma("L_w1_issued")
    else:
        A(f"s_cmp_eq_u32 s{sROLE}, 1\ns_cbranch_scc1 L_trb\ns_cmp_eq_u32 s{sROLE}, 2\ns_cbranch_scc1 L_trd")
        wo_regs(t+8)
        A("s_branch L_trd\nL_trb:")
        if NB1 == 15: w1_regs()
        A(f"L_trd:\ns_waitcnt vmcnt({NX + 1})")
    pv_head()
    stamp(5)
    vq = [vtr(ks, tau, h) for ks in range(4, 8) for tau in range(2) for h in range(2)]
    side = pv_side + pv_tail; n_after = 0
    for ks in range(8):
        A(f"s_waitcnt lgkmcnt({min(15, 7 - ks + n_after) if ks < 4 else (7 - ks)*4})")
        for tau in range(2):
            A(pv_mfma(ks, tau))
            if vq: A(vq.pop(0)); A(vq.pop(0)); n_after += 2
            else:
                for _ in range(3):
                    if side: A(side.pop(0))
    assert not side
    pv_finish()
    stamp(6)
    A(f"s_cmp_lg_u32 s{sROLE}, 0\ns_cbranch_scc1 L_first")
    if BEH:
        A("s_waitcnt vmcnt(1)\ns_barrier")
        wo_regs(vQ0)
    A("s_branch L_wo_go")

A("s_waitcnt vmcnt(1)")
recheck(resload2, range(gRES, gRES+4), u)
A(mfma(vr(vR,4), vr(vSEL,4), vr(gRES,4), "0"))
A("L_wo_go:")
poll(f"""buffer_load_dwordx4 {vr(gO,4)}, v{aO1}, {WS}, s{sI} offen sc1
buffer_load_dwordx4 {vr(gO+4,4)}, v{aO1}, {WS}, s{sI} offen offset:1024 sc1
buffer_load_dwordx4 {vr(gML,4)}, v{aML}, {WS}, s{sI} offen sc1""", range(gO, gO+12), u)
stamp(7); FS("wo")
ls, mm, m2, M_ = u, u + 1, u + 2, u + 3
A(f"""ds_write_b128 v{aOW}, {vr(gO,4)}
ds_write_b128 v{aOW}, {vr(gO+4,4)} offset:{2*544}
v_cndmask_b32 v{mm}, v{gML}, v{gML+1}, {sr(mODDR,2)}
v_cndmask_b32 v{m2}, v{gML}, v{gML+1}, {sr(mODDR,2)}
v_add_f32 v{ls}, v{gML}, v{gML+1}
v_add_f32 v{M_}, v{gML+2}, v{gML+3}
v_permlane32_swap_b32 v{mm}, v{m2}
v_add_f32 v{ls}, v{ls}, v{M_}
s_nop 0""")
A(dpp("v_max_f32", M_, m2, ROWRED[0]))
for p in ROWRED[1:]: A("s_nop 1\n" + dpp("v_max_f32", M_, M_, p))
A(f"v_sub_f32 v{m2}, v{m2}, v{M_}\nv_exp_f32 v{m2}, v{m2}")
FS("wo")
A("s_waitcnt lgkmcnt(0)\ns_barrier")
FS("wo")
fo, wacc = t + 28, u + 8
for kk in range(8): A(f"ds_read_b128 {vr(fo+4*kk,4)}, v{aOR} offset:{kk*64}")
def hint_send(imm): pub(f"buffer_store_dword v{vL}, v{aHS}, {WS}, s{sI} offen offset:{imm}", sr(mW0,2))
w0, w1_ = m2, mm
A(f"v_mul_f32 v{ls}, v{ls}, v{m2}\ns_nop 1\n{dpp('v_add_f32', ls, ls, ROWRED[0])}\ns_nop 1\n{dpp('v_add_f32', ls, ls, ROWRED[1])}")
FS("wo")
side = [dpp("v_add_f32", ls, ls, ROWRED[2]), dpp("v_add_f32", ls, ls, ROWRED[3]), f"v_rcp_f32 v{ls}, v{ls}",
        f"v_mul_f32 v{w0}, v{m2}, v{ls}\nv_mov_b32 v{M_}, v{w0}", f"v_permlane32_swap_b32 v{w0}, v{M_}\nv_mov_b32 v{w1_}, v{w0}", f"v_permlane16_swap_b32 v{w0}, v{w1_}"]
wom = [f"s_waitcnt lgkmcnt({7-kk})\n" + mfma(vr(wacc+4*(kk >> 2),4), ar(cWA+4*kk,4), vr(fo+4*kk,4), "0" if kk % 4 == 0 else vr(wacc+4*(kk >> 2),4)) for kk in range(8)]
weave(wom, side, 1)
FS("wo")
if OPT["h3pos"] == 1: hint_send(0)
else: A("s_nop 0")
tt = u + 4
for r in range(4): A(f"v_fma_f32 v{tt+r}, v{w0}, v{wacc+r}, v{vR+r}")
if OPT["h3pos"] != 1: A("s_nop 2")
for r in range(4): A(f"v_fmac_f32 v{tt+r}, v{w1_}, v{wacc+4+r}")
rowred("v_add_f32", [tt, tt+1, tt+2, tt+3])
XM = 0x00030003 if OPT["copies"] == 2 else 0x00010001
def x_publish(src, xoff):
    A(f"s_add_u32 s{sT0}, s{sPASS}, {xoff}\nv_cvt_pk_bf16_f32 v{src}, v{src}, v{src+1}\ns_mov_b32 exec_lo, {XM:#x}\ns_mov_b32 exec_hi, {XM:#x}\nv_cvt_pk_bf16_f32 v{src+1}, v{src+2}, v{src+3}")
    A(f"buffer_store_dwordx2 {vr(src,2)}, v{aXS}, {WS}, s{sT0} offen sc1\ns_mov_b64 exec, -1")
FS("wo")
x_publish(tt, X1O)
FS("wo")
if OPT["h3pos"] == 2: hint_send(0)
stamp(8)
A(f"s_cmp_eq_u32 s{sPASS}, 0\ns_cbranch_scc1 L_w2_first\nL_w2_go:\ns_add_u32 s{sXO}, s{sPASS}, s{sCOPY}")
hloads = f"buffer_load_dwordx4 {vr(gH,4)}, v{aH1}, {WS}, s{sI} offen sc1\nbuffer_load_dwordx4 {vr(gH+4,4)}, v{aH2}, {WS}, s{sI} offen sc1"
poll(hloads, range(gH, gH+8), u)
stamp(9); FS("w2")
resload1 = f"buffer_load_dwordx4 {vr(gX1,4)}, v{aRES}, {WS}, s{sXO} offen sc1"
y0, y1, z1, z2, hmu, hrs = u, u + 4, u + 8, u + 9, u + 10, u + 11
A(f"""v_add_f32 v{z1}, v{gH+4}, v{gH+6}
v_add_f32 v{z2}, v{gH+5}, v{gH+7}
{resload1}
v_add_f32 v{y0}, v{gH}, v{gH+1}
{dpp("v_add_f32", hmu, z1, ROWRED[0])}
{dpp("v_add_f32", hrs, z2, ROWRED[0])}
v_add_f32 v{y0+1}, v{gH+2}, v{gH+3}
{dpp("v_add_f32", hmu, hmu, ROWRED[1])}
{dpp("v_add_f32", hrs, hrs, ROWRED[1])}
v_add_f32 v{y1}, v{z1}, v{z2}
{dpp("v_add_f32", hmu, hmu, ROWRED[2])}
{dpp("v_add_f32", hrs, hrs, ROWRED[2])}
v_add_f32 v{y0}, v{y0}, v{y0+1}
v_mul_f32_dpp v{hmu}, v{hmu}, v{vJUNK} row_newbcast:15 {DPPM}
v_mul_f32_dpp v{hrs}, v{hrs}, v{vJUNK} row_newbcast:15 {DPPM}
v_fma_f32 v{hrs}, -v{hmu}, v{hmu}, v{hrs}
v_fma_f32 v{y0}, -v{hmu}, v{vS1}, v{y0}
v_max_f32 v{hrs}, 0, v{hrs}
v_add_f32 v{hrs}, 0x3727c5ac, v{hrs}
v_rsq_f32 v{hrs}, v{hrs}
v_fma_f32 v{y1}, -v{hmu}, v{vS1+1}, v{y1}
s_mov_b32 s{sT0}, {-math.log2(math.e):.9e}
v_fma_f32 v{y0}, v{y0}, v{hrs}, v{vB}
v_fma_f32 v{y1}, v{y1}, v{hrs}, v{vB+1}""")
FS("w2")
e0, e1 = z1, z2
for y in (y0, y1): A(f"v_mul_f32 v{y+1}, s{sT0}, abs(v{y})")
for y in (y0, y1): A(f"v_exp_f32 v{y+1}, v{y+1}")
A(f"v_cmp_le_f32 vcc, 0, v{y0}\nv_cmp_le_f32 {sr(sT2,2)}, 0, v{y1}")
for y in (y0, y1): A(f"v_fma_f32 v{y+2}, v{y+1}, 2.0, 1.0\nv_add_f32 v{y+3}, 2.0, v{y+1}")
for y, e in ((y0, e0), (y1, e1)): A(f"v_mul_f32 v{y+3}, v{y+3}, v{y+1}\nv_mul_f32 v{e}, v{y+1}, v{y+1}")
A(f"v_cndmask_b32 v{y0+2}, v{y0+3}, v{y0+2}, vcc\nv_cndmask_b32 v{y1+2}, v{y1+3}, v{y1+2}, {sr(sT2,2)}")
A(f"v_cndmask_b32 v{e0}, 1.0, v{e0}, vcc\nv_cndmask_b32 v{e1}, 1.0, v{e1}, {sr(sT2,2)}")
for y, e in ((y0, e0), (y1, e1)): A(f"v_fma_f32 v{e}, v{e}, 2.0, v{y+2}")
for y, e in ((y0, e0), (y1, e1)): A(f"v_rcp_f32 v{e}, v{e}")
for y, e in ((y0, e0), (y1, e1)): A(f"v_mul_f32 v{y}, v{y}, v{y+2}")
for y, e in ((y0, e0), (y1, e1)): A(f"v_mul_f32 v{y}, v{y}, v{e}")
A(f"v_cvt_pk_bf16_f32 v{y0}, v{y0}, v{y1}\nds_write_b16 v{aHW}, v{y0}\nds_write_b16_d16_hi v{aHW2}, v{y0}")
FS("w2")
A("s_waitcnt lgkmcnt(0)\ns_barrier")
FS("w2")
fh, w2acc = t + 28, u + 4
for ks in range(9): A(f"ds_read_b128 {vr(fh+4*ks,4)}, v{aHR} offset:{ks*64}")
A("s_waitcnt vmcnt(0)")
recheck(resload1, range(gX1, gX1+4), u+1)
A(mfma(vr(vR,4), vr(vSEL,4), vr(gX1,4), "0"))
FS("w2")
if OPT["h5pos"] == 0: hint_send(128)
side = [dpp("v_add_f32", vR+r, vR+r, p) for p in ROWRED for r in range(4)]
for ks in range(9):
    A(f"s_waitcnt lgkmcnt({8-ks})")
    A(mfma(vr(w2acc,4), ar(cW2+4*ks,4), vr(fh+4*ks,4), "0" if ks == 0 else vr(w2acc,4)))
    if ks >= 3:
        for _ in range(2): A(side.pop(0))
    if ks == 4 and OPT["h5pos"] == 1: hint_send(128)
FS("w2")
for x in side: A(x)
if OPT["h5pos"] == 3: hint_send(128)
else: A("s_nop 1")
for r in range(4): A(f"v_add_f32 v{w2acc+r}, v{w2acc+r}, v{vR+r}")
x_publish(w2acc, X2O)
FS("w2")
if OPT["h5pos"] == 2: hint_send(128)
stamp(10)
A(f"s_cmp_eq_u32 s{sPASS}, 0\ns_cbranch_scc1 L_q")
A(f"""s_or_b32 s{sT0}, s{sX}, s{sHALF}
s_cmp_lg_u32 s{sT0}, 0
s_cbranch_scc1 L_done
s_lshl_b32 s{sT0}, s{sCG9}, 7
s_lshl_b32 s{sT1}, s{sW}, 5
s_add_u32 s{sT0}, s{sT0}, s{sT1}
v_lshl_add_u32 v{aXS}, v{vG}, 3, s{sT0}
s_add_u32 s{sXO}, s{sCOPY}, {PS + X2O}""")
hint_wait(128)
poll(resload2, range(gRES, gRES+4), u, 1)
A(mfma(vr(vR,4), vr(vSEL,4), vr(gRES,4), "0") + "\ns_nop 7")
rowred("v_add_f32", [vR, vR+1, vR+2, vR+3])
for r in range(4): A(f"v_mul_f32 v{vR+r}, 0x41800000, v{vR+r}")
A(f"v_cvt_pk_bf16_f32 v{vR}, v{vR}, v{vR+1}\nv_cvt_pk_bf16_f32 v{vR+1}, v{vR+2}, v{vR+3}")
if OPT["echo"] >= 0:
    stamp(11)
    A(f"s_nop 1\nv_readlane_b32 s3, v9, {OPT['echo']}\nv_readlane_b32 s84, v9, 0\ns_nop 3\ns_sub_u32 s3, s3, s84\ns_min_u32 s3, s3, 20000\ns_add_u32 s3, s3, s{sST}")
    A(f"L_echo:\ns_memrealtime s[84:85]\ns_waitcnt lgkmcnt(0)\ns_sub_u32 s84, s84, s3\ns_cmp_lt_i32 s84, 0\ns_cbranch_scc1 L_echo")
A(f"s_mov_b32 exec_lo, 0x00010001\ns_mov_b32 exec_hi, 0x00010001\nbuffer_store_dwordx2 {vr(vR,2)}, v{aXS}, {sr(rOUT,4)}, 0 offen\ns_mov_b64 exec, -1\ns_branch L_done")

if OPT["wb"] & 1:
    with Tail(): A(f"L_fexit:\ns_cmp_lg_u32 s{sW}, 0\ns_cbranch_scc1 L_done\ns_cmp_lg_u32 s{sJ}, 31\ns_cbranch_scc1 L_done\nbuffer_wbl2 sc1\ns_waitcnt vmcnt(0)\ns_branch L_done")
A(f"L_roleBF:\ns_cmp_lg_u32 s{sROLE}, 1\ns_cbranch_scc1 {'L_fexit' if OPT['wb'] & 1 else 'L_done'}\nL_w1_go:\ns_add_u32 s{sXO}, s{sPASS}, s{sCOPY}")
hint_wait(0)
stamp(7)
x_gather(aB1, aB2, "w1")
stamp(8)
stat_reads(); frag_reads()
for k, m in enumerate(stat_mfma): A(f"s_waitcnt lgkmcnt({7-k})\n{m}")
FS("w1")
weave(main_mfma(3, cWA, 4), stat_valu + [f"v_cndmask_b32 v{s1}, v{s1}, v{s2}, {sr(mODDL,2)}"], 2, 4)
FS("w1")
a, b, c = ACC, ACC + 4, ACC + 8
A(f"""s_nop 3
v_add_f32 v{a}, v{a}, v{a+1}
v_add_f32 v{a+2}, v{a+2}, v{a+3}
v_add_f32 v{b}, v{b}, v{b+1}
v_add_f32 v{b+2}, v{b+2}, v{b+3}
v_add_f32 v{c}, v{c}, v{c+1}
v_add_f32 v{c+2}, v{c+2}, v{c+3}
v_add_f32 v{a}, v{a}, v{a+2}
v_add_f32 v{b}, v{b}, v{b+2}
v_add_f32 v{c+1}, v{c}, v{c+2}
v_add_f32 v{c}, v{c}, v{c+2}
v_permlane32_swap_b32 v{a}, v{b}
v_add_f32 v{a}, v{a}, v{b}
v_permlane32_swap_b32 v{c}, v{c+1}
v_add_f32 v{c}, v{c}, v{c+1}
s_nop 1
v_permlane16_swap_b32 v{a}, v{c}
v_add_f32 v{a}, v{a}, v{c}
v_cndmask_b32 v{a}, v{a}, v{s1}, {sr(mROW3,2)}""")
FS("w1")
pub(f"buffer_store_dword v{a}, v{aBD}, {WS}, s{sI} offen", sr(mLN,2))
FS("w1"); stamp(9)
A(f"s_cmp_eq_u32 s{sPASS}, 0\ns_cbranch_scc1 L_bf_first")
if OPT["wb"] & 2: A(f"s_cmp_lg_u32 s{sW}, 0\ns_cbranch_scc1 L_done\ns_cmp_lg_u32 s{sJ}, 29\ns_cbranch_scc1 L_done\ns_waitcnt vmcnt(0)\nbuffer_wbl2 sc1\ns_waitcnt vmcnt(0)")

A("L_done:")
if PROF:
    stamp(11)
    A(f"s_cmp_lg_u32 s{sW}, 0\ns_cbranch_scc1 L_end\ns_lshl_b32 s{sT0}, s2, 7\ns_add_u32 s{sT0}, s{sT0}, {STAMP}")
    A(f"s_lshr_b32 s3, s{sCOPY}, 12\ns_or_b32 s3, s3, s{sMODE}\nv_writelane_b32 v9, s3, 31\ns_memtime s[100:101]\ns_waitcnt lgkmcnt(0)\ns_sub_u32 s3, s100, s88\nv_writelane_b32 v9, s3, 30\nv_lshlrev_b32 v2, 2, v{vL}\ns_mov_b32 exec_hi, 0")
    for k in range(fcount[0]): A(f"v_writelane_b32 v9, s{FREG[k]}, {1+k}")
    A(f"buffer_store_dword v9, v2, {WS}, s{sT0} offen")
A("L_end:\ns_endpgm")

POLo = H5o + 120
def probe():
    if OPT["copies"] != 2: return
    if OPT["pol"] >= 0: A(f"s_mov_b32 s{sT4}, {OPT['pol']}")
    else:
        A(f"""s_sub_u32 s{sT0}, s{sJ}, 30
s_lshl_b32 s{sT0}, s{sT0}, 14
s_lshl_b32 s{sT1}, s{sW}, 11
s_add_u32 s{sT0}, s{sT0}, s{sT1}
s_add_u32 s{sT4}, s{sT0}, {PROBE}
s_mov_b32 s84, -1
s_mov_b32 s85, -1""")
        for k in range(2*OPT["npair"]):
            c = (k ^ (k >> 1)) & 1
            A(f"s_add_u32 s{sT0}, s{sT4}, {(k >> 1)*128 + c*0x2000}\ns_memtime s[100:101]\ns_waitcnt lgkmcnt(0)\ns_buffer_load_dword s101, {WS}, s{sT0}\ns_waitcnt lgkmcnt(0)")
            A(f"s_memtime {sr(sT2,2)}\ns_waitcnt lgkmcnt(0)\ns_sub_u32 s{sT2}, s{sT2}, s100\ns_min_u32 s{84+c}, s{84+c}, s{sT2}")
        A(f"""s_lshl_b32 s{sT1}, s{sW}, 2
s_add_u32 s{sT1}, s{sT1}, {LMODE}
v_mov_b32 v{t}, s{sT1}
v_mov_b32 v{t+1}, s84
v_mov_b32 v{t+2}, s85
ds_write2_b32 v{t}, v{t+1}, v{t+2} offset0:0 offset1:4
v_mov_b32 v{t}, {LMODE}
s_waitcnt lgkmcnt(0)
s_barrier
ds_read_b128 {vr(t+28,4)}, v{t}
ds_read_b128 {vr(t+32,4)}, v{t} offset:16
s_waitcnt lgkmcnt(0)
v_min_u32 v{t}, v{t+28}, v{t+29}
v_min3_u32 v{t}, v{t}, v{t+30}, v{t+31}
v_min_u32 v{t+1}, v{t+32}, v{t+33}
v_min3_u32 v{t+1}, v{t+1}, v{t+34}, v{t+35}
v_cmp_gt_u32 vcc, v{t}, v{t+1}
s_lshr_b32 s{sT0}, s{sXCC}, 2
s_cmp_lg_u32 vcc_lo, 0
s_cselect_b32 s{sT4}, 1, 0
s_xor_b32 s{sT4}, s{sT4}, s{sT0}""")
    A(f"s_sub_u32 s{sT0}, s{sJ}, 30\ns_lshl_b32 s{sT0}, s{sT0}, 2\ns_add_u32 s{sT0}, s{sT0}, {POLo}\nv_mov_b32 v{t}, s{sT0}\nv_mov_b32 v{t+1}, s{sT4}")
    pub(f"buffer_store_dword v{t+1}, v{t}, {WS}, s{sIB} offen", sr(mW0,2))
def pick_copy(tries):
    if OPT["copies"] != 2: return
    top, done = uid("pk"), uid("pkd")
    A(f"""v_mov_b32 v{t}, {POLo}
s_mov_b32 s{sCNT}, 0
{top}:
buffer_load_dword v{t+1}, v{t}, {WS}, s{sIB} offen sc1
s_add_u32 s{sCNT}, s{sCNT}, 1
s_waitcnt vmcnt(0)
v_readfirstlane_b32 s{sT0}, v{t+1}
s_lshr_b32 s{sT1}, s{sXCC}, 2
s_xor_b32 s{sT1}, s{sT1}, s{sT0}
s_lshl_b32 s{sT1}, s{sT1}, 13
s_cmp_lt_u32 s{sT0}, 2
s_cselect_b32 s{sCOPY}, s{sT1}, s{sCOPY}
s_cbranch_scc1 {done}
s_cmp_lt_u32 s{sCNT}, {tries}
s_cbranch_scc1 {top}
{done}:""")
def late_fill():
    for r in range(4): A(f"v_mov_b32 v{t+12+r}, -1")
    A(f"""s_sub_u32 s{sT0}, s{sJ}, 30
s_mul_i32 s{sT1}, s{sT0}, {23*1024}
s_lshl_b32 s{sT2}, s{sW}, 10
s_add_u32 s{sT1}, s{sT1}, s{sT2}
v_lshl_add_u32 v{t+2}, v{vL}, 4, s{sT1}
s_lshl_b32 s{sT1}, s{sX}, 1
s_add_u32 s{sT1}, s{sT1}, s{sT0}
s_lshl_b32 s{sT4}, s{sT1}, 2
s_lshl_b32 s{sT1}, s{sT1}, 13
s_add_u32 s{sT1}, s{sT1}, s{sT2}
s_add_u32 s{sT1}, s{sT1}, {PS}
v_lshl_add_u32 v{t+3}, v{vL}, 4, s{sT1}
s_add_u32 s{sT0}, s{sIB}, {PS}""")
    for k in range(6):
        if k == 5: A(f"s_cmp_eq_u32 s{sW}, 3\ns_cbranch_scc1 L_lf5")
        A(f"buffer_store_dwordx4 {vr(t+12,4)}, v{t+2}, {WS}, s{sT0} offen sc1\ns_add_u32 s{sT0}, s{sT0}, 4096")
    A("L_lf5:")
    A(f"s_and_b32 s{sT0}, s{sW}, 1\ns_cselect_b64 exec, 0xff, -1\ns_movk_i32 s{sT0}, 4096")
    A(f"buffer_store_dwordx4 {vr(t+12,4)}, v{t+3}, {WS}, 0 offen sc1\nbuffer_store_dwordx4 {vr(t+12,4)}, v{t+3}, {WS}, s{sT0} offen sc1\ns_mov_b64 exec, -1")
    A(f"""s_add_u32 s{sT4}, s{sT4}, {RDY2}
v_lshl_add_u32 v{t+3}, v{vL}, 13, s{sT4}
v_mov_b32 v{t+4}, s{sE1}
s_sub_u32 s{sT0}, s{sJ}, 30
s_mul_i32 s{sT1}, s{sT0}, {23*1024}
s_mul_i32 s{sT2}, s{sW}, {46*128}
s_add_u32 s{sT1}, s{sT1}, s{sT2}
v_lshl_add_u32 v{t+2}, v{vL}, 7, s{sT1}
s_add_u32 s{sT0}, s{sIB}, {PS}
s_waitcnt vmcnt(0)
s_barrier
s_cmp_eq_u32 s{sW}, 0
s_cselect_b64 exec, 3, 0
buffer_store_dword v{t+4}, v{t+3}, {WS}, 0 offen sc1
s_mov_b32 exec_lo, -1
s_mov_b32 exec_hi, {0x3fff if OPT['touch'] else 0:#x}
buffer_load_dword v8, v{t+2}, {WS}, s{sT0} offen sc1
s_mov_b64 exec, -1""")
def colsum_rows():
    poll(f"buffer_load_dwordx4 {vr(t+28,4)}, v{aQ1}, {WS}, s{sIB} offen sc1", range(t+28, t+32), u, 1)
    A(f"""v_add_f32 v{u}, v{t+28}, v{t+29}
v_add_f32 v{u+1}, v{t+30}, v{t+31}
v_add_f32 v{u}, v{u}, v{u+1}
v_cvt_pk_bf16_f32 v{u+1}, v{u}, v{u}
v_lshlrev_b32 v{u+2}, 16, v{u+1}
v_sub_f32 v{u}, v{u}, v{u+2}
v_cvt_pk_bf16_f32 v{u}, v{u}, v{u}
ds_write_b16 v{aQW}, v{u+1} offset:1600
ds_write_b16 v{aQW}, v{u} offset:2400""")
with Tail():
    A("L_first:")
    if NB1 < 15 or OPT["beh"]:
        A(f"s_cmp_lg_u32 s{sROLE}, 1\ns_cbranch_scc1 L_first1")
        if NB1 < 15: w1_dma(NB1, 15, t, "L_w1_rest")
        A("L_w1_rest:")
        traddr_std(t+8, LR); traddr_tail(t+10, LR)
        A("s_waitcnt vmcnt(0)\ns_barrier")
        w1_regs()
        A("s_branch L_first2\nL_first1:")
    A(f"s_cmp_eq_u32 s{sROLE}, 2\ns_cbranch_scc1 L_firstF\nL_first2:")
    slow = uid("slow")
    st = f"buffer_store_dword v{vS1}, v{vS1+1}, {WS}, s{sI} offen"
    A(f"s_mov_b32 exec_hi, 0xffff\ns_cmp_eq_u32 s{sMODE}, 0\ns_cbranch_scc1 {slow}\n{st}\ns_branch L_first3\n{slow}:\n{st} sc1\nL_first3:\ns_mov_b64 exec, -1")
    pick_copy(2)
    A("s_branch L_w1_go")
    A(f"""L_w2_first:
s_mul_i32 s{sT0}, s{sX}, 1152
s_mul_i32 s{sT1}, s{sHALF}, 576
s_add_u32 s{sT0}, s{sT0}, s{sT1}
s_mul_i32 s{sT1}, s{sW}, 144
s_add_u32 s{sT0}, s{sT0}, s{sT1}
v_lshl_add_u32 v{t}, v{vL}, 1, s{sT0}
buffer_load_ushort v{vB}, v{t}, {sr(rB1,4)}, 0 offen
v_and_b32 v{t}, 7, v{vL}
v_lshl_add_u32 v{t}, v{t}, 1, s{sT0}
buffer_load_ushort v{vB+1}, v{t}, {sr(rB1,4)}, 0 offen offset:128""")
    if NW2 < 9: w2_dma(NW2, 9, t)
    A(f"v_add_u32 v{t+2}, {S1o - HPo}, v{aH1}\nv_sub_u32 v{t+3}, v{t+2}, v{aH1}\nv_add_u32 v{t+3}, v{t+3}, v{aH2}\nv_cmp_gt_u32 vcc, 8, v{vN}\ns_nop 1\nv_cndmask_b32 v{t+3}, v{t+2}, v{t+3}, vcc")
    traddr_std(t, LW2)
    poll(f"buffer_load_dwordx4 {vr(t+28,4)}, v{t+2}, {WS}, s{sI} offen sc1\nbuffer_load_dwordx4 {vr(t+32,4)}, v{t+3}, {WS}, s{sI} offen sc1", range(t+28, t+36), u, 1)
    A("s_barrier")
    for ks in range(9):
        for h in range(2): A(f"ds_read_b64_tr_b16 {ar(cW2+4*ks+2*h,2)}, v{t} offset:{ks*4096+h*512}")
    for k in range(2):
        b_ = t + 28 + 4*k
        A(f"v_add_f32 v{b_}, v{b_}, v{b_+1}\nv_add_f32 v{b_+2}, v{b_+2}, v{b_+3}\nv_add_f32 v{vS1+k}, v{b_}, v{b_+2}")
    A(f"v_lshlrev_b32 v{vB}, 16, v{vB}\nv_lshlrev_b32 v{vB+1}, 16, v{vB+1}")
    colsum_rows()
    pick_copy(1)
    A("s_branch L_w2_go")
    A("L_firstF:")
    probe()
    late_fill()
    A(f"v_mov_b32 v{t}, {EPO}\nv_mov_b32 v{t+1}, s{sE1}\ns_lshl_b32 s{sT0}, s2, 2\ns_add_u32 s{sT0}, s{sT0}, s{sW}\ns_cmp_eq_u32 s{sT0}, 1020\ns_cselect_b64 exec, 1, 0")
    A(f"buffer_store_dword v{t+1}, v{t}, {WS}, 0 offen sc1\ns_mov_b64 exec, -1")
    A(f"L_bf_first:\nv_mov_b32 v{aRES}, 0")
    colsum_rows()
    pick_copy(1)
    A("s_branch L_q")

body = L + TAIL
DEFS = []
if OPT["shift"]: body = ["s_nop 0"] * OPT["shift"] + body
if OPT["al"]:
    sys.path.insert(0, "gen")
    import align
    body, DEFS, miss = align.align(body, "\n".join(out), "")
    print(f"align: {miss} wide instructions left off an 8-byte boundary", file=sys.stderr)
txt = "\n".join(body)
out.append(txt)
out.append(f""".p2align 8
.fill 1024, 4, 0xbf800000
s_endpgm
{chr(10).join(DEFS)}
.section .rodata,"a"
.p2align 6
.amdhsa_kernel {NAME}_kernel
  .amdhsa_next_free_vgpr {NVGPR}
  .amdhsa_next_free_sgpr 102
  .amdhsa_accum_offset 256
  .amdhsa_group_segment_fixed_size 0
  .amdhsa_kernarg_size 96
  .amdhsa_user_sgpr_count 2
  .amdhsa_user_sgpr_kernarg_segment_ptr 1
  .amdhsa_system_sgpr_workgroup_id_x 1
  .amdhsa_float_denorm_mode_32 3
.end_amdhsa_kernel""")
print("\n".join(out))
```

```python
import sys, math
OPT = dict(prof=0, fine="", nk1=6, nq=2, nv1=12, nw2=0, npair=3, nb1=6, nkb=0, q0t=0, nk0=3, tl=0, kal=0, pf0=1, walk=1, h1w=1, finb=1, one=1, bko=0, pal=6, po="333333", qperm=1, outw=1, fast=1, copies=2, pol=-1, rot=2, ra=2, rb=0, ldf="nt", pf=1,
           tmo=1 << 17, h3pos=4, h5pos=4, touch=1, depth=2, echo=-1, hd="244", xnoclr=0, xnoq0=0, al=0, beh=0, pfj=31, shift=0, pfl=144)
for a in sys.argv[1:]:
    k, v = a.split("=")
    assert k in OPT, k
    OPT[k] = v if k in ("ldf", "fine", "po", "hd") else int(v, 0)
NAME = "interleave_layers__sliding_block_cached__dense_activation_mish__decode"
LDF = "" if OPT["ldf"] == "plain" else OPT["ldf"].replace("+", " ")
PROF = OPT["prof"]

L = []; TAIL = []
def A(s):
    for ln in s.split("\n"):
        ln = ln.strip()
        if ln: L.append(ln)
intail = [0]; npoll = [0]
class Tail:
    def __enter__(self):
        global L
        self.save = L; L = []; intail[0] += 1
    def __exit__(self, *e):
        global L
        TAIL.extend(L); L = self.save; intail[0] -= 1
_uid = [0]
def uid(p):
    _uid[0] += 1
    return f"L_{p}{_uid[0]}"
def vr(a, n=1): return f"v{a}" if n == 1 else f"v[{a}:{a+n-1}]"
def ar(a, n=1): return f"a{a}" if n == 1 else f"a[{a}:{a+n-1}]"
def sr(a, n=1): return f"s{a}" if n == 1 else f"s[{a}:{a+n-1}]"
DPPM = "row_mask:0xf bank_mask:0xf"
ROWRED = ["quad_perm:[1,0,3,2]", "quad_perm:[2,3,0,1]", "row_half_mirror", "row_mirror"]
def dpp(op, d, s, p): return f"{op}_dpp v{d}, v{s}, v{s} {p} {DPPM}"
def mfma(d, a, b, c): return f"v_mfma_f32_16x16x32_bf16 {d}, {a}, {b}, {c}"

PS = 0x100000
X1O, X2O = 0x00000, 0x10000
IB0 = 0x20000
QPo, HPo, S1o, QSo, HSo, H3o, H5o, OPo, MLo = 0x0000, 0x2000, 0x4400, 0x6800, 0x6880, 0x6900, 0x6980, 0x7000, 0xB000
REST = 0x7000 // 32
Q0B, Q0S = 0xA0000, 0x9000
EPO, RDY, RDY2, PROBE = 0x0F0000, 0x1B1000, 0x1B4000, 0x1C0000
STAMP = 0x200000
WSREC = 0x210000 if PROF else 0x200000
LV, LR, LWQ = 0, 65536, 135168
LW2, LOPS = LR + 32768, LWQ
LQ, LP, LM, LH, LMODE, LXS = 153600, 156800, 158080, 158144, 158784, 158848
LXP = LXS + 4608
LDS_BYTES = 163840
sX, sJ, sW, sPASS, sROLE, sMODE, sCOPY, sIB = 4, 5, 6, 7, 8, 9, 10, 11
rK, rV, rWQ, rWA, rW2, rWS, rXI, rB1, rOUT = 12, 16, 20, 24, 28, 32, 36, 40, 44
mATT, mLN = 48, 50
sT0, sT1, sT2, sT3, sT4, sCNT, sI, sXO = 52, 53, 54, 55, 56, 57, 58, 59
mODDR, sRG, sCG, sST = 60, 62, 63, 64
sE1, sQ0, mW0, mODDL, mROW3 = 68, 69, 70, 72, 90
sHALF, sCG9, sROT, sXCC = 96, 97, 98, 99
sHOOK = sROT
WS = sr(rWS, 4)
vL, vN, vG, vONE, vONE3 = 1, 2, 3, 4, 6
vKO, vJUNK, vCS, vC, vMU, vQ0 = 10, 59, 12, 14, 15, 60
vSEL, vR, vB, vS1 = 16, 20, 24, 26
(aX1, aX2, aXW, aXR, aXT, aS1, aS3, aQD, aQS,
 aQ1, aQ2, aQW, aQR, aPW, aMW, aPR, aMR, aOP, aHL,
 aRES, aO1, aML, aOW, aOR, aXS, aHS, aH1, aH2, aHW, aHW2, aHR) = range(28, 59)
aLW, aLR = 63, 13
aB1, aB2, aBD = aO1, aML, aOW
t = 64
vK = 128
gX, gQ, gQS, gRES, gO, gML, gH, gHI, gX1 = 192, 200, 204, 208, 212, 220, 224, 232, 236
u = 240
cV, cWQ, cWA, cW2, cJUNK = 0, 64, 84, 116, 152
NVGPR = 256 + 160

def stamp(i):
    if PROF == 2 and i != 11: return
    if PROF == 3 and i not in (6, 10, 11): return
    if PROF: A(f"s_memrealtime {sr(sST, 2)}\ns_lshr_b32 s3, s{sPASS}, 16\ns_add_u32 m0, s3, {i}\ns_waitcnt lgkmcnt(0)\nv_writelane_b32 v9, s{sST}, m0")
FREG = [74, 76, 78, 80, 82, 94, 84, 66, 70] if OPT['fine'] == 'pro' else [74, 76, 78, 80, 82, 92, 94, 84, 66]
fcount = [0]
def FS(stage):
    if OPT["fine"] == stage:
        A(f"s_memtime s[{FREG[fcount[0]]}:{FREG[fcount[0]]+1}]"); fcount[0] += 1

def srd(r, lo, hi, nbytes):
    if r != lo: A(f"s_mov_b32 s{r}, s{lo}")
    A(f"s_and_b32 s{r+1}, s{hi}, 0xffff\ns_mov_b32 s{r+2}, {nbytes}\ns_mov_b32 s{r+3}, 0x20000")
def mask64(reg, lo, hi): A(f"s_mov_b32 s{reg}, {lo:#x}\ns_mov_b32 s{reg+1}, {hi:#x}")
def sentinel_test(regs, tmp):
    regs = list(regs)
    if len(regs) == 1:
        A(f"v_cmp_eq_u32 vcc, -1, v{regs[0]}"); return
    if len(regs) % 2 == 0: A(f"v_max_u32 v{tmp}, v{regs[0]}, v{regs[1]}"); k = 2
    else: A(f"v_max3_u32 v{tmp}, v{regs[0]}, v{regs[1]}, v{regs[2]}"); k = 3
    while k < len(regs):
        A(f"v_max3_u32 v{tmp}, v{tmp}, v{regs[k]}, v{regs[k+1]}"); k += 2
    A(f"v_cmp_eq_u32 vcc, -1, v{tmp}")
def filler(n):
    for _ in range(n):
        A("s_nop 7")
def poll(loads, regs, tmp, depth=None, early="", test=None, hook=None):
    depth = depth or OPT["depth"]
    n = sum(1 for ln in loads.split("\n") if ln.strip().startswith("buffer_"))
    top = uid("poll")
    A(f"s_mov_b32 s{sCNT}, 0")
    for _ in range(depth - 1):
        A(loads); filler({2: 3, 3: 2}[depth])
    if OPT["pal"] and not intail[0] and depth > 1:
        k = npoll[0]; npoll[0] += 1
        A(f".p2align {OPT['pal']}")
        po = [int(c, 36) for c in OPT["po"]]
        for _ in range(po[k] if k < len(po) else 0): A("s_nop 0")
    A(f"{top}:")
    A(loads)
    A(f"s_add_u32 s{sCNT}, s{sCNT}, 1\ns_cmp_gt_u32 s{sCNT}, {OPT['tmo']}\ns_cbranch_scc1 L_end")
    if hook:
        hk, after = uid("hk"), uid("ha")
        A(f"s_cmp_lg_u32 s{sHOOK}, 0\ns_cbranch_scc1 {hk}")
        with Tail():
            A(f"{hk}:\ns_mov_b32 s{sHOOK}, 0"); hook(); A(f"s_waitcnt vmcnt(1)\ns_branch {after}")
    A(f"s_waitcnt vmcnt({(depth - 1)*n})")
    if hook: A(f"{after}:")
    assert depth == 1 or not early
    A(early)
    if test: A(test)
    else: sentinel_test(regs, tmp)
    if OPT["bko"] and depth == 1 and not intail[0]:
        bk = uid("bk")
        A(f"s_cbranch_vccnz {bk}")
        with Tail(): A(f"{bk}:\ns_sleep {OPT['bko']}\ns_branch {top}")
    else: A(f"s_cbranch_vccnz {top}")
def recheck(load, regs, tmp):
    retry, top, back = uid("rc"), uid("rct"), uid("rcb")
    sentinel_test(regs, tmp)
    A(f"s_cbranch_vccnz {retry}\n{back}:")
    with Tail():
        A(f"{retry}:\ns_mov_b32 s{sCNT}, 0\n{top}:\n{load}\ns_waitcnt vmcnt(0)")
        sentinel_test(regs, tmp)
        A(f"s_cbranch_vccz {back}\ns_add_u32 s{sCNT}, s{sCNT}, 1\ns_cmp_lt_u32 s{sCNT}, {OPT['tmo']}\ns_cbranch_scc1 {top}\ns_branch L_end")
def pub(store, mask):
    slow, back = uid("slow"), uid("back")
    A(f"s_cmp_eq_u32 s{sMODE}, 0\ns_mov_b64 exec, {mask}\ns_cbranch_scc1 {slow}\n{store}\n{back}:\ns_mov_b64 exec, -1")
    with Tail(): A(f"{slow}:\n{store} sc1\ns_branch {back}")
def dma(rsrc, voff, soff, lds_s):
    A(f"s_mov_b32 m0, s{lds_s}\ns_nop 0\nbuffer_load_dwordx4 v{voff}, {sr(rsrc,4)}, s{soff} offen {LDF} lds")
def rowred_list(op, regs, steps=ROWRED):
    o = []
    for k, p in enumerate(steps):
        o += [dpp(op, r, r, p) for r in regs]
        if len(regs) < 3 and k < len(steps) - 1: o += ["s_nop 0"] * (3 - len(regs) - 0 if len(regs) == 1 else 1)
    return [x for x in o]
def rowred(op, regs):
    for p in ROWRED:
        for r in regs: A(dpp(op, r, r, p))
        if len(regs) < 3 and p != ROWRED[-1]: A(f"s_nop {2 - len(regs)}")
def weave(main, side, per, start=0):
    side = list(side)
    for k, m in enumerate(main):
        A(m)
        if k >= start:
            for _ in range(per):
                if side: A(side.pop(0))
    for s_ in side: A(s_)

hdr = open("cdna_kernels/" + NAME + ".s.ref").read().split("; Override launch")[0]
out = [hdr.rstrip(), "; Override launch geometry by editing the next line (default: block=256,",
       "; grid=ceil(out_elems/256), lds=0). Harness parses it; keep it on one line.",
       f"; @launch grid=(256,1,1) block=(256,1,1) lds={LDS_BYTES}",
       '.amdgcn_target "amdgcn-amd-amdhsa--gfx950"', ".text", f".globl {NAME}_kernel"] + ([".p2align 12", f".fill {OPT['kal']*64 + 1}, 4, 0xbf810000"] if OPT["kal"] >= 0 else []) + [".p2align 8",
       f".type {NAME}_kernel,@function", f"{NAME}_kernel:"]

def wdma_voff(dst, rowbytes, kind):
    if kind == "std": A(f"v_bfe_u32 v{dst}, v{vL}, 4, 1\ns_and_b32 s{sT0}, s{sW}, 1\ns_lshl_b32 s{sT0}, s{sT0}, 1")
    else: A(f"v_lshrrev_b32 v{dst}, 5, v{vL}\ns_and_b32 s{sT0}, s{sW}, 2")
    A(f"""v_or_b32 v{dst}, s{sT0}, v{dst}
v_lshlrev_b32 v{dst}, 1, v{dst}
v_xor_b32 v{dst}, v{dst}, v{vL}
v_and_b32 v{dst}, 7, v{dst}
v_lshlrev_b32 v{dst}, 4, v{dst}
v_lshrrev_b32 v{dst+1}, 3, v{vL}
s_mov_b32 s{sT0}, {rowbytes}
v_mad_u32_u24 v{dst}, v{dst+1}, s{sT0}, v{dst}""")
def traddr_std(dst, base):
    A(f"""v_bfe_u32 v{dst}, v{vL}, 3, 2
v_xor_b32 v{dst}, s{sW}, v{dst}
v_lshlrev_b32 v{dst}, 5, v{dst}
v_and_b32 v{dst+1}, 3, v{vL}
v_lshl_add_u32 v{dst}, v{dst+1}, 3, v{dst}
v_bfe_u32 v{dst+1}, v{vL}, 2, 2
v_lshl_add_u32 v{dst}, v{dst+1}, 7, v{dst}
v_lshl_add_u32 v{dst}, v{vG}, 10, v{dst}
v_add_u32 v{dst}, {base}, v{dst}""")
def traddr_tail(dst, base):
    A(f"""v_bfe_u32 v{dst}, v{vL}, 3, 1
v_and_b32 v{dst+1}, 2, v{vG}
v_or_b32 v{dst}, v{dst}, v{dst+1}
v_xor_b32 v{dst}, s{sW}, v{dst}
v_lshlrev_b32 v{dst}, 5, v{dst}
v_and_b32 v{dst+1}, 3, v{vL}
v_lshl_add_u32 v{dst}, v{dst+1}, 3, v{dst}
v_lshrrev_b32 v{dst+1}, 2, v{vL}
v_lshl_add_u32 v{dst}, v{dst+1}, 7, v{dst}
v_add_u32 v{dst}, {base + 16384}, v{dst}""")
def tr_slice(dst, a_std, a_tail, off):
    for ks in range(4):
        for h in range(2): A(f"ds_read_b64_tr_b16 {ar(dst+4*ks+2*h,2)}, v{a_std} offset:{off+ks*4096+h*512}")
    A(f"ds_read_b64_tr_b16 {ar(dst+16,2)}, v{a_tail} offset:{off}")
def x_addr(dst, idx, rg_s, tmp):
    A(f"""v_mul_u32_u24 v{dst}, 3641, v{idx}
v_lshrrev_b32 v{dst}, 16, v{dst}
v_mul_u32_u24 v{tmp}, 18, v{dst}
v_sub_u32 v{tmp}, v{idx}, v{tmp}
v_lshlrev_b32 v{tmp}, 4, v{tmp}
v_and_b32 v{tmp+1}, 3, v{dst}
v_lshl_add_u32 v{tmp}, v{tmp+1}, 11, v{tmp}
v_lshrrev_b32 v{dst}, 2, v{dst}
v_lshl_add_u32 v{dst}, v{dst}, 14, v{tmp}
s_mul_i32 s{sT0}, s{rg_s}, 288
v_add_u32 v{dst}, s{sT0}, v{dst}""")

NK1, NKB, NQ, NV1, NW2, NB1 = OPT["nk1"], OPT["nkb"], OPT["nq"], OPT["nv1"], OPT["nw2"], OPT["nb1"]
sKM, sVM = 66, 67
if PROF: sKM, sVM = 86, 87
def srd2(r, nbytes): A(f"s_mov_b32 s{r+2}, {nbytes}\ns_mov_b32 s{r+3}, 0x20000")
def blk_m0(base, i, mask):
    return f"s_xor_b32 m0, s{base}, {i << 12}\ns_nop 0"
    hi = (i << 12) & ~mask
    return f"s_add_u32 s{sT4}, s{sROT}, {(i << 12) & mask}\ns_and_b32 s{sT4}, s{sT4}, {mask}\n" + (f"s_or_b32 s{sT4}, s{sT4}, {hi}\n" if hi else "") + f"s_add_u32 m0, s{sT4}, s{base}\ns_nop 0"
def kdma(i): A(blk_m0(sKM, i, 0xf000) + f"\nbuffer_load_dwordx4 v{vKO}, {sr(rK,4)}, m0 offen {LDF} lds")

A("s_cmp_ge_u32 s2, 256\ns_cbranch_scc1 L_end")
if PROF: A(f"s_memrealtime {sr(sST,2)}\ns_memtime s[88:89]\nv_mov_b32 v9, 0")
FS("pro")
def PF():
    A(f"s_cmp_lt_u32 s2, 248\ns_cbranch_scc1 L_nopf\ns_getpc_b64 s[100:101]\nL_pc:\nv_min_u32 v8, {OPT['pfl'] - 1}, v0\nv_lshlrev_b32 v8, 7, v8\nglobal_load_dword v8, v8, s[100:101]\nL_nopf:")
NK0 = OPT["nk0"]
if OPT["pf"] and OPT["pf0"]: PF()
A(f"""s_load_dwordx4 s[{rK}:{rK+3}], s[0:1], 8
s_load_dwordx2 s[{rWQ}:{rWQ+1}], s[0:1], 24
s_load_dwordx2 s[{rXI}:{rXI+1}], s[0:1], 0
s_load_dwordx2 s[{rWS}:{rWS+1}], s[0:1], 88
v_lshrrev_b32 v{vG}, 4, v0
v_readfirstlane_b32 s{sW}, v0
v_and_b32 v{vN}, 15, v0
v_and_b32 v{vKO}, 15, v{vG}
s_and_b32 s{sX}, s2, 7
v_xor_b32 v{vKO}, v{vKO}, v{vN}
s_lshr_b32 s{sJ}, s2, 3
v_lshlrev_b32 v{vKO}, 4, v{vKO}
s_lshl_b32 s{sVM}, s{sW}, 4
v_and_b32 v{t+1}, 3, v{vG}
s_lshl_b32 s{sT3}, s{sX}, 24
v_lshl_or_b32 v{vKO}, v{t+1}, 8, v{vKO}
s_lshr_b32 s{sT0}, s{sJ}, 4
s_mul_i32 s{sT0}, s{sT0}, {(1 << 23) - (16 << 16)}
s_lshl_b32 s{sT1}, s{sJ}, 16
s_add_u32 s{sT0}, s{sT0}, s{sT3}
s_add_u32 s{sT0}, s{sT0}, s{sT1}
s_add_u32 s{sCNT}, s{sT0}, {28672*256 - LR}
s_lshl_b32 s{sROT}, s{sX}, 13
s_add_u32 s{sKM}, s{sVM}, s{sROT}
s_add_u32 s{sKM}, s{sKM}, {LR}
s_waitcnt lgkmcnt(0)
s_add_u32 s{rV}, s14, s{sCNT}
s_addc_u32 s{rV+1}, s15, 0
s_add_u32 s{rK}, s12, s{sCNT}
s_addc_u32 s{rK+1}, s13, 0""")
if OPT["tl"]:
    A(f"""s_load_dword s3, s[{rXI}:{rXI+1}], 0
s_lshl_b32 s{sT0}, s{sVM}, 11
s_min_u32 s{sT0}, s{sT0}, {4 << 20}
s_load_dword s3, s[{rWQ}:{rWQ+1}], s{sT0}
s_load_dword s{sE1}, s[{rWS}:{rWS+1}], {EPO}
s_load_dword s3, s[{rV}:{rV+1}], {LR}""")
srd2(rK, LR + 65536)
FS("pro")
for i in range(NK0): kdma(i)
FS("pro")
if OPT["pf"] and not OPT["pf0"]: PF()
if OPT["qperm"]:
    A(f"""s_mul_i32 s{sRG}, s{sJ}, 37
s_lshr_b32 s{sRG}, s{sRG}, 8
s_mul_i32 s{sT0}, s{sRG}, 7
s_sub_u32 s{sCG}, s{sJ}, s{sT0}
s_cmp_ge_u32 s{sCG}, 3
s_addc_u32 s{sT0}, s{sCG}, 0
s_cmp_ge_u32 s{sJ}, 28
s_cselect_b32 s{sRG}, s{sCG}, s{sRG}
s_cselect_b32 s{sCG}, 3, s{sT0}""")
else: A(f"s_and_b32 s{sCG}, s{sJ}, 7\ns_lshr_b32 s{sRG}, s{sJ}, 3")
A(f"""v_lshrrev_b32 v{t+1}, 3, v0
v_and_b32 v{t}, 2, v{t+1}
v_and_or_b32 v{t}, v{vG}, 4, v{t}
v_xor_b32 v{t}, v{t}, v0
v_and_b32 v{t}, 7, v{t}
v_lshlrev_b32 v{t}, 4, v{t}
v_and_b32 v{t+1}, 7, v{t+1}
v_lshl_or_b32 v{t}, v{t+1}, 13, v{t}
s_lshr_b32 s{sW}, s{sW}, 6
s_mul_i32 s{sT1}, s{sRG}, {144*8192}
s_lshl_b32 s{sT2}, s{sW}, 16
s_add_u32 s{sT1}, s{sT1}, s{sT2}
s_lshl_b32 s{sT2}, s{sX}, 10
s_add_u32 s{sT1}, s{sT1}, s{sT2}
s_lshl_b32 s{sT2}, s{sCG}, 7
s_add_u32 s{sT1}, s{sT1}, s{sT2}
s_add_u32 s{sT2}, s{sVM}, {LWQ}
v_and_b32 v{vG}, 3, v{vG}
v_and_b32 v{vL}, 63, v0""")
srd2(rWQ, 576*4096*2)
A(f"""s_cmp_lg_u32 s{sW}, 2
s_cbranch_scc1 L_nox0
s_mov_b32 s{rXI+2}, 1152
s_mov_b32 s{rXI+3}, 0x20000
s_mul_i32 s{sT0}, s{sRG}, 18
v_add_u32 v{t+2}, s{sT0}, v{vL}
v_add_u32 v{t+3}, 64, v{t+2}
v_subrev_u32 v{t+4}, 72, v{t+2}
v_min_u32 v{t+2}, v{t+2}, v{t+4}
v_subrev_u32 v{t+4}, 72, v{t+3}
v_min_u32 v{t+3}, v{t+3}, v{t+4}
v_cmp_gt_u32 vcc, 8, v{vL}
v_mov_b32 v{t+5}, 0x10000
v_lshlrev_b32 v{t+2}, 4, v{t+2}
v_lshlrev_b32 v{t+3}, 4, v{t+3}
v_cndmask_b32 v{t+3}, v{t+5}, v{t+3}, vcc
buffer_load_dwordx4 {vr(gX,4)}, v{t+2}, {sr(rXI,4)}, 0 offen
buffer_load_dwordx4 {vr(gX+4,4)}, v{t+3}, {sr(rXI,4)}, 0 offen
L_nox0:
s_cmp_ge_u32 s{sW}, 2
s_cbranch_scc1 L_wq4
s_add_u32 s{sT3}, s{sT1}, {128*8192}
s_add_u32 m0, s{sT2}, {16*1024}
s_nop 0
buffer_load_dwordx4 v{t}, {sr(rWQ,4)}, s{sT3} offen {LDF} lds
L_wq4:""")
for i in range(4):
    A(f"s_add_u32 m0, s{sT2}, {i*4096}\n" + (f"s_add_u32 s{sT1}, s{sT1}, {32*8192}" if i else "s_nop 0") + f"\nbuffer_load_dwordx4 v{t}, {sr(rWQ,4)}, s{sT1} offen {LDF} lds")
FS("pro")
for i in range(NK0, NK1): kdma(i)
FS("pro")
srd2(rXI, 1152); srd2(rWS, WSREC)
A(f"""s_add_u32 s{rV}, s{rV}, {LR}
s_addc_u32 s{rV+1}, s{rV+1}, 0
s_and_b32 s{sT0}, s{sROT}, 0x7000
s_add_u32 s{sVM}, s{sVM}, s{sT0}
s_load_dwordx2 s[{rWA}:{rWA+1}], s[0:1], 32
s_load_dwordx2 s[92:93], s[0:1], 48
s_load_dwordx2 s[{rB1}:{rB1+1}], s[0:1], 56
s_load_dwordx2 s[{rW2}:{rW2+1}], s[0:1], 64
s_load_dwordx2 s[{rOUT}:{rOUT+1}], s[0:1], 72""")
if not OPT["tl"]: A(f"s_mov_b32 s{sT1}, {EPO}\ns_buffer_load_dword s{sE1}, {WS}, s{sT1}")
A(f"""s_lshl_b32 s{sIB}, s{sX}, 16
s_add_u32 s{sIB}, s{sIB}, {IB0}
s_mul_i32 s{sQ0}, s{sX}, {Q0S}
s_add_u32 s{sQ0}, s{sQ0}, {Q0B}
s_mov_b32 s{sPASS}, 0""")
if PROF: A(f"v_writelane_b32 v9, s{sST}, 0")
traddr_std(t, LWQ); traddr_tail(t+2, LWQ)
FA = t + 8
A(f"""v_mov_b32 v{FA+16}, 0
v_mov_b32 v{FA+17}, 0
v_mov_b32 v{FA+18}, 0
v_mov_b32 v{FA+19}, 0
v_lshlrev_b32 v{aXW}, 4, v0
v_add_u32 v{aXW}, {LXS}, v{aXW}
ds_write_b128 v{aXW}, {vr(FA+16,4)} offset:512
v_mul_u32_u24 v{aXR}, 288, v{vN}
v_lshl_add_u32 v{aXT}, v{vG}, 3, v{aXR}
v_add_u32 v{aXT}, {LXS + 256}, v{aXT}
v_lshl_add_u32 v{aXR}, v{vG}, 4, v{aXR}
v_add_u32 v{aXR}, {LXS}, v{aXR}
v_mov_b32 v{aS1}, v{aXR}
v_mov_b32 v{aS3}, v{aXR}
s_lshl_b32 s{sT0}, s{sCG}, 10
s_lshl_b32 s{sT1}, s{sW}, 8
s_add_u32 s{sT0}, s{sT0}, s{sT1}
s_lshl_b32 s{sT1}, s{sRG}, 2
s_add_u32 s{sT0}, s{sT0}, s{sT1}
v_lshl_add_u32 v{aQD}, v{vN}, 4, s{sT0}
s_cmp_lg_u32 s{sW}, 2
s_cbranch_scc1 L_pwx""")
NCLR = 4
xf, z1, z2 = t + 40, u + 4, u + 5
A(f"""v_mov_b32 v{z1}, 0
v_mov_b32 v{z2}, 0
v_mov_b32 v{u+6}, 0x3f803f80
v_lshlrev_b32 v{t+4}, 4, v{vL}
v_add_u32 v{t+4}, {LXS}, v{t+4}
s_mov_b32 exec_lo, 0xfffc0000
s_mov_b32 exec_hi, 0
ds_write_b128 v{t+4}, {vr(FA+16,4)}
s_mov_b64 exec, -1
s_waitcnt vmcnt({4 + NK1 - NK0})""")
for k in range(8): A(f"v_dot2c_f32_bf16 v{z1}, v{gX+k}, v{u+6}\nv_dot2c_f32_bf16 v{z2}, v{gX+k}, v{gX+k}")
for k in range(4): A(f"v_lshlrev_b32 v{xf+2*k}, 16, v{gX+k}\nv_and_b32 v{xf+2*k+1}, 0xffff0000, v{gX+k}")
rowred("v_add_f32", [z1, z2])
for sw in ("16", "32"):
    A(f"v_mov_b32 v{u+6}, v{z1}\nv_mov_b32 v{u+7}, v{z2}\ns_nop 0\nv_permlane{sw}_swap_b32 v{z1}, v{u+6}\nv_permlane{sw}_swap_b32 v{z2}, v{u+7}\nv_add_f32 v{z1}, v{z1}, v{u+6}\nv_add_f32 v{z2}, v{z2}, v{u+7}")
A(f"v_mul_f32 v{u+6}, {1/576:.9e}, v{z1}")
for k in range(8): A(f"v_sub_f32 v{xf+k}, v{xf+k}, v{u+6}")
for k in range(4): A(f"v_cvt_pk_bf16_f32 v{xf+k}, v{xf+2*k}, v{xf+2*k+1}")
A(f"""v_fma_f32 v{z2}, -v{u+6}, v{z1}, v{z2}
v_mov_b32 v{u+7}, {LMODE}
v_mul_f32 v{z2}, 0x3d800000, v{z2}
s_mov_b64 exec, 0x3ffff
ds_write_b128 v{t+4}, {vr(xf,4)}
ds_write_b32 v{u+7}, v{z2}
s_mov_b64 exec, -1""")
for i in range(NK1, NK1 + NKB): kdma(i)
A(f"s_waitcnt vmcnt({NK1 - NK0 + NKB})\nL_bar1:")
FS("pro")
A(f"s_waitcnt lgkmcnt(0)\ns_barrier")
NEAR = []
with Tail():
    A(f"L_pwx:\ns_cmp_eq_u32 s{sW}, {7 if OPT['xnoclr'] else 3}\ns_cbranch_scc1 L_pw3")
    if OPT["q0t"]:
        A(f"s_lshl_b32 s{sT1}, s{sJ}, 9\ns_lshl_b32 s{sT2}, s{sW}, 8\ns_add_u32 s{sT1}, s{sT1}, s{sT2}\nv_lshl_add_u32 v{t+6}, v{vL}, 7, s{sT1}\ns_mov_b64 exec, 3\nbuffer_load_dword v8, v{t+6}, {WS}, s{sQ0} offen sc1\ns_mov_b64 exec, -1")
    for i in range(NK1, NK1 + NKB): kdma(i)
    if OPT["walk"]: A(f"s_cmp_eq_u32 s{sW}, 0\ns_cbranch_scc1 L_walk0_0\ns_branch L_walk1_0\nL_walked:")
    A(f"s_waitcnt vmcnt({NK1 - NK0 + NKB + (1 if OPT['q0t'] else 0)})\ns_branch L_bar1")
    q4 = vr(u, 4)
    A("L_pw3:")
    for r in range(4): A(f"v_mov_b32 v{u+r}, -1")
    A(f"""s_mul_i32 s{sT1}, s{sJ}, {REST}
v_lshl_add_u32 v{t+6}, v{vL}, 4, s{sT1}
s_lshl_b32 s{sT1}, s{sJ}, 9
s_add_u32 s{sT1}, s{sT1}, {OPo}
v_lshl_add_u32 v{t+7}, v{vL}, 4, s{sT1}
s_lshl_b32 s{sT1}, s{sJ}, 6
s_add_u32 s{sT1}, s{sT1}, {MLo - 512}
v_lshl_add_u32 v{t+8}, v{vL}, 4, s{sT1}
v_cmp_gt_u32 vcc, 32, v{vL}
s_lshl_b32 s{sT1}, s2, 9
v_lshl_add_u32 v{t+9}, v{vL}, 4, s{sT1}
v_cndmask_b32 v{t+7}, v{t+8}, v{t+7}, vcc
s_lshr_b32 s{sT1}, s2, 6
s_lshl_b32 s{sT1}, s{sT1}, 14
s_and_b32 s{sT2}, s2, 63
s_lshl_b32 s{sT2}, s{sT2}, 7
s_add_u32 s{sT1}, s{sT1}, s{sT2}
s_add_u32 s{sT1}, s{sT1}, {PROBE}
v_lshl_add_u32 v{t+8}, v{vL}, 4, s{sT1}
v_lshrrev_b32 v{t+10}, 3, v{vL}
v_mul_u32_u24 v{t+10}, {0x2000 - 128}, v{t+10}
v_add_u32 v{t+8}, v{t+8}, v{t+10}
s_mov_b32 exec_hi, 0xf
buffer_store_dwordx4 {q4}, v{t+7}, {WS}, s{sIB} offen sc1
s_mov_b32 exec_hi, {(1 << (REST//16 - 32)) - 1:#x}
buffer_store_dwordx4 {q4}, v{t+6}, {WS}, s{sIB} offen sc1
s_and_b32 s{sT1}, s2, 3
s_cmp_eq_u32 s{sT1}, 2
s_cselect_b32 s{sT2}, 0xff, -1
s_cmp_eq_u32 s{sT1}, 3
s_cselect_b32 exec_lo, 1, s{sT2}
s_mov_b32 exec_hi, 0
buffer_store_dwordx4 {q4}, v{t+9}, {WS}, 0 offen sc1
s_mov_b32 exec_lo, 0xffff
buffer_store_dwordx4 {q4}, v{t+8}, {WS}, 0 offen sc1
s_mov_b64 exec, -1""")
    for i in range(NK1, NK1 + NKB): kdma(i)
    A(f"s_waitcnt vmcnt({NK1 - NK0 + NKB + NCLR})\ns_branch L_bar1")
NEAR = TAIL[:]; del TAIL[:]
stamp(2); FS("pro")
tr_slice(cWQ, t, t+2, 0)
A(f"s_and_b32 s{sE1}, s{sE1}, -16\ns_add_u32 s{sE1}, s{sE1}, 16")
FRAG0 = len(L); A("FRAG0\ns_branch L_q_rest")
L.extend(NEAR)

HD = dict(zip(("q", "w1", "fin"), map(int, OPT["hd"])))
def hint_wait(imm, site):
    skip = uid("hs")
    if OPT["h1w"]: A(f"s_cmp_lg_u32 s{sW}, 3\ns_cbranch_scc1 {skip}")
    poll(f"buffer_load_dword v{gHI}, v{aHL}, {WS}, s{sI} offen offset:{imm} sc1", [gHI], None)
    if OPT["h1w"]: A(f"{skip}:\ns_barrier")
    filler(HD[site])
def w1_colsum():
    ACC = t + 40
    for r in range(4): A(f"v_mov_b32 v{t+28+r}, v{vONE}")
    A(f"v_mov_b32 v{t+32}, 0\nv_mov_b32 v{t+33}, 0\nv_mov_b32 v{t+34}, v{vONE}\nv_mov_b32 v{t+35}, v{vONE}\nv_cmp_eq_u32 vcc, 2, v{vG}\ns_waitcnt lgkmcnt(0)")
    for ks in range(5):
        for c in range(3):
            A(mfma(vr(ACC+4*c,4), vr(t+28 if ks < 4 else t+32,4), ar(cWA+18*c+(4*ks if ks < 4 else 14),4), "0" if ks == 0 else vr(ACC+4*c,4)))
    A(f"s_mov_b32 s{sT2}, -1\ns_mov_b32 s{sT3}, 0xffff\ns_nop 4\nv_cndmask_b32 v{ACC}, v{ACC}, v{ACC+4}, vcc\nv_cndmask_b32 v{vS1}, v{ACC}, v{ACC+8}, {sr(mODDR,2)}")
    pub(f"buffer_store_dword v{vS1}, v{vS1+1}, {WS}, s{sI} offen", sr(sT2,2))
def x_gather(a1, a2, stg, imm):
    other, join = uid("xo"), uid("xj")
    l1 = f"buffer_load_dwordx4 {vr(gX,4)}, v{a1}, {WS}, s{sXO} offen sc1"
    l2 = f"buffer_load_dwordx4 {vr(gX+4,4)}, v{a2}, {WS}, s{sXO} offen sc1"
    w1 = f"ds_write_b128 v{aXW}, {vr(gX,4)}"
    w2 = f"s_mov_b32 exec_hi, 0\nds_write_b128 v{aXW}, {vr(gX+4,4)} offset:4096\ns_mov_b32 exec_hi, -1"
    A(f"s_cmp_lg_u32 s{sW}, 0\ns_cbranch_scc1 {other}\ns_barrier")
    filler(HD[stg])
    hook = w1_colsum if stg == "w1" else None
    poll(l1 + "\n" + l2, range(gX, gX+8), u, 1, w1 + "\n" + w2, hook=hook)
    FS(stg)
    A(f"s_branch {join}\n{other}:")
    if stg == "q": A(f"v_mov_b32 v{u+12}, s{sE1}")
    hint_wait(imm, stg)
    stamp(12 if stg == "q" else 7)
    if stg == "q":
        A(f"s_cmp_eq_u32 s{sW}, 1\nL_xq1_top:\n{l1}\ns_cbranch_scc0 L_xq1_a\nbuffer_load_dword v{u+12}, v{u+14}, {WS}, s{sCOPY} offen sc1\nL_xq1_a:")
        A(f"s_add_u32 s{sCNT}, s{sCNT}, 1\ns_cmp_gt_u32 s{sCNT}, {OPT['tmo']}\ns_cbranch_scc1 L_end\ns_cmp_eq_u32 s{sW}, 1\ns_waitcnt vmcnt(0)\n{w1}")
        A(f"v_cmp_ne_u32 {sr(sT0,2)}, s{sE1}, v{u+12}\nv_max_u32 v{u}, v{gX}, v{gX+1}\nv_max3_u32 v{u}, v{u}, v{gX+2}, v{gX+3}\nv_cndmask_b32 v{u}, v{u}, -1, {sr(sT0,2)}")
        A(f"v_cmp_eq_u32 vcc, -1, v{u}\ns_cbranch_vccnz L_xq1_top")
    else: poll(l1, range(gX, gX+4), u, 1, w1, hook=hook)
    A(f"{join}:\ns_waitcnt lgkmcnt(0)\ns_barrier")
    FS(stg)
FSt, ACC, SAC = t + 28, t + 40, t + 52
def stat_reads(): A(f"ds_read_b64_tr_b16 {vr(FSt,2)}, v{aS1}\nds_read_b64_tr_b16 {vr(FSt+2,2)}, v{aS1} offset:128\nds_read_b64_tr_b16 {vr(FSt+4,2)}, v{aS3}")
def frag_reads():
    for ks in range(4): A(f"ds_read_b128 {vr(FA+4*ks,4)}, v{aXR} offset:{ks*64}")
    A(f"ds_read_b64 {vr(FA+18,2)}, v{aXT}")
stat_mfma = [f"v_mfma_f32_16x16x16_bf16 {vr(SAC+4*k,4)}, {vr(vONE if k < 2 else vONE3,2)}, {vr(FSt+2*k,2)}, 0" for k in range(3)]
s1, s2 = u + 2, u + 3
stat_valu = [f"v_add_f32 v{s1}, v{SAC}, v{SAC+4}", f"v_mul_f32 v{s2}, v{SAC}, v{SAC}", f"v_add_f32 v{s1}, v{s1}, v{SAC+8}",
             f"v_fmac_f32 v{s2}, v{SAC+4}, v{SAC+4}", f"v_fmac_f32 v{s2}, v{SAC+8}, v{SAC+8}", "s_nop 0"]
for k, p in enumerate(ROWRED): stat_valu += ["s_nop 0", dpp("v_add_f32", s1, s1, p), dpp("v_add_f32", s2, s2, p)]
def main_mfma(nt, w, first_wait):
    o = []
    for ks in range(5):
        for k in range(nt):
            c = "0" if ks == 0 else vr(ACC+4*k, 4)
            m = mfma(vr(ACC+4*k,4), vr(FA+4*ks,4), ar(w+18*k+(4*ks if ks < 4 else 14),4), c)
            o.append((f"s_waitcnt lgkmcnt({first_wait-ks})\n" if k == 0 else "") + m)
    return o

A("L_q:")
A(f"v_lshlrev_b32 v{u+14}, 2, v{vN}\nv_add_u32 v{u+14}, {RDY2}, v{u+14}")
A(f"s_add_u32 s{sXO}, s{sCOPY}, {X2O}\ns_mov_b32 s{sCNT}, 0")
x_gather(aX1, aX2, "q", 128)
frag_reads()
A(f"s_mov_b32 s{sPASS}, {PS}\ns_add_u32 s{sI}, s{sIB}, {PS}")
stamp(13)
A("L_q_rest:")
stat_reads()
for m in main_mfma(1, cWQ, 7): A(m)
FS("q")
a = ACC
A(f"""s_cmp_eq_u32 s{sPASS}, 0
s_nop 6
v_add_f32 v{a}, v{a}, v{a+1}
v_add_f32 v{a+2}, v{a+2}, v{a+3}
v_add_f32 v{a}, v{a}, v{a+2}
v_mov_b32 v{a+1}, v{a}
s_nop 1
v_permlane32_swap_b32 v{a}, v{a+1}
v_add_f32 v{a}, v{a}, v{a+1}
v_mov_b32 v{a+1}, v{a}
s_cbranch_scc1 L_q0_pub
s_nop 0
v_permlane16_swap_b32 v{a}, v{a+1}
v_add_f32 v{a}, v{a}, v{a+1}""")
FS("q")
pub(f"buffer_store_dword v{a}, v{aQD}, {WS}, s{sI} offen", "0xffff")
FS("q")
A("s_waitcnt lgkmcnt(0)")
for m in stat_mfma: A(m)
A("s_nop 6")
for x in stat_valu: A(x)
A(f"s_cmp_eq_u32 s{sCG}, 0\ns_cselect_b64 {sr(sT2,2)}, 1, 0")
pub(f"buffer_store_dwordx2 {vr(s1,2)}, v{aQS}, {WS}, s{sI} offen", sr(sT2,2))
FS("q")
A("L_att_poll:")

with Tail():
    A(f"L_q0_pub:\ns_nop 0\nv_permlane16_swap_b32 v{a}, v{a+1}\nv_add_f32 v{vQ0}, v{a}, v{a+1}")
    q0store = f"buffer_store_dwordx2 {vr(vQ0,2)}, v{vQ0+2}, {WS}, s{sQ0} offen"
    A(f"""v_mov_b32 v{vQ0+1}, s{sE1}
v_lshlrev_b32 v{vQ0+2}, 1, v{aQD}
s_mov_b64 exec, 0xffff
{q0store}
s_mov_b64 exec, -1""")
    for i in range(NK1 + NKB, 16): kdma(i)
    vo = u + 12
    A(f"""s_and_b32 s{sT0}, s{sW}, 1
s_lshl_b32 s{sT0}, s{sT0}, 1
v_and_b32 v{vo}, 1, v{vG}
v_or_b32 v{vo}, s{sT0}, v{vo}
v_lshlrev_b32 v{vo}, 1, v{vo}
v_xor_b32 v{vo}, v{vo}, v{vN}
v_lshlrev_b32 v{vo}, 4, v{vo}
v_lshl_add_u32 v{vo}, v{vG}, 8, v{vo}
s_lshr_b32 s{sT0}, s{sROT}, 5
s_and_b32 s{sT0}, s{sT0}, 128
v_xor_b32 v{vo}, s{sT0}, v{vo}
v_xor_b32 v{vo+1}, 128, v{vo}""")
    srd2(rV, 65536)
    def vdma(i): A(blk_m0(sVM, i, 0x7000) + f"\nbuffer_load_dwordx4 v{vo + (i & 1)}, {sr(rV,4)}, m0 offen {LDF} lds")
    for i in range(NQ): vdma(i)
    A(f"""s_getreg_b32 s{sXCC}, hwreg(HW_REG_XCC_ID)
s_and_b32 s{sXCC}, s{sXCC}, 7
s_cmp_lg_u32 s{sW}, 3
s_cbranch_scc1 L_nordy
s_lshl_b32 s{sT0}, s{sX}, 7
s_lshl_b32 s{sT1}, s{sJ}, 2
s_add_u32 s{sT0}, s{sT0}, s{sT1}
s_add_u32 s{sT0}, s{sT0}, {RDY}
v_mov_b32 v{u+14}, s{sT0}
s_or_b32 s{sT0}, s{sE1}, s{sXCC}
v_mov_b32 v{u+15}, s{sT0}
s_mov_b64 exec, 1
s_waitcnt vmcnt({16 - NK1 + NQ + 1})
buffer_store_dword v{u+15}, v{u+14}, {WS}, 0 offen sc1
s_mov_b64 exec, -1
L_nordy:
s_lshr_b32 s{sT0}, s{sJ}, 4
s_lshl_b32 s{sT0}, s{sT0}, 12
v_lshl_add_u32 v{aQ1}, v0, 4, s{sT0}
v_lshlrev_b32 v{t}, 1, v{aQ1}""")
    g0 = t + 28
    q0loads = f"""buffer_load_dwordx4 {vr(g0,4)}, v{t}, {WS}, s{sQ0} offen sc1
buffer_load_dwordx4 {vr(g0+4,4)}, v{t}, {WS}, s{sQ0} offen offset:16 sc1"""
    if OPT["xnoq0"] < 1: A(q0loads)
    for i in range(NQ, NV1): vdma(i)
    srd2(rW2, 4608*576*2); srd2(rB1, 4608*2); srd2(rOUT, 1152)
    A(f"""s_mov_b32 s{sMODE}, 0
s_mov_b32 s{sCOPY}, 0
s_mov_b32 s{sI}, s{sIB}
s_cmp_ge_u32 s{sJ}, 18
s_cselect_b32 s{sROLE}, 1, 0
s_cselect_b32 s{rWA}, s92, s{rWA}
s_cselect_b32 s{rWA+1}, s93, s{rWA+1}
s_mov_b32 s{rWA+2}, {4096*576*2}
s_cselect_b32 s{rWA+2}, {576*4608*2}, s{rWA+2}
s_mov_b32 s{rWA+3}, 0x20000
s_cmp_ge_u32 s{sJ}, 30
s_cselect_b32 s{sROLE}, 2, s{sROLE}
s_cmp_ge_u32 s{sJ}, 9
s_cselect_b32 s{sHALF}, 1, 0
s_mul_i32 s{sT0}, s{sHALF}, 9
s_sub_u32 s{sCG9}, s{sJ}, s{sT0}
s_sub_u32 s{sT0}, s{sJ}, 18
s_and_b32 s{sT1}, s{sT0}, 3
s_lshr_b32 s{sT0}, s{sT0}, 2
s_and_b32 s{sT0}, s{sT0}, 3
s_cmp_eq_u32 s{sROLE}, 0
s_cselect_b32 s{sHALF}, s{sHALF}, s{sT1}
s_cselect_b32 s{sCG9}, s{sCG9}, s{sT0}
v_mov_b32 v{vONE}, 0x3f803f80
v_mov_b32 v{vONE+1}, 0x3f803f80
s_cmp_eq_u32 s{sW}, 0
s_cselect_b32 s{sT0}, 0x3f803f80, 0
s_cselect_b64 {sr(mW0,2)}, 1, 0
v_mov_b32 v{vONE3}, s{sT0}
v_mov_b32 v{vONE3+1}, s{sT0}
v_mov_b32 v{vJUNK}, {1/576:.9e}""")
    mask64(mODDR, 0xffff0000, 0xffff0000); mask64(mODDL, 0xaaaaaaaa, 0xaaaaaaaa); mask64(mROW3, 0, 0xffff0000)
    c1, c2, CS = t + 40, t + 44, t + 48
    for r in range(4): A(f"v_mov_b32 v{c1+r}, v{vONE}")
    A(f"v_mov_b32 v{c2}, 0\nv_mov_b32 v{c2+1}, 0\nv_mov_b32 v{c2+2}, v{vONE}\nv_mov_b32 v{c2+3}, v{vONE}")
    for r in list(range(aRES, aHR + 1)) + [vS1 + 1, aLW, aLR]: A(f"v_mov_b32 v{r}, 0")
    for ks in range(4): A(mfma(vr(CS,4), vr(c1,4), ar(cWQ+4*ks,4), "0" if ks == 0 else vr(CS,4)))
    A(mfma(vr(CS,4), vr(c2,4), ar(cWQ+14,4), vr(CS,4)))
    A(f"""v_lshrrev_b32 v{aS3}, 2, v{vL}
v_mul_u32_u24 v{aS3}, 288, v{aS3}
v_and_b32 v{aS1}, 3, v{vL}
v_lshl_add_u32 v{aS3}, v{aS1}, 3, v{aS3}
s_lshl_b32 s{sT0}, s{sW}, 5
s_add_u32 s{sT0}, s{sT0}, {LXS}
v_add_u32 v{aS1}, s{sT0}, v{aS3}
v_add_u32 v{aS3}, {LXS + 256}, v{aS3}
s_lshl_b32 s{sT0}, s{sRG}, 5
s_lshl_b32 s{sT1}, s{sW}, 3
s_add_u32 s{sT0}, s{sT0}, s{sT1}
s_add_u32 s{sT0}, s{sT0}, {QSo}
v_mov_b32 v{aQS}, s{sT0}
v_lshrrev_b32 v{t+4}, 7, v0
v_mul_u32_u24 v{t+4}, 128, v{t+4}
v_lshl_add_u32 v{aQW}, v0, 1, v{t+4}
v_add_u32 v{aQW}, {LQ}, v{aQW}
ds_write_b16 v{aQW}, v{c2} offset:1600
ds_write_b16 v{aQW}, v{c2} offset:2400
v_mov_b32 v{t+4}, {LMODE}
ds_read_b32 v{gQS+1}, v{t+4}
v_mov_b32 v{gQS}, 0
v_mov_b32 v{vCS}, v{CS}""")
    A(f"v_add_u32 v{t+3}, 256, v{vL}\nv_min_u32 v{t+3}, 287, v{t+3}")
    x_addr(aX1, 0, sRG, t+4); x_addr(aX2, t+3, sRG, t+4)
    A(f"""v_lshlrev_b32 v{aQ2}, 3, v{vN}
v_add_u32 v{aQ2}, {QSo}, v{aQ2}
v_lshrrev_b32 v{t+4}, 3, v{vN}
v_mul_u32_u24 v{aPR}, 640, v{t+4}
v_mul_u32_u24 v{aQR}, 384, v{t+4}
v_and_b32 v{t+4}, 3, v{vN}
v_mul_u32_u24 v{t+5}, 800, v{t+4}
v_add_u32 v{aQR}, v{aQR}, v{t+5}
v_lshl_add_u32 v{aQR}, v{vG}, 4, v{aQR}
v_add_u32 v{aQR}, {LQ}, v{aQR}
v_lshl_add_u32 v{aPR}, v{vG}, 4, v{aPR}
v_add_u32 v{aPR}, {LP}, v{aPR}
v_lshrrev_b32 v{t+5}, 5, v{vL}
v_mul_u32_u24 v{aPW}, 640, v{t+5}
v_and_b32 v{aMW}, 31, v{vL}
v_lshl_add_u32 v{aPW}, v{aMW}, 2, v{aPW}
s_lshl_b32 s{sT0}, s{sW}, 7
s_add_u32 s{sT0}, s{sT0}, {LP}
v_add_u32 v{aPW}, s{sT0}, v{aPW}
v_lshlrev_b32 v{aMR}, 4, v{t+5}
s_lshl_b32 s{sT0}, s{sW}, 2
s_add_u32 s{sT0}, s{sT0}, {LM}
v_add_u32 v{aMW}, s{sT0}, v{aMR}
v_lshl_add_u32 v{aMR}, v{t+4}, 2, v{aMR}
v_add_u32 v{aMR}, {LM}, v{aMR}
v_min_u32 v{aHL}, 17, v{vL}
v_lshlrev_b32 v{aHL}, 2, v{aHL}
v_add_u32 v{aHL}, {H3o}, v{aHL}""")
    A(f"""s_lshl_b32 s{sT0}, s{sJ}, 9
s_lshl_b32 s{sT1}, s{sW}, 6
s_add_u32 s{sT0}, s{sT0}, s{sT1}
s_add_u32 s{sT0}, s{sT0}, {OPo}
v_lshlrev_b32 v{aOP}, 8, v{t+5}
v_lshl_add_u32 v{aOP}, v{vN}, 2, v{aOP}
v_add_u32 v{aOP}, s{sT0}, v{aOP}
s_lshl_b32 s{sT0}, s{sJ}, 6
s_add_u32 s{sT0}, s{sT0}, {MLo}
s_lshl_b32 s{sT1}, s{sW}, 2
s_add_u32 s{sT1}, s{sT1}, s{sT0}
v_lshl_add_u32 v{t+4}, v{t+5}, 4, s{sT1}
s_lshl_b32 s{sT1}, s{sW}, 3
s_add_u32 s{sT1}, s{sT1}, s{sT0}
s_add_u32 s{sT1}, s{sT1}, 32
v_lshl_add_u32 v{t+5}, v{t+5}, 2, s{sT1}
v_cndmask_b32 v{t+4}, v{t+4}, v{t+5}, {sr(mODDL,2)}
v_cndmask_b32 v{aOP}, v{aOP}, v{t+4}, {sr(mODDR,2)}
s_mov_b32 s{mATT}, 0x1ffff
s_cmp_lt_u32 s{sW}, 2
s_cselect_b32 s{mATT}, 0x3ffff, s{mATT}
s_mov_b32 s{mATT+1}, s{mATT}""")
    ka = t + 4
    A(f"s_lshl_b32 s{sT0}, s{sW}, 14\ns_add_u32 s{sT0}, s{sT0}, {LR}\nv_lshl_add_u32 v{u+8}, v{vN}, 8, s{sT0}\nv_xor_b32 v{u+9}, v{vG}, v{vN}")
    for ks in range(4): A(f"v_xor_b32 v{ka+ks}, {ks << 2}, v{u+9}\nv_lshl_add_u32 v{ka+ks}, v{ka+ks}, 4, v{u+8}")
    A(f"s_waitcnt vmcnt({NV1 - NQ})\ns_barrier")
    stamp(3)
    for Tt in range(4):
        for ks in range(4): A(f"ds_read_b128 {vr(vK+16*Tt+4*ks,4)}, v{ka+ks} offset:{Tt*4096}")
    A(f"s_mov_b32 s{sCNT}, 0\nL_q0_chk:\nv_xor_b32 v{u+8}, s{sE1}, v{g0+1}")
    for k in range(1, 4): A(f"v_xor_b32 v{g0+2*k+1}, s{sE1}, v{g0+2*k+1}\nv_or_b32 v{u+8}, v{u+8}, v{g0+2*k+1}")
    A(f"v_cmp_ne_u32 vcc, 0, v{u+8}\ns_cbranch_vccz L_q0_ok")
    if OPT["xnoq0"]: A("s_branch L_q0_ok")
    A(f"s_cmp_lg_u32 s{sCNT}, 0\ns_cselect_b64 exec, 0, 0xffff\n{q0store} sc1\ns_mov_b64 exec, -1")
    A(f"s_add_u32 s{sCNT}, s{sCNT}, 1\ns_cmp_ge_u32 s{sCNT}, {OPT['tmo']}\ns_cbranch_scc1 L_end\n{q0loads}\ns_waitcnt vmcnt(0)\ns_branch L_q0_chk\nL_q0_ok:")
    for k in range(4): A(f"v_mov_b32 v{gQ+k}, v{g0+2*k}")
    A("s_branch L_att_ok")

poll(f"buffer_load_dwordx4 {vr(gQ,4)}, v{aQ1}, {WS}, s{sI} offen sc1", range(gQ, gQ+4), u)
qsload = f"buffer_load_dwordx2 {vr(gQS,2)}, v{aQ2}, {WS}, s{sI} offen sc1"
resload2 = f"buffer_load_dwordx4 {vr(gRES,4)}, v{aRES}, {WS}, s{sXO} offen sc1"
A("L_att_ok:")
stamp(4); FS("att")
qv, qh, ql = u, u + 1, u + 2
A(f"""v_add_f32 v{qv}, v{gQ}, v{gQ+1}
v_add_f32 v{qh}, v{gQ+2}, v{gQ+3}
s_cmp_eq_u32 s{sPASS}, 0
v_add_f32 v{qv}, v{qv}, v{qh}
v_cvt_pk_bf16_f32 v{qh}, v{qv}, v{qv}
ds_write_b16 v{aQW}, v{qh}
v_lshlrev_b32 v{ql}, 16, v{qh}
v_sub_f32 v{qv}, v{qv}, v{ql}
v_cvt_pk_bf16_f32 v{qv}, v{qv}, v{qv}
ds_write_b16 v{aQW}, v{qv} offset:800
s_cbranch_scc1 L_att_nold
{qsload}
{resload2}
L_att_nold:""")
FS("att")
A("s_waitcnt lgkmcnt(0)\ns_barrier")
FS("att")
fq, D = t + 28, t + 44
for ks in range(4): A(f"ds_read_b128 {vr(fq+4*ks,4)}, v{aQR} offset:{ks*64}")
qk = [(f"s_waitcnt lgkmcnt({3-ks})\n" if Tt == 0 else "") + mfma(vr(D+4*Tt,4), vr(fq+4*ks,4), vr(vK+16*Tt+4*ks,4), "0" if ks == 0 else vr(D+4*Tt,4))
      for Tt in range(4) for ks in range(4)]
for m in qk[:4]: A(m)
A("s_cbranch_scc1 L_att_nochk\ns_waitcnt vmcnt(1)")
recheck(qsload, [gQS, gQS+1], u+3)
A("L_att_nochk:")
z1, z2 = u + 4, u + 5
side = [dpp("v_add_f32", z1, gQS, ROWRED[0]), dpp("v_add_f32", z2, gQS+1, ROWRED[0])]
for p in ROWRED[1:]: side += [dpp("v_add_f32", z1, z1, p), dpp("v_add_f32", z2, z2, p)]
side += [f"v_mul_f32 v{vMU}, {1/576:.9e}, v{z1}", f"v_mul_f32 v{z2}, {1/576:.9e}, v{z2}", f"v_fma_f32 v{z2}, -v{vMU}, v{vMU}, v{z2}",
         f"v_add_f32 v{D}, v{D}, v{D+1}", f"v_max_f32 v{z2}, 0, v{z2}", f"v_add_f32 v{z2}, 0x3727c5ac, v{z2}", f"v_rsq_f32 v{vC}, v{z2}",
         f"v_add_f32 v{D+2}, v{D+2}, v{D+3}", f"v_mul_f32 v{vC}, {128**-0.5*math.log2(math.e):.9e}, v{vC}",
         f"v_add_f32 v{D+4}, v{D+4}, v{D+5}", f"v_add_f32 v{D+6}, v{D+6}, v{D+7}", f"v_mul_f32 v{vMU}, v{vMU}, v{vC}"]
weave(qk[4:], side, 2)
FS("att")
sa, sb, um, tm = u + 6, u + 7, u + 8, u + 9
A(f"""v_add_f32 v{D+8}, v{D+8}, v{D+9}
v_add_f32 v{D+10}, v{D+10}, v{D+11}
v_cndmask_b32 v{sa}, v{D}, v{D+8}, {sr(mODDR,2)}
v_cndmask_b32 v{tm}, v{D+2}, v{D+10}, {sr(mODDR,2)}
v_mul_f32 v{sa}, v{sa}, v{vC}
v_fma_f32 v{sa}, -v{vMU}, v{tm}, v{sa}
s_nop 1
v_add_f32 v{D+12}, v{D+12}, v{D+13}
v_add_f32 v{D+14}, v{D+14}, v{D+15}
v_cndmask_b32 v{sb}, v{D+4}, v{D+12}, {sr(mODDR,2)}
v_cndmask_b32 v{tm}, v{D+6}, v{D+14}, {sr(mODDR,2)}
v_mul_f32 v{sb}, v{sb}, v{vC}
v_fma_f32 v{sb}, -v{vMU}, v{tm}, v{sb}
v_max_f32 v{um}, v{sa}, v{sb}
v_max_f32 v{tm}, v{sa}, v{sb}
s_nop 1
v_permlane16_swap_b32 v{um}, v{tm}
v_max_f32 v{um}, v{um}, v{tm}
s_nop 1""")
rowred("v_max_f32", [um])
A(f"""v_sub_f32 v{sa}, v{sa}, v{um}
v_sub_f32 v{sb}, v{sb}, v{um}
ds_write_b32 v{aMW}, v{um}
v_exp_f32 v{sa}, v{sa}
v_exp_f32 v{sb}, v{sb}
s_cmp_eq_u32 s{sPASS}, 0
v_cvt_pk_bf16_f32 v{tm}, v{sa}, v{sb}
ds_write_b32 v{aPW}, v{tm}""")
FS("att")
A(f"v_lshlrev_b32 v{sa}, 16, v{tm}\nv_and_b32 v{sb}, 0xffff0000, v{tm}\nv_add_f32 v{sa}, v{sa}, v{sb}\nv_add_f32 v{u+14}, v{sa}, 0\ns_nop 1\nv_permlane16_swap_b32 v{sa}, v{u+14}\nv_add_f32 v{sa}, v{sa}, v{u+14}\ns_nop 1\n{dpp('v_add_f32', sa, sa, ROWRED[0])}\ns_cbranch_scc1 L_rdy")
fp, acc, fm, big, fb = t - 0, t + 32, u + 7, u + 9, u + 10
def pv_head():
    A("s_waitcnt lgkmcnt(0)\ns_barrier")
    A(f"ds_read_b32 v{fm}, v{aMR}")
    for ks in range(8): A(f"ds_read_b128 {vr(fp+4*ks,4)}, v{aPR} offset:{ks*64}")
def pv_mfma(ks, tau):
    a_ = acc + 8*(ks >> 1) + 4*tau
    return mfma(vr(a_,4), vr(fp+4*ks,4), ar(cV+8*ks+4*tau,4), "0" if ks % 2 == 0 else vr(a_,4))
lc = u + 14
pv_side = [dpp("v_add_f32", sa, sa, ROWRED[1]), dpp("v_max_f32", big, fm, ROWRED[0]),
           dpp("v_add_f32", sa, sa, ROWRED[2]), dpp("v_max_f32", big, big, ROWRED[1]),
           dpp("v_add_f32", sa, sa, ROWRED[3]), f"v_sub_f32 v{fm}, v{fm}, v{big}", f"v_sub_f32 v{um}, v{um}, v{big}", f"v_exp_f32 v{fm}, v{fm}",
           f"v_exp_f32 v{um}, v{um}", "s_nop 0",
           f"v_mov_b32_dpp v{fb}, v{fm} row_newbcast:0 {DPPM}", f"v_mov_b32_dpp v{fb+1}, v{fm} row_newbcast:1 {DPPM}",
           f"v_mov_b32_dpp v{fb+2}, v{fm} row_newbcast:2 {DPPM}", f"v_mov_b32_dpp v{fb+3}, v{fm} row_newbcast:3 {DPPM}",
           f"v_mul_f32 v{sa}, v{sa}, v{um}", f"v_cndmask_b32 v{sa}, v{sa}, v{big}, {sr(mODDL,2)}"]
o0, o1 = lc, um
pv_tail = [f"v_mul_f32 v{o0}, v{fb}, v{acc}", f"v_mul_f32 v{o1}, v{fb}, v{acc+4}", f"v_fmac_f32 v{o0}, v{fb+1}, v{acc+8}", f"v_fmac_f32 v{o1}, v{fb+1}, v{acc+12}"]
pv_head()
stamp(5); FS("att")
PVW = {0: 7, 1: 6, 2: 4, 4: 2, 6: 0}
weave([(f"s_waitcnt lgkmcnt({PVW[ks]})\n" if tau == 0 and ks in PVW else "") + pv_mfma(ks, tau) for ks in range(8) for tau in range(2)], pv_side + pv_tail, 2, 0)
def pv_finish():
    A(f"""v_mov_b32 v{FA+16}, 0
v_mov_b32 v{FA+17}, 0
v_fmac_f32 v{o0}, v{fb+2}, v{acc+16}
v_fmac_f32 v{o1}, v{fb+2}, v{acc+20}
s_nop 2
v_fmac_f32 v{o0}, v{fb+3}, v{acc+24}
v_fmac_f32 v{o1}, v{fb+3}, v{acc+28}
v_cvt_pk_bf16_f32 v{o0}, v{o0}, v{o1}
v_cndmask_b32 v{o0}, v{o0}, v{sa}, {sr(mODDR,2)}""")
    pub(f"buffer_store_dword v{o0}, v{aOP}, {WS}, s{sI} offen", sr(mATT,2))
FS("att")
pv_finish()
FS("att"); stamp(6)
A(f"s_cmp_lg_u32 s{sROLE}, 0\ns_cbranch_scc1 L_roleBF")

def wo_dma(i0, i1, v):
    wdma_voff(v, 1152, "wo")
    A(f"""s_lshl_b32 s{sT1}, s{sX}, 1
s_add_u32 s{sT1}, s{sT1}, s{sHALF}
s_lshl_b32 s{sT1}, s{sT1}, 5
s_add_u32 s{sT1}, s{sT1}, s{sW}
s_mul_i32 s{sT1}, s{sT1}, {8*1152}
s_lshl_b32 s{sT2}, s{sCG9}, 7
s_add_u32 s{sT1}, s{sT1}, s{sT2}
s_lshl_b32 s{sT2}, s{sW}, 10
s_add_u32 s{sT2}, s{sT2}, {LR + i0*4096}""")
    if i0: A(f"s_add_u32 s{sT1}, s{sT1}, {i0*32*1152}")
    for i in range(i0, i1):
        dma(rWA, v, sT1, sT2)
        if i < i1 - 1: A(f"s_add_u32 s{sT1}, s{sT1}, {32*1152}\ns_add_u32 s{sT2}, s{sT2}, 4096")
def w2_dma(i0, i1, v):
    wdma_voff(v, 1152, "std")
    A(f"""s_lshl_b32 s{sT1}, s{sX}, 1
s_add_u32 s{sT1}, s{sT1}, s{sHALF}
s_mul_i32 s{sT1}, s{sT1}, 36
s_add_u32 s{sT1}, s{sT1}, s{sW}
s_mul_i32 s{sT1}, s{sT1}, {8*1152}
s_lshl_b32 s{sT2}, s{sCG9}, 7
s_add_u32 s{sT1}, s{sT1}, s{sT2}
s_lshl_b32 s{sT2}, s{sW}, 10
s_add_u32 s{sT2}, s{sT2}, {LW2 + i0*4096}""")
    if i0: A(f"s_add_u32 s{sT1}, s{sT1}, {i0*32*1152}")
    for i in range(i0, i1):
        dma(rW2, v, sT1, sT2)
        if i < i1 - 1: A(f"s_add_u32 s{sT1}, s{sT1}, {32*1152}\ns_add_u32 s{sT2}, s{sT2}, 4096")
def w1_dma(k0, k1, v, done):
    wdma_voff(v, 9216, "std")
    A(f"""s_mul_i32 s{sT1}, s{sHALF}, 18
s_add_u32 s{sT1}, s{sT1}, s{sW}
s_mul_i32 s{sT1}, s{sT1}, {8*9216}
s_mul_i32 s{sT2}, s{sX}, 1152
s_add_u32 s{sT1}, s{sT1}, s{sT2}
s_mul_i32 s{sT2}, s{sCG9}, 384
s_add_u32 s{sT1}, s{sT1}, s{sT2}
s_lshl_b32 s{sT2}, s{sW}, 10
s_add_u32 s{sT2}, s{sT2}, {LR}""")
    for k in range(k0, k1):
        i, c = divmod(k, 3)
        if k == 12: A(f"s_cmp_ge_u32 s{sW}, 2\ns_cbranch_scc1 {done}")
        A(f"s_add_u32 s{sT3}, s{sT1}, {i*32*9216 + c*128}\ns_add_u32 s{sT4}, s{sT2}, {i*4096 + c*18432}")
        dma(rWA, v, sT3, sT4)

def w1_regs():
    for c in range(3): tr_slice(cWA + 18*c, t+8, t+10, c*18432)

POLo = H5o + 120
def probe():
    if OPT["copies"] != 2: return
    if OPT["pol"] < 0:
        A(f"""s_sub_u32 s{sT0}, s{sJ}, 30
s_lshl_b32 s{sT0}, s{sT0}, 14
s_lshl_b32 s{sT1}, s{sW}, 11
s_add_u32 s{sT0}, s{sT0}, s{sT1}
s_add_u32 s{sT4}, s{sT0}, {PROBE}
s_mov_b32 s84, -1
s_mov_b32 s85, -1""")
        for k in range(2*OPT["npair"]):
            c = (k ^ (k >> 1)) & 1
            A(f"s_add_u32 s{sT0}, s{sT4}, {(k >> 1)*128 + c*0x2000}\ns_memtime s[100:101]\ns_waitcnt lgkmcnt(0)\ns_buffer_load_dword s101, {WS}, s{sT0}\ns_waitcnt lgkmcnt(0)")
            A(f"s_memtime {sr(sT2,2)}\ns_waitcnt lgkmcnt(0)\ns_sub_u32 s{sT2}, s{sT2}, s100\ns_min_u32 s{84+c}, s{84+c}, s{sT2}")
        A(f"""s_lshl_b32 s{sT1}, s{sW}, 2
s_add_u32 s{sT1}, s{sT1}, {LMODE}
v_mov_b32 v{t}, s{sT1}
v_mov_b32 v{t+1}, s84
v_mov_b32 v{t+2}, s85
ds_write2_b32 v{t}, v{t+1}, v{t+2} offset0:0 offset1:4""")
def probe_done():
    if OPT["copies"] != 2: return
    if OPT["pol"] >= 0: A(f"s_mov_b32 s{sT4}, {OPT['pol']}")
    else:
        A(f"""v_mov_b32 v{t}, {LMODE}
ds_read_b128 {vr(t+28,4)}, v{t}
ds_read_b128 {vr(t+32,4)}, v{t} offset:16
s_waitcnt lgkmcnt(0)
v_min_u32 v{t}, v{t+28}, v{t+29}
v_min3_u32 v{t}, v{t}, v{t+30}, v{t+31}
v_min_u32 v{t+1}, v{t+32}, v{t+33}
v_min3_u32 v{t+1}, v{t+1}, v{t+34}, v{t+35}
v_cmp_gt_u32 vcc, v{t}, v{t+1}
s_lshr_b32 s{sT0}, s{sXCC}, 2
s_cmp_lg_u32 vcc_lo, 0
s_cselect_b32 s{sT4}, 1, 0
s_xor_b32 s{sT4}, s{sT4}, s{sT0}""")
    A(f"s_sub_u32 s{sT0}, s{sJ}, 30\ns_lshl_b32 s{sT0}, s{sT0}, 2\ns_add_u32 s{sT0}, s{sT0}, {POLo}\nv_mov_b32 v{t}, s{sT0}\nv_mov_b32 v{t+1}, s{sT4}")
    pub(f"buffer_store_dword v{t+1}, v{t}, {WS}, s{sIB} offen", sr(mW0,2))

with Tail():
    ra_, rb_, avt = t, t + 1, t + 2
    gv, gva = gO, gML
    gload = f"buffer_load_dwordx4 {vr(gv,4)}, v{gva}, {WS}, 0 offen sc1"
    A(f"L_rdy:\nv_lshlrev_b32 v{gva}, 4, v{vL}\nv_add_u32 v{gva}, {RDY}, v{gva}")
    BEH = OPT["beh"]; NX = 1 if OPT["touch"] else 0
    x0res = f"s_lshl_b32 s{sT0}, s{sCG9}, 7\ns_lshl_b32 s{sT1}, s{sW}, 5\ns_add_u32 s{sT0}, s{sT0}, s{sT1}\nv_lshl_add_u32 v{t+4}, v{vG}, 3, s{sT0}\nbuffer_load_dwordx2 {vr(vR+2,2)}, v{t+4}, {sr(rXI,4)}, 0 offen"
    def role_dma(done):
        lb = uid("rb")
        A(f"s_cmp_eq_u32 s{sROLE}, 1\ns_cbranch_scc1 {lb}\ns_cmp_eq_u32 s{sROLE}, 2\ns_cbranch_scc1 {done}f")
        if NW2: w2_dma(0, NW2, t+4)
        wo_dma(0, 8, t+4)
        if BEH: A(f"s_waitcnt vmcnt({8 + NW2 + NX + 1})")
        A(f"s_branch {done}\n{lb}:")
        if NB1: w1_dma(0, NB1, t+4, done + "b")
        A(f"{done}b:")
        if BEH: A(f"s_waitcnt vmcnt({min(NB1, 12) + NX + 1})\ns_branch {done}")
        A(f"{done}f:")
        if BEH: A(f"s_waitcnt vmcnt({NX + 1})")
        A(f"{done}:")
    A(x0res)
    if not BEH: role_dma("L_w1_issued")
    A(gload)
    for i in range(NV1, 16): vdma(i)
    A(f"s_mov_b32 s{sHOOK}, 0")
    avt = vKO
    A(f"""v_bfe_u32 v{avt+1}, v{vL}, 3, 2
v_bfe_u32 v{t+4}, v{vL}, 2, 1
v_lshl_or_b32 v{avt+1}, v{t+4}, 2, v{avt+1}
s_lshl_b32 s{sT0}, s{sW}, 1
v_xor_b32 v{avt+1}, s{sT0}, v{avt+1}
v_lshlrev_b32 v{avt+1}, 5, v{avt+1}
v_and_b32 v{avt}, 3, v{vL}
v_lshl_add_u32 v{avt}, v{avt}, 3, v{avt+1}
v_lshl_add_u32 v{avt}, v{t+4}, 12, v{avt}
v_bfe_u32 v{t+4}, v{vL}, 3, 1
v_lshl_add_u32 v{avt}, v{t+4}, 8, v{avt}
v_lshl_add_u32 v{avt}, v{vG}, 10, v{avt}
v_xor_b32 v{avt+1}, 32, v{avt}""")
    def vtr(ks, tau, h): return f"ds_read_b64_tr_b16 {ar(cV+8*ks+4*tau+2*h,2)}, v{avt+tau} offset:{ks*8192+h*512}"
    A(f"s_cmp_eq_u32 s{sROLE}, 1\ns_cbranch_scc1 L_sub\ns_cmp_eq_u32 s{sROLE}, 2\ns_cbranch_scc1 L_sud")
    A(f"""s_and_b32 s{sT0}, s{sW}, 1
s_lshl_b32 s{sT0}, s{sT0}, 1
v_lshrrev_b32 v{t+8}, 3, v{vN}
v_add_u32 v{t+8}, s{sT0}, v{t+8}
v_and_b32 v{t+9}, 1, v{vN}
v_lshlrev_b32 v{t+9}, 4, v{t+9}
v_mov_b32 v{t+10}, 0x3d80
v_lshlrev_b32 v{t+9}, v{t+9}, v{t+10}
v_cmp_eq_u32 vcc, v{t+8}, v{vG}
v_bfe_u32 v{t+10}, v{vN}, 1, 2
s_nop 0
v_cndmask_b32 v{t+9}, 0, v{t+9}, vcc""")
    for r in range(4): A(f"v_cmp_eq_u32 vcc, {r}, v{t+10}\ns_nop 1\nv_cndmask_b32 v{vSEL+r}, 0, v{t+9}, vcc")
    A(f"""v_lshrrev_b32 v{aRES}, 2, v{vN}
v_lshlrev_b32 v{aRES}, 14, v{aRES}
v_and_b32 v{t+8}, 3, v{vN}
v_lshl_add_u32 v{aRES}, v{t+8}, 11, v{aRES}
v_lshl_add_u32 v{aRES}, v{vG}, 4, v{aRES}
s_lshl_b32 s{sT0}, s{sCG9}, 7
s_lshr_b32 s{sT1}, s{sW}, 1
s_lshl_b32 s{sT1}, s{sT1}, 6
s_add_u32 s{sT0}, s{sT0}, s{sT1}
v_add_u32 v{aRES}, s{sT0}, v{aRES}
s_lshl_b32 s{sT0}, s{sHALF}, 13
s_lshl_b32 s{sT1}, s{sW}, 11
s_add_u32 s{sT0}, s{sT0}, s{sT1}
s_add_u32 s{sT0}, s{sT0}, {OPo}
v_lshl_add_u32 v{aO1}, v{vL}, 4, s{sT0}
s_lshl_b32 s{sT0}, s{sHALF}, 10
s_add_u32 s{sT0}, s{sT0}, {MLo}
v_lshl_add_u32 v{aML}, v{vN}, 6, s{sT0}
v_min_u32 v{t+8}, 2, v{vG}
v_lshl_add_u32 v{aML}, v{t+8}, 4, v{aML}
s_mul_i32 s{sT0}, s{sW}, {4*544}
s_add_u32 s{sT0}, s{sT0}, {LOPS}
v_lshrrev_b32 v{aOW}, 5, v{vL}
v_mul_u32_u24 v{aOW}, 544, v{aOW}
v_and_b32 v{t+8}, 31, v{vL}
v_lshl_add_u32 v{aOW}, v{t+8}, 4, v{aOW}
v_add_u32 v{aOW}, s{sT0}, v{aOW}
v_mul_u32_u24 v{aOR}, 544, v{vN}
v_lshl_add_u32 v{aOR}, v{vG}, 4, v{aOR}
v_add_u32 v{aOR}, {LOPS}, v{aOR}
s_lshl_b32 s{sT0}, s{sX}, 1
s_add_u32 s{sT0}, s{sT0}, s{sHALF}
s_lshr_b32 s{sT1}, s{sT0}, 2
s_lshl_b32 s{sT1}, s{sT1}, 14
s_and_b32 s{sT0}, s{sT0}, 3
s_lshl_b32 s{sT0}, s{sT0}, 11
s_add_u32 s{sT0}, s{sT0}, s{sT1}
s_lshl_b32 s{sT1}, s{sCG9}, 7
s_add_u32 s{sT0}, s{sT0}, s{sT1}
XSADDR
s_lshl_b32 s{sT0}, s{sJ}, 2
s_add_u32 s{sT0}, s{sT0}, {H3o}
v_mov_b32 v{aHS}, s{sT0}
s_mul_i32 s{sT0}, s{sHALF}, {288*16}
s_mul_i32 s{sT1}, s{sW}, {72*16}
s_add_u32 s{sT0}, s{sT0}, s{sT1}
s_add_u32 s{sT0}, s{sT0}, {HPo}
v_lshl_add_u32 v{aH1}, v{vL}, 4, s{sT0}
s_add_u32 s{sT0}, s{sT0}, 1024
v_lshl_add_u32 v{aH2}, v{vN}, 4, s{sT0}
v_lshlrev_b32 v{t+8}, 4, v{vN}
v_add_u32 v{t+8}, {HSo - 128}, v{t+8}
v_cmp_gt_u32 vcc, 8, v{vN}
s_mul_i32 s{sT0}, s{sW}, 144
s_add_u32 s{sT0}, s{sT0}, {LH}
v_cndmask_b32 v{aH2}, v{t+8}, v{aH2}, vcc
v_lshl_add_u32 v{aHW}, v{vL}, 1, s{sT0}
s_add_u32 s{sT0}, s{sT0}, 128
v_lshl_add_u32 v{aHW2}, v{vN}, 1, s{sT0}
v_mov_b32 v{t+8}, {LH + 576}
v_cndmask_b32 v{aHW2}, v{t+8}, v{aHW2}, vcc
v_lshlrev_b32 v{aHR}, 4, v{vG}
v_add_u32 v{aHR}, {LH}, v{aHR}""")
    A(f"""v_bfe_u32 v{t+8}, v{vL}, 4, 1
v_bfe_u32 v{t+9}, v{vL}, 2, 1
v_lshl_or_b32 v{t+8}, v{t+9}, 1, v{t+8}
v_xor_b32 v{t+8}, s{sW}, v{t+8}
v_lshlrev_b32 v{t+8}, 5, v{t+8}
v_lshl_add_u32 v{t+8}, v{t+9}, 11, v{t+8}
v_and_b32 v{t+9}, 3, v{vL}
v_lshl_add_u32 v{t+8}, v{t+9}, 3, v{t+8}
v_bfe_u32 v{t+9}, v{vL}, 3, 1
v_lshl_add_u32 v{t+8}, v{t+9}, 7, v{t+8}
v_lshl_add_u32 v{t+8}, v{vG}, 9, v{t+8}
v_add_u32 v{t+8}, {LR}, v{t+8}
""")
    if OPT["one"]:
        k = L.index("XSADDR")
        L[k:k+1] = f"""v_and_b32 v{aLR}, 7, v{vL}
v_lshlrev_b32 v{aLR}, 4, v{aLR}
v_add_u32 v{aXS}, s{sT0}, v{aLR}
v_bfe_u32 v{aLW}, v{vL}, 3, 1
v_lshl_add_u32 v{aXS}, v{aLW}, 13, v{aXS}
v_add_u32 v{aLR}, {LXP}, v{aLR}
s_lshl_b32 s{sT1}, s{sW}, 5
s_add_u32 s{sT1}, s{sT1}, {LXP}
v_lshl_add_u32 v{aLW}, v{vG}, 3, s{sT1}""".split("\n")
    else:
        k = L.index("XSADDR")
        L[k:k+1] = f"""s_lshl_b32 s{sT1}, s{sW}, 5
s_add_u32 s{sT0}, s{sT0}, s{sT1}
v_lshl_add_u32 v{aXS}, v{vG}, 3, s{sT0}
v_lshl_add_u32 v{aXS}, v{vN}, 13, v{aXS}""".split("\n")
    A("s_branch L_sud\nL_sub:")
    A(f"v_add_u32 v{t+11}, 256, v{vL}\nv_min_u32 v{t+11}, 287, v{t+11}")
    x_addr(aB1, 0, sHALF, t+12); x_addr(aB2, t+11, sHALF, t+12)
    A(f"""s_mul_i32 s{sT0}, s{sCG9}, {192*16}
s_lshl_b32 s{sT1}, s{sW}, 8
s_add_u32 s{sT0}, s{sT0}, s{sT1}
s_lshl_b32 s{sT1}, s{sHALF}, 2
s_add_u32 s{sT0}, s{sT0}, s{sT1}
s_add_u32 s{sT0}, s{sT0}, {HPo}
v_lshl_add_u32 v{aBD}, v{vN}, 4, s{sT0}
v_and_b32 v{t+8}, 1, v{vG}
v_lshl_add_u32 v{aBD}, v{t+8}, 11, v{aBD}
v_lshrrev_b32 v{t+8}, 1, v{vG}
v_lshl_add_u32 v{aBD}, v{t+8}, 10, v{aBD}
v_add_u32 v{vS1+1}, {S1o - HPo}, v{aBD}
s_lshl_b32 s{sT0}, s{sHALF}, 5
s_lshl_b32 s{sT1}, s{sW}, 3
s_add_u32 s{sT0}, s{sT0}, s{sT1}
s_add_u32 s{sT0}, s{sT0}, {HSo}
v_lshl_add_u32 v{t+8}, v{vN}, 2, s{sT0}
v_cndmask_b32 v{aBD}, v{aBD}, v{t+8}, {sr(mROW3,2)}
s_mov_b32 s{mLN}, -1
s_mov_b32 s{mLN+1}, 0xffff
s_cmp_eq_u32 s{sCG9}, 0
s_cselect_b32 s{mLN+1}, 0x3ffff, s{mLN+1}""")
    traddr_std(t+8, LR); traddr_tail(t+10, LR)
    A("L_sud:")
    A(f"s_mov_b32 s{sCNT}, 0\ns_waitcnt vmcnt({16 - max(NV1, 8)})\ns_barrier")
    for ks in range(4):
        for tau in range(2):
            for h in range(2): A(vtr(ks, tau, h))
    b_ = gv + 4
    A("L_rdy_chk:")
    for r in range(4): A(f"v_xor_b32 v{b_+r}, s{sE1}, v{gv+r}")
    A(f"v_or_b32 v{t+4}, v{b_}, v{b_+1}\nv_or3_b32 v{t+4}, v{t+4}, v{b_+2}, v{b_+3}\nv_cmp_lt_u32 vcc, 7, v{t+4}\ns_cbranch_vccz L_rdy_ok")
    A(f"s_add_u32 s{sCNT}, s{sCNT}, 1\ns_cmp_ge_u32 s{sCNT}, {OPT['tmo']}\ns_cbranch_scc1 L_end\ns_sleep 16\n{gload}\ns_waitcnt vmcnt(0)\ns_branch L_rdy_chk\nL_rdy_ok:")
    for r in range(4): A(f"v_xor_b32 v{b_+r}, s{sXCC}, v{b_+r}")
    A(f"""v_or_b32 v{t+4}, v{b_}, v{b_+1}
v_or3_b32 v{t+4}, v{t+4}, v{b_+2}, v{b_+3}
v_cmp_ne_u32 vcc, 0, v{t+4}
s_lshl_b32 s{sT1}, s{sX}, 3
s_lshr_b64 {sr(sT2,2)}, vcc, s{sT1}
s_and_b32 s{sT2}, s{sT2}, 0xff
s_cselect_b32 s{sMODE}, 0, {OPT['fast']}""")
    A(f"s_cmp_lg_u32 s{sMODE}, 0\ns_cbranch_scc1 L_nore\ns_mov_b64 exec, 0xffff\n{q0store} sc1\ns_mov_b64 exec, -1\ns_waitcnt vmcnt(0)\nL_nore:")
    NX = 1 if OPT["touch"] else 0
    if NX: A(f"""s_mul_i32 s{sT1}, s{sJ}, {REST}
s_lshl_b32 s{sT2}, s{sW}, 8
s_add_u32 s{sT1}, s{sT1}, s{sT2}
s_sub_u32 s{sT1}, s{sT1}, 256
v_lshl_add_u32 v{ra_}, v{vL}, 7, s{sT1}
s_lshl_b32 s{sT1}, s{sJ}, 9
s_lshl_b32 s{sT2}, s{sW}, 7
s_add_u32 s{sT1}, s{sT1}, s{sT2}
s_add_u32 s{sT1}, s{sT1}, {OPo}
s_lshl_b32 s{sT2}, s{sJ}, 6
s_add_u32 s{sT2}, s{sT2}, {MLo}
v_writelane_b32 v{ra_}, s{sT1}, 0
v_writelane_b32 v{ra_}, s{sT2}, 1
s_mov_b64 exec, 15
buffer_load_dword v8, v{ra_}, {WS}, s{sIB} offen sc1
s_mov_b64 exec, -1""")
    pub(f"buffer_store_dword v{vCS}, v{aQD}, {WS}, s{sIB} offen", "0xffff")
    A(f"v_lshlrev_b32 v{vR}, 16, v{vR+2}\nv_and_b32 v{vR+1}, 0xffff0000, v{vR+2}\nv_lshlrev_b32 v{vR+2}, 16, v{vR+3}\nv_and_b32 v{vR+3}, 0xffff0000, v{vR+3}")
    for r in range(4): A(f"v_mul_f32 v{vR+r}, 0x3b800000, v{vR+r}")
    def wo_regs(a_):
        for kk in range(8):
            for h in range(2): A(f"ds_read_b64_tr_b16 {ar(cWA+4*kk+2*h,2)}, v{a_} offset:{kk*4096+h*256}")
    if BEH:
        A(f"v_mov_b32 v{vQ0}, v{t+8}")
        role_dma("L_w1_issued")
    else:
        A(f"s_cmp_eq_u32 s{sROLE}, 1\ns_cbranch_scc1 L_trb\ns_cmp_eq_u32 s{sROLE}, 2\ns_cbranch_scc1 L_trf")
        wo_regs(t+8)
        A("L_trf:\ns_branch L_trd\nL_trb:")
        if NB1 == 15: w1_regs()
        A(f"L_trd:\ns_waitcnt vmcnt({NX + 1})")
    pv_head()
    stamp(5)
    vq = [vtr(ks, tau, h) for ks in range(4, 8) for tau in range(2) for h in range(2)]
    side = pv_side + pv_tail; n_after = 0
    for ks in range(8):
        A(f"s_waitcnt lgkmcnt({min(15, 7 - ks + n_after) if ks < 4 else (7 - ks)*4})")
        for tau in range(2):
            A(pv_mfma(ks, tau))
            if vq: A(vq.pop(0)); A(vq.pop(0)); n_after += 2
            else:
                for _ in range(2):
                    if side: A(side.pop(0))
    for x in side: A(x)
    pv_finish()
    stamp(6)
    A(f"s_cmp_lg_u32 s{sROLE}, 0\ns_cbranch_scc1 L_first")
    if BEH:
        A("s_waitcnt vmcnt(1)\ns_barrier")
        wo_regs(vQ0)
    A("s_branch L_wo_go")

A("s_waitcnt vmcnt(1)")
recheck(resload2, range(gRES, gRES+4), u)
A(mfma(vr(vR,4), vr(vSEL,4), vr(gRES,4), "0"))
A("L_wo_go:")
poll(f"""buffer_load_dwordx4 {vr(gO,4)}, v{aO1}, {WS}, s{sI} offen sc1
buffer_load_dwordx4 {vr(gO+4,4)}, v{aO1}, {WS}, s{sI} offen offset:1024 sc1
buffer_load_dwordx4 {vr(gML,4)}, v{aML}, {WS}, s{sI} offen sc1""", range(gO, gO+12), u, None, "",
     f"""v_max_u32 v{u}, v{gO}, v{gO+1}
v_max3_u32 v{u}, v{u}, v{gO+2}, v{gO+3}
ds_write_b128 v{aOW}, {vr(gO,4)}
v_max3_u32 v{u}, v{u}, v{gO+4}, v{gO+5}
v_max3_u32 v{u}, v{u}, v{gO+6}, v{gO+7}
ds_write_b128 v{aOW}, {vr(gO+4,4)} offset:{2*544}
v_max3_u32 v{u}, v{u}, v{gML}, v{gML+1}
v_max3_u32 v{u}, v{u}, v{gML+2}, v{gML+3}
v_cmp_eq_u32 vcc, -1, v{u}""")
stamp(7); FS("wo")
ls, mm, m2, M_ = u, u + 1, u + 2, u + 3
A(f"""v_cndmask_b32 v{mm}, v{gML}, v{gML+1}, {sr(mODDR,2)}
v_cndmask_b32 v{m2}, v{gML}, v{gML+1}, {sr(mODDR,2)}
v_add_f32 v{ls}, v{gML}, v{gML+1}
v_add_f32 v{M_}, v{gML+2}, v{gML+3}
v_permlane32_swap_b32 v{mm}, v{m2}
v_add_f32 v{ls}, v{ls}, v{M_}
s_nop 0""")
A(dpp("v_max_f32", M_, m2, ROWRED[0]))
for p in ROWRED[1:]: A("s_nop 1\n" + dpp("v_max_f32", M_, M_, p))
A(f"v_sub_f32 v{m2}, v{m2}, v{M_}\nv_exp_f32 v{m2}, v{m2}")
FS("wo")
A("s_waitcnt lgkmcnt(0)\ns_barrier")
FS("wo")
fo, wacc = t + 28, u + 8
for kk in range(8): A(f"ds_read_b128 {vr(fo+4*kk,4)}, v{aOR} offset:{kk*64}")
def hint_send(imm): pub(f"buffer_store_dword v{vL}, v{aHS}, {WS}, s{sI} offen offset:{imm}", sr(mW0,2))
if OPT["h3pos"] == 0: hint_send(0)
w0, w1_ = m2, mm
A(f"v_mul_f32 v{ls}, v{ls}, v{m2}\ns_nop 1\n{dpp('v_add_f32', ls, ls, ROWRED[0])}\ns_nop 1\n{dpp('v_add_f32', ls, ls, ROWRED[1])}")
FS("wo")
side = [dpp("v_add_f32", ls, ls, ROWRED[2]), dpp("v_add_f32", ls, ls, ROWRED[3]), f"v_rcp_f32 v{ls}, v{ls}",
        f"v_mul_f32 v{w0}, v{m2}, v{ls}\nv_mov_b32 v{M_}, v{w0}", f"v_permlane32_swap_b32 v{w0}, v{M_}\nv_mov_b32 v{w1_}, v{w0}", f"v_permlane16_swap_b32 v{w0}, v{w1_}"]
wom = [f"s_waitcnt lgkmcnt({7-kk})\n" + mfma(vr(wacc+4*(kk >> 2),4), ar(cWA+4*kk,4), vr(fo+4*kk,4), "0" if kk % 4 == 0 else vr(wacc+4*(kk >> 2),4)) for kk in range(8)]
weave(wom, side, 1)
FS("wo")
if OPT["h3pos"] == 1: hint_send(0)
tt = u + 4
for r in range(4): A(f"v_fma_f32 v{tt+r}, v{w0}, v{wacc+r}, v{vR+r}")
if OPT["h3pos"] != 1: A("s_nop 3")
for r in range(4): A(f"v_fmac_f32 v{tt+r}, v{w1_}, v{wacc+4+r}")
rowred("v_add_f32", [tt, tt+1, tt+2, tt+3])
XM = 0x00030003 if OPT["copies"] == 2 else 0x00010001
def x_publish(src, xoff, hint=None):
    if not OPT["one"]:
        A(f"s_add_u32 s{sT0}, s{sPASS}, {xoff}\nv_cvt_pk_bf16_f32 v{src}, v{src}, v{src+1}\ns_mov_b32 exec_lo, {XM:#x}\ns_mov_b32 exec_hi, {XM:#x}\nv_cvt_pk_bf16_f32 v{src+1}, v{src+2}, v{src+3}")
        A(f"buffer_store_dwordx2 {vr(src,2)}, v{aXS}, {WS}, s{sT0} offen sc1\ns_mov_b64 exec, -1")
        return
    skip = uid("xp")
    A(f"v_cvt_pk_bf16_f32 v{src}, v{src}, v{src+1}\nv_cvt_pk_bf16_f32 v{src+1}, v{src+2}, v{src+3}\nds_write_b64 v{aLW}, {vr(src,2)}\ns_add_u32 s{sT0}, s{sPASS}, {xoff}")
    if hint is not None: hint_send(hint)
    A(f"s_cmp_lg_u32 s{sW}, 0\ns_waitcnt lgkmcnt(0)\ns_barrier\ns_cbranch_scc1 {skip}\nds_read_b128 {vr(src,4)}, v{aLR}\ns_mov_b64 exec, {0xffff if OPT['copies'] == 2 else 0xff:#x}\ns_waitcnt lgkmcnt(0)")
    A(f"buffer_store_dwordx4 {vr(src,4)}, v{aXS}, {WS}, s{sT0} offen sc1\ns_mov_b64 exec, -1\n{skip}:")
FS("wo")
x_publish(tt, X1O, 0 if OPT['h3pos'] == 4 else None)
FS("wo")
if OPT["h3pos"] == 2: hint_send(0)
stamp(8)
A(f"s_cmp_eq_u32 s{sPASS}, 0\ns_cbranch_scc1 L_w2_first\ns_add_u32 s{sXO}, s{sPASS}, s{sCOPY}")
hloads = f"buffer_load_dwordx4 {vr(gH,4)}, v{aH1}, {WS}, s{sI} offen sc1\nbuffer_load_dwordx4 {vr(gH+4,4)}, v{aH2}, {WS}, s{sI} offen sc1"
poll(hloads, range(gH, gH+8), u)
A("L_w2_ok:")
stamp(9); FS("w2")
resload1 = f"buffer_load_dwordx4 {vr(gX1,4)}, v{aRES}, {WS}, s{sXO} offen sc1"
y0, y1, z1, z2, hmu, hrs = u, u + 4, u + 8, u + 9, u + 10, u + 11
A(f"""v_add_f32 v{z1}, v{gH+4}, v{gH+6}
v_add_f32 v{z2}, v{gH+5}, v{gH+7}
{resload1}
v_add_f32 v{y0}, v{gH}, v{gH+1}
{dpp("v_add_f32", hmu, z1, ROWRED[0])}
{dpp("v_add_f32", hrs, z2, ROWRED[0])}
v_add_f32 v{y0+1}, v{gH+2}, v{gH+3}
{dpp("v_add_f32", hmu, hmu, ROWRED[1])}
{dpp("v_add_f32", hrs, hrs, ROWRED[1])}
v_add_f32 v{y1}, v{z1}, v{z2}
{dpp("v_add_f32", hmu, hmu, ROWRED[2])}
{dpp("v_add_f32", hrs, hrs, ROWRED[2])}
v_add_f32 v{y0}, v{y0}, v{y0+1}
v_mul_f32_dpp v{hmu}, v{hmu}, v{vJUNK} row_newbcast:15 {DPPM}
v_mul_f32_dpp v{hrs}, v{hrs}, v{vJUNK} row_newbcast:15 {DPPM}
v_fma_f32 v{hrs}, -v{hmu}, v{hmu}, v{hrs}
v_fma_f32 v{y0}, -v{hmu}, v{vS1}, v{y0}
v_max_f32 v{hrs}, 0, v{hrs}
v_add_f32 v{hrs}, 0x3727c5ac, v{hrs}
v_rsq_f32 v{hrs}, v{hrs}
v_fma_f32 v{y1}, -v{hmu}, v{vS1+1}, v{y1}
s_mov_b32 s{sT0}, {-math.log2(math.e):.9e}
v_fma_f32 v{y0}, v{y0}, v{hrs}, v{vB}
v_fma_f32 v{y1}, v{y1}, v{hrs}, v{vB+1}""")
FS("w2")
e0, e1 = z1, z2
for y in (y0, y1): A(f"v_mul_f32 v{y+1}, s{sT0}, abs(v{y})")
for y in (y0, y1): A(f"v_exp_f32 v{y+1}, v{y+1}")
A(f"v_cmp_le_f32 vcc, 0, v{y0}\nv_cmp_le_f32 {sr(sT2,2)}, 0, v{y1}")
for y in (y0, y1): A(f"v_fma_f32 v{y+2}, v{y+1}, 2.0, 1.0\nv_add_f32 v{y+3}, 2.0, v{y+1}")
for y, e in ((y0, e0), (y1, e1)): A(f"v_mul_f32 v{y+3}, v{y+3}, v{y+1}\nv_mul_f32 v{e}, v{y+1}, v{y+1}")
A(f"v_cndmask_b32 v{y0+2}, v{y0+3}, v{y0+2}, vcc\nv_cndmask_b32 v{y1+2}, v{y1+3}, v{y1+2}, {sr(sT2,2)}")
A(f"v_cndmask_b32 v{e0}, 1.0, v{e0}, vcc\nv_cndmask_b32 v{e1}, 1.0, v{e1}, {sr(sT2,2)}")
for y, e in ((y0, e0), (y1, e1)): A(f"v_fma_f32 v{e}, v{e}, 2.0, v{y+2}")
for y, e in ((y0, e0), (y1, e1)): A(f"v_rcp_f32 v{e}, v{e}")
for y, e in ((y0, e0), (y1, e1)): A(f"v_mul_f32 v{y}, v{y}, v{y+2}")
for y, e in ((y0, e0), (y1, e1)): A(f"v_mul_f32 v{y}, v{y}, v{e}")
A(f"v_cvt_pk_bf16_f32 v{y0}, v{y0}, v{y1}\nds_write_b16 v{aHW}, v{y0}\nds_write_b16_d16_hi v{aHW2}, v{y0}")
FS("w2")
A("s_waitcnt lgkmcnt(0)\ns_barrier")
FS("w2")
fh, w2acc = t + 28, u + 4
for ks in range(9): A(f"ds_read_b128 {vr(fh+4*ks,4)}, v{aHR} offset:{ks*64}")
A("s_waitcnt vmcnt(0)")
recheck(resload1, range(gX1, gX1+4), u+1)
A(mfma(vr(vR,4), vr(vSEL,4), vr(gX1,4), "0"))
FS("w2")
if OPT["h5pos"] == 0: hint_send(128)
side = [dpp("v_add_f32", vR+r, vR+r, p) for p in ROWRED for r in range(4)]
for ks in range(9):
    A(f"s_waitcnt lgkmcnt({8-ks})")
    A(mfma(vr(w2acc,4), ar(cW2+4*ks,4), vr(fh+4*ks,4), "0" if ks == 0 else vr(w2acc,4)))
    if ks >= 3:
        for _ in range(2): A(side.pop(0))
    if ks == 4 and OPT["h5pos"] == 1: hint_send(128)
FS("w2")
for x in side: A(x)
if OPT["h5pos"] == 3: hint_send(128)
else: A("s_nop 1")
for r in range(4): A(f"v_add_f32 v{w2acc+r}, v{w2acc+r}, v{vR+r}")
x_publish(w2acc, X2O, 128 if OPT['h5pos'] == 4 else None)
FS("w2")
if OPT["h5pos"] == 2: hint_send(128)
stamp(10)
A(f"s_cmp_eq_u32 s{sPASS}, 0\ns_cbranch_scc1 L_a_first")
def final(on_b):
    if on_b:
        A(f"""s_sub_u32 s{sCG9}, s{sJ}, 18
s_lshl_b32 s{sT0}, s{sX}, 4
s_add_u32 s{sT0}, s{sT0}, s{sCG9}
s_cmp_ge_u32 s{sT0}, 9
s_cbranch_scc1 L_done
s_and_b32 s{sT0}, s{sW}, 1
s_lshl_b32 s{sT0}, s{sT0}, 1
v_lshrrev_b32 v{t}, 3, v{vN}
v_add_u32 v{t}, s{sT0}, v{t}
v_and_b32 v{t+1}, 1, v{vN}
v_lshlrev_b32 v{t+1}, 4, v{t+1}
v_mov_b32 v{t+2}, 0x3f80
v_lshlrev_b32 v{t+1}, v{t+1}, v{t+2}
v_cmp_eq_u32 vcc, v{t}, v{vG}
v_bfe_u32 v{t+2}, v{vN}, 1, 2
v_lshrrev_b32 v{aRES}, 2, v{vN}
v_cndmask_b32 v{t+1}, 0, v{t+1}, vcc""")
        for r in range(4): A(f"v_cmp_eq_u32 vcc, {r}, v{t+2}\ns_nop 1\nv_cndmask_b32 v{vSEL+r}, 0, v{t+1}, vcc")
        A(f"""v_lshlrev_b32 v{aRES}, 14, v{aRES}
v_and_b32 v{t}, 3, v{vN}
v_lshl_add_u32 v{aRES}, v{t}, 11, v{aRES}
v_lshl_add_u32 v{aRES}, v{vG}, 4, v{aRES}
s_lshl_b32 s{sT0}, s{sCG9}, 7
s_lshr_b32 s{sT1}, s{sW}, 1
s_lshl_b32 s{sT1}, s{sT1}, 6
s_add_u32 s{sT0}, s{sT0}, s{sT1}
v_add_u32 v{aRES}, s{sT0}, v{aRES}""")
    else: A(f"s_or_b32 s{sT0}, s{sX}, s{sHALF}\ns_cmp_lg_u32 s{sT0}, 0\ns_cbranch_scc1 L_done")
    A(f"""s_lshl_b32 s{sT0}, s{sCG9}, 7
s_lshl_b32 s{sT1}, s{sW}, 5
s_add_u32 s{sT0}, s{sT0}, s{sT1}
v_lshl_add_u32 v{aXS}, v{vG}, 3, s{sT0}
s_add_u32 s{sXO}, s{sCOPY}, {PS + X2O}
s_mov_b32 s{sT2}, 0x00010001
s_mov_b32 s{sT3}, 0x00010001""")
    if on_b and OPT["outw"]:
        A(f"s_mov_b64 exec, {sr(sT2,2)}\nbuffer_store_dwordx2 {vr(FA+16,2)}, v{aXS}, {sr(rOUT,4)}, 0 offen\ns_mov_b64 exec, -1")
    hint_wait(128, 'fin')
    poll(resload2, range(gRES, gRES+4), u, 1, mfma(vr(vR,4), vr(vSEL,4), vr(gRES,4), "0"))
    A("s_nop 3")
    rowred("v_add_f32", [vR, vR+1, vR+2, vR+3])
    if not on_b:
        for r in range(4): A(f"v_mul_f32 v{vR+r}, 0x41800000, v{vR+r}")
    A(f"v_cvt_pk_bf16_f32 v{vR}, v{vR}, v{vR+1}\ns_mov_b64 exec, {sr(sT2,2)}\nv_cvt_pk_bf16_f32 v{vR+1}, v{vR+2}, v{vR+3}")
    if OPT["echo"] >= 0:
        A("s_mov_b64 exec, -1"); stamp(11)
        A(f"s_nop 1\nv_readlane_b32 s3, v9, {OPT['echo']}\nv_readlane_b32 s84, v9, 0\ns_nop 3\ns_sub_u32 s3, s3, s84\ns_min_u32 s3, s3, 20000\ns_add_u32 s3, s3, s{sST}")
        A(f"L_echo:\ns_memrealtime s[84:85]\ns_waitcnt lgkmcnt(0)\ns_sub_u32 s84, s84, s3\ns_cmp_lt_i32 s84, 0\ns_cbranch_scc1 L_echo\ns_mov_b64 exec, {sr(sT2,2)}")
    A(f"buffer_store_dwordx2 {vr(vR,2)}, v{aXS}, {sr(rOUT,4)}, 0 offen\ns_mov_b64 exec, -1")
if not OPT["finb"]: final(False)
A("s_branch L_done")

A(f"L_roleBF:\ns_cmp_lg_u32 s{sROLE}, 1\ns_cbranch_scc1 L_done\nL_w1_go:\ns_add_u32 s{sXO}, s{sPASS}, s{sCOPY}")
x_gather(aB1, aB2, "w1", 0)
stamp(8)
stat_reads(); frag_reads()
for k, m in enumerate(stat_mfma): A(f"s_waitcnt lgkmcnt({7-k})\n{m}")
FS("w1")
weave(main_mfma(3, cWA, 4), stat_valu + [f"v_cndmask_b32 v{s1}, v{s1}, v{s2}, {sr(mODDL,2)}"], 2, 4)
FS("w1")
a, b, c = ACC, ACC + 4, ACC + 8
A(f"""s_nop 3
v_add_f32 v{a}, v{a}, v{a+1}
v_add_f32 v{a+2}, v{a+2}, v{a+3}
v_add_f32 v{b}, v{b}, v{b+1}
v_add_f32 v{b+2}, v{b+2}, v{b+3}
v_add_f32 v{c}, v{c}, v{c+1}
v_add_f32 v{c+2}, v{c+2}, v{c+3}
v_add_f32 v{a}, v{a}, v{a+2}
v_add_f32 v{b}, v{b}, v{b+2}
v_add_f32 v{c+1}, v{c}, v{c+2}
v_add_f32 v{c}, v{c}, v{c+2}
v_permlane32_swap_b32 v{a}, v{b}
v_add_f32 v{a}, v{a}, v{b}
v_permlane32_swap_b32 v{c}, v{c+1}
v_add_f32 v{c}, v{c}, v{c+1}
s_nop 1
v_permlane16_swap_b32 v{a}, v{c}
v_add_f32 v{a}, v{a}, v{c}
v_cndmask_b32 v{a}, v{a}, v{s1}, {sr(mROW3,2)}""")
FS("w1")
pub(f"buffer_store_dword v{a}, v{aBD}, {WS}, s{sI} offen", sr(mLN,2))
FS("w1"); stamp(9)
A(f"s_cmp_eq_u32 s{sPASS}, 0\ns_cbranch_scc1 L_bf_first")
if OPT["finb"]: final(True)

A("L_done:")
if PROF:
    stamp(11)
    A(f"s_cmp_lg_u32 s{sW}, 0\ns_cbranch_scc1 L_end\ns_lshl_b32 s{sT0}, s2, 7\ns_add_u32 s{sT0}, s{sT0}, {STAMP}")
    A(f"s_lshr_b32 s3, s{sCOPY}, 12\ns_or_b32 s3, s3, s{sMODE}\nv_writelane_b32 v9, s3, 31\ns_memtime s[100:101]\ns_waitcnt lgkmcnt(0)\ns_sub_u32 s3, s100, s88\nv_writelane_b32 v9, s3, 30\nv_lshlrev_b32 v2, 2, v{vL}\ns_mov_b32 exec_hi, 0")
    for k in range(fcount[0]): A(f"v_writelane_b32 v9, s{FREG[k]}, {1+k}")
    A(f"buffer_store_dword v9, v2, {WS}, s{sT0} offen")
A("L_end:\ns_endpgm")

def pick_issue():
    A(f"v_mov_b32 v{u+15}, {POLo}\nbuffer_load_dword v{u+15}, v{u+15}, {WS}, s{sIB} offen sc1")
def pick_take():
    if OPT["copies"] == 2: A(f"v_readfirstlane_b32 s85, v{u+15}\ns_lshr_b32 s{sT1}, s{sXCC}, 2\ns_nop 0\ns_xor_b32 s{sT1}, s{sT1}, s85\ns_lshl_b32 s{sT1}, s{sT1}, 13\ns_cmp_lt_u32 s85, 2\ns_cselect_b32 s{sCOPY}, s{sT1}, s{sCOPY}")
def late_fill():
    for r in range(4): A(f"v_mov_b32 v{t+12+r}, -1")
    A(f"""s_sub_u32 s{sT0}, s{sJ}, 30
s_mul_i32 s{sT1}, s{sT0}, {23*1024}
s_lshl_b32 s{sT2}, s{sW}, 10
s_add_u32 s{sT1}, s{sT1}, s{sT2}
v_lshl_add_u32 v{t+2}, v{vL}, 4, s{sT1}
s_lshl_b32 s{sT1}, s{sX}, 1
s_add_u32 s{sT1}, s{sT1}, s{sT0}
s_lshl_b32 s{sT4}, s{sT1}, 2
s_lshl_b32 s{sT1}, s{sT1}, 13
s_add_u32 s{sT1}, s{sT1}, s{sT2}
s_add_u32 s{sT1}, s{sT1}, {PS}
v_lshl_add_u32 v{t+3}, v{vL}, 4, s{sT1}
s_add_u32 s{sT0}, s{sIB}, {PS}""")
    for k in range(6):
        if k == 5: A(f"s_cmp_eq_u32 s{sW}, 3\ns_cbranch_scc1 L_lf5")
        A(f"buffer_store_dwordx4 {vr(t+12,4)}, v{t+2}, {WS}, s{sT0} offen sc1\ns_add_u32 s{sT0}, s{sT0}, 4096")
    A("L_lf5:")
    A(f"s_and_b32 s{sT0}, s{sW}, 1\ns_cselect_b64 exec, 0xff, -1\ns_movk_i32 s{sT0}, 4096")
    A(f"buffer_store_dwordx4 {vr(t+12,4)}, v{t+3}, {WS}, 0 offen sc1\nbuffer_store_dwordx4 {vr(t+12,4)}, v{t+3}, {WS}, s{sT0} offen sc1\ns_mov_b64 exec, -1")
    A(f"""s_add_u32 s{sT4}, s{sT4}, {RDY2}
v_lshl_add_u32 v{t+3}, v{vL}, 13, s{sT4}
v_mov_b32 v{t+4}, s{sE1}
s_sub_u32 s{sT0}, s{sJ}, 30
s_mul_i32 s{sT1}, s{sT0}, {23*1024}
s_mul_i32 s{sT2}, s{sW}, {46*128}
s_add_u32 s{sT1}, s{sT1}, s{sT2}
v_lshl_add_u32 v{t+2}, v{vL}, 7, s{sT1}
s_add_u32 s{sT0}, s{sIB}, {PS}
s_waitcnt vmcnt(0)
s_barrier
s_cmp_eq_u32 s{sW}, 0
s_cselect_b64 exec, 3, 0
buffer_store_dword v{t+4}, v{t+3}, {WS}, 0 offen sc1
s_mov_b32 exec_lo, -1
s_mov_b32 exec_hi, {0x3fff if OPT['touch'] else 0:#x}
buffer_load_dword v8, v{t+2}, {WS}, s{sT0} offen sc1
s_mov_b64 exec, -1""")
csload = f"buffer_load_dwordx4 {vr(t+28,4)}, v{aQ1}, {WS}, s{sIB} offen sc1"
def colsum_rows():
    A(f"""v_add_f32 v{u}, v{t+28}, v{t+29}
v_add_f32 v{u+1}, v{t+30}, v{t+31}
v_add_f32 v{u}, v{u}, v{u+1}
v_cvt_pk_bf16_f32 v{u+1}, v{u}, v{u}
v_lshlrev_b32 v{u+2}, 16, v{u+1}
v_sub_f32 v{u}, v{u}, v{u+2}
v_cvt_pk_bf16_f32 v{u}, v{u}, v{u}
ds_write_b16 v{aQW}, v{u+1} offset:1600
ds_write_b16 v{aQW}, v{u} offset:2400""")
with Tail():
    A(f"L_first:\ns_cmp_lg_u32 s{sROLE}, 1\ns_cbranch_scc1 L_firstF")
    if NB1 < 15 or OPT["beh"]:
        if NB1 < 15: w1_dma(NB1, 15, t, "L_w1_rest")
        A("L_w1_rest:")
        traddr_std(t+8, LR); traddr_tail(t+10, LR)
        A("s_waitcnt vmcnt(3)")
        pick_issue()
        A("s_waitcnt vmcnt(0)\ns_barrier")
        stamp(14)
        w1_regs()
    else:
        pick_issue(); A("s_waitcnt vmcnt(0)")
    pick_take()
    A(f"s_mov_b32 s{sHOOK}, 1")
    stamp(15)
    A("s_branch L_w1_go")
    A(f"""L_w2_first:
s_mul_i32 s{sT0}, s{sX}, 1152
s_mul_i32 s{sT1}, s{sHALF}, 576
s_add_u32 s{sT0}, s{sT0}, s{sT1}
s_mul_i32 s{sT1}, s{sW}, 144
s_add_u32 s{sT0}, s{sT0}, s{sT1}
v_lshl_add_u32 v{t}, v{vL}, 1, s{sT0}
v_and_b32 v{t+1}, 7, v{vL}
v_lshl_add_u32 v{t+1}, v{t+1}, 1, s{sT0}""")
    pick_issue()
    A(f"""{csload}
buffer_load_ushort v{vB}, v{t}, {sr(rB1,4)}, 0 offen
buffer_load_ushort v{vB+1}, v{t+1}, {sr(rB1,4)}, 0 offen offset:128""")
    if NW2 < 9: w2_dma(NW2, 9, t)
    A(f"v_add_u32 v{t+2}, {S1o - HPo}, v{aH1}\nv_sub_u32 v{t+3}, v{t+2}, v{aH1}\nv_add_u32 v{t+3}, v{t+3}, v{aH2}\nv_cmp_gt_u32 vcc, 8, v{vN}\ns_nop 1\nv_cndmask_b32 v{t+3}, v{t+2}, v{t+3}, vcc")
    traddr_std(t, LW2)
    A(f"s_waitcnt vmcnt({9 - NW2 + 2})")
    pick_take()
    recheck(csload, range(t+28, t+32), u)
    colsum_rows()
    A(f"s_add_u32 s{sXO}, s{sPASS}, s{sCOPY}\ns_waitcnt vmcnt(0)\ns_barrier")
    stamp(14)
    A(f"v_mov_b32 v{vQ0}, {POLo}\nbuffer_load_dword v{vQ0}, v{vQ0}, {WS}, s{sIB} offen sc1")
    for ks in range(9):
        for h in range(2): A(f"ds_read_b64_tr_b16 {ar(cW2+4*ks+2*h,2)}, v{t} offset:{ks*4096+h*512}")
    A(f"v_lshlrev_b32 v{vB}, 16, v{vB}\nv_lshlrev_b32 v{vB+1}, 16, v{vB+1}")
    stamp(15)
    g1 = t + 28
    poll(hloads + f"\nbuffer_load_dwordx4 {vr(g1,4)}, v{t+2}, {WS}, s{sI} offen sc1\nbuffer_load_dwordx4 {vr(g1+4,4)}, v{t+3}, {WS}, s{sI} offen sc1", list(range(gH, gH+8)) + list(range(g1, g1+8)), u, 1)
    for k in range(2): A(f"v_add_f32 v{g1+4*k}, v{g1+4*k}, v{g1+4*k+1}\nv_add_f32 v{g1+4*k+2}, v{g1+4*k+2}, v{g1+4*k+3}")
    for k in range(2): A(f"v_add_f32 v{vS1+k}, v{g1+4*k}, v{g1+4*k+2}")
    A(f"s_branch L_w2_ok\nL_a_first:\nv_mov_b32 v{u+15}, v{vQ0}\ns_nop 0")
    pick_take()
    A("s_branch L_q")
    A("L_firstF:")
    probe()
    A("s_waitcnt lgkmcnt(0)\ns_barrier")
    probe_done()
    late_fill()
    A(f"v_mov_b32 v{t}, {EPO}\nv_mov_b32 v{t+1}, s{sE1}\ns_lshl_b32 s{sT0}, s2, 2\ns_add_u32 s{sT0}, s{sT0}, s{sW}\ns_cmp_eq_u32 s{sT0}, 1020\ns_cselect_b64 exec, 1, 0")
    A(f"buffer_store_dword v{t+1}, v{t}, {WS}, 0 offen sc1\ns_mov_b64 exec, -1")
    A(f"L_bf_first:\nv_mov_b32 v{aRES}, 0")
    pick_issue()
    poll(csload, range(t+28, t+32), u, 1)
    colsum_rows()
    pick_take()
    A("s_branch L_q")

_L = L; L = []; frag_reads(); _L[FRAG0:FRAG0+1] = L; L = _L
body = L + TAIL
if OPT["walk"]:
    chains = [["L_q0_pub", "L_rdy", "L_p2x", "L_sub", "L_first", "L_w2_first", "L_a_first", "L_firstF"], ["L_q", "L_xo2", "L_roleBF", "XO2", "L_trb", "HK"]]
    second_xo = [l for l in body if l.startswith("L_xo")][1][:-1]
    first_xo = [l for l in body if l.startswith("L_xo")][0][:-1]
    rb = [l for l in body if l.startswith("L_rb")][0][:-1]
    for c, names in enumerate(chains):
        names = [{"XO2": second_xo, "L_xo2": first_xo, "L_p2x": rb}.get(n, n) for n in names]
        names = sum([[l[:-1] for l in body if l.startswith("L_hk")] if n == "HK" else [n] for n in names], [])
        names = [n for n in names if n + ":" in body]
        for k, n in enumerate(names):
            i = body.index(n + ":")
            j = i - 1
            while body[j].endswith(":"): j -= 1
            assert body[j].startswith(("s_branch", "s_endpgm")), (n, body[j])
            nxt = f"L_walk{c}_{k+1}" if k + 1 < len(names) else "L_walked"
            body[j+1:j+1] = [f"L_walk{c}_{k}:", f"s_branch {nxt}"]
DEFS = []
if OPT["shift"]: body = ["s_nop 0"] * OPT["shift"] + body
if OPT["al"]:
    sys.path.insert(0, "gen")
    import align
    body, DEFS, miss = align.align(body, "\n".join(out), "")
    print(f"align: {miss} wide instructions left off an 8-byte boundary", file=sys.stderr)
txt = "\n".join(body)
out.append(txt)
out.append(f""".p2align 8
.fill 1024, 4, 0xbf800000
s_endpgm
{chr(10).join(DEFS)}
.section .rodata,"a"
.p2align 6
.amdhsa_kernel {NAME}_kernel
  .amdhsa_next_free_vgpr {NVGPR}
  .amdhsa_next_free_sgpr 102
  .amdhsa_accum_offset 256
  .amdhsa_group_segment_fixed_size 0
  .amdhsa_kernarg_size 96
  .amdhsa_user_sgpr_count 2
  .amdhsa_user_sgpr_kernarg_segment_ptr 1
  .amdhsa_system_sgpr_workgroup_id_x 1
  .amdhsa_float_denorm_mode_32 3
.end_amdhsa_kernel""")
print("\n".join(out))
```

```python
import sys, math
OPT = dict(prof=0, fine="", nk1=6, nq=2, nv1=12, nw2=1, npair=2, nb1=6, nkb=2, q0t=0,  kal=0, walk=1, hskip=2, lf=0, h4d=2, finb=1, one=1, pre=4, w2per=2, pvw=1, bko=0, pal=6, po="333333", outw=1, fast=1, copies=2, pol=-1, rot=2, ra=2, rb=0, ldf="nt", pf=1,
           tmo=1 << 17, h3pos=4, h5pos=4, touch=1, depth=2, echo=-1, emul=2, hd="088", xnoclr=0, xnoq0=0, al=0, beh=0, pfj=31, shift=0, pfl=144)
for a in sys.argv[1:]:
    k, v = a.split("=")
    assert k in OPT, k
    OPT[k] = v if k in ("ldf", "fine", "po", "hd") else int(v, 0)
NAME = "interleave_layers__sliding_block_cached__dense_activation_mish__decode"
LDF = "" if OPT["ldf"] == "plain" else OPT["ldf"].replace("+", " ")
PROF = OPT["prof"]

L = []; TAIL = []
def A(s):
    for ln in s.split("\n"):
        ln = ln.strip()
        if ln: L.append(ln)
intail = [0]; npoll = [0]
class Tail:
    def __enter__(self):
        global L
        self.save = L; L = []; intail[0] += 1
    def __exit__(self, *e):
        global L
        TAIL.extend(L); L = self.save; intail[0] -= 1
_uid = [0]
def uid(p):
    _uid[0] += 1
    return f"L_{p}{_uid[0]}"
def vr(a, n=1): return f"v{a}" if n == 1 else f"v[{a}:{a+n-1}]"
def ar(a, n=1): return f"a{a}" if n == 1 else f"a[{a}:{a+n-1}]"
def sr(a, n=1): return f"s{a}" if n == 1 else f"s[{a}:{a+n-1}]"
DPPM = "row_mask:0xf bank_mask:0xf"
ROWRED = ["quad_perm:[1,0,3,2]", "quad_perm:[2,3,0,1]", "row_half_mirror", "row_mirror"]
def dpp(op, d, s, p): return f"{op}_dpp v{d}, v{s}, v{s} {p} {DPPM}"
def mfma(d, a, b, c): return f"v_mfma_f32_16x16x32_bf16 {d}, {a}, {b}, {c}"

PS = 0x100000
X1O, X2O = 0x00000, 0x10000
IB0 = 0x20000
QPo, HPo, S1o, QSo, HSo, H3o, H5o, OPo, MLo = 0x0000, 0x2000, 0x4400, 0x6800, 0x6880, 0x6900, 0x6980, 0x7000, 0xB000
REST = 0x7000 // 32
Q0B, Q0S = 0xA0000, 0x9000
EPO, RDY, RDY2, PROBE = 0x0F0000, 0x1B1000, 0x1B4000, 0x1C0000
STAMP = 0x200000
WSREC = 0x210000 if PROF else 0x200000
LV, LR, LWQ = 0, 65536, 135168
LW2, LOPS = LR + 32768, LWQ
LQ, LP, LM, LH, LMODE, LXS = 153600, 156800, 158080, 158144, 158784, 158848
LXP = LXS + 4608
LDS_BYTES = 163840
sX, sJ, sW, sPASS, sROLE, sMODE, sCOPY, sIB = 4, 5, 6, 7, 8, 9, 10, 11
rK, rV, rWQ, rWA, rW2, rWS, rXI, rB1, rOUT = 12, 16, 20, 24, 28, 32, 36, 40, 44
mATT, mLN = 48, 50
sT0, sT1, sT2, sT3, sT4, sCNT, sI, sXO = 52, 53, 54, 55, 56, 57, 58, 59
mODDR, sRG, sCG, sST = 60, 62, 63, 64
sE1, sQ0, mW0, mODDL, mROW3 = 68, 69, 70, 72, 90
sHALF, sCG9, sROT, sXCC = 96, 97, 98, 99
sHOOK = sROT
WS = sr(rWS, 4)
vL, vN, vG, vONE, vONE3 = 1, 2, 3, 4, 6
vKO, vJUNK, vCS, vC, vMU, vQ0 = 10, 59, 12, 14, 15, 60
vSEL, vR, vB, vS1 = 16, 20, 24, 26
(aX1, aX2, aXW, aXR, aXT, aS1, aS3, aQD, aQS,
 aQ1, aQ2, aQW, aQR, aPW, aMW, aPR, aMR, aOP, aHL,
 aRES, aO1, aML, aOW, aOR, aXS, aHS, aH1, aH2, aHW, aHW2, aHR) = range(28, 59)
aLW, aLR = 63, 13
aB1, aB2, aBD = aO1, aML, aOW
t = 64
vK = 128
gX, gQ, gQS, gRES, gO, gML, gH, gHI, gX1 = 192, 200, 204, 208, 212, 220, 224, 232, 236
u = 240
cV, cWQ, cWA, cW2, cJUNK = 0, 64, 84, 116, 152
NVGPR = 256 + 160

def stamp(i):
    if PROF == 2 and i != 11: return
    if PROF == 3 and i not in (6, 10, 11): return
    if PROF == 4 and i not in (OPT['echo'] & 15, 11): return
    if PROF: A(f"s_memrealtime {sr(sST, 2)}\ns_lshr_b32 s3, s{sPASS}, 16\ns_add_u32 m0, s3, {i}\ns_waitcnt lgkmcnt(0)\nv_writelane_b32 v9, s{sST}, m0")
FREG = [74, 76, 78, 80, 82, 94, 84, 66, 70] if OPT['fine'] == 'pro' else [74, 76, 78, 80, 82, 92, 94, 84, 66]
fcount = [0]
def FS(stage):
    if OPT["fine"] == stage:
        A(f"s_memtime s[{FREG[fcount[0]]}:{FREG[fcount[0]]+1}]"); fcount[0] += 1

def srd(r, lo, hi, nbytes):
    if r != lo: A(f"s_mov_b32 s{r}, s{lo}")
    A(f"s_and_b32 s{r+1}, s{hi}, 0xffff\ns_mov_b32 s{r+2}, {nbytes}\ns_mov_b32 s{r+3}, 0x20000")
def mask64(reg, lo, hi): A(f"s_mov_b32 s{reg}, {lo:#x}\ns_mov_b32 s{reg+1}, {hi:#x}")
def sentinel_test(regs, tmp):
    regs = list(regs)
    if len(regs) == 1:
        A(f"v_cmp_eq_u32 vcc, -1, v{regs[0]}"); return
    if len(regs) % 2 == 0: A(f"v_max_u32 v{tmp}, v{regs[0]}, v{regs[1]}"); k = 2
    else: A(f"v_max3_u32 v{tmp}, v{regs[0]}, v{regs[1]}, v{regs[2]}"); k = 3
    while k < len(regs):
        A(f"v_max3_u32 v{tmp}, v{tmp}, v{regs[k]}, v{regs[k+1]}"); k += 2
    A(f"v_cmp_eq_u32 vcc, -1, v{tmp}")
def filler(n):
    for _ in range(n):
        A("s_nop 7")
def poll(loads, regs, tmp, depth=None, early="", test=None, hook=None):
    depth = depth or OPT["depth"]
    n = sum(1 for ln in loads.split("\n") if ln.strip().startswith("buffer_"))
    top = uid("poll")
    A(f"s_mov_b32 s{sCNT}, 0")
    for _ in range(depth - 1):
        A(loads); filler({2: 3, 3: 2}[depth])
    if OPT["pal"] and not intail[0] and depth > 1:
        k = npoll[0]; npoll[0] += 1
        A(f".p2align {OPT['pal']}")
        po = [int(c, 36) for c in OPT["po"]]
        for _ in range(po[k] if k < len(po) else 0): A("s_nop 0")
    A(f"{top}:")
    A(loads)
    A(f"s_add_u32 s{sCNT}, s{sCNT}, 1\ns_cmp_gt_u32 s{sCNT}, {OPT['tmo']}\ns_cbranch_scc1 L_end")
    if hook:
        hk, after = uid("hk"), uid("ha")
        A(f"s_cmp_lg_u32 s{sHOOK}, 0\ns_cbranch_scc1 {hk}")
        with Tail():
            A(f"{hk}:\ns_mov_b32 s{sHOOK}, 0"); hook(); A(f"s_waitcnt vmcnt(1)\ns_branch {after}")
    A(f"s_waitcnt vmcnt({(depth - 1)*n})")
    if hook: A(f"{after}:")
    assert depth == 1 or not early
    A(early)
    if test: A(test)
    else: sentinel_test(regs, tmp)
    if OPT["bko"] and depth == 1 and not intail[0]:
        bk = uid("bk")
        A(f"s_cbranch_vccnz {bk}")
        with Tail(): A(f"{bk}:\ns_sleep {OPT['bko']}\ns_branch {top}")
    else: A(f"s_cbranch_vccnz {top}")
def recheck(load, regs, tmp):
    retry, top, back = uid("rc"), uid("rct"), uid("rcb")
    sentinel_test(regs, tmp)
    A(f"s_cbranch_vccnz {retry}\n{back}:")
    with Tail():
        A(f"{retry}:\ns_mov_b32 s{sCNT}, 0\n{top}:\n{load}\ns_waitcnt vmcnt(0)")
        sentinel_test(regs, tmp)
        A(f"s_cbranch_vccz {back}\ns_add_u32 s{sCNT}, s{sCNT}, 1\ns_cmp_lt_u32 s{sCNT}, {OPT['tmo']}\ns_cbranch_scc1 {top}\ns_branch L_end")
def pub(store, mask):
    slow, back = uid("slow"), uid("back")
    A(f"s_cmp_eq_u32 s{sMODE}, 0\ns_mov_b64 exec, {mask}\ns_cbranch_scc1 {slow}\n{store}\n{back}:\ns_mov_b64 exec, -1")
    with Tail(): A(f"{slow}:\n{store} sc1\ns_branch {back}")
def dma(rsrc, voff, soff, lds_s):
    A(f"s_mov_b32 m0, s{lds_s}\ns_nop 0\nbuffer_load_dwordx4 v{voff}, {sr(rsrc,4)}, s{soff} offen {LDF} lds")
def rowred_list(op, regs, steps=ROWRED):
    o = []
    for k, p in enumerate(steps):
        o += [dpp(op, r, r, p) for r in regs]
        if len(regs) < 3 and k < len(steps) - 1: o += ["s_nop 0"] * (3 - len(regs) - 0 if len(regs) == 1 else 1)
    return [x for x in o]
def rowred(op, regs):
    for p in ROWRED:
        for r in regs: A(dpp(op, r, r, p))
        if len(regs) < 3 and p != ROWRED[-1]: A(f"s_nop {2 - len(regs)}")
def weave(main, side, per, start=0):
    side = list(side)
    for k, m in enumerate(main):
        A(m)
        if k >= start:
            for _ in range(per):
                if side: A(side.pop(0))
    for s_ in side: A(s_)

def mfma_gap(need=8):
    n = 0
    for ln in reversed(L):
        if ln.startswith("v_mfma"): break
        if ln.endswith(":") or ln.startswith("."): continue
        if ln.startswith("s_memtime"): continue
        n += int(ln.split()[1]) + 1 if ln.startswith("s_nop") else 1
    if n < need: A(f"s_nop {need - n - 1}")
def pipeline(reads, mf, side=(), start=0, pre=None, between=None, per=2):
    reads = list(reads); side = list(side); pre = OPT["pre"] if pre is None else pre
    n = 0; done = -1
    for _ in range(min(pre, len(reads))): A(reads[n]); n += 1
    if between: between()
    for k, (m, need) in enumerate(mf):
        while n <= need: A(reads[n]); n += 1
        slots = per
        if need > done: A(f"s_waitcnt lgkmcnt({n - 1 - need})"); done = need
        A(m)
        if n < len(reads): A(reads[n]); n += 1; slots -= 1
        if k >= start:
            for _ in range(slots):
                if side: A(side.pop(0))
    for x in reads[n:]: A(x)
    for x in side: A(x)

hdr = open("cdna_kernels/" + NAME + ".s.ref").read().split("; Override launch")[0]
out = [hdr.rstrip(), "; Override launch geometry by editing the next line (default: block=256,",
       "; grid=ceil(out_elems/256), lds=0). Harness parses it; keep it on one line.",
       f"; @launch grid=(256,1,1) block=(256,1,1) lds={LDS_BYTES}",
       '.amdgcn_target "amdgcn-amd-amdhsa--gfx950"', ".text", f".globl {NAME}_kernel"] + ([".p2align 12", f".fill {OPT['kal']*64 + 1}, 4, 0xbf810000"] if OPT["kal"] >= 0 else []) + [".p2align 8",
       f".type {NAME}_kernel,@function", f"{NAME}_kernel:"]

def wdma_voff(dst, rowbytes, kind):
    if kind == "std": A(f"v_bfe_u32 v{dst}, v{vL}, 4, 1\ns_and_b32 s{sT0}, s{sW}, 1\ns_lshl_b32 s{sT0}, s{sT0}, 1")
    else: A(f"v_lshrrev_b32 v{dst}, 5, v{vL}\ns_and_b32 s{sT0}, s{sW}, 2")
    A(f"""v_or_b32 v{dst}, s{sT0}, v{dst}
v_lshlrev_b32 v{dst}, 1, v{dst}
v_xor_b32 v{dst}, v{dst}, v{vL}
v_and_b32 v{dst}, 7, v{dst}
v_lshlrev_b32 v{dst}, 4, v{dst}
v_lshrrev_b32 v{dst+1}, 3, v{vL}
s_mov_b32 s{sT0}, {rowbytes}
v_mad_u32_u24 v{dst}, v{dst+1}, s{sT0}, v{dst}""")
def traddr_std(dst, base):
    A(f"""v_bfe_u32 v{dst}, v{vL}, 3, 2
v_xor_b32 v{dst}, s{sW}, v{dst}
v_lshlrev_b32 v{dst}, 5, v{dst}
v_and_b32 v{dst+1}, 3, v{vL}
v_lshl_add_u32 v{dst}, v{dst+1}, 3, v{dst}
v_bfe_u32 v{dst+1}, v{vL}, 2, 2
v_lshl_add_u32 v{dst}, v{dst+1}, 7, v{dst}
v_lshl_add_u32 v{dst}, v{vG}, 10, v{dst}
v_add_u32 v{dst}, {base}, v{dst}""")
def traddr_tail(dst, base):
    A(f"""v_bfe_u32 v{dst}, v{vL}, 3, 1
v_and_b32 v{dst+1}, 2, v{vG}
v_or_b32 v{dst}, v{dst}, v{dst+1}
v_xor_b32 v{dst}, s{sW}, v{dst}
v_lshlrev_b32 v{dst}, 5, v{dst}
v_and_b32 v{dst+1}, 3, v{vL}
v_lshl_add_u32 v{dst}, v{dst+1}, 3, v{dst}
v_lshrrev_b32 v{dst+1}, 2, v{vL}
v_lshl_add_u32 v{dst}, v{dst+1}, 7, v{dst}
v_add_u32 v{dst}, {base + 16384}, v{dst}""")
def tr_slice(dst, a_std, a_tail, off):
    for ks in range(4):
        for h in range(2): A(f"ds_read_b64_tr_b16 {ar(dst+4*ks+2*h,2)}, v{a_std} offset:{off+ks*4096+h*512}")
    A(f"ds_read_b64_tr_b16 {ar(dst+16,2)}, v{a_tail} offset:{off}")
def x_addr(dst, idx, rg_s, tmp):
    A(f"""v_mul_u32_u24 v{dst}, 3641, v{idx}
v_lshrrev_b32 v{dst}, 16, v{dst}
v_mul_u32_u24 v{tmp}, 18, v{dst}
v_sub_u32 v{tmp}, v{idx}, v{tmp}
v_lshlrev_b32 v{tmp}, 4, v{tmp}
v_and_b32 v{tmp+1}, 3, v{dst}
v_lshl_add_u32 v{tmp}, v{tmp+1}, 11, v{tmp}
v_lshrrev_b32 v{dst}, 2, v{dst}
v_lshl_add_u32 v{dst}, v{dst}, 14, v{tmp}
s_mul_i32 s{sT0}, s{rg_s}, 288
v_add_u32 v{dst}, s{sT0}, v{dst}""")

NK1, NKB, NQ, NV1, NW2, NB1 = OPT["nk1"], OPT["nkb"], OPT["nq"], OPT["nv1"], OPT["nw2"], OPT["nb1"]
sKM, sVM = 66, 67
if PROF: sKM, sVM = 86, 87
def srd2(r, nbytes): A(f"s_mov_b32 s{r+2}, {nbytes}\ns_mov_b32 s{r+3}, 0x20000")
def blk_m0(base, i, mask):
    return f"s_xor_b32 m0, s{base}, {i << 12}\ns_nop 0"
    hi = (i << 12) & ~mask
    return f"s_add_u32 s{sT4}, s{sROT}, {(i << 12) & mask}\ns_and_b32 s{sT4}, s{sT4}, {mask}\n" + (f"s_or_b32 s{sT4}, s{sT4}, {hi}\n" if hi else "") + f"s_add_u32 m0, s{sT4}, s{base}\ns_nop 0"
def kdma(i): A(blk_m0(sKM, i, 0xf000) + f"\nbuffer_load_dwordx4 v{vKO}, {sr(rK,4)}, m0 offen {LDF} lds")

A("s_cmp_ge_u32 s2, 256\ns_cbranch_scc1 L_end")
if PROF: A(f"s_memrealtime {sr(sST,2)}\ns_memtime s[88:89]\nv_mov_b32 v9, 0")
FS("pro")
def PF():
    A(("s_cmp_lt_u32 s2, 248" if OPT["pfj"] else "s_cmp_ge_u32 s2, 8") + f"\ns_cbranch_scc1 L_nopf\ns_getpc_b64 s[100:101]\nL_pc:\nv_min_u32 v8, {OPT['pfl'] - 1}, v0\nv_lshlrev_b32 v8, 7, v8\nglobal_load_dword v8, v8, s[100:101]\nL_nopf:")
NK0 = 0
if OPT["pf"]: PF()
A(f"""s_load_dwordx2 s[{rWQ}:{rWQ+1}], s[0:1], 24
s_load_dwordx2 s[{rXI}:{rXI+1}], s[0:1], 0
s_load_dwordx4 s[{rK}:{rK+3}], s[0:1], 8
s_lshr_b32 s{sJ}, s2, 3
v_readfirstlane_b32 s{sW}, v0
v_lshrrev_b32 v{t+1}, 3, v0
v_lshrrev_b32 v{vG}, 4, v0""")
A(f"""s_mul_i32 s{sRG}, s{sJ}, 37
v_and_b32 v{t}, 2, v{t+1}
s_lshr_b32 s{sRG}, s{sRG}, 8
v_and_or_b32 v{t}, v{vG}, 4, v{t}
s_mul_i32 s{sT0}, s{sRG}, 7
v_xor_b32 v{t}, v{t}, v0
s_sub_u32 s{sCG}, s{sJ}, s{sT0}
v_and_b32 v{t}, 7, v{t}
s_cmp_ge_u32 s{sCG}, 3
v_lshlrev_b32 v{t}, 4, v{t}
s_addc_u32 s{sT0}, s{sCG}, 0
v_and_b32 v{t+1}, 7, v{t+1}
s_cmp_ge_u32 s{sJ}, 28
v_lshl_or_b32 v{t}, v{t+1}, 13, v{t}
s_cselect_b32 s{sRG}, s{sCG}, s{sRG}
s_cselect_b32 s{sCG}, 3, s{sT0}
v_and_b32 v{vL}, 63, v0
s_and_b32 s{sX}, s2, 7
s_mul_i32 s{sT1}, s{sRG}, {144*64}
s_lshl_b32 s{sT2}, s{sW}, 3
s_add_u32 s{sT1}, s{sT1}, s{sT2}
s_lshl_b32 s{sT2}, s{sX}, 3
s_add_u32 s{sT1}, s{sT1}, s{sT2}
s_add_u32 s{sT1}, s{sT1}, s{sCG}
s_lshl_b32 s{sT1}, s{sT1}, 7
s_lshl_b32 s{sVM}, s{sW}, 4
s_add_u32 s{sT2}, s{sVM}, {LWQ}
s_mov_b32 s{rWQ+3}, 0x20000
s_mov_b32 s{rWQ+2}, {576*4096*2}
s_mov_b32 s{rXI+3}, s{rWQ+3}
s_movk_i32 s{rXI+2}, 1152
s_lshr_b32 s{sW}, s{sW}, 6
s_cmp_lg_u32 s{sW}, 2
v_lshlrev_b32 v{t+2}, 4, v{vL}""")
FS("pro")
A(f"""s_waitcnt lgkmcnt(0)
s_cbranch_scc1 L_nox0
buffer_load_dwordx4 {vr(gX,4)}, v{t+2}, {sr(rXI,4)}, 0 offen
buffer_load_dwordx4 {vr(gX+4,4)}, v{t+2}, {sr(rXI,4)}, 0 offen offset:1024
L_nox0:""")
for i in range(4):
    A(f"s_add_u32 m0, s{sT2}, {i*4096}\n" + (f"s_add_u32 s{sT1}, s{sT1}, {32*8192}" if i else f"s_cmp_ge_u32 s{sW}, 2") + f"\nbuffer_load_dwordx4 v{t}, {sr(rWQ,4)}, s{sT1} offen {LDF} lds")
A(f"""s_cmp_ge_u32 s{sW}, 2
s_cbranch_scc1 L_wq4
s_add_u32 m0, s{sT2}, {16*1024}
s_add_u32 s{sT1}, s{sT1}, {32*8192}
buffer_load_dwordx4 v{t}, {sr(rWQ,4)}, s{sT1} offen {LDF} lds
L_wq4:""")
FS("pro")
A(f"""s_load_dwordx2 s[{rWS}:{rWS+1}], s[0:1], 88
v_and_b32 v{vN}, 15, v0
v_and_b32 v{vKO}, 15, v{vG}
s_lshl_b32 s{sT3}, s{sX}, 24
v_xor_b32 v{vKO}, v{vKO}, v{vN}
s_lshr_b32 s{sT0}, s{sJ}, 4
v_lshlrev_b32 v{vKO}, 4, v{vKO}
s_mul_i32 s{sT0}, s{sT0}, {(1 << 23) - (16 << 16)}
v_and_b32 v{vG}, 3, v{vG}
s_lshl_b32 s{sT1}, s{sJ}, 16
v_lshl_or_b32 v{vKO}, v{vG}, 8, v{vKO}
s_add_u32 s{sT0}, s{sT0}, s{sT3}
s_add_u32 s{sT0}, s{sT0}, s{sT1}
s_add_u32 s{sCNT}, s{sT0}, {28672*256 - LR}
s_lshl_b32 s{sROT}, s{sX}, 13
s_add_u32 s{sKM}, s{sVM}, s{sROT}
s_add_u32 s{sKM}, s{sKM}, {LR}
s_add_u32 s{rV}, s14, s{sCNT}
s_addc_u32 s{rV+1}, s15, 0
s_add_u32 s{rK}, s12, s{sCNT}
s_addc_u32 s{rK+1}, s13, 0""")
srd2(rK, LR + 65536)
for i in range(NK1): kdma(i)
FS("pro")
A("s_waitcnt lgkmcnt(0)")
srd2(rWS, WSREC)
A(f"""s_add_u32 s{rV}, s{rV}, {LR}
s_addc_u32 s{rV+1}, s{rV+1}, 0
s_and_b32 s{sT0}, s{sROT}, 0x7000
s_add_u32 s{sVM}, s{sVM}, s{sT0}
s_load_dwordx2 s[{rWA}:{rWA+1}], s[0:1], 32
s_load_dwordx2 s[92:93], s[0:1], 48
s_load_dwordx2 s[{rB1}:{rB1+1}], s[0:1], 56
s_load_dwordx2 s[{rW2}:{rW2+1}], s[0:1], 64
s_load_dwordx2 s[{rOUT}:{rOUT+1}], s[0:1], 72""")
A(f"s_mov_b32 s{sT1}, {EPO}\ns_buffer_load_dword s{sE1}, {WS}, s{sT1}")
A(f"""s_lshl_b32 s{sIB}, s{sX}, 16
s_add_u32 s{sIB}, s{sIB}, {IB0}
s_mul_i32 s{sQ0}, s{sX}, {Q0S}
s_add_u32 s{sQ0}, s{sQ0}, {Q0B}
s_mov_b32 s{sPASS}, 0""")
if PROF: A(f"v_writelane_b32 v9, s{sST}, 0")
traddr_std(t, LWQ); traddr_tail(t+2, LWQ)
FA = t + 8
A(f"""v_mov_b32 v{FA+16}, 0
v_mov_b32 v{FA+17}, 0
v_mov_b32 v{FA+18}, 0
v_mov_b32 v{FA+19}, 0
v_lshlrev_b32 v{aXW}, 4, v0
v_add_u32 v{aXW}, {LXS}, v{aXW}
ds_write_b128 v{aXW}, {vr(FA+16,4)} offset:512
v_mul_u32_u24 v{aXR}, 288, v{vN}
v_lshl_add_u32 v{aXT}, v{vG}, 3, v{aXR}
v_add_u32 v{aXT}, {LXS + 256}, v{aXT}
v_lshl_add_u32 v{aXR}, v{vG}, 4, v{aXR}
v_add_u32 v{aXR}, {LXS}, v{aXR}
v_mov_b32 v{aS1}, v{aXR}
v_mov_b32 v{aS3}, v{aXR}
s_lshl_b32 s{sT0}, s{sCG}, 10
s_lshl_b32 s{sT1}, s{sW}, 8
s_add_u32 s{sT0}, s{sT0}, s{sT1}
s_lshl_b32 s{sT1}, s{sRG}, 2
s_add_u32 s{sT0}, s{sT0}, s{sT1}
v_lshl_add_u32 v{aQD}, v{vN}, 4, s{sT0}
s_cmp_lg_u32 s{sW}, 2
s_cbranch_scc1 L_pwx""")
NCLR = 4
xf, z1, z2 = t + 40, u + 4, u + 5
A(f"""v_mov_b32 v{z1}, 0
v_mov_b32 v{z2}, 0
v_mov_b32 v{u+6}, 0x3f803f80
v_lshlrev_b32 v{t+4}, 4, v{vL}
v_add_u32 v{t+4}, {LXS}, v{t+4}
s_mov_b32 exec_lo, 0xfffc0000
s_mov_b32 exec_hi, 0
ds_write_b128 v{t+4}, {vr(FA+16,4)}
s_mov_b64 exec, -1
s_mul_i32 s{sT0}, s{sRG}, 18
s_lshl_b32 s{sT1}, s{sT0}, 4
v_subrev_u32 v{t+5}, s{sT1}, v{t+4}
s_mov_b64 {sr(sT2,2)}, 0x3ffff
s_lshl_b64 {sr(sT2,2)}, {sr(sT2,2)}, s{sT0}
s_waitcnt vmcnt({4 + NK1 - NK0})""")
for k in range(8): A(f"v_dot2c_f32_bf16 v{z1}, v{gX+k}, v{u+6}\nv_dot2c_f32_bf16 v{z2}, v{gX+k}, v{gX+k}")
for k in range(4): A(f"v_lshlrev_b32 v{xf+2*k}, 16, v{gX+k}\nv_and_b32 v{xf+2*k+1}, 0xffff0000, v{gX+k}")
rowred("v_add_f32", [z1, z2])
for sw in ("16", "32"):
    A(f"v_mov_b32 v{u+6}, v{z1}\nv_mov_b32 v{u+7}, v{z2}\ns_nop 0\nv_permlane{sw}_swap_b32 v{z1}, v{u+6}\nv_permlane{sw}_swap_b32 v{z2}, v{u+7}\nv_add_f32 v{z1}, v{z1}, v{u+6}\nv_add_f32 v{z2}, v{z2}, v{u+7}")
A(f"v_mul_f32 v{u+6}, {1/576:.9e}, v{z1}")
for k in range(8): A(f"v_sub_f32 v{xf+k}, v{xf+k}, v{u+6}")
for k in range(4): A(f"v_cvt_pk_bf16_f32 v{xf+k}, v{xf+2*k}, v{xf+2*k+1}")
A(f"""v_fma_f32 v{z2}, -v{u+6}, v{z1}, v{z2}
v_mov_b32 v{u+7}, {LMODE}
v_mul_f32 v{z2}, 0x3d800000, v{z2}
s_mov_b64 exec, {sr(sT2,2)}
ds_write_b128 v{t+5}, {vr(xf,4)}
ds_write2_b32 v{u+7}, v{z2}, v{FA+16} offset0:0 offset1:1
s_mov_b64 exec, -1
s_cmp_lg_u32 s{sRG}, 3
s_cbranch_scc1 L_x0d""")
for k in range(4): A(f"v_lshlrev_b32 v{xf+8+2*k}, 16, v{gX+4+k}\nv_and_b32 v{xf+8+2*k+1}, 0xffff0000, v{gX+4+k}")
for k in range(8): A(f"v_sub_f32 v{xf+8+k}, v{xf+8+k}, v{u+6}")
for k in range(4): A(f"v_cvt_pk_bf16_f32 v{xf+8+k}, v{xf+8+2*k}, v{xf+8+2*k+1}")
A(f"s_mov_b64 exec, 0xff\nds_write_b128 v{t+4}, {vr(xf+8,4)} offset:160\ns_mov_b64 exec, -1\nL_x0d:")
for i in range(NK1, NK1 + NKB): kdma(i)
A(f"s_waitcnt vmcnt({NK1 - NK0 + NKB})\nL_bar1:")
FS("pro")
A(f"s_waitcnt lgkmcnt(0)\ns_barrier")
NEAR = []
with Tail():
    A(f"L_pwx:\ns_cmp_eq_u32 s{sW}, {7 if OPT['xnoclr'] else 3}\ns_cbranch_scc1 L_pw3")
    if OPT["q0t"]:
        A(f"s_lshl_b32 s{sT1}, s{sJ}, 9\ns_lshl_b32 s{sT2}, s{sW}, 8\ns_add_u32 s{sT1}, s{sT1}, s{sT2}\nv_lshl_add_u32 v{t+6}, v{vL}, 7, s{sT1}\ns_mov_b64 exec, 3\nbuffer_load_dword v8, v{t+6}, {WS}, s{sQ0} offen sc1\ns_mov_b64 exec, -1")
    for i in range(NK1, NK1 + NKB): kdma(i)
    if OPT["walk"]: A(f"s_cmp_eq_u32 s{sW}, 0\ns_cbranch_scc1 L_walk0_0\ns_branch L_walk1_0\nL_walked:")
    A(f"s_waitcnt vmcnt({NK1 - NK0 + NKB + (1 if OPT['q0t'] else 0)})\ns_branch L_bar1")
    q4 = vr(u, 4)
    A("L_pw3:")
    for r in range(4): A(f"v_mov_b32 v{u+r}, -1")
    A(f"""s_mul_i32 s{sT1}, s{sJ}, {REST}
v_lshl_add_u32 v{t+6}, v{vL}, 4, s{sT1}
s_lshl_b32 s{sT1}, s{sJ}, 9
s_add_u32 s{sT1}, s{sT1}, {OPo}
v_lshl_add_u32 v{t+7}, v{vL}, 4, s{sT1}
s_lshl_b32 s{sT1}, s{sJ}, 6
s_add_u32 s{sT1}, s{sT1}, {MLo - 512}
v_lshl_add_u32 v{t+8}, v{vL}, 4, s{sT1}
v_cmp_gt_u32 vcc, 32, v{vL}
s_lshl_b32 s{sT1}, s2, 9
v_lshl_add_u32 v{t+9}, v{vL}, 4, s{sT1}
v_cndmask_b32 v{t+7}, v{t+8}, v{t+7}, vcc
s_lshr_b32 s{sT1}, s2, 6
s_lshl_b32 s{sT1}, s{sT1}, 14
s_and_b32 s{sT2}, s2, 63
s_lshl_b32 s{sT2}, s{sT2}, 7
s_add_u32 s{sT1}, s{sT1}, s{sT2}
s_add_u32 s{sT1}, s{sT1}, {PROBE}
v_lshl_add_u32 v{t+8}, v{vL}, 4, s{sT1}
v_lshrrev_b32 v{t+10}, 3, v{vL}
v_mul_u32_u24 v{t+10}, {0x2000 - 128}, v{t+10}
v_add_u32 v{t+8}, v{t+8}, v{t+10}
s_mov_b32 exec_hi, 0xf
buffer_store_dwordx4 {q4}, v{t+7}, {WS}, s{sIB} offen sc1
s_mov_b32 exec_hi, {(1 << (REST//16 - 32)) - 1:#x}
buffer_store_dwordx4 {q4}, v{t+6}, {WS}, s{sIB} offen sc1
s_and_b32 s{sT1}, s2, 3
s_cmp_eq_u32 s{sT1}, 2
s_cselect_b32 s{sT2}, 0xff, -1
s_cmp_eq_u32 s{sT1}, 3
s_cselect_b32 exec_lo, 1, s{sT2}
s_mov_b32 exec_hi, 0
buffer_store_dwordx4 {q4}, v{t+9}, {WS}, 0 offen sc1
s_mov_b32 exec_lo, 0xffff
buffer_store_dwordx4 {q4}, v{t+8}, {WS}, 0 offen sc1
s_mov_b64 exec, -1""")
    for i in range(NK1, NK1 + NKB): kdma(i)
    A(f"s_waitcnt vmcnt({NK1 - NK0 + NKB + NCLR})\ns_branch L_bar1")
NEAR = TAIL[:]; del TAIL[:]
stamp(2); FS("pro")
tr_slice(cWQ, t, t+2, 0)
A(f"s_and_b32 s{sE1}, s{sE1}, -16\ns_add_u32 s{sE1}, s{sE1}, 16")
A("s_branch L_q_reads")
L.extend(NEAR)

HD = dict(zip(("q", "w1", "fin"), [int(c, 36) for c in OPT["hd"]]))
def hint_wait(imm, site):
    skip = uid("hs")
    A(f"s_cmp_lg_u32 s{sW}, 3\ns_cbranch_scc1 {skip}")
    poll(f"buffer_load_dword v{gHI}, v{aHL}, {WS}, s{sI} offen offset:{imm} sc1", [gHI], None)
    if HD[site]:
        A(f"s_cmp_lt_u32 s{sCNT}, {OPT['hskip']}\ns_cbranch_scc1 {skip}"); filler(HD[site])
    A(f"{skip}:\ns_barrier")
def w1_colsum():
    ACC = t + 40
    for r in range(4): A(f"v_mov_b32 v{t+28+r}, v{vONE}")
    A(f"v_mov_b32 v{t+32}, 0\nv_mov_b32 v{t+33}, 0\nv_mov_b32 v{t+34}, v{vONE}\nv_mov_b32 v{t+35}, v{vONE}\nv_cmp_eq_u32 vcc, 2, v{vG}\ns_waitcnt lgkmcnt(0)")
    for ks in range(5):
        for c in range(3):
            A(mfma(vr(ACC+4*c,4), vr(t+28 if ks < 4 else t+32,4), ar(cWA+18*c+(4*ks if ks < 4 else 14),4), "0" if ks == 0 else vr(ACC+4*c,4)))
    A(f"s_mov_b32 s{sT2}, -1\ns_mov_b32 s{sT3}, 0xffff\ns_nop 4\nv_cndmask_b32 v{ACC}, v{ACC}, v{ACC+4}, vcc\nv_cndmask_b32 v{vS1}, v{ACC}, v{ACC+8}, {sr(mODDR,2)}")
    pub(f"buffer_store_dword v{vS1}, v{vS1+1}, {WS}, s{sI} offen", sr(sT2,2))
def x_gather(a1, a2, stg, imm):
    other, join = uid("xo"), uid("xj")
    l1 = f"buffer_load_dwordx4 {vr(gX,4)}, v{a1}, {WS}, s{sXO} offen sc1"
    l2 = f"buffer_load_dwordx4 {vr(gX+4,4)}, v{a2}, {WS}, s{sXO} offen sc1"
    w1 = f"ds_write_b128 v{aXW}, {vr(gX,4)}"
    w2 = f"s_mov_b32 exec_hi, 0\nds_write_b128 v{aXW}, {vr(gX+4,4)} offset:4096\ns_mov_b32 exec_hi, -1"
    A(f"s_cmp_lg_u32 s{sW}, 0\ns_cbranch_scc1 {other}\ns_barrier")
    hook = w1_colsum if stg == "w1" else None
    poll(l1 + "\n" + l2, range(gX, gX+8), u, 1, w1 + "\n" + w2, hook=hook)
    FS(stg)
    A(f"s_branch {join}\n{other}:")
    if stg == "q": A(f"v_mov_b32 v{u+12}, s{sE1}")
    hint_wait(imm, stg)
    stamp(12 if stg == "q" else 7)
    if stg == "q":
        A(f"s_cmp_eq_u32 s{sW}, 1\nL_xq1_top:\n{l1}\ns_cbranch_scc0 L_xq1_a\nbuffer_load_dword v{u+12}, v{u+14}, {WS}, s{sCOPY} offen sc1\nL_xq1_a:")
        A(f"s_add_u32 s{sCNT}, s{sCNT}, 1\ns_cmp_gt_u32 s{sCNT}, {OPT['tmo']}\ns_cbranch_scc1 L_end\ns_cmp_eq_u32 s{sW}, 1\ns_waitcnt vmcnt(0)\n{w1}")
        A(f"v_cmp_ne_u32 {sr(sT0,2)}, s{sE1}, v{u+12}\nv_max_u32 v{u}, v{gX}, v{gX+1}\nv_max3_u32 v{u}, v{u}, v{gX+2}, v{gX+3}\nv_cndmask_b32 v{u}, v{u}, -1, {sr(sT0,2)}")
        A(f"v_cmp_eq_u32 vcc, -1, v{u}\ns_cbranch_vccnz L_xq1_top")
    else: poll(l1, range(gX, gX+4), u, 1, w1, hook=hook)
    A(f"{join}:\ns_waitcnt lgkmcnt(0)\ns_barrier")
    FS(stg)
FSt, ACC, SAC = t + 28, t + 40, t + 52
def stat_reads(): A(f"ds_read_b64_tr_b16 {vr(FSt,2)}, v{aS1}\nds_read_b64_tr_b16 {vr(FSt+2,2)}, v{aS1} offset:128\nds_read_b64_tr_b16 {vr(FSt+4,2)}, v{aS3}")
def frag_reads():
    for ks in range(4): A(f"ds_read_b128 {vr(FA+4*ks,4)}, v{aXR} offset:{ks*64}")
    A(f"ds_read_b64 {vr(FA+18,2)}, v{aXT}")
stat_mfma = [f"v_mfma_f32_16x16x16_bf16 {vr(SAC+4*k,4)}, {vr(vONE if k < 2 else vONE3,2)}, {vr(FSt+2*k,2)}, 0" for k in range(3)]
s1, s2 = u + 2, u + 3
stat_valu = [f"v_add_f32 v{s1}, v{SAC}, v{SAC+4}", f"v_mul_f32 v{s2}, v{SAC}, v{SAC}", f"v_add_f32 v{s1}, v{s1}, v{SAC+8}",
             f"v_fmac_f32 v{s2}, v{SAC+4}, v{SAC+4}", f"v_fmac_f32 v{s2}, v{SAC+8}, v{SAC+8}", "s_nop 0"]
for k, p in enumerate(ROWRED): stat_valu += ["s_nop 0", dpp("v_add_f32", s1, s1, p), dpp("v_add_f32", s2, s2, p)]
def main_mfma(nt, w, base):
    return [(mfma(vr(ACC+4*k,4), vr(FA+4*ks,4), ar(w+18*k+(4*ks if ks < 4 else 14),4), "0" if ks == 0 else vr(ACC+4*k, 4)), base + ks) for ks in range(5) for k in range(nt)]
frag_list = [f"ds_read_b128 {vr(FA+4*ks,4)}, v{aXR} offset:{ks*64}" for ks in range(4)] + [f"ds_read_b64 {vr(FA+18,2)}, v{aXT}"]
stat_list = [f"ds_read_b64_tr_b16 {vr(FSt,2)}, v{aS1}", f"ds_read_b64_tr_b16 {vr(FSt+2,2)}, v{aS1} offset:128", f"ds_read_b64_tr_b16 {vr(FSt+4,2)}, v{aS3}"]

A("L_q:")
A(f"v_lshlrev_b32 v{u+14}, 2, v{vN}\nv_add_u32 v{u+14}, {RDY2}, v{u+14}")
A(f"s_add_u32 s{sXO}, s{sCOPY}, {X2O}\ns_mov_b32 s{sCNT}, 0")
x_gather(aX1, aX2, "q", 128)
stamp(13)
A(f"s_mov_b32 s{sPASS}, {PS}\nL_q_reads:")
pipeline(frag_list + stat_list, main_mfma(1, cWQ, 0), between=lambda: A(f"s_add_u32 s{sI}, s{sIB}, s{sPASS}"))
FS("q")
a = ACC
A(f"""s_cmp_eq_u32 s{sPASS}, 0
s_nop 6
v_add_f32 v{a}, v{a}, v{a+1}
v_add_f32 v{a+2}, v{a+2}, v{a+3}
v_add_f32 v{a}, v{a}, v{a+2}
v_mov_b32 v{a+1}, v{a}
s_nop 1
v_permlane32_swap_b32 v{a}, v{a+1}
v_add_f32 v{a}, v{a}, v{a+1}
v_mov_b32 v{a+1}, v{a}
s_cbranch_scc1 L_q0_pub
s_nop 0
v_permlane16_swap_b32 v{a}, v{a+1}
v_add_f32 v{a}, v{a}, v{a+1}""")
FS("q")
pub(f"buffer_store_dword v{a}, v{aQD}, {WS}, s{sI} offen", "0xffff")
FS("q")
A("s_waitcnt lgkmcnt(0)")
for m in stat_mfma: A(m)
A("s_nop 6")
for x in stat_valu: A(x)
A(f"s_cmp_eq_u32 s{sCG}, 0\ns_cselect_b64 {sr(sT2,2)}, 1, 0")
pub(f"buffer_store_dwordx2 {vr(s1,2)}, v{aQS}, {WS}, s{sI} offen", sr(sT2,2))
FS("q")
A("L_att_poll:")

with Tail():
    A(f"L_q0_pub:\ns_nop 0\nv_permlane16_swap_b32 v{a}, v{a+1}\nv_add_f32 v{vQ0}, v{a}, v{a+1}")
    q0store = f"buffer_store_dwordx2 {vr(vQ0,2)}, v{vQ0+2}, {WS}, s{sQ0} offen"
    A(f"""v_mov_b32 v{vQ0+1}, s{sE1}
v_lshlrev_b32 v{vQ0+2}, 1, v{aQD}
s_mov_b64 exec, 0xffff
{q0store}
s_mov_b64 exec, -1""")
    for i in range(NK1 + NKB, 16): kdma(i)
    vo = u + 12
    A(f"""s_and_b32 s{sT0}, s{sW}, 1
s_lshl_b32 s{sT0}, s{sT0}, 1
v_and_b32 v{vo}, 1, v{vG}
v_or_b32 v{vo}, s{sT0}, v{vo}
v_lshlrev_b32 v{vo}, 1, v{vo}
v_xor_b32 v{vo}, v{vo}, v{vN}
v_lshlrev_b32 v{vo}, 4, v{vo}
v_lshl_add_u32 v{vo}, v{vG}, 8, v{vo}
s_lshr_b32 s{sT0}, s{sROT}, 5
s_and_b32 s{sT0}, s{sT0}, 128
v_xor_b32 v{vo}, s{sT0}, v{vo}
v_xor_b32 v{vo+1}, 128, v{vo}""")
    srd2(rV, 65536)
    def vdma(i): A(blk_m0(sVM, i, 0x7000) + f"\nbuffer_load_dwordx4 v{vo + (i & 1)}, {sr(rV,4)}, m0 offen {LDF} lds")
    for i in range(NQ): vdma(i)
    A(f"""s_getreg_b32 s{sXCC}, hwreg(HW_REG_XCC_ID)
s_and_b32 s{sXCC}, s{sXCC}, 7
s_cmp_lg_u32 s{sW}, 3
s_cbranch_scc1 L_nordy
s_lshl_b32 s{sT0}, s{sX}, 7
s_lshl_b32 s{sT1}, s{sJ}, 2
s_add_u32 s{sT0}, s{sT0}, s{sT1}
s_add_u32 s{sT0}, s{sT0}, {RDY}
v_mov_b32 v{u+14}, s{sT0}
s_or_b32 s{sT0}, s{sE1}, s{sXCC}
v_mov_b32 v{u+15}, s{sT0}
s_mov_b64 exec, 1
s_waitcnt vmcnt({16 - NK1 + NQ + 1})
buffer_store_dword v{u+15}, v{u+14}, {WS}, 0 offen sc1
s_mov_b64 exec, -1
L_nordy:
s_lshr_b32 s{sT0}, s{sJ}, 4
s_lshl_b32 s{sT0}, s{sT0}, 12
v_lshl_add_u32 v{aQ1}, v0, 4, s{sT0}
v_lshlrev_b32 v{t}, 1, v{aQ1}""")
    g0 = t + 28
    q0loads = f"""buffer_load_dwordx4 {vr(g0,4)}, v{t}, {WS}, s{sQ0} offen sc1
buffer_load_dwordx4 {vr(g0+4,4)}, v{t}, {WS}, s{sQ0} offen offset:16 sc1"""
    if OPT["xnoq0"] < 1: A(q0loads)
    for i in range(NQ, NV1): vdma(i)
    srd2(rW2, 4608*576*2); srd2(rB1, 4608*2); srd2(rOUT, 1152)
    A(f"""s_mov_b32 s{sMODE}, 0
s_mov_b32 s{sCOPY}, 0
s_mov_b32 s{sI}, s{sIB}
s_cmp_ge_u32 s{sJ}, 18
s_cselect_b32 s{sROLE}, 1, 0
s_cselect_b32 s{rWA}, s92, s{rWA}
s_cselect_b32 s{rWA+1}, s93, s{rWA+1}
s_mov_b32 s{rWA+2}, {4096*576*2}
s_cselect_b32 s{rWA+2}, {576*4608*2}, s{rWA+2}
s_mov_b32 s{rWA+3}, 0x20000
s_cmp_ge_u32 s{sJ}, 30
s_cselect_b32 s{sROLE}, 2, s{sROLE}
s_cmp_ge_u32 s{sJ}, 9
s_cselect_b32 s{sHALF}, 1, 0
s_mul_i32 s{sT0}, s{sHALF}, 9
s_sub_u32 s{sCG9}, s{sJ}, s{sT0}
s_sub_u32 s{sT0}, s{sJ}, 18
s_and_b32 s{sT1}, s{sT0}, 3
s_lshr_b32 s{sT0}, s{sT0}, 2
s_and_b32 s{sT0}, s{sT0}, 3
s_cmp_eq_u32 s{sROLE}, 0
s_cselect_b32 s{sHALF}, s{sHALF}, s{sT1}
s_cselect_b32 s{sCG9}, s{sCG9}, s{sT0}
v_mov_b32 v{vONE}, 0x3f803f80
v_mov_b32 v{vONE+1}, 0x3f803f80
s_cmp_eq_u32 s{sW}, 0
s_cselect_b32 s{sT0}, 0x3f803f80, 0
s_cselect_b64 {sr(mW0,2)}, 1, 0
v_mov_b32 v{vONE3}, s{sT0}
v_mov_b32 v{vONE3+1}, s{sT0}
v_mov_b32 v{vJUNK}, {1/576:.9e}""")
    mask64(mODDR, 0xffff0000, 0xffff0000); mask64(mODDL, 0xaaaaaaaa, 0xaaaaaaaa); mask64(mROW3, 0, 0xffff0000)
    c1, c2, CS = t + 40, t + 44, t + 48
    for r in range(4): A(f"v_mov_b32 v{c1+r}, v{vONE}")
    A(f"v_mov_b32 v{c2}, 0\nv_mov_b32 v{c2+1}, 0\nv_mov_b32 v{c2+2}, v{vONE}\nv_mov_b32 v{c2+3}, v{vONE}")
    for r in list(range(aRES, aHR + 1)) + [vS1 + 1, aLW, aLR]: A(f"v_mov_b32 v{r}, 0")
    for ks in range(4): A(mfma(vr(CS,4), vr(c1,4), ar(cWQ+4*ks,4), "0" if ks == 0 else vr(CS,4)))
    A(mfma(vr(CS,4), vr(c2,4), ar(cWQ+14,4), vr(CS,4)))
    A(f"""v_lshrrev_b32 v{aS3}, 2, v{vL}
v_mul_u32_u24 v{aS3}, 288, v{aS3}
v_and_b32 v{aS1}, 3, v{vL}
v_lshl_add_u32 v{aS3}, v{aS1}, 3, v{aS3}
s_lshl_b32 s{sT0}, s{sW}, 5
s_add_u32 s{sT0}, s{sT0}, {LXS}
v_add_u32 v{aS1}, s{sT0}, v{aS3}
v_add_u32 v{aS3}, {LXS + 256}, v{aS3}
s_lshl_b32 s{sT0}, s{sRG}, 5
s_lshl_b32 s{sT1}, s{sW}, 3
s_add_u32 s{sT0}, s{sT0}, s{sT1}
s_add_u32 s{sT0}, s{sT0}, {QSo}
v_mov_b32 v{aQS}, s{sT0}
v_lshrrev_b32 v{t+4}, 7, v0
v_mul_u32_u24 v{t+4}, 128, v{t+4}
v_lshl_add_u32 v{aQW}, v0, 1, v{t+4}
v_add_u32 v{aQW}, {LQ}, v{aQW}
ds_write_b16 v{aQW}, v{c2} offset:1600
ds_write_b16 v{aQW}, v{c2} offset:2400
v_mov_b32 v{t+4}, {LMODE}
ds_read_b32 v{gQS+1}, v{t+4}
v_mov_b32 v{gQS}, 0
v_mov_b32 v{vCS}, v{CS}""")
    A(f"v_add_u32 v{t+3}, 256, v{vL}\nv_min_u32 v{t+3}, 287, v{t+3}")
    x_addr(aX1, 0, sRG, t+4); x_addr(aX2, t+3, sRG, t+4)
    A(f"""v_lshlrev_b32 v{aQ2}, 3, v{vN}
v_add_u32 v{aQ2}, {QSo}, v{aQ2}
v_lshrrev_b32 v{t+4}, 3, v{vN}
v_mul_u32_u24 v{aPR}, 640, v{t+4}
v_mul_u32_u24 v{aQR}, 384, v{t+4}
v_and_b32 v{t+4}, 3, v{vN}
v_mul_u32_u24 v{t+5}, 800, v{t+4}
v_add_u32 v{aQR}, v{aQR}, v{t+5}
v_lshl_add_u32 v{aQR}, v{vG}, 4, v{aQR}
v_add_u32 v{aQR}, {LQ}, v{aQR}
v_lshl_add_u32 v{aPR}, v{vG}, 4, v{aPR}
v_add_u32 v{aPR}, {LP}, v{aPR}
v_lshrrev_b32 v{t+5}, 5, v{vL}
v_mul_u32_u24 v{aPW}, 640, v{t+5}
v_and_b32 v{aMW}, 31, v{vL}
v_lshl_add_u32 v{aPW}, v{aMW}, 2, v{aPW}
s_lshl_b32 s{sT0}, s{sW}, 7
s_add_u32 s{sT0}, s{sT0}, {LP}
v_add_u32 v{aPW}, s{sT0}, v{aPW}
v_lshlrev_b32 v{aMR}, 4, v{t+5}
s_lshl_b32 s{sT0}, s{sW}, 2
s_add_u32 s{sT0}, s{sT0}, {LM}
v_add_u32 v{aMW}, s{sT0}, v{aMR}
v_lshl_add_u32 v{aMR}, v{t+4}, 2, v{aMR}
v_add_u32 v{aMR}, {LM}, v{aMR}
v_min_u32 v{aHL}, 17, v{vL}
v_lshlrev_b32 v{aHL}, 2, v{aHL}
v_add_u32 v{aHL}, {H3o}, v{aHL}""")
    A(f"""s_lshl_b32 s{sT0}, s{sJ}, 9
s_lshl_b32 s{sT1}, s{sW}, 6
s_add_u32 s{sT0}, s{sT0}, s{sT1}
s_add_u32 s{sT0}, s{sT0}, {OPo}
v_lshlrev_b32 v{aOP}, 8, v{t+5}
v_lshl_add_u32 v{aOP}, v{vN}, 2, v{aOP}
v_add_u32 v{aOP}, s{sT0}, v{aOP}
s_lshl_b32 s{sT0}, s{sJ}, 6
s_add_u32 s{sT0}, s{sT0}, {MLo}
s_lshl_b32 s{sT1}, s{sW}, 2
s_add_u32 s{sT1}, s{sT1}, s{sT0}
v_lshl_add_u32 v{t+4}, v{t+5}, 4, s{sT1}
s_lshl_b32 s{sT1}, s{sW}, 3
s_add_u32 s{sT1}, s{sT1}, s{sT0}
s_add_u32 s{sT1}, s{sT1}, 32
v_lshl_add_u32 v{t+5}, v{t+5}, 2, s{sT1}
v_cndmask_b32 v{t+4}, v{t+4}, v{t+5}, {sr(mODDL,2)}
v_cndmask_b32 v{aOP}, v{aOP}, v{t+4}, {sr(mODDR,2)}
s_mov_b32 s{mATT}, 0x1ffff
s_cmp_lt_u32 s{sW}, 2
s_cselect_b32 s{mATT}, 0x3ffff, s{mATT}
s_mov_b32 s{mATT+1}, s{mATT}""")
    ka = t + 4
    A(f"s_lshl_b32 s{sT0}, s{sW}, 14\ns_add_u32 s{sT0}, s{sT0}, {LR}\nv_lshl_add_u32 v{u+8}, v{vN}, 8, s{sT0}\nv_xor_b32 v{u+9}, v{vG}, v{vN}")
    for ks in range(4): A(f"v_xor_b32 v{ka+ks}, {ks << 2}, v{u+9}\nv_lshl_add_u32 v{ka+ks}, v{ka+ks}, 4, v{u+8}")
    def q0_test():
        A(f"v_xor_b32 v{u+8}, s{sE1}, v{g0+1}")
        for k in range(1, 4): A(f"v_xor_b32 v{u+9}, s{sE1}, v{g0+2*k+1}\nv_or_b32 v{u+8}, v{u+8}, v{u+9}")
        A(f"v_cmp_ne_u32 vcc, 0, v{u+8}")
    A(f"v_mov_b32 v{u+10}, {LMODE + 4}\ns_waitcnt vmcnt({NV1 - NQ})")
    q0_test()
    A(f"s_mov_b64 exec, vcc\nds_write_b32 v{u+10}, v{vONE}\ns_mov_b64 exec, -1\ns_waitcnt lgkmcnt(0)\ns_barrier")
    stamp(3)
    A(f"ds_read_b32 v{u+11}, v{u+10}")
    for Tt in range(4):
        for ks in range(4): A(f"ds_read_b128 {vr(vK+16*Tt+4*ks,4)}, v{ka+ks} offset:{Tt*4096}")
        if Tt == 1: A(f"s_waitcnt lgkmcnt(8)\nv_readfirstlane_b32 s{sT0}, v{u+11}")
    A(f"s_cmp_eq_u32 s{sT0}, 0\ns_cbranch_scc1 L_q0_ok")
    if OPT["xnoq0"]: A("s_branch L_q0_ok")
    A(f"s_mov_b64 exec, 0xffff\n{q0store} sc1\ns_mov_b64 exec, -1\ns_mov_b32 s{sCNT}, 0\nL_q0_chk:")
    q0_test()
    A(f"s_cbranch_vccz L_q0_ok\ns_add_u32 s{sCNT}, s{sCNT}, 1\ns_cmp_ge_u32 s{sCNT}, {OPT['tmo']}\ns_cbranch_scc1 L_end\n{q0loads}\ns_waitcnt vmcnt(0)\ns_branch L_q0_chk\nL_q0_ok:")
    for k in range(4): A(f"v_mov_b32 v{gQ+k}, v{g0+2*k}")
    A("s_branch L_att_ok")

poll(f"buffer_load_dwordx4 {vr(gQ,4)}, v{aQ1}, {WS}, s{sI} offen sc1", range(gQ, gQ+4), u)
qsload = f"buffer_load_dwordx2 {vr(gQS,2)}, v{aQ2}, {WS}, s{sI} offen sc1"
resload2 = f"buffer_load_dwordx4 {vr(gRES,4)}, v{aRES}, {WS}, s{sXO} offen sc1"
A("L_att_ok:")
stamp(4); FS("att")
qv, qh, ql = u, u + 1, u + 2
A(f"""v_add_f32 v{qv}, v{gQ}, v{gQ+1}
v_add_f32 v{qh}, v{gQ+2}, v{gQ+3}
s_cmp_eq_u32 s{sPASS}, 0
v_add_f32 v{qv}, v{qv}, v{qh}
v_cvt_pk_bf16_f32 v{qh}, v{qv}, v{qv}
ds_write_b16 v{aQW}, v{qh}
v_lshlrev_b32 v{ql}, 16, v{qh}
v_sub_f32 v{qv}, v{qv}, v{ql}
v_cvt_pk_bf16_f32 v{qv}, v{qv}, v{qv}
ds_write_b16 v{aQW}, v{qv} offset:800
s_cbranch_scc1 L_att_nold
{qsload}
{resload2}
L_att_nold:""")
FS("att")
A("s_waitcnt lgkmcnt(0)\ns_barrier")
FS("att")
fq, D = t + 28, t + 44
for ks in range(4): A(f"ds_read_b128 {vr(fq+4*ks,4)}, v{aQR} offset:{ks*64}")
qk = [(f"s_waitcnt lgkmcnt({3-ks})\n" if Tt == 0 else "") + mfma(vr(D+4*Tt,4), vr(fq+4*ks,4), vr(vK+16*Tt+4*ks,4), "0" if ks == 0 else vr(D+4*Tt,4))
      for Tt in range(4) for ks in range(4)]
for m in qk[:4]: A(m)
A("s_cbranch_scc1 L_att_nochk\ns_waitcnt vmcnt(1)")
recheck(qsload, [gQS, gQS+1], u+3)
A("L_att_nochk:")
z1, z2 = u + 4, u + 5
side = [dpp("v_add_f32", z1, gQS, ROWRED[0]), dpp("v_add_f32", z2, gQS+1, ROWRED[0])]
for p in ROWRED[1:]: side += [dpp("v_add_f32", z1, z1, p), dpp("v_add_f32", z2, z2, p)]
side += [f"v_mul_f32 v{vMU}, {1/576:.9e}, v{z1}", f"v_mul_f32 v{z2}, {1/576:.9e}, v{z2}", f"v_fma_f32 v{z2}, -v{vMU}, v{vMU}, v{z2}",
         f"v_add_f32 v{D}, v{D}, v{D+1}", f"v_max_f32 v{z2}, 0, v{z2}", f"v_add_f32 v{z2}, 0x3727c5ac, v{z2}", f"v_rsq_f32 v{vC}, v{z2}",
         f"v_add_f32 v{D+2}, v{D+2}, v{D+3}", f"v_mul_f32 v{vC}, {128**-0.5*math.log2(math.e):.9e}, v{vC}",
         f"v_add_f32 v{D+4}, v{D+4}, v{D+5}", f"v_add_f32 v{D+6}, v{D+6}, v{D+7}", f"v_mul_f32 v{vMU}, v{vMU}, v{vC}"]
weave(qk[4:], side, 2)
FS("att")
sa, sb, um, tm = u + 6, u + 7, u + 8, u + 9
A(f"""v_add_f32 v{D+8}, v{D+8}, v{D+9}
v_add_f32 v{D+10}, v{D+10}, v{D+11}
v_cndmask_b32 v{sa}, v{D}, v{D+8}, {sr(mODDR,2)}
v_cndmask_b32 v{tm}, v{D+2}, v{D+10}, {sr(mODDR,2)}
v_mul_f32 v{sa}, v{sa}, v{vC}
v_fma_f32 v{sa}, -v{vMU}, v{tm}, v{sa}
s_nop 1
v_add_f32 v{D+12}, v{D+12}, v{D+13}
v_add_f32 v{D+14}, v{D+14}, v{D+15}
v_cndmask_b32 v{sb}, v{D+4}, v{D+12}, {sr(mODDR,2)}
v_cndmask_b32 v{tm}, v{D+6}, v{D+14}, {sr(mODDR,2)}
v_mul_f32 v{sb}, v{sb}, v{vC}
v_fma_f32 v{sb}, -v{vMU}, v{tm}, v{sb}
v_max_f32 v{um}, v{sa}, v{sb}
v_max_f32 v{tm}, v{sa}, v{sb}
s_nop 1
v_permlane16_swap_b32 v{um}, v{tm}
v_max_f32 v{um}, v{um}, v{tm}
s_nop 1""")
rowred("v_max_f32", [um])
A(f"""v_sub_f32 v{sa}, v{sa}, v{um}
v_sub_f32 v{sb}, v{sb}, v{um}
ds_write_b32 v{aMW}, v{um}
v_exp_f32 v{sa}, v{sa}
v_exp_f32 v{sb}, v{sb}
s_cmp_eq_u32 s{sPASS}, 0
v_cvt_pk_bf16_f32 v{tm}, v{sa}, v{sb}
ds_write_b32 v{aPW}, v{tm}""")
FS("att")
A(f"v_lshlrev_b32 v{sa}, 16, v{tm}\nv_and_b32 v{sb}, 0xffff0000, v{tm}\nv_add_f32 v{sa}, v{sa}, v{sb}\nv_add_f32 v{u+14}, v{sa}, 0\ns_nop 1\nv_permlane16_swap_b32 v{sa}, v{u+14}\nv_add_f32 v{sa}, v{sa}, v{u+14}\ns_nop 1\n{dpp('v_add_f32', sa, sa, ROWRED[0])}\ns_cbranch_scc1 L_rdy")
fp, acc, fm, big, fb = t - 0, t + 32, u + 7, u + 9, u + 10
def pv_head():
    A("s_waitcnt lgkmcnt(0)\ns_barrier")
    A(f"ds_read_b32 v{fm}, v{aMR}")
    for ks in range(8): A(f"ds_read_b128 {vr(fp+4*ks,4)}, v{aPR} offset:{ks*64}")
def pv_mfma(ks, tau):
    a_ = acc + 8*(ks >> 1) + 4*tau
    return mfma(vr(a_,4), vr(fp+4*ks,4), ar(cV+8*ks+4*tau,4), "0" if ks % 2 == 0 else vr(a_,4))
lc = u + 14
pv_side = [dpp("v_add_f32", sa, sa, ROWRED[1]), dpp("v_max_f32", big, fm, ROWRED[0]),
           dpp("v_add_f32", sa, sa, ROWRED[2]), dpp("v_max_f32", big, big, ROWRED[1]),
           dpp("v_add_f32", sa, sa, ROWRED[3]), f"v_sub_f32 v{fm}, v{fm}, v{big}", f"v_sub_f32 v{um}, v{um}, v{big}", f"v_exp_f32 v{fm}, v{fm}",
           f"v_exp_f32 v{um}, v{um}", f"v_mov_b32 v{FA+16}, 0" if False else "s_nop 0",
           f"v_mul_f32 v{sa}, v{sa}, v{um}", f"v_cndmask_b32 v{sa}, v{sa}, v{big}, {sr(mODDL,2)}"]
o0, o1 = lc, um
def scale(op, o, wv, a_): return f"{op}_dpp v{o}, v{fm}, v{a_} row_newbcast:{wv} {DPPM}"
pv_tail = [scale("v_mul_f32", o0, 0, acc), scale("v_mul_f32", o1, 0, acc+4), scale("v_fmac_f32", o0, 1, acc+8), scale("v_fmac_f32", o1, 1, acc+12)]
A("s_waitcnt lgkmcnt(0)\ns_barrier")
stamp(5); FS("att")
pipeline([f"ds_read_b128 {vr(fp,4)}, v{aPR}", f"ds_read_b32 v{fm}, v{aMR}"] + [f"ds_read_b128 {vr(fp+4*ks,4)}, v{aPR} offset:{ks*64}" for ks in range(1, 8)],
         [(pv_mfma(ks, tau), 0 if ks == 0 else (ks + 1 if ks < 2 or not OPT["pvw"] else (ks | 1) + 1)) for ks in range(8) for tau in range(2)], pv_side + pv_tail, start=2, pre=OPT["pre"] + 1)
def pv_finish():
    A(f"""v_mov_b32 v{FA+16}, 0
v_mov_b32 v{FA+17}, 0
{scale("v_fmac_f32", o0, 2, acc+16)}
{scale("v_fmac_f32", o1, 2, acc+20)}
s_nop 2
{scale("v_fmac_f32", o0, 3, acc+24)}
{scale("v_fmac_f32", o1, 3, acc+28)}
v_cvt_pk_bf16_f32 v{o0}, v{o0}, v{o1}
v_cndmask_b32 v{o0}, v{o0}, v{sa}, {sr(mODDR,2)}""")
    pub(f"buffer_store_dword v{o0}, v{aOP}, {WS}, s{sI} offen", sr(mATT,2))
FS("att")
pv_finish()
FS("att"); stamp(6)
A(f"s_cmp_lg_u32 s{sROLE}, 0\ns_cbranch_scc1 L_roleBF")

def wo_dma(i0, i1, v):
    wdma_voff(v, 1152, "wo")
    A(f"""s_lshl_b32 s{sT1}, s{sX}, 1
s_add_u32 s{sT1}, s{sT1}, s{sHALF}
s_lshl_b32 s{sT1}, s{sT1}, 5
s_add_u32 s{sT1}, s{sT1}, s{sW}
s_mul_i32 s{sT1}, s{sT1}, {8*1152}
s_lshl_b32 s{sT2}, s{sCG9}, 7
s_add_u32 s{sT1}, s{sT1}, s{sT2}
s_lshl_b32 s{sT2}, s{sW}, 10
s_add_u32 s{sT2}, s{sT2}, {LR + i0*4096}""")
    if i0: A(f"s_add_u32 s{sT1}, s{sT1}, {i0*32*1152}")
    for i in range(i0, i1):
        dma(rWA, v, sT1, sT2)
        if i < i1 - 1: A(f"s_add_u32 s{sT1}, s{sT1}, {32*1152}\ns_add_u32 s{sT2}, s{sT2}, 4096")
def w2_dma(i0, i1, v):
    wdma_voff(v, 1152, "std")
    A(f"""s_lshl_b32 s{sT1}, s{sX}, 1
s_add_u32 s{sT1}, s{sT1}, s{sHALF}
s_mul_i32 s{sT1}, s{sT1}, 36
s_add_u32 s{sT1}, s{sT1}, s{sW}
s_mul_i32 s{sT1}, s{sT1}, {8*1152}
s_lshl_b32 s{sT2}, s{sCG9}, 7
s_add_u32 s{sT1}, s{sT1}, s{sT2}
s_lshl_b32 s{sT2}, s{sW}, 10
s_add_u32 s{sT2}, s{sT2}, {LW2 + i0*4096}""")
    if i0: A(f"s_add_u32 s{sT1}, s{sT1}, {i0*32*1152}")
    for i in range(i0, i1):
        dma(rW2, v, sT1, sT2)
        if i < i1 - 1: A(f"s_add_u32 s{sT1}, s{sT1}, {32*1152}\ns_add_u32 s{sT2}, s{sT2}, 4096")
def w1_dma(k0, k1, v, done):
    wdma_voff(v, 9216, "std")
    A(f"""s_mul_i32 s{sT1}, s{sHALF}, 18
s_add_u32 s{sT1}, s{sT1}, s{sW}
s_mul_i32 s{sT1}, s{sT1}, {8*9216}
s_mul_i32 s{sT2}, s{sX}, 1152
s_add_u32 s{sT1}, s{sT1}, s{sT2}
s_mul_i32 s{sT2}, s{sCG9}, 384
s_add_u32 s{sT1}, s{sT1}, s{sT2}
s_lshl_b32 s{sT2}, s{sW}, 10
s_add_u32 s{sT2}, s{sT2}, {LR}""")
    for k in range(k0, k1):
        i, c = divmod(k, 3)
        if k == 12: A(f"s_cmp_ge_u32 s{sW}, 2\ns_cbranch_scc1 {done}")
        A(f"s_add_u32 s{sT3}, s{sT1}, {i*32*9216 + c*128}\ns_add_u32 s{sT4}, s{sT2}, {i*4096 + c*18432}")
        dma(rWA, v, sT3, sT4)

def w1_regs():
    for c in range(3): tr_slice(cWA + 18*c, t+8, t+10, c*18432)

POLo = H5o + 120
def probe():
    if OPT["copies"] != 2: return
    if OPT["pol"] < 0:
        A(f"""s_sub_u32 s{sT0}, s{sJ}, 30
s_lshl_b32 s{sT0}, s{sT0}, 14
s_lshl_b32 s{sT1}, s{sW}, 11
s_add_u32 s{sT0}, s{sT0}, s{sT1}
s_add_u32 s{sT4}, s{sT0}, {PROBE}
s_mov_b32 s84, -1
s_mov_b32 s85, -1""")
        for k in range(2*OPT["npair"]):
            c = (k ^ (k >> 1)) & 1
            A(f"s_add_u32 s{sT0}, s{sT4}, {(k >> 1)*128 + c*0x2000}\ns_memtime s[100:101]\ns_waitcnt lgkmcnt(0)\ns_buffer_load_dword s101, {WS}, s{sT0}\ns_waitcnt lgkmcnt(0)")
            A(f"s_memtime {sr(sT2,2)}\ns_waitcnt lgkmcnt(0)\ns_sub_u32 s{sT2}, s{sT2}, s100\ns_min_u32 s{84+c}, s{84+c}, s{sT2}")
        A(f"""s_lshl_b32 s{sT1}, s{sW}, 2
s_add_u32 s{sT1}, s{sT1}, {LMODE}
v_mov_b32 v{t}, s{sT1}
v_mov_b32 v{t+1}, s84
v_mov_b32 v{t+2}, s85
ds_write2_b32 v{t}, v{t+1}, v{t+2} offset0:0 offset1:4""")
def probe_done():
    if OPT["copies"] != 2: return
    if OPT["pol"] >= 0: A(f"s_mov_b32 s{sT4}, {OPT['pol']}")
    else:
        A(f"""v_mov_b32 v{t}, {LMODE}
ds_read_b128 {vr(t+28,4)}, v{t}
ds_read_b128 {vr(t+32,4)}, v{t} offset:16
s_waitcnt lgkmcnt(0)
v_min_u32 v{t}, v{t+28}, v{t+29}
v_min3_u32 v{t}, v{t}, v{t+30}, v{t+31}
v_min_u32 v{t+1}, v{t+32}, v{t+33}
v_min3_u32 v{t+1}, v{t+1}, v{t+34}, v{t+35}
v_cmp_gt_u32 vcc, v{t}, v{t+1}
s_lshr_b32 s{sT0}, s{sXCC}, 2
s_cmp_lg_u32 vcc_lo, 0
s_cselect_b32 s{sT4}, 1, 0
s_xor_b32 s{sT4}, s{sT4}, s{sT0}""")
    A(f"s_sub_u32 s{sT0}, s{sJ}, 30\ns_lshl_b32 s{sT0}, s{sT0}, 2\ns_add_u32 s{sT0}, s{sT0}, {POLo}\nv_mov_b32 v{t}, s{sT0}\nv_mov_b32 v{t+1}, s{sT4}")
    pub(f"buffer_store_dword v{t+1}, v{t}, {WS}, s{sIB} offen", sr(mW0,2))

with Tail():
    ra_, rb_, avt = t, t + 1, t + 2
    gv, gva = gO, gML
    gload = f"buffer_load_dwordx4 {vr(gv,4)}, v{gva}, {WS}, 0 offen sc1"
    A(f"L_rdy:\nv_lshlrev_b32 v{gva}, 4, v{vL}\nv_add_u32 v{gva}, {RDY}, v{gva}")
    BEH = OPT["beh"]; NX = 1 if OPT["touch"] else 0
    x0res = f"s_lshl_b32 s{sT0}, s{sCG9}, 7\ns_lshl_b32 s{sT1}, s{sW}, 5\ns_add_u32 s{sT0}, s{sT0}, s{sT1}\nv_lshl_add_u32 v{t+4}, v{vG}, 3, s{sT0}\nbuffer_load_dwordx2 {vr(vR+2,2)}, v{t+4}, {sr(rXI,4)}, 0 offen"
    def role_dma(done):
        lb = uid("rb")
        A(f"s_cmp_eq_u32 s{sROLE}, 1\ns_cbranch_scc1 {lb}\ns_cmp_eq_u32 s{sROLE}, 2\ns_cbranch_scc1 {done}f")
        if NW2: w2_dma(0, NW2, t+4)
        wo_dma(0, 8, t+4)
        if BEH: A(f"s_waitcnt vmcnt({8 + NW2 + NX + 1})")
        A(f"s_branch {done}\n{lb}:")
        if NB1: w1_dma(0, NB1, t+4, done + "b")
        A(f"{done}b:")
        if BEH: A(f"s_waitcnt vmcnt({min(NB1, 12) + NX + 1})\ns_branch {done}")
        A(f"{done}f:")
        if BEH: A(f"s_waitcnt vmcnt({NX + 1})")
        A(f"{done}:")
    A(x0res)
    if not BEH: role_dma("L_w1_issued")
    A(gload)
    for i in range(NV1, 16): vdma(i)
    A(f"s_mov_b32 s{sHOOK}, 0")
    avt = vKO
    A(f"""v_bfe_u32 v{avt+1}, v{vL}, 3, 2
v_bfe_u32 v{t+4}, v{vL}, 2, 1
v_lshl_or_b32 v{avt+1}, v{t+4}, 2, v{avt+1}
s_lshl_b32 s{sT0}, s{sW}, 1
v_xor_b32 v{avt+1}, s{sT0}, v{avt+1}
v_lshlrev_b32 v{avt+1}, 5, v{avt+1}
v_and_b32 v{avt}, 3, v{vL}
v_lshl_add_u32 v{avt}, v{avt}, 3, v{avt+1}
v_lshl_add_u32 v{avt}, v{t+4}, 12, v{avt}
v_bfe_u32 v{t+4}, v{vL}, 3, 1
v_lshl_add_u32 v{avt}, v{t+4}, 8, v{avt}
v_lshl_add_u32 v{avt}, v{vG}, 10, v{avt}
v_xor_b32 v{avt+1}, 32, v{avt}""")
    def vtr(ks, tau, h): return f"ds_read_b64_tr_b16 {ar(cV+8*ks+4*tau+2*h,2)}, v{avt+tau} offset:{ks*8192+h*512}"
    A(f"s_cmp_eq_u32 s{sROLE}, 1\ns_cbranch_scc1 L_sub\ns_cmp_eq_u32 s{sROLE}, 2\ns_cbranch_scc1 L_sud")
    A(f"""s_and_b32 s{sT0}, s{sW}, 1
s_lshl_b32 s{sT0}, s{sT0}, 1
v_lshrrev_b32 v{t+8}, 3, v{vN}
v_add_u32 v{t+8}, s{sT0}, v{t+8}
v_and_b32 v{t+9}, 1, v{vN}
v_lshlrev_b32 v{t+9}, 4, v{t+9}
v_mov_b32 v{t+10}, 0x3d80
v_lshlrev_b32 v{t+9}, v{t+9}, v{t+10}
v_cmp_eq_u32 vcc, v{t+8}, v{vG}
v_bfe_u32 v{t+10}, v{vN}, 1, 2
s_nop 0
v_cndmask_b32 v{t+9}, 0, v{t+9}, vcc""")
    for r in range(4): A(f"v_cmp_eq_u32 vcc, {r}, v{t+10}\ns_nop 1\nv_cndmask_b32 v{vSEL+r}, 0, v{t+9}, vcc")
    A(f"""v_lshrrev_b32 v{aRES}, 2, v{vN}
v_lshlrev_b32 v{aRES}, 14, v{aRES}
v_and_b32 v{t+8}, 3, v{vN}
v_lshl_add_u32 v{aRES}, v{t+8}, 11, v{aRES}
v_lshl_add_u32 v{aRES}, v{vG}, 4, v{aRES}
s_lshl_b32 s{sT0}, s{sCG9}, 7
s_lshr_b32 s{sT1}, s{sW}, 1
s_lshl_b32 s{sT1}, s{sT1}, 6
s_add_u32 s{sT0}, s{sT0}, s{sT1}
v_add_u32 v{aRES}, s{sT0}, v{aRES}
s_lshl_b32 s{sT0}, s{sHALF}, 13
s_lshl_b32 s{sT1}, s{sW}, 11
s_add_u32 s{sT0}, s{sT0}, s{sT1}
s_add_u32 s{sT0}, s{sT0}, {OPo}
v_lshl_add_u32 v{aO1}, v{vL}, 4, s{sT0}
s_lshl_b32 s{sT0}, s{sHALF}, 10
s_add_u32 s{sT0}, s{sT0}, {MLo}
v_lshl_add_u32 v{aML}, v{vN}, 6, s{sT0}
v_min_u32 v{t+8}, 2, v{vG}
v_lshl_add_u32 v{aML}, v{t+8}, 4, v{aML}
s_mul_i32 s{sT0}, s{sW}, {4*544}
s_add_u32 s{sT0}, s{sT0}, {LOPS}
v_lshrrev_b32 v{aOW}, 5, v{vL}
v_mul_u32_u24 v{aOW}, 544, v{aOW}
v_and_b32 v{t+8}, 31, v{vL}
v_lshl_add_u32 v{aOW}, v{t+8}, 4, v{aOW}
v_add_u32 v{aOW}, s{sT0}, v{aOW}
v_mul_u32_u24 v{aOR}, 544, v{vN}
v_lshl_add_u32 v{aOR}, v{vG}, 4, v{aOR}
v_add_u32 v{aOR}, {LOPS}, v{aOR}
s_lshl_b32 s{sT0}, s{sX}, 1
s_add_u32 s{sT0}, s{sT0}, s{sHALF}
s_lshr_b32 s{sT1}, s{sT0}, 2
s_lshl_b32 s{sT1}, s{sT1}, 14
s_and_b32 s{sT0}, s{sT0}, 3
s_lshl_b32 s{sT0}, s{sT0}, 11
s_add_u32 s{sT0}, s{sT0}, s{sT1}
s_lshl_b32 s{sT1}, s{sCG9}, 7
s_add_u32 s{sT0}, s{sT0}, s{sT1}
XSADDR
s_lshl_b32 s{sT0}, s{sJ}, 2
s_add_u32 s{sT0}, s{sT0}, {H3o}
v_mov_b32 v{aHS}, s{sT0}
s_mul_i32 s{sT0}, s{sHALF}, {288*16}
s_mul_i32 s{sT1}, s{sW}, {72*16}
s_add_u32 s{sT0}, s{sT0}, s{sT1}
s_add_u32 s{sT0}, s{sT0}, {HPo}
v_lshl_add_u32 v{aH1}, v{vL}, 4, s{sT0}
s_add_u32 s{sT0}, s{sT0}, 1024
v_lshl_add_u32 v{aH2}, v{vN}, 4, s{sT0}
v_lshlrev_b32 v{t+8}, 4, v{vN}
v_add_u32 v{t+8}, {HSo - 128}, v{t+8}
v_cmp_gt_u32 vcc, 8, v{vN}
s_mul_i32 s{sT0}, s{sW}, 144
s_add_u32 s{sT0}, s{sT0}, {LH}
v_cndmask_b32 v{aH2}, v{t+8}, v{aH2}, vcc
v_lshl_add_u32 v{aHW}, v{vL}, 1, s{sT0}
s_add_u32 s{sT0}, s{sT0}, 128
v_lshl_add_u32 v{aHW2}, v{vN}, 1, s{sT0}
v_mov_b32 v{t+8}, {LH + 576}
v_cndmask_b32 v{aHW2}, v{t+8}, v{aHW2}, vcc
v_lshlrev_b32 v{aHR}, 4, v{vG}
v_add_u32 v{aHR}, {LH}, v{aHR}""")
    A(f"""v_bfe_u32 v{t+8}, v{vL}, 4, 1
v_bfe_u32 v{t+9}, v{vL}, 2, 1
v_lshl_or_b32 v{t+8}, v{t+9}, 1, v{t+8}
v_xor_b32 v{t+8}, s{sW}, v{t+8}
v_lshlrev_b32 v{t+8}, 5, v{t+8}
v_lshl_add_u32 v{t+8}, v{t+9}, 11, v{t+8}
v_and_b32 v{t+9}, 3, v{vL}
v_lshl_add_u32 v{t+8}, v{t+9}, 3, v{t+8}
v_bfe_u32 v{t+9}, v{vL}, 3, 1
v_lshl_add_u32 v{t+8}, v{t+9}, 7, v{t+8}
v_lshl_add_u32 v{t+8}, v{vG}, 9, v{t+8}
v_add_u32 v{t+8}, {LR}, v{t+8}
""")
    if OPT["one"]:
        k = L.index("XSADDR")
        L[k:k+1] = f"""v_and_b32 v{aLR}, 7, v{vL}
v_lshlrev_b32 v{aLR}, 4, v{aLR}
v_add_u32 v{aXS}, s{sT0}, v{aLR}
v_bfe_u32 v{aLW}, v{vL}, 3, 1
v_lshl_add_u32 v{aXS}, v{aLW}, 13, v{aXS}
v_add_u32 v{aLR}, {LXP}, v{aLR}
s_lshl_b32 s{sT1}, s{sW}, 5
s_add_u32 s{sT1}, s{sT1}, {LXP}
v_lshl_add_u32 v{aLW}, v{vG}, 3, s{sT1}""".split("\n")
    else:
        k = L.index("XSADDR")
        L[k:k+1] = f"""s_lshl_b32 s{sT1}, s{sW}, 5
s_add_u32 s{sT0}, s{sT0}, s{sT1}
v_lshl_add_u32 v{aXS}, v{vG}, 3, s{sT0}
v_lshl_add_u32 v{aXS}, v{vN}, 13, v{aXS}""".split("\n")
    A("s_branch L_sud\nL_sub:")
    A(f"v_add_u32 v{t+11}, 256, v{vL}\nv_min_u32 v{t+11}, 287, v{t+11}")
    x_addr(aB1, 0, sHALF, t+12); x_addr(aB2, t+11, sHALF, t+12)
    A(f"""s_mul_i32 s{sT0}, s{sCG9}, {192*16}
s_lshl_b32 s{sT1}, s{sW}, 8
s_add_u32 s{sT0}, s{sT0}, s{sT1}
s_lshl_b32 s{sT1}, s{sHALF}, 2
s_add_u32 s{sT0}, s{sT0}, s{sT1}
s_add_u32 s{sT0}, s{sT0}, {HPo}
v_lshl_add_u32 v{aBD}, v{vN}, 4, s{sT0}
v_and_b32 v{t+8}, 1, v{vG}
v_lshl_add_u32 v{aBD}, v{t+8}, 11, v{aBD}
v_lshrrev_b32 v{t+8}, 1, v{vG}
v_lshl_add_u32 v{aBD}, v{t+8}, 10, v{aBD}
v_add_u32 v{vS1+1}, {S1o - HPo}, v{aBD}
s_lshl_b32 s{sT0}, s{sHALF}, 5
s_lshl_b32 s{sT1}, s{sW}, 3
s_add_u32 s{sT0}, s{sT0}, s{sT1}
s_add_u32 s{sT0}, s{sT0}, {HSo}
v_lshl_add_u32 v{t+8}, v{vN}, 2, s{sT0}
v_cndmask_b32 v{aBD}, v{aBD}, v{t+8}, {sr(mROW3,2)}
s_mov_b32 s{mLN}, -1
s_mov_b32 s{mLN+1}, 0xffff
s_cmp_eq_u32 s{sCG9}, 0
s_cselect_b32 s{mLN+1}, 0x3ffff, s{mLN+1}""")
    traddr_std(t+8, LR); traddr_tail(t+10, LR)
    A("L_sud:")
    A(f"s_mov_b32 s{sCNT}, 0\ns_waitcnt vmcnt({16 - max(NV1, 8)})\ns_barrier")
    for ks in range(4):
        for tau in range(2):
            for h in range(2): A(vtr(ks, tau, h))
    b_ = gv + 4
    A("L_rdy_chk:")
    for r in range(4): A(f"v_xor_b32 v{b_+r}, s{sE1}, v{gv+r}")
    A(f"v_or_b32 v{t+4}, v{b_}, v{b_+1}\nv_or3_b32 v{t+4}, v{t+4}, v{b_+2}, v{b_+3}\nv_cmp_lt_u32 vcc, 7, v{t+4}\ns_cbranch_vccz L_rdy_ok")
    A(f"s_add_u32 s{sCNT}, s{sCNT}, 1\ns_cmp_ge_u32 s{sCNT}, {OPT['tmo']}\ns_cbranch_scc1 L_end\ns_sleep 16\n{gload}\ns_waitcnt vmcnt(0)\ns_branch L_rdy_chk\nL_rdy_ok:")
    for r in range(4): A(f"v_xor_b32 v{b_+r}, s{sXCC}, v{b_+r}")
    A(f"""v_or_b32 v{t+4}, v{b_}, v{b_+1}
v_or3_b32 v{t+4}, v{t+4}, v{b_+2}, v{b_+3}
v_cmp_ne_u32 vcc, 0, v{t+4}
s_lshl_b32 s{sT1}, s{sX}, 3
s_lshr_b64 {sr(sT2,2)}, vcc, s{sT1}
s_and_b32 s{sT2}, s{sT2}, 0xff
s_cselect_b32 s{sMODE}, 0, {OPT['fast']}""")
    A(f"s_cmp_lg_u32 s{sMODE}, 0\ns_cbranch_scc1 L_nore\ns_mov_b64 exec, 0xffff\n{q0store} sc1\ns_mov_b64 exec, -1\ns_waitcnt vmcnt(0)\nL_nore:")
    NX = 1 if OPT["touch"] else 0
    if NX: A(f"""s_mul_i32 s{sT1}, s{sJ}, {REST}
s_lshl_b32 s{sT2}, s{sW}, 8
s_add_u32 s{sT1}, s{sT1}, s{sT2}
s_sub_u32 s{sT1}, s{sT1}, 256
v_lshl_add_u32 v{ra_}, v{vL}, 7, s{sT1}
s_lshl_b32 s{sT1}, s{sJ}, 9
s_lshl_b32 s{sT2}, s{sW}, 7
s_add_u32 s{sT1}, s{sT1}, s{sT2}
s_add_u32 s{sT1}, s{sT1}, {OPo}
s_lshl_b32 s{sT2}, s{sJ}, 6
s_add_u32 s{sT2}, s{sT2}, {MLo}
v_writelane_b32 v{ra_}, s{sT1}, 0
v_writelane_b32 v{ra_}, s{sT2}, 1
s_mov_b64 exec, 15
buffer_load_dword v8, v{ra_}, {WS}, s{sIB} offen sc1
s_mov_b64 exec, -1""")
    pub(f"buffer_store_dword v{vCS}, v{aQD}, {WS}, s{sIB} offen", "0xffff")
    A(f"v_lshlrev_b32 v{vR}, 16, v{vR+2}\nv_and_b32 v{vR+1}, 0xffff0000, v{vR+2}\nv_lshlrev_b32 v{vR+2}, 16, v{vR+3}\nv_and_b32 v{vR+3}, 0xffff0000, v{vR+3}")
    for r in range(4): A(f"v_mul_f32 v{vR+r}, 0x3b800000, v{vR+r}")
    def wo_regs(a_):
        for kk in range(8):
            for h in range(2): A(f"ds_read_b64_tr_b16 {ar(cWA+4*kk+2*h,2)}, v{a_} offset:{kk*4096+h*256}")
    if BEH:
        A(f"v_mov_b32 v{vQ0}, v{t+8}")
        role_dma("L_w1_issued")
    else:
        A(f"s_cmp_eq_u32 s{sROLE}, 1\ns_cbranch_scc1 L_trb\ns_cmp_eq_u32 s{sROLE}, 2\ns_cbranch_scc1 L_trf")
        wo_regs(t+8)
        A("L_trf:\ns_branch L_trd\nL_trb:")
        if NB1 == 15: w1_regs()
        A(f"L_trd:\ns_waitcnt vmcnt({NX + 1})")
    pv_head()
    stamp(5)
    vq = [vtr(ks, tau, h) for ks in range(4, 8) for tau in range(2) for h in range(2)]
    side = pv_side + pv_tail; n_after = 0
    for ks in range(8):
        A(f"s_waitcnt lgkmcnt({min(15, 7 - ks + n_after) if ks < 4 else (7 - ks)*4})")
        for tau in range(2):
            A(pv_mfma(ks, tau))
            if vq: A(vq.pop(0)); A(vq.pop(0)); n_after += 2
            else:
                for _ in range(2):
                    if side: A(side.pop(0))
    for x in side: A(x + "\ns_nop 0")
    pv_finish()
    stamp(6)
    A(f"s_cmp_lg_u32 s{sROLE}, 0\ns_cbranch_scc1 L_first")
    if BEH:
        A("s_waitcnt vmcnt(1)\ns_barrier")
        wo_regs(vQ0)
    A("s_branch L_wo_go")

A("s_waitcnt vmcnt(1)")
recheck(resload2, range(gRES, gRES+4), u)
A(mfma(vr(vR,4), vr(vSEL,4), vr(gRES,4), "0"))
A("L_wo_go:")
poll(f"""buffer_load_dwordx4 {vr(gO,4)}, v{aO1}, {WS}, s{sI} offen sc1
buffer_load_dwordx4 {vr(gO+4,4)}, v{aO1}, {WS}, s{sI} offen offset:1024 sc1
buffer_load_dwordx4 {vr(gML,4)}, v{aML}, {WS}, s{sI} offen sc1""", range(gO, gO+12), u, None, "",
     f"""v_max_u32 v{u}, v{gO}, v{gO+1}
v_max3_u32 v{u}, v{u}, v{gO+2}, v{gO+3}
ds_write_b128 v{aOW}, {vr(gO,4)}
v_max3_u32 v{u}, v{u}, v{gO+4}, v{gO+5}
v_max3_u32 v{u}, v{u}, v{gO+6}, v{gO+7}
ds_write_b128 v{aOW}, {vr(gO+4,4)} offset:{2*544}
v_max3_u32 v{u}, v{u}, v{gML}, v{gML+1}
v_max3_u32 v{u}, v{u}, v{gML+2}, v{gML+3}
v_cmp_eq_u32 vcc, -1, v{u}""")
stamp(7); FS("wo")
ls, mm, m2, M_ = u, u + 1, u + 2, u + 3
A(f"""v_cndmask_b32 v{mm}, v{gML}, v{gML+1}, {sr(mODDR,2)}
v_cndmask_b32 v{m2}, v{gML}, v{gML+1}, {sr(mODDR,2)}
v_add_f32 v{ls}, v{gML}, v{gML+1}
v_add_f32 v{M_}, v{gML+2}, v{gML+3}
v_permlane32_swap_b32 v{mm}, v{m2}
v_add_f32 v{ls}, v{ls}, v{M_}
s_nop 0""")
A(dpp("v_max_f32", M_, m2, ROWRED[0]))
for p in ROWRED[1:]: A("s_nop 1\n" + dpp("v_max_f32", M_, M_, p))
A(f"v_sub_f32 v{m2}, v{m2}, v{M_}\nv_exp_f32 v{m2}, v{m2}")
FS("wo")
A("s_waitcnt lgkmcnt(0)\ns_barrier")
FS("wo")
fo, wacc = t + 28, u + 8
def hint_send(imm): pub(f"buffer_store_dword v{vL}, v{aHS}, {WS}, s{sI} offen offset:{imm}", sr(mW0,2))
if OPT["h3pos"] == 0: hint_send(0)
w0, w1_ = m2, mm
side = [dpp("v_add_f32", ls, ls, ROWRED[1]), dpp("v_add_f32", ls, ls, ROWRED[2]), dpp("v_add_f32", ls, ls, ROWRED[3]), f"v_rcp_f32 v{ls}, v{ls}",
        f"v_mul_f32 v{w0}, v{m2}, v{ls}\nv_mov_b32 v{M_}, v{w0}", f"v_permlane32_swap_b32 v{w0}, v{M_}\nv_mov_b32 v{w1_}, v{w0}", f"s_nop 0\nv_permlane16_swap_b32 v{w0}, v{w1_}"]
sidew = list(side)
def wo_mf():
    for kk in range(8):
        yield (mfma(vr(wacc+4*(kk >> 2),4), ar(cWA+4*kk,4), vr(fo+4*kk,4), "0" if kk % 4 == 0 else vr(wacc+4*(kk >> 2),4)) + ("\n" + sidew.pop(0) if sidew else ""), kk)
pipeline([f"ds_read_b128 {vr(fo+4*kk,4)}, v{aOR} offset:{kk*64}" for kk in range(8)], list(wo_mf()),
         between=lambda: A(f"v_mul_f32 v{ls}, v{ls}, v{m2}\ns_nop 1\n{dpp('v_add_f32', ls, ls, ROWRED[0])}"))
FS("wo")
if OPT["h3pos"] == 1: hint_send(0)
tt = u + 4
for r in range(4): A(f"v_fma_f32 v{tt+r}, v{w0}, v{wacc+r}, v{vR+r}")
if OPT["h3pos"] != 1: A("s_nop 3")
for r in range(4): A(f"v_fmac_f32 v{tt+r}, v{w1_}, v{wacc+4+r}")
rowred("v_add_f32", [tt, tt+1, tt+2, tt+3])
XM = 0x00030003 if OPT["copies"] == 2 else 0x00010001
def x_publish(src, xoff, hint=None):
    if not OPT["one"]:
        A(f"s_add_u32 s{sT0}, s{sPASS}, {xoff}\nv_cvt_pk_bf16_f32 v{src}, v{src}, v{src+1}\ns_mov_b32 exec_lo, {XM:#x}\ns_mov_b32 exec_hi, {XM:#x}\nv_cvt_pk_bf16_f32 v{src+1}, v{src+2}, v{src+3}")
        A(f"buffer_store_dwordx2 {vr(src,2)}, v{aXS}, {WS}, s{sT0} offen sc1\ns_mov_b64 exec, -1")
        return
    skip = uid("xp")
    A(f"v_cvt_pk_bf16_f32 v{src}, v{src}, v{src+1}\nv_cvt_pk_bf16_f32 v{src+1}, v{src+2}, v{src+3}\nds_write_b64 v{aLW}, {vr(src,2)}\ns_add_u32 s{sT0}, s{sPASS}, {xoff}")
    if hint is not None: hint_send(hint)
    A(f"s_cmp_lg_u32 s{sW}, 0\ns_waitcnt lgkmcnt(0)\ns_barrier\ns_cbranch_scc1 {skip}\nds_read_b128 {vr(src,4)}, v{aLR}\ns_mov_b64 exec, {0xffff if OPT['copies'] == 2 else 0xff:#x}\ns_waitcnt lgkmcnt(0)")
    A(f"buffer_store_dwordx4 {vr(src,4)}, v{aXS}, {WS}, s{sT0} offen sc1\ns_mov_b64 exec, -1\n{skip}:")
FS("wo")
x_publish(tt, X1O, 0 if OPT['h3pos'] == 4 else None)
FS("wo")
if OPT["h3pos"] == 2: hint_send(0)
stamp(8)
A(f"s_cmp_eq_u32 s{sPASS}, 0\ns_cbranch_scc1 L_w2_first\ns_add_u32 s{sXO}, s{sPASS}, s{sCOPY}")
hloads = f"buffer_load_dwordx4 {vr(gH,4)}, v{aH1}, {WS}, s{sI} offen sc1\nbuffer_load_dwordx4 {vr(gH+4,4)}, v{aH2}, {WS}, s{sI} offen sc1"
poll(hloads, range(gH, gH+8), u)
A("L_w2_ok:")
stamp(9); FS("w2")
resload1 = f"buffer_load_dwordx4 {vr(gX1,4)}, v{aRES}, {WS}, s{sXO} offen sc1"
y0, y1, z1, z2, hmu, hrs = u, u + 4, u + 8, u + 9, u + 10, u + 11
A(f"""v_add_f32 v{z1}, v{gH+4}, v{gH+6}
v_add_f32 v{z2}, v{gH+5}, v{gH+7}
{resload1}
v_add_f32 v{y0}, v{gH}, v{gH+1}
{dpp("v_add_f32", hmu, z1, ROWRED[0])}
{dpp("v_add_f32", hrs, z2, ROWRED[0])}
v_add_f32 v{y0+1}, v{gH+2}, v{gH+3}
{dpp("v_add_f32", hmu, hmu, ROWRED[1])}
{dpp("v_add_f32", hrs, hrs, ROWRED[1])}
v_add_f32 v{y1}, v{z1}, v{z2}
{dpp("v_add_f32", hmu, hmu, ROWRED[2])}
{dpp("v_add_f32", hrs, hrs, ROWRED[2])}
v_add_f32 v{y0}, v{y0}, v{y0+1}
v_mul_f32_dpp v{hmu}, v{hmu}, v{vJUNK} row_newbcast:15 {DPPM}
v_mul_f32_dpp v{hrs}, v{hrs}, v{vJUNK} row_newbcast:15 {DPPM}
v_fma_f32 v{hrs}, -v{hmu}, v{hmu}, v{hrs}
v_fma_f32 v{y0}, -v{hmu}, v{vS1}, v{y0}
v_max_f32 v{hrs}, 0, v{hrs}
v_add_f32 v{hrs}, 0x3727c5ac, v{hrs}
v_rsq_f32 v{hrs}, v{hrs}
v_fma_f32 v{y1}, -v{hmu}, v{vS1+1}, v{y1}
s_mov_b32 s{sT0}, {-math.log2(math.e):.9e}
v_fma_f32 v{y0}, v{y0}, v{hrs}, v{vB}
v_fma_f32 v{y1}, v{y1}, v{hrs}, v{vB+1}""")
FS("w2")
e0, e1 = z1, z2
for y in (y0, y1): A(f"v_mul_f32 v{y+1}, s{sT0}, abs(v{y})")
for y in (y0, y1): A(f"v_exp_f32 v{y+1}, v{y+1}")
A(f"v_cmp_le_f32 vcc, 0, v{y0}\nv_cmp_le_f32 {sr(sT2,2)}, 0, v{y1}")
for y in (y0, y1): A(f"v_fma_f32 v{y+2}, v{y+1}, 2.0, 1.0\nv_add_f32 v{y+3}, 2.0, v{y+1}")
for y, e in ((y0, e0), (y1, e1)): A(f"v_mul_f32 v{y+3}, v{y+3}, v{y+1}\nv_mul_f32 v{e}, v{y+1}, v{y+1}")
A(f"v_cndmask_b32 v{y0+2}, v{y0+3}, v{y0+2}, vcc\nv_cndmask_b32 v{y1+2}, v{y1+3}, v{y1+2}, {sr(sT2,2)}")
A(f"v_cndmask_b32 v{e0}, 1.0, v{e0}, vcc\nv_cndmask_b32 v{e1}, 1.0, v{e1}, {sr(sT2,2)}")
for y, e in ((y0, e0), (y1, e1)): A(f"v_fma_f32 v{e}, v{e}, 2.0, v{y+2}")
for y, e in ((y0, e0), (y1, e1)): A(f"v_rcp_f32 v{e}, v{e}")
for y, e in ((y0, e0), (y1, e1)): A(f"v_mul_f32 v{y}, v{y}, v{y+2}")
for y, e in ((y0, e0), (y1, e1)): A(f"v_mul_f32 v{y}, v{y}, v{e}")
A(f"v_cvt_pk_bf16_f32 v{y0}, v{y0}, v{y1}\nds_write_b16 v{aHW}, v{y0}\nds_write_b16_d16_hi v{aHW2}, v{y0}")
FS("w2")
A("s_waitcnt lgkmcnt(0)\ns_barrier")
FS("w2")
fh, w2acc = t + 28, u + 4
def w2_res():
    A("s_waitcnt vmcnt(0)")
    recheck(resload1, range(gX1, gX1+4), u+1)
    A(mfma(vr(vR,4), vr(vSEL,4), vr(gX1,4), "0"))
    FS("w2")
pipeline([f"ds_read_b128 {vr(fh+4*ks,4)}, v{aHR} offset:{ks*64}" for ks in range(9)],
         [(mfma(vr(w2acc,4), ar(cW2+4*ks,4), vr(fh+4*ks,4), "0" if ks == 0 else vr(w2acc,4)), ks) for ks in range(9)],
         [dpp("v_add_f32", vR+r, vR+r, p) for p in ROWRED for r in range(4)], start=3, between=w2_res, per=OPT['w2per'])
FS("w2")
if OPT["h5pos"] == 3: hint_send(128)
mfma_gap()
for r in range(4): A(f"v_add_f32 v{w2acc+r}, v{w2acc+r}, v{vR+r}")
x_publish(w2acc, X2O, 128 if OPT['h5pos'] == 4 else None)
FS("w2")
if OPT["h5pos"] == 2: hint_send(128)
stamp(10)
A(f"s_cmp_eq_u32 s{sPASS}, 0\ns_cbranch_scc1 L_a_first")
def final(on_b):
    if on_b:
        A(f"""s_sub_u32 s{sCG9}, s{sJ}, 18
s_lshl_b32 s{sT0}, s{sX}, 4
s_add_u32 s{sT0}, s{sT0}, s{sCG9}
s_cmp_ge_u32 s{sT0}, 9
s_cbranch_scc1 L_done
s_and_b32 s{sT0}, s{sW}, 1
s_lshl_b32 s{sT0}, s{sT0}, 1
v_lshrrev_b32 v{t}, 3, v{vN}
v_add_u32 v{t}, s{sT0}, v{t}
v_and_b32 v{t+1}, 1, v{vN}
v_lshlrev_b32 v{t+1}, 4, v{t+1}
v_mov_b32 v{t+2}, 0x3f80
v_lshlrev_b32 v{t+1}, v{t+1}, v{t+2}
v_cmp_eq_u32 vcc, v{t}, v{vG}
v_bfe_u32 v{t+2}, v{vN}, 1, 2
v_lshrrev_b32 v{aRES}, 2, v{vN}
v_cndmask_b32 v{t+1}, 0, v{t+1}, vcc""")
        for r in range(4): A(f"v_cmp_eq_u32 vcc, {r}, v{t+2}\ns_nop 1\nv_cndmask_b32 v{vSEL+r}, 0, v{t+1}, vcc")
        A(f"""v_lshlrev_b32 v{aRES}, 14, v{aRES}
v_and_b32 v{t}, 3, v{vN}
v_lshl_add_u32 v{aRES}, v{t}, 11, v{aRES}
v_lshl_add_u32 v{aRES}, v{vG}, 4, v{aRES}
s_lshl_b32 s{sT0}, s{sCG9}, 7
s_lshr_b32 s{sT1}, s{sW}, 1
s_lshl_b32 s{sT1}, s{sT1}, 6
s_add_u32 s{sT0}, s{sT0}, s{sT1}
v_add_u32 v{aRES}, s{sT0}, v{aRES}""")
    else: A(f"s_or_b32 s{sT0}, s{sX}, s{sHALF}\ns_cmp_lg_u32 s{sT0}, 0\ns_cbranch_scc1 L_done")
    A(f"""s_lshl_b32 s{sT0}, s{sCG9}, 7
s_lshl_b32 s{sT1}, s{sW}, 5
s_add_u32 s{sT0}, s{sT0}, s{sT1}
v_lshl_add_u32 v{aXS}, v{vG}, 3, s{sT0}
s_add_u32 s{sXO}, s{sCOPY}, {PS + X2O}
s_mov_b32 s{sT2}, 0x00010001
s_mov_b32 s{sT3}, 0x00010001""")
    if on_b and OPT["outw"]:
        A(f"s_mov_b64 exec, {sr(sT2,2)}\nbuffer_store_dwordx2 {vr(FA+16,2)}, v{aXS}, {sr(rOUT,4)}, 0 offen\ns_mov_b64 exec, -1")
    hint_wait(128, 'fin')
    poll(resload2, range(gRES, gRES+4), u, 1, mfma(vr(vR,4), vr(vSEL,4), vr(gRES,4), "0"))
    A("s_nop 3")
    rowred("v_add_f32", [vR, vR+1, vR+2, vR+3])
    if not on_b:
        for r in range(4): A(f"v_mul_f32 v{vR+r}, 0x41800000, v{vR+r}")
    A(f"v_cvt_pk_bf16_f32 v{vR}, v{vR}, v{vR+1}\ns_mov_b64 exec, {sr(sT2,2)}\nv_cvt_pk_bf16_f32 v{vR+1}, v{vR+2}, v{vR+3}")
    if OPT["echo"] >= 0:
        A("s_mov_b64 exec, -1"); stamp(11)
        A(f"s_nop 1\nv_readlane_b32 s3, v9, {OPT['echo']}\nv_readlane_b32 s84, v9, 0\ns_nop 3\ns_sub_u32 s3, s3, s84\ns_min_u32 s3, s3, 20000\ns_lshl_b32 s3, s3, {OPT['emul']}\ns_add_u32 s3, s3, s{sST}")
        A(f"L_echo:\ns_memrealtime s[84:85]\ns_waitcnt lgkmcnt(0)\ns_sub_u32 s84, s84, s3\ns_cmp_lt_i32 s84, 0\ns_cbranch_scc1 L_echo\ns_mov_b64 exec, {sr(sT2,2)}")
    A(f"buffer_store_dwordx2 {vr(vR,2)}, v{aXS}, {sr(rOUT,4)}, 0 offen\ns_mov_b64 exec, -1")
if not OPT["finb"]: final(False)
A("s_branch L_done")

A(f"L_roleBF:\ns_cmp_lg_u32 s{sROLE}, 1\ns_cbranch_scc1 L_done\nL_w1_go:\ns_add_u32 s{sXO}, s{sPASS}, s{sCOPY}")
x_gather(aB1, aB2, "w1", 0)
stamp(8)
mm_ = main_mfma(3, cWA, 0)
order = [frag_list[0]] + stat_list + frag_list[1:]
pipeline(order, [(m, 0) for m, _ in mm_[:3]] + [(m, 1 + k) for k, m in enumerate(stat_mfma)] + [(m, n + 3) for m, n in mm_[3:]],
         stat_valu + [f"v_cndmask_b32 v{s1}, v{s1}, v{s2}, {sr(mODDL,2)}"], start=9)
FS("w1")
a, b, c = ACC, ACC + 4, ACC + 8
A(f"""s_nop 3
v_add_f32 v{a}, v{a}, v{a+1}
v_add_f32 v{a+2}, v{a+2}, v{a+3}
v_add_f32 v{b}, v{b}, v{b+1}
v_add_f32 v{b+2}, v{b+2}, v{b+3}
v_add_f32 v{c}, v{c}, v{c+1}
v_add_f32 v{c+2}, v{c+2}, v{c+3}
v_add_f32 v{a}, v{a}, v{a+2}
v_add_f32 v{b}, v{b}, v{b+2}
v_add_f32 v{c+1}, v{c}, v{c+2}
v_add_f32 v{c}, v{c}, v{c+2}
v_permlane32_swap_b32 v{a}, v{b}
v_add_f32 v{a}, v{a}, v{b}
v_permlane32_swap_b32 v{c}, v{c+1}
v_add_f32 v{c}, v{c}, v{c+1}
s_nop 1
v_permlane16_swap_b32 v{a}, v{c}
v_add_f32 v{a}, v{a}, v{c}
v_cndmask_b32 v{a}, v{a}, v{s1}, {sr(mROW3,2)}""")
FS("w1")
pub(f"buffer_store_dword v{a}, v{aBD}, {WS}, s{sI} offen", sr(mLN,2))
FS("w1"); stamp(9)
A(f"s_cmp_eq_u32 s{sPASS}, 0\ns_cbranch_scc1 L_bf_first")
if OPT["finb"]: final(True)

A("L_done:")
if PROF:
    stamp(11)
    A(f"s_cmp_lg_u32 s{sW}, 0\ns_cbranch_scc1 L_end\ns_lshl_b32 s{sT0}, s2, 7\ns_add_u32 s{sT0}, s{sT0}, {STAMP}")
    A(f"s_lshr_b32 s3, s{sCOPY}, 12\ns_or_b32 s3, s3, s{sMODE}\nv_writelane_b32 v9, s3, 31\ns_memtime s[100:101]\ns_waitcnt lgkmcnt(0)\ns_sub_u32 s3, s100, s88\nv_writelane_b32 v9, s3, 30\nv_lshlrev_b32 v2, 2, v{vL}\ns_mov_b32 exec_hi, 0")
    for k in range(fcount[0]): A(f"v_writelane_b32 v9, s{FREG[k]}, {1+k}")
    A(f"buffer_store_dword v9, v2, {WS}, s{sT0} offen")
A("L_end:\ns_endpgm")

def pick_issue():
    A(f"v_mov_b32 v{u+15}, {POLo}\nbuffer_load_dword v{u+15}, v{u+15}, {WS}, s{sIB} offen sc1")
def pick_take():
    if OPT["copies"] == 2: A(f"v_readfirstlane_b32 s85, v{u+15}\ns_lshr_b32 s{sT1}, s{sXCC}, 2\ns_nop 0\ns_xor_b32 s{sT1}, s{sT1}, s85\ns_lshl_b32 s{sT1}, s{sT1}, 13\ns_cmp_lt_u32 s85, 2\ns_cselect_b32 s{sCOPY}, s{sT1}, s{sCOPY}")
def late_fill():
    for r in range(4): A(f"v_mov_b32 v{t+12+r}, -1")
    A(f"""s_sub_u32 s{sT0}, s{sJ}, 30
s_mul_i32 s{sT1}, s{sT0}, {23*1024}
s_lshl_b32 s{sT2}, s{sW}, 10
s_add_u32 s{sT1}, s{sT1}, s{sT2}
v_lshl_add_u32 v{t+2}, v{vL}, 4, s{sT1}
s_lshl_b32 s{sT1}, s{sX}, 1
s_add_u32 s{sT1}, s{sT1}, s{sT0}
s_lshl_b32 s{sT4}, s{sT1}, 2
s_lshl_b32 s{sT1}, s{sT1}, 13
s_add_u32 s{sT1}, s{sT1}, s{sT2}
s_add_u32 s{sT1}, s{sT1}, {PS}
v_lshl_add_u32 v{t+3}, v{vL}, 4, s{sT1}
s_add_u32 s{sT0}, s{sIB}, {PS}""")
    for k in range(6):
        if k == 5: A(f"s_cmp_eq_u32 s{sW}, 3\ns_cbranch_scc1 L_lf5")
        A(f"buffer_store_dwordx4 {vr(t+12,4)}, v{t+2}, {WS}, s{sT0} offen sc1\ns_add_u32 s{sT0}, s{sT0}, 4096")
    A("L_lf5:")
    A(f"s_and_b32 s{sT0}, s{sW}, 1\ns_cselect_b64 exec, 0xff, -1\ns_movk_i32 s{sT0}, 4096")
    A(f"buffer_store_dwordx4 {vr(t+12,4)}, v{t+3}, {WS}, 0 offen sc1\nbuffer_store_dwordx4 {vr(t+12,4)}, v{t+3}, {WS}, s{sT0} offen sc1\ns_mov_b64 exec, -1")
    A(f"""s_add_u32 s{sT4}, s{sT4}, {RDY2}
v_lshl_add_u32 v{t+3}, v{vL}, 13, s{sT4}
v_mov_b32 v{t+4}, s{sE1}
s_sub_u32 s{sT0}, s{sJ}, 30
s_mul_i32 s{sT1}, s{sT0}, {23*1024}
s_mul_i32 s{sT2}, s{sW}, {46*128}
s_add_u32 s{sT1}, s{sT1}, s{sT2}
v_lshl_add_u32 v{t+2}, v{vL}, 7, s{sT1}
s_add_u32 s{sT0}, s{sIB}, {PS}
s_waitcnt vmcnt(0)
s_barrier
s_cmp_eq_u32 s{sW}, 0
s_cselect_b64 exec, 3, 0
buffer_store_dword v{t+4}, v{t+3}, {WS}, 0 offen sc1
s_mov_b32 exec_lo, -1
s_mov_b32 exec_hi, {0x3fff if OPT['touch'] else 0:#x}
buffer_load_dword v8, v{t+2}, {WS}, s{sT0} offen sc1
s_mov_b64 exec, -1""")
csload = f"buffer_load_dwordx4 {vr(t+28,4)}, v{aQ1}, {WS}, s{sIB} offen sc1"
def colsum_rows():
    A(f"""v_add_f32 v{u}, v{t+28}, v{t+29}
v_add_f32 v{u+1}, v{t+30}, v{t+31}
v_add_f32 v{u}, v{u}, v{u+1}
v_cvt_pk_bf16_f32 v{u+1}, v{u}, v{u}
v_lshlrev_b32 v{u+2}, 16, v{u+1}
v_sub_f32 v{u}, v{u}, v{u+2}
v_cvt_pk_bf16_f32 v{u}, v{u}, v{u}
ds_write_b16 v{aQW}, v{u+1} offset:1600
ds_write_b16 v{aQW}, v{u} offset:2400""")
with Tail():
    A(f"L_first:\ns_cmp_lg_u32 s{sROLE}, 1\ns_cbranch_scc1 L_firstF")
    if NB1 < 15 or OPT["beh"]:
        if NB1 < 15: w1_dma(NB1, 15, t, "L_w1_rest")
        A("L_w1_rest:")
        traddr_std(t+8, LR); traddr_tail(t+10, LR)
        A("s_waitcnt vmcnt(3)")
        pick_issue()
        A("s_waitcnt vmcnt(0)\ns_barrier")
        stamp(14)
        w1_regs()
    else:
        pick_issue(); A("s_waitcnt vmcnt(0)")
    pick_take()
    A(f"s_mov_b32 s{sHOOK}, 1")
    stamp(15)
    A("s_branch L_w1_go")
    A(f"""L_w2_first:
s_mul_i32 s{sT0}, s{sX}, 1152
s_mul_i32 s{sT1}, s{sHALF}, 576
s_add_u32 s{sT0}, s{sT0}, s{sT1}
s_mul_i32 s{sT1}, s{sW}, 144
s_add_u32 s{sT0}, s{sT0}, s{sT1}
v_lshl_add_u32 v{t}, v{vL}, 1, s{sT0}
v_and_b32 v{t+1}, 7, v{vL}
v_lshl_add_u32 v{t+1}, v{t+1}, 1, s{sT0}""")
    pick_issue()
    A(f"""{csload}
buffer_load_ushort v{vB}, v{t}, {sr(rB1,4)}, 0 offen
buffer_load_ushort v{vB+1}, v{t+1}, {sr(rB1,4)}, 0 offen offset:128""")
    if NW2 < 9: w2_dma(NW2, 9, t)
    A(f"v_add_u32 v{t+2}, {S1o - HPo}, v{aH1}\nv_sub_u32 v{t+3}, v{t+2}, v{aH1}\nv_add_u32 v{t+3}, v{t+3}, v{aH2}\nv_cmp_gt_u32 vcc, 8, v{vN}\ns_nop 1\nv_cndmask_b32 v{t+3}, v{t+2}, v{t+3}, vcc")
    traddr_std(t, LW2)
    A(f"s_waitcnt vmcnt({9 - NW2 + 2})")
    pick_take()
    recheck(csload, range(t+28, t+32), u)
    colsum_rows()
    A(f"s_add_u32 s{sXO}, s{sPASS}, s{sCOPY}\ns_waitcnt vmcnt(0)\ns_barrier")
    stamp(14)
    A(f"v_mov_b32 v{vQ0}, {POLo}\nbuffer_load_dword v{vQ0}, v{vQ0}, {WS}, s{sIB} offen sc1")
    for ks in range(9):
        for h in range(2): A(f"ds_read_b64_tr_b16 {ar(cW2+4*ks+2*h,2)}, v{t} offset:{ks*4096+h*512}")
    A(f"v_lshlrev_b32 v{vB}, 16, v{vB}\nv_lshlrev_b32 v{vB+1}, 16, v{vB+1}")
    stamp(15)
    g1 = gO
    poll(hloads + f"\nbuffer_load_dwordx4 {vr(g1,4)}, v{t+2}, {WS}, s{sI} offen sc1\nbuffer_load_dwordx4 {vr(g1+4,4)}, v{t+3}, {WS}, s{sI} offen sc1", list(range(gH, gH+8)) + list(range(g1, g1+8)), u, OPT["h4d"])
    for k in range(2): A(f"v_add_f32 v{vS1+k}, v{g1+4*k}, v{g1+4*k+1}\nv_add_f32 v{u+k}, v{g1+4*k+2}, v{g1+4*k+3}")
    for k in range(2): A(f"v_add_f32 v{vS1+k}, v{vS1+k}, v{u+k}")
    A(f"s_branch L_w2_ok\nL_a_first:\nv_mov_b32 v{u+15}, v{vQ0}\ns_nop 0")
    pick_take()
    A("s_branch L_q")
    A("L_firstF:")
    if OPT["lf"] == 1: late_fill()
    probe()
    A("s_waitcnt lgkmcnt(0)\ns_barrier")
    probe_done()
    if OPT["lf"] == 2:
        A(f"v_lshlrev_b32 v{t}, 2, v{vN}\nv_add_u32 v{t}, {HSo}, v{t}")
        poll(f"buffer_load_dword v{gHI}, v{t}, {WS}, s{sI} offen sc1", [gHI], None, 1)
    if OPT["lf"] != 1: late_fill()
    A(f"v_mov_b32 v{t}, {EPO}\nv_mov_b32 v{t+1}, s{sE1}\ns_lshl_b32 s{sT0}, s2, 2\ns_add_u32 s{sT0}, s{sT0}, s{sW}\ns_cmp_eq_u32 s{sT0}, 1020\ns_cselect_b64 exec, 1, 0")
    A(f"buffer_store_dword v{t+1}, v{t}, {WS}, 0 offen sc1\ns_mov_b64 exec, -1")
    A(f"L_bf_first:\nv_mov_b32 v{aRES}, 0")
    pick_issue()
    poll(csload, range(t+28, t+32), u, 1)
    colsum_rows()
    pick_take()
    A("s_branch L_q")

body = L + TAIL
if OPT["walk"]:
    chains = [["L_q0_pub", "L_rdy", "L_p2x", "L_sub", "L_first", "L_w2_first", "L_a_first", "L_firstF"], ["L_q", "L_xo2", "L_roleBF", "XO2", "L_trb", "HK"]]
    second_xo = [l for l in body if l.startswith("L_xo")][1][:-1]
    first_xo = [l for l in body if l.startswith("L_xo")][0][:-1]
    rb = [l for l in body if l.startswith("L_rb")][0][:-1]
    for c, names in enumerate(chains):
        names = [{"XO2": second_xo, "L_xo2": first_xo, "L_p2x": rb}.get(n, n) for n in names]
        names = sum([[l[:-1] for l in body if l.startswith("L_hk")] if n == "HK" else [n] for n in names], [])
        names = [n for n in names if n + ":" in body]
        for k, n in enumerate(names):
            i = body.index(n + ":")
            j = i - 1
            while body[j].endswith(":"): j -= 1
            assert body[j].startswith(("s_branch", "s_endpgm")), (n, body[j])
            nxt = f"L_walk{c}_{k+1}" if k + 1 < len(names) else "L_walked"
            body[j+1:j+1] = [f"L_walk{c}_{k}:", f"s_branch {nxt}"]
DEFS = []
if OPT["shift"]: body = ["s_nop 0"] * OPT["shift"] + body
if OPT["al"]:
    sys.path.insert(0, "gen")
    import align
    body, DEFS, miss = align.align(body, "\n".join(out), "")
    print(f"align: {miss} wide instructions left off an 8-byte boundary", file=sys.stderr)
txt = "\n".join(body)
out.append(txt)
out.append(f""".p2align 8
.fill 1024, 4, 0xbf800000
s_endpgm
{chr(10).join(DEFS)}
.section .rodata,"a"
.p2align 6
.amdhsa_kernel {NAME}_kernel
  .amdhsa_next_free_vgpr {NVGPR}
  .amdhsa_next_free_sgpr 102
  .amdhsa_accum_offset 256
  .amdhsa_group_segment_fixed_size 0
  .amdhsa_kernarg_size 96
  .amdhsa_user_sgpr_count 2
  .amdhsa_user_sgpr_kernarg_segment_ptr 1
  .amdhsa_system_sgpr_workgroup_id_x 1
  .amdhsa_float_denorm_mode_32 3
.end_amdhsa_kernel""")
print("\n".join(out))
```

```python
import sys, math
OPT = dict(prof=0, fine="", nk1=6, nq=2, nv1=12, nw2=1, npair=2, nb1=6, nkb=2, q0t=0,  kal=0, walk=2, hskip=2, lf=0, h4d=2, finb=1, one=1, pre=4, w2per=2, pvw=1, bko=0, pal=6, po="333333", outw=1, fast=1, copies=2, pol=-1, rot=2, ra=2, rb=0, ldf="nt", pf=1,
           tmo=1 << 17, h3pos=4, h5pos=4, touch=1, depth=2, echo=-1, emul=2, hd="088", xnoclr=0, xnoq0=0, al=0, beh=0, pfj=31, shift=0, pfl=144)
for a in sys.argv[1:]:
    k, v = a.split("=")
    assert k in OPT, k
    OPT[k] = v if k in ("ldf", "fine", "po", "hd") else int(v, 0)
NAME = "interleave_layers__sliding_block_cached__dense_activation_mish__decode"
LDF = "" if OPT["ldf"] == "plain" else OPT["ldf"].replace("+", " ")
PROF = OPT["prof"]

L = []; TAIL = []
def A(s):
    for ln in s.split("\n"):
        ln = ln.strip()
        if ln: L.append(ln)
intail = [0]; npoll = [0]; ISL = []
class Tail:
    def __enter__(self):
        global L
        self.save = L; L = []; intail[0] += 1
    def __exit__(self, *e):
        global L
        TAIL.extend(L); L = self.save; intail[0] -= 1
_uid = [0]
def uid(p):
    _uid[0] += 1
    return f"L_{p}{_uid[0]}"
def vr(a, n=1): return f"v{a}" if n == 1 else f"v[{a}:{a+n-1}]"
def ar(a, n=1): return f"a{a}" if n == 1 else f"a[{a}:{a+n-1}]"
def sr(a, n=1): return f"s{a}" if n == 1 else f"s[{a}:{a+n-1}]"
DPPM = "row_mask:0xf bank_mask:0xf"
ROWRED = ["quad_perm:[1,0,3,2]", "quad_perm:[2,3,0,1]", "row_half_mirror", "row_mirror"]
def dpp(op, d, s, p): return f"{op}_dpp v{d}, v{s}, v{s} {p} {DPPM}"
def mfma(d, a, b, c): return f"v_mfma_f32_16x16x32_bf16 {d}, {a}, {b}, {c}"

PS = 0x100000
X1O, X2O = 0x00000, 0x10000
IB0 = 0x20000
QPo, HPo, S1o, QSo, HSo, H3o, H5o, OPo, MLo = 0x0000, 0x2000, 0x4400, 0x6800, 0x6880, 0x6900, 0x6980, 0x7000, 0xB000
REST = 0x7000 // 32
Q0B, Q0S = 0xA0000, 0x9000
EPO, RDY, RDY2, PROBE = 0x0F0000, 0x1B1000, 0x1B4000, 0x1C0000
STAMP = 0x200000
WSREC = 0x210000 if PROF else 0x200000
LV, LR, LWQ = 0, 65536, 135168
LW2, LOPS = LR + 32768, LWQ
LQ, LP, LM, LH, LMODE, LXS = 153600, 156800, 158080, 158144, 158784, 158848
LXP = LXS + 4608
LDS_BYTES = 163840
sX, sJ, sW, sPASS, sROLE, sMODE, sCOPY, sIB = 4, 5, 6, 7, 8, 9, 10, 11
rK, rV, rWQ, rWA, rW2, rWS, rXI, rB1, rOUT = 12, 16, 20, 24, 28, 32, 36, 40, 44
mATT, mLN = 48, 50
sT0, sT1, sT2, sT3, sT4, sCNT, sI, sXO = 52, 53, 54, 55, 56, 57, 58, 59
mODDR, sRG, sCG, sST = 60, 62, 63, 64
sE1, sQ0, mW0, mODDL, mROW3 = 68, 69, 70, 72, 90
sHALF, sCG9, sROT, sXCC = 96, 97, 98, 99
sHOOK = sROT
WS = sr(rWS, 4)
vL, vN, vG, vONE, vONE3 = 1, 2, 3, 4, 6
vKO, vJUNK, vCS, vC, vMU, vQ0 = 10, 59, 12, 14, 15, 60
vSEL, vR, vB, vS1 = 16, 20, 24, 26
(aX1, aX2, aXW, aXR, aXT, aS1, aS3, aQD, aQS,
 aQ1, aQ2, aQW, aQR, aPW, aMW, aPR, aMR, aOP, aHL,
 aRES, aO1, aML, aOW, aOR, aXS, aHS, aH1, aH2, aHW, aHW2, aHR) = range(28, 59)
aLW, aLR = 63, 13
aB1, aB2, aBD = aO1, aML, aOW
t = 64
vK = 128
gX, gQ, gQS, gRES, gO, gML, gH, gHI, gX1 = 192, 200, 204, 208, 212, 220, 224, 232, 236
u = 240
cV, cWQ, cWA, cW2, cJUNK = 0, 64, 84, 116, 152
NVGPR = 256 + 160

def stamp(i):
    if PROF == 2 and i != 11: return
    if PROF == 3 and i not in (6, 10, 11): return
    if PROF == 4 and i not in (OPT['echo'] & 15, 11): return
    if PROF: A(f"s_memrealtime {sr(sST, 2)}\ns_lshr_b32 s3, s{sPASS}, 16\ns_add_u32 m0, s3, {i}\ns_waitcnt lgkmcnt(0)\nv_writelane_b32 v9, s{sST}, m0")
FREG = [74, 76, 78, 80, 82, 94, 84, 66, 70] if OPT['fine'] == 'pro' else [74, 76, 78, 80, 82, 92, 94, 84, 66]
fcount = [0]
def FS(stage):
    if OPT["fine"] == stage:
        A(f"s_memtime s[{FREG[fcount[0]]}:{FREG[fcount[0]]+1}]"); fcount[0] += 1

def srd(r, lo, hi, nbytes):
    if r != lo: A(f"s_mov_b32 s{r}, s{lo}")
    A(f"s_and_b32 s{r+1}, s{hi}, 0xffff\ns_mov_b32 s{r+2}, {nbytes}\ns_mov_b32 s{r+3}, 0x20000")
def mask64(reg, lo, hi): A(f"s_mov_b32 s{reg}, {lo:#x}\ns_mov_b32 s{reg+1}, {hi:#x}")
def sentinel_test(regs, tmp):
    regs = list(regs)
    if len(regs) == 1:
        A(f"v_cmp_eq_u32 vcc, -1, v{regs[0]}"); return
    if len(regs) % 2 == 0: A(f"v_max_u32 v{tmp}, v{regs[0]}, v{regs[1]}"); k = 2
    else: A(f"v_max3_u32 v{tmp}, v{regs[0]}, v{regs[1]}, v{regs[2]}"); k = 3
    while k < len(regs):
        A(f"v_max3_u32 v{tmp}, v{tmp}, v{regs[k]}, v{regs[k+1]}"); k += 2
    A(f"v_cmp_eq_u32 vcc, -1, v{tmp}")
def filler(n):
    for _ in range(n):
        A("s_nop 7")
def poll(loads, regs, tmp, depth=None, early="", test=None, hook=None):
    depth = depth or OPT["depth"]
    n = sum(1 for ln in loads.split("\n") if ln.strip().startswith("buffer_"))
    top = uid("poll")
    A(f"s_mov_b32 s{sCNT}, 0")
    for _ in range(depth - 1):
        A(loads); filler({2: 3, 3: 2}[depth])
    if OPT["pal"] and not intail[0] and depth > 1:
        k = npoll[0]; npoll[0] += 1
        A(f".p2align {OPT['pal']}")
        po = [int(c, 36) for c in OPT["po"]]
        for _ in range(po[k] if k < len(po) else 0): A("s_nop 0")
    A(f"{top}:")
    A(loads)
    A(f"s_add_u32 s{sCNT}, s{sCNT}, 1\ns_cmp_gt_u32 s{sCNT}, {OPT['tmo']}\ns_cbranch_scc1 L_end")
    if hook:
        hk, after = uid("hk"), uid("ha")
        A(f"s_cmp_lg_u32 s{sHOOK}, 0\ns_cbranch_scc1 {hk}")
        with Tail():
            A(f"{hk}:\ns_mov_b32 s{sHOOK}, 0"); hook(); A(f"s_waitcnt vmcnt(1)\ns_branch {after}")
    A(f"s_waitcnt vmcnt({(depth - 1)*n})")
    if hook: A(f"{after}:")
    assert depth == 1 or not early
    A(early)
    if test: A(test)
    else: sentinel_test(regs, tmp)
    if OPT["bko"] and depth == 1 and not intail[0]:
        bk = uid("bk")
        A(f"s_cbranch_vccnz {bk}")
        with Tail(): A(f"{bk}:\ns_sleep {OPT['bko']}\ns_branch {top}")
    else: A(f"s_cbranch_vccnz {top}")
def recheck(load, regs, tmp):
    retry, top, back = uid("rc"), uid("rct"), uid("rcb")
    sentinel_test(regs, tmp)
    A(f"s_cbranch_vccnz {retry}\n{back}:")
    with Tail():
        A(f"{retry}:\ns_mov_b32 s{sCNT}, 0\n{top}:\n{load}\ns_waitcnt vmcnt(0)")
        sentinel_test(regs, tmp)
        A(f"s_cbranch_vccz {back}\ns_add_u32 s{sCNT}, s{sCNT}, 1\ns_cmp_lt_u32 s{sCNT}, {OPT['tmo']}\ns_cbranch_scc1 {top}\ns_branch L_end")
def pub(store, mask):
    slow, back = uid("slow"), uid("back")
    A(f"s_cmp_eq_u32 s{sMODE}, 0\ns_mov_b64 exec, {mask}\ns_cbranch_scc1 {slow}\n{store}\n{back}:\ns_mov_b64 exec, -1")
    with Tail(): A(f"{slow}:\n{store} sc1\ns_branch {back}")
def dma(rsrc, voff, soff, lds_s):
    A(f"s_mov_b32 m0, s{lds_s}\ns_nop 0\nbuffer_load_dwordx4 v{voff}, {sr(rsrc,4)}, s{soff} offen {LDF} lds")
def rowred_list(op, regs, steps=ROWRED):
    o = []
    for k, p in enumerate(steps):
        o += [dpp(op, r, r, p) for r in regs]
        if len(regs) < 3 and k < len(steps) - 1: o += ["s_nop 0"] * (3 - len(regs) - 0 if len(regs) == 1 else 1)
    return [x for x in o]
def rowred(op, regs):
    for p in ROWRED:
        for r in regs: A(dpp(op, r, r, p))
        if len(regs) < 3 and p != ROWRED[-1]: A(f"s_nop {2 - len(regs)}")
def weave(main, side, per, start=0):
    side = list(side)
    for k, m in enumerate(main):
        A(m)
        if k >= start:
            for _ in range(per):
                if side: A(side.pop(0))
    for s_ in side: A(s_)

def mfma_gap(need=8):
    n = 0
    for ln in reversed(L):
        if ln.startswith("v_mfma"): break
        if ln.endswith(":") or ln.startswith("."): continue
        if ln.startswith("s_memtime"): continue
        n += int(ln.split()[1]) + 1 if ln.startswith("s_nop") else 1
    if n < need: A(f"s_nop {need - n - 1}")
def pipeline(reads, mf, side=(), start=0, pre=None, between=None, per=2):
    reads = list(reads); side = list(side); pre = OPT["pre"] if pre is None else pre
    n = 0; done = -1
    for _ in range(min(pre, len(reads))): A(reads[n]); n += 1
    if between: between()
    for k, (m, need) in enumerate(mf):
        while n <= need: A(reads[n]); n += 1
        slots = per
        if need > done: A(f"s_waitcnt lgkmcnt({n - 1 - need})"); done = need
        A(m)
        if n < len(reads): A(reads[n]); n += 1; slots -= 1
        if k >= start:
            for _ in range(slots):
                if side: A(side.pop(0))
    for x in reads[n:]: A(x)
    for x in side: A(x)

hdr = open("cdna_kernels/" + NAME + ".s.ref").read().split("; Override launch")[0]
out = [hdr.rstrip(), "; Override launch geometry by editing the next line (default: block=256,",
       "; grid=ceil(out_elems/256), lds=0). Harness parses it; keep it on one line.",
       f"; @launch grid=(256,1,1) block=(256,1,1) lds={LDS_BYTES}",
       '.amdgcn_target "amdgcn-amd-amdhsa--gfx950"', ".text", f".globl {NAME}_kernel"] + ([".p2align 12", f".fill {OPT['kal']*64 + 1}, 4, 0xbf810000"] if OPT["kal"] >= 0 else []) + [".p2align 8",
       f".type {NAME}_kernel,@function", f"{NAME}_kernel:"]

def wdma_voff(dst, rowbytes, kind):
    if kind == "std": A(f"v_bfe_u32 v{dst}, v{vL}, 4, 1\ns_and_b32 s{sT0}, s{sW}, 1\ns_lshl_b32 s{sT0}, s{sT0}, 1")
    else: A(f"v_lshrrev_b32 v{dst}, 5, v{vL}\ns_and_b32 s{sT0}, s{sW}, 2")
    A(f"""v_or_b32 v{dst}, s{sT0}, v{dst}
v_lshlrev_b32 v{dst}, 1, v{dst}
v_xor_b32 v{dst}, v{dst}, v{vL}
v_and_b32 v{dst}, 7, v{dst}
v_lshlrev_b32 v{dst}, 4, v{dst}
v_lshrrev_b32 v{dst+1}, 3, v{vL}
s_mov_b32 s{sT0}, {rowbytes}
v_mad_u32_u24 v{dst}, v{dst+1}, s{sT0}, v{dst}""")
def traddr_std(dst, base):
    A(f"""v_bfe_u32 v{dst}, v{vL}, 3, 2
v_xor_b32 v{dst}, s{sW}, v{dst}
v_lshlrev_b32 v{dst}, 5, v{dst}
v_and_b32 v{dst+1}, 3, v{vL}
v_lshl_add_u32 v{dst}, v{dst+1}, 3, v{dst}
v_bfe_u32 v{dst+1}, v{vL}, 2, 2
v_lshl_add_u32 v{dst}, v{dst+1}, 7, v{dst}
v_lshl_add_u32 v{dst}, v{vG}, 10, v{dst}
v_add_u32 v{dst}, {base}, v{dst}""")
def traddr_tail(dst, base):
    A(f"""v_bfe_u32 v{dst}, v{vL}, 3, 1
v_and_b32 v{dst+1}, 2, v{vG}
v_or_b32 v{dst}, v{dst}, v{dst+1}
v_xor_b32 v{dst}, s{sW}, v{dst}
v_lshlrev_b32 v{dst}, 5, v{dst}
v_and_b32 v{dst+1}, 3, v{vL}
v_lshl_add_u32 v{dst}, v{dst+1}, 3, v{dst}
v_lshrrev_b32 v{dst+1}, 2, v{vL}
v_lshl_add_u32 v{dst}, v{dst+1}, 7, v{dst}
v_add_u32 v{dst}, {base + 16384}, v{dst}""")
def tr_slice(dst, a_std, a_tail, off):
    for ks in range(4):
        for h in range(2): A(f"ds_read_b64_tr_b16 {ar(dst+4*ks+2*h,2)}, v{a_std} offset:{off+ks*4096+h*512}")
    A(f"ds_read_b64_tr_b16 {ar(dst+16,2)}, v{a_tail} offset:{off}")
def x_addr(dst, idx, rg_s, tmp):
    A(f"""v_mul_u32_u24 v{dst}, 3641, v{idx}
v_lshrrev_b32 v{dst}, 16, v{dst}
v_mul_u32_u24 v{tmp}, 18, v{dst}
v_sub_u32 v{tmp}, v{idx}, v{tmp}
v_lshlrev_b32 v{tmp}, 4, v{tmp}
v_and_b32 v{tmp+1}, 3, v{dst}
v_lshl_add_u32 v{tmp}, v{tmp+1}, 11, v{tmp}
v_lshrrev_b32 v{dst}, 2, v{dst}
v_lshl_add_u32 v{dst}, v{dst}, 14, v{tmp}
s_mul_i32 s{sT0}, s{rg_s}, 288
v_add_u32 v{dst}, s{sT0}, v{dst}""")

NK1, NKB, NQ, NV1, NW2, NB1 = OPT["nk1"], OPT["nkb"], OPT["nq"], OPT["nv1"], OPT["nw2"], OPT["nb1"]
sKM, sVM = 66, 67
if PROF: sKM, sVM = 86, 87
def srd2(r, nbytes): A(f"s_mov_b32 s{r+2}, {nbytes}\ns_mov_b32 s{r+3}, 0x20000")
def blk_m0(base, i, mask):
    return f"s_xor_b32 m0, s{base}, {i << 12}\ns_nop 0"
    hi = (i << 12) & ~mask
    return f"s_add_u32 s{sT4}, s{sROT}, {(i << 12) & mask}\ns_and_b32 s{sT4}, s{sT4}, {mask}\n" + (f"s_or_b32 s{sT4}, s{sT4}, {hi}\n" if hi else "") + f"s_add_u32 m0, s{sT4}, s{base}\ns_nop 0"
def kdma(i): A(blk_m0(sKM, i, 0xf000) + f"\nbuffer_load_dwordx4 v{vKO}, {sr(rK,4)}, m0 offen {LDF} lds")

A("s_cmp_ge_u32 s2, 256\ns_cbranch_scc1 L_end")
if PROF: A(f"s_memrealtime {sr(sST,2)}\ns_memtime s[88:89]\nv_mov_b32 v9, 0")
FS("pro")
def PF():
    A(("s_cmp_lt_u32 s2, 248" if OPT["pfj"] else "s_cmp_ge_u32 s2, 8") + f"\ns_cbranch_scc1 L_nopf\ns_getpc_b64 s[100:101]\nL_pc:\nv_min_u32 v8, {OPT['pfl'] - 1}, v0\nv_lshlrev_b32 v8, 7, v8\nglobal_load_dword v8, v8, s[100:101]\nL_nopf:")
NK0 = 0
if OPT["pf"]: PF()
A(f"""s_load_dwordx2 s[{rWQ}:{rWQ+1}], s[0:1], 24
s_load_dwordx2 s[{rXI}:{rXI+1}], s[0:1], 0
s_load_dwordx4 s[{rK}:{rK+3}], s[0:1], 8
s_lshr_b32 s{sJ}, s2, 3
v_readfirstlane_b32 s{sW}, v0
v_lshrrev_b32 v{t+1}, 3, v0
v_lshrrev_b32 v{vG}, 4, v0""")
A(f"""s_mul_i32 s{sRG}, s{sJ}, 37
v_and_b32 v{t}, 2, v{t+1}
s_lshr_b32 s{sRG}, s{sRG}, 8
v_and_or_b32 v{t}, v{vG}, 4, v{t}
s_mul_i32 s{sT0}, s{sRG}, 7
v_xor_b32 v{t}, v{t}, v0
s_sub_u32 s{sCG}, s{sJ}, s{sT0}
v_and_b32 v{t}, 7, v{t}
s_cmp_ge_u32 s{sCG}, 3
v_lshlrev_b32 v{t}, 4, v{t}
s_addc_u32 s{sT0}, s{sCG}, 0
v_and_b32 v{t+1}, 7, v{t+1}
s_cmp_ge_u32 s{sJ}, 28
v_lshl_or_b32 v{t}, v{t+1}, 13, v{t}
s_cselect_b32 s{sRG}, s{sCG}, s{sRG}
s_cselect_b32 s{sCG}, 3, s{sT0}
v_and_b32 v{vL}, 63, v0
s_and_b32 s{sX}, s2, 7
s_mul_i32 s{sT1}, s{sRG}, {144*64}
s_lshl_b32 s{sT2}, s{sW}, 3
s_add_u32 s{sT1}, s{sT1}, s{sT2}
s_lshl_b32 s{sT2}, s{sX}, 3
s_add_u32 s{sT1}, s{sT1}, s{sT2}
s_add_u32 s{sT1}, s{sT1}, s{sCG}
s_lshl_b32 s{sT1}, s{sT1}, 7
s_lshl_b32 s{sVM}, s{sW}, 4
s_add_u32 s{sT2}, s{sVM}, {LWQ}
s_mov_b32 s{rWQ+3}, 0x20000
s_mov_b32 s{rWQ+2}, {576*4096*2}
s_mov_b32 s{rXI+3}, s{rWQ+3}
s_movk_i32 s{rXI+2}, 1152
s_lshr_b32 s{sW}, s{sW}, 6
s_cmp_lg_u32 s{sW}, 2
v_lshlrev_b32 v{t+2}, 4, v{vL}""")
FS("pro")
A(f"""s_waitcnt lgkmcnt(0)
s_cbranch_scc1 L_nox0
buffer_load_dwordx4 {vr(gX,4)}, v{t+2}, {sr(rXI,4)}, 0 offen
buffer_load_dwordx4 {vr(gX+4,4)}, v{t+2}, {sr(rXI,4)}, 0 offen offset:1024
L_nox0:""")
for i in range(4):
    A(f"s_add_u32 m0, s{sT2}, {i*4096}\n" + (f"s_add_u32 s{sT1}, s{sT1}, {32*8192}" if i else f"s_cmp_ge_u32 s{sW}, 2") + f"\nbuffer_load_dwordx4 v{t}, {sr(rWQ,4)}, s{sT1} offen {LDF} lds")
A(f"""s_cmp_ge_u32 s{sW}, 2
s_cbranch_scc1 L_wq4
s_add_u32 m0, s{sT2}, {16*1024}
s_add_u32 s{sT1}, s{sT1}, {32*8192}
buffer_load_dwordx4 v{t}, {sr(rWQ,4)}, s{sT1} offen {LDF} lds
L_wq4:""")
FS("pro")
A(f"""s_load_dwordx2 s[{rWS}:{rWS+1}], s[0:1], 88
v_and_b32 v{vN}, 15, v0
v_and_b32 v{vKO}, 15, v{vG}
s_lshl_b32 s{sT3}, s{sX}, 24
v_xor_b32 v{vKO}, v{vKO}, v{vN}
s_lshr_b32 s{sT0}, s{sJ}, 4
v_lshlrev_b32 v{vKO}, 4, v{vKO}
s_mul_i32 s{sT0}, s{sT0}, {(1 << 23) - (16 << 16)}
v_and_b32 v{vG}, 3, v{vG}
s_lshl_b32 s{sT1}, s{sJ}, 16
v_lshl_or_b32 v{vKO}, v{vG}, 8, v{vKO}
s_add_u32 s{sT0}, s{sT0}, s{sT3}
s_add_u32 s{sT0}, s{sT0}, s{sT1}
s_add_u32 s{sCNT}, s{sT0}, {28672*256 - LR}
s_lshl_b32 s{sROT}, s{sX}, 13
s_add_u32 s{sKM}, s{sVM}, s{sROT}
s_add_u32 s{sKM}, s{sKM}, {LR}
s_add_u32 s{rV}, s14, s{sCNT}
s_addc_u32 s{rV+1}, s15, 0
s_add_u32 s{rK}, s12, s{sCNT}
s_addc_u32 s{rK+1}, s13, 0""")
srd2(rK, LR + 65536)
for i in range(NK1): kdma(i)
FS("pro")
A("s_waitcnt lgkmcnt(0)")
srd2(rWS, WSREC)
A(f"""s_add_u32 s{rV}, s{rV}, {LR}
s_addc_u32 s{rV+1}, s{rV+1}, 0
s_and_b32 s{sT0}, s{sROT}, 0x7000
s_add_u32 s{sVM}, s{sVM}, s{sT0}
s_load_dwordx2 s[{rWA}:{rWA+1}], s[0:1], 32
s_load_dwordx2 s[92:93], s[0:1], 48
s_load_dwordx2 s[{rB1}:{rB1+1}], s[0:1], 56
s_load_dwordx2 s[{rW2}:{rW2+1}], s[0:1], 64
s_load_dwordx2 s[{rOUT}:{rOUT+1}], s[0:1], 72""")
A(f"s_mov_b32 s{sT1}, {EPO}\ns_buffer_load_dword s{sE1}, {WS}, s{sT1}")
A(f"""s_lshl_b32 s{sIB}, s{sX}, 16
s_add_u32 s{sIB}, s{sIB}, {IB0}
s_mul_i32 s{sQ0}, s{sX}, {Q0S}
s_add_u32 s{sQ0}, s{sQ0}, {Q0B}
s_mov_b32 s{sPASS}, 0""")
if PROF: A(f"v_writelane_b32 v9, s{sST}, 0")
traddr_std(t, LWQ); traddr_tail(t+2, LWQ)
FA = t + 8
A(f"""v_mov_b32 v{FA+16}, 0
v_mov_b32 v{FA+17}, 0
v_mov_b32 v{FA+18}, 0
v_mov_b32 v{FA+19}, 0
v_lshlrev_b32 v{aXW}, 4, v0
v_add_u32 v{aXW}, {LXS}, v{aXW}
ds_write_b128 v{aXW}, {vr(FA+16,4)} offset:512
v_mul_u32_u24 v{aXR}, 288, v{vN}
v_lshl_add_u32 v{aXT}, v{vG}, 3, v{aXR}
v_add_u32 v{aXT}, {LXS + 256}, v{aXT}
v_lshl_add_u32 v{aXR}, v{vG}, 4, v{aXR}
v_add_u32 v{aXR}, {LXS}, v{aXR}
v_mov_b32 v{aS1}, v{aXR}
v_mov_b32 v{aS3}, v{aXR}
s_lshl_b32 s{sT0}, s{sCG}, 10
s_lshl_b32 s{sT1}, s{sW}, 8
s_add_u32 s{sT0}, s{sT0}, s{sT1}
s_lshl_b32 s{sT1}, s{sRG}, 2
s_add_u32 s{sT0}, s{sT0}, s{sT1}
v_lshl_add_u32 v{aQD}, v{vN}, 4, s{sT0}
s_cmp_lg_u32 s{sW}, 2
s_cbranch_scc1 L_pwx""")
NCLR = 4
xf, z1, z2 = t + 40, u + 4, u + 5
A(f"""v_mov_b32 v{z1}, 0
v_mov_b32 v{z2}, 0
v_mov_b32 v{u+6}, 0x3f803f80
v_lshlrev_b32 v{t+4}, 4, v{vL}
v_add_u32 v{t+4}, {LXS}, v{t+4}
s_mov_b32 exec_lo, 0xfffc0000
s_mov_b32 exec_hi, 0
ds_write_b128 v{t+4}, {vr(FA+16,4)}
s_mov_b64 exec, -1
s_mul_i32 s{sT0}, s{sRG}, 18
s_lshl_b32 s{sT1}, s{sT0}, 4
v_subrev_u32 v{t+5}, s{sT1}, v{t+4}
s_mov_b64 {sr(sT2,2)}, 0x3ffff
s_lshl_b64 {sr(sT2,2)}, {sr(sT2,2)}, s{sT0}
s_waitcnt vmcnt({4 + NK1 - NK0})""")
for k in range(8): A(f"v_dot2c_f32_bf16 v{z1}, v{gX+k}, v{u+6}\nv_dot2c_f32_bf16 v{z2}, v{gX+k}, v{gX+k}")
for k in range(4): A(f"v_lshlrev_b32 v{xf+2*k}, 16, v{gX+k}\nv_and_b32 v{xf+2*k+1}, 0xffff0000, v{gX+k}")
rowred("v_add_f32", [z1, z2])
for sw in ("16", "32"):
    A(f"v_mov_b32 v{u+6}, v{z1}\nv_mov_b32 v{u+7}, v{z2}\ns_nop 0\nv_permlane{sw}_swap_b32 v{z1}, v{u+6}\nv_permlane{sw}_swap_b32 v{z2}, v{u+7}\nv_add_f32 v{z1}, v{z1}, v{u+6}\nv_add_f32 v{z2}, v{z2}, v{u+7}")
A(f"v_mul_f32 v{u+6}, {1/576:.9e}, v{z1}")
for k in range(8): A(f"v_sub_f32 v{xf+k}, v{xf+k}, v{u+6}")
for k in range(4): A(f"v_cvt_pk_bf16_f32 v{xf+k}, v{xf+2*k}, v{xf+2*k+1}")
A(f"""v_fma_f32 v{z2}, -v{u+6}, v{z1}, v{z2}
v_mov_b32 v{u+7}, {LMODE}
v_mul_f32 v{z2}, 0x3d800000, v{z2}
s_mov_b64 exec, {sr(sT2,2)}
ds_write_b128 v{t+5}, {vr(xf,4)}
ds_write2_b32 v{u+7}, v{z2}, v{FA+16} offset0:0 offset1:1
s_mov_b64 exec, -1
s_cmp_lg_u32 s{sRG}, 3
s_cbranch_scc1 L_x0d""")
for k in range(4): A(f"v_lshlrev_b32 v{xf+8+2*k}, 16, v{gX+4+k}\nv_and_b32 v{xf+8+2*k+1}, 0xffff0000, v{gX+4+k}")
for k in range(8): A(f"v_sub_f32 v{xf+8+k}, v{xf+8+k}, v{u+6}")
for k in range(4): A(f"v_cvt_pk_bf16_f32 v{xf+8+k}, v{xf+8+2*k}, v{xf+8+2*k+1}")
A(f"s_mov_b64 exec, 0xff\nds_write_b128 v{t+4}, {vr(xf+8,4)} offset:160\ns_mov_b64 exec, -1\nL_x0d:")
for i in range(NK1, NK1 + NKB): kdma(i)
A(f"s_waitcnt vmcnt({NK1 - NK0 + NKB})\nL_bar1:")
FS("pro")
A(f"s_waitcnt lgkmcnt(0)\ns_barrier")
NEAR = []
with Tail():
    A(f"L_pwx:\ns_cmp_eq_u32 s{sW}, {7 if OPT['xnoclr'] else 3}\ns_cbranch_scc1 L_pw3")
    if OPT["q0t"]:
        A(f"s_lshl_b32 s{sT1}, s{sJ}, 9\ns_lshl_b32 s{sT2}, s{sW}, 8\ns_add_u32 s{sT1}, s{sT1}, s{sT2}\nv_lshl_add_u32 v{t+6}, v{vL}, 7, s{sT1}\ns_mov_b64 exec, 3\nbuffer_load_dword v8, v{t+6}, {WS}, s{sQ0} offen sc1\ns_mov_b64 exec, -1")
    for i in range(NK1, NK1 + NKB): kdma(i)
    if OPT["walk"]: A(f"s_cmp_eq_u32 s{sW}, 0\ns_cbranch_scc1 L_walk0_0\ns_branch L_walk1_0\nL_walked:")
    A(f"s_waitcnt vmcnt({NK1 - NK0 + NKB + (1 if OPT['q0t'] else 0)})\ns_branch L_bar1")
    q4 = vr(u, 4)
    A("L_pw3:")
    for r in range(4): A(f"v_mov_b32 v{u+r}, -1")
    A(f"""s_mul_i32 s{sT1}, s{sJ}, {REST}
v_lshl_add_u32 v{t+6}, v{vL}, 4, s{sT1}
s_lshl_b32 s{sT1}, s{sJ}, 9
s_add_u32 s{sT1}, s{sT1}, {OPo}
v_lshl_add_u32 v{t+7}, v{vL}, 4, s{sT1}
s_lshl_b32 s{sT1}, s{sJ}, 6
s_add_u32 s{sT1}, s{sT1}, {MLo - 512}
v_lshl_add_u32 v{t+8}, v{vL}, 4, s{sT1}
v_cmp_gt_u32 vcc, 32, v{vL}
s_lshl_b32 s{sT1}, s2, 9
v_lshl_add_u32 v{t+9}, v{vL}, 4, s{sT1}
v_cndmask_b32 v{t+7}, v{t+8}, v{t+7}, vcc
s_lshr_b32 s{sT1}, s2, 6
s_lshl_b32 s{sT1}, s{sT1}, 14
s_and_b32 s{sT2}, s2, 63
s_lshl_b32 s{sT2}, s{sT2}, 7
s_add_u32 s{sT1}, s{sT1}, s{sT2}
s_add_u32 s{sT1}, s{sT1}, {PROBE}
v_lshl_add_u32 v{t+8}, v{vL}, 4, s{sT1}
v_lshrrev_b32 v{t+10}, 3, v{vL}
v_mul_u32_u24 v{t+10}, {0x2000 - 128}, v{t+10}
v_add_u32 v{t+8}, v{t+8}, v{t+10}
s_mov_b32 exec_hi, 0xf
buffer_store_dwordx4 {q4}, v{t+7}, {WS}, s{sIB} offen sc1
s_mov_b32 exec_hi, {(1 << (REST//16 - 32)) - 1:#x}
buffer_store_dwordx4 {q4}, v{t+6}, {WS}, s{sIB} offen sc1
s_and_b32 s{sT1}, s2, 3
s_cmp_eq_u32 s{sT1}, 2
s_cselect_b32 s{sT2}, 0xff, -1
s_cmp_eq_u32 s{sT1}, 3
s_cselect_b32 exec_lo, 1, s{sT2}
s_mov_b32 exec_hi, 0
buffer_store_dwordx4 {q4}, v{t+9}, {WS}, 0 offen sc1
s_mov_b32 exec_lo, 0xffff
buffer_store_dwordx4 {q4}, v{t+8}, {WS}, 0 offen sc1
s_mov_b64 exec, -1""")
    for i in range(NK1, NK1 + NKB): kdma(i)
    A(f"s_waitcnt vmcnt({NK1 - NK0 + NKB + NCLR})\ns_branch L_bar1")
NEAR = TAIL[:]; del TAIL[:]
stamp(2); FS("pro")
tr_slice(cWQ, t, t+2, 0)
A(f"s_and_b32 s{sE1}, s{sE1}, -16\ns_add_u32 s{sE1}, s{sE1}, 16")
A("s_branch L_q_reads")
L.extend(NEAR)

HD = dict(zip(("q", "w1", "fin"), [int(c, 36) for c in OPT["hd"]]))
def hint_wait(imm, site):
    skip = uid("hs")
    A(f"s_cmp_lg_u32 s{sW}, 3\ns_cbranch_scc1 {skip}")
    poll(f"buffer_load_dword v{gHI}, v{aHL}, {WS}, s{sI} offen offset:{imm} sc1", [gHI], None)
    if HD[site]:
        A(f"s_cmp_lt_u32 s{sCNT}, {OPT['hskip']}\ns_cbranch_scc1 {skip}"); filler(HD[site])
    A(f"{skip}:\ns_barrier")
def w1_colsum():
    ACC = t + 40
    for r in range(4): A(f"v_mov_b32 v{t+28+r}, v{vONE}")
    A(f"v_mov_b32 v{t+32}, 0\nv_mov_b32 v{t+33}, 0\nv_mov_b32 v{t+34}, v{vONE}\nv_mov_b32 v{t+35}, v{vONE}\nv_cmp_eq_u32 vcc, 2, v{vG}\ns_waitcnt lgkmcnt(0)")
    for ks in range(5):
        for c in range(3):
            A(mfma(vr(ACC+4*c,4), vr(t+28 if ks < 4 else t+32,4), ar(cWA+18*c+(4*ks if ks < 4 else 14),4), "0" if ks == 0 else vr(ACC+4*c,4)))
    A(f"s_mov_b32 s{sT2}, -1\ns_mov_b32 s{sT3}, 0xffff\ns_nop 4\nv_cndmask_b32 v{ACC}, v{ACC}, v{ACC+4}, vcc\nv_cndmask_b32 v{vS1}, v{ACC}, v{ACC+8}, {sr(mODDR,2)}")
    pub(f"buffer_store_dword v{vS1}, v{vS1+1}, {WS}, s{sI} offen", sr(sT2,2))
def x_gather(a1, a2, stg, imm):
    other, join = uid("xo"), uid("xj")
    l1 = f"buffer_load_dwordx4 {vr(gX,4)}, v{a1}, {WS}, s{sXO} offen sc1"
    l2 = f"buffer_load_dwordx4 {vr(gX+4,4)}, v{a2}, {WS}, s{sXO} offen sc1"
    w1 = f"ds_write_b128 v{aXW}, {vr(gX,4)}"
    w2 = f"s_mov_b32 exec_hi, 0\nds_write_b128 v{aXW}, {vr(gX+4,4)} offset:4096\ns_mov_b32 exec_hi, -1"
    A(f"s_cmp_lg_u32 s{sW}, 0\ns_cbranch_scc1 {other}\ns_barrier")
    hook = w1_colsum if stg == "w1" else None
    poll(l1 + "\n" + l2, range(gX, gX+8), u, 1, w1 + "\n" + w2, hook=hook)
    FS(stg)
    A(f"s_branch {join}\n{other}:")
    if stg == "q": A(f"v_mov_b32 v{u+12}, s{sE1}")
    hint_wait(imm, stg)
    stamp(12 if stg == "q" else 7)
    if stg == "q":
        A(f"s_cmp_eq_u32 s{sW}, 1\nL_xq1_top:\n{l1}\ns_cbranch_scc0 L_xq1_a\nbuffer_load_dword v{u+12}, v{u+14}, {WS}, s{sCOPY} offen sc1\nL_xq1_a:")
        A(f"s_add_u32 s{sCNT}, s{sCNT}, 1\ns_cmp_gt_u32 s{sCNT}, {OPT['tmo']}\ns_cbranch_scc1 L_end\ns_cmp_eq_u32 s{sW}, 1\ns_waitcnt vmcnt(0)\n{w1}")
        A(f"v_cmp_ne_u32 {sr(sT0,2)}, s{sE1}, v{u+12}\nv_max_u32 v{u}, v{gX}, v{gX+1}\nv_max3_u32 v{u}, v{u}, v{gX+2}, v{gX+3}\nv_cndmask_b32 v{u}, v{u}, -1, {sr(sT0,2)}")
        A(f"v_cmp_eq_u32 vcc, -1, v{u}\ns_cbranch_vccnz L_xq1_top")
    else: poll(l1, range(gX, gX+4), u, 1, w1, hook=hook)
    A(f"{join}:\ns_waitcnt lgkmcnt(0)\ns_barrier")
    FS(stg)
FSt, ACC, SAC = t + 28, t + 40, t + 52
def stat_reads(): A(f"ds_read_b64_tr_b16 {vr(FSt,2)}, v{aS1}\nds_read_b64_tr_b16 {vr(FSt+2,2)}, v{aS1} offset:128\nds_read_b64_tr_b16 {vr(FSt+4,2)}, v{aS3}")
def frag_reads():
    for ks in range(4): A(f"ds_read_b128 {vr(FA+4*ks,4)}, v{aXR} offset:{ks*64}")
    A(f"ds_read_b64 {vr(FA+18,2)}, v{aXT}")
stat_mfma = [f"v_mfma_f32_16x16x16_bf16 {vr(SAC+4*k,4)}, {vr(vONE if k < 2 else vONE3,2)}, {vr(FSt+2*k,2)}, 0" for k in range(3)]
s1, s2 = u + 2, u + 3
stat_valu = [f"v_add_f32 v{s1}, v{SAC}, v{SAC+4}", f"v_mul_f32 v{s2}, v{SAC}, v{SAC}", f"v_add_f32 v{s1}, v{s1}, v{SAC+8}",
             f"v_fmac_f32 v{s2}, v{SAC+4}, v{SAC+4}", f"v_fmac_f32 v{s2}, v{SAC+8}, v{SAC+8}", "s_nop 0"]
for k, p in enumerate(ROWRED): stat_valu += ["s_nop 0", dpp("v_add_f32", s1, s1, p), dpp("v_add_f32", s2, s2, p)]
def main_mfma(nt, w, base):
    return [(mfma(vr(ACC+4*k,4), vr(FA+4*ks,4), ar(w+18*k+(4*ks if ks < 4 else 14),4), "0" if ks == 0 else vr(ACC+4*k, 4)), base + ks) for ks in range(5) for k in range(nt)]
frag_list = [f"ds_read_b128 {vr(FA+4*ks,4)}, v{aXR} offset:{ks*64}" for ks in range(4)] + [f"ds_read_b64 {vr(FA+18,2)}, v{aXT}"]
stat_list = [f"ds_read_b64_tr_b16 {vr(FSt,2)}, v{aS1}", f"ds_read_b64_tr_b16 {vr(FSt+2,2)}, v{aS1} offset:128", f"ds_read_b64_tr_b16 {vr(FSt+4,2)}, v{aS3}"]

A("L_q:")
A(f"v_lshlrev_b32 v{u+14}, 2, v{vN}\nv_add_u32 v{u+14}, {RDY2}, v{u+14}")
A(f"s_add_u32 s{sXO}, s{sCOPY}, {X2O}\ns_mov_b32 s{sCNT}, 0")
x_gather(aX1, aX2, "q", 128)
stamp(13)
A(f"s_mov_b32 s{sPASS}, {PS}\nL_q_reads:")
pipeline(frag_list + stat_list, main_mfma(1, cWQ, 0), between=lambda: A(f"s_add_u32 s{sI}, s{sIB}, s{sPASS}"))
FS("q")
a = ACC
A(f"""s_cmp_eq_u32 s{sPASS}, 0
s_nop 6
v_add_f32 v{a}, v{a}, v{a+1}
v_add_f32 v{a+2}, v{a+2}, v{a+3}
v_add_f32 v{a}, v{a}, v{a+2}
v_mov_b32 v{a+1}, v{a}
s_nop 1
v_permlane32_swap_b32 v{a}, v{a+1}
v_add_f32 v{a}, v{a}, v{a+1}
v_mov_b32 v{a+1}, v{a}
s_cbranch_scc1 L_q0_pub
s_nop 0
v_permlane16_swap_b32 v{a}, v{a+1}
v_add_f32 v{a}, v{a}, v{a+1}""")
FS("q")
pub(f"buffer_store_dword v{a}, v{aQD}, {WS}, s{sI} offen", "0xffff")
FS("q")
A("s_waitcnt lgkmcnt(0)")
for m in stat_mfma: A(m)
A("s_nop 6")
for x in stat_valu: A(x)
A(f"s_cmp_eq_u32 s{sCG}, 0\ns_cselect_b64 {sr(sT2,2)}, 1, 0")
pub(f"buffer_store_dwordx2 {vr(s1,2)}, v{aQS}, {WS}, s{sI} offen", sr(sT2,2))
FS("q")
A("L_att_poll:")

with Tail():
    A(f"L_q0_pub:\ns_nop 0\nv_permlane16_swap_b32 v{a}, v{a+1}\nv_add_f32 v{vQ0}, v{a}, v{a+1}")
    q0store = f"buffer_store_dwordx2 {vr(vQ0,2)}, v{vQ0+2}, {WS}, s{sQ0} offen"
    A(f"""v_mov_b32 v{vQ0+1}, s{sE1}
v_lshlrev_b32 v{vQ0+2}, 1, v{aQD}
s_mov_b64 exec, 0xffff
{q0store}
s_mov_b64 exec, -1""")
    for i in range(NK1 + NKB, 16): kdma(i)
    vo = u + 12
    A(f"""s_and_b32 s{sT0}, s{sW}, 1
s_lshl_b32 s{sT0}, s{sT0}, 1
v_and_b32 v{vo}, 1, v{vG}
v_or_b32 v{vo}, s{sT0}, v{vo}
v_lshlrev_b32 v{vo}, 1, v{vo}
v_xor_b32 v{vo}, v{vo}, v{vN}
v_lshlrev_b32 v{vo}, 4, v{vo}
v_lshl_add_u32 v{vo}, v{vG}, 8, v{vo}
s_lshr_b32 s{sT0}, s{sROT}, 5
s_and_b32 s{sT0}, s{sT0}, 128
v_xor_b32 v{vo}, s{sT0}, v{vo}
v_xor_b32 v{vo+1}, 128, v{vo}""")
    srd2(rV, 65536)
    def vdma(i): A(blk_m0(sVM, i, 0x7000) + f"\nbuffer_load_dwordx4 v{vo + (i & 1)}, {sr(rV,4)}, m0 offen {LDF} lds")
    for i in range(NQ): vdma(i)
    A(f"""s_getreg_b32 s{sXCC}, hwreg(HW_REG_XCC_ID)
s_and_b32 s{sXCC}, s{sXCC}, 7
s_cmp_lg_u32 s{sW}, 3
s_cbranch_scc1 L_nordy
s_lshl_b32 s{sT0}, s{sX}, 7
s_lshl_b32 s{sT1}, s{sJ}, 2
s_add_u32 s{sT0}, s{sT0}, s{sT1}
s_add_u32 s{sT0}, s{sT0}, {RDY}
v_mov_b32 v{u+14}, s{sT0}
s_or_b32 s{sT0}, s{sE1}, s{sXCC}
v_mov_b32 v{u+15}, s{sT0}
s_mov_b64 exec, 1
s_waitcnt vmcnt({16 - NK1 + NQ + 1})
buffer_store_dword v{u+15}, v{u+14}, {WS}, 0 offen sc1
s_mov_b64 exec, -1
L_nordy:
s_lshr_b32 s{sT0}, s{sJ}, 4
s_lshl_b32 s{sT0}, s{sT0}, 12
v_lshl_add_u32 v{aQ1}, v0, 4, s{sT0}
v_lshlrev_b32 v{t}, 1, v{aQ1}""")
    g0 = t + 28
    q0loads = f"""buffer_load_dwordx4 {vr(g0,4)}, v{t}, {WS}, s{sQ0} offen sc1
buffer_load_dwordx4 {vr(g0+4,4)}, v{t}, {WS}, s{sQ0} offen offset:16 sc1"""
    if OPT["xnoq0"] < 1: A(q0loads)
    for i in range(NQ, NV1): vdma(i)
    srd2(rW2, 4608*576*2); srd2(rB1, 4608*2); srd2(rOUT, 1152)
    A(f"""s_mov_b32 s{sMODE}, 0
s_mov_b32 s{sCOPY}, 0
s_mov_b32 s{sI}, s{sIB}
s_cmp_ge_u32 s{sJ}, 18
s_cselect_b32 s{sROLE}, 1, 0
s_cselect_b32 s{rWA}, s92, s{rWA}
s_cselect_b32 s{rWA+1}, s93, s{rWA+1}
s_mov_b32 s{rWA+2}, {4096*576*2}
s_cselect_b32 s{rWA+2}, {576*4608*2}, s{rWA+2}
s_mov_b32 s{rWA+3}, 0x20000
s_cmp_ge_u32 s{sJ}, 30
s_cselect_b32 s{sROLE}, 2, s{sROLE}
s_cmp_ge_u32 s{sJ}, 9
s_cselect_b32 s{sHALF}, 1, 0
s_mul_i32 s{sT0}, s{sHALF}, 9
s_sub_u32 s{sCG9}, s{sJ}, s{sT0}
s_sub_u32 s{sT0}, s{sJ}, 18
s_and_b32 s{sT1}, s{sT0}, 3
s_lshr_b32 s{sT0}, s{sT0}, 2
s_and_b32 s{sT0}, s{sT0}, 3
s_cmp_eq_u32 s{sROLE}, 0
s_cselect_b32 s{sHALF}, s{sHALF}, s{sT1}
s_cselect_b32 s{sCG9}, s{sCG9}, s{sT0}
v_mov_b32 v{vONE}, 0x3f803f80
v_mov_b32 v{vONE+1}, 0x3f803f80
s_cmp_eq_u32 s{sW}, 0
s_cselect_b32 s{sT0}, 0x3f803f80, 0
s_cselect_b64 {sr(mW0,2)}, 1, 0
v_mov_b32 v{vONE3}, s{sT0}
v_mov_b32 v{vONE3+1}, s{sT0}
v_mov_b32 v{vJUNK}, {1/576:.9e}""")
    mask64(mODDR, 0xffff0000, 0xffff0000); mask64(mODDL, 0xaaaaaaaa, 0xaaaaaaaa); mask64(mROW3, 0, 0xffff0000)
    c1, c2, CS = t + 40, t + 44, t + 48
    for r in range(4): A(f"v_mov_b32 v{c1+r}, v{vONE}")
    A(f"v_mov_b32 v{c2}, 0\nv_mov_b32 v{c2+1}, 0\nv_mov_b32 v{c2+2}, v{vONE}\nv_mov_b32 v{c2+3}, v{vONE}")
    for r in list(range(aRES, aHR + 1)) + [vS1 + 1, aLW, aLR]: A(f"v_mov_b32 v{r}, 0")
    for ks in range(4): A(mfma(vr(CS,4), vr(c1,4), ar(cWQ+4*ks,4), "0" if ks == 0 else vr(CS,4)))
    A(mfma(vr(CS,4), vr(c2,4), ar(cWQ+14,4), vr(CS,4)))
    A(f"""v_lshrrev_b32 v{aS3}, 2, v{vL}
v_mul_u32_u24 v{aS3}, 288, v{aS3}
v_and_b32 v{aS1}, 3, v{vL}
v_lshl_add_u32 v{aS3}, v{aS1}, 3, v{aS3}
s_lshl_b32 s{sT0}, s{sW}, 5
s_add_u32 s{sT0}, s{sT0}, {LXS}
v_add_u32 v{aS1}, s{sT0}, v{aS3}
v_add_u32 v{aS3}, {LXS + 256}, v{aS3}
s_lshl_b32 s{sT0}, s{sRG}, 5
s_lshl_b32 s{sT1}, s{sW}, 3
s_add_u32 s{sT0}, s{sT0}, s{sT1}
s_add_u32 s{sT0}, s{sT0}, {QSo}
v_mov_b32 v{aQS}, s{sT0}
v_lshrrev_b32 v{t+4}, 7, v0
v_mul_u32_u24 v{t+4}, 128, v{t+4}
v_lshl_add_u32 v{aQW}, v0, 1, v{t+4}
v_add_u32 v{aQW}, {LQ}, v{aQW}
ds_write_b16 v{aQW}, v{c2} offset:1600
ds_write_b16 v{aQW}, v{c2} offset:2400
v_mov_b32 v{t+4}, {LMODE}
ds_read_b32 v{gQS+1}, v{t+4}
v_mov_b32 v{gQS}, 0
v_mov_b32 v{vCS}, v{CS}""")
    A(f"v_add_u32 v{t+3}, 256, v{vL}\nv_min_u32 v{t+3}, 287, v{t+3}")
    x_addr(aX1, 0, sRG, t+4); x_addr(aX2, t+3, sRG, t+4)
    A(f"""v_lshlrev_b32 v{aQ2}, 3, v{vN}
v_add_u32 v{aQ2}, {QSo}, v{aQ2}
v_lshrrev_b32 v{t+4}, 3, v{vN}
v_mul_u32_u24 v{aPR}, 640, v{t+4}
v_mul_u32_u24 v{aQR}, 384, v{t+4}
v_and_b32 v{t+4}, 3, v{vN}
v_mul_u32_u24 v{t+5}, 800, v{t+4}
v_add_u32 v{aQR}, v{aQR}, v{t+5}
v_lshl_add_u32 v{aQR}, v{vG}, 4, v{aQR}
v_add_u32 v{aQR}, {LQ}, v{aQR}
v_lshl_add_u32 v{aPR}, v{vG}, 4, v{aPR}
v_add_u32 v{aPR}, {LP}, v{aPR}
v_lshrrev_b32 v{t+5}, 5, v{vL}
v_mul_u32_u24 v{aPW}, 640, v{t+5}
v_and_b32 v{aMW}, 31, v{vL}
v_lshl_add_u32 v{aPW}, v{aMW}, 2, v{aPW}
s_lshl_b32 s{sT0}, s{sW}, 7
s_add_u32 s{sT0}, s{sT0}, {LP}
v_add_u32 v{aPW}, s{sT0}, v{aPW}
v_lshlrev_b32 v{aMR}, 4, v{t+5}
s_lshl_b32 s{sT0}, s{sW}, 2
s_add_u32 s{sT0}, s{sT0}, {LM}
v_add_u32 v{aMW}, s{sT0}, v{aMR}
v_lshl_add_u32 v{aMR}, v{t+4}, 2, v{aMR}
v_add_u32 v{aMR}, {LM}, v{aMR}
v_min_u32 v{aHL}, 17, v{vL}
v_lshlrev_b32 v{aHL}, 2, v{aHL}
v_add_u32 v{aHL}, {H3o}, v{aHL}""")
    A(f"""s_lshl_b32 s{sT0}, s{sJ}, 9
s_lshl_b32 s{sT1}, s{sW}, 6
s_add_u32 s{sT0}, s{sT0}, s{sT1}
s_add_u32 s{sT0}, s{sT0}, {OPo}
v_lshlrev_b32 v{aOP}, 8, v{t+5}
v_lshl_add_u32 v{aOP}, v{vN}, 2, v{aOP}
v_add_u32 v{aOP}, s{sT0}, v{aOP}
s_lshl_b32 s{sT0}, s{sJ}, 6
s_add_u32 s{sT0}, s{sT0}, {MLo}
s_lshl_b32 s{sT1}, s{sW}, 2
s_add_u32 s{sT1}, s{sT1}, s{sT0}
v_lshl_add_u32 v{t+4}, v{t+5}, 4, s{sT1}
s_lshl_b32 s{sT1}, s{sW}, 3
s_add_u32 s{sT1}, s{sT1}, s{sT0}
s_add_u32 s{sT1}, s{sT1}, 32
v_lshl_add_u32 v{t+5}, v{t+5}, 2, s{sT1}
v_cndmask_b32 v{t+4}, v{t+4}, v{t+5}, {sr(mODDL,2)}
v_cndmask_b32 v{aOP}, v{aOP}, v{t+4}, {sr(mODDR,2)}
s_mov_b32 s{mATT}, 0x1ffff
s_cmp_lt_u32 s{sW}, 2
s_cselect_b32 s{mATT}, 0x3ffff, s{mATT}
s_mov_b32 s{mATT+1}, s{mATT}""")
    ka = t + 4
    A(f"s_lshl_b32 s{sT0}, s{sW}, 14\ns_add_u32 s{sT0}, s{sT0}, {LR}\nv_lshl_add_u32 v{u+8}, v{vN}, 8, s{sT0}\nv_xor_b32 v{u+9}, v{vG}, v{vN}")
    for ks in range(4): A(f"v_xor_b32 v{ka+ks}, {ks << 2}, v{u+9}\nv_lshl_add_u32 v{ka+ks}, v{ka+ks}, 4, v{u+8}")
    def q0_test():
        A(f"v_xor_b32 v{u+8}, s{sE1}, v{g0+1}")
        for k in range(1, 4): A(f"v_xor_b32 v{u+9}, s{sE1}, v{g0+2*k+1}\nv_or_b32 v{u+8}, v{u+8}, v{u+9}")
        A(f"v_cmp_ne_u32 vcc, 0, v{u+8}")
    if OPT["walk"] == 2:
        A(f"s_cmp_eq_u32 s{sW}, 0\ns_cbranch_scc1 L_walka_0\ns_cmp_eq_u32 s{sW}, 1\ns_cbranch_scc1 L_walkb_0\ns_cmp_eq_u32 s{sW}, 2\ns_cbranch_scc1 L_walkc_0\ns_branch L_walkd_0\nL_walked2:")
    A(f"v_mov_b32 v{u+10}, {LMODE + 4}\ns_waitcnt vmcnt({NV1 - NQ})")
    q0_test()
    A(f"s_mov_b64 exec, vcc\nds_write_b32 v{u+10}, v{vONE}\ns_mov_b64 exec, -1\ns_waitcnt lgkmcnt(0)\ns_barrier")
    stamp(3)
    A(f"ds_read_b32 v{u+11}, v{u+10}")
    for Tt in range(4):
        for ks in range(4): A(f"ds_read_b128 {vr(vK+16*Tt+4*ks,4)}, v{ka+ks} offset:{Tt*4096}")
        if Tt == 1: A(f"s_waitcnt lgkmcnt(8)\nv_readfirstlane_b32 s{sT0}, v{u+11}")
    A(f"s_cmp_eq_u32 s{sT0}, 0\ns_cbranch_scc1 L_q0_ok")
    if OPT["xnoq0"]: A("s_branch L_q0_ok")
    A(f"s_mov_b64 exec, 0xffff\n{q0store} sc1\ns_mov_b64 exec, -1\ns_mov_b32 s{sCNT}, 0\nL_q0_chk:")
    q0_test()
    A(f"s_cbranch_vccz L_q0_ok\ns_add_u32 s{sCNT}, s{sCNT}, 1\ns_cmp_ge_u32 s{sCNT}, {OPT['tmo']}\ns_cbranch_scc1 L_end\n{q0loads}\ns_waitcnt vmcnt(0)\ns_branch L_q0_chk\nL_q0_ok:")
    for k in range(4): A(f"v_mov_b32 v{gQ+k}, v{g0+2*k}")
    A("s_branch L_att_ok")

poll(f"buffer_load_dwordx4 {vr(gQ,4)}, v{aQ1}, {WS}, s{sI} offen sc1", range(gQ, gQ+4), u)
qsload = f"buffer_load_dwordx2 {vr(gQS,2)}, v{aQ2}, {WS}, s{sI} offen sc1"
resload2 = f"buffer_load_dwordx4 {vr(gRES,4)}, v{aRES}, {WS}, s{sXO} offen sc1"
A("L_att_ok:")
stamp(4); FS("att")
qv, qh, ql = u, u + 1, u + 2
A(f"""v_add_f32 v{qv}, v{gQ}, v{gQ+1}
v_add_f32 v{qh}, v{gQ+2}, v{gQ+3}
s_cmp_eq_u32 s{sPASS}, 0
v_add_f32 v{qv}, v{qv}, v{qh}
v_cvt_pk_bf16_f32 v{qh}, v{qv}, v{qv}
ds_write_b16 v{aQW}, v{qh}
v_lshlrev_b32 v{ql}, 16, v{qh}
v_sub_f32 v{qv}, v{qv}, v{ql}
v_cvt_pk_bf16_f32 v{qv}, v{qv}, v{qv}
ds_write_b16 v{aQW}, v{qv} offset:800
s_cbranch_scc1 L_att_nold
{qsload}
{resload2}
L_att_nold:""")
FS("att")
A("s_waitcnt lgkmcnt(0)\ns_barrier")
FS("att")
fq, D = t + 28, t + 44
for ks in range(4): A(f"ds_read_b128 {vr(fq+4*ks,4)}, v{aQR} offset:{ks*64}")
qk = [(f"s_waitcnt lgkmcnt({3-ks})\n" if Tt == 0 else "") + mfma(vr(D+4*Tt,4), vr(fq+4*ks,4), vr(vK+16*Tt+4*ks,4), "0" if ks == 0 else vr(D+4*Tt,4))
      for Tt in range(4) for ks in range(4)]
for m in qk[:4]: A(m)
A("s_cbranch_scc1 L_att_nochk\ns_waitcnt vmcnt(1)")
recheck(qsload, [gQS, gQS+1], u+3)
A("L_att_nochk:")
z1, z2 = u + 4, u + 5
side = [dpp("v_add_f32", z1, gQS, ROWRED[0]), dpp("v_add_f32", z2, gQS+1, ROWRED[0])]
for p in ROWRED[1:]: side += [dpp("v_add_f32", z1, z1, p), dpp("v_add_f32", z2, z2, p)]
side += [f"v_mul_f32 v{vMU}, {1/576:.9e}, v{z1}", f"v_mul_f32 v{z2}, {1/576:.9e}, v{z2}", f"v_fma_f32 v{z2}, -v{vMU}, v{vMU}, v{z2}",
         f"v_add_f32 v{D}, v{D}, v{D+1}", f"v_max_f32 v{z2}, 0, v{z2}", f"v_add_f32 v{z2}, 0x3727c5ac, v{z2}", f"v_rsq_f32 v{vC}, v{z2}",
         f"v_add_f32 v{D+2}, v{D+2}, v{D+3}", f"v_mul_f32 v{vC}, {128**-0.5*math.log2(math.e):.9e}, v{vC}",
         f"v_add_f32 v{D+4}, v{D+4}, v{D+5}", f"v_add_f32 v{D+6}, v{D+6}, v{D+7}", f"v_mul_f32 v{vMU}, v{vMU}, v{vC}"]
weave(qk[4:], side, 2)
FS("att")
sa, sb, um, tm = u + 6, u + 7, u + 8, u + 9
A(f"""v_add_f32 v{D+8}, v{D+8}, v{D+9}
v_add_f32 v{D+10}, v{D+10}, v{D+11}
v_cndmask_b32 v{sa}, v{D}, v{D+8}, {sr(mODDR,2)}
v_cndmask_b32 v{tm}, v{D+2}, v{D+10}, {sr(mODDR,2)}
v_mul_f32 v{sa}, v{sa}, v{vC}
v_fma_f32 v{sa}, -v{vMU}, v{tm}, v{sa}
s_nop 1
v_add_f32 v{D+12}, v{D+12}, v{D+13}
v_add_f32 v{D+14}, v{D+14}, v{D+15}
v_cndmask_b32 v{sb}, v{D+4}, v{D+12}, {sr(mODDR,2)}
v_cndmask_b32 v{tm}, v{D+6}, v{D+14}, {sr(mODDR,2)}
v_mul_f32 v{sb}, v{sb}, v{vC}
v_fma_f32 v{sb}, -v{vMU}, v{tm}, v{sb}
v_max_f32 v{um}, v{sa}, v{sb}
v_max_f32 v{tm}, v{sa}, v{sb}
s_nop 1
v_permlane16_swap_b32 v{um}, v{tm}
v_max_f32 v{um}, v{um}, v{tm}
s_nop 1""")
rowred("v_max_f32", [um])
A(f"""v_sub_f32 v{sa}, v{sa}, v{um}
v_sub_f32 v{sb}, v{sb}, v{um}
ds_write_b32 v{aMW}, v{um}
v_exp_f32 v{sa}, v{sa}
v_exp_f32 v{sb}, v{sb}
s_cmp_eq_u32 s{sPASS}, 0
v_cvt_pk_bf16_f32 v{tm}, v{sa}, v{sb}
ds_write_b32 v{aPW}, v{tm}""")
FS("att")
A(f"v_lshlrev_b32 v{sa}, 16, v{tm}\nv_and_b32 v{sb}, 0xffff0000, v{tm}\nv_add_f32 v{sa}, v{sa}, v{sb}\nv_add_f32 v{u+14}, v{sa}, 0\ns_nop 1\nv_permlane16_swap_b32 v{sa}, v{u+14}\nv_add_f32 v{sa}, v{sa}, v{u+14}\ns_nop 1\n{dpp('v_add_f32', sa, sa, ROWRED[0])}\ns_cbranch_scc1 L_rdy")
fp, acc, fm, big, fb = t - 0, t + 32, u + 7, u + 9, u + 10
def pv_head():
    A("s_waitcnt lgkmcnt(0)\ns_barrier")
    A(f"ds_read_b32 v{fm}, v{aMR}")
    for ks in range(8): A(f"ds_read_b128 {vr(fp+4*ks,4)}, v{aPR} offset:{ks*64}")
def pv_mfma(ks, tau):
    a_ = acc + 8*(ks >> 1) + 4*tau
    return mfma(vr(a_,4), vr(fp+4*ks,4), ar(cV+8*ks+4*tau,4), "0" if ks % 2 == 0 else vr(a_,4))
lc = u + 14
pv_side = [dpp("v_add_f32", sa, sa, ROWRED[1]), dpp("v_max_f32", big, fm, ROWRED[0]),
           dpp("v_add_f32", sa, sa, ROWRED[2]), dpp("v_max_f32", big, big, ROWRED[1]),
           dpp("v_add_f32", sa, sa, ROWRED[3]), f"v_sub_f32 v{fm}, v{fm}, v{big}", f"v_sub_f32 v{um}, v{um}, v{big}", f"v_exp_f32 v{fm}, v{fm}",
           f"v_exp_f32 v{um}, v{um}", f"v_mov_b32 v{FA+16}, 0" if False else "s_nop 0",
           f"v_mul_f32 v{sa}, v{sa}, v{um}", f"v_cndmask_b32 v{sa}, v{sa}, v{big}, {sr(mODDL,2)}"]
o0, o1 = lc, um
def scale(op, o, wv, a_): return f"{op}_dpp v{o}, v{fm}, v{a_} row_newbcast:{wv} {DPPM}"
pv_tail = [scale("v_mul_f32", o0, 0, acc), scale("v_mul_f32", o1, 0, acc+4), scale("v_fmac_f32", o0, 1, acc+8), scale("v_fmac_f32", o1, 1, acc+12)]
A("s_waitcnt lgkmcnt(0)\ns_barrier")
stamp(5); FS("att")
pipeline([f"ds_read_b128 {vr(fp,4)}, v{aPR}", f"ds_read_b32 v{fm}, v{aMR}"] + [f"ds_read_b128 {vr(fp+4*ks,4)}, v{aPR} offset:{ks*64}" for ks in range(1, 8)],
         [(pv_mfma(ks, tau), 0 if ks == 0 else (ks + 1 if ks < 2 or not OPT["pvw"] else (ks | 1) + 1)) for ks in range(8) for tau in range(2)], pv_side + pv_tail, start=2, pre=OPT["pre"] + 1)
def pv_finish():
    A(f"""v_mov_b32 v{FA+16}, 0
v_mov_b32 v{FA+17}, 0
{scale("v_fmac_f32", o0, 2, acc+16)}
{scale("v_fmac_f32", o1, 2, acc+20)}
s_nop 2
{scale("v_fmac_f32", o0, 3, acc+24)}
{scale("v_fmac_f32", o1, 3, acc+28)}
v_cvt_pk_bf16_f32 v{o0}, v{o0}, v{o1}
v_cndmask_b32 v{o0}, v{o0}, v{sa}, {sr(mODDR,2)}""")
    pub(f"buffer_store_dword v{o0}, v{aOP}, {WS}, s{sI} offen", sr(mATT,2))
FS("att")
pv_finish()
FS("att"); stamp(6)
A(f"s_cmp_lg_u32 s{sROLE}, 0\ns_cbranch_scc1 L_roleBF")

def wo_dma(i0, i1, v):
    wdma_voff(v, 1152, "wo")
    A(f"""s_lshl_b32 s{sT1}, s{sX}, 1
s_add_u32 s{sT1}, s{sT1}, s{sHALF}
s_lshl_b32 s{sT1}, s{sT1}, 5
s_add_u32 s{sT1}, s{sT1}, s{sW}
s_mul_i32 s{sT1}, s{sT1}, {8*1152}
s_lshl_b32 s{sT2}, s{sCG9}, 7
s_add_u32 s{sT1}, s{sT1}, s{sT2}
s_lshl_b32 s{sT2}, s{sW}, 10
s_add_u32 s{sT2}, s{sT2}, {LR + i0*4096}""")
    if i0: A(f"s_add_u32 s{sT1}, s{sT1}, {i0*32*1152}")
    for i in range(i0, i1):
        dma(rWA, v, sT1, sT2)
        if i < i1 - 1: A(f"s_add_u32 s{sT1}, s{sT1}, {32*1152}\ns_add_u32 s{sT2}, s{sT2}, 4096")
def w2_dma(i0, i1, v):
    wdma_voff(v, 1152, "std")
    A(f"""s_lshl_b32 s{sT1}, s{sX}, 1
s_add_u32 s{sT1}, s{sT1}, s{sHALF}
s_mul_i32 s{sT1}, s{sT1}, 36
s_add_u32 s{sT1}, s{sT1}, s{sW}
s_mul_i32 s{sT1}, s{sT1}, {8*1152}
s_lshl_b32 s{sT2}, s{sCG9}, 7
s_add_u32 s{sT1}, s{sT1}, s{sT2}
s_lshl_b32 s{sT2}, s{sW}, 10
s_add_u32 s{sT2}, s{sT2}, {LW2 + i0*4096}""")
    if i0: A(f"s_add_u32 s{sT1}, s{sT1}, {i0*32*1152}")
    for i in range(i0, i1):
        dma(rW2, v, sT1, sT2)
        if i < i1 - 1: A(f"s_add_u32 s{sT1}, s{sT1}, {32*1152}\ns_add_u32 s{sT2}, s{sT2}, 4096")
def w1_dma(k0, k1, v, done):
    wdma_voff(v, 9216, "std")
    A(f"""s_mul_i32 s{sT1}, s{sHALF}, 18
s_add_u32 s{sT1}, s{sT1}, s{sW}
s_mul_i32 s{sT1}, s{sT1}, {8*9216}
s_mul_i32 s{sT2}, s{sX}, 1152
s_add_u32 s{sT1}, s{sT1}, s{sT2}
s_mul_i32 s{sT2}, s{sCG9}, 384
s_add_u32 s{sT1}, s{sT1}, s{sT2}
s_lshl_b32 s{sT2}, s{sW}, 10
s_add_u32 s{sT2}, s{sT2}, {LR}""")
    for k in range(k0, k1):
        i, c = divmod(k, 3)
        if k == 12: A(f"s_cmp_ge_u32 s{sW}, 2\ns_cbranch_scc1 {done}")
        A(f"s_add_u32 s{sT3}, s{sT1}, {i*32*9216 + c*128}\ns_add_u32 s{sT4}, s{sT2}, {i*4096 + c*18432}")
        dma(rWA, v, sT3, sT4)

def w1_regs():
    for c in range(3): tr_slice(cWA + 18*c, t+8, t+10, c*18432)

POLo = H5o + 120
def probe():
    if OPT["copies"] != 2: return
    if OPT["pol"] < 0:
        A(f"""s_sub_u32 s{sT0}, s{sJ}, 30
s_lshl_b32 s{sT0}, s{sT0}, 14
s_lshl_b32 s{sT1}, s{sW}, 11
s_add_u32 s{sT0}, s{sT0}, s{sT1}
s_add_u32 s{sT4}, s{sT0}, {PROBE}
s_mov_b32 s84, -1
s_mov_b32 s85, -1""")
        for k in range(2*OPT["npair"]):
            c = (k ^ (k >> 1)) & 1
            A(f"s_add_u32 s{sT0}, s{sT4}, {(k >> 1)*128 + c*0x2000}\ns_memtime s[100:101]\ns_waitcnt lgkmcnt(0)\ns_buffer_load_dword s101, {WS}, s{sT0}\ns_waitcnt lgkmcnt(0)")
            A(f"s_memtime {sr(sT2,2)}\ns_waitcnt lgkmcnt(0)\ns_sub_u32 s{sT2}, s{sT2}, s100\ns_min_u32 s{84+c}, s{84+c}, s{sT2}")
        A(f"""s_lshl_b32 s{sT1}, s{sW}, 2
s_add_u32 s{sT1}, s{sT1}, {LMODE}
v_mov_b32 v{t}, s{sT1}
v_mov_b32 v{t+1}, s84
v_mov_b32 v{t+2}, s85
ds_write2_b32 v{t}, v{t+1}, v{t+2} offset0:0 offset1:4""")
def probe_done():
    if OPT["copies"] != 2: return
    if OPT["pol"] >= 0: A(f"s_mov_b32 s{sT4}, {OPT['pol']}")
    else:
        A(f"""v_mov_b32 v{t}, {LMODE}
ds_read_b128 {vr(t+28,4)}, v{t}
ds_read_b128 {vr(t+32,4)}, v{t} offset:16
s_waitcnt lgkmcnt(0)
v_min_u32 v{t}, v{t+28}, v{t+29}
v_min3_u32 v{t}, v{t}, v{t+30}, v{t+31}
v_min_u32 v{t+1}, v{t+32}, v{t+33}
v_min3_u32 v{t+1}, v{t+1}, v{t+34}, v{t+35}
v_cmp_gt_u32 vcc, v{t}, v{t+1}
s_lshr_b32 s{sT0}, s{sXCC}, 2
s_cmp_lg_u32 vcc_lo, 0
s_cselect_b32 s{sT4}, 1, 0
s_xor_b32 s{sT4}, s{sT4}, s{sT0}""")
    A(f"s_sub_u32 s{sT0}, s{sJ}, 30\ns_lshl_b32 s{sT0}, s{sT0}, 2\ns_add_u32 s{sT0}, s{sT0}, {POLo}\nv_mov_b32 v{t}, s{sT0}\nv_mov_b32 v{t+1}, s{sT4}")
    pub(f"buffer_store_dword v{t+1}, v{t}, {WS}, s{sIB} offen", sr(mW0,2))

with Tail():
    ra_, rb_, avt = t, t + 1, t + 2
    gv, gva = gO, gML
    gload = f"buffer_load_dwordx4 {vr(gv,4)}, v{gva}, {WS}, 0 offen sc1"
    A(f"L_rdy:\nv_lshlrev_b32 v{gva}, 4, v{vL}\nv_add_u32 v{gva}, {RDY}, v{gva}")
    BEH = OPT["beh"]; NX = 1 if OPT["touch"] else 0
    x0res = f"s_lshl_b32 s{sT0}, s{sCG9}, 7\ns_lshl_b32 s{sT1}, s{sW}, 5\ns_add_u32 s{sT0}, s{sT0}, s{sT1}\nv_lshl_add_u32 v{t+4}, v{vG}, 3, s{sT0}\nbuffer_load_dwordx2 {vr(vR+2,2)}, v{t+4}, {sr(rXI,4)}, 0 offen"
    def role_dma(done):
        lb = uid("rb")
        A(f"s_cmp_eq_u32 s{sROLE}, 1\ns_cbranch_scc1 {lb}\ns_cmp_eq_u32 s{sROLE}, 2\ns_cbranch_scc1 {done}f")
        if NW2: w2_dma(0, NW2, t+4)
        wo_dma(0, 8, t+4)
        if BEH: A(f"s_waitcnt vmcnt({8 + NW2 + NX + 1})")
        A(f"s_branch {done}\n{lb}:")
        if NB1: w1_dma(0, NB1, t+4, done + "b")
        A(f"{done}b:")
        if BEH: A(f"s_waitcnt vmcnt({min(NB1, 12) + NX + 1})\ns_branch {done}")
        A(f"{done}f:")
        if BEH: A(f"s_waitcnt vmcnt({NX + 1})")
        A(f"{done}:")
    A(x0res)
    if not BEH: role_dma("L_w1_issued")
    A(gload)
    for i in range(NV1, 16): vdma(i)
    A(f"s_mov_b32 s{sHOOK}, 0")
    avt = vKO
    A(f"""v_bfe_u32 v{avt+1}, v{vL}, 3, 2
v_bfe_u32 v{t+4}, v{vL}, 2, 1
v_lshl_or_b32 v{avt+1}, v{t+4}, 2, v{avt+1}
s_lshl_b32 s{sT0}, s{sW}, 1
v_xor_b32 v{avt+1}, s{sT0}, v{avt+1}
v_lshlrev_b32 v{avt+1}, 5, v{avt+1}
v_and_b32 v{avt}, 3, v{vL}
v_lshl_add_u32 v{avt}, v{avt}, 3, v{avt+1}
v_lshl_add_u32 v{avt}, v{t+4}, 12, v{avt}
v_bfe_u32 v{t+4}, v{vL}, 3, 1
v_lshl_add_u32 v{avt}, v{t+4}, 8, v{avt}
v_lshl_add_u32 v{avt}, v{vG}, 10, v{avt}
v_xor_b32 v{avt+1}, 32, v{avt}""")
    def vtr(ks, tau, h): return f"ds_read_b64_tr_b16 {ar(cV+8*ks+4*tau+2*h,2)}, v{avt+tau} offset:{ks*8192+h*512}"
    A(f"s_cmp_eq_u32 s{sROLE}, 1\ns_cbranch_scc1 L_sub\ns_cmp_eq_u32 s{sROLE}, 2\ns_cbranch_scc1 L_sud")
    A(f"""s_and_b32 s{sT0}, s{sW}, 1
s_lshl_b32 s{sT0}, s{sT0}, 1
v_lshrrev_b32 v{t+8}, 3, v{vN}
v_add_u32 v{t+8}, s{sT0}, v{t+8}
v_and_b32 v{t+9}, 1, v{vN}
v_lshlrev_b32 v{t+9}, 4, v{t+9}
v_mov_b32 v{t+10}, 0x3d80
v_lshlrev_b32 v{t+9}, v{t+9}, v{t+10}
v_cmp_eq_u32 vcc, v{t+8}, v{vG}
v_bfe_u32 v{t+10}, v{vN}, 1, 2
s_nop 0
v_cndmask_b32 v{t+9}, 0, v{t+9}, vcc""")
    for r in range(4): A(f"v_cmp_eq_u32 vcc, {r}, v{t+10}\ns_nop 1\nv_cndmask_b32 v{vSEL+r}, 0, v{t+9}, vcc")
    A(f"""v_lshrrev_b32 v{aRES}, 2, v{vN}
v_lshlrev_b32 v{aRES}, 14, v{aRES}
v_and_b32 v{t+8}, 3, v{vN}
v_lshl_add_u32 v{aRES}, v{t+8}, 11, v{aRES}
v_lshl_add_u32 v{aRES}, v{vG}, 4, v{aRES}
s_lshl_b32 s{sT0}, s{sCG9}, 7
s_lshr_b32 s{sT1}, s{sW}, 1
s_lshl_b32 s{sT1}, s{sT1}, 6
s_add_u32 s{sT0}, s{sT0}, s{sT1}
v_add_u32 v{aRES}, s{sT0}, v{aRES}
s_lshl_b32 s{sT0}, s{sHALF}, 13
s_lshl_b32 s{sT1}, s{sW}, 11
s_add_u32 s{sT0}, s{sT0}, s{sT1}
s_add_u32 s{sT0}, s{sT0}, {OPo}
v_lshl_add_u32 v{aO1}, v{vL}, 4, s{sT0}
s_lshl_b32 s{sT0}, s{sHALF}, 10
s_add_u32 s{sT0}, s{sT0}, {MLo}
v_lshl_add_u32 v{aML}, v{vN}, 6, s{sT0}
v_min_u32 v{t+8}, 2, v{vG}
v_lshl_add_u32 v{aML}, v{t+8}, 4, v{aML}
s_mul_i32 s{sT0}, s{sW}, {4*544}
s_add_u32 s{sT0}, s{sT0}, {LOPS}
v_lshrrev_b32 v{aOW}, 5, v{vL}
v_mul_u32_u24 v{aOW}, 544, v{aOW}
v_and_b32 v{t+8}, 31, v{vL}
v_lshl_add_u32 v{aOW}, v{t+8}, 4, v{aOW}
v_add_u32 v{aOW}, s{sT0}, v{aOW}
v_mul_u32_u24 v{aOR}, 544, v{vN}
v_lshl_add_u32 v{aOR}, v{vG}, 4, v{aOR}
v_add_u32 v{aOR}, {LOPS}, v{aOR}
s_lshl_b32 s{sT0}, s{sX}, 1
s_add_u32 s{sT0}, s{sT0}, s{sHALF}
s_lshr_b32 s{sT1}, s{sT0}, 2
s_lshl_b32 s{sT1}, s{sT1}, 14
s_and_b32 s{sT0}, s{sT0}, 3
s_lshl_b32 s{sT0}, s{sT0}, 11
s_add_u32 s{sT0}, s{sT0}, s{sT1}
s_lshl_b32 s{sT1}, s{sCG9}, 7
s_add_u32 s{sT0}, s{sT0}, s{sT1}
XSADDR
s_lshl_b32 s{sT0}, s{sJ}, 2
s_add_u32 s{sT0}, s{sT0}, {H3o}
v_mov_b32 v{aHS}, s{sT0}
s_mul_i32 s{sT0}, s{sHALF}, {288*16}
s_mul_i32 s{sT1}, s{sW}, {72*16}
s_add_u32 s{sT0}, s{sT0}, s{sT1}
s_add_u32 s{sT0}, s{sT0}, {HPo}
v_lshl_add_u32 v{aH1}, v{vL}, 4, s{sT0}
s_add_u32 s{sT0}, s{sT0}, 1024
v_lshl_add_u32 v{aH2}, v{vN}, 4, s{sT0}
v_lshlrev_b32 v{t+8}, 4, v{vN}
v_add_u32 v{t+8}, {HSo - 128}, v{t+8}
v_cmp_gt_u32 vcc, 8, v{vN}
s_mul_i32 s{sT0}, s{sW}, 144
s_add_u32 s{sT0}, s{sT0}, {LH}
v_cndmask_b32 v{aH2}, v{t+8}, v{aH2}, vcc
v_lshl_add_u32 v{aHW}, v{vL}, 1, s{sT0}
s_add_u32 s{sT0}, s{sT0}, 128
v_lshl_add_u32 v{aHW2}, v{vN}, 1, s{sT0}
v_mov_b32 v{t+8}, {LH + 576}
v_cndmask_b32 v{aHW2}, v{t+8}, v{aHW2}, vcc
v_lshlrev_b32 v{aHR}, 4, v{vG}
v_add_u32 v{aHR}, {LH}, v{aHR}""")
    A(f"""v_bfe_u32 v{t+8}, v{vL}, 4, 1
v_bfe_u32 v{t+9}, v{vL}, 2, 1
v_lshl_or_b32 v{t+8}, v{t+9}, 1, v{t+8}
v_xor_b32 v{t+8}, s{sW}, v{t+8}
v_lshlrev_b32 v{t+8}, 5, v{t+8}
v_lshl_add_u32 v{t+8}, v{t+9}, 11, v{t+8}
v_and_b32 v{t+9}, 3, v{vL}
v_lshl_add_u32 v{t+8}, v{t+9}, 3, v{t+8}
v_bfe_u32 v{t+9}, v{vL}, 3, 1
v_lshl_add_u32 v{t+8}, v{t+9}, 7, v{t+8}
v_lshl_add_u32 v{t+8}, v{vG}, 9, v{t+8}
v_add_u32 v{t+8}, {LR}, v{t+8}
""")
    if OPT["one"]:
        k = L.index("XSADDR")
        L[k:k+1] = f"""v_and_b32 v{aLR}, 7, v{vL}
v_lshlrev_b32 v{aLR}, 4, v{aLR}
v_add_u32 v{aXS}, s{sT0}, v{aLR}
v_bfe_u32 v{aLW}, v{vL}, 3, 1
v_lshl_add_u32 v{aXS}, v{aLW}, 13, v{aXS}
v_add_u32 v{aLR}, {LXP}, v{aLR}
s_lshl_b32 s{sT1}, s{sW}, 5
s_add_u32 s{sT1}, s{sT1}, {LXP}
v_lshl_add_u32 v{aLW}, v{vG}, 3, s{sT1}""".split("\n")
    else:
        k = L.index("XSADDR")
        L[k:k+1] = f"""s_lshl_b32 s{sT1}, s{sW}, 5
s_add_u32 s{sT0}, s{sT0}, s{sT1}
v_lshl_add_u32 v{aXS}, v{vG}, 3, s{sT0}
v_lshl_add_u32 v{aXS}, v{vN}, 13, v{aXS}""".split("\n")
    A("s_branch L_sud\nL_sub:")
    A(f"v_add_u32 v{t+11}, 256, v{vL}\nv_min_u32 v{t+11}, 287, v{t+11}")
    x_addr(aB1, 0, sHALF, t+12); x_addr(aB2, t+11, sHALF, t+12)
    A(f"""s_mul_i32 s{sT0}, s{sCG9}, {192*16}
s_lshl_b32 s{sT1}, s{sW}, 8
s_add_u32 s{sT0}, s{sT0}, s{sT1}
s_lshl_b32 s{sT1}, s{sHALF}, 2
s_add_u32 s{sT0}, s{sT0}, s{sT1}
s_add_u32 s{sT0}, s{sT0}, {HPo}
v_lshl_add_u32 v{aBD}, v{vN}, 4, s{sT0}
v_and_b32 v{t+8}, 1, v{vG}
v_lshl_add_u32 v{aBD}, v{t+8}, 11, v{aBD}
v_lshrrev_b32 v{t+8}, 1, v{vG}
v_lshl_add_u32 v{aBD}, v{t+8}, 10, v{aBD}
v_add_u32 v{vS1+1}, {S1o - HPo}, v{aBD}
s_lshl_b32 s{sT0}, s{sHALF}, 5
s_lshl_b32 s{sT1}, s{sW}, 3
s_add_u32 s{sT0}, s{sT0}, s{sT1}
s_add_u32 s{sT0}, s{sT0}, {HSo}
v_lshl_add_u32 v{t+8}, v{vN}, 2, s{sT0}
v_cndmask_b32 v{aBD}, v{aBD}, v{t+8}, {sr(mROW3,2)}
s_mov_b32 s{mLN}, -1
s_mov_b32 s{mLN+1}, 0xffff
s_cmp_eq_u32 s{sCG9}, 0
s_cselect_b32 s{mLN+1}, 0x3ffff, s{mLN+1}""")
    traddr_std(t+8, LR); traddr_tail(t+10, LR)
    A("L_sud:")
    A(f"s_mov_b32 s{sCNT}, 0\ns_waitcnt vmcnt({16 - max(NV1, 8)})\ns_barrier")
    for ks in range(4):
        for tau in range(2):
            for h in range(2): A(vtr(ks, tau, h))
    b_ = gv + 4
    A("L_rdy_chk:")
    for r in range(4): A(f"v_xor_b32 v{b_+r}, s{sE1}, v{gv+r}")
    A(f"v_or_b32 v{t+4}, v{b_}, v{b_+1}\nv_or3_b32 v{t+4}, v{t+4}, v{b_+2}, v{b_+3}\nv_cmp_lt_u32 vcc, 7, v{t+4}\ns_cbranch_vccz L_rdy_ok")
    A(f"s_add_u32 s{sCNT}, s{sCNT}, 1\ns_cmp_ge_u32 s{sCNT}, {OPT['tmo']}\ns_cbranch_scc1 L_end\ns_sleep 16\n{gload}\ns_waitcnt vmcnt(0)\ns_branch L_rdy_chk\nL_rdy_ok:")
    for r in range(4): A(f"v_xor_b32 v{b_+r}, s{sXCC}, v{b_+r}")
    A(f"""v_or_b32 v{t+4}, v{b_}, v{b_+1}
v_or3_b32 v{t+4}, v{t+4}, v{b_+2}, v{b_+3}
v_cmp_ne_u32 vcc, 0, v{t+4}
s_lshl_b32 s{sT1}, s{sX}, 3
s_lshr_b64 {sr(sT2,2)}, vcc, s{sT1}
s_and_b32 s{sT2}, s{sT2}, 0xff
s_cselect_b32 s{sMODE}, 0, {OPT['fast']}""")
    A(f"s_cmp_lg_u32 s{sMODE}, 0\ns_cbranch_scc1 L_nore\ns_mov_b64 exec, 0xffff\n{q0store} sc1\ns_mov_b64 exec, -1\ns_waitcnt vmcnt(0)\nL_nore:")
    NX = 1 if OPT["touch"] else 0
    if NX: A(f"""s_mul_i32 s{sT1}, s{sJ}, {REST}
s_lshl_b32 s{sT2}, s{sW}, 8
s_add_u32 s{sT1}, s{sT1}, s{sT2}
s_sub_u32 s{sT1}, s{sT1}, 256
v_lshl_add_u32 v{ra_}, v{vL}, 7, s{sT1}
s_lshl_b32 s{sT1}, s{sJ}, 9
s_lshl_b32 s{sT2}, s{sW}, 7
s_add_u32 s{sT1}, s{sT1}, s{sT2}
s_add_u32 s{sT1}, s{sT1}, {OPo}
s_lshl_b32 s{sT2}, s{sJ}, 6
s_add_u32 s{sT2}, s{sT2}, {MLo}
v_writelane_b32 v{ra_}, s{sT1}, 0
v_writelane_b32 v{ra_}, s{sT2}, 1
s_mov_b64 exec, 15
buffer_load_dword v8, v{ra_}, {WS}, s{sIB} offen sc1
s_mov_b64 exec, -1""")
    pub(f"buffer_store_dword v{vCS}, v{aQD}, {WS}, s{sIB} offen", "0xffff")
    A(f"v_lshlrev_b32 v{vR}, 16, v{vR+2}\nv_and_b32 v{vR+1}, 0xffff0000, v{vR+2}\nv_lshlrev_b32 v{vR+2}, 16, v{vR+3}\nv_and_b32 v{vR+3}, 0xffff0000, v{vR+3}")
    for r in range(4): A(f"v_mul_f32 v{vR+r}, 0x3b800000, v{vR+r}")
    def wo_regs(a_):
        for kk in range(8):
            for h in range(2): A(f"ds_read_b64_tr_b16 {ar(cWA+4*kk+2*h,2)}, v{a_} offset:{kk*4096+h*256}")
    if BEH:
        A(f"v_mov_b32 v{vQ0}, v{t+8}")
        role_dma("L_w1_issued")
    else:
        A(f"s_cmp_eq_u32 s{sROLE}, 1\ns_cbranch_scc1 L_trb\ns_cmp_eq_u32 s{sROLE}, 2\ns_cbranch_scc1 L_trf")
        wo_regs(t+8)
        A("L_trf:\ns_branch L_trd\nL_trb:")
        if NB1 == 15: w1_regs()
        A(f"L_trd:\ns_waitcnt vmcnt({NX + 1})")
    pv_head()
    stamp(5)
    vq = [vtr(ks, tau, h) for ks in range(4, 8) for tau in range(2) for h in range(2)]
    side = pv_side + pv_tail; n_after = 0
    for ks in range(8):
        A(f"s_waitcnt lgkmcnt({min(15, 7 - ks + n_after) if ks < 4 else (7 - ks)*4})")
        for tau in range(2):
            A(pv_mfma(ks, tau))
            if vq: A(vq.pop(0)); A(vq.pop(0)); n_after += 2
            else:
                for _ in range(2):
                    if side: A(side.pop(0))
    for x in side: A(x + "\ns_nop 0")
    pv_finish()
    stamp(6)
    A(f"s_cmp_lg_u32 s{sROLE}, 0\ns_cbranch_scc1 L_first")
    if BEH:
        A("s_waitcnt vmcnt(1)\ns_barrier")
        wo_regs(vQ0)
    A("s_branch L_wo_go")

A("s_waitcnt vmcnt(1)")
recheck(resload2, range(gRES, gRES+4), u)
A(mfma(vr(vR,4), vr(vSEL,4), vr(gRES,4), "0"))
A("L_wo_go:")
poll(f"""buffer_load_dwordx4 {vr(gO,4)}, v{aO1}, {WS}, s{sI} offen sc1
buffer_load_dwordx4 {vr(gO+4,4)}, v{aO1}, {WS}, s{sI} offen offset:1024 sc1
buffer_load_dwordx4 {vr(gML,4)}, v{aML}, {WS}, s{sI} offen sc1""", range(gO, gO+12), u, None, "",
     f"""v_max_u32 v{u}, v{gO}, v{gO+1}
v_max3_u32 v{u}, v{u}, v{gO+2}, v{gO+3}
ds_write_b128 v{aOW}, {vr(gO,4)}
v_max3_u32 v{u}, v{u}, v{gO+4}, v{gO+5}
v_max3_u32 v{u}, v{u}, v{gO+6}, v{gO+7}
ds_write_b128 v{aOW}, {vr(gO+4,4)} offset:{2*544}
v_max3_u32 v{u}, v{u}, v{gML}, v{gML+1}
v_max3_u32 v{u}, v{u}, v{gML+2}, v{gML+3}
v_cmp_eq_u32 vcc, -1, v{u}""")
stamp(7); FS("wo")
ls, mm, m2, M_ = u, u + 1, u + 2, u + 3
A(f"""v_cndmask_b32 v{mm}, v{gML}, v{gML+1}, {sr(mODDR,2)}
v_cndmask_b32 v{m2}, v{gML}, v{gML+1}, {sr(mODDR,2)}
v_add_f32 v{ls}, v{gML}, v{gML+1}
v_add_f32 v{M_}, v{gML+2}, v{gML+3}
v_permlane32_swap_b32 v{mm}, v{m2}
v_add_f32 v{ls}, v{ls}, v{M_}
s_nop 0""")
A(dpp("v_max_f32", M_, m2, ROWRED[0]))
for p in ROWRED[1:]: A("s_nop 1\n" + dpp("v_max_f32", M_, M_, p))
A(f"v_sub_f32 v{m2}, v{m2}, v{M_}\nv_exp_f32 v{m2}, v{m2}")
FS("wo")
A("s_waitcnt lgkmcnt(0)\ns_barrier")
FS("wo")
fo, wacc = t + 28, u + 8
def hint_send(imm): pub(f"buffer_store_dword v{vL}, v{aHS}, {WS}, s{sI} offen offset:{imm}", sr(mW0,2))
if OPT["h3pos"] == 0: hint_send(0)
w0, w1_ = m2, mm
side = [dpp("v_add_f32", ls, ls, ROWRED[1]), dpp("v_add_f32", ls, ls, ROWRED[2]), dpp("v_add_f32", ls, ls, ROWRED[3]), f"v_rcp_f32 v{ls}, v{ls}",
        f"v_mul_f32 v{w0}, v{m2}, v{ls}\nv_mov_b32 v{M_}, v{w0}", f"v_permlane32_swap_b32 v{w0}, v{M_}\nv_mov_b32 v{w1_}, v{w0}", f"s_nop 0\nv_permlane16_swap_b32 v{w0}, v{w1_}"]
sidew = list(side)
def wo_mf():
    for kk in range(8):
        yield (mfma(vr(wacc+4*(kk >> 2),4), ar(cWA+4*kk,4), vr(fo+4*kk,4), "0" if kk % 4 == 0 else vr(wacc+4*(kk >> 2),4)) + ("\n" + sidew.pop(0) if sidew else ""), kk)
pipeline([f"ds_read_b128 {vr(fo+4*kk,4)}, v{aOR} offset:{kk*64}" for kk in range(8)], list(wo_mf()),
         between=lambda: A(f"v_mul_f32 v{ls}, v{ls}, v{m2}\ns_nop 1\n{dpp('v_add_f32', ls, ls, ROWRED[0])}"))
FS("wo")
if OPT["h3pos"] == 1: hint_send(0)
tt = u + 4
for r in range(4): A(f"v_fma_f32 v{tt+r}, v{w0}, v{wacc+r}, v{vR+r}")
if OPT["h3pos"] != 1: A("s_nop 3")
for r in range(4): A(f"v_fmac_f32 v{tt+r}, v{w1_}, v{wacc+4+r}")
rowred("v_add_f32", [tt, tt+1, tt+2, tt+3])
XM = 0x00030003 if OPT["copies"] == 2 else 0x00010001
def x_publish(src, xoff, hint=None):
    if not OPT["one"]:
        A(f"s_add_u32 s{sT0}, s{sPASS}, {xoff}\nv_cvt_pk_bf16_f32 v{src}, v{src}, v{src+1}\ns_mov_b32 exec_lo, {XM:#x}\ns_mov_b32 exec_hi, {XM:#x}\nv_cvt_pk_bf16_f32 v{src+1}, v{src+2}, v{src+3}")
        A(f"buffer_store_dwordx2 {vr(src,2)}, v{aXS}, {WS}, s{sT0} offen sc1\ns_mov_b64 exec, -1")
        return
    skip = uid("xp")
    A(f"v_cvt_pk_bf16_f32 v{src}, v{src}, v{src+1}\nv_cvt_pk_bf16_f32 v{src+1}, v{src+2}, v{src+3}\nds_write_b64 v{aLW}, {vr(src,2)}\ns_add_u32 s{sT0}, s{sPASS}, {xoff}")
    if hint is not None: hint_send(hint)
    A(f"s_cmp_lg_u32 s{sW}, 0\ns_waitcnt lgkmcnt(0)\ns_barrier\ns_cbranch_scc1 {skip}\nds_read_b128 {vr(src,4)}, v{aLR}\ns_mov_b64 exec, {0xffff if OPT['copies'] == 2 else 0xff:#x}\ns_waitcnt lgkmcnt(0)")
    A(f"buffer_store_dwordx4 {vr(src,4)}, v{aXS}, {WS}, s{sT0} offen sc1\ns_mov_b64 exec, -1\n{skip}:")
FS("wo")
x_publish(tt, X1O, 0 if OPT['h3pos'] == 4 else None)
FS("wo")
if OPT["h3pos"] == 2: hint_send(0)
stamp(8)
A(f"s_cmp_eq_u32 s{sPASS}, 0\ns_cbranch_scc1 L_w2_first\ns_add_u32 s{sXO}, s{sPASS}, s{sCOPY}")
hloads = f"buffer_load_dwordx4 {vr(gH,4)}, v{aH1}, {WS}, s{sI} offen sc1\nbuffer_load_dwordx4 {vr(gH+4,4)}, v{aH2}, {WS}, s{sI} offen sc1"
poll(hloads, range(gH, gH+8), u)
A("L_w2_ok:")
stamp(9); FS("w2")
resload1 = f"buffer_load_dwordx4 {vr(gX1,4)}, v{aRES}, {WS}, s{sXO} offen sc1"
y0, y1, z1, z2, hmu, hrs = u, u + 4, u + 8, u + 9, u + 10, u + 11
A(f"""v_add_f32 v{z1}, v{gH+4}, v{gH+6}
v_add_f32 v{z2}, v{gH+5}, v{gH+7}
{resload1}
v_add_f32 v{y0}, v{gH}, v{gH+1}
{dpp("v_add_f32", hmu, z1, ROWRED[0])}
{dpp("v_add_f32", hrs, z2, ROWRED[0])}
v_add_f32 v{y0+1}, v{gH+2}, v{gH+3}
{dpp("v_add_f32", hmu, hmu, ROWRED[1])}
{dpp("v_add_f32", hrs, hrs, ROWRED[1])}
v_add_f32 v{y1}, v{z1}, v{z2}
{dpp("v_add_f32", hmu, hmu, ROWRED[2])}
{dpp("v_add_f32", hrs, hrs, ROWRED[2])}
v_add_f32 v{y0}, v{y0}, v{y0+1}
v_mul_f32_dpp v{hmu}, v{hmu}, v{vJUNK} row_newbcast:15 {DPPM}
v_mul_f32_dpp v{hrs}, v{hrs}, v{vJUNK} row_newbcast:15 {DPPM}
v_fma_f32 v{hrs}, -v{hmu}, v{hmu}, v{hrs}
v_fma_f32 v{y0}, -v{hmu}, v{vS1}, v{y0}
v_max_f32 v{hrs}, 0, v{hrs}
v_add_f32 v{hrs}, 0x3727c5ac, v{hrs}
v_rsq_f32 v{hrs}, v{hrs}
v_fma_f32 v{y1}, -v{hmu}, v{vS1+1}, v{y1}
s_mov_b32 s{sT0}, {-math.log2(math.e):.9e}
v_fma_f32 v{y0}, v{y0}, v{hrs}, v{vB}
v_fma_f32 v{y1}, v{y1}, v{hrs}, v{vB+1}""")
FS("w2")
e0, e1 = z1, z2
for y in (y0, y1): A(f"v_mul_f32 v{y+1}, s{sT0}, abs(v{y})")
for y in (y0, y1): A(f"v_exp_f32 v{y+1}, v{y+1}")
A(f"v_cmp_le_f32 vcc, 0, v{y0}\nv_cmp_le_f32 {sr(sT2,2)}, 0, v{y1}")
for y in (y0, y1): A(f"v_fma_f32 v{y+2}, v{y+1}, 2.0, 1.0\nv_add_f32 v{y+3}, 2.0, v{y+1}")
for y, e in ((y0, e0), (y1, e1)): A(f"v_mul_f32 v{y+3}, v{y+3}, v{y+1}\nv_mul_f32 v{e}, v{y+1}, v{y+1}")
A(f"v_cndmask_b32 v{y0+2}, v{y0+3}, v{y0+2}, vcc\nv_cndmask_b32 v{y1+2}, v{y1+3}, v{y1+2}, {sr(sT2,2)}")
A(f"v_cndmask_b32 v{e0}, 1.0, v{e0}, vcc\nv_cndmask_b32 v{e1}, 1.0, v{e1}, {sr(sT2,2)}")
for y, e in ((y0, e0), (y1, e1)): A(f"v_fma_f32 v{e}, v{e}, 2.0, v{y+2}")
for y, e in ((y0, e0), (y1, e1)): A(f"v_rcp_f32 v{e}, v{e}")
for y, e in ((y0, e0), (y1, e1)): A(f"v_mul_f32 v{y}, v{y}, v{y+2}")
for y, e in ((y0, e0), (y1, e1)): A(f"v_mul_f32 v{y}, v{y}, v{e}")
A(f"v_cvt_pk_bf16_f32 v{y0}, v{y0}, v{y1}\nds_write_b16 v{aHW}, v{y0}\nds_write_b16_d16_hi v{aHW2}, v{y0}")
FS("w2")
A("s_waitcnt lgkmcnt(0)\ns_barrier")
FS("w2")
fh, w2acc = t + 28, u + 4
def w2_res():
    A("s_waitcnt vmcnt(0)")
    recheck(resload1, range(gX1, gX1+4), u+1)
    A(mfma(vr(vR,4), vr(vSEL,4), vr(gX1,4), "0"))
    FS("w2")
pipeline([f"ds_read_b128 {vr(fh+4*ks,4)}, v{aHR} offset:{ks*64}" for ks in range(9)],
         [(mfma(vr(w2acc,4), ar(cW2+4*ks,4), vr(fh+4*ks,4), "0" if ks == 0 else vr(w2acc,4)), ks) for ks in range(9)],
         [dpp("v_add_f32", vR+r, vR+r, p) for p in ROWRED for r in range(4)], start=3, between=w2_res, per=OPT['w2per'])
FS("w2")
if OPT["h5pos"] == 3: hint_send(128)
mfma_gap()
for r in range(4): A(f"v_add_f32 v{w2acc+r}, v{w2acc+r}, v{vR+r}")
x_publish(w2acc, X2O, 128 if OPT['h5pos'] == 4 else None)
FS("w2")
if OPT["h5pos"] == 2: hint_send(128)
stamp(10)
A(f"s_cmp_eq_u32 s{sPASS}, 0\ns_cbranch_scc1 L_a_first")
def final(on_b):
    if on_b:
        A(f"""s_sub_u32 s{sCG9}, s{sJ}, 18
s_lshl_b32 s{sT0}, s{sX}, 4
s_add_u32 s{sT0}, s{sT0}, s{sCG9}
s_cmp_ge_u32 s{sT0}, 9
s_cbranch_scc1 L_done
s_and_b32 s{sT0}, s{sW}, 1
s_lshl_b32 s{sT0}, s{sT0}, 1
v_lshrrev_b32 v{t}, 3, v{vN}
v_add_u32 v{t}, s{sT0}, v{t}
v_and_b32 v{t+1}, 1, v{vN}
v_lshlrev_b32 v{t+1}, 4, v{t+1}
v_mov_b32 v{t+2}, 0x3f80
v_lshlrev_b32 v{t+1}, v{t+1}, v{t+2}
v_cmp_eq_u32 vcc, v{t}, v{vG}
v_bfe_u32 v{t+2}, v{vN}, 1, 2
v_lshrrev_b32 v{aRES}, 2, v{vN}
v_cndmask_b32 v{t+1}, 0, v{t+1}, vcc""")
        for r in range(4): A(f"v_cmp_eq_u32 vcc, {r}, v{t+2}\ns_nop 1\nv_cndmask_b32 v{vSEL+r}, 0, v{t+1}, vcc")
        A(f"""v_lshlrev_b32 v{aRES}, 14, v{aRES}
v_and_b32 v{t}, 3, v{vN}
v_lshl_add_u32 v{aRES}, v{t}, 11, v{aRES}
v_lshl_add_u32 v{aRES}, v{vG}, 4, v{aRES}
s_lshl_b32 s{sT0}, s{sCG9}, 7
s_lshr_b32 s{sT1}, s{sW}, 1
s_lshl_b32 s{sT1}, s{sT1}, 6
s_add_u32 s{sT0}, s{sT0}, s{sT1}
v_add_u32 v{aRES}, s{sT0}, v{aRES}""")
    else: A(f"s_or_b32 s{sT0}, s{sX}, s{sHALF}\ns_cmp_lg_u32 s{sT0}, 0\ns_cbranch_scc1 L_done")
    A(f"""s_lshl_b32 s{sT0}, s{sCG9}, 7
s_lshl_b32 s{sT1}, s{sW}, 5
s_add_u32 s{sT0}, s{sT0}, s{sT1}
v_lshl_add_u32 v{aXS}, v{vG}, 3, s{sT0}
s_add_u32 s{sXO}, s{sCOPY}, {PS + X2O}
s_mov_b32 s{sT2}, 0x00010001
s_mov_b32 s{sT3}, 0x00010001""")
    if on_b and OPT["outw"]:
        A(f"s_mov_b64 exec, {sr(sT2,2)}\nbuffer_store_dwordx2 {vr(FA+16,2)}, v{aXS}, {sr(rOUT,4)}, 0 offen\ns_mov_b64 exec, -1")
    hint_wait(128, 'fin')
    poll(resload2, range(gRES, gRES+4), u, 1, mfma(vr(vR,4), vr(vSEL,4), vr(gRES,4), "0"))
    A("s_nop 3")
    rowred("v_add_f32", [vR, vR+1, vR+2, vR+3])
    if not on_b:
        for r in range(4): A(f"v_mul_f32 v{vR+r}, 0x41800000, v{vR+r}")
    A(f"v_cvt_pk_bf16_f32 v{vR}, v{vR}, v{vR+1}\ns_mov_b64 exec, {sr(sT2,2)}\nv_cvt_pk_bf16_f32 v{vR+1}, v{vR+2}, v{vR+3}")
    if OPT["echo"] >= 0:
        A("s_mov_b64 exec, -1"); stamp(11)
        A(f"s_nop 1\nv_readlane_b32 s3, v9, {OPT['echo']}\nv_readlane_b32 s84, v9, 0\ns_nop 3\ns_sub_u32 s3, s3, s84\ns_min_u32 s3, s3, 20000\ns_lshl_b32 s3, s3, {OPT['emul']}\ns_add_u32 s3, s3, s{sST}")
        A(f"L_echo:\ns_memrealtime s[84:85]\ns_waitcnt lgkmcnt(0)\ns_sub_u32 s84, s84, s3\ns_cmp_lt_i32 s84, 0\ns_cbranch_scc1 L_echo\ns_mov_b64 exec, {sr(sT2,2)}")
    A(f"buffer_store_dwordx2 {vr(vR,2)}, v{aXS}, {sr(rOUT,4)}, 0 offen\ns_mov_b64 exec, -1")
if not OPT["finb"]: final(False)
A("s_branch L_done")

A(f"L_roleBF:\ns_cmp_lg_u32 s{sROLE}, 1\ns_cbranch_scc1 L_done\nL_w1_go:\ns_add_u32 s{sXO}, s{sPASS}, s{sCOPY}")
x_gather(aB1, aB2, "w1", 0)
stamp(8)
mm_ = main_mfma(3, cWA, 0)
order = [frag_list[0]] + stat_list + frag_list[1:]
pipeline(order, [(m, 0) for m, _ in mm_[:3]] + [(m, 1 + k) for k, m in enumerate(stat_mfma)] + [(m, n + 3) for m, n in mm_[3:]],
         stat_valu + [f"v_cndmask_b32 v{s1}, v{s1}, v{s2}, {sr(mODDL,2)}"], start=9)
FS("w1")
a, b, c = ACC, ACC + 4, ACC + 8
A(f"""s_nop 3
v_add_f32 v{a}, v{a}, v{a+1}
v_add_f32 v{a+2}, v{a+2}, v{a+3}
v_add_f32 v{b}, v{b}, v{b+1}
v_add_f32 v{b+2}, v{b+2}, v{b+3}
v_add_f32 v{c}, v{c}, v{c+1}
v_add_f32 v{c+2}, v{c+2}, v{c+3}
v_add_f32 v{a}, v{a}, v{a+2}
v_add_f32 v{b}, v{b}, v{b+2}
v_add_f32 v{c+1}, v{c}, v{c+2}
v_add_f32 v{c}, v{c}, v{c+2}
v_permlane32_swap_b32 v{a}, v{b}
v_add_f32 v{a}, v{a}, v{b}
v_permlane32_swap_b32 v{c}, v{c+1}
v_add_f32 v{c}, v{c}, v{c+1}
s_nop 1
v_permlane16_swap_b32 v{a}, v{c}
v_add_f32 v{a}, v{a}, v{c}
v_cndmask_b32 v{a}, v{a}, v{s1}, {sr(mROW3,2)}""")
FS("w1")
pub(f"buffer_store_dword v{a}, v{aBD}, {WS}, s{sI} offen", sr(mLN,2))
FS("w1"); stamp(9)
A(f"s_cmp_eq_u32 s{sPASS}, 0\ns_cbranch_scc1 L_bf_first")
if OPT["finb"]: final(True)

A("L_done:")
if PROF:
    stamp(11)
    A(f"s_cmp_lg_u32 s{sW}, 0\ns_cbranch_scc1 L_end\ns_lshl_b32 s{sT0}, s2, 7\ns_add_u32 s{sT0}, s{sT0}, {STAMP}")
    A(f"s_lshr_b32 s3, s{sCOPY}, 12\ns_or_b32 s3, s3, s{sMODE}\nv_writelane_b32 v9, s3, 31\ns_memtime s[100:101]\ns_waitcnt lgkmcnt(0)\ns_sub_u32 s3, s100, s88\nv_writelane_b32 v9, s3, 30\nv_lshlrev_b32 v2, 2, v{vL}\ns_mov_b32 exec_hi, 0")
    for k in range(fcount[0]): A(f"v_writelane_b32 v9, s{FREG[k]}, {1+k}")
    A(f"buffer_store_dword v9, v2, {WS}, s{sT0} offen")
A("L_end:\ns_endpgm")

def pick_issue():
    A(f"v_mov_b32 v{u+15}, {POLo}\nbuffer_load_dword v{u+15}, v{u+15}, {WS}, s{sIB} offen sc1")
def pick_take():
    if OPT["copies"] == 2: A(f"v_readfirstlane_b32 s85, v{u+15}\ns_lshr_b32 s{sT1}, s{sXCC}, 2\ns_nop 0\ns_xor_b32 s{sT1}, s{sT1}, s85\ns_lshl_b32 s{sT1}, s{sT1}, 13\ns_cmp_lt_u32 s85, 2\ns_cselect_b32 s{sCOPY}, s{sT1}, s{sCOPY}")
def late_fill():
    for r in range(4): A(f"v_mov_b32 v{t+12+r}, -1")
    A(f"""s_sub_u32 s{sT0}, s{sJ}, 30
s_mul_i32 s{sT1}, s{sT0}, {23*1024}
s_lshl_b32 s{sT2}, s{sW}, 10
s_add_u32 s{sT1}, s{sT1}, s{sT2}
v_lshl_add_u32 v{t+2}, v{vL}, 4, s{sT1}
s_lshl_b32 s{sT1}, s{sX}, 1
s_add_u32 s{sT1}, s{sT1}, s{sT0}
s_lshl_b32 s{sT4}, s{sT1}, 2
s_lshl_b32 s{sT1}, s{sT1}, 13
s_add_u32 s{sT1}, s{sT1}, s{sT2}
s_add_u32 s{sT1}, s{sT1}, {PS}
v_lshl_add_u32 v{t+3}, v{vL}, 4, s{sT1}
s_add_u32 s{sT0}, s{sIB}, {PS}""")
    for k in range(6):
        if k == 5: A(f"s_cmp_eq_u32 s{sW}, 3\ns_cbranch_scc1 L_lf5")
        A(f"buffer_store_dwordx4 {vr(t+12,4)}, v{t+2}, {WS}, s{sT0} offen sc1\ns_add_u32 s{sT0}, s{sT0}, 4096")
    A("L_lf5:")
    A(f"s_and_b32 s{sT0}, s{sW}, 1\ns_cselect_b64 exec, 0xff, -1\ns_movk_i32 s{sT0}, 4096")
    A(f"buffer_store_dwordx4 {vr(t+12,4)}, v{t+3}, {WS}, 0 offen sc1\nbuffer_store_dwordx4 {vr(t+12,4)}, v{t+3}, {WS}, s{sT0} offen sc1\ns_mov_b64 exec, -1")
    A(f"""s_add_u32 s{sT4}, s{sT4}, {RDY2}
v_lshl_add_u32 v{t+3}, v{vL}, 13, s{sT4}
v_mov_b32 v{t+4}, s{sE1}
s_sub_u32 s{sT0}, s{sJ}, 30
s_mul_i32 s{sT1}, s{sT0}, {23*1024}
s_mul_i32 s{sT2}, s{sW}, {46*128}
s_add_u32 s{sT1}, s{sT1}, s{sT2}
v_lshl_add_u32 v{t+2}, v{vL}, 7, s{sT1}
s_add_u32 s{sT0}, s{sIB}, {PS}
s_waitcnt vmcnt(0)
s_barrier
s_cmp_eq_u32 s{sW}, 0
s_cselect_b64 exec, 3, 0
buffer_store_dword v{t+4}, v{t+3}, {WS}, 0 offen sc1
s_mov_b32 exec_lo, -1
s_mov_b32 exec_hi, {0x3fff if OPT['touch'] else 0:#x}
buffer_load_dword v8, v{t+2}, {WS}, s{sT0} offen sc1
s_mov_b64 exec, -1""")
csload = f"buffer_load_dwordx4 {vr(t+28,4)}, v{aQ1}, {WS}, s{sIB} offen sc1"
def colsum_rows():
    A(f"""v_add_f32 v{u}, v{t+28}, v{t+29}
v_add_f32 v{u+1}, v{t+30}, v{t+31}
v_add_f32 v{u}, v{u}, v{u+1}
v_cvt_pk_bf16_f32 v{u+1}, v{u}, v{u}
v_lshlrev_b32 v{u+2}, 16, v{u+1}
v_sub_f32 v{u}, v{u}, v{u+2}
v_cvt_pk_bf16_f32 v{u}, v{u}, v{u}
ds_write_b16 v{aQW}, v{u+1} offset:1600
ds_write_b16 v{aQW}, v{u} offset:2400""")
with Tail():
    A(f"L_first:\ns_cmp_lg_u32 s{sROLE}, 1\ns_cbranch_scc1 L_firstF")
    if NB1 < 15 or OPT["beh"]:
        if NB1 < 15: w1_dma(NB1, 15, t, "L_w1_rest")
        A("L_w1_rest:")
        traddr_std(t+8, LR); traddr_tail(t+10, LR)
        A("s_waitcnt vmcnt(3)")
        pick_issue()
        A("s_waitcnt vmcnt(0)\ns_barrier")
        stamp(14)
        w1_regs()
    else:
        pick_issue(); A("s_waitcnt vmcnt(0)")
    pick_take()
    A(f"s_mov_b32 s{sHOOK}, 1")
    stamp(15)
    A("s_branch L_w1_go")
    A(f"""L_w2_first:
s_mul_i32 s{sT0}, s{sX}, 1152
s_mul_i32 s{sT1}, s{sHALF}, 576
s_add_u32 s{sT0}, s{sT0}, s{sT1}
s_mul_i32 s{sT1}, s{sW}, 144
s_add_u32 s{sT0}, s{sT0}, s{sT1}
v_lshl_add_u32 v{t}, v{vL}, 1, s{sT0}
v_and_b32 v{t+1}, 7, v{vL}
v_lshl_add_u32 v{t+1}, v{t+1}, 1, s{sT0}""")
    pick_issue()
    A(f"""{csload}
buffer_load_ushort v{vB}, v{t}, {sr(rB1,4)}, 0 offen
buffer_load_ushort v{vB+1}, v{t+1}, {sr(rB1,4)}, 0 offen offset:128""")
    if NW2 < 9: w2_dma(NW2, 9, t)
    A(f"v_add_u32 v{t+2}, {S1o - HPo}, v{aH1}\nv_sub_u32 v{t+3}, v{t+2}, v{aH1}\nv_add_u32 v{t+3}, v{t+3}, v{aH2}\nv_cmp_gt_u32 vcc, 8, v{vN}\ns_nop 1\nv_cndmask_b32 v{t+3}, v{t+2}, v{t+3}, vcc")
    traddr_std(t, LW2)
    A(f"s_waitcnt vmcnt({9 - NW2 + 2})")
    pick_take()
    recheck(csload, range(t+28, t+32), u)
    colsum_rows()
    A(f"s_add_u32 s{sXO}, s{sPASS}, s{sCOPY}\ns_waitcnt vmcnt(0)\ns_barrier")
    stamp(14)
    A(f"v_mov_b32 v{vQ0}, {POLo}\nbuffer_load_dword v{vQ0}, v{vQ0}, {WS}, s{sIB} offen sc1")
    for ks in range(9):
        for h in range(2): A(f"ds_read_b64_tr_b16 {ar(cW2+4*ks+2*h,2)}, v{t} offset:{ks*4096+h*512}")
    A(f"v_lshlrev_b32 v{vB}, 16, v{vB}\nv_lshlrev_b32 v{vB+1}, 16, v{vB+1}")
    stamp(15)
    g1 = gO
    poll(hloads + f"\nbuffer_load_dwordx4 {vr(g1,4)}, v{t+2}, {WS}, s{sI} offen sc1\nbuffer_load_dwordx4 {vr(g1+4,4)}, v{t+3}, {WS}, s{sI} offen sc1", list(range(gH, gH+8)) + list(range(g1, g1+8)), u, OPT["h4d"])
    for k in range(2): A(f"v_add_f32 v{vS1+k}, v{g1+4*k}, v{g1+4*k+1}\nv_add_f32 v{u+k}, v{g1+4*k+2}, v{g1+4*k+3}")
    for k in range(2): A(f"v_add_f32 v{vS1+k}, v{vS1+k}, v{u+k}")
    A(f"s_branch L_w2_ok\nL_a_first:\nv_mov_b32 v{u+15}, v{vQ0}\ns_nop 0")
    pick_take()
    A("s_branch L_q")
    A("L_firstF:")
    if OPT["lf"] == 1: late_fill()
    probe()
    A("s_waitcnt lgkmcnt(0)\ns_barrier")
    probe_done()
    if OPT["lf"] == 2:
        A(f"v_lshlrev_b32 v{t}, 2, v{vN}\nv_add_u32 v{t}, {HSo}, v{t}")
        poll(f"buffer_load_dword v{gHI}, v{t}, {WS}, s{sI} offen sc1", [gHI], None, 1)
    if OPT["lf"] != 1: late_fill()
    A(f"v_mov_b32 v{t}, {EPO}\nv_mov_b32 v{t+1}, s{sE1}\ns_lshl_b32 s{sT0}, s2, 2\ns_add_u32 s{sT0}, s{sT0}, s{sW}\ns_cmp_eq_u32 s{sT0}, 1020\ns_cselect_b64 exec, 1, 0")
    A(f"buffer_store_dword v{t+1}, v{t}, {WS}, 0 offen sc1\ns_mov_b64 exec, -1")
    A(f"L_bf_first:\nv_mov_b32 v{aRES}, 0")
    pick_issue()
    poll(csload, range(t+28, t+32), u, 1)
    colsum_rows()
    pick_take()
    A("s_branch L_q")

body = L + TAIL
if OPT["walk"]:
    xo = [l[:-1] for l in body if l.startswith("L_xo")]; rb = [l[:-1] for l in body if l.startswith("L_rb")]; hk = [l[:-1] for l in body if l.startswith("L_hk")]
    if OPT["walk"] == 1:
        chains = {"0": (["L_q0_pub", "L_rdy", rb[0], "L_sub", "L_first", "L_w2_first", "L_a_first", "L_firstF"], "L_walked"), "1": (["L_q", xo[0], "L_roleBF", xo[1], "L_trb"] + hk, "L_walked")}
    else:
        chains = {"0": (["L_q0_pub"], "L_walked"), "1": (["L_rdy"], "L_walked"),
                  "a": ([rb[0], "L_sub", "L_trb"], "L_walked2"), "b": (["L_first", "L_w2_first", "L_a_first", "L_firstF"], "L_walked2"),
                  "c": (["L_q", xo[0], "L_roleBF", xo[1]], "L_walked2"), "d": (hk + ISL, "L_walked2")}
    for c, (names, end) in chains.items():
        for k, n in enumerate(names):
            i = body.index(n + ":")
            j = i - 1
            while body[j].endswith(":"): j -= 1
            assert body[j].startswith(("s_branch", "s_endpgm")), (n, body[j])
            nxt = f"L_walk{c}_{k+1}" if k + 1 < len(names) else end
            body[j+1:j+1] = [f"L_walk{c}_{k}:", f"s_branch {nxt}"]
DEFS = []
if OPT["shift"]: body = ["s_nop 0"] * OPT["shift"] + body
if OPT["al"]:
    sys.path.insert(0, "gen")
    import align
    body, DEFS, miss = align.align(body, "\n".join(out), "")
    print(f"align: {miss} wide instructions left off an 8-byte boundary", file=sys.stderr)
txt = "\n".join(body)
out.append(txt)
out.append(f""".p2align 8
.fill 1024, 4, 0xbf800000
s_endpgm
{chr(10).join(DEFS)}
.section .rodata,"a"
.p2align 6
.amdhsa_kernel {NAME}_kernel
  .amdhsa_next_free_vgpr {NVGPR}
  .amdhsa_next_free_sgpr 102
  .amdhsa_accum_offset 256
  .amdhsa_group_segment_fixed_size 0
  .amdhsa_kernarg_size 96
  .amdhsa_user_sgpr_count 2
  .amdhsa_user_sgpr_kernarg_segment_ptr 1
  .amdhsa_system_sgpr_workgroup_id_x 1
  .amdhsa_float_denorm_mode_32 3
.end_amdhsa_kernel""")
print("\n".join(out))
```

```python
import sys, math
OPT = dict(prof=0, fine="", nk1=6, nq=2, nv1=12, nw2=1, npair=2, nb1=6, nkb=2, q0t=0,  kal=0, walk=1, hskip=2, lf=0, h4d=2, finb=1, one=1, pre=4, w2per=2, pvw=1, bko=0, pal=6, po="bbbbb7", outw=1, fast=1, copies=2, pol=-1, rot=2, ra=2, rb=0, ldf="nt", pf=1,
           tmo=1 << 17, h3pos=4, h5pos=4, touch=1, depth=2, echo=-1, emul=2, hd="088", xnoclr=0, xnoq0=0, al=0, beh=0, pfj=31, shift=0, pfl=144)
for a in sys.argv[1:]:
    k, v = a.split("=")
    assert k in OPT, k
    OPT[k] = v if k in ("ldf", "fine", "po", "hd") else int(v, 0)
NAME = "interleave_layers__sliding_block_cached__dense_activation_mish__decode"
LDF = "" if OPT["ldf"] == "plain" else OPT["ldf"].replace("+", " ")
PROF = OPT["prof"]

L = []; TAIL = []
def A(s):
    for ln in s.split("\n"):
        ln = ln.strip()
        if ln: L.append(ln)
intail = [0]; npoll = [0]; ISL = []
class Tail:
    def __enter__(self):
        global L
        self.save = L; L = []; intail[0] += 1
    def __exit__(self, *e):
        global L
        TAIL.extend(L); L = self.save; intail[0] -= 1
_uid = [0]
def uid(p):
    _uid[0] += 1
    return f"L_{p}{_uid[0]}"
def vr(a, n=1): return f"v{a}" if n == 1 else f"v[{a}:{a+n-1}]"
def ar(a, n=1): return f"a{a}" if n == 1 else f"a[{a}:{a+n-1}]"
def sr(a, n=1): return f"s{a}" if n == 1 else f"s[{a}:{a+n-1}]"
DPPM = "row_mask:0xf bank_mask:0xf"
ROWRED = ["quad_perm:[1,0,3,2]", "quad_perm:[2,3,0,1]", "row_half_mirror", "row_mirror"]
def dpp(op, d, s, p): return f"{op}_dpp v{d}, v{s}, v{s} {p} {DPPM}"
def mfma(d, a, b, c): return f"v_mfma_f32_16x16x32_bf16 {d}, {a}, {b}, {c}"

PS = 0x100000
X1O, X2O = 0x00000, 0x10000
IB0 = 0x20000
QPo, HPo, S1o, QSo, HSo, H3o, H5o, OPo, MLo = 0x0000, 0x2000, 0x4400, 0x6800, 0x6880, 0x6900, 0x6980, 0x7000, 0xB000
REST = 0x7000 // 32
Q0B, Q0S = 0xA0000, 0x9000
EPO, RDY, RDY2, PROBE = 0x0F0000, 0x1B1000, 0x1B4000, 0x1C0000
STAMP = 0x200000
WSREC = 0x210000 if PROF else 0x200000
LV, LR, LWQ = 0, 65536, 135168
LW2, LOPS = LR + 32768, LWQ
LQ, LP, LM, LH, LMODE, LXS = 153600, 156800, 158080, 158144, 158784, 158848
LXP = LXS + 4608
LDS_BYTES = 163840
sX, sJ, sW, sPASS, sROLE, sMODE, sCOPY, sIB = 4, 5, 6, 7, 8, 9, 10, 11
rK, rV, rWQ, rWA, rW2, rWS, rXI, rB1, rOUT = 12, 16, 20, 24, 28, 32, 36, 40, 44
mATT, mLN = 48, 50
sT0, sT1, sT2, sT3, sT4, sCNT, sI, sXO = 52, 53, 54, 55, 56, 57, 58, 59
mODDR, sRG, sCG, sST = 60, 62, 63, 64
sE1, sQ0, mW0, mODDL, mROW3 = 68, 69, 70, 72, 90
sHALF, sCG9, sROT, sXCC = 96, 97, 98, 99
sHOOK = sROT
WS = sr(rWS, 4)
vL, vN, vG, vONE, vONE3 = 1, 2, 3, 4, 6
vKO, vJUNK, vCS, vC, vMU, vQ0 = 10, 59, 12, 14, 15, 60
vSEL, vR, vB, vS1 = 16, 20, 24, 26
(aX1, aX2, aXW, aXR, aXT, aS1, aS3, aQD, aQS,
 aQ1, aQ2, aQW, aQR, aPW, aMW, aPR, aMR, aOP, aHL,
 aRES, aO1, aML, aOW, aOR, aXS, aHS, aH1, aH2, aHW, aHW2, aHR) = range(28, 59)
aLW, aLR = 63, 13
aB1, aB2, aBD = aO1, aML, aOW
t = 64
vK = 128
gX, gQ, gQS, gRES, gO, gML, gH, gHI, gX1 = 192, 200, 204, 208, 212, 220, 224, 232, 236
u = 240
cV, cWQ, cWA, cW2, cJUNK = 0, 64, 84, 116, 152
NVGPR = 256 + 160

def stamp(i):
    if PROF == 2 and i != 11: return
    if PROF == 3 and i not in (6, 10, 11): return
    if PROF == 4 and i not in (OPT['echo'] & 15, 11): return
    if PROF: A(f"s_memrealtime {sr(sST, 2)}\ns_lshr_b32 s3, s{sPASS}, 16\ns_add_u32 m0, s3, {i}\ns_waitcnt lgkmcnt(0)\nv_writelane_b32 v9, s{sST}, m0")
FREG = [74, 76, 78, 80, 82, 94, 84, 66, 70] if OPT['fine'] == 'pro' else [74, 76, 78, 80, 82, 92, 94, 84, 66]
fcount = [0]
def FS(stage):
    if OPT["fine"] == stage:
        A(f"s_memtime s[{FREG[fcount[0]]}:{FREG[fcount[0]]+1}]"); fcount[0] += 1

def srd(r, lo, hi, nbytes):
    if r != lo: A(f"s_mov_b32 s{r}, s{lo}")
    A(f"s_and_b32 s{r+1}, s{hi}, 0xffff\ns_mov_b32 s{r+2}, {nbytes}\ns_mov_b32 s{r+3}, 0x20000")
def mask64(reg, lo, hi): A(f"s_mov_b32 s{reg}, {lo:#x}\ns_mov_b32 s{reg+1}, {hi:#x}")
def sentinel_test(regs, tmp):
    regs = list(regs)
    if len(regs) == 1:
        A(f"v_cmp_eq_u32 vcc, -1, v{regs[0]}"); return
    if len(regs) % 2 == 0: A(f"v_max_u32 v{tmp}, v{regs[0]}, v{regs[1]}"); k = 2
    else: A(f"v_max3_u32 v{tmp}, v{regs[0]}, v{regs[1]}, v{regs[2]}"); k = 3
    while k < len(regs):
        A(f"v_max3_u32 v{tmp}, v{tmp}, v{regs[k]}, v{regs[k+1]}"); k += 2
    A(f"v_cmp_eq_u32 vcc, -1, v{tmp}")
def filler(n):
    for _ in range(n):
        A("s_nop 7")
def poll(loads, regs, tmp, depth=None, early="", test=None, hook=None):
    depth = depth or OPT["depth"]
    n = sum(1 for ln in loads.split("\n") if ln.strip().startswith("buffer_"))
    top = uid("poll")
    A(f"s_mov_b32 s{sCNT}, 0")
    for _ in range(depth - 1):
        A(loads); filler({2: 3, 3: 2}[depth])
    if OPT["pal"] and not intail[0] and depth > 1:
        k = npoll[0]; npoll[0] += 1
        A(f".p2align {OPT['pal']}")
        po = [int(c, 36) for c in OPT["po"]]
        for _ in range(po[k] if k < len(po) else 0): A("s_nop 0")
    A(f"{top}:")
    A(loads)
    A(f"s_add_u32 s{sCNT}, s{sCNT}, 1\ns_cmp_gt_u32 s{sCNT}, {OPT['tmo']}\ns_cbranch_scc1 L_end")
    if hook:
        hk, after = uid("hk"), uid("ha")
        A(f"s_cmp_lg_u32 s{sHOOK}, 0\ns_cbranch_scc1 {hk}")
        with Tail():
            A(f"{hk}:\ns_mov_b32 s{sHOOK}, 0"); hook(); A(f"s_waitcnt vmcnt(1)\ns_branch {after}")
    A(f"s_waitcnt vmcnt({(depth - 1)*n})")
    if hook: A(f"{after}:")
    assert depth == 1 or not early
    A(early)
    if test: A(test)
    else: sentinel_test(regs, tmp)
    if OPT["bko"] and depth == 1 and not intail[0]:
        bk = uid("bk")
        A(f"s_cbranch_vccnz {bk}")
        with Tail(): A(f"{bk}:\ns_sleep {OPT['bko']}\ns_branch {top}")
    else: A(f"s_cbranch_vccnz {top}")
def recheck(load, regs, tmp):
    retry, top, back = uid("rc"), uid("rct"), uid("rcb")
    sentinel_test(regs, tmp)
    A(f"s_cbranch_vccnz {retry}\n{back}:")
    with Tail():
        A(f"{retry}:\ns_mov_b32 s{sCNT}, 0\n{top}:\n{load}\ns_waitcnt vmcnt(0)")
        sentinel_test(regs, tmp)
        A(f"s_cbranch_vccz {back}\ns_add_u32 s{sCNT}, s{sCNT}, 1\ns_cmp_lt_u32 s{sCNT}, {OPT['tmo']}\ns_cbranch_scc1 {top}\ns_branch L_end")
def pub(store, mask):
    slow, back = uid("slow"), uid("back")
    A(f"s_cmp_eq_u32 s{sMODE}, 0\ns_mov_b64 exec, {mask}\ns_cbranch_scc1 {slow}\n{store}\n{back}:\ns_mov_b64 exec, -1")
    with Tail(): A(f"{slow}:\n{store} sc1\ns_branch {back}")
def dma(rsrc, voff, soff, lds_s):
    A(f"s_mov_b32 m0, s{lds_s}\ns_nop 0\nbuffer_load_dwordx4 v{voff}, {sr(rsrc,4)}, s{soff} offen {LDF} lds")
def rowred_list(op, regs, steps=ROWRED):
    o = []
    for k, p in enumerate(steps):
        o += [dpp(op, r, r, p) for r in regs]
        if len(regs) < 3 and k < len(steps) - 1: o += ["s_nop 0"] * (3 - len(regs) - 0 if len(regs) == 1 else 1)
    return [x for x in o]
def rowred(op, regs):
    for p in ROWRED:
        for r in regs: A(dpp(op, r, r, p))
        if len(regs) < 3 and p != ROWRED[-1]: A(f"s_nop {2 - len(regs)}")
def weave(main, side, per, start=0):
    side = list(side)
    for k, m in enumerate(main):
        A(m)
        if k >= start:
            for _ in range(per):
                if side: A(side.pop(0))
    for s_ in side: A(s_)

def mfma_gap(need=8):
    n = 0
    for ln in reversed(L):
        if ln.startswith("v_mfma"): break
        if ln.endswith(":") or ln.startswith("."): continue
        if ln.startswith("s_memtime"): continue
        n += int(ln.split()[1]) + 1 if ln.startswith("s_nop") else 1
    if n < need: A(f"s_nop {need - n - 1}")
def pipeline(reads, mf, side=(), start=0, pre=None, between=None, per=2):
    reads = list(reads); side = list(side); pre = OPT["pre"] if pre is None else pre
    n = 0; done = -1
    for _ in range(min(pre, len(reads))): A(reads[n]); n += 1
    if between: between()
    for k, (m, need) in enumerate(mf):
        while n <= need: A(reads[n]); n += 1
        slots = per
        if need > done: A(f"s_waitcnt lgkmcnt({n - 1 - need})"); done = need
        A(m)
        if n < len(reads): A(reads[n]); n += 1; slots -= 1
        if k >= start:
            for _ in range(slots):
                if side: A(side.pop(0))
    for x in reads[n:]: A(x)
    for x in side: A(x)

hdr = open("cdna_kernels/" + NAME + ".s.ref").read().split("; Override launch")[0]
out = [hdr.rstrip(), "; Override launch geometry by editing the next line (default: block=256,",
       "; grid=ceil(out_elems/256), lds=0). Harness parses it; keep it on one line.",
       f"; @launch grid=(256,1,1) block=(256,1,1) lds={LDS_BYTES}",
       '.amdgcn_target "amdgcn-amd-amdhsa--gfx950"', ".text", f".globl {NAME}_kernel"] + ([".p2align 12", f".fill {OPT['kal']*64 + 1}, 4, 0xbf810000"] if OPT["kal"] >= 0 else []) + [".p2align 8",
       f".type {NAME}_kernel,@function", f"{NAME}_kernel:"]

def wdma_voff(dst, rowbytes, kind):
    if kind == "std": A(f"v_bfe_u32 v{dst}, v{vL}, 4, 1\ns_and_b32 s{sT0}, s{sW}, 1\ns_lshl_b32 s{sT0}, s{sT0}, 1")
    else: A(f"v_lshrrev_b32 v{dst}, 5, v{vL}\ns_and_b32 s{sT0}, s{sW}, 2")
    A(f"""v_or_b32 v{dst}, s{sT0}, v{dst}
v_lshlrev_b32 v{dst}, 1, v{dst}
v_xor_b32 v{dst}, v{dst}, v{vL}
v_and_b32 v{dst}, 7, v{dst}
v_lshlrev_b32 v{dst}, 4, v{dst}
v_lshrrev_b32 v{dst+1}, 3, v{vL}
s_mov_b32 s{sT0}, {rowbytes}
v_mad_u32_u24 v{dst}, v{dst+1}, s{sT0}, v{dst}""")
def traddr_std(dst, base):
    A(f"""v_bfe_u32 v{dst}, v{vL}, 3, 2
v_xor_b32 v{dst}, s{sW}, v{dst}
v_lshlrev_b32 v{dst}, 5, v{dst}
v_and_b32 v{dst+1}, 3, v{vL}
v_lshl_add_u32 v{dst}, v{dst+1}, 3, v{dst}
v_bfe_u32 v{dst+1}, v{vL}, 2, 2
v_lshl_add_u32 v{dst}, v{dst+1}, 7, v{dst}
v_lshl_add_u32 v{dst}, v{vG}, 10, v{dst}
v_add_u32 v{dst}, {base}, v{dst}""")
def traddr_tail(dst, base):
    A(f"""v_bfe_u32 v{dst}, v{vL}, 3, 1
v_and_b32 v{dst+1}, 2, v{vG}
v_or_b32 v{dst}, v{dst}, v{dst+1}
v_xor_b32 v{dst}, s{sW}, v{dst}
v_lshlrev_b32 v{dst}, 5, v{dst}
v_and_b32 v{dst+1}, 3, v{vL}
v_lshl_add_u32 v{dst}, v{dst+1}, 3, v{dst}
v_lshrrev_b32 v{dst+1}, 2, v{vL}
v_lshl_add_u32 v{dst}, v{dst+1}, 7, v{dst}
v_add_u32 v{dst}, {base + 16384}, v{dst}""")
def tr_slice(dst, a_std, a_tail, off):
    for ks in range(4):
        for h in range(2): A(f"ds_read_b64_tr_b16 {ar(dst+4*ks+2*h,2)}, v{a_std} offset:{off+ks*4096+h*512}")
    A(f"ds_read_b64_tr_b16 {ar(dst+16,2)}, v{a_tail} offset:{off}")
def x_addr(dst, idx, rg_s, tmp):
    A(f"""v_mul_u32_u24 v{dst}, 3641, v{idx}
v_lshrrev_b32 v{dst}, 16, v{dst}
v_mul_u32_u24 v{tmp}, 18, v{dst}
v_sub_u32 v{tmp}, v{idx}, v{tmp}
v_lshlrev_b32 v{tmp}, 4, v{tmp}
v_and_b32 v{tmp+1}, 3, v{dst}
v_lshl_add_u32 v{tmp}, v{tmp+1}, 11, v{tmp}
v_lshrrev_b32 v{dst}, 2, v{dst}
v_lshl_add_u32 v{dst}, v{dst}, 14, v{tmp}
s_mul_i32 s{sT0}, s{rg_s}, 288
v_add_u32 v{dst}, s{sT0}, v{dst}""")

NK1, NKB, NQ, NV1, NW2, NB1 = OPT["nk1"], OPT["nkb"], OPT["nq"], OPT["nv1"], OPT["nw2"], OPT["nb1"]
sKM, sVM = 66, 67
if PROF: sKM, sVM = 86, 87
def srd2(r, nbytes): A(f"s_mov_b32 s{r+2}, {nbytes}\ns_mov_b32 s{r+3}, 0x20000")
def blk_m0(base, i, mask):
    return f"s_xor_b32 m0, s{base}, {i << 12}\ns_nop 0"
    hi = (i << 12) & ~mask
    return f"s_add_u32 s{sT4}, s{sROT}, {(i << 12) & mask}\ns_and_b32 s{sT4}, s{sT4}, {mask}\n" + (f"s_or_b32 s{sT4}, s{sT4}, {hi}\n" if hi else "") + f"s_add_u32 m0, s{sT4}, s{base}\ns_nop 0"
def kdma(i): A(blk_m0(sKM, i, 0xf000) + f"\nbuffer_load_dwordx4 v{vKO}, {sr(rK,4)}, m0 offen {LDF} lds")

A("s_cmp_ge_u32 s2, 256\ns_cbranch_scc1 L_end")
if PROF: A(f"s_memrealtime {sr(sST,2)}\ns_memtime s[88:89]\nv_mov_b32 v9, 0")
FS("pro")
def PF():
    A(("s_cmp_lt_u32 s2, 248" if OPT["pfj"] else "s_cmp_ge_u32 s2, 8") + f"\ns_cbranch_scc1 L_nopf\ns_getpc_b64 s[100:101]\nL_pc:\nv_min_u32 v8, {OPT['pfl'] - 1}, v0\nv_lshlrev_b32 v8, 7, v8\nglobal_load_dword v8, v8, s[100:101]\nL_nopf:")
NK0 = 0
if OPT["pf"]: PF()
A(f"""s_load_dwordx2 s[{rWQ}:{rWQ+1}], s[0:1], 24
s_load_dwordx2 s[{rXI}:{rXI+1}], s[0:1], 0
s_load_dwordx4 s[{rK}:{rK+3}], s[0:1], 8
s_lshr_b32 s{sJ}, s2, 3
v_readfirstlane_b32 s{sW}, v0
v_lshrrev_b32 v{t+1}, 3, v0
v_lshrrev_b32 v{vG}, 4, v0""")
A(f"""s_mul_i32 s{sRG}, s{sJ}, 37
v_and_b32 v{t}, 2, v{t+1}
s_lshr_b32 s{sRG}, s{sRG}, 8
v_and_or_b32 v{t}, v{vG}, 4, v{t}
s_mul_i32 s{sT0}, s{sRG}, 7
v_xor_b32 v{t}, v{t}, v0
s_sub_u32 s{sCG}, s{sJ}, s{sT0}
v_and_b32 v{t}, 7, v{t}
s_cmp_ge_u32 s{sCG}, 3
v_lshlrev_b32 v{t}, 4, v{t}
s_addc_u32 s{sT0}, s{sCG}, 0
v_and_b32 v{t+1}, 7, v{t+1}
s_cmp_ge_u32 s{sJ}, 28
v_lshl_or_b32 v{t}, v{t+1}, 13, v{t}
s_cselect_b32 s{sRG}, s{sCG}, s{sRG}
s_cselect_b32 s{sCG}, 3, s{sT0}
v_and_b32 v{vL}, 63, v0
s_and_b32 s{sX}, s2, 7
s_mul_i32 s{sT1}, s{sRG}, {144*64}
s_lshl_b32 s{sT2}, s{sW}, 3
s_add_u32 s{sT1}, s{sT1}, s{sT2}
s_lshl_b32 s{sT2}, s{sX}, 3
s_add_u32 s{sT1}, s{sT1}, s{sT2}
s_add_u32 s{sT1}, s{sT1}, s{sCG}
s_lshl_b32 s{sT1}, s{sT1}, 7
s_lshl_b32 s{sVM}, s{sW}, 4
s_add_u32 s{sT2}, s{sVM}, {LWQ}
s_mov_b32 s{rWQ+3}, 0x20000
s_mov_b32 s{rWQ+2}, {576*4096*2}
s_mov_b32 s{rXI+3}, s{rWQ+3}
s_movk_i32 s{rXI+2}, 1152
s_lshr_b32 s{sW}, s{sW}, 6
s_cmp_lg_u32 s{sW}, 2
v_lshlrev_b32 v{t+2}, 4, v{vL}""")
FS("pro")
A(f"""s_waitcnt lgkmcnt(0)
s_cbranch_scc1 L_nox0
buffer_load_dwordx4 {vr(gX,4)}, v{t+2}, {sr(rXI,4)}, 0 offen
buffer_load_dwordx4 {vr(gX+4,4)}, v{t+2}, {sr(rXI,4)}, 0 offen offset:1024
L_nox0:""")
for i in range(4):
    A(f"s_add_u32 m0, s{sT2}, {i*4096}\n" + (f"s_add_u32 s{sT1}, s{sT1}, {32*8192}" if i else f"s_cmp_ge_u32 s{sW}, 2") + f"\nbuffer_load_dwordx4 v{t}, {sr(rWQ,4)}, s{sT1} offen {LDF} lds")
A(f"""s_cmp_ge_u32 s{sW}, 2
s_cbranch_scc1 L_wq4
s_add_u32 m0, s{sT2}, {16*1024}
s_add_u32 s{sT1}, s{sT1}, {32*8192}
buffer_load_dwordx4 v{t}, {sr(rWQ,4)}, s{sT1} offen {LDF} lds
L_wq4:""")
FS("pro")
ROTC = f"s_lshl_b32 s{sROT}, s{sX}, 13" if (OPT["ra"], OPT["rb"]) == (2, 0) else f"s_mul_i32 s{sROT}, s{sX}, {OPT['ra']}\ns_mul_i32 s{sT1}, s{sJ}, {OPT['rb']}\ns_add_u32 s{sROT}, s{sROT}, s{sT1}\ns_and_b32 s{sROT}, s{sROT}, 15\ns_lshl_b32 s{sROT}, s{sROT}, 12"
A(f"""s_load_dwordx2 s[{rWS}:{rWS+1}], s[0:1], 88
v_and_b32 v{vN}, 15, v0
v_and_b32 v{vKO}, 15, v{vG}
s_lshl_b32 s{sT3}, s{sX}, 24
v_xor_b32 v{vKO}, v{vKO}, v{vN}
s_lshr_b32 s{sT0}, s{sJ}, 4
v_lshlrev_b32 v{vKO}, 4, v{vKO}
s_mul_i32 s{sT0}, s{sT0}, {(1 << 23) - (16 << 16)}
v_and_b32 v{vG}, 3, v{vG}
s_lshl_b32 s{sT1}, s{sJ}, 16
v_lshl_or_b32 v{vKO}, v{vG}, 8, v{vKO}
s_add_u32 s{sT0}, s{sT0}, s{sT3}
s_add_u32 s{sT0}, s{sT0}, s{sT1}
s_add_u32 s{sCNT}, s{sT0}, {28672*256 - LR}
{ROTC}
s_add_u32 s{sKM}, s{sVM}, s{sROT}
s_add_u32 s{sKM}, s{sKM}, {LR}
s_add_u32 s{rV}, s14, s{sCNT}
s_addc_u32 s{rV+1}, s15, 0
s_add_u32 s{rK}, s12, s{sCNT}
s_addc_u32 s{rK+1}, s13, 0""")
srd2(rK, LR + 65536)
for i in range(NK1): kdma(i)
FS("pro")
A("s_waitcnt lgkmcnt(0)")
srd2(rWS, WSREC)
A(f"""s_add_u32 s{rV}, s{rV}, {LR}
s_addc_u32 s{rV+1}, s{rV+1}, 0
s_and_b32 s{sT0}, s{sROT}, 0x7000
s_add_u32 s{sVM}, s{sVM}, s{sT0}
s_load_dwordx2 s[{rWA}:{rWA+1}], s[0:1], 32
s_load_dwordx2 s[92:93], s[0:1], 48
s_load_dwordx2 s[{rB1}:{rB1+1}], s[0:1], 56
s_load_dwordx2 s[{rW2}:{rW2+1}], s[0:1], 64
s_load_dwordx2 s[{rOUT}:{rOUT+1}], s[0:1], 72""")
A(f"s_mov_b32 s{sT1}, {EPO}\ns_buffer_load_dword s{sE1}, {WS}, s{sT1}")
A(f"""s_lshl_b32 s{sIB}, s{sX}, 16
s_add_u32 s{sIB}, s{sIB}, {IB0}
s_mul_i32 s{sQ0}, s{sX}, {Q0S}
s_add_u32 s{sQ0}, s{sQ0}, {Q0B}
s_mov_b32 s{sPASS}, 0""")
if PROF: A(f"v_writelane_b32 v9, s{sST}, 0")
traddr_std(t, LWQ); traddr_tail(t+2, LWQ)
FA = t + 8
A(f"""v_mov_b32 v{FA+16}, 0
v_mov_b32 v{FA+17}, 0
v_mov_b32 v{FA+18}, 0
v_mov_b32 v{FA+19}, 0
v_lshlrev_b32 v{aXW}, 4, v0
v_add_u32 v{aXW}, {LXS}, v{aXW}
ds_write_b128 v{aXW}, {vr(FA+16,4)} offset:512
v_mul_u32_u24 v{aXR}, 288, v{vN}
v_lshl_add_u32 v{aXT}, v{vG}, 3, v{aXR}
v_add_u32 v{aXT}, {LXS + 256}, v{aXT}
v_lshl_add_u32 v{aXR}, v{vG}, 4, v{aXR}
v_add_u32 v{aXR}, {LXS}, v{aXR}
v_mov_b32 v{aS1}, v{aXR}
v_mov_b32 v{aS3}, v{aXR}
s_lshl_b32 s{sT0}, s{sCG}, 10
s_lshl_b32 s{sT1}, s{sW}, 8
s_add_u32 s{sT0}, s{sT0}, s{sT1}
s_lshl_b32 s{sT1}, s{sRG}, 2
s_add_u32 s{sT0}, s{sT0}, s{sT1}
v_lshl_add_u32 v{aQD}, v{vN}, 4, s{sT0}
s_cmp_lg_u32 s{sW}, 2
s_cbranch_scc1 L_pwx""")
NCLR = 4
xf, z1, z2 = t + 40, u + 4, u + 5
A(f"""v_mov_b32 v{z1}, 0
v_mov_b32 v{z2}, 0
v_mov_b32 v{u+6}, 0x3f803f80
v_lshlrev_b32 v{t+4}, 4, v{vL}
v_add_u32 v{t+4}, {LXS}, v{t+4}
s_mov_b32 exec_lo, 0xfffc0000
s_mov_b32 exec_hi, 0
ds_write_b128 v{t+4}, {vr(FA+16,4)}
s_mov_b64 exec, -1
s_mul_i32 s{sT0}, s{sRG}, 18
s_lshl_b32 s{sT1}, s{sT0}, 4
v_subrev_u32 v{t+5}, s{sT1}, v{t+4}
s_mov_b64 {sr(sT2,2)}, 0x3ffff
s_lshl_b64 {sr(sT2,2)}, {sr(sT2,2)}, s{sT0}
s_waitcnt vmcnt({4 + NK1 - NK0})""")
for k in range(8): A(f"v_dot2c_f32_bf16 v{z1}, v{gX+k}, v{u+6}\nv_dot2c_f32_bf16 v{z2}, v{gX+k}, v{gX+k}")
for k in range(4): A(f"v_lshlrev_b32 v{xf+2*k}, 16, v{gX+k}\nv_and_b32 v{xf+2*k+1}, 0xffff0000, v{gX+k}")
rowred("v_add_f32", [z1, z2])
for sw in ("16", "32"):
    A(f"v_mov_b32 v{u+6}, v{z1}\nv_mov_b32 v{u+7}, v{z2}\ns_nop 0\nv_permlane{sw}_swap_b32 v{z1}, v{u+6}\nv_permlane{sw}_swap_b32 v{z2}, v{u+7}\nv_add_f32 v{z1}, v{z1}, v{u+6}\nv_add_f32 v{z2}, v{z2}, v{u+7}")
A(f"v_mul_f32 v{u+6}, {1/576:.9e}, v{z1}")
for k in range(8): A(f"v_sub_f32 v{xf+k}, v{xf+k}, v{u+6}")
for k in range(4): A(f"v_cvt_pk_bf16_f32 v{xf+k}, v{xf+2*k}, v{xf+2*k+1}")
A(f"""v_fma_f32 v{z2}, -v{u+6}, v{z1}, v{z2}
v_mov_b32 v{u+7}, {LMODE}
v_mul_f32 v{z2}, 0x3d800000, v{z2}
s_mov_b64 exec, {sr(sT2,2)}
ds_write_b128 v{t+5}, {vr(xf,4)}
ds_write2_b32 v{u+7}, v{z2}, v{FA+16} offset0:0 offset1:1
s_mov_b64 exec, -1
s_cmp_lg_u32 s{sRG}, 3
s_cbranch_scc1 L_x0d""")
for k in range(4): A(f"v_lshlrev_b32 v{xf+8+2*k}, 16, v{gX+4+k}\nv_and_b32 v{xf+8+2*k+1}, 0xffff0000, v{gX+4+k}")
for k in range(8): A(f"v_sub_f32 v{xf+8+k}, v{xf+8+k}, v{u+6}")
for k in range(4): A(f"v_cvt_pk_bf16_f32 v{xf+8+k}, v{xf+8+2*k}, v{xf+8+2*k+1}")
A(f"s_mov_b64 exec, 0xff\nds_write_b128 v{t+4}, {vr(xf+8,4)} offset:160\ns_mov_b64 exec, -1\nL_x0d:")
for i in range(NK1, NK1 + NKB): kdma(i)
A(f"s_waitcnt vmcnt({NK1 - NK0 + NKB})\nL_bar1:")
FS("pro")
A(f"s_waitcnt lgkmcnt(0)\ns_barrier")
NEAR = []
with Tail():
    A(f"L_pwx:\ns_cmp_eq_u32 s{sW}, {7 if OPT['xnoclr'] else 3}\ns_cbranch_scc1 L_pw3")
    if OPT["q0t"]:
        A(f"s_lshl_b32 s{sT1}, s{sJ}, 9\ns_lshl_b32 s{sT2}, s{sW}, 8\ns_add_u32 s{sT1}, s{sT1}, s{sT2}\nv_lshl_add_u32 v{t+6}, v{vL}, 7, s{sT1}\ns_mov_b64 exec, 3\nbuffer_load_dword v8, v{t+6}, {WS}, s{sQ0} offen sc1\ns_mov_b64 exec, -1")
    for i in range(NK1, NK1 + NKB): kdma(i)
    if OPT["walk"]: A(f"s_cmp_eq_u32 s{sW}, 0\ns_cbranch_scc1 L_walk0_0\ns_branch L_walk1_0\nL_walked:")
    A(f"s_waitcnt vmcnt({NK1 - NK0 + NKB + (1 if OPT['q0t'] else 0)})\ns_branch L_bar1")
    q4 = vr(u, 4)
    A("L_pw3:")
    for r in range(4): A(f"v_mov_b32 v{u+r}, -1")
    A(f"""s_mul_i32 s{sT1}, s{sJ}, {REST}
v_lshl_add_u32 v{t+6}, v{vL}, 4, s{sT1}
s_lshl_b32 s{sT1}, s{sJ}, 9
s_add_u32 s{sT1}, s{sT1}, {OPo}
v_lshl_add_u32 v{t+7}, v{vL}, 4, s{sT1}
s_lshl_b32 s{sT1}, s{sJ}, 6
s_add_u32 s{sT1}, s{sT1}, {MLo - 512}
v_lshl_add_u32 v{t+8}, v{vL}, 4, s{sT1}
v_cmp_gt_u32 vcc, 32, v{vL}
s_lshl_b32 s{sT1}, s2, 9
v_lshl_add_u32 v{t+9}, v{vL}, 4, s{sT1}
v_cndmask_b32 v{t+7}, v{t+8}, v{t+7}, vcc
s_lshr_b32 s{sT1}, s2, 6
s_lshl_b32 s{sT1}, s{sT1}, 14
s_and_b32 s{sT2}, s2, 63
s_lshl_b32 s{sT2}, s{sT2}, 7
s_add_u32 s{sT1}, s{sT1}, s{sT2}
s_add_u32 s{sT1}, s{sT1}, {PROBE}
v_lshl_add_u32 v{t+8}, v{vL}, 4, s{sT1}
v_lshrrev_b32 v{t+10}, 3, v{vL}
v_mul_u32_u24 v{t+10}, {0x2000 - 128}, v{t+10}
v_add_u32 v{t+8}, v{t+8}, v{t+10}
s_mov_b32 exec_hi, 0xf
buffer_store_dwordx4 {q4}, v{t+7}, {WS}, s{sIB} offen sc1
s_mov_b32 exec_hi, {(1 << (REST//16 - 32)) - 1:#x}
buffer_store_dwordx4 {q4}, v{t+6}, {WS}, s{sIB} offen sc1
s_and_b32 s{sT1}, s2, 3
s_cmp_eq_u32 s{sT1}, 2
s_cselect_b32 s{sT2}, 0xff, -1
s_cmp_eq_u32 s{sT1}, 3
s_cselect_b32 exec_lo, 1, s{sT2}
s_mov_b32 exec_hi, 0
buffer_store_dwordx4 {q4}, v{t+9}, {WS}, 0 offen sc1
s_mov_b32 exec_lo, 0xffff
buffer_store_dwordx4 {q4}, v{t+8}, {WS}, 0 offen sc1
s_mov_b64 exec, -1""")
    for i in range(NK1, NK1 + NKB): kdma(i)
    A(f"s_waitcnt vmcnt({NK1 - NK0 + NKB + NCLR})\ns_branch L_bar1")
NEAR = TAIL[:]; del TAIL[:]
stamp(2); FS("pro")
tr_slice(cWQ, t, t+2, 0)
A(f"s_and_b32 s{sE1}, s{sE1}, -16\ns_add_u32 s{sE1}, s{sE1}, 16")
A("s_branch L_q_reads")
L.extend(NEAR)

HD = dict(zip(("q", "w1", "fin"), [int(c, 36) for c in OPT["hd"]]))
def hint_wait(imm, site):
    skip = uid("hs")
    A(f"s_cmp_lg_u32 s{sW}, 3\ns_cbranch_scc1 {skip}")
    poll(f"buffer_load_dword v{gHI}, v{aHL}, {WS}, s{sI} offen offset:{imm} sc1", [gHI], None)
    if HD[site]:
        A(f"s_cmp_lt_u32 s{sCNT}, {OPT['hskip']}\ns_cbranch_scc1 {skip}"); filler(HD[site])
    A(f"{skip}:\ns_barrier")
def w1_colsum():
    ACC = t + 40
    for r in range(4): A(f"v_mov_b32 v{t+28+r}, v{vONE}")
    A(f"v_mov_b32 v{t+32}, 0\nv_mov_b32 v{t+33}, 0\nv_mov_b32 v{t+34}, v{vONE}\nv_mov_b32 v{t+35}, v{vONE}\nv_cmp_eq_u32 vcc, 2, v{vG}\ns_waitcnt lgkmcnt(0)")
    for ks in range(5):
        for c in range(3):
            A(mfma(vr(ACC+4*c,4), vr(t+28 if ks < 4 else t+32,4), ar(cWA+18*c+(4*ks if ks < 4 else 14),4), "0" if ks == 0 else vr(ACC+4*c,4)))
    A(f"s_mov_b32 s{sT2}, -1\ns_mov_b32 s{sT3}, 0xffff\ns_nop 4\nv_cndmask_b32 v{ACC}, v{ACC}, v{ACC+4}, vcc\nv_cndmask_b32 v{vS1}, v{ACC}, v{ACC+8}, {sr(mODDR,2)}")
    pub(f"buffer_store_dword v{vS1}, v{vS1+1}, {WS}, s{sI} offen", sr(sT2,2))
def x_gather(a1, a2, stg, imm):
    other, join = uid("xo"), uid("xj")
    l1 = f"buffer_load_dwordx4 {vr(gX,4)}, v{a1}, {WS}, s{sXO} offen sc1"
    l2 = f"buffer_load_dwordx4 {vr(gX+4,4)}, v{a2}, {WS}, s{sXO} offen sc1"
    w1 = f"ds_write_b128 v{aXW}, {vr(gX,4)}"
    w2 = f"s_mov_b32 exec_hi, 0\nds_write_b128 v{aXW}, {vr(gX+4,4)} offset:4096\ns_mov_b32 exec_hi, -1"
    A(f"s_cmp_lg_u32 s{sW}, 0\ns_cbranch_scc1 {other}\ns_barrier")
    hook = w1_colsum if stg == "w1" else None
    poll(l1 + "\n" + l2, range(gX, gX+8), u, 1, w1 + "\n" + w2, hook=hook)
    FS(stg)
    A(f"s_branch {join}\n{other}:")
    if stg == "q": A(f"v_mov_b32 v{u+12}, s{sE1}")
    hint_wait(imm, stg)
    stamp(12 if stg == "q" else 7)
    if stg == "q":
        A(f"s_cmp_eq_u32 s{sW}, 1\nL_xq1_top:\n{l1}\ns_cbranch_scc0 L_xq1_a\nbuffer_load_dword v{u+12}, v{u+14}, {WS}, s{sCOPY} offen sc1\nL_xq1_a:")
        A(f"s_add_u32 s{sCNT}, s{sCNT}, 1\ns_cmp_gt_u32 s{sCNT}, {OPT['tmo']}\ns_cbranch_scc1 L_end\ns_cmp_eq_u32 s{sW}, 1\ns_waitcnt vmcnt(0)\n{w1}")
        A(f"v_cmp_ne_u32 {sr(sT0,2)}, s{sE1}, v{u+12}\nv_max_u32 v{u}, v{gX}, v{gX+1}\nv_max3_u32 v{u}, v{u}, v{gX+2}, v{gX+3}\nv_cndmask_b32 v{u}, v{u}, -1, {sr(sT0,2)}")
        A(f"v_cmp_eq_u32 vcc, -1, v{u}\ns_cbranch_vccnz L_xq1_top")
    else: poll(l1, range(gX, gX+4), u, 1, w1, hook=hook)
    A(f"{join}:\ns_waitcnt lgkmcnt(0)\ns_barrier")
    FS(stg)
FSt, ACC, SAC = t + 28, t + 40, t + 52
def stat_reads(): A(f"ds_read_b64_tr_b16 {vr(FSt,2)}, v{aS1}\nds_read_b64_tr_b16 {vr(FSt+2,2)}, v{aS1} offset:128\nds_read_b64_tr_b16 {vr(FSt+4,2)}, v{aS3}")
def frag_reads():
    for ks in range(4): A(f"ds_read_b128 {vr(FA+4*ks,4)}, v{aXR} offset:{ks*64}")
    A(f"ds_read_b64 {vr(FA+18,2)}, v{aXT}")
stat_mfma = [f"v_mfma_f32_16x16x16_bf16 {vr(SAC+4*k,4)}, {vr(vONE if k < 2 else vONE3,2)}, {vr(FSt+2*k,2)}, 0" for k in range(3)]
s1, s2 = u + 2, u + 3
stat_valu = [f"v_add_f32 v{s1}, v{SAC}, v{SAC+4}", f"v_mul_f32 v{s2}, v{SAC}, v{SAC}", f"v_add_f32 v{s1}, v{s1}, v{SAC+8}",
             f"v_fmac_f32 v{s2}, v{SAC+4}, v{SAC+4}", f"v_fmac_f32 v{s2}, v{SAC+8}, v{SAC+8}", "s_nop 0"]
for k, p in enumerate(ROWRED): stat_valu += ["s_nop 0", dpp("v_add_f32", s1, s1, p), dpp("v_add_f32", s2, s2, p)]
def main_mfma(nt, w, base):
    return [(mfma(vr(ACC+4*k,4), vr(FA+4*ks,4), ar(w+18*k+(4*ks if ks < 4 else 14),4), "0" if ks == 0 else vr(ACC+4*k, 4)), base + ks) for ks in range(5) for k in range(nt)]
frag_list = [f"ds_read_b128 {vr(FA+4*ks,4)}, v{aXR} offset:{ks*64}" for ks in range(4)] + [f"ds_read_b64 {vr(FA+18,2)}, v{aXT}"]
stat_list = [f"ds_read_b64_tr_b16 {vr(FSt,2)}, v{aS1}", f"ds_read_b64_tr_b16 {vr(FSt+2,2)}, v{aS1} offset:128", f"ds_read_b64_tr_b16 {vr(FSt+4,2)}, v{aS3}"]

A("L_q:")
A(f"v_lshlrev_b32 v{u+14}, 2, v{vN}\nv_add_u32 v{u+14}, {RDY2}, v{u+14}")
A(f"s_add_u32 s{sXO}, s{sCOPY}, {X2O}\ns_mov_b32 s{sCNT}, 0")
x_gather(aX1, aX2, "q", 128)
stamp(13)
A(f"s_mov_b32 s{sPASS}, {PS}\nL_q_reads:")
pipeline(frag_list + stat_list, main_mfma(1, cWQ, 0), between=lambda: A(f"s_add_u32 s{sI}, s{sIB}, s{sPASS}"))
FS("q")
a = ACC
A(f"""s_cmp_eq_u32 s{sPASS}, 0
s_nop 6
v_add_f32 v{a}, v{a}, v{a+1}
v_add_f32 v{a+2}, v{a+2}, v{a+3}
v_add_f32 v{a}, v{a}, v{a+2}
v_mov_b32 v{a+1}, v{a}
s_nop 1
v_permlane32_swap_b32 v{a}, v{a+1}
v_add_f32 v{a}, v{a}, v{a+1}
v_mov_b32 v{a+1}, v{a}
s_cbranch_scc1 L_q0_pub
s_nop 0
v_permlane16_swap_b32 v{a}, v{a+1}
v_add_f32 v{a}, v{a}, v{a+1}""")
FS("q")
pub(f"buffer_store_dword v{a}, v{aQD}, {WS}, s{sI} offen", "0xffff")
FS("q")
A("s_waitcnt lgkmcnt(0)")
for m in stat_mfma: A(m)
A("s_nop 6")
for x in stat_valu: A(x)
A(f"s_cmp_eq_u32 s{sCG}, 0\ns_cselect_b64 {sr(sT2,2)}, 1, 0")
pub(f"buffer_store_dwordx2 {vr(s1,2)}, v{aQS}, {WS}, s{sI} offen", sr(sT2,2))
FS("q")
A("L_att_poll:")

with Tail():
    A(f"L_q0_pub:\ns_nop 0\nv_permlane16_swap_b32 v{a}, v{a+1}\nv_add_f32 v{vQ0}, v{a}, v{a+1}")
    q0store = f"buffer_store_dwordx2 {vr(vQ0,2)}, v{vQ0+2}, {WS}, s{sQ0} offen"
    A(f"""v_mov_b32 v{vQ0+1}, s{sE1}
v_lshlrev_b32 v{vQ0+2}, 1, v{aQD}
s_mov_b64 exec, 0xffff
{q0store}
s_mov_b64 exec, -1""")
    for i in range(NK1 + NKB, 16): kdma(i)
    vo = u + 12
    A(f"""s_and_b32 s{sT0}, s{sW}, 1
s_lshl_b32 s{sT0}, s{sT0}, 1
v_and_b32 v{vo}, 1, v{vG}
v_or_b32 v{vo}, s{sT0}, v{vo}
v_lshlrev_b32 v{vo}, 1, v{vo}
v_xor_b32 v{vo}, v{vo}, v{vN}
v_lshlrev_b32 v{vo}, 4, v{vo}
v_lshl_add_u32 v{vo}, v{vG}, 8, v{vo}
s_lshr_b32 s{sT0}, s{sROT}, 5
s_and_b32 s{sT0}, s{sT0}, 128
v_xor_b32 v{vo}, s{sT0}, v{vo}
v_xor_b32 v{vo+1}, 128, v{vo}""")
    srd2(rV, 65536)
    def vdma(i): A(blk_m0(sVM, i, 0x7000) + f"\nbuffer_load_dwordx4 v{vo + (i & 1)}, {sr(rV,4)}, m0 offen {LDF} lds")
    for i in range(NQ): vdma(i)
    A(f"""s_getreg_b32 s{sXCC}, hwreg(HW_REG_XCC_ID)
s_and_b32 s{sXCC}, s{sXCC}, 7
s_cmp_lg_u32 s{sW}, 3
s_cbranch_scc1 L_nordy
s_lshl_b32 s{sT0}, s{sX}, 7
s_lshl_b32 s{sT1}, s{sJ}, 2
s_add_u32 s{sT0}, s{sT0}, s{sT1}
s_add_u32 s{sT0}, s{sT0}, {RDY}
v_mov_b32 v{u+14}, s{sT0}
s_or_b32 s{sT0}, s{sE1}, s{sXCC}
v_mov_b32 v{u+15}, s{sT0}
s_mov_b64 exec, 1
s_waitcnt vmcnt({16 - NK1 + NQ + 1})
buffer_store_dword v{u+15}, v{u+14}, {WS}, 0 offen sc1
s_mov_b64 exec, -1
L_nordy:
s_lshr_b32 s{sT0}, s{sJ}, 4
s_lshl_b32 s{sT0}, s{sT0}, 12
v_lshl_add_u32 v{aQ1}, v0, 4, s{sT0}
v_lshlrev_b32 v{t}, 1, v{aQ1}""")
    g0 = t + 28
    q0loads = f"""buffer_load_dwordx4 {vr(g0,4)}, v{t}, {WS}, s{sQ0} offen sc1
buffer_load_dwordx4 {vr(g0+4,4)}, v{t}, {WS}, s{sQ0} offen offset:16 sc1"""
    if OPT["xnoq0"] < 1: A(q0loads)
    for i in range(NQ, NV1): vdma(i)
    srd2(rW2, 4608*576*2); srd2(rB1, 4608*2); srd2(rOUT, 1152)
    A(f"""s_mov_b32 s{sMODE}, 0
s_mov_b32 s{sCOPY}, 0
s_mov_b32 s{sI}, s{sIB}
s_cmp_ge_u32 s{sJ}, 18
s_cselect_b32 s{sROLE}, 1, 0
s_cselect_b32 s{rWA}, s92, s{rWA}
s_cselect_b32 s{rWA+1}, s93, s{rWA+1}
s_mov_b32 s{rWA+2}, {4096*576*2}
s_cselect_b32 s{rWA+2}, {576*4608*2}, s{rWA+2}
s_mov_b32 s{rWA+3}, 0x20000
s_cmp_ge_u32 s{sJ}, 30
s_cselect_b32 s{sROLE}, 2, s{sROLE}
s_cmp_ge_u32 s{sJ}, 9
s_cselect_b32 s{sHALF}, 1, 0
s_mul_i32 s{sT0}, s{sHALF}, 9
s_sub_u32 s{sCG9}, s{sJ}, s{sT0}
s_sub_u32 s{sT0}, s{sJ}, 18
s_and_b32 s{sT1}, s{sT0}, 3
s_lshr_b32 s{sT0}, s{sT0}, 2
s_and_b32 s{sT0}, s{sT0}, 3
s_cmp_eq_u32 s{sROLE}, 0
s_cselect_b32 s{sHALF}, s{sHALF}, s{sT1}
s_cselect_b32 s{sCG9}, s{sCG9}, s{sT0}
v_mov_b32 v{vONE}, 0x3f803f80
v_mov_b32 v{vONE+1}, 0x3f803f80
s_cmp_eq_u32 s{sW}, 0
s_cselect_b32 s{sT0}, 0x3f803f80, 0
s_cselect_b64 {sr(mW0,2)}, 1, 0
v_mov_b32 v{vONE3}, s{sT0}
v_mov_b32 v{vONE3+1}, s{sT0}
v_mov_b32 v{vJUNK}, {1/576:.9e}""")
    mask64(mODDR, 0xffff0000, 0xffff0000); mask64(mODDL, 0xaaaaaaaa, 0xaaaaaaaa); mask64(mROW3, 0, 0xffff0000)
    c1, c2, CS = t + 40, t + 44, t + 48
    for r in range(4): A(f"v_mov_b32 v{c1+r}, v{vONE}")
    A(f"v_mov_b32 v{c2}, 0\nv_mov_b32 v{c2+1}, 0\nv_mov_b32 v{c2+2}, v{vONE}\nv_mov_b32 v{c2+3}, v{vONE}")
    for r in list(range(aRES, aHR + 1)) + [vS1 + 1, aLW, aLR]: A(f"v_mov_b32 v{r}, 0")
    for ks in range(4): A(mfma(vr(CS,4), vr(c1,4), ar(cWQ+4*ks,4), "0" if ks == 0 else vr(CS,4)))
    A(mfma(vr(CS,4), vr(c2,4), ar(cWQ+14,4), vr(CS,4)))
    A(f"""v_lshrrev_b32 v{aS3}, 2, v{vL}
v_mul_u32_u24 v{aS3}, 288, v{aS3}
v_and_b32 v{aS1}, 3, v{vL}
v_lshl_add_u32 v{aS3}, v{aS1}, 3, v{aS3}
s_lshl_b32 s{sT0}, s{sW}, 5
s_add_u32 s{sT0}, s{sT0}, {LXS}
v_add_u32 v{aS1}, s{sT0}, v{aS3}
v_add_u32 v{aS3}, {LXS + 256}, v{aS3}
s_lshl_b32 s{sT0}, s{sRG}, 5
s_lshl_b32 s{sT1}, s{sW}, 3
s_add_u32 s{sT0}, s{sT0}, s{sT1}
s_add_u32 s{sT0}, s{sT0}, {QSo}
v_mov_b32 v{aQS}, s{sT0}
v_lshrrev_b32 v{t+4}, 7, v0
v_mul_u32_u24 v{t+4}, 128, v{t+4}
v_lshl_add_u32 v{aQW}, v0, 1, v{t+4}
v_add_u32 v{aQW}, {LQ}, v{aQW}
ds_write_b16 v{aQW}, v{c2} offset:1600
ds_write_b16 v{aQW}, v{c2} offset:2400
v_mov_b32 v{t+4}, {LMODE}
ds_read_b32 v{gQS+1}, v{t+4}
v_mov_b32 v{gQS}, 0
v_mov_b32 v{vCS}, v{CS}""")
    A(f"v_add_u32 v{t+3}, 256, v{vL}\nv_min_u32 v{t+3}, 287, v{t+3}")
    x_addr(aX1, 0, sRG, t+4); x_addr(aX2, t+3, sRG, t+4)
    A(f"""v_lshlrev_b32 v{aQ2}, 3, v{vN}
v_add_u32 v{aQ2}, {QSo}, v{aQ2}
v_lshrrev_b32 v{t+4}, 3, v{vN}
v_mul_u32_u24 v{aPR}, 640, v{t+4}
v_mul_u32_u24 v{aQR}, 384, v{t+4}
v_and_b32 v{t+4}, 3, v{vN}
v_mul_u32_u24 v{t+5}, 800, v{t+4}
v_add_u32 v{aQR}, v{aQR}, v{t+5}
v_lshl_add_u32 v{aQR}, v{vG}, 4, v{aQR}
v_add_u32 v{aQR}, {LQ}, v{aQR}
v_lshl_add_u32 v{aPR}, v{vG}, 4, v{aPR}
v_add_u32 v{aPR}, {LP}, v{aPR}
v_lshrrev_b32 v{t+5}, 5, v{vL}
v_mul_u32_u24 v{aPW}, 640, v{t+5}
v_and_b32 v{aMW}, 31, v{vL}
v_lshl_add_u32 v{aPW}, v{aMW}, 2, v{aPW}
s_lshl_b32 s{sT0}, s{sW}, 7
s_add_u32 s{sT0}, s{sT0}, {LP}
v_add_u32 v{aPW}, s{sT0}, v{aPW}
v_lshlrev_b32 v{aMR}, 4, v{t+5}
s_lshl_b32 s{sT0}, s{sW}, 2
s_add_u32 s{sT0}, s{sT0}, {LM}
v_add_u32 v{aMW}, s{sT0}, v{aMR}
v_lshl_add_u32 v{aMR}, v{t+4}, 2, v{aMR}
v_add_u32 v{aMR}, {LM}, v{aMR}
v_min_u32 v{aHL}, 17, v{vL}
v_lshlrev_b32 v{aHL}, 2, v{aHL}
v_add_u32 v{aHL}, {H3o}, v{aHL}""")
    A(f"""s_lshl_b32 s{sT0}, s{sJ}, 9
s_lshl_b32 s{sT1}, s{sW}, 6
s_add_u32 s{sT0}, s{sT0}, s{sT1}
s_add_u32 s{sT0}, s{sT0}, {OPo}
v_lshlrev_b32 v{aOP}, 8, v{t+5}
v_lshl_add_u32 v{aOP}, v{vN}, 2, v{aOP}
v_add_u32 v{aOP}, s{sT0}, v{aOP}
s_lshl_b32 s{sT0}, s{sJ}, 6
s_add_u32 s{sT0}, s{sT0}, {MLo}
s_lshl_b32 s{sT1}, s{sW}, 2
s_add_u32 s{sT1}, s{sT1}, s{sT0}
v_lshl_add_u32 v{t+4}, v{t+5}, 4, s{sT1}
s_lshl_b32 s{sT1}, s{sW}, 3
s_add_u32 s{sT1}, s{sT1}, s{sT0}
s_add_u32 s{sT1}, s{sT1}, 32
v_lshl_add_u32 v{t+5}, v{t+5}, 2, s{sT1}
v_cndmask_b32 v{t+4}, v{t+4}, v{t+5}, {sr(mODDL,2)}
v_cndmask_b32 v{aOP}, v{aOP}, v{t+4}, {sr(mODDR,2)}
s_mov_b32 s{mATT}, 0x1ffff
s_cmp_lt_u32 s{sW}, 2
s_cselect_b32 s{mATT}, 0x3ffff, s{mATT}
s_mov_b32 s{mATT+1}, s{mATT}""")
    ka = t + 4
    A(f"s_lshl_b32 s{sT0}, s{sW}, 14\ns_add_u32 s{sT0}, s{sT0}, {LR}\nv_lshl_add_u32 v{u+8}, v{vN}, 8, s{sT0}\nv_xor_b32 v{u+9}, v{vG}, v{vN}")
    for ks in range(4): A(f"v_xor_b32 v{ka+ks}, {ks << 2}, v{u+9}\nv_lshl_add_u32 v{ka+ks}, v{ka+ks}, 4, v{u+8}")
    def q0_test():
        A(f"v_xor_b32 v{u+8}, s{sE1}, v{g0+1}")
        for k in range(1, 4): A(f"v_xor_b32 v{u+9}, s{sE1}, v{g0+2*k+1}\nv_or_b32 v{u+8}, v{u+8}, v{u+9}")
        A(f"v_cmp_ne_u32 vcc, 0, v{u+8}")
    if OPT["walk"] == 2:
        A(f"s_cmp_eq_u32 s{sW}, 0\ns_cbranch_scc1 L_walka_0\ns_cmp_eq_u32 s{sW}, 1\ns_cbranch_scc1 L_walkb_0\ns_cmp_eq_u32 s{sW}, 2\ns_cbranch_scc1 L_walkc_0\ns_branch L_walkd_0\nL_walked2:")
    A(f"v_mov_b32 v{u+10}, {LMODE + 4}\ns_waitcnt vmcnt({NV1 - NQ})")
    q0_test()
    A(f"s_mov_b64 exec, vcc\nds_write_b32 v{u+10}, v{vONE}\ns_mov_b64 exec, -1\ns_waitcnt lgkmcnt(0)\ns_barrier")
    stamp(3)
    A(f"ds_read_b32 v{u+11}, v{u+10}")
    for Tt in range(4):
        for ks in range(4): A(f"ds_read_b128 {vr(vK+16*Tt+4*ks,4)}, v{ka+ks} offset:{Tt*4096}")
        if Tt == 1: A(f"s_waitcnt lgkmcnt(8)\nv_readfirstlane_b32 s{sT0}, v{u+11}")
    A(f"s_cmp_eq_u32 s{sT0}, 0\ns_cbranch_scc1 L_q0_ok")
    if OPT["xnoq0"]: A("s_branch L_q0_ok")
    A(f"s_mov_b64 exec, 0xffff\n{q0store} sc1\ns_mov_b64 exec, -1\ns_mov_b32 s{sCNT}, 0\nL_q0_chk:")
    q0_test()
    A(f"s_cbranch_vccz L_q0_ok\ns_add_u32 s{sCNT}, s{sCNT}, 1\ns_cmp_ge_u32 s{sCNT}, {OPT['tmo']}\ns_cbranch_scc1 L_end\n{q0loads}\ns_waitcnt vmcnt(0)\ns_branch L_q0_chk\nL_q0_ok:")
    for k in range(4): A(f"v_mov_b32 v{gQ+k}, v{g0+2*k}")
    A("s_branch L_att_ok")

poll(f"buffer_load_dwordx4 {vr(gQ,4)}, v{aQ1}, {WS}, s{sI} offen sc1", range(gQ, gQ+4), u)
qsload = f"buffer_load_dwordx2 {vr(gQS,2)}, v{aQ2}, {WS}, s{sI} offen sc1"
resload2 = f"buffer_load_dwordx4 {vr(gRES,4)}, v{aRES}, {WS}, s{sXO} offen sc1"
A("L_att_ok:")
stamp(4); FS("att")
qv, qh, ql = u, u + 1, u + 2
A(f"""v_add_f32 v{qv}, v{gQ}, v{gQ+1}
v_add_f32 v{qh}, v{gQ+2}, v{gQ+3}
s_cmp_eq_u32 s{sPASS}, 0
v_add_f32 v{qv}, v{qv}, v{qh}
v_cvt_pk_bf16_f32 v{qh}, v{qv}, v{qv}
ds_write_b16 v{aQW}, v{qh}
v_lshlrev_b32 v{ql}, 16, v{qh}
v_sub_f32 v{qv}, v{qv}, v{ql}
v_cvt_pk_bf16_f32 v{qv}, v{qv}, v{qv}
ds_write_b16 v{aQW}, v{qv} offset:800
s_cbranch_scc1 L_att_nold
{qsload}
{resload2}
L_att_nold:""")
FS("att")
A("s_waitcnt lgkmcnt(0)\ns_barrier")
FS("att")
fq, D = t + 28, t + 44
for ks in range(4): A(f"ds_read_b128 {vr(fq+4*ks,4)}, v{aQR} offset:{ks*64}")
qk = [(f"s_waitcnt lgkmcnt({3-ks})\n" if Tt == 0 else "") + mfma(vr(D+4*Tt,4), vr(fq+4*ks,4), vr(vK+16*Tt+4*ks,4), "0" if ks == 0 else vr(D+4*Tt,4))
      for Tt in range(4) for ks in range(4)]
for m in qk[:4]: A(m)
A("s_cbranch_scc1 L_att_nochk\ns_waitcnt vmcnt(1)")
recheck(qsload, [gQS, gQS+1], u+3)
A("L_att_nochk:")
z1, z2 = u + 4, u + 5
side = [dpp("v_add_f32", z1, gQS, ROWRED[0]), dpp("v_add_f32", z2, gQS+1, ROWRED[0])]
for p in ROWRED[1:]: side += [dpp("v_add_f32", z1, z1, p), dpp("v_add_f32", z2, z2, p)]
side += [f"v_mul_f32 v{vMU}, {1/576:.9e}, v{z1}", f"v_mul_f32 v{z2}, {1/576:.9e}, v{z2}", f"v_fma_f32 v{z2}, -v{vMU}, v{vMU}, v{z2}",
         f"v_add_f32 v{D}, v{D}, v{D+1}", f"v_max_f32 v{z2}, 0, v{z2}", f"v_add_f32 v{z2}, 0x3727c5ac, v{z2}", f"v_rsq_f32 v{vC}, v{z2}",
         f"v_add_f32 v{D+2}, v{D+2}, v{D+3}", f"v_mul_f32 v{vC}, {128**-0.5*math.log2(math.e):.9e}, v{vC}",
         f"v_add_f32 v{D+4}, v{D+4}, v{D+5}", f"v_add_f32 v{D+6}, v{D+6}, v{D+7}", f"v_mul_f32 v{vMU}, v{vMU}, v{vC}"]
weave(qk[4:], side, 2)
FS("att")
sa, sb, um, tm = u + 6, u + 7, u + 8, u + 9
A(f"""v_add_f32 v{D+8}, v{D+8}, v{D+9}
v_add_f32 v{D+10}, v{D+10}, v{D+11}
v_cndmask_b32 v{sa}, v{D}, v{D+8}, {sr(mODDR,2)}
v_cndmask_b32 v{tm}, v{D+2}, v{D+10}, {sr(mODDR,2)}
v_mul_f32 v{sa}, v{sa}, v{vC}
v_fma_f32 v{sa}, -v{vMU}, v{tm}, v{sa}
s_nop 1
v_add_f32 v{D+12}, v{D+12}, v{D+13}
v_add_f32 v{D+14}, v{D+14}, v{D+15}
v_cndmask_b32 v{sb}, v{D+4}, v{D+12}, {sr(mODDR,2)}
v_cndmask_b32 v{tm}, v{D+6}, v{D+14}, {sr(mODDR,2)}
v_mul_f32 v{sb}, v{sb}, v{vC}
v_fma_f32 v{sb}, -v{vMU}, v{tm}, v{sb}
v_max_f32 v{um}, v{sa}, v{sb}
v_max_f32 v{tm}, v{sa}, v{sb}
s_nop 1
v_permlane16_swap_b32 v{um}, v{tm}
v_max_f32 v{um}, v{um}, v{tm}
s_nop 1""")
rowred("v_max_f32", [um])
A(f"""v_sub_f32 v{sa}, v{sa}, v{um}
v_sub_f32 v{sb}, v{sb}, v{um}
ds_write_b32 v{aMW}, v{um}
v_exp_f32 v{sa}, v{sa}
v_exp_f32 v{sb}, v{sb}
s_cmp_eq_u32 s{sPASS}, 0
v_cvt_pk_bf16_f32 v{tm}, v{sa}, v{sb}
ds_write_b32 v{aPW}, v{tm}""")
FS("att")
A(f"v_lshlrev_b32 v{sa}, 16, v{tm}\nv_and_b32 v{sb}, 0xffff0000, v{tm}\nv_add_f32 v{sa}, v{sa}, v{sb}\nv_add_f32 v{u+14}, v{sa}, 0\ns_nop 1\nv_permlane16_swap_b32 v{sa}, v{u+14}\nv_add_f32 v{sa}, v{sa}, v{u+14}\ns_nop 1\n{dpp('v_add_f32', sa, sa, ROWRED[0])}\ns_cbranch_scc1 L_rdy")
fp, acc, fm, big, fb = t - 0, t + 32, u + 7, u + 9, u + 10
def pv_head():
    A("s_waitcnt lgkmcnt(0)\ns_barrier")
    A(f"ds_read_b32 v{fm}, v{aMR}")
    for ks in range(8): A(f"ds_read_b128 {vr(fp+4*ks,4)}, v{aPR} offset:{ks*64}")
def pv_mfma(ks, tau):
    a_ = acc + 8*(ks >> 1) + 4*tau
    return mfma(vr(a_,4), vr(fp+4*ks,4), ar(cV+8*ks+4*tau,4), "0" if ks % 2 == 0 else vr(a_,4))
lc = u + 14
pv_side = [dpp("v_add_f32", sa, sa, ROWRED[1]), dpp("v_max_f32", big, fm, ROWRED[0]),
           dpp("v_add_f32", sa, sa, ROWRED[2]), dpp("v_max_f32", big, big, ROWRED[1]),
           dpp("v_add_f32", sa, sa, ROWRED[3]), f"v_sub_f32 v{fm}, v{fm}, v{big}", f"v_sub_f32 v{um}, v{um}, v{big}", f"v_exp_f32 v{fm}, v{fm}",
           f"v_exp_f32 v{um}, v{um}", f"v_mov_b32 v{FA+16}, 0" if False else "s_nop 0",
           f"v_mul_f32 v{sa}, v{sa}, v{um}", f"v_cndmask_b32 v{sa}, v{sa}, v{big}, {sr(mODDL,2)}"]
o0, o1 = lc, um
def scale(op, o, wv, a_): return f"{op}_dpp v{o}, v{fm}, v{a_} row_newbcast:{wv} {DPPM}"
pv_tail = [scale("v_mul_f32", o0, 0, acc), scale("v_mul_f32", o1, 0, acc+4), scale("v_fmac_f32", o0, 1, acc+8), scale("v_fmac_f32", o1, 1, acc+12)]
A("s_waitcnt lgkmcnt(0)\ns_barrier")
stamp(5); FS("att")
pipeline([f"ds_read_b128 {vr(fp,4)}, v{aPR}", f"ds_read_b32 v{fm}, v{aMR}"] + [f"ds_read_b128 {vr(fp+4*ks,4)}, v{aPR} offset:{ks*64}" for ks in range(1, 8)],
         [(pv_mfma(ks, tau), 0 if ks == 0 else (ks + 1 if ks < 2 or not OPT["pvw"] else (ks | 1) + 1)) for ks in range(8) for tau in range(2)], pv_side + pv_tail, start=2, pre=OPT["pre"] + 1)
def pv_finish():
    A(f"""v_mov_b32 v{FA+16}, 0
v_mov_b32 v{FA+17}, 0
{scale("v_fmac_f32", o0, 2, acc+16)}
{scale("v_fmac_f32", o1, 2, acc+20)}
s_nop 2
{scale("v_fmac_f32", o0, 3, acc+24)}
{scale("v_fmac_f32", o1, 3, acc+28)}
v_cvt_pk_bf16_f32 v{o0}, v{o0}, v{o1}
v_cndmask_b32 v{o0}, v{o0}, v{sa}, {sr(mODDR,2)}""")
    pub(f"buffer_store_dword v{o0}, v{aOP}, {WS}, s{sI} offen", sr(mATT,2))
FS("att")
pv_finish()
FS("att"); stamp(6)
A(f"s_cmp_lg_u32 s{sROLE}, 0\ns_cbranch_scc1 L_roleBF")

def wo_dma(i0, i1, v):
    wdma_voff(v, 1152, "wo")
    A(f"""s_lshl_b32 s{sT1}, s{sX}, 1
s_add_u32 s{sT1}, s{sT1}, s{sHALF}
s_lshl_b32 s{sT1}, s{sT1}, 5
s_add_u32 s{sT1}, s{sT1}, s{sW}
s_mul_i32 s{sT1}, s{sT1}, {8*1152}
s_lshl_b32 s{sT2}, s{sCG9}, 7
s_add_u32 s{sT1}, s{sT1}, s{sT2}
s_lshl_b32 s{sT2}, s{sW}, 10
s_add_u32 s{sT2}, s{sT2}, {LR + i0*4096}""")
    if i0: A(f"s_add_u32 s{sT1}, s{sT1}, {i0*32*1152}")
    for i in range(i0, i1):
        dma(rWA, v, sT1, sT2)
        if i < i1 - 1: A(f"s_add_u32 s{sT1}, s{sT1}, {32*1152}\ns_add_u32 s{sT2}, s{sT2}, 4096")
def w2_dma(i0, i1, v):
    wdma_voff(v, 1152, "std")
    A(f"""s_lshl_b32 s{sT1}, s{sX}, 1
s_add_u32 s{sT1}, s{sT1}, s{sHALF}
s_mul_i32 s{sT1}, s{sT1}, 36
s_add_u32 s{sT1}, s{sT1}, s{sW}
s_mul_i32 s{sT1}, s{sT1}, {8*1152}
s_lshl_b32 s{sT2}, s{sCG9}, 7
s_add_u32 s{sT1}, s{sT1}, s{sT2}
s_lshl_b32 s{sT2}, s{sW}, 10
s_add_u32 s{sT2}, s{sT2}, {LW2 + i0*4096}""")
    if i0: A(f"s_add_u32 s{sT1}, s{sT1}, {i0*32*1152}")
    for i in range(i0, i1):
        dma(rW2, v, sT1, sT2)
        if i < i1 - 1: A(f"s_add_u32 s{sT1}, s{sT1}, {32*1152}\ns_add_u32 s{sT2}, s{sT2}, 4096")
def w1_dma(k0, k1, v, done):
    wdma_voff(v, 9216, "std")
    A(f"""s_mul_i32 s{sT1}, s{sHALF}, 18
s_add_u32 s{sT1}, s{sT1}, s{sW}
s_mul_i32 s{sT1}, s{sT1}, {8*9216}
s_mul_i32 s{sT2}, s{sX}, 1152
s_add_u32 s{sT1}, s{sT1}, s{sT2}
s_mul_i32 s{sT2}, s{sCG9}, 384
s_add_u32 s{sT1}, s{sT1}, s{sT2}
s_lshl_b32 s{sT2}, s{sW}, 10
s_add_u32 s{sT2}, s{sT2}, {LR}""")
    for k in range(k0, k1):
        i, c = divmod(k, 3)
        if k == 12: A(f"s_cmp_ge_u32 s{sW}, 2\ns_cbranch_scc1 {done}")
        A(f"s_add_u32 s{sT3}, s{sT1}, {i*32*9216 + c*128}\ns_add_u32 s{sT4}, s{sT2}, {i*4096 + c*18432}")
        dma(rWA, v, sT3, sT4)

def w1_regs():
    for c in range(3): tr_slice(cWA + 18*c, t+8, t+10, c*18432)

POLo = H5o + 120
def probe():
    if OPT["copies"] != 2: return
    if OPT["pol"] < 0:
        A(f"""s_sub_u32 s{sT0}, s{sJ}, 30
s_lshl_b32 s{sT0}, s{sT0}, 14
s_lshl_b32 s{sT1}, s{sW}, 11
s_add_u32 s{sT0}, s{sT0}, s{sT1}
s_add_u32 s{sT4}, s{sT0}, {PROBE}
s_mov_b32 s84, -1
s_mov_b32 s85, -1""")
        for k in range(2*OPT["npair"]):
            c = (k ^ (k >> 1)) & 1
            A(f"s_add_u32 s{sT0}, s{sT4}, {(k >> 1)*128 + c*0x2000}\ns_memtime s[100:101]\ns_waitcnt lgkmcnt(0)\ns_buffer_load_dword s101, {WS}, s{sT0}\ns_waitcnt lgkmcnt(0)")
            A(f"s_memtime {sr(sT2,2)}\ns_waitcnt lgkmcnt(0)\ns_sub_u32 s{sT2}, s{sT2}, s100\ns_min_u32 s{84+c}, s{84+c}, s{sT2}")
        A(f"""s_lshl_b32 s{sT1}, s{sW}, 2
s_add_u32 s{sT1}, s{sT1}, {LMODE}
v_mov_b32 v{t}, s{sT1}
v_mov_b32 v{t+1}, s84
v_mov_b32 v{t+2}, s85
ds_write2_b32 v{t}, v{t+1}, v{t+2} offset0:0 offset1:4""")
def probe_done():
    if OPT["copies"] != 2: return
    if OPT["pol"] >= 0: A(f"s_mov_b32 s{sT4}, {OPT['pol']}")
    else:
        A(f"""v_mov_b32 v{t}, {LMODE}
ds_read_b128 {vr(t+28,4)}, v{t}
ds_read_b128 {vr(t+32,4)}, v{t} offset:16
s_waitcnt lgkmcnt(0)
v_min_u32 v{t}, v{t+28}, v{t+29}
v_min3_u32 v{t}, v{t}, v{t+30}, v{t+31}
v_min_u32 v{t+1}, v{t+32}, v{t+33}
v_min3_u32 v{t+1}, v{t+1}, v{t+34}, v{t+35}
v_cmp_gt_u32 vcc, v{t}, v{t+1}
s_lshr_b32 s{sT0}, s{sXCC}, 2
s_cmp_lg_u32 vcc_lo, 0
s_cselect_b32 s{sT4}, 1, 0
s_xor_b32 s{sT4}, s{sT4}, s{sT0}""")
    A(f"s_sub_u32 s{sT0}, s{sJ}, 30\ns_lshl_b32 s{sT0}, s{sT0}, 2\ns_add_u32 s{sT0}, s{sT0}, {POLo}\nv_mov_b32 v{t}, s{sT0}\nv_mov_b32 v{t+1}, s{sT4}")
    pub(f"buffer_store_dword v{t+1}, v{t}, {WS}, s{sIB} offen", sr(mW0,2))

with Tail():
    ra_, rb_, avt = t, t + 1, t + 2
    gv, gva = gO, gML
    gload = f"buffer_load_dwordx4 {vr(gv,4)}, v{gva}, {WS}, 0 offen sc1"
    A(f"L_rdy:\nv_lshlrev_b32 v{gva}, 4, v{vL}\nv_add_u32 v{gva}, {RDY}, v{gva}")
    BEH = OPT["beh"]; NX = 1 if OPT["touch"] else 0
    x0res = f"s_lshl_b32 s{sT0}, s{sCG9}, 7\ns_lshl_b32 s{sT1}, s{sW}, 5\ns_add_u32 s{sT0}, s{sT0}, s{sT1}\nv_lshl_add_u32 v{t+4}, v{vG}, 3, s{sT0}\nbuffer_load_dwordx2 {vr(vR+2,2)}, v{t+4}, {sr(rXI,4)}, 0 offen"
    def role_dma(done):
        lb = uid("rb")
        A(f"s_cmp_eq_u32 s{sROLE}, 1\ns_cbranch_scc1 {lb}\ns_cmp_eq_u32 s{sROLE}, 2\ns_cbranch_scc1 {done}f")
        if NW2: w2_dma(0, NW2, t+4)
        wo_dma(0, 8, t+4)
        if BEH: A(f"s_waitcnt vmcnt({8 + NW2 + NX + 1})")
        A(f"s_branch {done}\n{lb}:")
        if NB1: w1_dma(0, NB1, t+4, done + "b")
        A(f"{done}b:")
        if BEH: A(f"s_waitcnt vmcnt({min(NB1, 12) + NX + 1})\ns_branch {done}")
        A(f"{done}f:")
        if BEH: A(f"s_waitcnt vmcnt({NX + 1})")
        A(f"{done}:")
    A(x0res)
    stamp(1)
    if not BEH: role_dma("L_w1_issued")
    A(gload)
    for i in range(NV1, 16): vdma(i)
    A(f"s_mov_b32 s{sHOOK}, 0")
    avt = vKO
    A(f"""v_bfe_u32 v{avt+1}, v{vL}, 3, 2
v_bfe_u32 v{t+4}, v{vL}, 2, 1
v_lshl_or_b32 v{avt+1}, v{t+4}, 2, v{avt+1}
s_lshl_b32 s{sT0}, s{sW}, 1
v_xor_b32 v{avt+1}, s{sT0}, v{avt+1}
v_lshlrev_b32 v{avt+1}, 5, v{avt+1}
v_and_b32 v{avt}, 3, v{vL}
v_lshl_add_u32 v{avt}, v{avt}, 3, v{avt+1}
v_lshl_add_u32 v{avt}, v{t+4}, 12, v{avt}
v_bfe_u32 v{t+4}, v{vL}, 3, 1
v_lshl_add_u32 v{avt}, v{t+4}, 8, v{avt}
v_lshl_add_u32 v{avt}, v{vG}, 10, v{avt}
v_xor_b32 v{avt+1}, 32, v{avt}""")
    def vtr(ks, tau, h): return f"ds_read_b64_tr_b16 {ar(cV+8*ks+4*tau+2*h,2)}, v{avt+tau} offset:{ks*8192+h*512}"
    A(f"s_cmp_eq_u32 s{sROLE}, 1\ns_cbranch_scc1 L_sub\ns_cmp_eq_u32 s{sROLE}, 2\ns_cbranch_scc1 L_sud")
    A(f"""s_and_b32 s{sT0}, s{sW}, 1
s_lshl_b32 s{sT0}, s{sT0}, 1
v_lshrrev_b32 v{t+8}, 3, v{vN}
v_add_u32 v{t+8}, s{sT0}, v{t+8}
v_and_b32 v{t+9}, 1, v{vN}
v_lshlrev_b32 v{t+9}, 4, v{t+9}
v_mov_b32 v{t+10}, 0x3d80
v_lshlrev_b32 v{t+9}, v{t+9}, v{t+10}
v_cmp_eq_u32 vcc, v{t+8}, v{vG}
v_bfe_u32 v{t+10}, v{vN}, 1, 2
s_nop 0
v_cndmask_b32 v{t+9}, 0, v{t+9}, vcc""")
    for r in range(4): A(f"v_cmp_eq_u32 vcc, {r}, v{t+10}\ns_nop 1\nv_cndmask_b32 v{vSEL+r}, 0, v{t+9}, vcc")
    A(f"""v_lshrrev_b32 v{aRES}, 2, v{vN}
v_lshlrev_b32 v{aRES}, 14, v{aRES}
v_and_b32 v{t+8}, 3, v{vN}
v_lshl_add_u32 v{aRES}, v{t+8}, 11, v{aRES}
v_lshl_add_u32 v{aRES}, v{vG}, 4, v{aRES}
s_lshl_b32 s{sT0}, s{sCG9}, 7
s_lshr_b32 s{sT1}, s{sW}, 1
s_lshl_b32 s{sT1}, s{sT1}, 6
s_add_u32 s{sT0}, s{sT0}, s{sT1}
v_add_u32 v{aRES}, s{sT0}, v{aRES}
s_lshl_b32 s{sT0}, s{sHALF}, 13
s_lshl_b32 s{sT1}, s{sW}, 11
s_add_u32 s{sT0}, s{sT0}, s{sT1}
s_add_u32 s{sT0}, s{sT0}, {OPo}
v_lshl_add_u32 v{aO1}, v{vL}, 4, s{sT0}
s_lshl_b32 s{sT0}, s{sHALF}, 10
s_add_u32 s{sT0}, s{sT0}, {MLo}
v_lshl_add_u32 v{aML}, v{vN}, 6, s{sT0}
v_min_u32 v{t+8}, 2, v{vG}
v_lshl_add_u32 v{aML}, v{t+8}, 4, v{aML}
s_mul_i32 s{sT0}, s{sW}, {4*544}
s_add_u32 s{sT0}, s{sT0}, {LOPS}
v_lshrrev_b32 v{aOW}, 5, v{vL}
v_mul_u32_u24 v{aOW}, 544, v{aOW}
v_and_b32 v{t+8}, 31, v{vL}
v_lshl_add_u32 v{aOW}, v{t+8}, 4, v{aOW}
v_add_u32 v{aOW}, s{sT0}, v{aOW}
v_mul_u32_u24 v{aOR}, 544, v{vN}
v_lshl_add_u32 v{aOR}, v{vG}, 4, v{aOR}
v_add_u32 v{aOR}, {LOPS}, v{aOR}
s_lshl_b32 s{sT0}, s{sX}, 1
s_add_u32 s{sT0}, s{sT0}, s{sHALF}
s_lshr_b32 s{sT1}, s{sT0}, 2
s_lshl_b32 s{sT1}, s{sT1}, 14
s_and_b32 s{sT0}, s{sT0}, 3
s_lshl_b32 s{sT0}, s{sT0}, 11
s_add_u32 s{sT0}, s{sT0}, s{sT1}
s_lshl_b32 s{sT1}, s{sCG9}, 7
s_add_u32 s{sT0}, s{sT0}, s{sT1}
XSADDR
s_lshl_b32 s{sT0}, s{sJ}, 2
s_add_u32 s{sT0}, s{sT0}, {H3o}
v_mov_b32 v{aHS}, s{sT0}
s_mul_i32 s{sT0}, s{sHALF}, {288*16}
s_mul_i32 s{sT1}, s{sW}, {72*16}
s_add_u32 s{sT0}, s{sT0}, s{sT1}
s_add_u32 s{sT0}, s{sT0}, {HPo}
v_lshl_add_u32 v{aH1}, v{vL}, 4, s{sT0}
s_add_u32 s{sT0}, s{sT0}, 1024
v_lshl_add_u32 v{aH2}, v{vN}, 4, s{sT0}
v_lshlrev_b32 v{t+8}, 4, v{vN}
v_add_u32 v{t+8}, {HSo - 128}, v{t+8}
v_cmp_gt_u32 vcc, 8, v{vN}
s_mul_i32 s{sT0}, s{sW}, 144
s_add_u32 s{sT0}, s{sT0}, {LH}
v_cndmask_b32 v{aH2}, v{t+8}, v{aH2}, vcc
v_lshl_add_u32 v{aHW}, v{vL}, 1, s{sT0}
s_add_u32 s{sT0}, s{sT0}, 128
v_lshl_add_u32 v{aHW2}, v{vN}, 1, s{sT0}
v_mov_b32 v{t+8}, {LH + 576}
v_cndmask_b32 v{aHW2}, v{t+8}, v{aHW2}, vcc
v_lshlrev_b32 v{aHR}, 4, v{vG}
v_add_u32 v{aHR}, {LH}, v{aHR}""")
    A(f"""v_bfe_u32 v{t+8}, v{vL}, 4, 1
v_bfe_u32 v{t+9}, v{vL}, 2, 1
v_lshl_or_b32 v{t+8}, v{t+9}, 1, v{t+8}
v_xor_b32 v{t+8}, s{sW}, v{t+8}
v_lshlrev_b32 v{t+8}, 5, v{t+8}
v_lshl_add_u32 v{t+8}, v{t+9}, 11, v{t+8}
v_and_b32 v{t+9}, 3, v{vL}
v_lshl_add_u32 v{t+8}, v{t+9}, 3, v{t+8}
v_bfe_u32 v{t+9}, v{vL}, 3, 1
v_lshl_add_u32 v{t+8}, v{t+9}, 7, v{t+8}
v_lshl_add_u32 v{t+8}, v{vG}, 9, v{t+8}
v_add_u32 v{t+8}, {LR}, v{t+8}
""")
    if OPT["one"]:
        k = L.index("XSADDR")
        L[k:k+1] = f"""v_and_b32 v{aLR}, 7, v{vL}
v_lshlrev_b32 v{aLR}, 4, v{aLR}
v_add_u32 v{aXS}, s{sT0}, v{aLR}
v_bfe_u32 v{aLW}, v{vL}, 3, 1
v_lshl_add_u32 v{aXS}, v{aLW}, 13, v{aXS}
v_add_u32 v{aLR}, {LXP}, v{aLR}
s_lshl_b32 s{sT1}, s{sW}, 5
s_add_u32 s{sT1}, s{sT1}, {LXP}
v_lshl_add_u32 v{aLW}, v{vG}, 3, s{sT1}""".split("\n")
    else:
        k = L.index("XSADDR")
        L[k:k+1] = f"""s_lshl_b32 s{sT1}, s{sW}, 5
s_add_u32 s{sT0}, s{sT0}, s{sT1}
v_lshl_add_u32 v{aXS}, v{vG}, 3, s{sT0}
v_lshl_add_u32 v{aXS}, v{vN}, 13, v{aXS}""".split("\n")
    A("s_branch L_sud\nL_sub:")
    A(f"v_add_u32 v{t+11}, 256, v{vL}\nv_min_u32 v{t+11}, 287, v{t+11}")
    x_addr(aB1, 0, sHALF, t+12); x_addr(aB2, t+11, sHALF, t+12)
    A(f"""s_mul_i32 s{sT0}, s{sCG9}, {192*16}
s_lshl_b32 s{sT1}, s{sW}, 8
s_add_u32 s{sT0}, s{sT0}, s{sT1}
s_lshl_b32 s{sT1}, s{sHALF}, 2
s_add_u32 s{sT0}, s{sT0}, s{sT1}
s_add_u32 s{sT0}, s{sT0}, {HPo}
v_lshl_add_u32 v{aBD}, v{vN}, 4, s{sT0}
v_and_b32 v{t+8}, 1, v{vG}
v_lshl_add_u32 v{aBD}, v{t+8}, 11, v{aBD}
v_lshrrev_b32 v{t+8}, 1, v{vG}
v_lshl_add_u32 v{aBD}, v{t+8}, 10, v{aBD}
v_add_u32 v{vS1+1}, {S1o - HPo}, v{aBD}
s_lshl_b32 s{sT0}, s{sHALF}, 5
s_lshl_b32 s{sT1}, s{sW}, 3
s_add_u32 s{sT0}, s{sT0}, s{sT1}
s_add_u32 s{sT0}, s{sT0}, {HSo}
v_lshl_add_u32 v{t+8}, v{vN}, 2, s{sT0}
v_cndmask_b32 v{aBD}, v{aBD}, v{t+8}, {sr(mROW3,2)}
s_mov_b32 s{mLN}, -1
s_mov_b32 s{mLN+1}, 0xffff
s_cmp_eq_u32 s{sCG9}, 0
s_cselect_b32 s{mLN+1}, 0x3ffff, s{mLN+1}""")
    traddr_std(t+8, LR); traddr_tail(t+10, LR)
    A("L_sud:")
    A(f"s_mov_b32 s{sCNT}, 0\ns_waitcnt vmcnt({16 - max(NV1, 8)})\ns_barrier")
    for ks in range(4):
        for tau in range(2):
            for h in range(2): A(vtr(ks, tau, h))
    b_ = gv + 4
    A("L_rdy_chk:")
    for r in range(4): A(f"v_xor_b32 v{b_+r}, s{sE1}, v{gv+r}")
    A(f"v_or_b32 v{t+4}, v{b_}, v{b_+1}\nv_or3_b32 v{t+4}, v{t+4}, v{b_+2}, v{b_+3}\nv_cmp_lt_u32 vcc, 7, v{t+4}\ns_cbranch_vccz L_rdy_ok")
    A(f"s_add_u32 s{sCNT}, s{sCNT}, 1\ns_cmp_ge_u32 s{sCNT}, {OPT['tmo']}\ns_cbranch_scc1 L_end\ns_sleep 16\n{gload}\ns_waitcnt vmcnt(0)\ns_branch L_rdy_chk\nL_rdy_ok:")
    for r in range(4): A(f"v_xor_b32 v{b_+r}, s{sXCC}, v{b_+r}")
    A(f"""v_or_b32 v{t+4}, v{b_}, v{b_+1}
v_or3_b32 v{t+4}, v{t+4}, v{b_+2}, v{b_+3}
v_cmp_ne_u32 vcc, 0, v{t+4}
s_lshl_b32 s{sT1}, s{sX}, 3
s_lshr_b64 {sr(sT2,2)}, vcc, s{sT1}
s_and_b32 s{sT2}, s{sT2}, 0xff
s_cselect_b32 s{sMODE}, 0, {OPT['fast']}""")
    A(f"s_cmp_lg_u32 s{sMODE}, 0\ns_cbranch_scc1 L_nore\ns_mov_b64 exec, 0xffff\n{q0store} sc1\ns_mov_b64 exec, -1\ns_waitcnt vmcnt(0)\nL_nore:")
    NX = 1 if OPT["touch"] else 0
    if NX: A(f"""s_mul_i32 s{sT1}, s{sJ}, {REST}
s_lshl_b32 s{sT2}, s{sW}, 8
s_add_u32 s{sT1}, s{sT1}, s{sT2}
s_sub_u32 s{sT1}, s{sT1}, 256
v_lshl_add_u32 v{ra_}, v{vL}, 7, s{sT1}
s_lshl_b32 s{sT1}, s{sJ}, 9
s_lshl_b32 s{sT2}, s{sW}, 7
s_add_u32 s{sT1}, s{sT1}, s{sT2}
s_add_u32 s{sT1}, s{sT1}, {OPo}
s_lshl_b32 s{sT2}, s{sJ}, 6
s_add_u32 s{sT2}, s{sT2}, {MLo}
v_writelane_b32 v{ra_}, s{sT1}, 0
v_writelane_b32 v{ra_}, s{sT2}, 1
s_mov_b64 exec, 15
buffer_load_dword v8, v{ra_}, {WS}, s{sIB} offen sc1
s_mov_b64 exec, -1""")
    pub(f"buffer_store_dword v{vCS}, v{aQD}, {WS}, s{sIB} offen", "0xffff")
    A(f"v_lshlrev_b32 v{vR}, 16, v{vR+2}\nv_and_b32 v{vR+1}, 0xffff0000, v{vR+2}\nv_lshlrev_b32 v{vR+2}, 16, v{vR+3}\nv_and_b32 v{vR+3}, 0xffff0000, v{vR+3}")
    for r in range(4): A(f"v_mul_f32 v{vR+r}, 0x3b800000, v{vR+r}")
    def wo_regs(a_):
        for kk in range(8):
            for h in range(2): A(f"ds_read_b64_tr_b16 {ar(cWA+4*kk+2*h,2)}, v{a_} offset:{kk*4096+h*256}")
    if BEH:
        A(f"v_mov_b32 v{vQ0}, v{t+8}")
        role_dma("L_w1_issued")
    else:
        A(f"s_cmp_eq_u32 s{sROLE}, 1\ns_cbranch_scc1 L_trb\ns_cmp_eq_u32 s{sROLE}, 2\ns_cbranch_scc1 L_trf")
        wo_regs(t+8)
        A("L_trf:\ns_branch L_trd\nL_trb:")
        if NB1 == 15: w1_regs()
        A(f"L_trd:\ns_waitcnt vmcnt({NX + 1})")
    pv_head()
    stamp(5)
    vq = [vtr(ks, tau, h) for ks in range(4, 8) for tau in range(2) for h in range(2)]
    side = pv_side + pv_tail; n_after = 0
    for ks in range(8):
        A(f"s_waitcnt lgkmcnt({min(15, 7 - ks + n_after) if ks < 4 else (7 - ks)*4})")
        for tau in range(2):
            A(pv_mfma(ks, tau))
            if vq: A(vq.pop(0)); A(vq.pop(0)); n_after += 2
            else:
                for _ in range(2):
                    if side: A(side.pop(0))
    for x in side: A(x + "\ns_nop 0")
    pv_finish()
    stamp(6)
    A(f"s_cmp_lg_u32 s{sROLE}, 0\ns_cbranch_scc1 L_first")
    if BEH:
        A("s_waitcnt vmcnt(1)\ns_barrier")
        wo_regs(vQ0)
    A("s_branch L_wo_go")

A("s_waitcnt vmcnt(1)")
recheck(resload2, range(gRES, gRES+4), u)
A(mfma(vr(vR,4), vr(vSEL,4), vr(gRES,4), "0"))
A("L_wo_go:")
poll(f"""buffer_load_dwordx4 {vr(gO,4)}, v{aO1}, {WS}, s{sI} offen sc1
buffer_load_dwordx4 {vr(gO+4,4)}, v{aO1}, {WS}, s{sI} offen offset:1024 sc1
buffer_load_dwordx4 {vr(gML,4)}, v{aML}, {WS}, s{sI} offen sc1""", range(gO, gO+12), u, None, "",
     f"""v_max_u32 v{u}, v{gO}, v{gO+1}
v_max3_u32 v{u}, v{u}, v{gO+2}, v{gO+3}
ds_write_b128 v{aOW}, {vr(gO,4)}
v_max3_u32 v{u}, v{u}, v{gO+4}, v{gO+5}
v_max3_u32 v{u}, v{u}, v{gO+6}, v{gO+7}
ds_write_b128 v{aOW}, {vr(gO+4,4)} offset:{2*544}
v_max3_u32 v{u}, v{u}, v{gML}, v{gML+1}
v_max3_u32 v{u}, v{u}, v{gML+2}, v{gML+3}
v_cmp_eq_u32 vcc, -1, v{u}""")
stamp(7); FS("wo")
ls, mm, m2, M_ = u, u + 1, u + 2, u + 3
A(f"""v_cndmask_b32 v{mm}, v{gML}, v{gML+1}, {sr(mODDR,2)}
v_cndmask_b32 v{m2}, v{gML}, v{gML+1}, {sr(mODDR,2)}
v_add_f32 v{ls}, v{gML}, v{gML+1}
v_add_f32 v{M_}, v{gML+2}, v{gML+3}
v_permlane32_swap_b32 v{mm}, v{m2}
v_add_f32 v{ls}, v{ls}, v{M_}
s_nop 0""")
A(dpp("v_max_f32", M_, m2, ROWRED[0]))
for p in ROWRED[1:]: A("s_nop 1\n" + dpp("v_max_f32", M_, M_, p))
A(f"v_sub_f32 v{m2}, v{m2}, v{M_}\nv_exp_f32 v{m2}, v{m2}")
FS("wo")
A("s_waitcnt lgkmcnt(0)\ns_barrier")
FS("wo")
fo, wacc = t + 28, u + 8
def hint_send(imm): pub(f"buffer_store_dword v{vL}, v{aHS}, {WS}, s{sI} offen offset:{imm}", sr(mW0,2))
if OPT["h3pos"] == 0: hint_send(0)
w0, w1_ = m2, mm
side = [dpp("v_add_f32", ls, ls, ROWRED[1]), dpp("v_add_f32", ls, ls, ROWRED[2]), dpp("v_add_f32", ls, ls, ROWRED[3]), f"v_rcp_f32 v{ls}, v{ls}",
        f"v_mul_f32 v{w0}, v{m2}, v{ls}\nv_mov_b32 v{M_}, v{w0}", f"v_permlane32_swap_b32 v{w0}, v{M_}\nv_mov_b32 v{w1_}, v{w0}", f"s_nop 0\nv_permlane16_swap_b32 v{w0}, v{w1_}"]
sidew = list(side)
def wo_mf():
    for kk in range(8):
        yield (mfma(vr(wacc+4*(kk >> 2),4), ar(cWA+4*kk,4), vr(fo+4*kk,4), "0" if kk % 4 == 0 else vr(wacc+4*(kk >> 2),4)) + ("\n" + sidew.pop(0) if sidew else ""), kk)
pipeline([f"ds_read_b128 {vr(fo+4*kk,4)}, v{aOR} offset:{kk*64}" for kk in range(8)], list(wo_mf()),
         between=lambda: A(f"v_mul_f32 v{ls}, v{ls}, v{m2}\ns_nop 1\n{dpp('v_add_f32', ls, ls, ROWRED[0])}"))
FS("wo")
if OPT["h3pos"] == 1: hint_send(0)
tt = u + 4
for r in range(4): A(f"v_fma_f32 v{tt+r}, v{w0}, v{wacc+r}, v{vR+r}")
if OPT["h3pos"] != 1: A("s_nop 3")
for r in range(4): A(f"v_fmac_f32 v{tt+r}, v{w1_}, v{wacc+4+r}")
rowred("v_add_f32", [tt, tt+1, tt+2, tt+3])
XM = 0x00030003 if OPT["copies"] == 2 else 0x00010001
def x_publish(src, xoff, hint=None):
    if not OPT["one"]:
        A(f"s_add_u32 s{sT0}, s{sPASS}, {xoff}\nv_cvt_pk_bf16_f32 v{src}, v{src}, v{src+1}\ns_mov_b32 exec_lo, {XM:#x}\ns_mov_b32 exec_hi, {XM:#x}\nv_cvt_pk_bf16_f32 v{src+1}, v{src+2}, v{src+3}")
        A(f"buffer_store_dwordx2 {vr(src,2)}, v{aXS}, {WS}, s{sT0} offen sc1\ns_mov_b64 exec, -1")
        return
    skip = uid("xp")
    A(f"v_cvt_pk_bf16_f32 v{src}, v{src}, v{src+1}\nv_cvt_pk_bf16_f32 v{src+1}, v{src+2}, v{src+3}\nds_write_b64 v{aLW}, {vr(src,2)}\ns_add_u32 s{sT0}, s{sPASS}, {xoff}")
    if hint is not None: hint_send(hint)
    A(f"s_cmp_lg_u32 s{sW}, 0\ns_waitcnt lgkmcnt(0)\ns_barrier\ns_cbranch_scc1 {skip}\nds_read_b128 {vr(src,4)}, v{aLR}\ns_mov_b64 exec, {0xffff if OPT['copies'] == 2 else 0xff:#x}\ns_waitcnt lgkmcnt(0)")
    A(f"buffer_store_dwordx4 {vr(src,4)}, v{aXS}, {WS}, s{sT0} offen sc1\ns_mov_b64 exec, -1\n{skip}:")
FS("wo")
x_publish(tt, X1O, 0 if OPT['h3pos'] == 4 else None)
FS("wo")
if OPT["h3pos"] == 2: hint_send(0)
stamp(8)
A(f"s_cmp_eq_u32 s{sPASS}, 0\ns_cbranch_scc1 L_w2_first\ns_add_u32 s{sXO}, s{sPASS}, s{sCOPY}")
hloads = f"buffer_load_dwordx4 {vr(gH,4)}, v{aH1}, {WS}, s{sI} offen sc1\nbuffer_load_dwordx4 {vr(gH+4,4)}, v{aH2}, {WS}, s{sI} offen sc1"
poll(hloads, range(gH, gH+8), u)
A("L_w2_ok:")
stamp(9); FS("w2")
resload1 = f"buffer_load_dwordx4 {vr(gX1,4)}, v{aRES}, {WS}, s{sXO} offen sc1"
y0, y1, z1, z2, hmu, hrs = u, u + 4, u + 8, u + 9, u + 10, u + 11
A(f"""v_add_f32 v{z1}, v{gH+4}, v{gH+6}
v_add_f32 v{z2}, v{gH+5}, v{gH+7}
{resload1}
v_add_f32 v{y0}, v{gH}, v{gH+1}
{dpp("v_add_f32", hmu, z1, ROWRED[0])}
{dpp("v_add_f32", hrs, z2, ROWRED[0])}
v_add_f32 v{y0+1}, v{gH+2}, v{gH+3}
{dpp("v_add_f32", hmu, hmu, ROWRED[1])}
{dpp("v_add_f32", hrs, hrs, ROWRED[1])}
v_add_f32 v{y1}, v{z1}, v{z2}
{dpp("v_add_f32", hmu, hmu, ROWRED[2])}
{dpp("v_add_f32", hrs, hrs, ROWRED[2])}
v_add_f32 v{y0}, v{y0}, v{y0+1}
v_mul_f32_dpp v{hmu}, v{hmu}, v{vJUNK} row_newbcast:15 {DPPM}
v_mul_f32_dpp v{hrs}, v{hrs}, v{vJUNK} row_newbcast:15 {DPPM}
v_fma_f32 v{hrs}, -v{hmu}, v{hmu}, v{hrs}
v_fma_f32 v{y0}, -v{hmu}, v{vS1}, v{y0}
v_max_f32 v{hrs}, 0, v{hrs}
v_add_f32 v{hrs}, 0x3727c5ac, v{hrs}
v_rsq_f32 v{hrs}, v{hrs}
v_fma_f32 v{y1}, -v{hmu}, v{vS1+1}, v{y1}
s_mov_b32 s{sT0}, {-math.log2(math.e):.9e}
v_fma_f32 v{y0}, v{y0}, v{hrs}, v{vB}
v_fma_f32 v{y1}, v{y1}, v{hrs}, v{vB+1}""")
FS("w2")
e0, e1 = z1, z2
for y in (y0, y1): A(f"v_mul_f32 v{y+1}, s{sT0}, abs(v{y})")
for y in (y0, y1): A(f"v_exp_f32 v{y+1}, v{y+1}")
A(f"v_cmp_le_f32 vcc, 0, v{y0}\nv_cmp_le_f32 {sr(sT2,2)}, 0, v{y1}")
for y in (y0, y1): A(f"v_fma_f32 v{y+2}, v{y+1}, 2.0, 1.0\nv_add_f32 v{y+3}, 2.0, v{y+1}")
for y, e in ((y0, e0), (y1, e1)): A(f"v_mul_f32 v{y+3}, v{y+3}, v{y+1}\nv_mul_f32 v{e}, v{y+1}, v{y+1}")
A(f"v_cndmask_b32 v{y0+2}, v{y0+3}, v{y0+2}, vcc\nv_cndmask_b32 v{y1+2}, v{y1+3}, v{y1+2}, {sr(sT2,2)}")
A(f"v_cndmask_b32 v{e0}, 1.0, v{e0}, vcc\nv_cndmask_b32 v{e1}, 1.0, v{e1}, {sr(sT2,2)}")
for y, e in ((y0, e0), (y1, e1)): A(f"v_fma_f32 v{e}, v{e}, 2.0, v{y+2}")
for y, e in ((y0, e0), (y1, e1)): A(f"v_rcp_f32 v{e}, v{e}")
for y, e in ((y0, e0), (y1, e1)): A(f"v_mul_f32 v{y}, v{y}, v{y+2}")
for y, e in ((y0, e0), (y1, e1)): A(f"v_mul_f32 v{y}, v{y}, v{e}")
A(f"v_cvt_pk_bf16_f32 v{y0}, v{y0}, v{y1}\nds_write_b16 v{aHW}, v{y0}\nds_write_b16_d16_hi v{aHW2}, v{y0}")
FS("w2")
A("s_waitcnt lgkmcnt(0)\ns_barrier")
FS("w2")
fh, w2acc = t + 28, u + 4
def w2_res():
    A("s_waitcnt vmcnt(0)")
    recheck(resload1, range(gX1, gX1+4), u+1)
    A(mfma(vr(vR,4), vr(vSEL,4), vr(gX1,4), "0"))
    FS("w2")
pipeline([f"ds_read_b128 {vr(fh+4*ks,4)}, v{aHR} offset:{ks*64}" for ks in range(9)],
         [(mfma(vr(w2acc,4), ar(cW2+4*ks,4), vr(fh+4*ks,4), "0" if ks == 0 else vr(w2acc,4)), ks) for ks in range(9)],
         [dpp("v_add_f32", vR+r, vR+r, p) for p in ROWRED for r in range(4)], start=3, between=w2_res, per=OPT['w2per'])
FS("w2")
if OPT["h5pos"] == 3: hint_send(128)
mfma_gap()
for r in range(4): A(f"v_add_f32 v{w2acc+r}, v{w2acc+r}, v{vR+r}")
x_publish(w2acc, X2O, 128 if OPT['h5pos'] == 4 else None)
FS("w2")
if OPT["h5pos"] == 2: hint_send(128)
stamp(10)
A(f"s_cmp_eq_u32 s{sPASS}, 0\ns_cbranch_scc1 L_a_first")
def final(on_b):
    if on_b:
        A(f"""s_sub_u32 s{sCG9}, s{sJ}, 18
s_lshl_b32 s{sT0}, s{sX}, 4
s_add_u32 s{sT0}, s{sT0}, s{sCG9}
s_cmp_ge_u32 s{sT0}, 9
s_cbranch_scc1 L_done
s_and_b32 s{sT0}, s{sW}, 1
s_lshl_b32 s{sT0}, s{sT0}, 1
v_lshrrev_b32 v{t}, 3, v{vN}
v_add_u32 v{t}, s{sT0}, v{t}
v_and_b32 v{t+1}, 1, v{vN}
v_lshlrev_b32 v{t+1}, 4, v{t+1}
v_mov_b32 v{t+2}, 0x3f80
v_lshlrev_b32 v{t+1}, v{t+1}, v{t+2}
v_cmp_eq_u32 vcc, v{t}, v{vG}
v_bfe_u32 v{t+2}, v{vN}, 1, 2
v_lshrrev_b32 v{aRES}, 2, v{vN}
v_cndmask_b32 v{t+1}, 0, v{t+1}, vcc""")
        for r in range(4): A(f"v_cmp_eq_u32 vcc, {r}, v{t+2}\ns_nop 1\nv_cndmask_b32 v{vSEL+r}, 0, v{t+1}, vcc")
        A(f"""v_lshlrev_b32 v{aRES}, 14, v{aRES}
v_and_b32 v{t}, 3, v{vN}
v_lshl_add_u32 v{aRES}, v{t}, 11, v{aRES}
v_lshl_add_u32 v{aRES}, v{vG}, 4, v{aRES}
s_lshl_b32 s{sT0}, s{sCG9}, 7
s_lshr_b32 s{sT1}, s{sW}, 1
s_lshl_b32 s{sT1}, s{sT1}, 6
s_add_u32 s{sT0}, s{sT0}, s{sT1}
v_add_u32 v{aRES}, s{sT0}, v{aRES}""")
    else: A(f"s_or_b32 s{sT0}, s{sX}, s{sHALF}\ns_cmp_lg_u32 s{sT0}, 0\ns_cbranch_scc1 L_done")
    A(f"""s_lshl_b32 s{sT0}, s{sCG9}, 7
s_lshl_b32 s{sT1}, s{sW}, 5
s_add_u32 s{sT0}, s{sT0}, s{sT1}
v_lshl_add_u32 v{aXS}, v{vG}, 3, s{sT0}
s_add_u32 s{sXO}, s{sCOPY}, {PS + X2O}
s_mov_b32 s{sT2}, 0x00010001
s_mov_b32 s{sT3}, 0x00010001""")
    if on_b and OPT["outw"]:
        A(f"s_mov_b64 exec, {sr(sT2,2)}\nbuffer_store_dwordx2 {vr(FA+16,2)}, v{aXS}, {sr(rOUT,4)}, 0 offen\ns_mov_b64 exec, -1")
    hint_wait(128, 'fin')
    poll(resload2, range(gRES, gRES+4), u, 1, mfma(vr(vR,4), vr(vSEL,4), vr(gRES,4), "0"))
    A("s_nop 3")
    rowred("v_add_f32", [vR, vR+1, vR+2, vR+3])
    if not on_b:
        for r in range(4): A(f"v_mul_f32 v{vR+r}, 0x41800000, v{vR+r}")
    A(f"v_cvt_pk_bf16_f32 v{vR}, v{vR}, v{vR+1}\ns_mov_b64 exec, {sr(sT2,2)}\nv_cvt_pk_bf16_f32 v{vR+1}, v{vR+2}, v{vR+3}")
    if OPT["echo"] >= 0:
        A("s_mov_b64 exec, -1"); stamp(11)
        A(f"s_nop 1\nv_readlane_b32 s3, v9, {OPT['echo']}\nv_readlane_b32 s84, v9, 0\ns_nop 3\ns_sub_u32 s3, s3, s84\ns_min_u32 s3, s3, 20000\ns_lshl_b32 s3, s3, {OPT['emul']}\ns_add_u32 s3, s3, s{sST}")
        A(f"L_echo:\ns_memrealtime s[84:85]\ns_waitcnt lgkmcnt(0)\ns_sub_u32 s84, s84, s3\ns_cmp_lt_i32 s84, 0\ns_cbranch_scc1 L_echo\ns_mov_b64 exec, {sr(sT2,2)}")
    A(f"buffer_store_dwordx2 {vr(vR,2)}, v{aXS}, {sr(rOUT,4)}, 0 offen\ns_mov_b64 exec, -1")
if not OPT["finb"]: final(False)
A("s_branch L_done")

A(f"L_roleBF:\ns_cmp_lg_u32 s{sROLE}, 1\ns_cbranch_scc1 L_done\nL_w1_go:\ns_add_u32 s{sXO}, s{sPASS}, s{sCOPY}")
x_gather(aB1, aB2, "w1", 0)
stamp(8)
mm_ = main_mfma(3, cWA, 0)
order = [frag_list[0]] + stat_list + frag_list[1:]
pipeline(order, [(m, 0) for m, _ in mm_[:3]] + [(m, 1 + k) for k, m in enumerate(stat_mfma)] + [(m, n + 3) for m, n in mm_[3:]],
         stat_valu + [f"v_cndmask_b32 v{s1}, v{s1}, v{s2}, {sr(mODDL,2)}"], start=9)
FS("w1")
a, b, c = ACC, ACC + 4, ACC + 8
A(f"""s_nop 3
v_add_f32 v{a}, v{a}, v{a+1}
v_add_f32 v{a+2}, v{a+2}, v{a+3}
v_add_f32 v{b}, v{b}, v{b+1}
v_add_f32 v{b+2}, v{b+2}, v{b+3}
v_add_f32 v{c}, v{c}, v{c+1}
v_add_f32 v{c+2}, v{c+2}, v{c+3}
v_add_f32 v{a}, v{a}, v{a+2}
v_add_f32 v{b}, v{b}, v{b+2}
v_add_f32 v{c+1}, v{c}, v{c+2}
v_add_f32 v{c}, v{c}, v{c+2}
v_permlane32_swap_b32 v{a}, v{b}
v_add_f32 v{a}, v{a}, v{b}
v_permlane32_swap_b32 v{c}, v{c+1}
v_add_f32 v{c}, v{c}, v{c+1}
s_nop 1
v_permlane16_swap_b32 v{a}, v{c}
v_add_f32 v{a}, v{a}, v{c}
v_cndmask_b32 v{a}, v{a}, v{s1}, {sr(mROW3,2)}""")
FS("w1")
pub(f"buffer_store_dword v{a}, v{aBD}, {WS}, s{sI} offen", sr(mLN,2))
FS("w1"); stamp(9)
A(f"s_cmp_eq_u32 s{sPASS}, 0\ns_cbranch_scc1 L_bf_first")
if OPT["finb"]: final(True)

A("L_done:")
if PROF:
    stamp(11)
    A(f"s_cmp_lg_u32 s{sW}, 0\ns_cbranch_scc1 L_end\ns_lshl_b32 s{sT0}, s2, 7\ns_add_u32 s{sT0}, s{sT0}, {STAMP}")
    A(f"s_lshr_b32 s3, s{sCOPY}, 12\ns_or_b32 s3, s3, s{sMODE}\nv_writelane_b32 v9, s3, 31\ns_memtime s[100:101]\ns_waitcnt lgkmcnt(0)\ns_sub_u32 s3, s100, s88\nv_writelane_b32 v9, s3, 30\nv_lshlrev_b32 v2, 2, v{vL}\ns_mov_b32 exec_hi, 0")
    for k in range(fcount[0]): A(f"v_writelane_b32 v9, s{FREG[k]}, {1+k}")
    A(f"buffer_store_dword v9, v2, {WS}, s{sT0} offen")
A("L_end:\ns_endpgm")

def pick_issue():
    A(f"v_mov_b32 v{u+15}, {POLo}\nbuffer_load_dword v{u+15}, v{u+15}, {WS}, s{sIB} offen sc1")
def pick_take():
    if OPT["copies"] == 2: A(f"v_readfirstlane_b32 s85, v{u+15}\ns_lshr_b32 s{sT1}, s{sXCC}, 2\ns_nop 0\ns_xor_b32 s{sT1}, s{sT1}, s85\ns_lshl_b32 s{sT1}, s{sT1}, 13\ns_cmp_lt_u32 s85, 2\ns_cselect_b32 s{sCOPY}, s{sT1}, s{sCOPY}")
def late_fill():
    for r in range(4): A(f"v_mov_b32 v{t+12+r}, -1")
    A(f"""s_sub_u32 s{sT0}, s{sJ}, 30
s_mul_i32 s{sT1}, s{sT0}, {23*1024}
s_lshl_b32 s{sT2}, s{sW}, 10
s_add_u32 s{sT1}, s{sT1}, s{sT2}
v_lshl_add_u32 v{t+2}, v{vL}, 4, s{sT1}
s_lshl_b32 s{sT1}, s{sX}, 1
s_add_u32 s{sT1}, s{sT1}, s{sT0}
s_lshl_b32 s{sT4}, s{sT1}, 2
s_lshl_b32 s{sT1}, s{sT1}, 13
s_add_u32 s{sT1}, s{sT1}, s{sT2}
s_add_u32 s{sT1}, s{sT1}, {PS}
v_lshl_add_u32 v{t+3}, v{vL}, 4, s{sT1}
s_add_u32 s{sT0}, s{sIB}, {PS}""")
    for k in range(6):
        if k == 5: A(f"s_cmp_eq_u32 s{sW}, 3\ns_cbranch_scc1 L_lf5")
        A(f"buffer_store_dwordx4 {vr(t+12,4)}, v{t+2}, {WS}, s{sT0} offen sc1\ns_add_u32 s{sT0}, s{sT0}, 4096")
    A("L_lf5:")
    A(f"s_and_b32 s{sT0}, s{sW}, 1\ns_cselect_b64 exec, 0xff, -1\ns_movk_i32 s{sT0}, 4096")
    A(f"buffer_store_dwordx4 {vr(t+12,4)}, v{t+3}, {WS}, 0 offen sc1\nbuffer_store_dwordx4 {vr(t+12,4)}, v{t+3}, {WS}, s{sT0} offen sc1\ns_mov_b64 exec, -1")
    A(f"""s_add_u32 s{sT4}, s{sT4}, {RDY2}
v_lshl_add_u32 v{t+3}, v{vL}, 13, s{sT4}
v_mov_b32 v{t+4}, s{sE1}
s_sub_u32 s{sT0}, s{sJ}, 30
s_mul_i32 s{sT1}, s{sT0}, {23*1024}
s_mul_i32 s{sT2}, s{sW}, {46*128}
s_add_u32 s{sT1}, s{sT1}, s{sT2}
v_lshl_add_u32 v{t+2}, v{vL}, 7, s{sT1}
s_add_u32 s{sT0}, s{sIB}, {PS}
s_waitcnt vmcnt(0)
s_barrier
s_cmp_eq_u32 s{sW}, 0
s_cselect_b64 exec, 3, 0
buffer_store_dword v{t+4}, v{t+3}, {WS}, 0 offen sc1
s_mov_b32 exec_lo, -1
s_mov_b32 exec_hi, {0x3fff if OPT['touch'] else 0:#x}
buffer_load_dword v8, v{t+2}, {WS}, s{sT0} offen sc1
s_mov_b64 exec, -1""")
csload = f"buffer_load_dwordx4 {vr(t+28,4)}, v{aQ1}, {WS}, s{sIB} offen sc1"
def colsum_rows():
    A(f"""v_add_f32 v{u}, v{t+28}, v{t+29}
v_add_f32 v{u+1}, v{t+30}, v{t+31}
v_add_f32 v{u}, v{u}, v{u+1}
v_cvt_pk_bf16_f32 v{u+1}, v{u}, v{u}
v_lshlrev_b32 v{u+2}, 16, v{u+1}
v_sub_f32 v{u}, v{u}, v{u+2}
v_cvt_pk_bf16_f32 v{u}, v{u}, v{u}
ds_write_b16 v{aQW}, v{u+1} offset:1600
ds_write_b16 v{aQW}, v{u} offset:2400""")
with Tail():
    A(f"L_first:\ns_cmp_lg_u32 s{sROLE}, 1\ns_cbranch_scc1 L_firstF")
    if NB1 < 15 or OPT["beh"]:
        if NB1 < 15: w1_dma(NB1, 15, t, "L_w1_rest")
        A("L_w1_rest:")
        traddr_std(t+8, LR); traddr_tail(t+10, LR)
        A("s_waitcnt vmcnt(3)")
        pick_issue()
        A("s_waitcnt vmcnt(0)\ns_barrier")
        stamp(14)
        w1_regs()
    else:
        pick_issue(); A("s_waitcnt vmcnt(0)")
    pick_take()
    A(f"s_mov_b32 s{sHOOK}, 1")
    stamp(15)
    A("s_branch L_w1_go")
    A(f"""L_w2_first:
s_mul_i32 s{sT0}, s{sX}, 1152
s_mul_i32 s{sT1}, s{sHALF}, 576
s_add_u32 s{sT0}, s{sT0}, s{sT1}
s_mul_i32 s{sT1}, s{sW}, 144
s_add_u32 s{sT0}, s{sT0}, s{sT1}
v_lshl_add_u32 v{t}, v{vL}, 1, s{sT0}
v_and_b32 v{t+1}, 7, v{vL}
v_lshl_add_u32 v{t+1}, v{t+1}, 1, s{sT0}""")
    pick_issue()
    A(f"""{csload}
buffer_load_ushort v{vB}, v{t}, {sr(rB1,4)}, 0 offen
buffer_load_ushort v{vB+1}, v{t+1}, {sr(rB1,4)}, 0 offen offset:128""")
    if NW2 < 9: w2_dma(NW2, 9, t)
    A(f"v_add_u32 v{t+2}, {S1o - HPo}, v{aH1}\nv_sub_u32 v{t+3}, v{t+2}, v{aH1}\nv_add_u32 v{t+3}, v{t+3}, v{aH2}\nv_cmp_gt_u32 vcc, 8, v{vN}\ns_nop 1\nv_cndmask_b32 v{t+3}, v{t+2}, v{t+3}, vcc")
    traddr_std(t, LW2)
    A(f"s_waitcnt vmcnt({9 - NW2 + 2})")
    pick_take()
    recheck(csload, range(t+28, t+32), u)
    colsum_rows()
    A(f"s_add_u32 s{sXO}, s{sPASS}, s{sCOPY}\ns_waitcnt vmcnt(0)\ns_barrier")
    stamp(14)
    A(f"v_mov_b32 v{vQ0}, {POLo}\nbuffer_load_dword v{vQ0}, v{vQ0}, {WS}, s{sIB} offen sc1")
    for ks in range(9):
        for h in range(2): A(f"ds_read_b64_tr_b16 {ar(cW2+4*ks+2*h,2)}, v{t} offset:{ks*4096+h*512}")
    A(f"v_lshlrev_b32 v{vB}, 16, v{vB}\nv_lshlrev_b32 v{vB+1}, 16, v{vB+1}")
    stamp(15)
    g1 = gO
    poll(hloads + f"\nbuffer_load_dwordx4 {vr(g1,4)}, v{t+2}, {WS}, s{sI} offen sc1\nbuffer_load_dwordx4 {vr(g1+4,4)}, v{t+3}, {WS}, s{sI} offen sc1", list(range(gH, gH+8)) + list(range(g1, g1+8)), u, OPT["h4d"])
    for k in range(2): A(f"v_add_f32 v{vS1+k}, v{g1+4*k}, v{g1+4*k+1}\nv_add_f32 v{u+k}, v{g1+4*k+2}, v{g1+4*k+3}")
    for k in range(2): A(f"v_add_f32 v{vS1+k}, v{vS1+k}, v{u+k}")
    A(f"s_branch L_w2_ok\nL_a_first:\nv_mov_b32 v{u+15}, v{vQ0}\ns_nop 0")
    pick_take()
    A("s_branch L_q")
    A("L_firstF:")
    if OPT["lf"] == 1: late_fill()
    probe()
    A("s_waitcnt lgkmcnt(0)\ns_barrier")
    probe_done()
    if OPT["lf"] == 2:
        A(f"v_lshlrev_b32 v{t}, 2, v{vN}\nv_add_u32 v{t}, {HSo}, v{t}")
        poll(f"buffer_load_dword v{gHI}, v{t}, {WS}, s{sI} offen sc1", [gHI], None, 1)
    if OPT["lf"] != 1: late_fill()
    A(f"v_mov_b32 v{t}, {EPO}\nv_mov_b32 v{t+1}, s{sE1}\ns_lshl_b32 s{sT0}, s2, 2\ns_add_u32 s{sT0}, s{sT0}, s{sW}\ns_cmp_eq_u32 s{sT0}, 1020\ns_cselect_b64 exec, 1, 0")
    A(f"buffer_store_dword v{t+1}, v{t}, {WS}, 0 offen sc1\ns_mov_b64 exec, -1")
    A(f"L_bf_first:\nv_mov_b32 v{aRES}, 0")
    pick_issue()
    poll(csload, range(t+28, t+32), u, 1)
    colsum_rows()
    pick_take()
    A("s_branch L_q")

body = L + TAIL
if OPT["walk"]:
    xo = [l[:-1] for l in body if l.startswith("L_xo")]; rb = [l[:-1] for l in body if l.startswith("L_rb")]; hk = [l[:-1] for l in body if l.startswith("L_hk")]
    if OPT["walk"] == 1:
        chains = {"0": (["L_q0_pub", "L_rdy", rb[0], "L_sub", "L_first", "L_w2_first", "L_a_first", "L_firstF"], "L_walked"), "1": (["L_q", xo[0], "L_roleBF", xo[1], "L_trb"] + hk, "L_walked")}
    else:
        chains = {"0": (["L_q0_pub"], "L_walked"), "1": (["L_rdy"], "L_walked"),
                  "a": ([rb[0], "L_sub", "L_trb"], "L_walked2"), "b": (["L_first", "L_w2_first", "L_a_first", "L_firstF"], "L_walked2"),
                  "c": (["L_q", xo[0], "L_roleBF", xo[1]], "L_walked2"), "d": (hk + ISL, "L_walked2")}
    for c, (names, end) in chains.items():
        for k, n in enumerate(names):
            i = body.index(n + ":")
            j = i - 1
            while body[j].endswith(":"): j -= 1
            assert body[j].startswith(("s_branch", "s_endpgm")), (n, body[j])
            nxt = f"L_walk{c}_{k+1}" if k + 1 < len(names) else end
            body[j+1:j+1] = [f"L_walk{c}_{k}:", f"s_branch {nxt}"]
DEFS = []
if OPT["shift"]: body = ["s_nop 0"] * OPT["shift"] + body
if OPT["al"]:
    sys.path.insert(0, "gen")
    import align
    body, DEFS, miss = align.align(body, "\n".join(out), "")
    print(f"align: {miss} wide instructions left off an 8-byte boundary", file=sys.stderr)
txt = "\n".join(body)
out.append(txt)
out.append(f""".p2align 8
.fill 1024, 4, 0xbf800000
s_endpgm
{chr(10).join(DEFS)}
.section .rodata,"a"
.p2align 6
.amdhsa_kernel {NAME}_kernel
  .amdhsa_next_free_vgpr {NVGPR}
  .amdhsa_next_free_sgpr 102
  .amdhsa_accum_offset 256
  .amdhsa_group_segment_fixed_size 0
  .amdhsa_kernarg_size 96
  .amdhsa_user_sgpr_count 2
  .amdhsa_user_sgpr_kernarg_segment_ptr 1
  .amdhsa_system_sgpr_workgroup_id_x 1
  .amdhsa_float_denorm_mode_32 3
.end_amdhsa_kernel""")
print("\n".join(out))
```

```python
import sys, math
OPT = dict(prof=0, fine="", nk1=6, nq=2, nv1=12, nw2=0, nsamp=3, nb1=3, nkb=2, q0t=0,  kal=0, walk=1, hskip=2, h4d=2, finb=1, one=1, pre=4, w2per=2, pvw=1, pv0=12, behb=0, bko=0, pal=6, po="bbbbb7", outw=1, fast=1, copies=2, pol=-1, rot=2, ra=2, rb=0, ldf="nt", pf=1,
           tmo=1 << 20, h3pos=4, h5pos=4, touch=1, depth=2, echo=-1, emul=2, hd="088", xnoclr=0, xnoq0=0, al=0, beh=0, pfj=31, shift=0, pfl=144)
for a in sys.argv[1:]:
    k, v = a.split("=")
    assert k in OPT, k
    OPT[k] = v if k in ("ldf", "fine", "po", "hd", "wpff") else int(v, 0)
NAME = "interleave_layers__sliding_block_cached__dense_activation_mish__decode"
LDF = "" if OPT["ldf"] == "plain" else OPT["ldf"].replace("+", " ")
PROF = OPT["prof"]

L = []; TAIL = []
def A(s):
    for ln in s.split("\n"):
        ln = ln.strip()
        if ln: L.append(ln)
def C(s):
    for ln in s.strip("\n").split("\n"): L.append("; " + ln.strip())
intail = [0]; npoll = [0]; ISL = []
class Tail:
    def __enter__(self):
        global L
        self.save = L; L = []; intail[0] += 1
    def __exit__(self, *e):
        global L
        TAIL.extend(L); L = self.save; intail[0] -= 1
_uid = [0]
def uid(p):
    _uid[0] += 1
    return f"L_{p}{_uid[0]}"
def vr(a, n=1): return f"v{a}" if n == 1 else f"v[{a}:{a+n-1}]"
def ar(a, n=1): return f"a{a}" if n == 1 else f"a[{a}:{a+n-1}]"
def sr(a, n=1): return f"s{a}" if n == 1 else f"s[{a}:{a+n-1}]"
DPPM = "row_mask:0xf bank_mask:0xf"
ROWRED = ["quad_perm:[1,0,3,2]", "quad_perm:[2,3,0,1]", "row_half_mirror", "row_mirror"]
def dpp(op, d, s, p): return f"{op}_dpp v{d}, v{s}, v{s} {p} {DPPM}"
def mfma(d, a, b, c): return f"v_mfma_f32_16x16x32_bf16 {d}, {a}, {b}, {c}"

PS = 0x100000
X1O, X2O = 0x00000, 0x10000
IB0 = 0x20000
QPo, HPo, S1o, QSo, HSo, H3o, H5o, OPo, MLo = 0x0000, 0x2000, 0x4400, 0x6800, 0x6880, 0x6900, 0x6980, 0x7000, 0xB000
REST = 0x7000 // 32
Q0B, Q0S = 0xA0000, 0x9000
EPO, RDY, RDY2, PROBE = 0x0F0000, 0x1B1000, 0x1B4000, 0x1C0000
STAMP = 0x200000
WSREC = 0x210000 if PROF else 0x200000
LV, LR, LWQ = 0, 65536, 135168
LW2, LOPS = LR + 32768, LWQ
LQ, LP, LM, LH, LMODE, LXS = 153600, 156800, 158080, 158144, 158784, 158848
LXP = LXS + 4608
LDS_BYTES = 163840
sX, sJ, sW, sPASS, sROLE, sMODE, sCOPY, sIB = 4, 5, 6, 7, 8, 9, 10, 11
rK, rV, rWQ, rWA, rW2, rWS, rXI, rB1, rOUT = 12, 16, 20, 24, 28, 32, 36, 40, 44
mATT, mLN = 48, 50
sT0, sT1, sT2, sT3, sT4, sCNT, sI, sXO = 52, 53, 54, 55, 56, 57, 58, 59
mODDR, sRG, sCG, sST = 60, 62, 63, 64
sE1, sQ0, mW0, mODDL, mROW3 = 68, 69, 70, 72, 90
sHALF, sCG9, sROT, sXCC = 96, 97, 98, 99
sHOOK = sROT
WS = sr(rWS, 4)
vL, vN, vG, vONE, vONE3 = 1, 2, 3, 4, 6
vKO, vJUNK, vCS, vC, vMU, vQ0 = 10, 59, 12, 14, 15, 60
vSEL, vR, vB, vS1 = 16, 20, 24, 26
(aX1, aX2, aXW, aXR, aXT, aS1, aS3, aQD, aQS,
 aQ1, aQ2, aQW, aQR, aPW, aMW, aPR, aMR, aOP, aHL,
 aRES, aO1, aML, aOW, aOR, aXS, aHS, aH1, aH2, aHW, aHW2, aHR) = range(28, 59)
aLW, aLR, vKEEP = 63, 13, 233
aB1, aB2, aBD = aO1, aML, aOW
t = 64
vK = 128
gX, gQ, gQS, gRES, gO, gML, gH, gHI, gX1 = 192, 200, 204, 208, 212, 220, 224, 232, 236
u = 240
cV, cWQ, cWA, cW2, cJUNK = 0, 64, 84, 116, 152
NVGPR = 256 + 160

def stamp(i):
    if PROF == 2 and i != 11: return
    if PROF == 3 and i not in (6, 10, 11): return
    if PROF == 4 and i not in (OPT['echo'] & 15, 11): return
    if PROF: A(f"s_memrealtime {sr(sST, 2)}\ns_lshr_b32 s3, s{sPASS}, 16\ns_add_u32 m0, s3, {i}\ns_waitcnt lgkmcnt(0)\nv_writelane_b32 v9, s{sST}, m0")
FREG = [74, 76, 78, 80, 82, 94, 84, 66, 70] if OPT['fine'] == 'pro' else [74, 76, 78, 80, 82, 92, 94, 84, 66]
fcount = [0]
def FS(stage):
    if OPT["fine"] == stage:
        A(f"s_memtime s[{FREG[fcount[0]]}:{FREG[fcount[0]]+1}]"); fcount[0] += 1

def srd(r, lo, hi, nbytes):
    if r != lo: A(f"s_mov_b32 s{r}, s{lo}")
    A(f"s_and_b32 s{r+1}, s{hi}, 0xffff\ns_mov_b32 s{r+2}, {nbytes}\ns_mov_b32 s{r+3}, 0x20000")
def mask64(reg, lo, hi): A(f"s_mov_b32 s{reg}, {lo:#x}\ns_mov_b32 s{reg+1}, {hi:#x}")
def sentinel_test(regs, tmp):
    regs = list(regs)
    if len(regs) == 1:
        A(f"v_cmp_eq_u32 vcc, -1, v{regs[0]}"); return
    if len(regs) % 2 == 0: A(f"v_max_u32 v{tmp}, v{regs[0]}, v{regs[1]}"); k = 2
    else: A(f"v_max3_u32 v{tmp}, v{regs[0]}, v{regs[1]}, v{regs[2]}"); k = 3
    while k < len(regs):
        A(f"v_max3_u32 v{tmp}, v{tmp}, v{regs[k]}, v{regs[k+1]}"); k += 2
    A(f"v_cmp_eq_u32 vcc, -1, v{tmp}")
def filler(n):
    for _ in range(n):
        A("s_nop 7")
def poll(loads, regs, tmp, depth=None, early="", test=None, hook=None):
    depth = depth or OPT["depth"]
    n = sum(1 for ln in loads.split("\n") if ln.strip().startswith("buffer_"))
    top = uid("poll")
    A(f"s_mov_b32 s{sCNT}, 0")
    for _ in range(depth - 1):
        A(loads); filler({2: 3, 3: 2}[depth])
    if OPT["pal"] and not intail[0] and depth > 1:
        k = npoll[0]; npoll[0] += 1
        A(f".p2align {OPT['pal']}")
        po = [int(c, 36) for c in OPT["po"]]
        for _ in range(po[k] if k < len(po) else 0): A("s_nop 0")
    A(f"{top}:")
    A(loads)
    A(f"s_add_u32 s{sCNT}, s{sCNT}, 1\ns_cmp_gt_u32 s{sCNT}, {OPT['tmo']}\ns_cbranch_scc1 L_end")
    if hook:
        hk, after = uid("hk"), uid("ha")
        A(f"s_cmp_lg_u32 s{sHOOK}, 0\ns_cbranch_scc1 {hk}")
        with Tail():
            A(f"{hk}:\ns_mov_b32 s{sHOOK}, 0"); hook(); A(f"s_waitcnt vmcnt(1)\ns_branch {after}")
    A(f"s_waitcnt vmcnt({(depth - 1)*n})")
    if hook: A(f"{after}:")
    assert depth == 1 or not early
    A(early)
    if test: A(test)
    else: sentinel_test(regs, tmp)
    if OPT["bko"] and depth == 1 and not intail[0]:
        bk = uid("bk")
        A(f"s_cbranch_vccnz {bk}")
        with Tail(): A(f"{bk}:\ns_sleep {OPT['bko']}\ns_branch {top}")
    else: A(f"s_cbranch_vccnz {top}")
def recheck(load, regs, tmp):
    retry, top, back = uid("rc"), uid("rct"), uid("rcb")
    sentinel_test(regs, tmp)
    A(f"s_cbranch_vccnz {retry}\n{back}:")
    with Tail():
        A(f"{retry}:\ns_mov_b32 s{sCNT}, 0\n{top}:\n{load}\ns_waitcnt vmcnt(0)")
        sentinel_test(regs, tmp)
        A(f"s_cbranch_vccz {back}\ns_add_u32 s{sCNT}, s{sCNT}, 1\ns_cmp_lt_u32 s{sCNT}, {OPT['tmo']}\ns_cbranch_scc1 {top}\ns_branch L_end")
def pub(store, mask):
    slow, back = uid("slow"), uid("back")
    A(f"s_cmp_eq_u32 s{sMODE}, 0\ns_mov_b64 exec, {mask}\ns_cbranch_scc1 {slow}\n{store}\n{back}:\ns_mov_b64 exec, -1")
    with Tail(): A(f"{slow}:\n{store} sc1\ns_branch {back}")
def dma(rsrc, voff, soff, lds_s):
    A(f"s_mov_b32 m0, s{lds_s}\ns_nop 0\nbuffer_load_dwordx4 v{voff}, {sr(rsrc,4)}, s{soff} offen {LDF} lds")
def rowred_list(op, regs, steps=ROWRED):
    o = []
    for k, p in enumerate(steps):
        o += [dpp(op, r, r, p) for r in regs]
        if len(regs) < 3 and k < len(steps) - 1: o += ["s_nop 0"] * (3 - len(regs) - 0 if len(regs) == 1 else 1)
    return [x for x in o]
def rowred(op, regs):
    for p in ROWRED:
        for r in regs: A(dpp(op, r, r, p))
        if len(regs) < 3 and p != ROWRED[-1]: A(f"s_nop {2 - len(regs)}")
def weave(main, side, per, start=0):
    side = list(side)
    for k, m in enumerate(main):
        A(m)
        if k >= start:
            for _ in range(per):
                if side: A(side.pop(0))
    for s_ in side: A(s_)

def mfma_gap(need=8):
    n = 0
    for ln in reversed(L):
        if ln.startswith("v_mfma"): break
        if ln.endswith(":") or ln.startswith((".", ";")): continue
        if ln.startswith("s_memtime"): continue
        n += int(ln.split()[1]) + 1 if ln.startswith("s_nop") else 1
    if n < need: A(f"s_nop {need - n - 1}")
def pipeline(reads, mf, side=(), start=0, pre=None, between=None, per=2):
    reads = list(reads); side = list(side); pre = OPT["pre"] if pre is None else pre
    n = 0; done = -1
    for _ in range(min(pre, len(reads))): A(reads[n]); n += 1
    if between: between()
    for k, (m, need) in enumerate(mf):
        while n <= need: A(reads[n]); n += 1
        slots = per
        if need > done: A(f"s_waitcnt lgkmcnt({n - 1 - need})"); done = need
        A(m)
        if n < len(reads): A(reads[n]); n += 1; slots -= 1
        if k >= start:
            for _ in range(slots):
                if side: A(side.pop(0))
    for x in reads[n:]: A(x)
    for x in side: A(x)


DOC = """
x = x + Attn(LN(x)); x = x + MLP(LN(x)); twice, in one launch of 256 persistent workgroups (one per CU, 4 waves).
K/V window and all weights are read from HBM once and stay in registers / LDS for both passes.
wg = 8*j + x.  Group x (32 workgroups; one XCD with the usual placement) owns kv heads 2x, 2x+1 and hidden rows 576x..576x+575.
Every workgroup: q-projection piece (64 columns x 144 rows of wq) and attention over 256 keys for 2 heads.
Role A (j < 18): wo piece, then w2 piece.  Role B (18..29): w1 piece; nine of group 0 also write the result.  Role F (30, 31): services.
The residual stream travels as 16 bf16 partial rows (each carries x/16) that MFMA consumes as 16 A rows; LayerNorm is applied after
the GEMV: (x@W - mean*colsum(W)) * rstd, with sum and sum of squares handed on beside the partial sums.
Softmax: exact running maxima (wave -> workgroup -> head), partials rescaled by exp2(m - M).
Hand-offs through d_ws: each 32-bit word validates itself (0xffffffff = not written yet).  The slots are filled with that value during
this launch and announced with a word derived from the tag found at entry, so nothing an earlier launch left can be taken for data.
Inside a group plain stores are used only after checking (XCC_ID) that all 32 workgroups share one L2, write-through stores otherwise
(the first-pass q granules go out plain at once and are re-sent write-through as soon as a reader misses one or the check says so);
cross-die rows are always written through, in two copies (one near each IO die; which one to read is a speed-only choice).
All spins are bounded.  The short s_nop waits in front of some polls space out requests: reading a line just before its remote write
arrives makes that write slower.
"""
hdr = open("cdna_kernels/" + NAME + ".s.ref").read().split("; Override launch")[0]
out = [hdr.rstrip(), "; Override launch geometry by editing the next line (default: block=256,",
       "; grid=ceil(out_elems/256), lds=0). Harness parses it; keep it on one line.",
       f"; @launch grid=(256,1,1) block=(256,1,1) lds={LDS_BYTES}",
       '.amdgcn_target "amdgcn-amd-amdhsa--gfx950"', ".text", f".globl {NAME}_kernel"] + ([".p2align 12", f".fill {OPT['kal']*64 + 1}, 4, 0xbf810000"] if OPT["kal"] >= 0 else []) + [".p2align 8",
       f".type {NAME}_kernel,@function", f"{NAME}_kernel:"]

def wdma_voff(dst, rowbytes, kind):
    if kind == "std": A(f"v_bfe_u32 v{dst}, v{vL}, 4, 1\ns_and_b32 s{sT0}, s{sW}, 1\ns_lshl_b32 s{sT0}, s{sT0}, 1")
    else: A(f"v_lshrrev_b32 v{dst}, 5, v{vL}\ns_and_b32 s{sT0}, s{sW}, 2")
    A(f"""v_or_b32 v{dst}, s{sT0}, v{dst}
v_lshlrev_b32 v{dst}, 1, v{dst}
v_xor_b32 v{dst}, v{dst}, v{vL}
v_and_b32 v{dst}, 7, v{dst}
v_lshlrev_b32 v{dst}, 4, v{dst}
v_lshrrev_b32 v{dst+1}, 3, v{vL}
s_mov_b32 s{sT0}, {rowbytes}
v_mad_u32_u24 v{dst}, v{dst+1}, s{sT0}, v{dst}""")
def traddr_std(dst, base):
    A(f"""v_bfe_u32 v{dst}, v{vL}, 3, 2
v_xor_b32 v{dst}, s{sW}, v{dst}
v_lshlrev_b32 v{dst}, 5, v{dst}
v_and_b32 v{dst+1}, 3, v{vL}
v_lshl_add_u32 v{dst}, v{dst+1}, 3, v{dst}
v_bfe_u32 v{dst+1}, v{vL}, 2, 2
v_lshl_add_u32 v{dst}, v{dst+1}, 7, v{dst}
v_lshl_add_u32 v{dst}, v{vG}, 10, v{dst}
v_add_u32 v{dst}, {base}, v{dst}""")
def traddr_tail(dst, base):
    A(f"""v_bfe_u32 v{dst}, v{vL}, 3, 1
v_and_b32 v{dst+1}, 2, v{vG}
v_or_b32 v{dst}, v{dst}, v{dst+1}
v_xor_b32 v{dst}, s{sW}, v{dst}
v_lshlrev_b32 v{dst}, 5, v{dst}
v_and_b32 v{dst+1}, 3, v{vL}
v_lshl_add_u32 v{dst}, v{dst+1}, 3, v{dst}
v_lshrrev_b32 v{dst+1}, 2, v{vL}
v_lshl_add_u32 v{dst}, v{dst+1}, 7, v{dst}
v_add_u32 v{dst}, {base + 16384}, v{dst}""")
def tr_slice(dst, a_std, a_tail, off):
    for ks in range(4):
        for h in range(2): A(f"ds_read_b64_tr_b16 {ar(dst+4*ks+2*h,2)}, v{a_std} offset:{off+ks*4096+h*512}")
    A(f"ds_read_b64_tr_b16 {ar(dst+16,2)}, v{a_tail} offset:{off}")
def x_addr(dst, idx, rg_s, tmp):
    A(f"""v_mul_u32_u24 v{dst}, 3641, v{idx}
v_lshrrev_b32 v{dst}, 16, v{dst}
v_mul_u32_u24 v{tmp}, 18, v{dst}
v_sub_u32 v{tmp}, v{idx}, v{tmp}
v_lshlrev_b32 v{tmp}, 4, v{tmp}
v_and_b32 v{tmp+1}, 3, v{dst}
v_lshl_add_u32 v{tmp}, v{tmp+1}, 11, v{tmp}
v_lshrrev_b32 v{dst}, 2, v{dst}
v_lshl_add_u32 v{dst}, v{dst}, 14, v{tmp}
s_mul_i32 s{sT0}, s{rg_s}, 288
v_add_u32 v{dst}, s{sT0}, v{dst}""")

NK1, NKB, NQ, NV1, NW2, NB1 = OPT["nk1"], OPT["nkb"], OPT["nq"], OPT["nv1"], OPT["nw2"], OPT["nb1"]
sKM, sVM = 66, 67
if PROF: sKM, sVM = 86, 87
def srd2(r, nbytes): A(f"s_mov_b32 s{r+2}, {nbytes}\ns_mov_b32 s{r+3}, 0x20000")
def blk_m0(base, i, mask):
    return f"s_xor_b32 m0, s{base}, {i << 12}\ns_nop 0"
    hi = (i << 12) & ~mask
    return f"s_add_u32 s{sT4}, s{sROT}, {(i << 12) & mask}\ns_and_b32 s{sT4}, s{sT4}, {mask}\n" + (f"s_or_b32 s{sT4}, s{sT4}, {hi}\n" if hi else "") + f"s_add_u32 m0, s{sT4}, s{base}\ns_nop 0"
def kdma(i): A(blk_m0(sKM, i, 0xf000) + f"\nbuffer_load_dwordx4 v{vKO}, {sr(rK,4)}, m0 offen {LDF} lds")

C(DOC)
A("s_cmp_ge_u32 s2, 256\ns_cbranch_scc1 L_end")
if PROF: A(f"s_memrealtime {sr(sST,2)}\ns_memtime s[88:89]\nv_mov_b32 v9, 0")
FS("pro")
def PF():
    A(("s_cmp_lt_u32 s2, 248" if OPT["pfj"] else "s_cmp_ge_u32 s2, 8") + f"\ns_cbranch_scc1 L_nopf\ns_getpc_b64 s[100:101]\nL_pc:\nv_min_u32 v8, {OPT['pfl'] - 1}, v0\nv_lshlrev_b32 v8, 7, v8\nglobal_load_dword v8, v8, s[100:101]\nL_nopf:")
NK0 = 0
C("""---- prologue: ids, wq piece (column group 3 goes to workgroups with slack), x0, first K blocks -> LDS by DMA""")
A(f"""s_load_dwordx2 s[{rWQ}:{rWQ+1}], s[0:1], 24
s_load_dwordx2 s[{rXI}:{rXI+1}], s[0:1], 0
s_load_dwordx4 s[{rK}:{rK+3}], s[0:1], 8""")
if OPT["pf"]: PF()
A(f"""s_lshr_b32 s{sJ}, s2, 3
v_readfirstlane_b32 s{sW}, v0
v_lshrrev_b32 v{t+1}, 3, v0
v_lshrrev_b32 v{vG}, 4, v0""")
A(f"""s_mul_i32 s{sRG}, s{sJ}, 37
v_and_b32 v{t}, 2, v{t+1}
s_lshr_b32 s{sRG}, s{sRG}, 8
v_and_or_b32 v{t}, v{vG}, 4, v{t}
s_mul_i32 s{sT0}, s{sRG}, 7
v_xor_b32 v{t}, v{t}, v0
s_sub_u32 s{sCG}, s{sJ}, s{sT0}
v_and_b32 v{t}, 7, v{t}
s_cmp_ge_u32 s{sCG}, 3
v_lshlrev_b32 v{t}, 4, v{t}
s_addc_u32 s{sT0}, s{sCG}, 0
v_and_b32 v{t+1}, 7, v{t+1}
s_cmp_ge_u32 s{sJ}, 28
v_lshl_or_b32 v{t}, v{t+1}, 13, v{t}
s_cselect_b32 s{sRG}, s{sCG}, s{sRG}
s_cselect_b32 s{sCG}, 3, s{sT0}
v_and_b32 v{vL}, 63, v0
s_and_b32 s{sX}, s2, 7
s_mul_i32 s{sT1}, s{sRG}, {144*64}
s_lshl_b32 s{sT2}, s{sW}, 3
s_add_u32 s{sT1}, s{sT1}, s{sT2}
s_lshl_b32 s{sT2}, s{sX}, 3
s_add_u32 s{sT1}, s{sT1}, s{sT2}
s_add_u32 s{sT1}, s{sT1}, s{sCG}
s_lshl_b32 s{sT1}, s{sT1}, 7
s_lshl_b32 s{sVM}, s{sW}, 4
s_add_u32 s{sT2}, s{sVM}, {LWQ}
s_mov_b32 s{rWQ+3}, 0x20000
s_mov_b32 s{rWQ+2}, {576*4096*2}
s_mov_b32 s{rXI+3}, s{rWQ+3}
s_movk_i32 s{rXI+2}, 1152
s_lshr_b32 s{sW}, s{sW}, 6
s_cmp_lg_u32 s{sW}, 2
v_lshlrev_b32 v{t+2}, 4, v{vL}""")
FS("pro")
A(f"""s_waitcnt lgkmcnt(0)
s_cbranch_scc1 L_nox0
buffer_load_dwordx4 {vr(gX,4)}, v{t+2}, {sr(rXI,4)}, 0 offen
buffer_load_dwordx4 {vr(gX+4,4)}, v{t+2}, {sr(rXI,4)}, 0 offen offset:1024
L_nox0:""")
for i in range(4):
    A(f"s_add_u32 m0, s{sT2}, {i*4096}\n" + (f"s_add_u32 s{sT1}, s{sT1}, {32*8192}" if i else f"s_cmp_ge_u32 s{sW}, 2") + f"\nbuffer_load_dwordx4 v{t}, {sr(rWQ,4)}, s{sT1} offen {LDF} lds")
A(f"""s_cmp_ge_u32 s{sW}, 2
s_cbranch_scc1 L_wq4
s_add_u32 m0, s{sT2}, {16*1024}
s_add_u32 s{sT1}, s{sT1}, {32*8192}
buffer_load_dwordx4 v{t}, {sr(rWQ,4)}, s{sT1} offen {LDF} lds
L_wq4:""")
FS("pro")
ROTC = f"s_lshl_b32 s{sROT}, s{sX}, 13" if (OPT["ra"], OPT["rb"]) == (2, 0) else f"s_mul_i32 s{sROT}, s{sX}, {OPT['ra']}\ns_mul_i32 s{sT1}, s{sJ}, {OPT['rb']}\ns_add_u32 s{sROT}, s{sROT}, s{sT1}\ns_and_b32 s{sROT}, s{sROT}, 15\ns_lshl_b32 s{sROT}, s{sROT}, 12"
A(f"""s_load_dwordx2 s[{rWS}:{rWS+1}], s[0:1], 88
v_and_b32 v{vN}, 15, v0
v_and_b32 v{vKO}, 15, v{vG}
s_lshl_b32 s{sT3}, s{sX}, 24
v_xor_b32 v{vKO}, v{vKO}, v{vN}
s_lshr_b32 s{sT0}, s{sJ}, 4
v_lshlrev_b32 v{vKO}, 4, v{vKO}
s_mul_i32 s{sT0}, s{sT0}, {(1 << 23) - (16 << 16)}
v_and_b32 v{vG}, 3, v{vG}
s_lshl_b32 s{sT1}, s{sJ}, 16
v_lshl_or_b32 v{vKO}, v{vG}, 8, v{vKO}
s_add_u32 s{sT0}, s{sT0}, s{sT3}
s_add_u32 s{sT0}, s{sT0}, s{sT1}
s_add_u32 s{sCNT}, s{sT0}, {28672*256 - LR}
{ROTC}
s_add_u32 s{sKM}, s{sVM}, s{sROT}
s_add_u32 s{sKM}, s{sKM}, {LR}
s_add_u32 s{rV}, s14, s{sCNT}
s_addc_u32 s{rV+1}, s15, 0
s_add_u32 s{rK}, s12, s{sCNT}
s_addc_u32 s{rK+1}, s13, 0""")
srd2(rK, LR + 65536)
for i in range(NK1): kdma(i)
FS("pro")
A("s_waitcnt lgkmcnt(0)")
srd2(rWS, WSREC)
A(f"""s_add_u32 s{rV}, s{rV}, {LR}
s_addc_u32 s{rV+1}, s{rV+1}, 0
s_and_b32 s{sT0}, s{sROT}, 0x7000
s_add_u32 s{sVM}, s{sVM}, s{sT0}
s_load_dwordx2 s[{rWA}:{rWA+1}], s[0:1], 32
s_load_dwordx2 s[92:93], s[0:1], 48
s_load_dwordx2 s[{rB1}:{rB1+1}], s[0:1], 56
s_load_dwordx2 s[{rW2}:{rW2+1}], s[0:1], 64
s_load_dwordx2 s[{rOUT}:{rOUT+1}], s[0:1], 72""")
A(f"s_mov_b32 s{sT1}, {EPO}\ns_buffer_load_dword s{sE1}, {WS}, s{sT1}")
A(f"""s_lshl_b32 s{sIB}, s{sX}, 16
s_add_u32 s{sIB}, s{sIB}, {IB0}
s_mul_i32 s{sQ0}, s{sX}, {Q0S}
s_add_u32 s{sQ0}, s{sQ0}, {Q0B}
s_mov_b32 s{sPASS}, 0""")
if PROF: A(f"v_writelane_b32 v9, s{sST}, 0")
traddr_std(t, LWQ); traddr_tail(t+2, LWQ)
FA = t + 8
A(f"""v_mov_b32 v{FA+16}, 0
v_mov_b32 v{FA+17}, 0
v_mov_b32 v{FA+18}, 0
v_mov_b32 v{FA+19}, 0
v_lshlrev_b32 v{aXW}, 4, v0
v_add_u32 v{aXW}, {LXS}, v{aXW}
ds_write_b128 v{aXW}, {vr(FA+16,4)} offset:512
v_mul_u32_u24 v{aXR}, 288, v{vN}
v_lshl_add_u32 v{aXT}, v{vG}, 3, v{aXR}
v_add_u32 v{aXT}, {LXS + 256}, v{aXT}
v_lshl_add_u32 v{aXR}, v{vG}, 4, v{aXR}
v_add_u32 v{aXR}, {LXS}, v{aXR}
v_mov_b32 v{aS1}, v{aXR}
v_mov_b32 v{aS3}, v{aXR}
s_lshl_b32 s{sT0}, s{sCG}, 10
s_lshl_b32 s{sT1}, s{sW}, 8
s_add_u32 s{sT0}, s{sT0}, s{sT1}
s_lshl_b32 s{sT1}, s{sRG}, 2
s_add_u32 s{sT0}, s{sT0}, s{sT1}
v_lshl_add_u32 v{aQD}, v{vN}, 4, s{sT0}
s_cmp_lg_u32 s{sW}, 2
s_cbranch_scc1 L_pwx""")
NCLR = 4
C("""wave 2: mean / variance of x0; row 0 of the LDS image = x0 - mean""")
xf, z1, z2 = t + 40, u + 4, u + 5
A(f"""v_mov_b32 v{z1}, 0
v_mov_b32 v{z2}, 0
v_mov_b32 v{u+6}, 0x3f803f80
v_lshlrev_b32 v{t+4}, 4, v{vL}
v_add_u32 v{t+4}, {LXS}, v{t+4}
s_mov_b32 exec_lo, 0xfffc0000
s_mov_b32 exec_hi, 0
ds_write_b128 v{t+4}, {vr(FA+16,4)}
s_mov_b64 exec, -1
s_mul_i32 s{sT0}, s{sRG}, 18
s_lshl_b32 s{sT1}, s{sT0}, 4
v_subrev_u32 v{t+5}, s{sT1}, v{t+4}
s_mov_b64 {sr(sT2,2)}, 0x3ffff
s_lshl_b64 {sr(sT2,2)}, {sr(sT2,2)}, s{sT0}
s_waitcnt vmcnt({4 + NK1 - NK0})""")
for k in range(8): A(f"v_dot2c_f32_bf16 v{z1}, v{gX+k}, v{u+6}\nv_dot2c_f32_bf16 v{z2}, v{gX+k}, v{gX+k}")
for k in range(4): A(f"v_lshlrev_b32 v{xf+2*k}, 16, v{gX+k}\nv_and_b32 v{xf+2*k+1}, 0xffff0000, v{gX+k}")
rowred("v_add_f32", [z1, z2])
for sw in ("16", "32"):
    A(f"v_mov_b32 v{u+6}, v{z1}\nv_mov_b32 v{u+7}, v{z2}\ns_nop 0\nv_permlane{sw}_swap_b32 v{z1}, v{u+6}\nv_permlane{sw}_swap_b32 v{z2}, v{u+7}\nv_add_f32 v{z1}, v{z1}, v{u+6}\nv_add_f32 v{z2}, v{z2}, v{u+7}")
A(f"v_mul_f32 v{u+6}, {1/576:.9e}, v{z1}")
for k in range(8): A(f"v_sub_f32 v{xf+k}, v{xf+k}, v{u+6}")
for k in range(4): A(f"v_cvt_pk_bf16_f32 v{xf+k}, v{xf+2*k}, v{xf+2*k+1}")
A(f"""v_fma_f32 v{z2}, -v{u+6}, v{z1}, v{z2}
v_mov_b32 v{u+7}, {LMODE}
v_mul_f32 v{z2}, 0x3d800000, v{z2}
s_mov_b64 exec, {sr(sT2,2)}
ds_write_b128 v{t+5}, {vr(xf,4)}
ds_write2_b32 v{u+7}, v{z2}, v{FA+16} offset0:0 offset1:1
s_mov_b64 exec, -1
s_cmp_lg_u32 s{sRG}, 3
s_cbranch_scc1 L_x0d""")
for k in range(4): A(f"v_lshlrev_b32 v{xf+8+2*k}, 16, v{gX+4+k}\nv_and_b32 v{xf+8+2*k+1}, 0xffff0000, v{gX+4+k}")
for k in range(8): A(f"v_sub_f32 v{xf+8+k}, v{xf+8+k}, v{u+6}")
for k in range(4): A(f"v_cvt_pk_bf16_f32 v{xf+8+k}, v{xf+8+2*k}, v{xf+8+2*k+1}")
A(f"s_mov_b64 exec, 0xff\nds_write_b128 v{t+4}, {vr(xf+8,4)} offset:160\ns_mov_b64 exec, -1\nL_x0d:")
for i in range(NK1, NK1 + NKB): kdma(i)
A(f"s_waitcnt vmcnt({NK1 - NK0 + NKB})\nL_bar1:")
FS("pro")
A(f"s_waitcnt lgkmcnt(0)\ns_barrier")
NEAR = []
with Tail():
    A(f"L_pwx:\ns_cmp_eq_u32 s{sW}, {7 if OPT['xnoclr'] else 3}\ns_cbranch_scc1 L_pw3")
    if OPT["q0t"]:
        A(f"s_lshl_b32 s{sT1}, s{sJ}, 9\ns_lshl_b32 s{sT2}, s{sW}, 8\ns_add_u32 s{sT1}, s{sT1}, s{sT2}\nv_lshl_add_u32 v{t+6}, v{vL}, 7, s{sT1}\ns_mov_b64 exec, 3\nbuffer_load_dword v8, v{t+6}, {WS}, s{sQ0} offen sc1\ns_mov_b64 exec, -1")
    for i in range(NK1, NK1 + NKB): kdma(i)
    if OPT["walk"]: A(f"s_cmp_eq_u32 s{sW}, 0\ns_cbranch_scc1 L_walk0_0\ns_branch L_walk1_0\nL_walked:")
    A(f"s_waitcnt vmcnt({NK1 - NK0 + NKB + (1 if OPT['q0t'] else 0)})\ns_branch L_bar1")
    q4 = vr(u, 4)
    C("""wave 3: sentinel fill of the first-pass slots (write-through)""")
    A("L_pw3:")
    for r in range(4): A(f"v_mov_b32 v{u+r}, -1")
    A(f"""s_mul_i32 s{sT1}, s{sJ}, {REST}
v_lshl_add_u32 v{t+6}, v{vL}, 4, s{sT1}
s_lshl_b32 s{sT1}, s{sJ}, 9
s_add_u32 s{sT1}, s{sT1}, {OPo}
v_lshl_add_u32 v{t+7}, v{vL}, 4, s{sT1}
s_lshl_b32 s{sT1}, s{sJ}, 6
s_add_u32 s{sT1}, s{sT1}, {MLo - 512}
v_lshl_add_u32 v{t+8}, v{vL}, 4, s{sT1}
v_cmp_gt_u32 vcc, 32, v{vL}
s_lshl_b32 s{sT1}, s2, 9
v_lshl_add_u32 v{t+9}, v{vL}, 4, s{sT1}
v_cndmask_b32 v{t+7}, v{t+8}, v{t+7}, vcc
s_lshr_b32 s{sT1}, s2, 6
s_lshl_b32 s{sT1}, s{sT1}, 14
s_and_b32 s{sT2}, s2, 63
s_lshl_b32 s{sT2}, s{sT2}, 7
s_add_u32 s{sT1}, s{sT1}, s{sT2}
s_add_u32 s{sT1}, s{sT1}, {PROBE}
v_lshl_add_u32 v{t+8}, v{vL}, 4, s{sT1}
v_lshrrev_b32 v{t+10}, 3, v{vL}
v_mul_u32_u24 v{t+10}, {0x2000 - 128}, v{t+10}
v_add_u32 v{t+8}, v{t+8}, v{t+10}
s_mov_b32 exec_hi, 0xf
buffer_store_dwordx4 {q4}, v{t+7}, {WS}, s{sIB} offen sc1
s_mov_b32 exec_hi, {(1 << (REST//16 - 32)) - 1:#x}
buffer_store_dwordx4 {q4}, v{t+6}, {WS}, s{sIB} offen sc1
s_and_b32 s{sT1}, s2, 3
s_cmp_eq_u32 s{sT1}, 2
s_cselect_b32 s{sT2}, 0xff, -1
s_cmp_eq_u32 s{sT1}, 3
s_cselect_b32 exec_lo, 1, s{sT2}
s_mov_b32 exec_hi, 0
buffer_store_dwordx4 {q4}, v{t+9}, {WS}, 0 offen sc1
s_mov_b32 exec_lo, 0xffff
buffer_store_dwordx4 {q4}, v{t+8}, {WS}, 0 offen sc1
s_mov_b64 exec, -1""")
    for i in range(NK1, NK1 + NKB): kdma(i)
    A(f"s_waitcnt vmcnt({NK1 - NK0 + NKB + NCLR})\ns_branch L_bar1")
NEAR = TAIL[:]; del TAIL[:]
stamp(2); FS("pro")
tr_slice(cWQ, t, t+2, 0)
A(f"s_and_b32 s{sE1}, s{sE1}, -16\ns_add_u32 s{sE1}, s{sE1}, 16")
A("s_branch L_q_reads")
L.extend(NEAR)

HD = dict(zip(("q", "w1", "fin"), [int(c, 36) for c in OPT["hd"]]))
def hint_wait(imm, site):
    skip = uid("hs")
    A(f"s_cmp_lg_u32 s{sW}, 3\ns_cbranch_scc1 {skip}")
    poll(f"buffer_load_dword v{gHI}, v{aHL}, {WS}, s{sI} offen offset:{imm} sc1", [gHI], None)
    if HD[site]:
        A(f"s_cmp_lt_u32 s{sCNT}, {OPT['hskip']}\ns_cbranch_scc1 {skip}"); filler(HD[site])
    A(f"{skip}:\ns_barrier")
def w1_colsum():
    ACC = t + 40
    for r in range(4): A(f"v_mov_b32 v{t+28+r}, v{vONE}")
    A(f"v_mov_b32 v{t+32}, 0\nv_mov_b32 v{t+33}, 0\nv_mov_b32 v{t+34}, v{vONE}\nv_mov_b32 v{t+35}, v{vONE}\nv_cmp_eq_u32 vcc, 2, v{vG}\ns_waitcnt lgkmcnt(0)")
    for ks in range(5):
        for c in range(3):
            A(mfma(vr(ACC+4*c,4), vr(t+28 if ks < 4 else t+32,4), ar(cWA+18*c+(4*ks if ks < 4 else 14),4), "0" if ks == 0 else vr(ACC+4*c,4)))
    A(f"s_mov_b32 s{sT2}, -1\ns_mov_b32 s{sT3}, 0xffff\ns_nop 4\nv_cndmask_b32 v{ACC}, v{ACC}, v{ACC+4}, vcc\nv_cndmask_b32 v{vS1}, v{ACC}, v{ACC+8}, {sr(mODDR,2)}")
    pub(f"buffer_store_dword v{vS1}, v{vS1+1}, {WS}, s{sI} offen", sr(sT2,2))
def x_gather(a1, a2, stg, imm):
    other, join = uid("xo"), uid("xj")
    l1 = f"buffer_load_dwordx4 {vr(gX,4)}, v{a1}, {WS}, s{sXO} offen sc1"
    l2 = f"buffer_load_dwordx4 {vr(gX+4,4)}, v{a2}, {WS}, s{sXO} offen sc1"
    w1 = f"ds_write_b128 v{aXW}, {vr(gX,4)}"
    w2 = f"s_mov_b32 exec_hi, 0\nds_write_b128 v{aXW}, {vr(gX+4,4)} offset:4096\ns_mov_b32 exec_hi, -1"
    A(f"s_cmp_lg_u32 s{sW}, 0\ns_cbranch_scc1 {other}\ns_barrier")
    hook = w1_colsum if stg == "w1" else None
    poll(l1 + "\n" + l2, range(gX, gX+8), u, 1, w1 + "\n" + w2, hook=hook)
    FS(stg)
    A(f"s_branch {join}\n{other}:")
    if stg == "q": A(f"v_mov_b32 v{u+12}, s{sE1}")
    hint_wait(imm, stg)
    stamp(12 if stg == "q" else 7)
    if stg == "q":
        A(f"s_cmp_eq_u32 s{sW}, 1\nL_xq1_top:\n{l1}\ns_cbranch_scc0 L_xq1_a\nbuffer_load_dword v{u+12}, v{u+14}, {WS}, s{sCOPY} offen sc1\nL_xq1_a:")
        A(f"s_add_u32 s{sCNT}, s{sCNT}, 1\ns_cmp_gt_u32 s{sCNT}, {OPT['tmo']}\ns_cbranch_scc1 L_end\ns_cmp_eq_u32 s{sW}, 1\ns_waitcnt vmcnt(0)\n{w1}")
        A(f"v_cmp_ne_u32 {sr(sT0,2)}, s{sE1}, v{u+12}\nv_max_u32 v{u}, v{gX}, v{gX+1}\nv_max3_u32 v{u}, v{u}, v{gX+2}, v{gX+3}\nv_cndmask_b32 v{u}, v{u}, -1, {sr(sT0,2)}")
        A(f"v_cmp_eq_u32 vcc, -1, v{u}\ns_cbranch_vccnz L_xq1_top")
    else: poll(l1, range(gX, gX+4), u, 1, w1, hook=hook)
    A(f"{join}:\ns_waitcnt lgkmcnt(0)\ns_barrier")
    FS(stg)
FSt, ACC, SAC = t + 28, t + 40, t + 52
def stat_reads(): A(f"ds_read_b64_tr_b16 {vr(FSt,2)}, v{aS1}\nds_read_b64_tr_b16 {vr(FSt+2,2)}, v{aS1} offset:128\nds_read_b64_tr_b16 {vr(FSt+4,2)}, v{aS3}")
def frag_reads():
    for ks in range(4): A(f"ds_read_b128 {vr(FA+4*ks,4)}, v{aXR} offset:{ks*64}")
    A(f"ds_read_b64 {vr(FA+18,2)}, v{aXT}")
stat_mfma = [f"v_mfma_f32_16x16x16_bf16 {vr(SAC+4*k,4)}, {vr(vONE if k < 2 else vONE3,2)}, {vr(FSt+2*k,2)}, 0" for k in range(3)]
s1, s2 = u + 2, u + 3
stat_valu = [f"v_add_f32 v{s1}, v{SAC}, v{SAC+4}", f"v_mul_f32 v{s2}, v{SAC}, v{SAC}", f"v_add_f32 v{s1}, v{s1}, v{SAC+8}",
             f"v_fmac_f32 v{s2}, v{SAC+4}, v{SAC+4}", f"v_fmac_f32 v{s2}, v{SAC+8}, v{SAC+8}", "s_nop 0"]
for k, p in enumerate(ROWRED): stat_valu += ["s_nop 0", dpp("v_add_f32", s1, s1, p), dpp("v_add_f32", s2, s2, p)]
def main_mfma(nt, w, base):
    return [(mfma(vr(ACC+4*k,4), vr(FA+4*ks,4), ar(w+18*k+(4*ks if ks < 4 else 14),4), "0" if ks == 0 else vr(ACC+4*k, 4)), base + ks) for ks in range(5) for k in range(nt)]
frag_list = [f"ds_read_b128 {vr(FA+4*ks,4)}, v{aXR} offset:{ks*64}" for ks in range(4)] + [f"ds_read_b64 {vr(FA+18,2)}, v{aXT}"]
stat_list = [f"ds_read_b64_tr_b16 {vr(FSt,2)}, v{aS1}", f"ds_read_b64_tr_b16 {vr(FSt+2,2)}, v{aS1} offset:128", f"ds_read_b64_tr_b16 {vr(FSt+4,2)}, v{aS3}"]

C("""==== q projection (second pass enters here, first pass at L_q_reads)""")
A("L_q:")
A(f"v_and_b32 v{u+14}, 7, v{vN}\nv_lshlrev_b32 v{u+14}, 2, v{u+14}\nv_add_u32 v{u+14}, {RDY2}, v{u+14}")
A(f"s_add_u32 s{sXO}, s{sCOPY}, {X2O}\ns_mov_b32 s{sCNT}, 0")
x_gather(aX1, aX2, "q", 128)
stamp(13)
A(f"s_mov_b32 s{sPASS}, {PS}\nL_q_reads:")
pipeline(frag_list + stat_list, main_mfma(1, cWQ, 0), between=lambda: A(f"s_add_u32 s{sI}, s{sIB}, s{sPASS}"))
FS("q")
a = ACC
A(f"""s_cmp_eq_u32 s{sPASS}, 0
s_nop 6
v_add_f32 v{a}, v{a}, v{a+1}
v_add_f32 v{a+2}, v{a+2}, v{a+3}
v_add_f32 v{a}, v{a}, v{a+2}
v_mov_b32 v{a+1}, v{a}
s_nop 1
v_permlane32_swap_b32 v{a}, v{a+1}
v_add_f32 v{a}, v{a}, v{a+1}
v_mov_b32 v{a+1}, v{a}
s_cbranch_scc1 L_q0_pub
s_nop 0
v_permlane16_swap_b32 v{a}, v{a+1}
v_add_f32 v{a}, v{a}, v{a+1}""")
FS("q")
pub(f"buffer_store_dword v{a}, v{aQD}, {WS}, s{sI} offen", "0xffff")
FS("q")
A("s_waitcnt lgkmcnt(0)")
for m in stat_mfma: A(m)
A("s_nop 6")
for x in stat_valu: A(x)
A(f"s_cmp_eq_u32 s{sCG}, 0\ns_cselect_b64 {sr(sT2,2)}, 1, 0")
pub(f"buffer_store_dwordx2 {vr(s1,2)}, v{aQS}, {WS}, s{sI} offen", sr(sT2,2))
FS("q")
A("L_att_poll:")

with Tail():
    C("""---- first pass: q partials leave as {value, tag} granules; rest of K, V; ready word; gather of q; remaining addresses""")
    A(f"L_q0_pub:\ns_nop 0\nv_permlane16_swap_b32 v{a}, v{a+1}\nv_add_f32 v{vQ0}, v{a}, v{a+1}")
    q0store = f"buffer_store_dwordx2 {vr(vQ0,2)}, v{vQ0+2}, {WS}, s{sQ0} offen"
    A(f"""v_mov_b32 v{vQ0+1}, s{sE1}
v_lshlrev_b32 v{vQ0+2}, 1, v{aQD}
s_mov_b64 exec, 0xffff
{q0store}
s_mov_b64 exec, -1""")
    for i in range(NK1 + NKB, 16): kdma(i)
    vo = u + 12
    A(f"""s_and_b32 s{sT0}, s{sW}, 1
s_lshl_b32 s{sT0}, s{sT0}, 1
v_and_b32 v{vo}, 1, v{vG}
v_or_b32 v{vo}, s{sT0}, v{vo}
v_lshlrev_b32 v{vo}, 1, v{vo}
v_xor_b32 v{vo}, v{vo}, v{vN}
v_lshlrev_b32 v{vo}, 4, v{vo}
v_lshl_add_u32 v{vo}, v{vG}, 8, v{vo}
s_lshr_b32 s{sT0}, s{sROT}, 5
s_and_b32 s{sT0}, s{sT0}, 128
v_xor_b32 v{vo}, s{sT0}, v{vo}
v_xor_b32 v{vo+1}, 128, v{vo}""")
    srd2(rV, 65536)
    def vdma(i): A(blk_m0(sVM, i, 0x7000) + f"\nbuffer_load_dwordx4 v{vo + (i & 1)}, {sr(rV,4)}, m0 offen {LDF} lds")
    for i in range(NQ): vdma(i)
    A(f"""s_getreg_b32 s{sXCC}, hwreg(HW_REG_XCC_ID)
s_and_b32 s{sXCC}, s{sXCC}, 7
s_cmp_lg_u32 s{sW}, 3
s_cbranch_scc1 L_nordy
s_lshl_b32 s{sT0}, s{sX}, 7
s_lshl_b32 s{sT1}, s{sJ}, 2
s_add_u32 s{sT0}, s{sT0}, s{sT1}
s_add_u32 s{sT0}, s{sT0}, {RDY}
v_mov_b32 v{u+14}, s{sT0}
s_or_b32 s{sT0}, s{sE1}, s{sXCC}
v_mov_b32 v{u+15}, s{sT0}
s_mov_b64 exec, 1
s_waitcnt vmcnt({16 - NK1 + NQ + 1})
buffer_store_dword v{u+15}, v{u+14}, {WS}, 0 offen sc1
s_mov_b64 exec, -1
L_nordy:
s_lshr_b32 s{sT0}, s{sJ}, 4
s_lshl_b32 s{sT0}, s{sT0}, 12
v_lshl_add_u32 v{aQ1}, v0, 4, s{sT0}
v_lshlrev_b32 v{t}, 1, v{aQ1}""")
    g0 = t + 28
    q0loads = f"""buffer_load_dwordx4 {vr(g0,4)}, v{t}, {WS}, s{sQ0} offen sc1
buffer_load_dwordx4 {vr(g0+4,4)}, v{t}, {WS}, s{sQ0} offen offset:16 sc1"""
    if OPT["xnoq0"] < 1: A(q0loads)
    for i in range(NQ, NV1): vdma(i)
    srd2(rW2, 4608*576*2); srd2(rB1, 4608*2); srd2(rOUT, 1152)
    A(f"""s_mov_b32 s{sMODE}, 0
s_mov_b32 s{sCOPY}, 0
s_mov_b32 s{sI}, s{sIB}
s_cmp_ge_u32 s{sJ}, 18
s_cselect_b32 s{sROLE}, 1, 0
s_cselect_b32 s{rWA}, s92, s{rWA}
s_cselect_b32 s{rWA+1}, s93, s{rWA+1}
s_mov_b32 s{rWA+2}, {4096*576*2}
s_cselect_b32 s{rWA+2}, {576*4608*2}, s{rWA+2}
s_mov_b32 s{rWA+3}, 0x20000
s_cmp_ge_u32 s{sJ}, 30
s_cselect_b32 s{sROLE}, 2, s{sROLE}
s_cmp_ge_u32 s{sJ}, 9
s_cselect_b32 s{sHALF}, 1, 0
s_mul_i32 s{sT0}, s{sHALF}, 9
s_sub_u32 s{sCG9}, s{sJ}, s{sT0}
s_sub_u32 s{sT0}, s{sJ}, 18
s_and_b32 s{sT1}, s{sT0}, 3
s_lshr_b32 s{sT0}, s{sT0}, 2
s_and_b32 s{sT0}, s{sT0}, 3
s_cmp_eq_u32 s{sROLE}, 0
s_cselect_b32 s{sHALF}, s{sHALF}, s{sT1}
s_cselect_b32 s{sCG9}, s{sCG9}, s{sT0}
v_mov_b32 v{vONE}, 0x3f803f80
v_mov_b32 v{vONE+1}, 0x3f803f80
s_cmp_eq_u32 s{sW}, 0
s_cselect_b32 s{sT0}, 0x3f803f80, 0
s_cselect_b64 {sr(mW0,2)}, 1, 0
v_mov_b32 v{vONE3}, s{sT0}
v_mov_b32 v{vONE3+1}, s{sT0}
v_mov_b32 v{vJUNK}, {1/576:.9e}""")
    mask64(mODDR, 0xffff0000, 0xffff0000); mask64(mODDL, 0xaaaaaaaa, 0xaaaaaaaa); mask64(mROW3, 0, 0xffff0000)
    c1, c2, CS = t + 40, t + 44, t + 48
    for r in range(4): A(f"v_mov_b32 v{c1+r}, v{vONE}")
    A(f"v_mov_b32 v{c2}, 0\nv_mov_b32 v{c2+1}, 0\nv_mov_b32 v{c2+2}, v{vONE}\nv_mov_b32 v{c2+3}, v{vONE}")
    for r in list(range(aRES, aHR + 1)) + [vS1 + 1, aLW, aLR]: A(f"v_mov_b32 v{r}, 0")
    for ks in range(4): A(mfma(vr(CS,4), vr(c1,4), ar(cWQ+4*ks,4), "0" if ks == 0 else vr(CS,4)))
    A(mfma(vr(CS,4), vr(c2,4), ar(cWQ+14,4), vr(CS,4)))
    A(f"""v_lshrrev_b32 v{aS3}, 2, v{vL}
v_mul_u32_u24 v{aS3}, 288, v{aS3}
v_and_b32 v{aS1}, 3, v{vL}
v_lshl_add_u32 v{aS3}, v{aS1}, 3, v{aS3}
s_lshl_b32 s{sT0}, s{sW}, 5
s_add_u32 s{sT0}, s{sT0}, {LXS}
v_add_u32 v{aS1}, s{sT0}, v{aS3}
v_add_u32 v{aS3}, {LXS + 256}, v{aS3}
s_lshl_b32 s{sT0}, s{sRG}, 5
s_lshl_b32 s{sT1}, s{sW}, 3
s_add_u32 s{sT0}, s{sT0}, s{sT1}
s_add_u32 s{sT0}, s{sT0}, {QSo}
v_mov_b32 v{aQS}, s{sT0}
v_lshrrev_b32 v{t+4}, 7, v0
v_mul_u32_u24 v{t+4}, 128, v{t+4}
v_lshl_add_u32 v{aQW}, v0, 1, v{t+4}
v_add_u32 v{aQW}, {LQ}, v{aQW}
ds_write_b16 v{aQW}, v{c2} offset:1600
ds_write_b16 v{aQW}, v{c2} offset:2400
v_mov_b32 v{t+4}, {LMODE}
ds_read_b32 v{gQS+1}, v{t+4}
v_mov_b32 v{gQS}, 0
v_mov_b32 v{vCS}, v{CS}""")
    A(f"v_add_u32 v{t+3}, 256, v{vL}\nv_min_u32 v{t+3}, 287, v{t+3}")
    x_addr(aX1, 0, sRG, t+4); x_addr(aX2, t+3, sRG, t+4)
    A(f"""v_lshlrev_b32 v{aQ2}, 3, v{vN}
v_add_u32 v{aQ2}, {QSo}, v{aQ2}
v_lshrrev_b32 v{t+4}, 3, v{vN}
v_mul_u32_u24 v{aPR}, 640, v{t+4}
v_mul_u32_u24 v{aQR}, 384, v{t+4}
v_and_b32 v{t+4}, 3, v{vN}
v_mul_u32_u24 v{t+5}, 800, v{t+4}
v_add_u32 v{aQR}, v{aQR}, v{t+5}
v_lshl_add_u32 v{aQR}, v{vG}, 4, v{aQR}
v_add_u32 v{aQR}, {LQ}, v{aQR}
v_lshl_add_u32 v{aPR}, v{vG}, 4, v{aPR}
v_add_u32 v{aPR}, {LP}, v{aPR}
v_lshrrev_b32 v{t+5}, 5, v{vL}
v_mul_u32_u24 v{aPW}, 640, v{t+5}
v_and_b32 v{aMW}, 31, v{vL}
v_lshl_add_u32 v{aPW}, v{aMW}, 2, v{aPW}
s_lshl_b32 s{sT0}, s{sW}, 7
s_add_u32 s{sT0}, s{sT0}, {LP}
v_add_u32 v{aPW}, s{sT0}, v{aPW}
v_lshlrev_b32 v{aMR}, 4, v{t+5}
s_lshl_b32 s{sT0}, s{sW}, 2
s_add_u32 s{sT0}, s{sT0}, {LM}
v_add_u32 v{aMW}, s{sT0}, v{aMR}
v_lshl_add_u32 v{aMR}, v{t+4}, 2, v{aMR}
v_add_u32 v{aMR}, {LM}, v{aMR}
v_min_u32 v{aHL}, 17, v{vL}
v_lshlrev_b32 v{aHL}, 2, v{aHL}
v_add_u32 v{aHL}, {H3o}, v{aHL}""")
    A(f"""s_lshl_b32 s{sT0}, s{sJ}, 9
s_lshl_b32 s{sT1}, s{sW}, 6
s_add_u32 s{sT0}, s{sT0}, s{sT1}
s_add_u32 s{sT0}, s{sT0}, {OPo}
v_lshlrev_b32 v{aOP}, 8, v{t+5}
v_lshl_add_u32 v{aOP}, v{vN}, 2, v{aOP}
v_add_u32 v{aOP}, s{sT0}, v{aOP}
s_lshl_b32 s{sT0}, s{sJ}, 6
s_add_u32 s{sT0}, s{sT0}, {MLo}
s_lshl_b32 s{sT1}, s{sW}, 2
s_add_u32 s{sT1}, s{sT1}, s{sT0}
v_lshl_add_u32 v{t+4}, v{t+5}, 4, s{sT1}
s_lshl_b32 s{sT1}, s{sW}, 3
s_add_u32 s{sT1}, s{sT1}, s{sT0}
s_add_u32 s{sT1}, s{sT1}, 32
v_lshl_add_u32 v{t+5}, v{t+5}, 2, s{sT1}
v_cndmask_b32 v{t+4}, v{t+4}, v{t+5}, {sr(mODDL,2)}
v_cndmask_b32 v{aOP}, v{aOP}, v{t+4}, {sr(mODDR,2)}
s_mov_b32 s{mATT}, 0x1ffff
s_cmp_lt_u32 s{sW}, 2
s_cselect_b32 s{mATT}, 0x3ffff, s{mATT}
s_mov_b32 s{mATT+1}, s{mATT}""")
    ka = t + 4
    A(f"s_lshl_b32 s{sT0}, s{sW}, 14\ns_add_u32 s{sT0}, s{sT0}, {LR}\nv_lshl_add_u32 v{u+8}, v{vN}, 8, s{sT0}\nv_xor_b32 v{u+9}, v{vG}, v{vN}")
    for ks in range(4): A(f"v_xor_b32 v{ka+ks}, {ks << 2}, v{u+9}\nv_lshl_add_u32 v{ka+ks}, v{ka+ks}, 4, v{u+8}")
    def q0_test():
        A(f"v_xor_b32 v{u+8}, s{sE1}, v{g0+1}")
        for k in range(1, 4): A(f"v_xor_b32 v{u+9}, s{sE1}, v{g0+2*k+1}\nv_or_b32 v{u+8}, v{u+8}, v{u+9}")
        A(f"v_cmp_ne_u32 vcc, 0, v{u+8}")
    if OPT["walk"] == 2:
        A(f"s_cmp_eq_u32 s{sW}, 0\ns_cbranch_scc1 L_walka_0\ns_cmp_eq_u32 s{sW}, 1\ns_cbranch_scc1 L_walkb_0\ns_cmp_eq_u32 s{sW}, 2\ns_cbranch_scc1 L_walkc_0\ns_branch L_walkd_0\nL_walked2:")
    A(f"v_mov_b32 v{u+10}, {LMODE + 4}\ns_waitcnt vmcnt({NV1 - NQ})")
    q0_test()
    A(f"s_mov_b64 exec, vcc\nds_write_b32 v{u+10}, v{vONE}\ns_mov_b64 exec, -1\ns_waitcnt lgkmcnt(0)\ns_barrier")
    stamp(3)
    A(f"ds_read_b32 v{u+11}, v{u+10}")
    for Tt in range(4):
        for ks in range(4): A(f"ds_read_b128 {vr(vK+16*Tt+4*ks,4)}, v{ka+ks} offset:{Tt*4096}")
        if Tt == 1: A(f"s_waitcnt lgkmcnt(8)\nv_readfirstlane_b32 s{sT0}, v{u+11}")
    A(f"s_cmp_eq_u32 s{sT0}, 0\ns_cbranch_scc1 L_q0_ok")
    if OPT["xnoq0"]: A("s_branch L_q0_ok")
    A(f"s_mov_b64 exec, 0xffff\n{q0store} sc1\ns_mov_b64 exec, -1\ns_mov_b32 s{sCNT}, 0\nL_q0_chk:")
    q0_test()
    A(f"s_cbranch_vccz L_q0_ok\ns_add_u32 s{sCNT}, s{sCNT}, 1\ns_cmp_ge_u32 s{sCNT}, {OPT['tmo']}\ns_cbranch_scc1 L_end\n{q0loads}\ns_waitcnt vmcnt(0)\ns_branch L_q0_chk\nL_q0_ok:")
    for k in range(4): A(f"v_mov_b32 v{gQ+k}, v{g0+2*k}")
    A("s_branch L_att_ok")

C("""==== attention: q (hi/lo rows) -> scores -> p -> P.V over this workgroup's 256 keys""")
poll(f"buffer_load_dwordx4 {vr(gQ,4)}, v{aQ1}, {WS}, s{sI} offen sc1", range(gQ, gQ+4), u)
qsload = f"buffer_load_dwordx2 {vr(gQS,2)}, v{aQ2}, {WS}, s{sI} offen sc1"
resload2 = f"buffer_load_dwordx4 {vr(gRES,4)}, v{aRES}, {WS}, s{sXO} offen sc1"
A("L_att_ok:")
stamp(4); FS("att")
qv, qh, ql = u, u + 1, u + 2
A(f"""v_add_f32 v{qv}, v{gQ}, v{gQ+1}
v_add_f32 v{qh}, v{gQ+2}, v{gQ+3}
s_cmp_eq_u32 s{sPASS}, 0
v_add_f32 v{qv}, v{qv}, v{qh}
v_cvt_pk_bf16_f32 v{qh}, v{qv}, v{qv}
ds_write_b16 v{aQW}, v{qh}
v_lshlrev_b32 v{ql}, 16, v{qh}
v_sub_f32 v{qv}, v{qv}, v{ql}
v_cvt_pk_bf16_f32 v{qv}, v{qv}, v{qv}
ds_write_b16 v{aQW}, v{qv} offset:800
s_cbranch_scc1 L_att_nold
{qsload}
{resload2}
L_att_nold:""")
FS("att")
A("s_waitcnt lgkmcnt(0)\ns_barrier")
FS("att")
fq, D = t + 28, t + 44
for ks in range(4): A(f"ds_read_b128 {vr(fq+4*ks,4)}, v{aQR} offset:{ks*64}")
qk = [(f"s_waitcnt lgkmcnt({3-ks})\n" if Tt == 0 else "") + mfma(vr(D+4*Tt,4), vr(fq+4*ks,4), vr(vK+16*Tt+4*ks,4), "0" if ks == 0 else vr(D+4*Tt,4))
      for Tt in range(4) for ks in range(4)]
for m in qk[:4]: A(m)
A("s_cbranch_scc1 L_att_nochk\ns_waitcnt vmcnt(1)")
recheck(qsload, [gQS, gQS+1], u+3)
A("L_att_nochk:")
z1, z2 = u + 4, u + 5
side = [dpp("v_add_f32", z1, gQS, ROWRED[0]), dpp("v_add_f32", z2, gQS+1, ROWRED[0])]
for p in ROWRED[1:]: side += [dpp("v_add_f32", z1, z1, p), dpp("v_add_f32", z2, z2, p)]
side += [f"v_mul_f32 v{vMU}, {1/576:.9e}, v{z1}", f"v_mul_f32 v{z2}, {1/576:.9e}, v{z2}", f"v_fma_f32 v{z2}, -v{vMU}, v{vMU}, v{z2}",
         f"v_add_f32 v{D}, v{D}, v{D+1}", f"v_max_f32 v{z2}, 0, v{z2}", f"v_add_f32 v{z2}, 0x3727c5ac, v{z2}", f"v_rsq_f32 v{vC}, v{z2}",
         f"v_add_f32 v{D+2}, v{D+2}, v{D+3}", f"v_mul_f32 v{vC}, {128**-0.5*math.log2(math.e):.9e}, v{vC}",
         f"v_add_f32 v{D+4}, v{D+4}, v{D+5}", f"v_add_f32 v{D+6}, v{D+6}, v{D+7}", f"v_mul_f32 v{vMU}, v{vMU}, v{vC}"]
weave(qk[4:], side, 2)
FS("att")
C("""score = c*(q.K - mean*colsum.K); wave maximum; p = exp2(score - max)""")
sa, sb, um, tm = u + 6, u + 7, u + 8, u + 9
A(f"""v_add_f32 v{D+8}, v{D+8}, v{D+9}
v_add_f32 v{D+10}, v{D+10}, v{D+11}
v_cndmask_b32 v{sa}, v{D}, v{D+8}, {sr(mODDR,2)}
v_cndmask_b32 v{tm}, v{D+2}, v{D+10}, {sr(mODDR,2)}
v_mul_f32 v{sa}, v{sa}, v{vC}
v_fma_f32 v{sa}, -v{vMU}, v{tm}, v{sa}
s_nop 1
v_add_f32 v{D+12}, v{D+12}, v{D+13}
v_add_f32 v{D+14}, v{D+14}, v{D+15}
v_cndmask_b32 v{sb}, v{D+4}, v{D+12}, {sr(mODDR,2)}
v_cndmask_b32 v{tm}, v{D+6}, v{D+14}, {sr(mODDR,2)}
v_mul_f32 v{sb}, v{sb}, v{vC}
v_fma_f32 v{sb}, -v{vMU}, v{tm}, v{sb}
v_max_f32 v{um}, v{sa}, v{sb}
v_max_f32 v{tm}, v{sa}, v{sb}
s_nop 1
v_permlane16_swap_b32 v{um}, v{tm}
v_max_f32 v{um}, v{um}, v{tm}
s_nop 1""")
rowred("v_max_f32", [um])
A(f"""v_sub_f32 v{sa}, v{sa}, v{um}
v_sub_f32 v{sb}, v{sb}, v{um}
ds_write_b32 v{aMW}, v{um}
v_exp_f32 v{sa}, v{sa}
v_exp_f32 v{sb}, v{sb}
s_cmp_eq_u32 s{sPASS}, 0
v_cvt_pk_bf16_f32 v{tm}, v{sa}, v{sb}
ds_write_b32 v{aPW}, v{tm}""")
FS("att")
A(f"v_lshlrev_b32 v{sa}, 16, v{tm}\nv_and_b32 v{sb}, 0xffff0000, v{tm}\nv_add_f32 v{sa}, v{sa}, v{sb}\nv_add_f32 v{u+14}, v{sa}, 0\ns_nop 1\nv_permlane16_swap_b32 v{sa}, v{u+14}\nv_add_f32 v{sa}, v{sa}, v{u+14}\ns_nop 1\n{dpp('v_add_f32', sa, sa, ROWRED[0])}\ns_cbranch_scc1 L_rdy")
fp, acc, fm, big, fb = t - 0, t + 32, u + 7, u + 9, u + 10
def pv_head():
    A("s_waitcnt lgkmcnt(0)\ns_barrier")
    A(f"ds_read_b32 v{fm}, v{aMR}")
    for ks in range(8): A(f"ds_read_b128 {vr(fp+4*ks,4)}, v{aPR} offset:{ks*64}")
def pv_mfma(ks, tau):
    a_ = acc + 8*(ks >> 1) + 4*tau
    return mfma(vr(a_,4), vr(fp+4*ks,4), ar(cV+8*ks+4*tau,4), "0" if ks % 2 == 0 else vr(a_,4))
lc = u + 14
pv_side = [dpp("v_add_f32", sa, sa, ROWRED[1]), dpp("v_max_f32", big, fm, ROWRED[0]),
           dpp("v_add_f32", sa, sa, ROWRED[2]), dpp("v_max_f32", big, big, ROWRED[1]),
           dpp("v_add_f32", sa, sa, ROWRED[3]), f"v_sub_f32 v{fm}, v{fm}, v{big}", f"v_sub_f32 v{um}, v{um}, v{big}", f"v_exp_f32 v{fm}, v{fm}",
           f"v_exp_f32 v{um}, v{um}", f"v_mov_b32 v{FA+16}, 0" if False else "s_nop 0",
           f"v_mul_f32 v{sa}, v{sa}, v{um}", f"v_cndmask_b32 v{sa}, v{sa}, v{big}, {sr(mODDL,2)}"]
o0, o1 = lc, um
def scale(op, o, wv, a_): return f"{op}_dpp v{o}, v{fm}, v{a_} row_newbcast:{wv} {DPPM}"
pv_tail = [scale("v_mul_f32", o0, 0, acc), scale("v_mul_f32", o1, 0, acc+4), scale("v_fmac_f32", o0, 1, acc+8), scale("v_fmac_f32", o1, 1, acc+12)]
A("s_waitcnt lgkmcnt(0)\ns_barrier")
stamp(5); FS("att")
pipeline([f"ds_read_b128 {vr(fp,4)}, v{aPR}", f"ds_read_b32 v{fm}, v{aMR}"] + [f"ds_read_b128 {vr(fp+4*ks,4)}, v{aPR} offset:{ks*64}" for ks in range(1, 8)],
         [(pv_mfma(ks, tau), 0 if ks == 0 else (ks + 1 if ks < 2 or not OPT["pvw"] else (ks | 1) + 1)) for ks in range(8) for tau in range(2)], pv_side + pv_tail, start=2, pre=OPT["pre"] + 1)
def pv_finish():
    A(f"""v_mov_b32 v{FA+16}, 0
v_mov_b32 v{FA+17}, 0
{scale("v_fmac_f32", o0, 2, acc+16)}
{scale("v_fmac_f32", o1, 2, acc+20)}
s_nop 2
{scale("v_fmac_f32", o0, 3, acc+24)}
{scale("v_fmac_f32", o1, 3, acc+28)}
v_cvt_pk_bf16_f32 v{o0}, v{o0}, v{o1}
v_cndmask_b32 v{o0}, v{o0}, v{sa}, {sr(mODDR,2)}""")
    pub(f"buffer_store_dword v{o0}, v{aOP}, {WS}, s{sI} offen", sr(mATT,2))
FS("att")
pv_finish()
FS("att"); stamp(6)
A(f"s_cmp_lg_u32 s{sROLE}, 0\ns_cbranch_scc1 L_roleBF")

def wo_dma(i0, i1, v):
    wdma_voff(v, 1152, "wo")
    A(f"""s_lshl_b32 s{sT1}, s{sX}, 1
s_add_u32 s{sT1}, s{sT1}, s{sHALF}
s_lshl_b32 s{sT1}, s{sT1}, 5
s_add_u32 s{sT1}, s{sT1}, s{sW}
s_mul_i32 s{sT1}, s{sT1}, {8*1152}
s_lshl_b32 s{sT2}, s{sCG9}, 7
s_add_u32 s{sT1}, s{sT1}, s{sT2}
s_lshl_b32 s{sT2}, s{sW}, 10
s_add_u32 s{sT2}, s{sT2}, {LR + i0*4096}""")
    if i0: A(f"s_add_u32 s{sT1}, s{sT1}, {i0*32*1152}")
    for i in range(i0, i1):
        dma(rWA, v, sT1, sT2)
        if i < i1 - 1: A(f"s_add_u32 s{sT1}, s{sT1}, {32*1152}\ns_add_u32 s{sT2}, s{sT2}, 4096")
def w2_dma(i0, i1, v):
    wdma_voff(v, 1152, "std")
    A(f"""s_lshl_b32 s{sT1}, s{sX}, 1
s_add_u32 s{sT1}, s{sT1}, s{sHALF}
s_mul_i32 s{sT1}, s{sT1}, 36
s_add_u32 s{sT1}, s{sT1}, s{sW}
s_mul_i32 s{sT1}, s{sT1}, {8*1152}
s_lshl_b32 s{sT2}, s{sCG9}, 7
s_add_u32 s{sT1}, s{sT1}, s{sT2}
s_lshl_b32 s{sT2}, s{sW}, 10
s_add_u32 s{sT2}, s{sT2}, {LW2 + i0*4096}""")
    if i0: A(f"s_add_u32 s{sT1}, s{sT1}, {i0*32*1152}")
    for i in range(i0, i1):
        dma(rW2, v, sT1, sT2)
        if i < i1 - 1: A(f"s_add_u32 s{sT1}, s{sT1}, {32*1152}\ns_add_u32 s{sT2}, s{sT2}, 4096")
def w1_dma(k0, k1, v, done):
    wdma_voff(v, 9216, "std")
    A(f"""s_mul_i32 s{sT1}, s{sHALF}, 18
s_add_u32 s{sT1}, s{sT1}, s{sW}
s_mul_i32 s{sT1}, s{sT1}, {8*9216}
s_mul_i32 s{sT2}, s{sX}, 1152
s_add_u32 s{sT1}, s{sT1}, s{sT2}
s_mul_i32 s{sT2}, s{sCG9}, 384
s_add_u32 s{sT1}, s{sT1}, s{sT2}
s_lshl_b32 s{sT2}, s{sW}, 10
s_add_u32 s{sT2}, s{sT2}, {LR}""")
    for k in range(k0, k1):
        i, c = divmod(k, 3)
        if k == 12: A(f"s_cmp_ge_u32 s{sW}, 2\ns_cbranch_scc1 {done}")
        A(f"s_add_u32 s{sT3}, s{sT1}, {i*32*9216 + c*128}\ns_add_u32 s{sT4}, s{sT2}, {i*4096 + c*18432}")
        dma(rWA, v, sT3, sT4)

def w1_regs():
    for c in range(3): tr_slice(cWA + 18*c, t+8, t+10, c*18432)

POLo = H5o + 120
def probe():
    if OPT["copies"] != 2: return
    if OPT["pol"] < 0:
        A(f"""s_lshl_b32 s{sT1}, s{sW}, 11
s_and_b32 s{sT0}, s{sW}, 1
s_lshl_b32 s{sT0}, s{sT0}, 13
s_add_u32 s{sT0}, s{sT0}, s{sT1}
s_add_u32 s{sT4}, s{sT0}, {PROBE}
s_mov_b32 s84, -1
s_mov_b32 s85, -1""")
        for k in range(OPT["nsamp"]):
            A(f"s_xor_b32 s{sT0}, s{sT4}, {(k >> 1)*128 + (k & 1)*0x2000}\ns_memtime s[100:101]\ns_waitcnt lgkmcnt(0)\ns_buffer_load_dword s101, {WS}, s{sT0}\ns_waitcnt lgkmcnt(0)")
            A(f"s_memtime {sr(sT2,2)}\ns_waitcnt lgkmcnt(0)\ns_sub_u32 s{sT2}, s{sT2}, s100\ns_min_u32 s{84+(k & 1)}, s{84+(k & 1)}, s{sT2}")
        A(f"s_bitcmp1_b32 s{sW}, 0\ns_cselect_b32 s{sT0}, s85, s84\ns_cselect_b32 s85, s84, s85\ns_mov_b32 s84, s{sT0}")
        A(f"""s_lshl_b32 s{sT1}, s{sW}, 2
s_add_u32 s{sT1}, s{sT1}, {LMODE}
v_mov_b32 v{t}, s{sT1}
v_mov_b32 v{t+1}, s84
v_mov_b32 v{t+2}, s85
ds_write2_b32 v{t}, v{t+1}, v{t+2} offset0:0 offset1:4""")
def probe_done():
    if OPT["copies"] != 2: return
    if OPT["pol"] >= 0: A(f"s_mov_b32 s{sT4}, {OPT['pol']}")
    else:
        A(f"""v_mov_b32 v{t}, {LMODE}
ds_read_b128 {vr(t+28,4)}, v{t}
ds_read_b128 {vr(t+32,4)}, v{t} offset:16
s_waitcnt lgkmcnt(0)
v_min_u32 v{t}, v{t+28}, v{t+29}
v_min3_u32 v{t}, v{t}, v{t+30}, v{t+31}
v_min_u32 v{t+1}, v{t+32}, v{t+33}
v_min3_u32 v{t+1}, v{t+1}, v{t+34}, v{t+35}
v_cmp_gt_u32 vcc, v{t}, v{t+1}
s_lshr_b32 s{sT0}, s{sXCC}, 2
s_cmp_lg_u32 vcc_lo, 0
s_cselect_b32 s{sT4}, 1, 0
s_xor_b32 s{sT4}, s{sT4}, s{sT0}""")
    A(f"s_sub_u32 s{sT0}, s{sJ}, 30\ns_lshl_b32 s{sT0}, s{sT0}, 2\ns_add_u32 s{sT0}, s{sT0}, {POLo}\nv_mov_b32 v{t}, s{sT0}\nv_mov_b32 v{t+1}, s{sT4}")
    pub(f"buffer_store_dword v{t+1}, v{t}, {WS}, s{sIB} offen", sr(mW0,2))

with Tail():
    ra_, rb_, avt = t, t + 1, t + 2
    C("""---- first pass: role weights and rest of V, role constants, first half of P.V, ready / die check, second half of P.V""")
    gv, gva = gO, gML
    gload = f"buffer_load_dwordx4 {vr(gv,4)}, v{gva}, {WS}, 0 offen sc1"
    A(f"L_rdy:\nv_lshlrev_b32 v{gva}, 4, v{vL}\nv_add_u32 v{gva}, {RDY}, v{gva}")
    BEH = OPT["beh"]; NX = 1 if OPT["touch"] else 0
    x0res = f"s_lshl_b32 s{sT0}, s{sCG9}, 7\ns_lshl_b32 s{sT1}, s{sW}, 5\ns_add_u32 s{sT0}, s{sT0}, s{sT1}\nv_lshl_add_u32 v{t+4}, v{vG}, 3, s{sT0}\nbuffer_load_dwordx2 {vr(vR+2,2)}, v{t+4}, {sr(rXI,4)}, 0 offen"
    def role_dma(done):
        lb = uid("rb")
        A(f"s_cmp_eq_u32 s{sROLE}, 1\ns_cbranch_scc1 {lb}\ns_cmp_eq_u32 s{sROLE}, 2\ns_cbranch_scc1 {done}f")
        if NW2: w2_dma(0, NW2, t+4)
        wo_dma(0, 8, t+4)
        if BEH: A(f"s_waitcnt vmcnt({8 + NW2 + NX + 1})")
        A(f"s_branch {done}\n{lb}:")
        if NB1: w1_dma(0, NB1, t+4, done + "b")
        A(f"{done}b:")
        if BEH: A(f"s_waitcnt vmcnt({min(NB1, 12) + NX + 1})\ns_branch {done}")
        A(f"{done}f:")
        if BEH: A(f"s_waitcnt vmcnt({NX + 1})")
        A(f"{done}:")
    A(x0res)
    stamp(1)
    if not BEH: role_dma("L_w1_issued")
    A(gload)
    for i in range(NV1, 16): vdma(i)
    A(f"s_mov_b32 s{sHOOK}, 0")
    avt = vKO
    A(f"""v_bfe_u32 v{avt+1}, v{vL}, 3, 2
v_bfe_u32 v{t+4}, v{vL}, 2, 1
v_lshl_or_b32 v{avt+1}, v{t+4}, 2, v{avt+1}
s_lshl_b32 s{sT0}, s{sW}, 1
v_xor_b32 v{avt+1}, s{sT0}, v{avt+1}
v_lshlrev_b32 v{avt+1}, 5, v{avt+1}
v_and_b32 v{avt}, 3, v{vL}
v_lshl_add_u32 v{avt}, v{avt}, 3, v{avt+1}
v_lshl_add_u32 v{avt}, v{t+4}, 12, v{avt}
v_bfe_u32 v{t+4}, v{vL}, 3, 1
v_lshl_add_u32 v{avt}, v{t+4}, 8, v{avt}
v_lshl_add_u32 v{avt}, v{vG}, 10, v{avt}
v_xor_b32 v{avt+1}, 32, v{avt}""")
    def vtr(ks, tau, h): return f"ds_read_b64_tr_b16 {ar(cV+8*ks+4*tau+2*h,2)}, v{avt+tau} offset:{ks*8192+h*512}"
    A(f"s_cmp_eq_u32 s{sROLE}, 1\ns_cbranch_scc1 L_sub\ns_cmp_eq_u32 s{sROLE}, 2\ns_cbranch_scc1 L_sud")
    A(f"""s_and_b32 s{sT0}, s{sW}, 1
s_lshl_b32 s{sT0}, s{sT0}, 1
v_lshrrev_b32 v{t+8}, 3, v{vN}
v_add_u32 v{t+8}, s{sT0}, v{t+8}
v_and_b32 v{t+9}, 1, v{vN}
v_lshlrev_b32 v{t+9}, 4, v{t+9}
v_mov_b32 v{t+10}, 0x3d80
v_lshlrev_b32 v{t+9}, v{t+9}, v{t+10}
v_cmp_eq_u32 vcc, v{t+8}, v{vG}
v_bfe_u32 v{t+10}, v{vN}, 1, 2
s_nop 0
v_cndmask_b32 v{t+9}, 0, v{t+9}, vcc""")
    for r in range(4): A(f"v_cmp_eq_u32 vcc, {r}, v{t+10}\ns_nop 1\nv_cndmask_b32 v{vSEL+r}, 0, v{t+9}, vcc")
    A(f"""v_lshrrev_b32 v{aRES}, 2, v{vN}
v_lshlrev_b32 v{aRES}, 14, v{aRES}
v_and_b32 v{t+8}, 3, v{vN}
v_lshl_add_u32 v{aRES}, v{t+8}, 11, v{aRES}
v_lshl_add_u32 v{aRES}, v{vG}, 4, v{aRES}
s_lshl_b32 s{sT0}, s{sCG9}, 7
s_lshr_b32 s{sT1}, s{sW}, 1
s_lshl_b32 s{sT1}, s{sT1}, 6
s_add_u32 s{sT0}, s{sT0}, s{sT1}
v_add_u32 v{aRES}, s{sT0}, v{aRES}
s_lshl_b32 s{sT0}, s{sHALF}, 13
s_lshl_b32 s{sT1}, s{sW}, 11
s_add_u32 s{sT0}, s{sT0}, s{sT1}
s_add_u32 s{sT0}, s{sT0}, {OPo}
v_lshl_add_u32 v{aO1}, v{vL}, 4, s{sT0}
s_lshl_b32 s{sT0}, s{sHALF}, 10
s_add_u32 s{sT0}, s{sT0}, {MLo}
v_lshl_add_u32 v{aML}, v{vN}, 6, s{sT0}
v_min_u32 v{t+8}, 2, v{vG}
v_lshl_add_u32 v{aML}, v{t+8}, 4, v{aML}
s_mul_i32 s{sT0}, s{sW}, {4*544}
s_add_u32 s{sT0}, s{sT0}, {LOPS}
v_lshrrev_b32 v{aOW}, 5, v{vL}
v_mul_u32_u24 v{aOW}, 544, v{aOW}
v_and_b32 v{t+8}, 31, v{vL}
v_lshl_add_u32 v{aOW}, v{t+8}, 4, v{aOW}
v_add_u32 v{aOW}, s{sT0}, v{aOW}
v_mul_u32_u24 v{aOR}, 544, v{vN}
v_lshl_add_u32 v{aOR}, v{vG}, 4, v{aOR}
v_add_u32 v{aOR}, {LOPS}, v{aOR}
s_lshl_b32 s{sT0}, s{sX}, 1
s_add_u32 s{sT0}, s{sT0}, s{sHALF}
s_lshr_b32 s{sT1}, s{sT0}, 2
s_lshl_b32 s{sT1}, s{sT1}, 14
s_and_b32 s{sT0}, s{sT0}, 3
s_lshl_b32 s{sT0}, s{sT0}, 11
s_add_u32 s{sT0}, s{sT0}, s{sT1}
s_lshl_b32 s{sT1}, s{sCG9}, 7
s_add_u32 s{sT0}, s{sT0}, s{sT1}
XSADDR
s_lshl_b32 s{sT0}, s{sJ}, 2
s_add_u32 s{sT0}, s{sT0}, {H3o}
v_mov_b32 v{aHS}, s{sT0}
s_mul_i32 s{sT0}, s{sHALF}, {288*16}
s_mul_i32 s{sT1}, s{sW}, {72*16}
s_add_u32 s{sT0}, s{sT0}, s{sT1}
s_add_u32 s{sT0}, s{sT0}, {HPo}
v_lshl_add_u32 v{aH1}, v{vL}, 4, s{sT0}
s_add_u32 s{sT0}, s{sT0}, 1024
v_lshl_add_u32 v{aH2}, v{vN}, 4, s{sT0}
v_lshlrev_b32 v{t+8}, 4, v{vN}
v_add_u32 v{t+8}, {HSo - 128}, v{t+8}
v_cmp_gt_u32 vcc, 8, v{vN}
s_mul_i32 s{sT0}, s{sW}, 144
s_add_u32 s{sT0}, s{sT0}, {LH}
v_cndmask_b32 v{aH2}, v{t+8}, v{aH2}, vcc
v_lshl_add_u32 v{aHW}, v{vL}, 1, s{sT0}
s_add_u32 s{sT0}, s{sT0}, 128
v_lshl_add_u32 v{aHW2}, v{vN}, 1, s{sT0}
v_mov_b32 v{t+8}, {LH + 576}
v_cndmask_b32 v{aHW2}, v{t+8}, v{aHW2}, vcc
v_lshlrev_b32 v{aHR}, 4, v{vG}
v_add_u32 v{aHR}, {LH}, v{aHR}""")
    A(f"""v_bfe_u32 v{t+8}, v{vL}, 4, 1
v_bfe_u32 v{t+9}, v{vL}, 2, 1
v_lshl_or_b32 v{t+8}, v{t+9}, 1, v{t+8}
v_xor_b32 v{t+8}, s{sW}, v{t+8}
v_lshlrev_b32 v{t+8}, 5, v{t+8}
v_lshl_add_u32 v{t+8}, v{t+9}, 11, v{t+8}
v_and_b32 v{t+9}, 3, v{vL}
v_lshl_add_u32 v{t+8}, v{t+9}, 3, v{t+8}
v_bfe_u32 v{t+9}, v{vL}, 3, 1
v_lshl_add_u32 v{t+8}, v{t+9}, 7, v{t+8}
v_lshl_add_u32 v{t+8}, v{vG}, 9, v{t+8}
v_add_u32 v{t+8}, {LR}, v{t+8}
""")
    if OPT["one"]:
        k = L.index("XSADDR")
        L[k:k+1] = f"""v_and_b32 v{aLR}, 7, v{vL}
v_lshlrev_b32 v{aLR}, 4, v{aLR}
v_add_u32 v{aXS}, s{sT0}, v{aLR}
v_bfe_u32 v{aLW}, v{vL}, 3, 1
v_lshl_add_u32 v{aXS}, v{aLW}, 13, v{aXS}
v_add_u32 v{aLR}, {LXP}, v{aLR}
s_lshl_b32 s{sT1}, s{sW}, 5
s_add_u32 s{sT1}, s{sT1}, {LXP}
v_lshl_add_u32 v{aLW}, v{vG}, 3, s{sT1}""".split("\n")
    else:
        k = L.index("XSADDR")
        L[k:k+1] = f"""s_lshl_b32 s{sT1}, s{sW}, 5
s_add_u32 s{sT0}, s{sT0}, s{sT1}
v_lshl_add_u32 v{aXS}, v{vG}, 3, s{sT0}
v_lshl_add_u32 v{aXS}, v{vN}, 13, v{aXS}""".split("\n")
    A("s_branch L_sud\nL_sub:")
    A(f"v_add_u32 v{t+11}, 256, v{vL}\nv_min_u32 v{t+11}, 287, v{t+11}")
    x_addr(aB1, 0, sHALF, t+12); x_addr(aB2, t+11, sHALF, t+12)
    A(f"""s_mul_i32 s{sT0}, s{sCG9}, {192*16}
s_lshl_b32 s{sT1}, s{sW}, 8
s_add_u32 s{sT0}, s{sT0}, s{sT1}
s_lshl_b32 s{sT1}, s{sHALF}, 2
s_add_u32 s{sT0}, s{sT0}, s{sT1}
s_add_u32 s{sT0}, s{sT0}, {HPo}
v_lshl_add_u32 v{aBD}, v{vN}, 4, s{sT0}
v_and_b32 v{t+8}, 1, v{vG}
v_lshl_add_u32 v{aBD}, v{t+8}, 11, v{aBD}
v_lshrrev_b32 v{t+8}, 1, v{vG}
v_lshl_add_u32 v{aBD}, v{t+8}, 10, v{aBD}
v_add_u32 v{vS1+1}, {S1o - HPo}, v{aBD}
s_lshl_b32 s{sT0}, s{sHALF}, 5
s_lshl_b32 s{sT1}, s{sW}, 3
s_add_u32 s{sT0}, s{sT0}, s{sT1}
s_add_u32 s{sT0}, s{sT0}, {HSo}
v_lshl_add_u32 v{t+8}, v{vN}, 2, s{sT0}
v_cndmask_b32 v{aBD}, v{aBD}, v{t+8}, {sr(mROW3,2)}
s_mov_b32 s{mLN}, -1
s_mov_b32 s{mLN+1}, 0xffff
s_cmp_eq_u32 s{sCG9}, 0
s_cselect_b32 s{mLN+1}, 0x3ffff, s{mLN+1}""")
    traddr_std(t+8, LR); traddr_tail(t+10, LR)
    A("L_sud:")
    assert NV1 >= 8 and not BEH
    tail_n = 17 - NV1
    A(f"""s_cmp_eq_u32 s{sROLE}, 1
s_cbranch_scc1 L_s1b
s_cmp_eq_u32 s{sROLE}, 0
s_cbranch_scc1 L_s1a
s_waitcnt vmcnt({tail_n})
L_s1b:
s_waitcnt vmcnt({tail_n + min(NB1, 12)})
L_s1a:
s_waitcnt vmcnt({tail_n + 8 + NW2}) lgkmcnt(0)
s_barrier""")
    for ks in range(4):
        for tau in range(2):
            for h in range(2): A(vtr(ks, tau, h))
    A(f"v_mov_b32 v{vKEEP}, v{t+8}")
    A(f"v_lshlrev_b32 v{vR}, 16, v{vR+2}\nv_and_b32 v{vR+1}, 0xffff0000, v{vR+2}\nv_lshlrev_b32 v{vR+2}, 16, v{vR+3}\nv_and_b32 v{vR+3}, 0xffff0000, v{vR+3}")
    for r in range(4): A(f"v_mul_f32 v{vR+r}, 0x3b800000, v{vR+r}")
    def wo_regs(a_):
        for kk in range(8):
            for h in range(2): A(f"ds_read_b64_tr_b16 {ar(cWA+4*kk+2*h,2)}, v{a_} offset:{kk*4096+h*256}")
    A(f"ds_read_b32 v{fm}, v{aMR}")
    for ks in range(8): A(f"ds_read_b128 {vr(fp+4*ks,4)}, v{aPR} offset:{ks*64}")
    A("s_waitcnt lgkmcnt(0)")
    weave([pv_mfma(ks, tau) for ks in range(4) for tau in range(2)], pv_side, 2)
    mfma_gap()
    A(pv_tail[0] + "\n" + pv_tail[1] + "\ns_nop 0\n" + pv_tail[2] + "\n" + pv_tail[3])
    A(f"s_mov_b32 s{sCNT}, 0\ns_waitcnt vmcnt({16 - NV1})")
    b_ = gv + 4
    A("L_rdy_chk:")
    for r in range(4): A(f"v_xor_b32 v{b_+r}, s{sE1}, v{gv+r}")
    A(f"v_or_b32 v{gH}, v{b_}, v{b_+1}\nv_or3_b32 v{gH}, v{gH}, v{b_+2}, v{b_+3}\nv_cmp_lt_u32 vcc, 7, v{gH}\ns_cbranch_vccz L_rdy_ok")
    A(f"s_add_u32 s{sCNT}, s{sCNT}, 1\ns_cmp_ge_u32 s{sCNT}, {OPT['tmo']}\ns_cbranch_scc1 L_end\ns_sleep 16\n{gload}\ns_waitcnt vmcnt(0)\ns_branch L_rdy_chk\nL_rdy_ok:")
    for r in range(4): A(f"v_xor_b32 v{b_+r}, s{sXCC}, v{b_+r}")
    A(f"""v_or_b32 v{gH}, v{b_}, v{b_+1}
v_or3_b32 v{gH}, v{gH}, v{b_+2}, v{b_+3}
v_cmp_ne_u32 vcc, 0, v{gH}
s_lshl_b32 s{sT1}, s{sX}, 3
s_lshr_b64 {sr(sT2,2)}, vcc, s{sT1}
s_and_b32 s{sT2}, s{sT2}, 0xff
s_cselect_b32 s{sMODE}, 0, {OPT['fast']}""")
    A(f"s_cmp_lg_u32 s{sMODE}, 0\ns_cbranch_scc1 L_nore\ns_mov_b64 exec, 0xffff\n{q0store} sc1\ns_mov_b64 exec, -1\ns_waitcnt vmcnt(0)\nL_nore:")
    NX = 1 if OPT["touch"] else 0
    if NX: A(f"""s_mul_i32 s{sT1}, s{sJ}, {REST}
s_lshl_b32 s{sT2}, s{sW}, 8
s_add_u32 s{sT1}, s{sT1}, s{sT2}
s_sub_u32 s{sT1}, s{sT1}, 256
v_lshl_add_u32 v{gH+1}, v{vL}, 7, s{sT1}
s_lshl_b32 s{sT1}, s{sJ}, 9
s_lshl_b32 s{sT2}, s{sW}, 7
s_add_u32 s{sT1}, s{sT1}, s{sT2}
s_add_u32 s{sT1}, s{sT1}, {OPo}
s_lshl_b32 s{sT2}, s{sJ}, 6
s_add_u32 s{sT2}, s{sT2}, {MLo}
v_writelane_b32 v{gH+1}, s{sT1}, 0
v_writelane_b32 v{gH+1}, s{sT2}, 1
s_mov_b64 exec, 15
buffer_load_dword v8, v{gH+1}, {WS}, s{sIB} offen sc1
s_mov_b64 exec, -1""")
    pub(f"buffer_store_dword v{vCS}, v{aQD}, {WS}, s{sIB} offen", "0xffff")
    NBB = OPT["behb"]
    if NBB:
        A(f"s_cmp_lg_u32 s{sROLE}, 1\ns_cbranch_scc1 L_nobb")
        w1_dma(NB1, NB1 + NBB, gH+2, "L_bb")
        A(f"L_bb:\ns_waitcnt vmcnt({NX + 1 + min(NB1 + NBB, 12) - NB1})\ns_branch L_bb2\nL_nobb:")
    A(f"s_waitcnt vmcnt({NX + 1})\nL_bb2:\ns_barrier")
    stamp(5)
    pipeline([vtr(ks, tau, h) for ks in range(4, 8) for tau in range(2) for h in range(2)],
             [(pv_mfma(ks, tau), 4*(ks - 4) + 2*tau + 1) for ks in range(4, 8) for tau in range(2)], pre=OPT["pv0"])
    A("s_nop 1")
    pv_finish()
    stamp(6)
    A(f"s_cmp_lg_u32 s{sROLE}, 0\ns_cbranch_scc1 L_first")
    wo_regs(vKEEP)
    A("s_branch L_wo_go")

C("""==== role A: combine the 16 key blocks of two heads and multiply by wo -> one row piece of the residual stream""")
A("s_waitcnt vmcnt(1)")
recheck(resload2, range(gRES, gRES+4), u)
A(mfma(vr(vR,4), vr(vSEL,4), vr(gRES,4), "0"))
A("L_wo_go:")
poll(f"""buffer_load_dwordx4 {vr(gO,4)}, v{aO1}, {WS}, s{sI} offen sc1
buffer_load_dwordx4 {vr(gO+4,4)}, v{aO1}, {WS}, s{sI} offen offset:1024 sc1
buffer_load_dwordx4 {vr(gML,4)}, v{aML}, {WS}, s{sI} offen sc1""", range(gO, gO+12), u, None, "",
     f"""v_max_u32 v{u}, v{gO}, v{gO+1}
v_max3_u32 v{u}, v{u}, v{gO+2}, v{gO+3}
ds_write_b128 v{aOW}, {vr(gO,4)}
v_max3_u32 v{u}, v{u}, v{gO+4}, v{gO+5}
v_max3_u32 v{u}, v{u}, v{gO+6}, v{gO+7}
ds_write_b128 v{aOW}, {vr(gO+4,4)} offset:{2*544}
v_max3_u32 v{u}, v{u}, v{gML}, v{gML+1}
v_max3_u32 v{u}, v{u}, v{gML+2}, v{gML+3}
v_cmp_eq_u32 vcc, -1, v{u}""")
stamp(7); FS("wo")
ls, mm, m2, M_ = u, u + 1, u + 2, u + 3
A(f"""v_cndmask_b32 v{mm}, v{gML}, v{gML+1}, {sr(mODDR,2)}
v_cndmask_b32 v{m2}, v{gML}, v{gML+1}, {sr(mODDR,2)}
v_add_f32 v{ls}, v{gML}, v{gML+1}
v_add_f32 v{M_}, v{gML+2}, v{gML+3}
v_permlane32_swap_b32 v{mm}, v{m2}
v_add_f32 v{ls}, v{ls}, v{M_}
s_nop 0""")
A(dpp("v_max_f32", M_, m2, ROWRED[0]))
for p in ROWRED[1:]: A("s_nop 1\n" + dpp("v_max_f32", M_, M_, p))
A(f"v_sub_f32 v{m2}, v{m2}, v{M_}\nv_exp_f32 v{m2}, v{m2}")
FS("wo")
A("s_waitcnt lgkmcnt(0)\ns_barrier")
FS("wo")
fo, wacc = t + 28, u + 8
def hint_send(imm): pub(f"buffer_store_dword v{vL}, v{aHS}, {WS}, s{sI} offen offset:{imm}", sr(mW0,2))
if OPT["h3pos"] == 0: hint_send(0)
w0, w1_ = m2, mm
side = [dpp("v_add_f32", ls, ls, ROWRED[1]), dpp("v_add_f32", ls, ls, ROWRED[2]), dpp("v_add_f32", ls, ls, ROWRED[3]), f"v_rcp_f32 v{ls}, v{ls}",
        f"v_mul_f32 v{w0}, v{m2}, v{ls}\nv_mov_b32 v{M_}, v{w0}", f"v_permlane32_swap_b32 v{w0}, v{M_}\nv_mov_b32 v{w1_}, v{w0}", f"s_nop 0\nv_permlane16_swap_b32 v{w0}, v{w1_}"]
sidew = list(side)
def wo_mf():
    for kk in range(8):
        yield (mfma(vr(wacc+4*(kk >> 2),4), ar(cWA+4*kk,4), vr(fo+4*kk,4), "0" if kk % 4 == 0 else vr(wacc+4*(kk >> 2),4)) + ("\n" + sidew.pop(0) if sidew else ""), kk)
pipeline([f"ds_read_b128 {vr(fo+4*kk,4)}, v{aOR} offset:{kk*64}" for kk in range(8)], list(wo_mf()),
         between=lambda: A(f"v_mul_f32 v{ls}, v{ls}, v{m2}\ns_nop 1\n{dpp('v_add_f32', ls, ls, ROWRED[0])}"))
FS("wo")
if OPT["h3pos"] == 1: hint_send(0)
tt = u + 4
for r in range(4): A(f"v_fma_f32 v{tt+r}, v{w0}, v{wacc+r}, v{vR+r}")
if OPT["h3pos"] != 1: A("s_nop 3")
for r in range(4): A(f"v_fmac_f32 v{tt+r}, v{w1_}, v{wacc+4+r}")
rowred("v_add_f32", [tt, tt+1, tt+2, tt+3])
XM = 0x00030003 if OPT["copies"] == 2 else 0x00010001
def x_publish(src, xoff, hint=None):
    if not OPT["one"]:
        A(f"s_add_u32 s{sT0}, s{sPASS}, {xoff}\nv_cvt_pk_bf16_f32 v{src}, v{src}, v{src+1}\ns_mov_b32 exec_lo, {XM:#x}\ns_mov_b32 exec_hi, {XM:#x}\nv_cvt_pk_bf16_f32 v{src+1}, v{src+2}, v{src+3}")
        A(f"buffer_store_dwordx2 {vr(src,2)}, v{aXS}, {WS}, s{sT0} offen sc1\ns_mov_b64 exec, -1")
        return
    skip = uid("xp")
    A(f"v_cvt_pk_bf16_f32 v{src}, v{src}, v{src+1}\nv_cvt_pk_bf16_f32 v{src+1}, v{src+2}, v{src+3}\nds_write_b64 v{aLW}, {vr(src,2)}\ns_add_u32 s{sT0}, s{sPASS}, {xoff}")
    if hint is not None: hint_send(hint)
    A(f"s_cmp_lg_u32 s{sW}, 0\ns_waitcnt lgkmcnt(0)\ns_barrier\ns_cbranch_scc1 {skip}\nds_read_b128 {vr(src,4)}, v{aLR}\ns_mov_b64 exec, {0xffff if OPT['copies'] == 2 else 0xff:#x}\ns_waitcnt lgkmcnt(0)")
    A(f"buffer_store_dwordx4 {vr(src,4)}, v{aXS}, {WS}, s{sT0} offen sc1\ns_mov_b64 exec, -1\n{skip}:")
FS("wo")
x_publish(tt, X1O, 0 if OPT['h3pos'] == 4 else None)
FS("wo")
if OPT["h3pos"] == 2: hint_send(0)
stamp(8)
A(f"s_cmp_eq_u32 s{sPASS}, 0\ns_cbranch_scc1 L_w2_first\ns_add_u32 s{sXO}, s{sPASS}, s{sCOPY}")
C("""==== role A: h = mish(LN-corrected sums + b1), times w2 -> one row piece of the residual stream""")
hloads = f"buffer_load_dwordx4 {vr(gH,4)}, v{aH1}, {WS}, s{sI} offen sc1\nbuffer_load_dwordx4 {vr(gH+4,4)}, v{aH2}, {WS}, s{sI} offen sc1"
poll(hloads, range(gH, gH+8), u)
A("L_w2_ok:")
stamp(9); FS("w2")
resload1 = f"buffer_load_dwordx4 {vr(gX1,4)}, v{aRES}, {WS}, s{sXO} offen sc1"
y0, y1, z1, z2, hmu, hrs = u, u + 4, u + 8, u + 9, u + 10, u + 11
A(f"""v_add_f32 v{z1}, v{gH+4}, v{gH+6}
v_add_f32 v{z2}, v{gH+5}, v{gH+7}
{resload1}
v_add_f32 v{y0}, v{gH}, v{gH+1}
{dpp("v_add_f32", hmu, z1, ROWRED[0])}
{dpp("v_add_f32", hrs, z2, ROWRED[0])}
v_add_f32 v{y0+1}, v{gH+2}, v{gH+3}
{dpp("v_add_f32", hmu, hmu, ROWRED[1])}
{dpp("v_add_f32", hrs, hrs, ROWRED[1])}
v_add_f32 v{y1}, v{z1}, v{z2}
{dpp("v_add_f32", hmu, hmu, ROWRED[2])}
{dpp("v_add_f32", hrs, hrs, ROWRED[2])}
v_add_f32 v{y0}, v{y0}, v{y0+1}
v_mul_f32_dpp v{hmu}, v{hmu}, v{vJUNK} row_newbcast:15 {DPPM}
v_mul_f32_dpp v{hrs}, v{hrs}, v{vJUNK} row_newbcast:15 {DPPM}
v_fma_f32 v{hrs}, -v{hmu}, v{hmu}, v{hrs}
v_fma_f32 v{y0}, -v{hmu}, v{vS1}, v{y0}
v_max_f32 v{hrs}, 0, v{hrs}
v_add_f32 v{hrs}, 0x3727c5ac, v{hrs}
v_rsq_f32 v{hrs}, v{hrs}
v_fma_f32 v{y1}, -v{hmu}, v{vS1+1}, v{y1}
s_mov_b32 s{sT0}, {-math.log2(math.e):.9e}
v_fma_f32 v{y0}, v{y0}, v{hrs}, v{vB}
v_fma_f32 v{y1}, v{y1}, v{hrs}, v{vB+1}""")
FS("w2")
C("""mish(y) = y*n/(n+2c), u = exp(-|y|): y >= 0: n = 1+2u, c = u*u; y < 0: n = u*(u+2), c = 1   (= y*tanh(softplus(y)))""")
e0, e1 = z1, z2
for y in (y0, y1): A(f"v_mul_f32 v{y+1}, s{sT0}, abs(v{y})")
for y in (y0, y1): A(f"v_exp_f32 v{y+1}, v{y+1}")
A(f"v_cmp_le_f32 vcc, 0, v{y0}\nv_cmp_le_f32 {sr(sT2,2)}, 0, v{y1}")
for y in (y0, y1): A(f"v_fma_f32 v{y+2}, v{y+1}, 2.0, 1.0\nv_add_f32 v{y+3}, 2.0, v{y+1}")
for y, e in ((y0, e0), (y1, e1)): A(f"v_mul_f32 v{y+3}, v{y+3}, v{y+1}\nv_mul_f32 v{e}, v{y+1}, v{y+1}")
A(f"v_cndmask_b32 v{y0+2}, v{y0+3}, v{y0+2}, vcc\nv_cndmask_b32 v{y1+2}, v{y1+3}, v{y1+2}, {sr(sT2,2)}")
A(f"v_cndmask_b32 v{e0}, 1.0, v{e0}, vcc\nv_cndmask_b32 v{e1}, 1.0, v{e1}, {sr(sT2,2)}")
for y, e in ((y0, e0), (y1, e1)): A(f"v_fma_f32 v{e}, v{e}, 2.0, v{y+2}")
for y, e in ((y0, e0), (y1, e1)): A(f"v_rcp_f32 v{e}, v{e}")
for y, e in ((y0, e0), (y1, e1)): A(f"v_mul_f32 v{y}, v{y}, v{y+2}")
for y, e in ((y0, e0), (y1, e1)): A(f"v_mul_f32 v{y}, v{y}, v{e}")
A(f"v_cvt_pk_bf16_f32 v{y0}, v{y0}, v{y1}\nds_write_b16 v{aHW}, v{y0}\nds_write_b16_d16_hi v{aHW2}, v{y0}")
FS("w2")
A("s_waitcnt lgkmcnt(0)\ns_barrier")
FS("w2")
fh, w2acc = t + 28, u + 4
def w2_res():
    A("s_waitcnt vmcnt(0)")
    recheck(resload1, range(gX1, gX1+4), u+1)
    A(mfma(vr(vR,4), vr(vSEL,4), vr(gX1,4), "0"))
    FS("w2")
pipeline([f"ds_read_b128 {vr(fh+4*ks,4)}, v{aHR} offset:{ks*64}" for ks in range(9)],
         [(mfma(vr(w2acc,4), ar(cW2+4*ks,4), vr(fh+4*ks,4), "0" if ks == 0 else vr(w2acc,4)), ks) for ks in range(9)],
         [dpp("v_add_f32", vR+r, vR+r, p) for p in ROWRED for r in range(4)], start=3, between=w2_res, per=OPT['w2per'])
FS("w2")
if OPT["h5pos"] == 3: hint_send(128)
mfma_gap()
for r in range(4): A(f"v_add_f32 v{w2acc+r}, v{w2acc+r}, v{vR+r}")
x_publish(w2acc, X2O, 128 if OPT['h5pos'] == 4 else None)
FS("w2")
if OPT["h5pos"] == 2: hint_send(128)
stamp(10)
A(f"s_cmp_eq_u32 s{sPASS}, 0\ns_cbranch_scc1 L_a_first")
def final(on_b):
    C("==== result: one workgroup per 64 columns sums the 16 rows")
    if on_b:
        A(f"""s_sub_u32 s{sCG9}, s{sJ}, 18
s_lshl_b32 s{sT0}, s{sX}, 4
s_add_u32 s{sT0}, s{sT0}, s{sCG9}
s_cmp_ge_u32 s{sT0}, 9
s_cbranch_scc1 L_done
s_and_b32 s{sT0}, s{sW}, 1
s_lshl_b32 s{sT0}, s{sT0}, 1
v_lshrrev_b32 v{t}, 3, v{vN}
v_add_u32 v{t}, s{sT0}, v{t}
v_and_b32 v{t+1}, 1, v{vN}
v_lshlrev_b32 v{t+1}, 4, v{t+1}
v_mov_b32 v{t+2}, 0x3f80
v_lshlrev_b32 v{t+1}, v{t+1}, v{t+2}
v_cmp_eq_u32 vcc, v{t}, v{vG}
v_bfe_u32 v{t+2}, v{vN}, 1, 2
v_lshrrev_b32 v{aRES}, 2, v{vN}
v_cndmask_b32 v{t+1}, 0, v{t+1}, vcc""")
        for r in range(4): A(f"v_cmp_eq_u32 vcc, {r}, v{t+2}\ns_nop 1\nv_cndmask_b32 v{vSEL+r}, 0, v{t+1}, vcc")
        A(f"""v_lshlrev_b32 v{aRES}, 14, v{aRES}
v_and_b32 v{t}, 3, v{vN}
v_lshl_add_u32 v{aRES}, v{t}, 11, v{aRES}
v_lshl_add_u32 v{aRES}, v{vG}, 4, v{aRES}
s_lshl_b32 s{sT0}, s{sCG9}, 7
s_lshr_b32 s{sT1}, s{sW}, 1
s_lshl_b32 s{sT1}, s{sT1}, 6
s_add_u32 s{sT0}, s{sT0}, s{sT1}
v_add_u32 v{aRES}, s{sT0}, v{aRES}""")
    else: A(f"s_or_b32 s{sT0}, s{sX}, s{sHALF}\ns_cmp_lg_u32 s{sT0}, 0\ns_cbranch_scc1 L_done")
    A(f"""s_lshl_b32 s{sT0}, s{sCG9}, 7
s_lshl_b32 s{sT1}, s{sW}, 5
s_add_u32 s{sT0}, s{sT0}, s{sT1}
v_lshl_add_u32 v{aXS}, v{vG}, 3, s{sT0}
s_add_u32 s{sXO}, s{sCOPY}, {PS + X2O}
s_mov_b32 s{sT2}, 0x00010001
s_mov_b32 s{sT3}, 0x00010001""")
    if on_b and OPT["outw"]:
        A(f"s_mov_b64 exec, {sr(sT2,2)}\nbuffer_store_dwordx2 {vr(FA+16,2)}, v{aXS}, {sr(rOUT,4)}, 0 offen\ns_mov_b64 exec, -1")
    hint_wait(128, 'fin')
    poll(resload2, range(gRES, gRES+4), u, 1, mfma(vr(vR,4), vr(vSEL,4), vr(gRES,4), "0"))
    A("s_nop 3")
    rowred("v_add_f32", [vR, vR+1, vR+2, vR+3])
    if not on_b:
        for r in range(4): A(f"v_mul_f32 v{vR+r}, 0x41800000, v{vR+r}")
    A(f"v_cvt_pk_bf16_f32 v{vR}, v{vR}, v{vR+1}\ns_mov_b64 exec, {sr(sT2,2)}\nv_cvt_pk_bf16_f32 v{vR+1}, v{vR+2}, v{vR+3}")
    if OPT["echo"] >= 0:
        A("s_mov_b64 exec, -1"); stamp(11)
        A(f"s_nop 1\nv_readlane_b32 s3, v9, {OPT['echo']}\nv_readlane_b32 s84, v9, 0\ns_nop 3\ns_sub_u32 s3, s3, s84\ns_min_u32 s3, s3, 20000\ns_lshl_b32 s3, s3, {OPT['emul']}\ns_add_u32 s3, s3, s{sST}")
        A(f"L_echo:\ns_memrealtime s[84:85]\ns_waitcnt lgkmcnt(0)\ns_sub_u32 s84, s84, s3\ns_cmp_lt_i32 s84, 0\ns_cbranch_scc1 L_echo\ns_mov_b64 exec, {sr(sT2,2)}")
    A(f"buffer_store_dwordx2 {vr(vR,2)}, v{aXS}, {sr(rOUT,4)}, 0 offen\ns_mov_b64 exec, -1")
if not OPT["finb"]: final(False)
A("s_branch L_done")

C("""==== role B: partial sums of x@w1 for 192 hidden units over a 144-row slice, plus the slice's statistics""")
A(f"L_roleBF:\ns_cmp_lg_u32 s{sROLE}, 1\ns_cbranch_scc1 L_done\nL_w1_go:\ns_add_u32 s{sXO}, s{sPASS}, s{sCOPY}")
x_gather(aB1, aB2, "w1", 0)
stamp(8)
mm_ = main_mfma(3, cWA, 0)
order = [frag_list[0]] + stat_list + frag_list[1:]
pipeline(order, [(m, 0) for m, _ in mm_[:3]] + [(m, 1 + k) for k, m in enumerate(stat_mfma)] + [(m, n + 3) for m, n in mm_[3:]],
         stat_valu + [f"v_cndmask_b32 v{s1}, v{s1}, v{s2}, {sr(mODDL,2)}"], start=9)
FS("w1")
a, b, c = ACC, ACC + 4, ACC + 8
A(f"""s_nop 3
v_add_f32 v{a}, v{a}, v{a+1}
v_add_f32 v{a+2}, v{a+2}, v{a+3}
v_add_f32 v{b}, v{b}, v{b+1}
v_add_f32 v{b+2}, v{b+2}, v{b+3}
v_add_f32 v{c}, v{c}, v{c+1}
v_add_f32 v{c+2}, v{c+2}, v{c+3}
v_add_f32 v{a}, v{a}, v{a+2}
v_add_f32 v{b}, v{b}, v{b+2}
v_add_f32 v{c+1}, v{c}, v{c+2}
v_add_f32 v{c}, v{c}, v{c+2}
v_permlane32_swap_b32 v{a}, v{b}
v_add_f32 v{a}, v{a}, v{b}
v_permlane32_swap_b32 v{c}, v{c+1}
v_add_f32 v{c}, v{c}, v{c+1}
s_nop 1
v_permlane16_swap_b32 v{a}, v{c}
v_add_f32 v{a}, v{a}, v{c}
v_cndmask_b32 v{a}, v{a}, v{s1}, {sr(mROW3,2)}""")
FS("w1")
pub(f"buffer_store_dword v{a}, v{aBD}, {WS}, s{sI} offen", sr(mLN,2))
FS("w1"); stamp(9)
A(f"s_cmp_eq_u32 s{sPASS}, 0\ns_cbranch_scc1 L_bf_first")
if OPT["finb"]: final(True)

A("L_done:")
if PROF:
    stamp(11)
    A(f"s_cmp_lg_u32 s{sW}, 0\ns_cbranch_scc1 L_end\ns_lshl_b32 s{sT0}, s2, 7\ns_add_u32 s{sT0}, s{sT0}, {STAMP}")
    A(f"s_lshr_b32 s3, s{sCOPY}, 12\ns_or_b32 s3, s3, s{sMODE}\nv_writelane_b32 v9, s3, 31\ns_memtime s[100:101]\ns_waitcnt lgkmcnt(0)\ns_sub_u32 s3, s100, s88\nv_writelane_b32 v9, s3, 30\nv_lshlrev_b32 v2, 2, v{vL}\ns_mov_b32 exec_hi, 0")
    for k in range(fcount[0]): A(f"v_writelane_b32 v9, s{FREG[k]}, {1+k}")
    A(f"buffer_store_dword v9, v2, {WS}, s{sT0} offen")
A("L_end:\ns_endpgm")

def pick_issue():
    A(f"v_mov_b32 v{u+15}, {POLo}\nbuffer_load_dword v{u+15}, v{u+15}, {WS}, s{sIB} offen sc1")
def pick_take():
    if OPT["copies"] == 2: A(f"v_readfirstlane_b32 s85, v{u+15}\ns_lshr_b32 s{sT1}, s{sXCC}, 2\ns_nop 0\ns_xor_b32 s{sT1}, s{sT1}, s85\ns_lshl_b32 s{sT1}, s{sT1}, 13\ns_cmp_lt_u32 s85, 2\ns_cselect_b32 s{sCOPY}, s{sT1}, s{sCOPY}")
def late_announce():
    A(f"""s_lshl_b32 s{sT4}, s{sX}, 2
s_add_u32 s{sT4}, s{sT4}, {RDY2}
v_lshl_add_u32 v{t+3}, v{vL}, 13, s{sT4}
v_mov_b32 v{t+4}, s{sE1}
s_waitcnt vmcnt(0)
s_barrier
s_cmp_eq_u32 s{sW}, 0
s_cselect_b64 exec, 3, 0
buffer_store_dword v{t+4}, v{t+3}, {WS}, 0 offen sc1
s_mov_b64 exec, -1""")
def fill_group():
    for r in range(4): A(f"v_mov_b32 v{t+12+r}, -1")
    A(f"v_lshlrev_b32 v{t+2}, 4, v0\ns_add_u32 s{sT0}, s{sIB}, {PS}")
    for k in range(12):
        if k == 11: A(f"s_cmp_ge_u32 s{sW}, 2\ns_cbranch_scc1 L_lf5")
        A(f"buffer_store_dwordx4 {vr(t+12,4)}, v{t+2}, {WS}, s{sT0} offen sc1\ns_add_u32 s{sT0}, s{sT0}, 4096")
    A("L_lf5:")
    A(f"s_lshl_b32 s{sT0}, s{sX}, 14\ns_add_u32 s{sT0}, s{sT0}, {PS}\ns_and_b32 s{sT1}, s{sW}, 1\ns_cselect_b64 exec, 0xff, -1")
    for k in range(4): A(f"buffer_store_dwordx4 {vr(t+12,4)}, v{t+2}, {WS}, s{sT0} offen sc1\ns_add_u32 s{sT0}, s{sT0}, 4096")
    A("s_mov_b64 exec, -1")
    late_announce()
    if OPT["touch"]:
        A(f"v_lshlrev_b32 v{t+2}, 7, v0\ns_add_u32 s{sT0}, s{sIB}, {PS}\nbuffer_load_dword v8, v{t+2}, {WS}, s{sT0} offen sc1")
        A(f"s_add_u32 s{sT0}, s{sT0}, 0x8000\nv_cmp_gt_u32 vcc, 112, v0\ns_and_saveexec_b64 {sr(sT2,2)}, vcc\ns_cbranch_execz L_lf6\nbuffer_load_dword v8, v{t+2}, {WS}, s{sT0} offen sc1\nL_lf6:\ns_mov_b64 exec, -1")
csload = f"buffer_load_dwordx4 {vr(t+28,4)}, v{aQ1}, {WS}, s{sIB} offen sc1"
def colsum_rows():
    A(f"""v_add_f32 v{u}, v{t+28}, v{t+29}
v_add_f32 v{u+1}, v{t+30}, v{t+31}
v_add_f32 v{u}, v{u}, v{u+1}
v_cvt_pk_bf16_f32 v{u+1}, v{u}, v{u}
v_lshlrev_b32 v{u+2}, 16, v{u+1}
v_sub_f32 v{u}, v{u}, v{u+2}
v_cvt_pk_bf16_f32 v{u}, v{u}, v{u}
ds_write_b16 v{aQW}, v{u+1} offset:1600
ds_write_b16 v{aQW}, v{u} offset:2400""")
with Tail():
    C("""---- first pass, role B: rest of w1""")
    A(f"L_first:\ns_cmp_lg_u32 s{sROLE}, 1\ns_cbranch_scc1 L_firstF")
    if True:
        if NB1 + OPT["behb"] < 15: w1_dma(NB1 + OPT["behb"], 15, t, "L_w1_rest")
        A("L_w1_rest:")
        traddr_std(t+8, LR); traddr_tail(t+10, LR)
        A("s_waitcnt vmcnt(3)")
        pick_issue()
        A("s_waitcnt vmcnt(0)\ns_barrier")
        stamp(14)
        w1_regs()
    else:
        pick_issue(); A("s_waitcnt vmcnt(0)")
    pick_take()
    A(f"s_mov_b32 s{sHOOK}, 1")
    stamp(15)
    A("s_branch L_w1_go")
    C("""---- first pass, role A between its stages: bias, column sums, w2""")
    A(f"""L_w2_first:
s_mul_i32 s{sT0}, s{sX}, 1152
s_mul_i32 s{sT1}, s{sHALF}, 576
s_add_u32 s{sT0}, s{sT0}, s{sT1}
s_mul_i32 s{sT1}, s{sW}, 144
s_add_u32 s{sT0}, s{sT0}, s{sT1}
v_lshl_add_u32 v{t}, v{vL}, 1, s{sT0}
v_and_b32 v{t+1}, 7, v{vL}
v_lshl_add_u32 v{t+1}, v{t+1}, 1, s{sT0}""")
    pick_issue()
    A(f"""{csload}
buffer_load_ushort v{vB}, v{t}, {sr(rB1,4)}, 0 offen
buffer_load_ushort v{vB+1}, v{t+1}, {sr(rB1,4)}, 0 offen offset:128""")
    if NW2 < 9: w2_dma(NW2, 9, t)
    A(f"v_add_u32 v{t+2}, {S1o - HPo}, v{aH1}\nv_sub_u32 v{t+3}, v{t+2}, v{aH1}\nv_add_u32 v{t+3}, v{t+3}, v{aH2}\nv_cmp_gt_u32 vcc, 8, v{vN}\ns_nop 1\nv_cndmask_b32 v{t+3}, v{t+2}, v{t+3}, vcc")
    traddr_std(t, LW2)
    A(f"s_waitcnt vmcnt({9 - NW2 + 2})")
    pick_take()
    recheck(csload, range(t+28, t+32), u)
    colsum_rows()
    A(f"s_add_u32 s{sXO}, s{sPASS}, s{sCOPY}\ns_waitcnt vmcnt(0)\ns_barrier")
    stamp(14)
    A(f"v_mov_b32 v{vQ0}, {POLo}\nbuffer_load_dword v{vQ0}, v{vQ0}, {WS}, s{sIB} offen sc1")
    for ks in range(9):
        for h in range(2): A(f"ds_read_b64_tr_b16 {ar(cW2+4*ks+2*h,2)}, v{t} offset:{ks*4096+h*512}")
    A(f"v_lshlrev_b32 v{vB}, 16, v{vB}\nv_lshlrev_b32 v{vB+1}, 16, v{vB+1}")
    stamp(15)
    g1 = gO
    poll(hloads + f"\nbuffer_load_dwordx4 {vr(g1,4)}, v{t+2}, {WS}, s{sI} offen sc1\nbuffer_load_dwordx4 {vr(g1+4,4)}, v{t+3}, {WS}, s{sI} offen sc1", list(range(gH, gH+8)) + list(range(g1, g1+8)), u, OPT["h4d"])
    for k in range(2): A(f"v_add_f32 v{vS1+k}, v{g1+4*k}, v{g1+4*k+1}\nv_add_f32 v{u+k}, v{g1+4*k+2}, v{g1+4*k+3}")
    for k in range(2): A(f"v_add_f32 v{vS1+k}, v{vS1+k}, v{u+k}")
    A(f"s_branch L_w2_ok\nL_a_first:\nv_mov_b32 v{u+15}, v{vQ0}\ns_nop 0")
    pick_take()
    A("s_branch L_q")
    C("""---- first pass, role F: workgroup 30 times the two copies, workgroup 31 prepares the second-pass slots""")
    A("L_firstF:")
    A(f"s_cmp_eq_u32 s{sJ}, 31\ns_cbranch_scc1 L_f31")
    probe()
    A("s_waitcnt lgkmcnt(0)\ns_barrier")
    probe_done()
    A("s_branch L_bf_first\nL_f31:")
    fill_group()
    A(f"v_mov_b32 v{t}, {EPO}\nv_mov_b32 v{t+1}, s{sE1}\ns_lshl_b32 s{sT0}, s2, 2\ns_add_u32 s{sT0}, s{sT0}, s{sW}\ns_cmp_eq_u32 s{sT0}, 1020\ns_cselect_b64 exec, 1, 0")
    A(f"buffer_store_dword v{t+1}, v{t}, {WS}, 0 offen sc1\ns_mov_b64 exec, -1")
    A(f"L_bf_first:\nv_mov_b32 v{aRES}, 0")
    pick_issue()
    poll(csload, range(t+28, t+32), u, 1)
    colsum_rows()
    pick_take()
    A("s_branch L_q")

body = L + TAIL
if OPT["walk"]:
    xo = [l[:-1] for l in body if l.startswith("L_xo")]; rb = [l[:-1] for l in body if l.startswith("L_rb")]; hk = [l[:-1] for l in body if l.startswith("L_hk")]
    if OPT["walk"] == 1:
        chains = {"0": (["L_q0_pub", "L_rdy", rb[0], "L_sub", "L_first", "L_w2_first", "L_a_first", "L_firstF"], "L_walked"), "1": (["L_q", xo[0], "L_roleBF", xo[1]] + hk, "L_walked")}
    else:
        chains = {"0": (["L_q0_pub"], "L_walked"), "1": (["L_rdy"], "L_walked"),
                  "a": ([rb[0], "L_sub"], "L_walked2"), "b": (["L_first", "L_w2_first", "L_a_first", "L_firstF"], "L_walked2"),
                  "c": (["L_q", xo[0], "L_roleBF", xo[1]], "L_walked2"), "d": (hk + ISL, "L_walked2")}
    for c, (names, end) in chains.items():
        for k, n in enumerate(names):
            i = body.index(n + ":")
            j = i - 1
            while body[j].endswith(":") or body[j].startswith(";"): j -= 1
            assert body[j].startswith(("s_branch", "s_endpgm")), (n, body[j])
            nxt = f"L_walk{c}_{k+1}" if k + 1 < len(names) else end
            body[j+1:j+1] = [f"L_walk{c}_{k}:", f"s_branch {nxt}"]
DEFS = []
if OPT["shift"]: body = ["s_nop 0"] * OPT["shift"] + body
if OPT["al"]:
    sys.path.insert(0, "gen")
    import align
    body, DEFS, miss = align.align(body, "\n".join(out), "")
    print(f"align: {miss} wide instructions left off an 8-byte boundary", file=sys.stderr)
txt = "\n".join(body)
if True:
    sys.path.insert(0, "gen")
    import align as _al
    nbytes = sum(_al.sizes('.amdgcn_target "amdgcn-amd-amdhsa--gfx950"\n.text\n' + txt))
    assert nbytes <= OPT["pfl"] * 128 <= nbytes + 4096 - 256, nbytes
out.append(txt)
out.append(f""".p2align 8
.fill 1024, 4, 0xbf800000
s_endpgm
{chr(10).join(DEFS)}
.section .rodata,"a"
.p2align 6
.amdhsa_kernel {NAME}_kernel
  .amdhsa_next_free_vgpr {NVGPR}
  .amdhsa_next_free_sgpr 102
  .amdhsa_accum_offset 256
  .amdhsa_group_segment_fixed_size 0
  .amdhsa_kernarg_size 96
  .amdhsa_user_sgpr_count 2
  .amdhsa_user_sgpr_kernarg_segment_ptr 1
  .amdhsa_system_sgpr_workgroup_id_x 1
  .amdhsa_float_denorm_mode_32 3
.end_amdhsa_kernel""")
print("\n".join(out))
```

```python
import sys, math
OPT = dict(prof=0, fine="", nk1=6, nq=2, nv1=12, nw2=0, nsamp=3, nb1=3, nkb=2, q0t=0,  kal=0, walk=1, hskip=2, h4d=2, finb=1, one=1, pre=4, w2per=2, pvw=1, pv0=12, behb=0, bko=0, pal=6, po="b3b3b7", outw=1, fast=1, copies=2, pol=-1, rot=2, ra=2, rb=0, ldf="nt", pf=1,
           tmo=1 << 20, h3pos=4, h5pos=4, touch=1, depth=2, echo=-1, emul=2, hd="088", xnoclr=0, xnoq0=0, al=0, beh=0, pfj=31, shift=0, pfl=144)
for a in sys.argv[1:]:
    k, v = a.split("=")
    assert k in OPT, k
    OPT[k] = v if k in ("ldf", "fine", "po", "hd", "wpff") else int(v, 0)
NAME = "interleave_layers__sliding_block_cached__dense_activation_mish__decode"
LDF = "" if OPT["ldf"] == "plain" else OPT["ldf"].replace("+", " ")
PROF = OPT["prof"]

L = []; TAIL = []
def A(s):
    for ln in s.split("\n"):
        ln = ln.strip()
        if ln: L.append(ln)
def C(s):
    for ln in s.strip("\n").split("\n"): L.append("; " + ln.strip())
intail = [0]; npoll = [0]; ISL = []
class Tail:
    def __enter__(self):
        global L
        self.save = L; L = []; intail[0] += 1
    def __exit__(self, *e):
        global L
        TAIL.extend(L); L = self.save; intail[0] -= 1
_uid = [0]
def uid(p):
    _uid[0] += 1
    return f"L_{p}{_uid[0]}"
def vr(a, n=1): return f"v{a}" if n == 1 else f"v[{a}:{a+n-1}]"
def ar(a, n=1): return f"a{a}" if n == 1 else f"a[{a}:{a+n-1}]"
def sr(a, n=1): return f"s{a}" if n == 1 else f"s[{a}:{a+n-1}]"
DPPM = "row_mask:0xf bank_mask:0xf"
ROWRED = ["quad_perm:[1,0,3,2]", "quad_perm:[2,3,0,1]", "row_half_mirror", "row_mirror"]
def dpp(op, d, s, p): return f"{op}_dpp v{d}, v{s}, v{s} {p} {DPPM}"
def mfma(d, a, b, c): return f"v_mfma_f32_16x16x32_bf16 {d}, {a}, {b}, {c}"

PS = 0x100000
X1O, X2O = 0x00000, 0x10000
IB0 = 0x20000
QPo, HPo, S1o, QSo, HSo, H3o, H5o, OPo, MLo = 0x0000, 0x2000, 0x4400, 0x6800, 0x6880, 0x6900, 0x6980, 0x7000, 0xB000
REST = 0x7000 // 32
Q0B, Q0S = 0xA0000, 0x9000
EPO, RDY, RDY2, PROBE = 0x0F0000, 0x1B1000, 0x1B4000, 0x1C0000
STAMP = 0x200000
WSREC = 0x210000 if PROF else 0x200000
LV, LR, LWQ = 0, 65536, 135168
LW2, LOPS = LR + 32768, LWQ
LQ, LP, LM, LH, LMODE, LXS = 153600, 156800, 158080, 158144, 158784, 158848
LXP = LXS + 4608
LDS_BYTES = 163840
sX, sJ, sW, sPASS, sROLE, sMODE, sCOPY, sIB = 4, 5, 6, 7, 8, 9, 10, 11
rK, rV, rWQ, rWA, rW2, rWS, rXI, rB1, rOUT = 12, 16, 20, 24, 28, 32, 36, 40, 44
mATT, mLN = 48, 50
sT0, sT1, sT2, sT3, sT4, sCNT, sI, sXO = 52, 53, 54, 55, 56, 57, 58, 59
mODDR, sRG, sCG, sST = 60, 62, 63, 64
sE1, sQ0, mW0, mODDL, mROW3 = 68, 69, 70, 72, 90
sHALF, sCG9, sROT, sXCC = 96, 97, 98, 99
sHOOK = sROT
WS = sr(rWS, 4)
vL, vN, vG, vONE, vONE3 = 1, 2, 3, 4, 6
vKO, vJUNK, vCS, vC, vMU, vQ0 = 10, 59, 12, 14, 15, 60
vSEL, vR, vB, vS1 = 16, 20, 24, 26
(aX1, aX2, aXW, aXR, aXT, aS1, aS3, aQD, aQS,
 aQ1, aQ2, aQW, aQR, aPW, aMW, aPR, aMR, aOP, aHL,
 aRES, aO1, aML, aOW, aOR, aXS, aHS, aH1, aH2, aHW, aHW2, aHR) = range(28, 59)
aLW, aLR, vKEEP = 63, 13, 233
aB1, aB2, aBD = aO1, aML, aOW
t = 64
vK = 128
gX, gQ, gQS, gRES, gO, gML, gH, gHI, gX1 = 192, 200, 204, 208, 212, 220, 224, 232, 236
u = 240
cV, cWQ, cWA, cW2, cJUNK = 0, 64, 84, 116, 152
NVGPR = 256 + 160

def stamp(i):
    if PROF == 2 and i != 11: return
    if PROF == 3 and i not in (6, 10, 11): return
    if PROF == 4 and i not in (OPT['echo'] & 15, 11): return
    if PROF: A(f"s_memrealtime {sr(sST, 2)}\ns_lshr_b32 s3, s{sPASS}, 16\ns_add_u32 m0, s3, {i}\ns_waitcnt lgkmcnt(0)\nv_writelane_b32 v9, s{sST}, m0")
FREG = [74, 76, 78, 80, 82, 94, 84, 66, 70] if OPT['fine'] == 'pro' else [74, 76, 78, 80, 82, 92, 94, 84, 66]
fcount = [0]
def FS(stage):
    if OPT["fine"] == stage:
        A(f"s_memtime s[{FREG[fcount[0]]}:{FREG[fcount[0]]+1}]"); fcount[0] += 1

def srd(r, lo, hi, nbytes):
    if r != lo: A(f"s_mov_b32 s{r}, s{lo}")
    A(f"s_and_b32 s{r+1}, s{hi}, 0xffff\ns_mov_b32 s{r+2}, {nbytes}\ns_mov_b32 s{r+3}, 0x20000")
def mask64(reg, lo, hi): A(f"s_mov_b32 s{reg}, {lo:#x}\ns_mov_b32 s{reg+1}, {hi:#x}")
def sentinel_test(regs, tmp):
    regs = list(regs)
    if len(regs) == 1:
        A(f"v_cmp_eq_u32 vcc, -1, v{regs[0]}"); return
    if len(regs) % 2 == 0: A(f"v_max_u32 v{tmp}, v{regs[0]}, v{regs[1]}"); k = 2
    else: A(f"v_max3_u32 v{tmp}, v{regs[0]}, v{regs[1]}, v{regs[2]}"); k = 3
    while k < len(regs):
        A(f"v_max3_u32 v{tmp}, v{tmp}, v{regs[k]}, v{regs[k+1]}"); k += 2
    A(f"v_cmp_eq_u32 vcc, -1, v{tmp}")
def filler(n):
    for _ in range(n):
        A("s_nop 7")
def poll(loads, regs, tmp, depth=None, early="", test=None, hook=None):
    depth = depth or OPT["depth"]
    n = sum(1 for ln in loads.split("\n") if ln.strip().startswith("buffer_"))
    top = uid("poll")
    A(f"s_mov_b32 s{sCNT}, 0")
    for _ in range(depth - 1):
        A(loads); filler({2: 3, 3: 2}[depth])
    if OPT["pal"] and not intail[0] and depth > 1:
        k = npoll[0]; npoll[0] += 1
        A(f".p2align {OPT['pal']}")
        po = [int(c, 36) for c in OPT["po"]]
        for _ in range(po[k] if k < len(po) else 0): A("s_nop 0")
    A(f"{top}:")
    A(loads)
    A(f"s_add_u32 s{sCNT}, s{sCNT}, 1\ns_cmp_gt_u32 s{sCNT}, {OPT['tmo']}\ns_cbranch_scc1 L_end")
    if hook:
        hk, after = uid("hk"), uid("ha")
        A(f"s_cmp_lg_u32 s{sHOOK}, 0\ns_cbranch_scc1 {hk}")
        with Tail():
            A(f"{hk}:\ns_mov_b32 s{sHOOK}, 0"); hook(); A(f"s_waitcnt vmcnt(1)\ns_branch {after}")
    A(f"s_waitcnt vmcnt({(depth - 1)*n})")
    if hook: A(f"{after}:")
    assert depth == 1 or not early
    A(early)
    if test: A(test)
    else: sentinel_test(regs, tmp)
    if OPT["bko"] and depth == 1 and not intail[0]:
        bk = uid("bk")
        A(f"s_cbranch_vccnz {bk}")
        with Tail(): A(f"{bk}:\ns_sleep {OPT['bko']}\ns_branch {top}")
    else: A(f"s_cbranch_vccnz {top}")
def recheck(load, regs, tmp):
    retry, top, back = uid("rc"), uid("rct"), uid("rcb")
    sentinel_test(regs, tmp)
    A(f"s_cbranch_vccnz {retry}\n{back}:")
    with Tail():
        A(f"{retry}:\ns_mov_b32 s{sCNT}, 0\n{top}:\n{load}\ns_waitcnt vmcnt(0)")
        sentinel_test(regs, tmp)
        A(f"s_cbranch_vccz {back}\ns_add_u32 s{sCNT}, s{sCNT}, 1\ns_cmp_lt_u32 s{sCNT}, {OPT['tmo']}\ns_cbranch_scc1 {top}\ns_branch L_end")
def pub(store, mask):
    slow, back = uid("slow"), uid("back")
    A(f"s_cmp_eq_u32 s{sMODE}, 0\ns_mov_b64 exec, {mask}\ns_cbranch_scc1 {slow}\n{store}\n{back}:\ns_mov_b64 exec, -1")
    with Tail(): A(f"{slow}:\n{store} sc1\ns_branch {back}")
def pub_late(last, store, mask):
    slow, back = uid("slow"), uid("back")
    A(f"{last}\ns_cbranch_scc1 {slow}\n{store}\n{back}:\ns_mov_b64 exec, -1".replace("MASK", f"s_mov_b64 exec, {mask}").replace("MODE", f"s_cmp_eq_u32 s{sMODE}, 0"))
    with Tail(): A(f"{slow}:\n{store} sc1\ns_branch {back}")
def dma(rsrc, voff, soff, lds_s):
    A(f"s_mov_b32 m0, s{lds_s}\ns_nop 0\nbuffer_load_dwordx4 v{voff}, {sr(rsrc,4)}, s{soff} offen {LDF} lds")
def rowred_list(op, regs, steps=ROWRED):
    o = []
    for k, p in enumerate(steps):
        o += [dpp(op, r, r, p) for r in regs]
        if len(regs) < 3 and k < len(steps) - 1: o += ["s_nop 0"] * (3 - len(regs) - 0 if len(regs) == 1 else 1)
    return [x for x in o]
def rowred(op, regs):
    for p in ROWRED:
        for r in regs: A(dpp(op, r, r, p))
        if len(regs) < 3 and p != ROWRED[-1]: A(f"s_nop {2 - len(regs)}")
def weave(main, side, per, start=0):
    side = list(side)
    for k, m in enumerate(main):
        A(m)
        if k >= start:
            for _ in range(per):
                if side: A(side.pop(0))
    for s_ in side: A(s_)

def mfma_gap(need=8):
    n = 0
    for ln in reversed(L):
        if ln.startswith("v_mfma"): break
        if ln.endswith(":") or ln.startswith((".", ";")): continue
        if ln.startswith("s_memtime"): continue
        n += int(ln.split()[1]) + 1 if ln.startswith("s_nop") else 1
    if n < need: A(f"s_nop {need - n - 1}")
def pipeline(reads, mf, side=(), start=0, pre=None, between=None, per=2):
    reads = list(reads); side = list(side); pre = OPT["pre"] if pre is None else pre
    n = 0; done = -1
    for _ in range(min(pre, len(reads))): A(reads[n]); n += 1
    if between: between()
    for k, (m, need) in enumerate(mf):
        while n <= need: A(reads[n]); n += 1
        slots = per
        if need > done: A(f"s_waitcnt lgkmcnt({n - 1 - need})"); done = need
        A(m)
        if n < len(reads): A(reads[n]); n += 1; slots -= 1
        if k >= start:
            for _ in range(slots):
                if side: A(side.pop(0))
    for x in reads[n:]: A(x)
    for x in side: A(x)


DOC = """
x = x + Attn(LN(x)); x = x + MLP(LN(x)); twice, in one launch of 256 persistent workgroups (one per CU, 4 waves).
K/V window and all weights are read from HBM once and stay in registers / LDS for both passes.
wg = 8*j + x.  Group x (32 workgroups; one XCD with the usual placement) owns kv heads 2x, 2x+1 and hidden rows 576x..576x+575.
Every workgroup: q-projection piece (64 columns x 144 rows of wq) and attention over 256 keys for 2 heads.
Role A (j < 18): wo piece, then w2 piece.  Role B (18..29): w1 piece; nine of group 0 also write the result.  Role F (30, 31): services.
The residual stream travels as 16 bf16 partial rows (each carries x/16) that MFMA consumes as 16 A rows; LayerNorm is applied after
the GEMV: (x@W - mean*colsum(W)) * rstd, with sum and sum of squares handed on beside the partial sums.
Softmax: exact running maxima (wave -> workgroup -> head), partials rescaled by exp2(m - M).
Hand-offs through d_ws: each 32-bit word validates itself (0xffffffff = not written yet).  The slots are filled with that value during
this launch and announced with a word derived from the tag found at entry, so nothing an earlier launch left can be taken for data.
Inside a group plain stores are used only after checking (XCC_ID) that all 32 workgroups share one L2, write-through stores otherwise
(the first-pass q granules go out plain at once and are re-sent write-through as soon as a reader misses one or the check says so);
cross-die rows are always written through, in two copies (one near each IO die; which one to read is a speed-only choice).
All spins are bounded.  The short s_nop waits in front of some polls space out requests: reading a line just before its remote write
arrives makes that write slower.
"""
hdr = open("cdna_kernels/" + NAME + ".s.ref").read().split("; Override launch")[0]
out = [hdr.rstrip(), "; Override launch geometry by editing the next line (default: block=256,",
       "; grid=ceil(out_elems/256), lds=0). Harness parses it; keep it on one line.",
       f"; @launch grid=(256,1,1) block=(256,1,1) lds={LDS_BYTES}",
       '.amdgcn_target "amdgcn-amd-amdhsa--gfx950"', ".text", f".globl {NAME}_kernel"] + ([".p2align 12", f".fill {OPT['kal']*64 + 1}, 4, 0xbf810000"] if OPT["kal"] >= 0 else []) + [".p2align 8",
       f".type {NAME}_kernel,@function", f"{NAME}_kernel:"]

def wdma_voff(dst, rowbytes, kind):
    if kind == "std": A(f"v_bfe_u32 v{dst}, v{vL}, 4, 1\ns_and_b32 s{sT0}, s{sW}, 1\ns_lshl_b32 s{sT0}, s{sT0}, 1")
    else: A(f"v_lshrrev_b32 v{dst}, 5, v{vL}\ns_and_b32 s{sT0}, s{sW}, 2")
    A(f"""v_or_b32 v{dst}, s{sT0}, v{dst}
v_lshlrev_b32 v{dst}, 1, v{dst}
v_xor_b32 v{dst}, v{dst}, v{vL}
v_and_b32 v{dst}, 7, v{dst}
v_lshlrev_b32 v{dst}, 4, v{dst}
v_lshrrev_b32 v{dst+1}, 3, v{vL}
s_mov_b32 s{sT0}, {rowbytes}
v_mad_u32_u24 v{dst}, v{dst+1}, s{sT0}, v{dst}""")
def traddr_std(dst, base):
    A(f"""v_bfe_u32 v{dst}, v{vL}, 3, 2
v_xor_b32 v{dst}, s{sW}, v{dst}
v_lshlrev_b32 v{dst}, 5, v{dst}
v_and_b32 v{dst+1}, 3, v{vL}
v_lshl_add_u32 v{dst}, v{dst+1}, 3, v{dst}
v_bfe_u32 v{dst+1}, v{vL}, 2, 2
v_lshl_add_u32 v{dst}, v{dst+1}, 7, v{dst}
v_lshl_add_u32 v{dst}, v{vG}, 10, v{dst}
v_add_u32 v{dst}, {base}, v{dst}""")
def traddr_tail(dst, base):
    A(f"""v_bfe_u32 v{dst}, v{vL}, 3, 1
v_and_b32 v{dst+1}, 2, v{vG}
v_or_b32 v{dst}, v{dst}, v{dst+1}
v_xor_b32 v{dst}, s{sW}, v{dst}
v_lshlrev_b32 v{dst}, 5, v{dst}
v_and_b32 v{dst+1}, 3, v{vL}
v_lshl_add_u32 v{dst}, v{dst+1}, 3, v{dst}
v_lshrrev_b32 v{dst+1}, 2, v{vL}
v_lshl_add_u32 v{dst}, v{dst+1}, 7, v{dst}
v_add_u32 v{dst}, {base + 16384}, v{dst}""")
def tr_slice(dst, a_std, a_tail, off):
    for ks in range(4):
        for h in range(2): A(f"ds_read_b64_tr_b16 {ar(dst+4*ks+2*h,2)}, v{a_std} offset:{off+ks*4096+h*512}")
    A(f"ds_read_b64_tr_b16 {ar(dst+16,2)}, v{a_tail} offset:{off}")
def x_addr(dst, idx, rg_s, tmp):
    A(f"""v_mul_u32_u24 v{dst}, 3641, v{idx}
v_lshrrev_b32 v{dst}, 16, v{dst}
v_mul_u32_u24 v{tmp}, 18, v{dst}
v_sub_u32 v{tmp}, v{idx}, v{tmp}
v_lshlrev_b32 v{tmp}, 4, v{tmp}
v_and_b32 v{tmp+1}, 3, v{dst}
v_lshl_add_u32 v{tmp}, v{tmp+1}, 11, v{tmp}
v_lshrrev_b32 v{dst}, 2, v{dst}
v_lshl_add_u32 v{dst}, v{dst}, 14, v{tmp}
s_mul_i32 s{sT0}, s{rg_s}, 288
v_add_u32 v{dst}, s{sT0}, v{dst}""")

NK1, NKB, NQ, NV1, NW2, NB1 = OPT["nk1"], OPT["nkb"], OPT["nq"], OPT["nv1"], OPT["nw2"], OPT["nb1"]
sKM, sVM = 66, 67
if PROF: sKM, sVM = 86, 87
def srd2(r, nbytes): A(f"s_mov_b32 s{r+2}, {nbytes}\ns_mov_b32 s{r+3}, 0x20000")
def blk_m0(base, i, mask):
    return f"s_xor_b32 m0, s{base}, {i << 12}\ns_nop 0"
    hi = (i << 12) & ~mask
    return f"s_add_u32 s{sT4}, s{sROT}, {(i << 12) & mask}\ns_and_b32 s{sT4}, s{sT4}, {mask}\n" + (f"s_or_b32 s{sT4}, s{sT4}, {hi}\n" if hi else "") + f"s_add_u32 m0, s{sT4}, s{base}\ns_nop 0"
def kdma(i): A(blk_m0(sKM, i, 0xf000) + f"\nbuffer_load_dwordx4 v{vKO}, {sr(rK,4)}, m0 offen {LDF} lds")

C(DOC)
A("s_cmp_ge_u32 s2, 256\ns_cbranch_scc1 L_end")
if PROF: A(f"s_memrealtime {sr(sST,2)}\ns_memtime s[88:89]\nv_mov_b32 v9, 0")
FS("pro")
def PF():
    A(("s_cmp_lt_u32 s2, 248" if OPT["pfj"] else "s_cmp_ge_u32 s2, 8") + f"\ns_cbranch_scc1 L_nopf\ns_getpc_b64 s[100:101]\nL_pc:\nv_min_u32 v8, {OPT['pfl'] - 1}, v0\nv_lshlrev_b32 v8, 7, v8\nglobal_load_dword v8, v8, s[100:101]\nL_nopf:")
NK0 = 0
C("""---- prologue: ids, wq piece (column group 3 goes to workgroups with slack), x0, first K blocks -> LDS by DMA""")
A(f"""s_load_dwordx2 s[{rWQ}:{rWQ+1}], s[0:1], 24
s_load_dwordx2 s[{rXI}:{rXI+1}], s[0:1], 0
s_load_dwordx4 s[{rK}:{rK+3}], s[0:1], 8""")
if OPT["pf"]: PF()
A(f"""s_lshr_b32 s{sJ}, s2, 3
v_readfirstlane_b32 s{sW}, v0
v_lshrrev_b32 v{t+1}, 3, v0
v_lshrrev_b32 v{vG}, 4, v0""")
A(f"""s_mul_i32 s{sRG}, s{sJ}, 37
v_and_b32 v{t}, 2, v{t+1}
s_lshr_b32 s{sRG}, s{sRG}, 8
v_and_or_b32 v{t}, v{vG}, 4, v{t}
s_mul_i32 s{sT0}, s{sRG}, 7
v_xor_b32 v{t}, v{t}, v0
s_sub_u32 s{sCG}, s{sJ}, s{sT0}
v_and_b32 v{t}, 7, v{t}
s_cmp_ge_u32 s{sCG}, 3
v_lshlrev_b32 v{t}, 4, v{t}
s_addc_u32 s{sT0}, s{sCG}, 0
v_and_b32 v{t+1}, 7, v{t+1}
s_cmp_ge_u32 s{sJ}, 28
v_lshl_or_b32 v{t}, v{t+1}, 13, v{t}
s_cselect_b32 s{sRG}, s{sCG}, s{sRG}
s_cselect_b32 s{sCG}, 3, s{sT0}
v_and_b32 v{vL}, 63, v0
s_and_b32 s{sX}, s2, 7
s_mul_i32 s{sT1}, s{sRG}, {144*64}
s_lshl_b32 s{sT2}, s{sW}, 3
s_add_u32 s{sT1}, s{sT1}, s{sT2}
s_lshl_b32 s{sT2}, s{sX}, 3
s_add_u32 s{sT1}, s{sT1}, s{sT2}
s_add_u32 s{sT1}, s{sT1}, s{sCG}
s_lshl_b32 s{sT1}, s{sT1}, 7
s_lshl_b32 s{sVM}, s{sW}, 4
s_add_u32 s{sT2}, s{sVM}, {LWQ}
s_mov_b32 s{rWQ+3}, 0x20000
s_mov_b32 s{rWQ+2}, {576*4096*2}
s_mov_b32 s{rXI+3}, s{rWQ+3}
s_movk_i32 s{rXI+2}, 1152
s_lshr_b32 s{sW}, s{sW}, 6
s_cmp_lg_u32 s{sW}, 2
v_lshlrev_b32 v{t+2}, 4, v{vL}""")
FS("pro")
A(f"""s_waitcnt lgkmcnt(0)
s_cbranch_scc1 L_nox0
buffer_load_dwordx4 {vr(gX,4)}, v{t+2}, {sr(rXI,4)}, 0 offen
buffer_load_dwordx4 {vr(gX+4,4)}, v{t+2}, {sr(rXI,4)}, 0 offen offset:1024
L_nox0:""")
for i in range(4):
    A(f"s_add_u32 m0, s{sT2}, {i*4096}\n" + (f"s_add_u32 s{sT1}, s{sT1}, {32*8192}" if i else f"s_cmp_ge_u32 s{sW}, 2") + f"\nbuffer_load_dwordx4 v{t}, {sr(rWQ,4)}, s{sT1} offen {LDF} lds")
A(f"""s_cmp_ge_u32 s{sW}, 2
s_cbranch_scc1 L_wq4
s_add_u32 m0, s{sT2}, {16*1024}
s_add_u32 s{sT1}, s{sT1}, {32*8192}
buffer_load_dwordx4 v{t}, {sr(rWQ,4)}, s{sT1} offen {LDF} lds
L_wq4:""")
FS("pro")
ROTC = f"s_lshl_b32 s{sROT}, s{sX}, 13" if (OPT["ra"], OPT["rb"]) == (2, 0) else f"s_mul_i32 s{sROT}, s{sX}, {OPT['ra']}\ns_mul_i32 s{sT1}, s{sJ}, {OPT['rb']}\ns_add_u32 s{sROT}, s{sROT}, s{sT1}\ns_and_b32 s{sROT}, s{sROT}, 15\ns_lshl_b32 s{sROT}, s{sROT}, 12"
A(f"""s_load_dwordx2 s[{rWS}:{rWS+1}], s[0:1], 88
v_and_b32 v{vN}, 15, v0
v_and_b32 v{vKO}, 15, v{vG}
s_lshl_b32 s{sT3}, s{sX}, 24
v_xor_b32 v{vKO}, v{vKO}, v{vN}
s_lshr_b32 s{sT0}, s{sJ}, 4
v_lshlrev_b32 v{vKO}, 4, v{vKO}
s_mul_i32 s{sT0}, s{sT0}, {(1 << 23) - (16 << 16)}
v_and_b32 v{vG}, 3, v{vG}
s_lshl_b32 s{sT1}, s{sJ}, 16
v_lshl_or_b32 v{vKO}, v{vG}, 8, v{vKO}
s_add_u32 s{sT0}, s{sT0}, s{sT3}
s_add_u32 s{sT0}, s{sT0}, s{sT1}
s_add_u32 s{sCNT}, s{sT0}, {28672*256 - LR}
{ROTC}
s_add_u32 s{sKM}, s{sVM}, s{sROT}
s_add_u32 s{sKM}, s{sKM}, {LR}
s_add_u32 s{rV}, s14, s{sCNT}
s_addc_u32 s{rV+1}, s15, 0
s_add_u32 s{rK}, s12, s{sCNT}
s_addc_u32 s{rK+1}, s13, 0""")
srd2(rK, LR + 65536)
for i in range(NK1): kdma(i)
FS("pro")
A("s_waitcnt lgkmcnt(0)")
srd2(rWS, WSREC)
A(f"""s_add_u32 s{rV}, s{rV}, {LR}
s_addc_u32 s{rV+1}, s{rV+1}, 0
s_and_b32 s{sT0}, s{sROT}, 0x7000
s_add_u32 s{sVM}, s{sVM}, s{sT0}
s_load_dwordx2 s[{rWA}:{rWA+1}], s[0:1], 32
s_load_dwordx2 s[92:93], s[0:1], 48
s_load_dwordx2 s[{rB1}:{rB1+1}], s[0:1], 56
s_load_dwordx2 s[{rW2}:{rW2+1}], s[0:1], 64
s_load_dwordx2 s[{rOUT}:{rOUT+1}], s[0:1], 72""")
A(f"s_mov_b32 s{sT1}, {EPO}\ns_buffer_load_dword s{sE1}, {WS}, s{sT1}")
A(f"""s_lshl_b32 s{sIB}, s{sX}, 16
s_add_u32 s{sIB}, s{sIB}, {IB0}
s_mul_i32 s{sQ0}, s{sX}, {Q0S}
s_add_u32 s{sQ0}, s{sQ0}, {Q0B}
s_mov_b32 s{sPASS}, 0""")
if PROF: A(f"v_writelane_b32 v9, s{sST}, 0")
traddr_std(t, LWQ); traddr_tail(t+2, LWQ)
FA = t + 8
A(f"""v_mov_b32 v{FA+16}, 0
v_mov_b32 v{FA+17}, 0
v_mov_b32 v{FA+18}, 0
v_mov_b32 v{FA+19}, 0
v_lshlrev_b32 v{aXW}, 4, v0
v_add_u32 v{aXW}, {LXS}, v{aXW}
ds_write_b128 v{aXW}, {vr(FA+16,4)} offset:512
v_mul_u32_u24 v{aXR}, 288, v{vN}
v_lshl_add_u32 v{aXT}, v{vG}, 3, v{aXR}
v_add_u32 v{aXT}, {LXS + 256}, v{aXT}
v_lshl_add_u32 v{aXR}, v{vG}, 4, v{aXR}
v_add_u32 v{aXR}, {LXS}, v{aXR}
v_mov_b32 v{aS1}, v{aXR}
v_mov_b32 v{aS3}, v{aXR}
s_lshl_b32 s{sT0}, s{sCG}, 10
s_lshl_b32 s{sT1}, s{sW}, 8
s_add_u32 s{sT0}, s{sT0}, s{sT1}
s_lshl_b32 s{sT1}, s{sRG}, 2
s_add_u32 s{sT0}, s{sT0}, s{sT1}
v_lshl_add_u32 v{aQD}, v{vN}, 4, s{sT0}
s_cmp_lg_u32 s{sW}, 2
s_cbranch_scc1 L_pwx""")
NCLR = 4
C("""wave 2: mean / variance of x0; row 0 of the LDS image = x0 - mean""")
xf, z1, z2 = t + 40, u + 4, u + 5
A(f"""v_mov_b32 v{z1}, 0
v_mov_b32 v{z2}, 0
v_mov_b32 v{u+6}, 0x3f803f80
v_lshlrev_b32 v{t+4}, 4, v{vL}
v_add_u32 v{t+4}, {LXS}, v{t+4}
s_mov_b32 exec_lo, 0xfffc0000
s_mov_b32 exec_hi, 0
ds_write_b128 v{t+4}, {vr(FA+16,4)}
s_mov_b64 exec, -1
s_mul_i32 s{sT0}, s{sRG}, 18
s_lshl_b32 s{sT1}, s{sT0}, 4
v_subrev_u32 v{t+5}, s{sT1}, v{t+4}
s_mov_b64 {sr(sT2,2)}, 0x3ffff
s_lshl_b64 {sr(sT2,2)}, {sr(sT2,2)}, s{sT0}
s_waitcnt vmcnt({4 + NK1 - NK0})""")
for k in range(8): A(f"v_dot2c_f32_bf16 v{z1}, v{gX+k}, v{u+6}\nv_dot2c_f32_bf16 v{z2}, v{gX+k}, v{gX+k}")
for k in range(4): A(f"v_lshlrev_b32 v{xf+2*k}, 16, v{gX+k}\nv_and_b32 v{xf+2*k+1}, 0xffff0000, v{gX+k}")
rowred("v_add_f32", [z1, z2])
for sw in ("16", "32"):
    A(f"v_mov_b32 v{u+6}, v{z1}\nv_mov_b32 v{u+7}, v{z2}\ns_nop 0\nv_permlane{sw}_swap_b32 v{z1}, v{u+6}\nv_permlane{sw}_swap_b32 v{z2}, v{u+7}\nv_add_f32 v{z1}, v{z1}, v{u+6}\nv_add_f32 v{z2}, v{z2}, v{u+7}")
A(f"v_mul_f32 v{u+6}, {1/576:.9e}, v{z1}")
for k in range(8): A(f"v_sub_f32 v{xf+k}, v{xf+k}, v{u+6}")
for k in range(4): A(f"v_cvt_pk_bf16_f32 v{xf+k}, v{xf+2*k}, v{xf+2*k+1}")
A(f"""v_fma_f32 v{z2}, -v{u+6}, v{z1}, v{z2}
v_mov_b32 v{u+7}, {LMODE}
v_mul_f32 v{z2}, 0x3d800000, v{z2}
s_mov_b64 exec, {sr(sT2,2)}
ds_write_b128 v{t+5}, {vr(xf,4)}
ds_write2_b32 v{u+7}, v{z2}, v{FA+16} offset0:0 offset1:1
s_mov_b64 exec, -1
s_cmp_lg_u32 s{sRG}, 3
s_cbranch_scc1 L_x0d""")
for k in range(4): A(f"v_lshlrev_b32 v{xf+8+2*k}, 16, v{gX+4+k}\nv_and_b32 v{xf+8+2*k+1}, 0xffff0000, v{gX+4+k}")
for k in range(8): A(f"v_sub_f32 v{xf+8+k}, v{xf+8+k}, v{u+6}")
for k in range(4): A(f"v_cvt_pk_bf16_f32 v{xf+8+k}, v{xf+8+2*k}, v{xf+8+2*k+1}")
A(f"s_mov_b64 exec, 0xff\nds_write_b128 v{t+4}, {vr(xf+8,4)} offset:160\ns_mov_b64 exec, -1\nL_x0d:")
for i in range(NK1, NK1 + NKB): kdma(i)
A(f"s_waitcnt vmcnt({NK1 - NK0 + NKB})\nL_bar1:")
FS("pro")
A(f"s_waitcnt lgkmcnt(0)\ns_barrier")
NEAR = []
with Tail():
    A(f"L_pwx:\ns_cmp_eq_u32 s{sW}, {7 if OPT['xnoclr'] else 3}\ns_cbranch_scc1 L_pw3")
    if OPT["q0t"]:
        A(f"s_lshl_b32 s{sT1}, s{sJ}, 9\ns_lshl_b32 s{sT2}, s{sW}, 8\ns_add_u32 s{sT1}, s{sT1}, s{sT2}\nv_lshl_add_u32 v{t+6}, v{vL}, 7, s{sT1}\ns_mov_b64 exec, 3\nbuffer_load_dword v8, v{t+6}, {WS}, s{sQ0} offen sc1\ns_mov_b64 exec, -1")
    for i in range(NK1, NK1 + NKB): kdma(i)
    if OPT["walk"]: A(f"s_cmp_eq_u32 s{sW}, 0\ns_cbranch_scc1 L_walk0_0\ns_branch L_walk1_0\nL_walked:")
    A(f"s_waitcnt vmcnt({NK1 - NK0 + NKB + (1 if OPT['q0t'] else 0)})\ns_branch L_bar1")
    q4 = vr(u, 4)
    C("""wave 3: sentinel fill of the first-pass slots (write-through)""")
    A("L_pw3:")
    for r in range(4): A(f"v_mov_b32 v{u+r}, -1")
    A(f"""s_mul_i32 s{sT1}, s{sJ}, {REST}
v_lshl_add_u32 v{t+6}, v{vL}, 4, s{sT1}
s_lshl_b32 s{sT1}, s{sJ}, 9
s_add_u32 s{sT1}, s{sT1}, {OPo}
v_lshl_add_u32 v{t+7}, v{vL}, 4, s{sT1}
s_lshl_b32 s{sT1}, s{sJ}, 6
s_add_u32 s{sT1}, s{sT1}, {MLo - 512}
v_lshl_add_u32 v{t+8}, v{vL}, 4, s{sT1}
v_cmp_gt_u32 vcc, 32, v{vL}
s_lshl_b32 s{sT1}, s2, 9
v_lshl_add_u32 v{t+9}, v{vL}, 4, s{sT1}
v_cndmask_b32 v{t+7}, v{t+8}, v{t+7}, vcc
s_lshr_b32 s{sT1}, s2, 6
s_lshl_b32 s{sT1}, s{sT1}, 14
s_and_b32 s{sT2}, s2, 63
s_lshl_b32 s{sT2}, s{sT2}, 7
s_add_u32 s{sT1}, s{sT1}, s{sT2}
s_add_u32 s{sT1}, s{sT1}, {PROBE}
v_lshl_add_u32 v{t+8}, v{vL}, 4, s{sT1}
v_lshrrev_b32 v{t+10}, 3, v{vL}
v_mul_u32_u24 v{t+10}, {0x2000 - 128}, v{t+10}
v_add_u32 v{t+8}, v{t+8}, v{t+10}
s_mov_b32 exec_hi, 0xf
buffer_store_dwordx4 {q4}, v{t+7}, {WS}, s{sIB} offen sc1
s_mov_b32 exec_hi, {(1 << (REST//16 - 32)) - 1:#x}
buffer_store_dwordx4 {q4}, v{t+6}, {WS}, s{sIB} offen sc1
s_and_b32 s{sT1}, s2, 3
s_cmp_eq_u32 s{sT1}, 2
s_cselect_b32 s{sT2}, 0xff, -1
s_cmp_eq_u32 s{sT1}, 3
s_cselect_b32 exec_lo, 1, s{sT2}
s_mov_b32 exec_hi, 0
buffer_store_dwordx4 {q4}, v{t+9}, {WS}, 0 offen sc1
s_mov_b32 exec_lo, 0xffff
buffer_store_dwordx4 {q4}, v{t+8}, {WS}, 0 offen sc1
s_mov_b64 exec, -1""")
    for i in range(NK1, NK1 + NKB): kdma(i)
    A(f"s_waitcnt vmcnt({NK1 - NK0 + NKB + NCLR})\ns_branch L_bar1")
NEAR = TAIL[:]; del TAIL[:]
stamp(2); FS("pro")
tr_slice(cWQ, t, t+2, 0)
A(f"s_and_b32 s{sE1}, s{sE1}, -16\ns_add_u32 s{sE1}, s{sE1}, 16")
A("s_branch L_q_reads")
L.extend(NEAR)

HD = dict(zip(("q", "w1", "fin"), [int(c, 36) for c in OPT["hd"]]))
def hint_wait(imm, site):
    skip = uid("hs")
    A(f"s_cmp_lg_u32 s{sW}, 3\ns_cbranch_scc1 {skip}")
    poll(f"buffer_load_dword v{gHI}, v{aHL}, {WS}, s{sI} offen offset:{imm} sc1", [gHI], None)
    if HD[site]:
        A(f"s_cmp_lt_u32 s{sCNT}, {OPT['hskip']}\ns_cbranch_scc1 {skip}"); filler(HD[site])
    A(f"{skip}:\ns_barrier")
def w1_colsum():
    ACC = t + 40
    for r in range(4): A(f"v_mov_b32 v{t+28+r}, v{vONE}")
    A(f"v_mov_b32 v{t+32}, 0\nv_mov_b32 v{t+33}, 0\nv_mov_b32 v{t+34}, v{vONE}\nv_mov_b32 v{t+35}, v{vONE}\nv_cmp_eq_u32 vcc, 2, v{vG}\ns_waitcnt lgkmcnt(0)")
    for ks in range(5):
        for c in range(3):
            A(mfma(vr(ACC+4*c,4), vr(t+28 if ks < 4 else t+32,4), ar(cWA+18*c+(4*ks if ks < 4 else 14),4), "0" if ks == 0 else vr(ACC+4*c,4)))
    A(f"s_mov_b32 s{sT2}, -1\ns_mov_b32 s{sT3}, 0xffff\ns_nop 4\nv_cndmask_b32 v{ACC}, v{ACC}, v{ACC+4}, vcc\nv_cndmask_b32 v{vS1}, v{ACC}, v{ACC+8}, {sr(mODDR,2)}")
    pub(f"buffer_store_dword v{vS1}, v{vS1+1}, {WS}, s{sI} offen", sr(sT2,2))
def x_gather(a1, a2, stg, imm):
    other, join = uid("xo"), uid("xj")
    l1 = f"buffer_load_dwordx4 {vr(gX,4)}, v{a1}, {WS}, s{sXO} offen sc1"
    l2 = f"buffer_load_dwordx4 {vr(gX+4,4)}, v{a2}, {WS}, s{sXO} offen sc1"
    w1 = f"ds_write_b128 v{aXW}, {vr(gX,4)}"
    w2 = f"s_mov_b32 exec_hi, 0\nds_write_b128 v{aXW}, {vr(gX+4,4)} offset:4096\ns_mov_b32 exec_hi, -1"
    A(f"s_cmp_lg_u32 s{sW}, 0\ns_cbranch_scc1 {other}\ns_barrier")
    hook = w1_colsum if stg == "w1" else None
    poll(l1 + "\n" + l2, range(gX, gX+8), u, 1, w1 + "\n" + w2, hook=hook)
    FS(stg)
    A(f"s_branch {join}\n{other}:")
    if stg == "q": A(f"v_mov_b32 v{u+12}, s{sE1}")
    hint_wait(imm, stg)
    stamp(12 if stg == "q" else 7)
    if stg == "q":
        A(f"s_cmp_eq_u32 s{sW}, 1\nL_xq1_top:\n{l1}\ns_cbranch_scc0 L_xq1_a\nbuffer_load_dword v{u+12}, v{u+14}, {WS}, s{sCOPY} offen sc1\nL_xq1_a:")
        A(f"s_add_u32 s{sCNT}, s{sCNT}, 1\ns_cmp_gt_u32 s{sCNT}, {OPT['tmo']}\ns_cbranch_scc1 L_end\ns_cmp_eq_u32 s{sW}, 1\ns_waitcnt vmcnt(0)\n{w1}")
        A(f"v_cmp_ne_u32 {sr(sT0,2)}, s{sE1}, v{u+12}\nv_max_u32 v{u}, v{gX}, v{gX+1}\nv_max3_u32 v{u}, v{u}, v{gX+2}, v{gX+3}\nv_cndmask_b32 v{u}, v{u}, -1, {sr(sT0,2)}")
        A(f"v_cmp_eq_u32 vcc, -1, v{u}\ns_cbranch_vccnz L_xq1_top")
    else: poll(l1, range(gX, gX+4), u, 1, w1, hook=hook)
    A(f"{join}:\ns_waitcnt lgkmcnt(0)\ns_barrier")
    FS(stg)
FSt, ACC, SAC = t + 28, t + 40, t + 52
def stat_reads(): A(f"ds_read_b64_tr_b16 {vr(FSt,2)}, v{aS1}\nds_read_b64_tr_b16 {vr(FSt+2,2)}, v{aS1} offset:128\nds_read_b64_tr_b16 {vr(FSt+4,2)}, v{aS3}")
def frag_reads():
    for ks in range(4): A(f"ds_read_b128 {vr(FA+4*ks,4)}, v{aXR} offset:{ks*64}")
    A(f"ds_read_b64 {vr(FA+18,2)}, v{aXT}")
stat_mfma = [f"v_mfma_f32_16x16x16_bf16 {vr(SAC+4*k,4)}, {vr(vONE if k < 2 else vONE3,2)}, {vr(FSt+2*k,2)}, 0" for k in range(3)]
s1, s2 = u + 2, u + 3
stat_valu = [f"v_add_f32 v{s1}, v{SAC}, v{SAC+4}", f"v_mul_f32 v{s2}, v{SAC}, v{SAC}", f"v_add_f32 v{s1}, v{s1}, v{SAC+8}",
             f"v_fmac_f32 v{s2}, v{SAC+4}, v{SAC+4}", f"v_fmac_f32 v{s2}, v{SAC+8}, v{SAC+8}", "s_nop 0"]
for k, p in enumerate(ROWRED): stat_valu += ["s_nop 0", dpp("v_add_f32", s1, s1, p), dpp("v_add_f32", s2, s2, p)]
def main_mfma(nt, w, base):
    return [(mfma(vr(ACC+4*k,4), vr(FA+4*ks,4), ar(w+18*k+(4*ks if ks < 4 else 14),4), "0" if ks == 0 else vr(ACC+4*k, 4)), base + ks) for ks in range(5) for k in range(nt)]
frag_list = [f"ds_read_b128 {vr(FA+4*ks,4)}, v{aXR} offset:{ks*64}" for ks in range(4)] + [f"ds_read_b64 {vr(FA+18,2)}, v{aXT}"]
stat_list = [f"ds_read_b64_tr_b16 {vr(FSt,2)}, v{aS1}", f"ds_read_b64_tr_b16 {vr(FSt+2,2)}, v{aS1} offset:128", f"ds_read_b64_tr_b16 {vr(FSt+4,2)}, v{aS3}"]

C("""==== q projection (second pass enters here, first pass at L_q_reads)""")
A("L_q:")
A(f"v_and_b32 v{u+14}, 7, v{vN}\nv_lshlrev_b32 v{u+14}, 2, v{u+14}\nv_add_u32 v{u+14}, {RDY2}, v{u+14}")
A(f"s_add_u32 s{sXO}, s{sCOPY}, {X2O}\ns_mov_b32 s{sCNT}, 0")
x_gather(aX1, aX2, "q", 128)
stamp(13)
A(f"s_mov_b32 s{sPASS}, {PS}\nL_q_reads:")
pipeline(frag_list + stat_list, main_mfma(1, cWQ, 0), between=lambda: A(f"s_add_u32 s{sI}, s{sIB}, s{sPASS}"))
FS("q")
a = ACC
A(f"""s_cmp_eq_u32 s{sPASS}, 0
s_nop 6
v_add_f32 v{a}, v{a}, v{a+1}
v_add_f32 v{a+2}, v{a+2}, v{a+3}
v_add_f32 v{a}, v{a}, v{a+2}
v_mov_b32 v{a+1}, v{a}
s_nop 1
v_permlane32_swap_b32 v{a}, v{a+1}
v_add_f32 v{a}, v{a}, v{a+1}
v_mov_b32 v{a+1}, v{a}
s_cbranch_scc1 L_q0_pub""")
FS("q")
pub_late(f"MODE\nv_permlane16_swap_b32 v{a}, v{a+1}\nMASK\nv_add_f32 v{a}, v{a}, v{a+1}", f"buffer_store_dword v{a}, v{aQD}, {WS}, s{sI} offen", "0xffff")
FS("q")
A("s_waitcnt lgkmcnt(0)")
for m in stat_mfma: A(m)
A("s_nop 6")
for x in stat_valu: A(x)
A(f"s_cmp_eq_u32 s{sCG}, 0\ns_cselect_b64 {sr(sT2,2)}, 1, 0")
pub(f"buffer_store_dwordx2 {vr(s1,2)}, v{aQS}, {WS}, s{sI} offen", sr(sT2,2))
FS("q")
A("L_att_poll:")

with Tail():
    C("""---- first pass: q partials leave as {value, tag} granules; rest of K, V; ready word; gather of q; remaining addresses""")
    A(f"L_q0_pub:\ns_nop 0\nv_permlane16_swap_b32 v{a}, v{a+1}\nv_add_f32 v{vQ0}, v{a}, v{a+1}")
    q0store = f"buffer_store_dwordx2 {vr(vQ0,2)}, v{vQ0+2}, {WS}, s{sQ0} offen"
    A(f"""v_mov_b32 v{vQ0+1}, s{sE1}
v_lshlrev_b32 v{vQ0+2}, 1, v{aQD}
s_mov_b64 exec, 0xffff
{q0store}
s_mov_b64 exec, -1""")
    for i in range(NK1 + NKB, 16): kdma(i)
    vo = u + 12
    A(f"""s_and_b32 s{sT0}, s{sW}, 1
s_lshl_b32 s{sT0}, s{sT0}, 1
v_and_b32 v{vo}, 1, v{vG}
v_or_b32 v{vo}, s{sT0}, v{vo}
v_lshlrev_b32 v{vo}, 1, v{vo}
v_xor_b32 v{vo}, v{vo}, v{vN}
v_lshlrev_b32 v{vo}, 4, v{vo}
v_lshl_add_u32 v{vo}, v{vG}, 8, v{vo}
s_lshr_b32 s{sT0}, s{sROT}, 5
s_and_b32 s{sT0}, s{sT0}, 128
v_xor_b32 v{vo}, s{sT0}, v{vo}
v_xor_b32 v{vo+1}, 128, v{vo}""")
    srd2(rV, 65536)
    def vdma(i): A(blk_m0(sVM, i, 0x7000) + f"\nbuffer_load_dwordx4 v{vo + (i & 1)}, {sr(rV,4)}, m0 offen {LDF} lds")
    for i in range(NQ): vdma(i)
    A(f"""s_getreg_b32 s{sXCC}, hwreg(HW_REG_XCC_ID)
s_and_b32 s{sXCC}, s{sXCC}, 7
s_cmp_lg_u32 s{sW}, 3
s_cbranch_scc1 L_nordy
s_lshl_b32 s{sT0}, s{sX}, 7
s_lshl_b32 s{sT1}, s{sJ}, 2
s_add_u32 s{sT0}, s{sT0}, s{sT1}
s_add_u32 s{sT0}, s{sT0}, {RDY}
v_mov_b32 v{u+14}, s{sT0}
s_or_b32 s{sT0}, s{sE1}, s{sXCC}
v_mov_b32 v{u+15}, s{sT0}
s_mov_b64 exec, 1
s_waitcnt vmcnt({16 - NK1 + NQ + 1})
buffer_store_dword v{u+15}, v{u+14}, {WS}, 0 offen sc1
s_mov_b64 exec, -1
L_nordy:
s_lshr_b32 s{sT0}, s{sJ}, 4
s_lshl_b32 s{sT0}, s{sT0}, 12
v_lshl_add_u32 v{aQ1}, v0, 4, s{sT0}
v_lshlrev_b32 v{t}, 1, v{aQ1}""")
    g0 = t + 28
    q0loads = f"""buffer_load_dwordx4 {vr(g0,4)}, v{t}, {WS}, s{sQ0} offen sc1
buffer_load_dwordx4 {vr(g0+4,4)}, v{t}, {WS}, s{sQ0} offen offset:16 sc1"""
    if OPT["xnoq0"] < 1: A(q0loads)
    for i in range(NQ, NV1): vdma(i)
    srd2(rW2, 4608*576*2); srd2(rB1, 4608*2); srd2(rOUT, 1152)
    A(f"""s_mov_b32 s{sMODE}, 0
s_mov_b32 s{sCOPY}, 0
s_mov_b32 s{sI}, s{sIB}
s_cmp_ge_u32 s{sJ}, 18
s_cselect_b32 s{sROLE}, 1, 0
s_cselect_b32 s{rWA}, s92, s{rWA}
s_cselect_b32 s{rWA+1}, s93, s{rWA+1}
s_mov_b32 s{rWA+2}, {4096*576*2}
s_cselect_b32 s{rWA+2}, {576*4608*2}, s{rWA+2}
s_mov_b32 s{rWA+3}, 0x20000
s_cmp_ge_u32 s{sJ}, 30
s_cselect_b32 s{sROLE}, 2, s{sROLE}
s_cmp_ge_u32 s{sJ}, 9
s_cselect_b32 s{sHALF}, 1, 0
s_mul_i32 s{sT0}, s{sHALF}, 9
s_sub_u32 s{sCG9}, s{sJ}, s{sT0}
s_sub_u32 s{sT0}, s{sJ}, 18
s_and_b32 s{sT1}, s{sT0}, 3
s_lshr_b32 s{sT0}, s{sT0}, 2
s_and_b32 s{sT0}, s{sT0}, 3
s_cmp_eq_u32 s{sROLE}, 0
s_cselect_b32 s{sHALF}, s{sHALF}, s{sT1}
s_cselect_b32 s{sCG9}, s{sCG9}, s{sT0}
v_mov_b32 v{vONE}, 0x3f803f80
v_mov_b32 v{vONE+1}, 0x3f803f80
s_cmp_eq_u32 s{sW}, 0
s_cselect_b32 s{sT0}, 0x3f803f80, 0
s_cselect_b64 {sr(mW0,2)}, 1, 0
v_mov_b32 v{vONE3}, s{sT0}
v_mov_b32 v{vONE3+1}, s{sT0}
v_mov_b32 v{vJUNK}, {1/576:.9e}""")
    mask64(mODDR, 0xffff0000, 0xffff0000); mask64(mODDL, 0xaaaaaaaa, 0xaaaaaaaa); mask64(mROW3, 0, 0xffff0000)
    c1, c2, CS = t + 40, t + 44, t + 48
    for r in range(4): A(f"v_mov_b32 v{c1+r}, v{vONE}")
    A(f"v_mov_b32 v{c2}, 0\nv_mov_b32 v{c2+1}, 0\nv_mov_b32 v{c2+2}, v{vONE}\nv_mov_b32 v{c2+3}, v{vONE}")
    for r in list(range(aRES, aHR + 1)) + [vS1 + 1, aLW, aLR]: A(f"v_mov_b32 v{r}, 0")
    for ks in range(4): A(mfma(vr(CS,4), vr(c1,4), ar(cWQ+4*ks,4), "0" if ks == 0 else vr(CS,4)))
    A(mfma(vr(CS,4), vr(c2,4), ar(cWQ+14,4), vr(CS,4)))
    A(f"""v_lshrrev_b32 v{aS3}, 2, v{vL}
v_mul_u32_u24 v{aS3}, 288, v{aS3}
v_and_b32 v{aS1}, 3, v{vL}
v_lshl_add_u32 v{aS3}, v{aS1}, 3, v{aS3}
s_lshl_b32 s{sT0}, s{sW}, 5
s_add_u32 s{sT0}, s{sT0}, {LXS}
v_add_u32 v{aS1}, s{sT0}, v{aS3}
v_add_u32 v{aS3}, {LXS + 256}, v{aS3}
s_lshl_b32 s{sT0}, s{sRG}, 5
s_lshl_b32 s{sT1}, s{sW}, 3
s_add_u32 s{sT0}, s{sT0}, s{sT1}
s_add_u32 s{sT0}, s{sT0}, {QSo}
v_mov_b32 v{aQS}, s{sT0}
v_lshrrev_b32 v{t+4}, 7, v0
v_mul_u32_u24 v{t+4}, 128, v{t+4}
v_lshl_add_u32 v{aQW}, v0, 1, v{t+4}
v_add_u32 v{aQW}, {LQ}, v{aQW}
ds_write_b16 v{aQW}, v{c2} offset:1600
ds_write_b16 v{aQW}, v{c2} offset:2400
v_mov_b32 v{t+4}, {LMODE}
ds_read_b32 v{gQS+1}, v{t+4}
v_mov_b32 v{gQS}, 0
v_mov_b32 v{vCS}, v{CS}""")
    A(f"v_add_u32 v{t+3}, 256, v{vL}\nv_min_u32 v{t+3}, 287, v{t+3}")
    x_addr(aX1, 0, sRG, t+4); x_addr(aX2, t+3, sRG, t+4)
    A(f"""v_lshlrev_b32 v{aQ2}, 3, v{vN}
v_add_u32 v{aQ2}, {QSo}, v{aQ2}
v_lshrrev_b32 v{t+4}, 3, v{vN}
v_mul_u32_u24 v{aPR}, 640, v{t+4}
v_mul_u32_u24 v{aQR}, 384, v{t+4}
v_and_b32 v{t+4}, 3, v{vN}
v_mul_u32_u24 v{t+5}, 800, v{t+4}
v_add_u32 v{aQR}, v{aQR}, v{t+5}
v_lshl_add_u32 v{aQR}, v{vG}, 4, v{aQR}
v_add_u32 v{aQR}, {LQ}, v{aQR}
v_lshl_add_u32 v{aPR}, v{vG}, 4, v{aPR}
v_add_u32 v{aPR}, {LP}, v{aPR}
v_lshrrev_b32 v{t+5}, 5, v{vL}
v_mul_u32_u24 v{aPW}, 640, v{t+5}
v_and_b32 v{aMW}, 31, v{vL}
v_lshl_add_u32 v{aPW}, v{aMW}, 2, v{aPW}
s_lshl_b32 s{sT0}, s{sW}, 7
s_add_u32 s{sT0}, s{sT0}, {LP}
v_add_u32 v{aPW}, s{sT0}, v{aPW}
v_lshlrev_b32 v{aMR}, 4, v{t+5}
s_lshl_b32 s{sT0}, s{sW}, 2
s_add_u32 s{sT0}, s{sT0}, {LM}
v_add_u32 v{aMW}, s{sT0}, v{aMR}
v_lshl_add_u32 v{aMR}, v{t+4}, 2, v{aMR}
v_add_u32 v{aMR}, {LM}, v{aMR}
v_min_u32 v{aHL}, 17, v{vL}
v_lshlrev_b32 v{aHL}, 2, v{aHL}
v_add_u32 v{aHL}, {H3o}, v{aHL}""")
    A(f"""s_lshl_b32 s{sT0}, s{sJ}, 9
s_lshl_b32 s{sT1}, s{sW}, 6
s_add_u32 s{sT0}, s{sT0}, s{sT1}
s_add_u32 s{sT0}, s{sT0}, {OPo}
v_lshlrev_b32 v{aOP}, 8, v{t+5}
v_lshl_add_u32 v{aOP}, v{vN}, 2, v{aOP}
v_add_u32 v{aOP}, s{sT0}, v{aOP}
s_lshl_b32 s{sT0}, s{sJ}, 6
s_add_u32 s{sT0}, s{sT0}, {MLo}
s_lshl_b32 s{sT1}, s{sW}, 2
s_add_u32 s{sT1}, s{sT1}, s{sT0}
v_lshl_add_u32 v{t+4}, v{t+5}, 4, s{sT1}
s_lshl_b32 s{sT1}, s{sW}, 3
s_add_u32 s{sT1}, s{sT1}, s{sT0}
s_add_u32 s{sT1}, s{sT1}, 32
v_lshl_add_u32 v{t+5}, v{t+5}, 2, s{sT1}
v_cndmask_b32 v{t+4}, v{t+4}, v{t+5}, {sr(mODDL,2)}
v_cndmask_b32 v{aOP}, v{aOP}, v{t+4}, {sr(mODDR,2)}
s_mov_b32 s{mATT}, 0x1ffff
s_cmp_lt_u32 s{sW}, 2
s_cselect_b32 s{mATT}, 0x3ffff, s{mATT}
s_mov_b32 s{mATT+1}, s{mATT}""")
    ka = t + 4
    A(f"s_lshl_b32 s{sT0}, s{sW}, 14\ns_add_u32 s{sT0}, s{sT0}, {LR}\nv_lshl_add_u32 v{u+8}, v{vN}, 8, s{sT0}\nv_xor_b32 v{u+9}, v{vG}, v{vN}")
    for ks in range(4): A(f"v_xor_b32 v{ka+ks}, {ks << 2}, v{u+9}\nv_lshl_add_u32 v{ka+ks}, v{ka+ks}, 4, v{u+8}")
    def q0_test():
        A(f"v_xor_b32 v{u+8}, s{sE1}, v{g0+1}")
        for k in range(1, 4): A(f"v_xor_b32 v{u+9}, s{sE1}, v{g0+2*k+1}\nv_or_b32 v{u+8}, v{u+8}, v{u+9}")
        A(f"v_cmp_ne_u32 vcc, 0, v{u+8}")
    if OPT["walk"] == 2:
        A(f"s_cmp_eq_u32 s{sW}, 0\ns_cbranch_scc1 L_walka_0\ns_cmp_eq_u32 s{sW}, 1\ns_cbranch_scc1 L_walkb_0\ns_cmp_eq_u32 s{sW}, 2\ns_cbranch_scc1 L_walkc_0\ns_branch L_walkd_0\nL_walked2:")
    A(f"v_mov_b32 v{u+10}, {LMODE + 4}\ns_waitcnt vmcnt({NV1 - NQ})")
    q0_test()
    A(f"s_mov_b64 exec, vcc\nds_write_b32 v{u+10}, v{vONE}\ns_mov_b64 exec, -1\ns_waitcnt lgkmcnt(0)\ns_barrier")
    stamp(3)
    A(f"ds_read_b32 v{u+11}, v{u+10}")
    for Tt in range(4):
        for ks in range(4): A(f"ds_read_b128 {vr(vK+16*Tt+4*ks,4)}, v{ka+ks} offset:{Tt*4096}")
        if Tt == 1: A(f"s_waitcnt lgkmcnt(8)\nv_readfirstlane_b32 s{sT0}, v{u+11}")
    A(f"s_cmp_eq_u32 s{sT0}, 0\ns_cbranch_scc1 L_q0_ok")
    if OPT["xnoq0"]: A("s_branch L_q0_ok")
    A(f"s_mov_b64 exec, 0xffff\n{q0store} sc1\ns_mov_b64 exec, -1\ns_mov_b32 s{sCNT}, 0\nL_q0_chk:")
    q0_test()
    A(f"s_cbranch_vccz L_q0_ok\ns_add_u32 s{sCNT}, s{sCNT}, 1\ns_cmp_ge_u32 s{sCNT}, {OPT['tmo']}\ns_cbranch_scc1 L_end\n{q0loads}\ns_waitcnt vmcnt(0)\ns_branch L_q0_chk\nL_q0_ok:")
    for k in range(4): A(f"v_mov_b32 v{gQ+k}, v{g0+2*k}")
    A("s_branch L_att_ok")

C("""==== attention: q (hi/lo rows) -> scores -> p -> P.V over this workgroup's 256 keys""")
poll(f"buffer_load_dwordx4 {vr(gQ,4)}, v{aQ1}, {WS}, s{sI} offen sc1", range(gQ, gQ+4), u)
qsload = f"buffer_load_dwordx2 {vr(gQS,2)}, v{aQ2}, {WS}, s{sI} offen sc1"
resload2 = f"buffer_load_dwordx4 {vr(gRES,4)}, v{aRES}, {WS}, s{sXO} offen sc1"
A("L_att_ok:")
stamp(4); FS("att")
qv, qh, ql = u, u + 1, u + 2
A(f"""v_add_f32 v{qv}, v{gQ}, v{gQ+1}
v_add_f32 v{qh}, v{gQ+2}, v{gQ+3}
s_cmp_eq_u32 s{sPASS}, 0
v_add_f32 v{qv}, v{qv}, v{qh}
v_cvt_pk_bf16_f32 v{qh}, v{qv}, v{qv}
ds_write_b16 v{aQW}, v{qh}
v_lshlrev_b32 v{ql}, 16, v{qh}
v_sub_f32 v{qv}, v{qv}, v{ql}
v_cvt_pk_bf16_f32 v{qv}, v{qv}, v{qv}
ds_write_b16 v{aQW}, v{qv} offset:800
s_cbranch_scc1 L_att_nold
{qsload}
{resload2}
L_att_nold:""")
FS("att")
A("s_waitcnt lgkmcnt(0)\ns_barrier")
FS("att")
fq, D = t + 28, t + 44
for ks in range(4): A(f"ds_read_b128 {vr(fq+4*ks,4)}, v{aQR} offset:{ks*64}")
qk = [(f"s_waitcnt lgkmcnt({3-ks})\n" if Tt == 0 else "") + mfma(vr(D+4*Tt,4), vr(fq+4*ks,4), vr(vK+16*Tt+4*ks,4), "0" if ks == 0 else vr(D+4*Tt,4))
      for Tt in range(4) for ks in range(4)]
for m in qk[:4]: A(m)
A("s_cbranch_scc1 L_att_nochk\ns_waitcnt vmcnt(1)")
recheck(qsload, [gQS, gQS+1], u+3)
A("L_att_nochk:")
z1, z2 = u + 4, u + 5
side = [dpp("v_add_f32", z1, gQS, ROWRED[0]), dpp("v_add_f32", z2, gQS+1, ROWRED[0])]
for p in ROWRED[1:]: side += [dpp("v_add_f32", z1, z1, p), dpp("v_add_f32", z2, z2, p)]
side += [f"v_mul_f32 v{vMU}, {1/576:.9e}, v{z1}", f"v_mul_f32 v{z2}, {1/576:.9e}, v{z2}", f"v_fma_f32 v{z2}, -v{vMU}, v{vMU}, v{z2}",
         f"v_add_f32 v{D}, v{D}, v{D+1}", f"v_max_f32 v{z2}, 0, v{z2}", f"v_add_f32 v{z2}, 0x3727c5ac, v{z2}", f"v_rsq_f32 v{vC}, v{z2}",
         f"v_add_f32 v{D+2}, v{D+2}, v{D+3}", f"v_mul_f32 v{vC}, {128**-0.5*math.log2(math.e):.9e}, v{vC}",
         f"v_add_f32 v{D+4}, v{D+4}, v{D+5}", f"v_add_f32 v{D+6}, v{D+6}, v{D+7}", f"v_mul_f32 v{vMU}, v{vMU}, v{vC}"]
weave(qk[4:], side, 2)
FS("att")
C("""score = c*(q.K - mean*colsum.K); wave maximum; p = exp2(score - max)""")
sa, sb, um, tm = u + 6, u + 7, u + 8, u + 9
A(f"""v_add_f32 v{D+8}, v{D+8}, v{D+9}
v_add_f32 v{D+10}, v{D+10}, v{D+11}
v_cndmask_b32 v{sa}, v{D}, v{D+8}, {sr(mODDR,2)}
v_cndmask_b32 v{tm}, v{D+2}, v{D+10}, {sr(mODDR,2)}
v_mul_f32 v{sa}, v{sa}, v{vC}
v_fma_f32 v{sa}, -v{vMU}, v{tm}, v{sa}
s_nop 1
v_add_f32 v{D+12}, v{D+12}, v{D+13}
v_add_f32 v{D+14}, v{D+14}, v{D+15}
v_cndmask_b32 v{sb}, v{D+4}, v{D+12}, {sr(mODDR,2)}
v_cndmask_b32 v{tm}, v{D+6}, v{D+14}, {sr(mODDR,2)}
v_mul_f32 v{sb}, v{sb}, v{vC}
v_fma_f32 v{sb}, -v{vMU}, v{tm}, v{sb}
v_max_f32 v{um}, v{sa}, v{sb}
v_max_f32 v{tm}, v{sa}, v{sb}
s_nop 1
v_permlane16_swap_b32 v{um}, v{tm}
v_max_f32 v{um}, v{um}, v{tm}
s_nop 1""")
rowred("v_max_f32", [um])
A(f"""v_sub_f32 v{sa}, v{sa}, v{um}
v_sub_f32 v{sb}, v{sb}, v{um}
ds_write_b32 v{aMW}, v{um}
v_exp_f32 v{sa}, v{sa}
v_exp_f32 v{sb}, v{sb}
s_cmp_eq_u32 s{sPASS}, 0
v_cvt_pk_bf16_f32 v{tm}, v{sa}, v{sb}
ds_write_b32 v{aPW}, v{tm}""")
FS("att")
A(f"v_lshlrev_b32 v{sa}, 16, v{tm}\nv_and_b32 v{sb}, 0xffff0000, v{tm}\nv_add_f32 v{sa}, v{sa}, v{sb}\nv_add_f32 v{u+14}, v{sa}, 0\ns_nop 1\nv_permlane16_swap_b32 v{sa}, v{u+14}\nv_add_f32 v{sa}, v{sa}, v{u+14}\ns_nop 1\n{dpp('v_add_f32', sa, sa, ROWRED[0])}\ns_cbranch_scc1 L_rdy")
fp, acc, fm, big, fb = t - 0, t + 32, u + 7, u + 9, u + 10
def pv_head():
    A("s_waitcnt lgkmcnt(0)\ns_barrier")
    A(f"ds_read_b32 v{fm}, v{aMR}")
    for ks in range(8): A(f"ds_read_b128 {vr(fp+4*ks,4)}, v{aPR} offset:{ks*64}")
def pv_mfma(ks, tau):
    a_ = acc + 8*(ks >> 1) + 4*tau
    return mfma(vr(a_,4), vr(fp+4*ks,4), ar(cV+8*ks+4*tau,4), "0" if ks % 2 == 0 else vr(a_,4))
lc = u + 14
pv_side = [dpp("v_add_f32", sa, sa, ROWRED[1]), dpp("v_max_f32", big, fm, ROWRED[0]),
           dpp("v_add_f32", sa, sa, ROWRED[2]), dpp("v_max_f32", big, big, ROWRED[1]),
           dpp("v_add_f32", sa, sa, ROWRED[3]), f"v_sub_f32 v{fm}, v{fm}, v{big}", f"v_sub_f32 v{um}, v{um}, v{big}", f"v_exp_f32 v{fm}, v{fm}",
           f"v_exp_f32 v{um}, v{um}", f"v_mov_b32 v{FA+16}, 0" if False else "s_nop 0",
           f"v_mul_f32 v{sa}, v{sa}, v{um}", f"v_cndmask_b32 v{sa}, v{sa}, v{big}, {sr(mODDL,2)}"]
o0, o1 = lc, um
def scale(op, o, wv, a_): return f"{op}_dpp v{o}, v{fm}, v{a_} row_newbcast:{wv} {DPPM}"
pv_tail = [scale("v_mul_f32", o0, 0, acc), scale("v_mul_f32", o1, 0, acc+4), scale("v_fmac_f32", o0, 1, acc+8), scale("v_fmac_f32", o1, 1, acc+12)]
A("s_waitcnt lgkmcnt(0)\ns_barrier")
stamp(5); FS("att")
pipeline([f"ds_read_b128 {vr(fp,4)}, v{aPR}", f"ds_read_b32 v{fm}, v{aMR}"] + [f"ds_read_b128 {vr(fp+4*ks,4)}, v{aPR} offset:{ks*64}" for ks in range(1, 8)],
         [(pv_mfma(ks, tau), 0 if ks == 0 else (ks + 1 if ks < 2 or not OPT["pvw"] else (ks | 1) + 1)) for ks in range(8) for tau in range(2)], pv_side + pv_tail, start=2, pre=OPT["pre"] + 1)
def pv_finish():
    A(f"""v_mov_b32 v{FA+16}, 0
v_mov_b32 v{FA+17}, 0
{scale("v_fmac_f32", o0, 2, acc+16)}
{scale("v_fmac_f32", o1, 2, acc+20)}
s_nop 1""")
    pub_late(f"""MODE
{scale("v_fmac_f32", o0, 3, acc+24)}
{scale("v_fmac_f32", o1, 3, acc+28)}
MASK
v_cvt_pk_bf16_f32 v{o0}, v{o0}, v{o1}
v_cndmask_b32 v{o0}, v{o0}, v{sa}, {sr(mODDR,2)}""", f"buffer_store_dword v{o0}, v{aOP}, {WS}, s{sI} offen", sr(mATT,2))
FS("att")
pv_finish()
FS("att"); stamp(6)
A(f"s_cmp_lg_u32 s{sROLE}, 0\ns_cbranch_scc1 L_roleBF")

def wo_dma(i0, i1, v):
    wdma_voff(v, 1152, "wo")
    A(f"""s_lshl_b32 s{sT1}, s{sX}, 1
s_add_u32 s{sT1}, s{sT1}, s{sHALF}
s_lshl_b32 s{sT1}, s{sT1}, 5
s_add_u32 s{sT1}, s{sT1}, s{sW}
s_mul_i32 s{sT1}, s{sT1}, {8*1152}
s_lshl_b32 s{sT2}, s{sCG9}, 7
s_add_u32 s{sT1}, s{sT1}, s{sT2}
s_lshl_b32 s{sT2}, s{sW}, 10
s_add_u32 s{sT2}, s{sT2}, {LR + i0*4096}""")
    if i0: A(f"s_add_u32 s{sT1}, s{sT1}, {i0*32*1152}")
    for i in range(i0, i1):
        dma(rWA, v, sT1, sT2)
        if i < i1 - 1: A(f"s_add_u32 s{sT1}, s{sT1}, {32*1152}\ns_add_u32 s{sT2}, s{sT2}, 4096")
def w2_dma(i0, i1, v):
    wdma_voff(v, 1152, "std")
    A(f"""s_lshl_b32 s{sT1}, s{sX}, 1
s_add_u32 s{sT1}, s{sT1}, s{sHALF}
s_mul_i32 s{sT1}, s{sT1}, 36
s_add_u32 s{sT1}, s{sT1}, s{sW}
s_mul_i32 s{sT1}, s{sT1}, {8*1152}
s_lshl_b32 s{sT2}, s{sCG9}, 7
s_add_u32 s{sT1}, s{sT1}, s{sT2}
s_lshl_b32 s{sT2}, s{sW}, 10
s_add_u32 s{sT2}, s{sT2}, {LW2 + i0*4096}""")
    if i0: A(f"s_add_u32 s{sT1}, s{sT1}, {i0*32*1152}")
    for i in range(i0, i1):
        dma(rW2, v, sT1, sT2)
        if i < i1 - 1: A(f"s_add_u32 s{sT1}, s{sT1}, {32*1152}\ns_add_u32 s{sT2}, s{sT2}, 4096")
def w1_dma(k0, k1, v, done):
    wdma_voff(v, 9216, "std")
    A(f"""s_mul_i32 s{sT1}, s{sHALF}, 18
s_add_u32 s{sT1}, s{sT1}, s{sW}
s_mul_i32 s{sT1}, s{sT1}, {8*9216}
s_mul_i32 s{sT2}, s{sX}, 1152
s_add_u32 s{sT1}, s{sT1}, s{sT2}
s_mul_i32 s{sT2}, s{sCG9}, 384
s_add_u32 s{sT1}, s{sT1}, s{sT2}
s_lshl_b32 s{sT2}, s{sW}, 10
s_add_u32 s{sT2}, s{sT2}, {LR}""")
    for k in range(k0, k1):
        i, c = divmod(k, 3)
        if k == 12: A(f"s_cmp_ge_u32 s{sW}, 2\ns_cbranch_scc1 {done}")
        A(f"s_add_u32 s{sT3}, s{sT1}, {i*32*9216 + c*128}\ns_add_u32 s{sT4}, s{sT2}, {i*4096 + c*18432}")
        dma(rWA, v, sT3, sT4)

def w1_regs():
    for c in range(3): tr_slice(cWA + 18*c, t+8, t+10, c*18432)

POLo = H5o + 120
def probe():
    if OPT["copies"] != 2: return
    if OPT["pol"] < 0:
        A(f"""s_lshl_b32 s{sT1}, s{sW}, 11
s_and_b32 s{sT0}, s{sW}, 1
s_lshl_b32 s{sT0}, s{sT0}, 13
s_add_u32 s{sT0}, s{sT0}, s{sT1}
s_add_u32 s{sT4}, s{sT0}, {PROBE}
s_mov_b32 s84, -1
s_mov_b32 s85, -1""")
        for k in range(OPT["nsamp"]):
            A(f"s_xor_b32 s{sT0}, s{sT4}, {(k >> 1)*128 + (k & 1)*0x2000}\ns_memtime s[100:101]\ns_waitcnt lgkmcnt(0)\ns_buffer_load_dword s101, {WS}, s{sT0}\ns_waitcnt lgkmcnt(0)")
            A(f"s_memtime {sr(sT2,2)}\ns_waitcnt lgkmcnt(0)\ns_sub_u32 s{sT2}, s{sT2}, s100\ns_min_u32 s{84+(k & 1)}, s{84+(k & 1)}, s{sT2}")
        A(f"s_bitcmp1_b32 s{sW}, 0\ns_cselect_b32 s{sT0}, s85, s84\ns_cselect_b32 s85, s84, s85\ns_mov_b32 s84, s{sT0}")
        A(f"""s_lshl_b32 s{sT1}, s{sW}, 2
s_add_u32 s{sT1}, s{sT1}, {LMODE}
v_mov_b32 v{t}, s{sT1}
v_mov_b32 v{t+1}, s84
v_mov_b32 v{t+2}, s85
ds_write2_b32 v{t}, v{t+1}, v{t+2} offset0:0 offset1:4""")
def probe_done():
    if OPT["copies"] != 2: return
    if OPT["pol"] >= 0: A(f"s_mov_b32 s{sT4}, {OPT['pol']}")
    else:
        A(f"""v_mov_b32 v{t}, {LMODE}
ds_read_b128 {vr(t+28,4)}, v{t}
ds_read_b128 {vr(t+32,4)}, v{t} offset:16
s_waitcnt lgkmcnt(0)
v_min_u32 v{t}, v{t+28}, v{t+29}
v_min3_u32 v{t}, v{t}, v{t+30}, v{t+31}
v_min_u32 v{t+1}, v{t+32}, v{t+33}
v_min3_u32 v{t+1}, v{t+1}, v{t+34}, v{t+35}
v_cmp_gt_u32 vcc, v{t}, v{t+1}
s_lshr_b32 s{sT0}, s{sXCC}, 2
s_cmp_lg_u32 vcc_lo, 0
s_cselect_b32 s{sT4}, 1, 0
s_xor_b32 s{sT4}, s{sT4}, s{sT0}""")
    A(f"s_sub_u32 s{sT0}, s{sJ}, 30\ns_lshl_b32 s{sT0}, s{sT0}, 2\ns_add_u32 s{sT0}, s{sT0}, {POLo}\nv_mov_b32 v{t}, s{sT0}\nv_mov_b32 v{t+1}, s{sT4}")
    pub(f"buffer_store_dword v{t+1}, v{t}, {WS}, s{sIB} offen", sr(mW0,2))

with Tail():
    ra_, rb_, avt = t, t + 1, t + 2
    C("""---- first pass: role weights and rest of V, role constants, first half of P.V, ready / die check, second half of P.V""")
    gv, gva = gO, gML
    gload = f"buffer_load_dwordx4 {vr(gv,4)}, v{gva}, {WS}, 0 offen sc1"
    A(f"L_rdy:\nv_lshlrev_b32 v{gva}, 4, v{vL}\nv_add_u32 v{gva}, {RDY}, v{gva}")
    BEH = OPT["beh"]; NX = 1 if OPT["touch"] else 0
    x0res = f"s_lshl_b32 s{sT0}, s{sCG9}, 7\ns_lshl_b32 s{sT1}, s{sW}, 5\ns_add_u32 s{sT0}, s{sT0}, s{sT1}\nv_lshl_add_u32 v{t+4}, v{vG}, 3, s{sT0}\nbuffer_load_dwordx2 {vr(vR+2,2)}, v{t+4}, {sr(rXI,4)}, 0 offen"
    def role_dma(done):
        lb = uid("rb")
        A(f"s_cmp_eq_u32 s{sROLE}, 1\ns_cbranch_scc1 {lb}\ns_cmp_eq_u32 s{sROLE}, 2\ns_cbranch_scc1 {done}f")
        if NW2: w2_dma(0, NW2, t+4)
        wo_dma(0, 8, t+4)
        if BEH: A(f"s_waitcnt vmcnt({8 + NW2 + NX + 1})")
        A(f"s_branch {done}\n{lb}:")
        if NB1: w1_dma(0, NB1, t+4, done + "b")
        A(f"{done}b:")
        if BEH: A(f"s_waitcnt vmcnt({min(NB1, 12) + NX + 1})\ns_branch {done}")
        A(f"{done}f:")
        if BEH: A(f"s_waitcnt vmcnt({NX + 1})")
        A(f"{done}:")
    A(x0res)
    stamp(1)
    if not BEH: role_dma("L_w1_issued")
    A(gload)
    for i in range(NV1, 16): vdma(i)
    A(f"s_mov_b32 s{sHOOK}, 0")
    avt = vKO
    A(f"""v_bfe_u32 v{avt+1}, v{vL}, 3, 2
v_bfe_u32 v{t+4}, v{vL}, 2, 1
v_lshl_or_b32 v{avt+1}, v{t+4}, 2, v{avt+1}
s_lshl_b32 s{sT0}, s{sW}, 1
v_xor_b32 v{avt+1}, s{sT0}, v{avt+1}
v_lshlrev_b32 v{avt+1}, 5, v{avt+1}
v_and_b32 v{avt}, 3, v{vL}
v_lshl_add_u32 v{avt}, v{avt}, 3, v{avt+1}
v_lshl_add_u32 v{avt}, v{t+4}, 12, v{avt}
v_bfe_u32 v{t+4}, v{vL}, 3, 1
v_lshl_add_u32 v{avt}, v{t+4}, 8, v{avt}
v_lshl_add_u32 v{avt}, v{vG}, 10, v{avt}
v_xor_b32 v{avt+1}, 32, v{avt}""")
    def vtr(ks, tau, h): return f"ds_read_b64_tr_b16 {ar(cV+8*ks+4*tau+2*h,2)}, v{avt+tau} offset:{ks*8192+h*512}"
    A(f"s_cmp_eq_u32 s{sROLE}, 1\ns_cbranch_scc1 L_sub\ns_cmp_eq_u32 s{sROLE}, 2\ns_cbranch_scc1 L_sud")
    A(f"""s_and_b32 s{sT0}, s{sW}, 1
s_lshl_b32 s{sT0}, s{sT0}, 1
v_lshrrev_b32 v{t+8}, 3, v{vN}
v_add_u32 v{t+8}, s{sT0}, v{t+8}
v_and_b32 v{t+9}, 1, v{vN}
v_lshlrev_b32 v{t+9}, 4, v{t+9}
v_mov_b32 v{t+10}, 0x3d80
v_lshlrev_b32 v{t+9}, v{t+9}, v{t+10}
v_cmp_eq_u32 vcc, v{t+8}, v{vG}
v_bfe_u32 v{t+10}, v{vN}, 1, 2
s_nop 0
v_cndmask_b32 v{t+9}, 0, v{t+9}, vcc""")
    for r in range(4): A(f"v_cmp_eq_u32 vcc, {r}, v{t+10}\ns_nop 1\nv_cndmask_b32 v{vSEL+r}, 0, v{t+9}, vcc")
    A(f"""v_lshrrev_b32 v{aRES}, 2, v{vN}
v_lshlrev_b32 v{aRES}, 14, v{aRES}
v_and_b32 v{t+8}, 3, v{vN}
v_lshl_add_u32 v{aRES}, v{t+8}, 11, v{aRES}
v_lshl_add_u32 v{aRES}, v{vG}, 4, v{aRES}
s_lshl_b32 s{sT0}, s{sCG9}, 7
s_lshr_b32 s{sT1}, s{sW}, 1
s_lshl_b32 s{sT1}, s{sT1}, 6
s_add_u32 s{sT0}, s{sT0}, s{sT1}
v_add_u32 v{aRES}, s{sT0}, v{aRES}
s_lshl_b32 s{sT0}, s{sHALF}, 13
s_lshl_b32 s{sT1}, s{sW}, 11
s_add_u32 s{sT0}, s{sT0}, s{sT1}
s_add_u32 s{sT0}, s{sT0}, {OPo}
v_lshl_add_u32 v{aO1}, v{vL}, 4, s{sT0}
s_lshl_b32 s{sT0}, s{sHALF}, 10
s_add_u32 s{sT0}, s{sT0}, {MLo}
v_lshl_add_u32 v{aML}, v{vN}, 6, s{sT0}
v_min_u32 v{t+8}, 2, v{vG}
v_lshl_add_u32 v{aML}, v{t+8}, 4, v{aML}
s_mul_i32 s{sT0}, s{sW}, {4*544}
s_add_u32 s{sT0}, s{sT0}, {LOPS}
v_lshrrev_b32 v{aOW}, 5, v{vL}
v_mul_u32_u24 v{aOW}, 544, v{aOW}
v_and_b32 v{t+8}, 31, v{vL}
v_lshl_add_u32 v{aOW}, v{t+8}, 4, v{aOW}
v_add_u32 v{aOW}, s{sT0}, v{aOW}
v_mul_u32_u24 v{aOR}, 544, v{vN}
v_lshl_add_u32 v{aOR}, v{vG}, 4, v{aOR}
v_add_u32 v{aOR}, {LOPS}, v{aOR}
s_lshl_b32 s{sT0}, s{sX}, 1
s_add_u32 s{sT0}, s{sT0}, s{sHALF}
s_lshr_b32 s{sT1}, s{sT0}, 2
s_lshl_b32 s{sT1}, s{sT1}, 14
s_and_b32 s{sT0}, s{sT0}, 3
s_lshl_b32 s{sT0}, s{sT0}, 11
s_add_u32 s{sT0}, s{sT0}, s{sT1}
s_lshl_b32 s{sT1}, s{sCG9}, 7
s_add_u32 s{sT0}, s{sT0}, s{sT1}
XSADDR
s_lshl_b32 s{sT0}, s{sJ}, 2
s_add_u32 s{sT0}, s{sT0}, {H3o}
v_mov_b32 v{aHS}, s{sT0}
s_mul_i32 s{sT0}, s{sHALF}, {288*16}
s_mul_i32 s{sT1}, s{sW}, {72*16}
s_add_u32 s{sT0}, s{sT0}, s{sT1}
s_add_u32 s{sT0}, s{sT0}, {HPo}
v_lshl_add_u32 v{aH1}, v{vL}, 4, s{sT0}
s_add_u32 s{sT0}, s{sT0}, 1024
v_lshl_add_u32 v{aH2}, v{vN}, 4, s{sT0}
v_lshlrev_b32 v{t+8}, 4, v{vN}
v_add_u32 v{t+8}, {HSo - 128}, v{t+8}
v_cmp_gt_u32 vcc, 8, v{vN}
s_mul_i32 s{sT0}, s{sW}, 144
s_add_u32 s{sT0}, s{sT0}, {LH}
v_cndmask_b32 v{aH2}, v{t+8}, v{aH2}, vcc
v_lshl_add_u32 v{aHW}, v{vL}, 1, s{sT0}
s_add_u32 s{sT0}, s{sT0}, 128
v_lshl_add_u32 v{aHW2}, v{vN}, 1, s{sT0}
v_mov_b32 v{t+8}, {LH + 576}
v_cndmask_b32 v{aHW2}, v{t+8}, v{aHW2}, vcc
v_lshlrev_b32 v{aHR}, 4, v{vG}
v_add_u32 v{aHR}, {LH}, v{aHR}""")
    A(f"""v_bfe_u32 v{t+8}, v{vL}, 4, 1
v_bfe_u32 v{t+9}, v{vL}, 2, 1
v_lshl_or_b32 v{t+8}, v{t+9}, 1, v{t+8}
v_xor_b32 v{t+8}, s{sW}, v{t+8}
v_lshlrev_b32 v{t+8}, 5, v{t+8}
v_lshl_add_u32 v{t+8}, v{t+9}, 11, v{t+8}
v_and_b32 v{t+9}, 3, v{vL}
v_lshl_add_u32 v{t+8}, v{t+9}, 3, v{t+8}
v_bfe_u32 v{t+9}, v{vL}, 3, 1
v_lshl_add_u32 v{t+8}, v{t+9}, 7, v{t+8}
v_lshl_add_u32 v{t+8}, v{vG}, 9, v{t+8}
v_add_u32 v{t+8}, {LR}, v{t+8}
""")
    if OPT["one"]:
        k = L.index("XSADDR")
        L[k:k+1] = f"""v_and_b32 v{aLR}, 7, v{vL}
v_lshlrev_b32 v{aLR}, 4, v{aLR}
v_add_u32 v{aXS}, s{sT0}, v{aLR}
v_bfe_u32 v{aLW}, v{vL}, 3, 1
v_lshl_add_u32 v{aXS}, v{aLW}, 13, v{aXS}
v_add_u32 v{aLR}, {LXP}, v{aLR}
s_lshl_b32 s{sT1}, s{sW}, 5
s_add_u32 s{sT1}, s{sT1}, {LXP}
v_lshl_add_u32 v{aLW}, v{vG}, 3, s{sT1}""".split("\n")
    else:
        k = L.index("XSADDR")
        L[k:k+1] = f"""s_lshl_b32 s{sT1}, s{sW}, 5
s_add_u32 s{sT0}, s{sT0}, s{sT1}
v_lshl_add_u32 v{aXS}, v{vG}, 3, s{sT0}
v_lshl_add_u32 v{aXS}, v{vN}, 13, v{aXS}""".split("\n")
    A("s_branch L_sud\nL_sub:")
    A(f"v_add_u32 v{t+11}, 256, v{vL}\nv_min_u32 v{t+11}, 287, v{t+11}")
    x_addr(aB1, 0, sHALF, t+12); x_addr(aB2, t+11, sHALF, t+12)
    A(f"""s_mul_i32 s{sT0}, s{sCG9}, {192*16}
s_lshl_b32 s{sT1}, s{sW}, 8
s_add_u32 s{sT0}, s{sT0}, s{sT1}
s_lshl_b32 s{sT1}, s{sHALF}, 2
s_add_u32 s{sT0}, s{sT0}, s{sT1}
s_add_u32 s{sT0}, s{sT0}, {HPo}
v_lshl_add_u32 v{aBD}, v{vN}, 4, s{sT0}
v_and_b32 v{t+8}, 1, v{vG}
v_lshl_add_u32 v{aBD}, v{t+8}, 11, v{aBD}
v_lshrrev_b32 v{t+8}, 1, v{vG}
v_lshl_add_u32 v{aBD}, v{t+8}, 10, v{aBD}
v_add_u32 v{vS1+1}, {S1o - HPo}, v{aBD}
s_lshl_b32 s{sT0}, s{sHALF}, 5
s_lshl_b32 s{sT1}, s{sW}, 3
s_add_u32 s{sT0}, s{sT0}, s{sT1}
s_add_u32 s{sT0}, s{sT0}, {HSo}
v_lshl_add_u32 v{t+8}, v{vN}, 2, s{sT0}
v_cndmask_b32 v{aBD}, v{aBD}, v{t+8}, {sr(mROW3,2)}
s_mov_b32 s{mLN}, -1
s_mov_b32 s{mLN+1}, 0xffff
s_cmp_eq_u32 s{sCG9}, 0
s_cselect_b32 s{mLN+1}, 0x3ffff, s{mLN+1}""")
    traddr_std(t+8, LR); traddr_tail(t+10, LR)
    A("L_sud:")
    assert NV1 >= 8 and not BEH
    tail_n = 17 - NV1
    A(f"""s_cmp_eq_u32 s{sROLE}, 1
s_cbranch_scc1 L_s1b
s_cmp_eq_u32 s{sROLE}, 0
s_cbranch_scc1 L_s1a
s_waitcnt vmcnt({tail_n})
L_s1b:
s_waitcnt vmcnt({tail_n + min(NB1, 12)})
L_s1a:
s_waitcnt vmcnt({tail_n + 8 + NW2}) lgkmcnt(0)
s_barrier""")
    for ks in range(4):
        for tau in range(2):
            for h in range(2): A(vtr(ks, tau, h))
    A(f"v_mov_b32 v{vKEEP}, v{t+8}")
    A(f"v_lshlrev_b32 v{vR}, 16, v{vR+2}\nv_and_b32 v{vR+1}, 0xffff0000, v{vR+2}\nv_lshlrev_b32 v{vR+2}, 16, v{vR+3}\nv_and_b32 v{vR+3}, 0xffff0000, v{vR+3}")
    for r in range(4): A(f"v_mul_f32 v{vR+r}, 0x3b800000, v{vR+r}")
    def wo_regs(a_):
        for kk in range(8):
            for h in range(2): A(f"ds_read_b64_tr_b16 {ar(cWA+4*kk+2*h,2)}, v{a_} offset:{kk*4096+h*256}")
    A(f"ds_read_b32 v{fm}, v{aMR}")
    for ks in range(8): A(f"ds_read_b128 {vr(fp+4*ks,4)}, v{aPR} offset:{ks*64}")
    A("s_waitcnt lgkmcnt(0)")
    weave([pv_mfma(ks, tau) for ks in range(4) for tau in range(2)], pv_side, 2)
    mfma_gap()
    A(pv_tail[0] + "\n" + pv_tail[1] + "\ns_nop 0\n" + pv_tail[2] + "\n" + pv_tail[3])
    A(f"s_mov_b32 s{sCNT}, 0\ns_waitcnt vmcnt({16 - NV1})")
    b_ = gv + 4
    A("L_rdy_chk:")
    for r in range(4): A(f"v_xor_b32 v{b_+r}, s{sE1}, v{gv+r}")
    A(f"v_or_b32 v{gH}, v{b_}, v{b_+1}\nv_or3_b32 v{gH}, v{gH}, v{b_+2}, v{b_+3}\nv_cmp_lt_u32 vcc, 7, v{gH}\ns_cbranch_vccz L_rdy_ok")
    A(f"s_add_u32 s{sCNT}, s{sCNT}, 1\ns_cmp_ge_u32 s{sCNT}, {OPT['tmo']}\ns_cbranch_scc1 L_end\ns_sleep 16\n{gload}\ns_waitcnt vmcnt(0)\ns_branch L_rdy_chk\nL_rdy_ok:")
    for r in range(4): A(f"v_xor_b32 v{b_+r}, s{sXCC}, v{b_+r}")
    A(f"""v_or_b32 v{gH}, v{b_}, v{b_+1}
v_or3_b32 v{gH}, v{gH}, v{b_+2}, v{b_+3}
v_cmp_ne_u32 vcc, 0, v{gH}
s_lshl_b32 s{sT1}, s{sX}, 3
s_lshr_b64 {sr(sT2,2)}, vcc, s{sT1}
s_and_b32 s{sT2}, s{sT2}, 0xff
s_cselect_b32 s{sMODE}, 0, {OPT['fast']}""")
    A(f"s_cmp_lg_u32 s{sMODE}, 0\ns_cbranch_scc1 L_nore\ns_mov_b64 exec, 0xffff\n{q0store} sc1\ns_mov_b64 exec, -1\ns_waitcnt vmcnt(0)\nL_nore:")
    NX = 1 if OPT["touch"] else 0
    if NX: A(f"""s_mul_i32 s{sT1}, s{sJ}, {REST}
s_lshl_b32 s{sT2}, s{sW}, 8
s_add_u32 s{sT1}, s{sT1}, s{sT2}
s_sub_u32 s{sT1}, s{sT1}, 256
v_lshl_add_u32 v{gH+1}, v{vL}, 7, s{sT1}
s_lshl_b32 s{sT1}, s{sJ}, 9
s_lshl_b32 s{sT2}, s{sW}, 7
s_add_u32 s{sT1}, s{sT1}, s{sT2}
s_add_u32 s{sT1}, s{sT1}, {OPo}
s_lshl_b32 s{sT2}, s{sJ}, 6
s_add_u32 s{sT2}, s{sT2}, {MLo}
v_writelane_b32 v{gH+1}, s{sT1}, 0
v_writelane_b32 v{gH+1}, s{sT2}, 1
s_mov_b64 exec, 15
buffer_load_dword v8, v{gH+1}, {WS}, s{sIB} offen sc1
s_mov_b64 exec, -1""")
    pub(f"buffer_store_dword v{vCS}, v{aQD}, {WS}, s{sIB} offen", "0xffff")
    NBB = OPT["behb"]
    if NBB:
        A(f"s_cmp_lg_u32 s{sROLE}, 1\ns_cbranch_scc1 L_nobb")
        w1_dma(NB1, NB1 + NBB, gH+2, "L_bb")
        A(f"L_bb:\ns_waitcnt vmcnt({NX + 1 + min(NB1 + NBB, 12) - NB1})\ns_branch L_bb2\nL_nobb:")
    A(f"s_waitcnt vmcnt({NX + 1})\nL_bb2:\ns_barrier")
    stamp(5)
    pipeline([vtr(ks, tau, h) for ks in range(4, 8) for tau in range(2) for h in range(2)],
             [(pv_mfma(ks, tau), 4*(ks - 4) + 2*tau + 1) for ks in range(4, 8) for tau in range(2)], pre=OPT["pv0"])
    A("s_nop 1")
    pv_finish()
    stamp(6)
    A(f"s_cmp_lg_u32 s{sROLE}, 0\ns_cbranch_scc1 L_first")
    wo_regs(vKEEP)
    A("s_branch L_wo_go")

C("""==== role A: combine the 16 key blocks of two heads and multiply by wo -> one row piece of the residual stream""")
A("s_waitcnt vmcnt(1)")
recheck(resload2, range(gRES, gRES+4), u)
A(mfma(vr(vR,4), vr(vSEL,4), vr(gRES,4), "0"))
A("L_wo_go:")
poll(f"""buffer_load_dwordx4 {vr(gO,4)}, v{aO1}, {WS}, s{sI} offen sc1
buffer_load_dwordx4 {vr(gO+4,4)}, v{aO1}, {WS}, s{sI} offen offset:1024 sc1
buffer_load_dwordx4 {vr(gML,4)}, v{aML}, {WS}, s{sI} offen sc1""", range(gO, gO+12), u, None, "",
     f"""v_max_u32 v{u}, v{gO}, v{gO+1}
v_max3_u32 v{u}, v{u}, v{gO+2}, v{gO+3}
ds_write_b128 v{aOW}, {vr(gO,4)}
v_max3_u32 v{u}, v{u}, v{gO+4}, v{gO+5}
v_max3_u32 v{u}, v{u}, v{gO+6}, v{gO+7}
ds_write_b128 v{aOW}, {vr(gO+4,4)} offset:{2*544}
v_max3_u32 v{u}, v{u}, v{gML}, v{gML+1}
v_max3_u32 v{u}, v{u}, v{gML+2}, v{gML+3}
v_cmp_eq_u32 vcc, -1, v{u}""")
stamp(7); FS("wo")
ls, mm, m2, M_ = u, u + 1, u + 2, u + 3
A(f"""v_cndmask_b32 v{mm}, v{gML}, v{gML+1}, {sr(mODDR,2)}
v_cndmask_b32 v{m2}, v{gML}, v{gML+1}, {sr(mODDR,2)}
v_add_f32 v{ls}, v{gML}, v{gML+1}
v_add_f32 v{M_}, v{gML+2}, v{gML+3}
v_permlane32_swap_b32 v{mm}, v{m2}
v_add_f32 v{ls}, v{ls}, v{M_}
s_nop 0""")
A(dpp("v_max_f32", M_, m2, ROWRED[0]))
for p in ROWRED[1:]: A("s_nop 1\n" + dpp("v_max_f32", M_, M_, p))
A(f"v_sub_f32 v{m2}, v{m2}, v{M_}\nv_exp_f32 v{m2}, v{m2}")
FS("wo")
A("s_waitcnt lgkmcnt(0)\ns_barrier")
FS("wo")
fo, wacc = t + 28, u + 8
def hint_send(imm): pub(f"buffer_store_dword v{vL}, v{aHS}, {WS}, s{sI} offen offset:{imm}", sr(mW0,2))
if OPT["h3pos"] == 0: hint_send(0)
w0, w1_ = m2, mm
side = [dpp("v_add_f32", ls, ls, ROWRED[1]), dpp("v_add_f32", ls, ls, ROWRED[2]), dpp("v_add_f32", ls, ls, ROWRED[3]), f"v_rcp_f32 v{ls}, v{ls}",
        f"v_mul_f32 v{w0}, v{m2}, v{ls}\nv_mov_b32 v{M_}, v{w0}", f"v_permlane32_swap_b32 v{w0}, v{M_}\nv_mov_b32 v{w1_}, v{w0}", f"s_nop 0\nv_permlane16_swap_b32 v{w0}, v{w1_}"]
sidew = list(side)
def wo_mf():
    for kk in range(8):
        yield (mfma(vr(wacc+4*(kk >> 2),4), ar(cWA+4*kk,4), vr(fo+4*kk,4), "0" if kk % 4 == 0 else vr(wacc+4*(kk >> 2),4)) + ("\n" + sidew.pop(0) if sidew else ""), kk)
pipeline([f"ds_read_b128 {vr(fo+4*kk,4)}, v{aOR} offset:{kk*64}" for kk in range(8)], list(wo_mf()),
         between=lambda: A(f"v_mul_f32 v{ls}, v{ls}, v{m2}\ns_nop 1\n{dpp('v_add_f32', ls, ls, ROWRED[0])}"))
FS("wo")
if OPT["h3pos"] == 1: hint_send(0)
tt = u + 4
for r in range(4): A(f"v_fma_f32 v{tt+r}, v{w0}, v{wacc+r}, v{vR+r}")
if OPT["h3pos"] != 1: A("s_nop 3")
for r in range(4): A(f"v_fmac_f32 v{tt+r}, v{w1_}, v{wacc+4+r}")
rowred("v_add_f32", [tt, tt+1, tt+2, tt+3])
XM = 0x00030003 if OPT["copies"] == 2 else 0x00010001
def x_publish(src, xoff, hint=None):
    if not OPT["one"]:
        A(f"s_add_u32 s{sT0}, s{sPASS}, {xoff}\nv_cvt_pk_bf16_f32 v{src}, v{src}, v{src+1}\ns_mov_b32 exec_lo, {XM:#x}\ns_mov_b32 exec_hi, {XM:#x}\nv_cvt_pk_bf16_f32 v{src+1}, v{src+2}, v{src+3}")
        A(f"buffer_store_dwordx2 {vr(src,2)}, v{aXS}, {WS}, s{sT0} offen sc1\ns_mov_b64 exec, -1")
        return
    skip = uid("xp")
    A(f"v_cvt_pk_bf16_f32 v{src}, v{src}, v{src+1}\nv_cvt_pk_bf16_f32 v{src+1}, v{src+2}, v{src+3}\nds_write_b64 v{aLW}, {vr(src,2)}\ns_add_u32 s{sT0}, s{sPASS}, {xoff}")
    if hint is not None: hint_send(hint)
    A(f"s_cmp_lg_u32 s{sW}, 0\ns_waitcnt lgkmcnt(0)\ns_barrier\ns_cbranch_scc1 {skip}\nds_read_b128 {vr(src,4)}, v{aLR}\ns_mov_b64 exec, {0xffff if OPT['copies'] == 2 else 0xff:#x}\ns_waitcnt lgkmcnt(0)")
    A(f"buffer_store_dwordx4 {vr(src,4)}, v{aXS}, {WS}, s{sT0} offen sc1\ns_mov_b64 exec, -1\n{skip}:")
FS("wo")
x_publish(tt, X1O, 0 if OPT['h3pos'] == 4 else None)
FS("wo")
if OPT["h3pos"] == 2: hint_send(0)
stamp(8)
A(f"s_cmp_eq_u32 s{sPASS}, 0\ns_cbranch_scc1 L_w2_first\ns_add_u32 s{sXO}, s{sPASS}, s{sCOPY}")
C("""==== role A: h = mish(LN-corrected sums + b1), times w2 -> one row piece of the residual stream""")
hloads = f"buffer_load_dwordx4 {vr(gH,4)}, v{aH1}, {WS}, s{sI} offen sc1\nbuffer_load_dwordx4 {vr(gH+4,4)}, v{aH2}, {WS}, s{sI} offen sc1"
poll(hloads, range(gH, gH+8), u)
A("L_w2_ok:")
stamp(9); FS("w2")
resload1 = f"buffer_load_dwordx4 {vr(gX1,4)}, v{aRES}, {WS}, s{sXO} offen sc1"
y0, y1, z1, z2, hmu, hrs = u, u + 4, u + 8, u + 9, u + 10, u + 11
A(f"""v_add_f32 v{z1}, v{gH+4}, v{gH+6}
v_add_f32 v{z2}, v{gH+5}, v{gH+7}
{resload1}
v_add_f32 v{y0}, v{gH}, v{gH+1}
{dpp("v_add_f32", hmu, z1, ROWRED[0])}
{dpp("v_add_f32", hrs, z2, ROWRED[0])}
v_add_f32 v{y0+1}, v{gH+2}, v{gH+3}
{dpp("v_add_f32", hmu, hmu, ROWRED[1])}
{dpp("v_add_f32", hrs, hrs, ROWRED[1])}
v_add_f32 v{y1}, v{z1}, v{z2}
{dpp("v_add_f32", hmu, hmu, ROWRED[2])}
{dpp("v_add_f32", hrs, hrs, ROWRED[2])}
v_add_f32 v{y0}, v{y0}, v{y0+1}
v_mul_f32_dpp v{hmu}, v{hmu}, v{vJUNK} row_newbcast:15 {DPPM}
v_mul_f32_dpp v{hrs}, v{hrs}, v{vJUNK} row_newbcast:15 {DPPM}
v_fma_f32 v{hrs}, -v{hmu}, v{hmu}, v{hrs}
v_fma_f32 v{y0}, -v{hmu}, v{vS1}, v{y0}
v_max_f32 v{hrs}, 0, v{hrs}
v_add_f32 v{hrs}, 0x3727c5ac, v{hrs}
v_rsq_f32 v{hrs}, v{hrs}
v_fma_f32 v{y1}, -v{hmu}, v{vS1+1}, v{y1}
s_mov_b32 s{sT0}, {-math.log2(math.e):.9e}
v_fma_f32 v{y0}, v{y0}, v{hrs}, v{vB}
v_fma_f32 v{y1}, v{y1}, v{hrs}, v{vB+1}""")
FS("w2")
C("""mish(y) = y*n/(n+2c), u = exp(-|y|): y >= 0: n = 1+2u, c = u*u; y < 0: n = u*(u+2), c = 1   (= y*tanh(softplus(y)))""")
e0, e1 = z1, z2
for y in (y0, y1): A(f"v_mul_f32 v{y+1}, s{sT0}, abs(v{y})")
for y in (y0, y1): A(f"v_exp_f32 v{y+1}, v{y+1}")
A(f"v_cmp_le_f32 vcc, 0, v{y0}\nv_cmp_le_f32 {sr(sT2,2)}, 0, v{y1}")
for y in (y0, y1): A(f"v_fma_f32 v{y+2}, v{y+1}, 2.0, 1.0\nv_add_f32 v{y+3}, 2.0, v{y+1}")
for y, e in ((y0, e0), (y1, e1)): A(f"v_mul_f32 v{y+3}, v{y+3}, v{y+1}\nv_mul_f32 v{e}, v{y+1}, v{y+1}")
A(f"v_cndmask_b32 v{y0+2}, v{y0+3}, v{y0+2}, vcc\nv_cndmask_b32 v{y1+2}, v{y1+3}, v{y1+2}, {sr(sT2,2)}")
A(f"v_cndmask_b32 v{e0}, 1.0, v{e0}, vcc\nv_cndmask_b32 v{e1}, 1.0, v{e1}, {sr(sT2,2)}")
for y, e in ((y0, e0), (y1, e1)): A(f"v_fma_f32 v{e}, v{e}, 2.0, v{y+2}")
for y, e in ((y0, e0), (y1, e1)): A(f"v_rcp_f32 v{e}, v{e}")
for y, e in ((y0, e0), (y1, e1)): A(f"v_mul_f32 v{y}, v{y}, v{y+2}")
for y, e in ((y0, e0), (y1, e1)): A(f"v_mul_f32 v{y}, v{y}, v{e}")
A(f"v_cvt_pk_bf16_f32 v{y0}, v{y0}, v{y1}\nds_write_b16 v{aHW}, v{y0}\nds_write_b16_d16_hi v{aHW2}, v{y0}")
FS("w2")
A("s_waitcnt lgkmcnt(0)\ns_barrier")
FS("w2")
fh, w2acc = t + 28, u + 4
def w2_res():
    A("s_waitcnt vmcnt(0)")
    recheck(resload1, range(gX1, gX1+4), u+1)
    A(mfma(vr(vR,4), vr(vSEL,4), vr(gX1,4), "0"))
    FS("w2")
pipeline([f"ds_read_b128 {vr(fh+4*ks,4)}, v{aHR} offset:{ks*64}" for ks in range(9)],
         [(mfma(vr(w2acc,4), ar(cW2+4*ks,4), vr(fh+4*ks,4), "0" if ks == 0 else vr(w2acc,4)), ks) for ks in range(9)],
         [dpp("v_add_f32", vR+r, vR+r, p) for p in ROWRED for r in range(4)], start=3, between=w2_res, per=OPT['w2per'])
FS("w2")
if OPT["h5pos"] == 3: hint_send(128)
mfma_gap()
for r in range(4): A(f"v_add_f32 v{w2acc+r}, v{w2acc+r}, v{vR+r}")
x_publish(w2acc, X2O, 128 if OPT['h5pos'] == 4 else None)
FS("w2")
if OPT["h5pos"] == 2: hint_send(128)
stamp(10)
A(f"s_cmp_eq_u32 s{sPASS}, 0\ns_cbranch_scc1 L_a_first")
def final(on_b):
    C("==== result: one workgroup per 64 columns sums the 16 rows")
    if on_b:
        A(f"""s_sub_u32 s{sCG9}, s{sJ}, 18
s_lshl_b32 s{sT0}, s{sX}, 4
s_add_u32 s{sT0}, s{sT0}, s{sCG9}
s_cmp_ge_u32 s{sT0}, 9
s_cbranch_scc1 L_done
s_and_b32 s{sT0}, s{sW}, 1
s_lshl_b32 s{sT0}, s{sT0}, 1
v_lshrrev_b32 v{t}, 3, v{vN}
v_add_u32 v{t}, s{sT0}, v{t}
v_and_b32 v{t+1}, 1, v{vN}
v_lshlrev_b32 v{t+1}, 4, v{t+1}
v_mov_b32 v{t+2}, 0x3f80
v_lshlrev_b32 v{t+1}, v{t+1}, v{t+2}
v_cmp_eq_u32 vcc, v{t}, v{vG}
v_bfe_u32 v{t+2}, v{vN}, 1, 2
v_lshrrev_b32 v{aRES}, 2, v{vN}
v_cndmask_b32 v{t+1}, 0, v{t+1}, vcc""")
        for r in range(4): A(f"v_cmp_eq_u32 vcc, {r}, v{t+2}\ns_nop 1\nv_cndmask_b32 v{vSEL+r}, 0, v{t+1}, vcc")
        A(f"""v_lshlrev_b32 v{aRES}, 14, v{aRES}
v_and_b32 v{t}, 3, v{vN}
v_lshl_add_u32 v{aRES}, v{t}, 11, v{aRES}
v_lshl_add_u32 v{aRES}, v{vG}, 4, v{aRES}
s_lshl_b32 s{sT0}, s{sCG9}, 7
s_lshr_b32 s{sT1}, s{sW}, 1
s_lshl_b32 s{sT1}, s{sT1}, 6
s_add_u32 s{sT0}, s{sT0}, s{sT1}
v_add_u32 v{aRES}, s{sT0}, v{aRES}""")
    else: A(f"s_or_b32 s{sT0}, s{sX}, s{sHALF}\ns_cmp_lg_u32 s{sT0}, 0\ns_cbranch_scc1 L_done")
    A(f"""s_lshl_b32 s{sT0}, s{sCG9}, 7
s_lshl_b32 s{sT1}, s{sW}, 5
s_add_u32 s{sT0}, s{sT0}, s{sT1}
v_lshl_add_u32 v{aXS}, v{vG}, 3, s{sT0}
s_add_u32 s{sXO}, s{sCOPY}, {PS + X2O}
s_mov_b32 s{sT2}, 0x00010001
s_mov_b32 s{sT3}, 0x00010001""")
    if on_b and OPT["outw"]:
        A(f"s_mov_b64 exec, {sr(sT2,2)}\nbuffer_store_dwordx2 {vr(FA+16,2)}, v{aXS}, {sr(rOUT,4)}, 0 offen\ns_mov_b64 exec, -1")
    hint_wait(128, 'fin')
    poll(resload2, range(gRES, gRES+4), u, 1, mfma(vr(vR,4), vr(vSEL,4), vr(gRES,4), "0"))
    A("s_nop 3")
    rowred("v_add_f32", [vR, vR+1, vR+2, vR+3])
    if not on_b:
        for r in range(4): A(f"v_mul_f32 v{vR+r}, 0x41800000, v{vR+r}")
    A(f"v_cvt_pk_bf16_f32 v{vR}, v{vR}, v{vR+1}\ns_mov_b64 exec, {sr(sT2,2)}\nv_cvt_pk_bf16_f32 v{vR+1}, v{vR+2}, v{vR+3}")
    if OPT["echo"] >= 0:
        A("s_mov_b64 exec, -1"); stamp(11)
        A(f"s_nop 1\nv_readlane_b32 s3, v9, {OPT['echo']}\nv_readlane_b32 s84, v9, 0\ns_nop 3\ns_sub_u32 s3, s3, s84\ns_min_u32 s3, s3, 20000\ns_lshl_b32 s3, s3, {OPT['emul']}\ns_add_u32 s3, s3, s{sST}")
        A(f"L_echo:\ns_memrealtime s[84:85]\ns_waitcnt lgkmcnt(0)\ns_sub_u32 s84, s84, s3\ns_cmp_lt_i32 s84, 0\ns_cbranch_scc1 L_echo\ns_mov_b64 exec, {sr(sT2,2)}")
    A(f"buffer_store_dwordx2 {vr(vR,2)}, v{aXS}, {sr(rOUT,4)}, 0 offen\ns_mov_b64 exec, -1")
if not OPT["finb"]: final(False)
A("s_branch L_done")

C("""==== role B: partial sums of x@w1 for 192 hidden units over a 144-row slice, plus the slice's statistics""")
A(f"L_roleBF:\ns_cmp_lg_u32 s{sROLE}, 1\ns_cbranch_scc1 L_done\nL_w1_go:\ns_add_u32 s{sXO}, s{sPASS}, s{sCOPY}")
x_gather(aB1, aB2, "w1", 0)
stamp(8)
mm_ = main_mfma(3, cWA, 0)
order = [frag_list[0]] + stat_list + frag_list[1:]
pipeline(order, [(m, 0) for m, _ in mm_[:3]] + [(m, 1 + k) for k, m in enumerate(stat_mfma)] + [(m, n + 3) for m, n in mm_[3:]],
         stat_valu + [f"v_cndmask_b32 v{s1}, v{s1}, v{s2}, {sr(mODDL,2)}"], start=9)
FS("w1")
a, b, c = ACC, ACC + 4, ACC + 8
A(f"""s_nop 3
v_add_f32 v{a}, v{a}, v{a+1}
v_add_f32 v{a+2}, v{a+2}, v{a+3}
v_add_f32 v{b}, v{b}, v{b+1}
v_add_f32 v{b+2}, v{b+2}, v{b+3}
v_add_f32 v{c}, v{c}, v{c+1}
v_add_f32 v{c+2}, v{c+2}, v{c+3}
v_add_f32 v{a}, v{a}, v{a+2}
v_add_f32 v{b}, v{b}, v{b+2}
v_add_f32 v{c+1}, v{c}, v{c+2}
v_add_f32 v{c}, v{c}, v{c+2}
v_permlane32_swap_b32 v{a}, v{b}
v_add_f32 v{a}, v{a}, v{b}
v_permlane32_swap_b32 v{c}, v{c+1}
v_add_f32 v{c}, v{c}, v{c+1}
s_nop 0""")
FS("w1")
pub_late(f"MODE\nv_permlane16_swap_b32 v{a}, v{c}\nMASK\nv_add_f32 v{a}, v{a}, v{c}\nv_cndmask_b32 v{a}, v{a}, v{s1}, {sr(mROW3,2)}", f"buffer_store_dword v{a}, v{aBD}, {WS}, s{sI} offen", sr(mLN,2))
FS("w1"); stamp(9)
A(f"s_cmp_eq_u32 s{sPASS}, 0\ns_cbranch_scc1 L_bf_first")
if OPT["finb"]: final(True)

A("L_done:")
if PROF:
    stamp(11)
    A(f"s_cmp_lg_u32 s{sW}, 0\ns_cbranch_scc1 L_end\ns_lshl_b32 s{sT0}, s2, 7\ns_add_u32 s{sT0}, s{sT0}, {STAMP}")
    A(f"s_lshr_b32 s3, s{sCOPY}, 12\ns_or_b32 s3, s3, s{sMODE}\nv_writelane_b32 v9, s3, 31\ns_memtime s[100:101]\ns_waitcnt lgkmcnt(0)\ns_sub_u32 s3, s100, s88\nv_writelane_b32 v9, s3, 30\nv_lshlrev_b32 v2, 2, v{vL}\ns_mov_b32 exec_hi, 0")
    for k in range(fcount[0]): A(f"v_writelane_b32 v9, s{FREG[k]}, {1+k}")
    A(f"buffer_store_dword v9, v2, {WS}, s{sT0} offen")
A("L_end:\ns_endpgm")

def pick_issue():
    A(f"v_mov_b32 v{u+15}, {POLo}\nbuffer_load_dword v{u+15}, v{u+15}, {WS}, s{sIB} offen sc1")
def pick_take():
    if OPT["copies"] == 2: A(f"v_readfirstlane_b32 s85, v{u+15}\ns_lshr_b32 s{sT1}, s{sXCC}, 2\ns_nop 0\ns_xor_b32 s{sT1}, s{sT1}, s85\ns_lshl_b32 s{sT1}, s{sT1}, 13\ns_cmp_lt_u32 s85, 2\ns_cselect_b32 s{sCOPY}, s{sT1}, s{sCOPY}")
def late_announce():
    A(f"""s_lshl_b32 s{sT4}, s{sX}, 2
s_add_u32 s{sT4}, s{sT4}, {RDY2}
v_lshl_add_u32 v{t+3}, v{vL}, 13, s{sT4}
v_mov_b32 v{t+4}, s{sE1}
s_waitcnt vmcnt(0)
s_barrier
s_cmp_eq_u32 s{sW}, 0
s_cselect_b64 exec, 3, 0
buffer_store_dword v{t+4}, v{t+3}, {WS}, 0 offen sc1
s_mov_b64 exec, -1""")
def fill_group():
    for r in range(4): A(f"v_mov_b32 v{t+12+r}, -1")
    A(f"v_lshlrev_b32 v{t+2}, 4, v0\ns_add_u32 s{sT0}, s{sIB}, {PS}")
    for k in range(12):
        if k == 11: A(f"s_cmp_ge_u32 s{sW}, 2\ns_cbranch_scc1 L_lf5")
        A(f"buffer_store_dwordx4 {vr(t+12,4)}, v{t+2}, {WS}, s{sT0} offen sc1\ns_add_u32 s{sT0}, s{sT0}, 4096")
    A("L_lf5:")
    A(f"s_lshl_b32 s{sT0}, s{sX}, 14\ns_add_u32 s{sT0}, s{sT0}, {PS}\ns_and_b32 s{sT1}, s{sW}, 1\ns_cselect_b64 exec, 0xff, -1")
    for k in range(4): A(f"buffer_store_dwordx4 {vr(t+12,4)}, v{t+2}, {WS}, s{sT0} offen sc1\ns_add_u32 s{sT0}, s{sT0}, 4096")
    A("s_mov_b64 exec, -1")
    late_announce()
    if OPT["touch"]:
        A(f"v_lshlrev_b32 v{t+2}, 7, v0\ns_add_u32 s{sT0}, s{sIB}, {PS}\nbuffer_load_dword v8, v{t+2}, {WS}, s{sT0} offen sc1")
        A(f"s_add_u32 s{sT0}, s{sT0}, 0x8000\nv_cmp_gt_u32 vcc, 112, v0\ns_and_saveexec_b64 {sr(sT2,2)}, vcc\ns_cbranch_execz L_lf6\nbuffer_load_dword v8, v{t+2}, {WS}, s{sT0} offen sc1\nL_lf6:\ns_mov_b64 exec, -1")
csload = f"buffer_load_dwordx4 {vr(t+28,4)}, v{aQ1}, {WS}, s{sIB} offen sc1"
def colsum_rows():
    A(f"""v_add_f32 v{u}, v{t+28}, v{t+29}
v_add_f32 v{u+1}, v{t+30}, v{t+31}
v_add_f32 v{u}, v{u}, v{u+1}
v_cvt_pk_bf16_f32 v{u+1}, v{u}, v{u}
v_lshlrev_b32 v{u+2}, 16, v{u+1}
v_sub_f32 v{u}, v{u}, v{u+2}
v_cvt_pk_bf16_f32 v{u}, v{u}, v{u}
ds_write_b16 v{aQW}, v{u+1} offset:1600
ds_write_b16 v{aQW}, v{u} offset:2400""")
with Tail():
    C("""---- first pass, role B: rest of w1""")
    A(f"L_first:\ns_cmp_lg_u32 s{sROLE}, 1\ns_cbranch_scc1 L_firstF")
    if True:
        if NB1 + OPT["behb"] < 15: w1_dma(NB1 + OPT["behb"], 15, t, "L_w1_rest")
        A("L_w1_rest:")
        traddr_std(t+8, LR); traddr_tail(t+10, LR)
        A("s_waitcnt vmcnt(3)")
        pick_issue()
        A("s_waitcnt vmcnt(0)\ns_barrier")
        stamp(14)
        w1_regs()
    else:
        pick_issue(); A("s_waitcnt vmcnt(0)")
    pick_take()
    A(f"s_mov_b32 s{sHOOK}, 1")
    stamp(15)
    A("s_branch L_w1_go")
    C("""---- first pass, role A between its stages: bias, column sums, w2""")
    A(f"""L_w2_first:
s_mul_i32 s{sT0}, s{sX}, 1152
s_mul_i32 s{sT1}, s{sHALF}, 576
s_add_u32 s{sT0}, s{sT0}, s{sT1}
s_mul_i32 s{sT1}, s{sW}, 144
s_add_u32 s{sT0}, s{sT0}, s{sT1}
v_lshl_add_u32 v{t}, v{vL}, 1, s{sT0}
v_and_b32 v{t+1}, 7, v{vL}
v_lshl_add_u32 v{t+1}, v{t+1}, 1, s{sT0}""")
    pick_issue()
    A(f"""{csload}
buffer_load_ushort v{vB}, v{t}, {sr(rB1,4)}, 0 offen
buffer_load_ushort v{vB+1}, v{t+1}, {sr(rB1,4)}, 0 offen offset:128""")
    if NW2 < 9: w2_dma(NW2, 9, t)
    A(f"v_add_u32 v{t+2}, {S1o - HPo}, v{aH1}\nv_sub_u32 v{t+3}, v{t+2}, v{aH1}\nv_add_u32 v{t+3}, v{t+3}, v{aH2}\nv_cmp_gt_u32 vcc, 8, v{vN}\ns_nop 1\nv_cndmask_b32 v{t+3}, v{t+2}, v{t+3}, vcc")
    traddr_std(t, LW2)
    A(f"s_waitcnt vmcnt({9 - NW2 + 2})")
    pick_take()
    recheck(csload, range(t+28, t+32), u)
    colsum_rows()
    A(f"s_add_u32 s{sXO}, s{sPASS}, s{sCOPY}\ns_waitcnt vmcnt(0)\ns_barrier")
    stamp(14)
    A(f"v_mov_b32 v{vQ0}, {POLo}\nbuffer_load_dword v{vQ0}, v{vQ0}, {WS}, s{sIB} offen sc1")
    for ks in range(9):
        for h in range(2): A(f"ds_read_b64_tr_b16 {ar(cW2+4*ks+2*h,2)}, v{t} offset:{ks*4096+h*512}")
    A(f"v_lshlrev_b32 v{vB}, 16, v{vB}\nv_lshlrev_b32 v{vB+1}, 16, v{vB+1}")
    stamp(15)
    g1 = gO
    poll(hloads + f"\nbuffer_load_dwordx4 {vr(g1,4)}, v{t+2}, {WS}, s{sI} offen sc1\nbuffer_load_dwordx4 {vr(g1+4,4)}, v{t+3}, {WS}, s{sI} offen sc1", list(range(gH, gH+8)) + list(range(g1, g1+8)), u, OPT["h4d"])
    for k in range(2): A(f"v_add_f32 v{vS1+k}, v{g1+4*k}, v{g1+4*k+1}\nv_add_f32 v{u+k}, v{g1+4*k+2}, v{g1+4*k+3}")
    for k in range(2): A(f"v_add_f32 v{vS1+k}, v{vS1+k}, v{u+k}")
    A(f"s_branch L_w2_ok\nL_a_first:\nv_mov_b32 v{u+15}, v{vQ0}\ns_nop 0")
    pick_take()
    A("s_branch L_q")
    C("""---- first pass, role F: workgroup 30 times the two copies, workgroup 31 prepares the second-pass slots""")
    A("L_firstF:")
    A(f"s_cmp_eq_u32 s{sJ}, 31\ns_cbranch_scc1 L_f31")
    probe()
    A("s_waitcnt lgkmcnt(0)\ns_barrier")
    probe_done()
    A("s_branch L_bf_first\nL_f31:")
    fill_group()
    A(f"v_mov_b32 v{t}, {EPO}\nv_mov_b32 v{t+1}, s{sE1}\ns_lshl_b32 s{sT0}, s2, 2\ns_add_u32 s{sT0}, s{sT0}, s{sW}\ns_cmp_eq_u32 s{sT0}, 1020\ns_cselect_b64 exec, 1, 0")
    A(f"buffer_store_dword v{t+1}, v{t}, {WS}, 0 offen sc1\ns_mov_b64 exec, -1")
    A(f"L_bf_first:\nv_mov_b32 v{aRES}, 0")
    pick_issue()
    poll(csload, range(t+28, t+32), u, 1)
    colsum_rows()
    pick_take()
    A("s_branch L_q")

body = L + TAIL
if OPT["walk"]:
    xo = [l[:-1] for l in body if l.startswith("L_xo")]; rb = [l[:-1] for l in body if l.startswith("L_rb")]; hk = [l[:-1] for l in body if l.startswith("L_hk")]
    if OPT["walk"] == 1:
        chains = {"0": (["L_q0_pub", "L_rdy", rb[0], "L_sub", "L_first", "L_w2_first", "L_a_first", "L_firstF"], "L_walked"), "1": (["L_q", xo[0], "L_roleBF", xo[1]] + hk, "L_walked")}
    else:
        chains = {"0": (["L_q0_pub"], "L_walked"), "1": (["L_rdy"], "L_walked"),
                  "a": ([rb[0], "L_sub"], "L_walked2"), "b": (["L_first", "L_w2_first", "L_a_first", "L_firstF"], "L_walked2"),
                  "c": (["L_q", xo[0], "L_roleBF", xo[1]], "L_walked2"), "d": (hk + ISL, "L_walked2")}
    for c, (names, end) in chains.items():
        for k, n in enumerate(names):
            i = body.index(n + ":")
            j = i - 1
            while body[j].endswith(":") or body[j].startswith(";"): j -= 1
            assert body[j].startswith(("s_branch", "s_endpgm")), (n, body[j])
            nxt = f"L_walk{c}_{k+1}" if k + 1 < len(names) else end
            body[j+1:j+1] = [f"L_walk{c}_{k}:", f"s_branch {nxt}"]
DEFS = []
if OPT["shift"]: body = ["s_nop 0"] * OPT["shift"] + body
if OPT["al"]:
    sys.path.insert(0, "gen")
    import align
    body, DEFS, miss = align.align(body, "\n".join(out), "")
    print(f"align: {miss} wide instructions left off an 8-byte boundary", file=sys.stderr)
txt = "\n".join(body)
if True:
    sys.path.insert(0, "gen")
    import align as _al
    nbytes = sum(_al.sizes('.amdgcn_target "amdgcn-amd-amdhsa--gfx950"\n.text\n' + txt))
    assert nbytes <= OPT["pfl"] * 128 <= nbytes + 4096 - 256, nbytes
out.append(txt)
out.append(f""".p2align 8
.fill 1024, 4, 0xbf800000
s_endpgm
{chr(10).join(DEFS)}
.section .rodata,"a"
.p2align 6
.amdhsa_kernel {NAME}_kernel
  .amdhsa_next_free_vgpr {NVGPR}
  .amdhsa_next_free_sgpr 102
  .amdhsa_accum_offset 256
  .amdhsa_group_segment_fixed_size 0
  .amdhsa_kernarg_size 96
  .amdhsa_user_sgpr_count 2
  .amdhsa_user_sgpr_kernarg_segment_ptr 1
  .amdhsa_system_sgpr_workgroup_id_x 1
  .amdhsa_float_denorm_mode_32 3
.end_amdhsa_kernel""")
print("\n".join(out))
```
